```python
import torch

def _softmax(x, axis=-1):
    return torch.softmax(x, dim=axis)
def _gelu(x):
    return torch.nn.functional.gelu(x, approximate="tanh")
def _silu(x):
    return torch.nn.functional.silu(x)
def _sigmoid(x):
    return torch.sigmoid(x)
def _layernorm(x, axis=-1, eps=1e-5):
    m = x.mean(dim=axis, keepdim=True)
    v = x.var(dim=axis, keepdim=True, unbiased=False)
    return (x - m) / torch.sqrt(v + eps)
def _scatter_add(tgt, idx, src, axis=0):
    return tgt.clone().index_add_(axis, idx, src)
def _segment_sum(src, seg, n):
    out = torch.zeros((n,) + src.shape[1:], dtype=src.dtype)
    return out.index_add_(0, seg, src)
def _pad(x, pw):
    flat = tuple(v for pair in reversed(pw) for v in pair)
    return torch.nn.functional.pad(x, flat)

kernel_name = 'parallel_sum__linear_kernel_hedgehog__mixer_token_mlp__prompt'

def setup_inputs():

    _w = (lambda a: (lambda t: t.to(torch.bfloat16) if t.is_floating_point() else t)(torch.as_tensor(a)))
    def _A_setup():
        B, S, D, H = 1, 2048, 576, 32
        Dh = D // H
        return {
            "x": _w((lambda *s: torch.randn(*s, dtype=torch.bfloat16) * 0.05)(B, S, D)),
            "wqkv": _w((lambda *s: torch.randn(*s, dtype=torch.bfloat16) * 0.2)(D, 3 * D)),
            "w_phi": _w((lambda *s: torch.randn(*s, dtype=torch.bfloat16) * 0.2)(H, Dh, Dh) * (Dh ** -0.5)),
            "wo": _w((lambda *s: torch.randn(*s, dtype=torch.bfloat16) * 0.05)(D, D)),
        }
    _A_in = _A_setup()

    def _B_setup():
        B, S, D, F = 1, 2048, 576, 4608
        return {
            "x": _w((lambda *s: torch.randn(*s, dtype=torch.bfloat16) * 0.05)(B, S, D)),
            "w1": _w((lambda *s: torch.randn(*s, dtype=torch.bfloat16) * 0.8)(S, F) * (S ** -0.5)),
            "b1": _w((lambda *s: torch.randn(*s, dtype=torch.bfloat16) * 12.8)(F) * 0.02),
            "w2": _w((lambda *s: torch.randn(*s, dtype=torch.bfloat16) * 0.1)(F, S) * (F ** -0.5)),
            "b2": _w((lambda *s: torch.randn(*s, dtype=torch.bfloat16) * 1.6)(S) * 0.02),
        }
    _B_in = _B_setup()

    return {
        "A_x": _A_in["x"],
        "A_wqkv": _A_in["wqkv"],
        "A_w_phi": _A_in["w_phi"],
        "A_wo": _A_in["wo"],
        "B_x": _B_in["x"],
        "B_w1": _B_in["w1"],
        "B_b1": _B_in["b1"],
        "B_w2": _B_in["w2"],
        "B_b2": _B_in["b2"],
    }

def reference(A_x, A_wqkv, A_w_phi, A_wo, B_x, B_w1, B_b1, B_w2, B_b2):
    def _A_ref(x, wqkv, w_phi, wo):
        B, S, D = x.shape
        H = 32; Dh = D // H
        qkv = (lambda x, *d: x.permute(*d))((x @ wqkv).reshape(B, S, 3, H, Dh), 2, 0, 3, 1, 4)
        q, k, v = qkv[0], qkv[1], qkv[2]
        pq = torch.einsum("bhsd,hdf->bhsf", q, w_phi)
        pk = torch.einsum("bhsd,hdf->bhsf", k, w_phi)
        phi_q = torch.concatenate([_softmax(pq, axis=-1), _softmax(-pq, axis=-1)], axis=-1)
        phi_k = torch.concatenate([_softmax(pk, axis=-1), _softmax(-pk, axis=-1)], axis=-1)
        kv = torch.einsum("bhsf,bhsd->bhfd", phi_k, v)
        z  = torch.einsum("bhsf->bhf", phi_k)
        num = torch.einsum("bhqf,bhfd->bhqd", phi_q, kv)
        den = torch.einsum("bhqf,bhf->bhq", phi_q, z)[..., None] + 1e-6
        o = num / den
        return (lambda x, *d: x.permute(*d))(o, 0, 2, 1, 3).reshape(B, S, D) @ wo

    def _B_ref(x, w1, b1, w2, b2):
        B, S, D = x.shape
        h = _layernorm(x, axis=-1)
        u = torch.einsum("bsd,sf->bdf", h, w1) + b1
        u = _gelu(u)
        y = torch.einsum("bdf,fs->bds", u, w2) + b2
        return (lambda x, *d: x.permute(*d))(y, 0, 2, 1)

    x = A_x
    xn = _layernorm(x, axis=-1)
    return x + _A_ref(xn, A_wqkv, A_w_phi, A_wo) + _B_ref(xn, B_w1, B_b1, B_w2, B_b2)
```

```python
class Asm:
    def __init__(self):
        self.L = []
        self.uid = 0
    def __call__(self, s):
        for line in s.split("\n"):
            self.L.append(line.rstrip())
    def label(self, name):
        self.L.append(name + ":")
    def newlabel(self, p="L"):
        self.uid += 1
        return f"{p}_{self.uid}"
    def text(self):
        return "\n".join(self.L) + "\n"

def v(i, n=1):
    return f"v{i}" if n == 1 else f"v[{i}:{i+n-1}]"
def s(i, n=1):
    return f"s{i}" if n == 1 else f"s[{i}:{i+n-1}]"

def kernel_head(A, name):
    A(f".globl {name}\n.p2align 8\n.type {name},@function\n{name}:")

def kernel_desc(A, name, vgpr, sgpr=102):
    acc = (vgpr + 3) // 4 * 4
    A(f""".p2align 6
.amdhsa_kernel {name}
  .amdhsa_next_free_vgpr {vgpr}
  .amdhsa_next_free_sgpr {sgpr}
  .amdhsa_accum_offset {acc}
  .amdhsa_group_segment_fixed_size 0
  .amdhsa_kernarg_size 96
  .amdhsa_user_sgpr_count 2
  .amdhsa_user_sgpr_kernarg_segment_ptr 1
  .amdhsa_system_sgpr_workgroup_id_x 1
.end_amdhsa_kernel""")

def srd(A, d, base, nbytes):
    A(f"s_mov_b32 s{d}, s{base}\ns_mov_b32 s{d+1}, s{base+1}\ns_mov_b32 s{d+2}, {nbytes}\ns_mov_b32 s{d+3}, 0x20000")

def srd_off(A, d, base, off, nbytes):
    A(f"s_add_u32 s{d}, s{base}, {off}\ns_addc_u32 s{d+1}, s{base+1}, 0\ns_mov_b32 s{d+2}, {nbytes}\ns_mov_b32 s{d+3}, 0x20000")
```

```python
import math, struct, sys
from asmlib import *

def f2u(x): return struct.unpack("<I", struct.pack("<f", x))[0]
LOG2E = math.log2(math.e)
OOB = 0x80000000

S, D, F, H, DH = 2048, 576, 4608, 32, 18
KA_X, KA_WQKV, KA_WPHI, KA_WO, KA_BX, KA_W1, KA_B1, KA_W2, KA_B2, KA_OUT, KA_DBG, KA_WS = [8*i for i in range(12)]
XN_OFF, XN_SZ = 0x0, 2359296
HT_OFF, HT_SZ = 0x240000, 2359296
WF_OFF, WF_SZ = 0x480000, 6*18*18*1024
U_OFF, U_SZ = 0x680000, 5308416
PHIQ_OFF, PHIQ_SZ = 0xC00000, 4718592
KVP_OFF, KVP_SZ = 0x1080000, 16*72*2048
KVF_OFF, KVF_SZ = 0x12C0000, 72*1024
WOT_OFF, WOT_SZ = 0x1300000, 16*45*1024
PART_OFF, PART_SZ = 0x1400000, 64*16*18432
STAMP_OFF, STAMP_SZ = 0x3000000, 0x100000

STAGE, POFF, WOFF, NST = 34816, 0, 18432, 4
V_PA, V_PB, V_W0A, V_W1A, V_W0B, V_W1B = 2, 3, 4, 5, 6, 7
V_PF, V_WF, V_ACC = 8, 80, 96
def pf(b, t): return v(V_PF + b*36 + t*4, 4)
def wf(b, j): return v(V_WF + b*8 + j*4, 4)
def accr(st, t, j): return V_ACC + st*72 + (t*2+j)*4
def acc(st, t, j): return v(accr(st, t, j), 4)
MF = "v_mfma_f32_16x16x32_bf16"

class Cfg:
    stamp = False
    auxW1 = ""; auxW2 = ""; auxP = ""; auxSt = ""
CFG = Cfg()

def stamp(A, i):
    if CFG.stamp: A(f"s_memrealtime s[{70+2*i}:{71+2*i}]")
def stamp_flush(A, kidx, n, s_ws, s_wave):
    if not CFG.stamp: return
    A("s_waitcnt vmcnt(0)")
    A(f"s_memrealtime s[{70+2*n}:{71+2*n}]\ns_waitcnt lgkmcnt(0)")
    srd_off(A, 92, s_ws, STAMP_OFF, STAMP_SZ)
    A(f"s_lshl_b32 s96, s2, 3\ns_add_u32 s96, s96, s{s_wave}\ns_lshl_b32 s96, s96, 6\ns_add_u32 s96, s96, {kidx*0x40000}")
    A("s_mov_b64 exec, 1\nv_mov_b32 v1, 0")
    for i in range(n+1):
        A(f"v_mov_b32 v2, s{70+2*i}\nbuffer_store_dword v2, v1, s[92:95], s96 offen offset:{4*i}")

def emit_compute_addr(A, s_wave, mode):
    A("v_and_b32 v1, 63, v0")
    A(f"v_lshlrev_b32 v{V_PA}, 4, v1")
    A(f"v_add_u32 v{V_PB}, {2*STAGE}, v{V_PA}")
    if mode == "lin":
        A(f"s_lshl_b32 s3, s{s_wave}, 11\ns_add_u32 s3, s3, {WOFF}")
        A(f"v_add_u32 v{V_W0A}, s3, v{V_PA}")
        A(f"v_add_u32 v{V_W0B}, {2*STAGE}, v{V_W0A}")
        return
    A("v_lshrrev_b32 v8, 2, v1")
    A("v_and_b32 v9, 7, v8")
    if mode == "std":
        A("v_and_b32 v10, 12, v8\nv_add_u32 v8, v8, v10")
    A(f"s_lshl_b32 s3, s{s_wave}, 1")
    A("v_xor_b32 v9, s3, v9\nv_lshlrev_b32 v9, 5, v9\nv_lshl_add_u32 v9, v8, 8, v9")
    A("v_and_b32 v8, 3, v1\nv_lshl_add_u32 v9, v8, 3, v9")
    A(f"v_add_u32 v{V_W0A}, {WOFF}, v9")
    A(f"v_xor_b32 v{V_W1A}, 32, v{V_W0A}")
    A(f"v_add_u32 v{V_W0B}, {2*STAGE}, v{V_W0A}")
    A(f"v_add_u32 v{V_W1B}, {2*STAGE}, v{V_W1A}")

def reads_P(slot, sub, b):
    a = V_PB if slot >= 2 else V_PA
    so = (slot & 1) * STAGE
    return [f"ds_read_b128 {pf(b,t)}, v{a} offset:{so + (sub*9+t)*1024}" for t in range(9)]
def reads_W(slot, sub, b, mode):
    hi = slot >= 2
    so = (slot & 1) * STAGE
    R = []
    if mode == "lin":
        a = V_W0B if hi else V_W0A
        return [f"ds_read_b128 {wf(b,j)}, v{a} offset:{so + j*1024}" for j in range(2)]
    second = 1024 if mode == "std" else 4096
    for j in range(2):
        a = (V_W0B, V_W1B)[j] if hi else (V_W0A, V_W1A)[j]
        base = V_WF + b*8 + j*4
        R.append(f"ds_read_b64_tr_b16 {v(base,2)}, v{a} offset:{so + sub*8192}")
        R.append(f"ds_read_b64_tr_b16 {v(base+2,2)}, v{a} offset:{so + sub*8192 + second}")
    return R

def block(A, M, R, barrier):
    A("s_waitcnt lgkmcnt(0)")
    if barrier: A("s_barrier")
    ri = 0
    for m in M:
        A(m)
        if ri < len(R):
            A(R[ri]); ri += 1
    assert ri == len(R)

def mfmas(st, pb, wb, w_is_A):
    M = []
    for t in range(9):
        for j in range(2):
            a, b = (wf(wb,j), pf(pb,t)) if w_is_A else (pf(pb,t), wf(wb,j))
            M.append(f"{MF} {acc(st,t,j)}, {a}, {b}, {acc(st,t,j)}")
    return M

def emit_compute_loop(A, n, mode, w_is_A, s_cnt):
    lin = mode == "lin"
    A("s_barrier")
    stamp(A, 1)
    for r in reads_W(0, 0, 0, mode) + reads_P(0, 0, 0): A(r)
    def stage(i, last):
        slot = i % NST; nxt = (i+1) % NST
        if lin:
            wb = i & 1
            block(A, mfmas(0, 0, wb, w_is_A[0]), reads_P(slot, 1, 1), False)
            block(A, mfmas(1, 1, wb, w_is_A[1]), [] if last else reads_W(nxt, 0, wb ^ 1, mode) + reads_P(nxt, 0, 0), not last)
        else:
            block(A, mfmas(0, 0, 0, w_is_A[0]), reads_W(slot, 1, 1, mode) + reads_P(slot, 1, 1), False)
            block(A, mfmas(0, 1, 1, w_is_A[1]), [] if last else reads_W(nxt, 0, 0, mode) + reads_P(nxt, 0, 0), not last)
    nloop = (n - 1) // NST
    L = A.newlabel("Lc")
    A(f"s_mov_b32 s{s_cnt}, {nloop}")
    A.label(L)
    for i in range(NST): stage(i, False)
    A(f"s_sub_u32 s{s_cnt}, s{s_cnt}, 1\ns_cmp_lg_u32 s{s_cnt}, 0\ns_cbranch_scc1 {L}")
    for i in range(nloop*NST, n): stage(i, i == n-1)

def emit_loader(A, n, cnt, issue, s_cnt):
    for i in range(3): issue(i)
    nmain = n - 3
    nloop = nmain // NST
    def it(i):
        A(f"s_waitcnt vmcnt({2*cnt})\ns_barrier")
        issue((i+3) % NST)
    L = A.newlabel("Ll")
    A(f"s_mov_b32 s{s_cnt}, {nloop}")
    A.label(L)
    for i in range(NST): it(i)
    A(f"s_sub_u32 s{s_cnt}, s{s_cnt}, 1\ns_cmp_lg_u32 s{s_cnt}, 0\ns_cbranch_scc1 {L}")
    for i in range(nloop*NST, nmain): it(i)
    A(f"s_waitcnt vmcnt({2*cnt})\ns_barrier\ns_waitcnt vmcnt({cnt})\ns_barrier\ns_waitcnt vmcnt(0)\ns_barrier")

def emit_loader_lin(A, n, per, ldsoff, s_lw, srdP, s_off, s_cnt, s_tmp, aux=""):
    A("v_and_b32 v1, 63, v0\nv_lshlrev_b32 v1, 4, v1")
    A(f"s_mul_i32 s{s_tmp}, s{s_lw}, {per*1024}")
    A(f"v_add_u32 v2, s{s_tmp}, v1")
    for q in range(1, (per+3)//4): A(f"v_add_u32 v{2+q}, {q*4096}, v2")
    def issue(slot):
        for j in range(per):
            if j % 4 == 0:
                A(f"s_add_u32 m0, s{s_tmp}, {slot*STAGE + ldsoff + (j//4)*4096}\ns_nop 0")
            A(f"buffer_load_dwordx4 v{2+j//4}, {s(srdP,4)}, s{s_off} offen offset:{(j%4)*1024} {aux} lds")
        A(f"s_add_u32 s{s_off}, s{s_off}, {2*per*1024}")
    emit_loader(A, n, per, issue, s_cnt)

def emit_loader_W(A, n, mode, s_lw, srdW, s_off, stride, s_cnt, s_tmp, aux=""):
    A("v_and_b32 v1, 63, v0\nv_lshrrev_b32 v10, 4, v1\nv_and_b32 v11, 15, v1")
    A(f"s_lshl_b32 s{s_tmp}, s{s_lw}, 5\nv_add_u32 v12, s{s_tmp}, v10")
    A(f"s_mov_b32 s3, {stride}\nv_mul_lo_u32 v12, v12, s3")
    for par in range(2):
        A(f"v_or_b32 v13, {4*par}, v10\nv_lshlrev_b32 v13, 1, v13\nv_xor_b32 v13, v13, v11")
        A("v_lshl_add_u32 v13, v13, 4, v12")
        for j in range(8):
            key = (j & 1) if mode == "pi" else ((j >> 1) & 1)
            if key == par:
                A(f"v_add_u32 v{2+j}, {4*j*stride - (j%4)*1024}, v13")
    A(f"s_lshl_b32 s{s_tmp}, s{s_lw}, 13")
    def issue(slot):
        for j in range(8):
            if j % 4 == 0:
                A(f"s_add_u32 m0, s{s_tmp}, {slot*STAGE + WOFF + (j//4)*4096}\ns_nop 0")
            A(f"buffer_load_dwordx4 v{2+j}, {s(srdW,4)}, s{s_off} offen offset:{(j%4)*1024} {aux} lds")
        A(f"s_add_u32 s{s_off}, s{s_off}, {64*stride}")
    emit_loader(A, n, 8, issue, s_cnt)

def wave_id(A, sd):
    A(f"v_lshrrev_b32 v1, 6, v0\ns_nop 1\nv_readfirstlane_b32 s{sd}, v1")

def reduce32(A, regs, tmp):
    pad = "s_nop 1" if len(regs) == 1 else "s_nop 0"
    A("s_nop 1")
    for pat in ["quad_perm:[1,0,3,2]", "quad_perm:[2,3,0,1]", "row_half_mirror", "row_mirror"]:
        for r in regs:
            A(f"v_add_f32_dpp v{r}, v{r}, v{r} {pat} row_mask:0xf bank_mask:0xf")
        A(pad)
    for i, r in enumerate(regs): A(f"v_mov_b32 v{tmp+i}, v{r}")
    A("s_nop 1")
    for i, r in enumerate(regs): A(f"v_permlane16_swap_b32 v{r}, v{tmp+i}")
    A("s_nop 1")
    for i, r in enumerate(regs): A(f"v_add_f32 v{r}, v{r}, v{tmp+i}")

XRS, HRS = 1168, 1216
K0_HL = 8*XRS
K0_DUMMY = K0_HL + 8*HRS
K0_LDS = K0_DUMMY + 2048
def gen_k0(A):
    kernel_head(A, "k0_kernel")
    stamp(A, 0)
    A("s_cmp_ge_u32 s2, 472\ns_cbranch_scc1 K0_end")
    A(f"s_load_dwordx4 s[4:7], s[0:1], {KA_X}\ns_load_dwordx2 s[24:25], s[0:1], {KA_WPHI}\ns_load_dwordx2 s[26:27], s[0:1], {KA_WS}")
    wave_id(A, 16)
    A("s_cmp_ge_u32 s2, 256\ns_cbranch_scc1 K0_fold")
    X, P = 20, 8
    A("v_lshrrev_b32 v2, 5, v0\nv_and_b32 v3, 31, v0")
    A("v_mul_u32_u24 v4, 1152, v2\nv_lshl_add_u32 v4, v3, 4, v4")
    A(f"v_cmp_gt_u32 s[30:31], 24, v3\nv_mov_b32 v5, {OOB}")
    A("s_mul_i32 s3, s2, 9216")
    A("v_cndmask_b32 v4, v5, v4, s[30:31]")
    A("s_waitcnt lgkmcnt(0)")
    srd(A, 8, 4, S*D*2)
    for j in range(3): A(f"buffer_load_dwordx4 {v(P+4*j,4)}, v4, s[8:11], s3 offen offset:{384*j}")
    A(f"v_mul_u32_u24 v6, {XRS}, v2\nv_lshl_add_u32 v6, v3, 4, v6")
    A(f"v_mul_u32_u24 v7, {HRS}, v2\nv_lshl_add_u32 v7, v3, 4, v7\nv_add_u32 v7, {K0_HL}, v7")
    A(f"v_mov_b32 v5, {K0_DUMMY}\nv_cndmask_b32 v6, v5, v6, s[30:31]\nv_cndmask_b32 v7, v5, v7, s[30:31]")
    srd_off(A, 12, 26, XN_OFF, XN_SZ)
    srd_off(A, 20, 26, HT_OFF, HT_SZ)
    A(f"s_mov_b32 s33, {f2u(1.0/576)}\ns_mov_b32 s34, {f2u(1e-5)}")
    def unpack():
        for i in range(12):
            A(f"v_lshlrev_b32 v{X+2*i}, 16, v{P+i}\nv_and_b32 v{X+2*i+1}, 0xffff0000, v{P+i}")
    def xp(i): return v(X+2*i, 2)
    def psum(dst):
        A(f"v_pk_add_f32 {v(dst,2)}, {xp(0)}, {xp(1)}\nv_pk_add_f32 {v(dst+2,2)}, {xp(2)}, {xp(3)}")
        for i in range(4, 12): A(f"v_pk_add_f32 {v(dst+2*(i&1),2)}, {v(dst+2*(i&1),2)}, {xp(i)}")
        A(f"v_pk_add_f32 {v(dst,2)}, {v(dst,2)}, {v(dst+2,2)}\nv_add_f32 v{dst}, v{dst}, v{dst+1}")
    def psq(dst):
        A(f"v_pk_mul_f32 {v(dst,2)}, {xp(0)}, {xp(0)}\nv_pk_mul_f32 {v(dst+2,2)}, {xp(1)}, {xp(1)}")
        for i in range(2, 12): A(f"v_pk_fma_f32 {v(dst+2*(i&1),2)}, {xp(i)}, {xp(i)}, {v(dst+2*(i&1),2)}")
        A(f"v_pk_add_f32 {v(dst,2)}, {v(dst,2)}, {v(dst+2,2)}\nv_add_f32 v{dst}, v{dst}, v{dst+1}")
    def pack():
        for i in range(12): A(f"v_cvt_pk_bf16_f32 v{P+i}, v{X+2*i}, v{X+2*i+1}")
    A("s_waitcnt vmcnt(0)")
    stamp(A, 1)
    unpack()
    psum(44)
    reduce32(A, [44], 52)
    A("v_mul_f32 v44, s33, v44")
    for i in range(12): A(f"v_pk_add_f32 {xp(i)}, {xp(i)}, v[44:45] op_sel_hi:[1,0] neg_lo:[0,1] neg_hi:[0,1]")
    psq(48)
    A("v_cndmask_b32 v48, 0, v48, s[30:31]")
    reduce32(A, [48], 52)
    A("v_mov_b32 v49, s34\nv_fma_f32 v48, v48, s33, v49\nv_rsq_f32 v48, v48\ns_nop 0")
    for i in range(12): A(f"v_pk_mul_f32 {xp(i)}, {xp(i)}, v[48:49] op_sel_hi:[1,0]")
    pack()
    for j in range(3): A(f"ds_write_b128 v6, {v(P+4*j,4)} offset:{384*j}")
    unpack()
    psum(44); psq(48)
    A("v_cndmask_b32 v44, 0, v44, s[30:31]\nv_cndmask_b32 v48, 0, v48, s[30:31]")
    reduce32(A, [44, 48], 52)
    A("v_mul_f32 v44, s33, v44\nv_mov_b32 v49, s34\nv_fma_f32 v48, v48, s33, v49\nv_fma_f32 v48, -v44, v44, v48")
    A("v_rsq_f32 v48, v48\ns_nop 0\nv_mul_f32 v44, v44, v48")
    for i in range(12): A(f"v_pk_fma_f32 {xp(i)}, {xp(i)}, v[48:49], v[44:45] op_sel_hi:[1,0,0] neg_lo:[0,0,1] neg_hi:[0,0,1]")
    pack()
    for j in range(3): A(f"ds_write_b128 v7, {v(P+4*j,4)} offset:{384*j}")
    A("v_and_b32 v1, 63, v0\nv_and_b32 v2, 7, v1\nv_lshrrev_b32 v3, 3, v1")
    A(f"v_mul_u32_u24 v4, {XRS}, v2\nv_lshl_add_u32 v4, v3, 4, v4")
    A("s_lshl_b32 s3, s16, 7\nv_add_u32 v4, s3, v4")
    A("v_lshrrev_b32 v5, 2, v3\nv_lshlrev_b32 v5, 13, v5\nv_and_b32 v3, 3, v3\nv_lshl_add_u32 v5, v3, 8, v5\nv_lshl_add_u32 v5, v2, 4, v5")
    A("s_lshr_b32 s17, s2, 4\ns_mul_i32 s17, s17, 147456\ns_bfe_u32 s18, s2, 0x30001\ns_lshl_b32 s18, s18, 10\ns_add_u32 s17, s17, s18")
    A("s_and_b32 s18, s2, 1\ns_lshl_b32 s18, s18, 7\ns_add_u32 s17, s17, s18\ns_lshl_b32 s18, s16, 14\ns_add_u32 s17, s17, s18")
    A("v_bfe_u32 v2, v1, 2, 2\nv_lshrrev_b32 v3, 4, v1\nv_and_b32 v6, 3, v1")
    A(f"v_mul_u32_u24 v7, {HRS}, v2\nv_lshl_add_u32 v7, v3, 5, v7\nv_lshl_add_u32 v7, v6, 3, v7")
    A(f"s_add_u32 s3, s3, {K0_HL}\nv_add_u32 v7, s3, v7")
    A("s_lshl_b32 s3, s16, 2\nv_add_u32 v3, s3, v3")
    A("v_and_b32 v2, 15, v1\nv_lshlrev_b32 v2, 4, v2")
    A(f"s_mov_b32 s35, {589824-9216}")
    for n in range(3):
        A(f"v_add_u32 v6, {16*n}, v3\nv_mul_u32_u24 v44, 57, v6\nv_lshrrev_b32 v44, 9, v44")
        A(f"v_lshl_add_u32 v6, v6, 10, v2\nv_mad_u32_u24 v{45+n}, v44, s35, v6")
    A("s_lshr_b32 s18, s2, 2\ns_mul_i32 s18, s18, 9216\ns_and_b32 s19, s2, 3\ns_lshl_b32 s19, s19, 8\ns_add_u32 s18, s18, s19")
    A("s_waitcnt lgkmcnt(0)\ns_barrier")
    stamp(A, 2)
    def rb_read(n):
        A(f"ds_read_b128 {v(8+8*n,4)}, v4 offset:{512*n}")
        A(f"ds_read_b64_tr_b16 {v(12+8*n,2)}, v7 offset:{512*n}\nds_read_b64_tr_b16 {v(14+8*n,2)}, v7 offset:{512*n + 4*HRS}")
    def rb_store(n):
        A(f"buffer_store_dwordx4 {v(8+8*n,4)}, v5, s[12:15], s17 offen {CFG.auxSt}")
        A(f"buffer_store_dwordx4 {v(12+8*n,4)}, v{45+n}, s[20:23], s18 offen {CFG.auxSt}")
        A("s_add_u32 s17, s17, 65536")
    rb_read(0); rb_read(1)
    A("s_waitcnt lgkmcnt(3)")
    rb_store(0)
    A("s_waitcnt lgkmcnt(0)")
    rb_store(1)
    A("s_cmp_lg_u32 s16, 0\ns_cbranch_scc1 K0_lnend")
    rb_read(2)
    A("s_waitcnt lgkmcnt(0)")
    rb_store(2)
    A.label("K0_lnend")
    stamp_flush(A, 0, 3, 26, 16)
    A("s_endpgm")
    A.label("K0_fold")
    A("s_sub_u32 s17, s2, 256\ns_mul_i32 s18, s17, 7282\ns_lshr_b32 s18, s18, 16")
    A("s_mul_i32 s19, s18, 9\ns_sub_u32 s17, s17, s19")
    A("s_and_b32 s19, s18, 1\ns_bfe_u32 s28, s18, 0x20001\ns_lshr_b32 s29, s18, 3")
    A("s_lshl_b32 s30, s16, 1\ns_add_u32 s30, s30, s19")
    A("s_lshl_b32 s31, s28, 3\ns_add_u32 s31, s31, s30")
    A("v_and_b32 v1, 63, v0\nv_and_b32 v2, 15, v1\nv_lshrrev_b32 v3, 4, v1")
    A("v_and_b32 v4, 12, v2\nv_add_u32 v4, v4, v2")
    A("v_mul_u32_u24 v4, 3456, v4\nv_lshl_add_u32 v4, v3, 4, v4")
    A(f"v_mov_b32 v10, {OOB}\nv_cmp_gt_u32 s[36:37], 3, v3\nv_cmp_gt_u32 s[38:39], 2, v3\nv_cmp_gt_u32 s[40:41], 2, v2")
    A(f"s_mul_i32 s32, s17, {64*3456}\ns_mul_i32 s33, s29, 1152\ns_add_u32 s32, s32, s33\ns_mul_i32 s33, s31, 36\ns_add_u32 s32, s32, s33")
    A("v_cndmask_b32 v4, v10, v4, s[36:37]")
    A("s_waitcnt lgkmcnt(0)")
    srd(A, 8, 6, D*3*D*2)
    srd(A, 12, 24, H*DH*DH*2)
    srd_off(A, 20, 26, WF_OFF, WF_SZ)
    for q in range(4):
        A(f"buffer_load_dwordx4 {v(12+4*q,4)}, v4, s[8:11], s32 offen")
        if q < 3: A(f"s_add_u32 s32, s32, {4*3456 if q != 1 else 28*3456}")
    B = 28
    A("s_cmp_eq_u32 s29, 2\ns_cbranch_scc1 K0_ident")
    A("v_mul_u32_u24 v5, 288, v3\nv_lshl_add_u32 v5, v2, 1, v5")
    A("v_cndmask_b32 v6, v10, v5, s[36:37]\nv_cndmask_b32 v7, v10, v5, s[38:39]")
    A("v_cndmask_b32 v8, v10, v6, s[40:41]\nv_cndmask_b32 v9, v10, v7, s[40:41]")
    A("s_mul_i32 s33, s31, 648")
    for nt in range(2):
        for ii in range(8):
            a = (6 if ii < 2 else 7) + 2*nt
            A(f"buffer_load_ushort v{36+8*nt+ii}, v{a}, s[12:15], s33 offen offset:{36*ii + 32*nt}")
    A("s_mul_i32 s34, s19, 18\nv_add_u32 v5, s34, v2")
    A("s_lshl_b32 s35, s16, 6")
    for nt in range(2):
        if nt: A("v_add_u32 v5, 16, v5")
        A(f"v_lshrrev_b32 v6, 2, v5\nv_lshlrev_b32 v6, 10, v6\nv_and_b32 v7, 3, v5\nv_lshl_add_u32 v6, v7, 4, v6")
        A(f"v_lshl_add_u32 v6, v3, 8, v6\nv_add_u32 v{52+nt}, s35, v6")
    A("s_lshr_b32 s34, s28, 1\ns_add_u32 s34, s34, 4\ns_and_b32 s35, s28, 1\ns_mul_i32 s35, s35, 9216")
    A("s_cmp_eq_u32 s29, 0\ns_cselect_b32 s34, s34, s28\ns_cselect_b32 s35, s35, 0")
    A(f"s_mov_b32 s42, {f2u(LOG2E)}")
    A("s_waitcnt vmcnt(0)")
    for q in range(8): A(f"v_lshl_or_b32 v{B+q}, v{36+2*q+1}, 16, v{36+2*q}")
    A("s_branch K0_fmm")
    A.label("K0_ident")
    A("v_lshlrev_b32 v5, 3, v3\nv_sub_u32 v5, v2, v5\nv_add_u32 v6, 16, v5\nv_cndmask_b32 v6, v10, v6, s[40:41]")
    A("v_mov_b32 v7, 0x3f80\nv_mov_b32 v8, 0x3f800000")
    for nt in range(2):
        for q in range(4):
            A(f"v_cmp_eq_u32 vcc, {2*q}, v{5+nt}\nv_cmp_eq_u32 s[44:45], {2*q+1}, v{5+nt}\ns_nop 1")
            A(f"v_cndmask_b32 v9, 0, v7, vcc\nv_cndmask_b32 v{B+4*nt+q}, v9, v8, s[44:45]")
    A("v_lshlrev_b32 v6, 8, v3\nv_lshl_add_u32 v6, v2, 4, v6")
    A("s_lshl_b32 s34, s30, 10\nv_add_u32 v52, s34, v6")
    A("s_lshl_b32 s34, s30, 5\ns_add_u32 s34, s34, 8192\nv_add_u32 v53, s34, v6")
    A("s_mov_b32 s34, s28\ns_mov_b32 s35, 9216\ns_mov_b32 s42, 1.0")
    A("s_waitcnt vmcnt(0)")
    A.label("K0_fmm")
    A("v_cndmask_b32 v53, v10, v53, s[40:41]")
    A("s_mul_i32 s34, s34, 18\ns_lshl_b32 s33, s17, 1\ns_add_u32 s34, s34, s33\ns_mul_i32 s34, s34, 18432\ns_add_u32 s34, s34, s35")
    DD = 56
    for kbi in range(2):
        for nt in range(2):
            for a in range(2):
                A(f"{MF} {v(DD+16*kbi+8*nt+4*a,4)}, {v(12+8*kbi+4*a,4)}, {v(B+4*nt,4)}, 0")
    A("s_nop 7")
    for kbi in range(2):
        for nt in range(2):
            d0 = DD+16*kbi+8*nt
            for i in range(8): A(f"v_mul_f32 v{d0+i}, s42, v{d0+i}")
            o = 36 + 8*kbi + 4*nt
            for i in range(4): A(f"v_cvt_pk_bf16_f32 v{o+i}, v{d0+2*i}, v{d0+2*i+1}")
            A(f"buffer_store_dwordx4 {v(o,4)}, v{52+nt}, s[20:23], s34 offen {CFG.auxSt}")
        if kbi == 0: A("s_add_u32 s34, s34, 18432")
    stamp_flush(A, 0, 1, 26, 16)
    A.label("K0_end")
    A("s_endpgm")

def softmax18(A, PR, dst):
    vals = [r + i for r in PR for i in range(2)]
    EP, EN, MX, MN = 8, 26, 44, 46
    A(f"v_max3_f32 v{MX}, v{vals[0]}, v{vals[1]}, v{vals[2]}\nv_min3_f32 v{MN}, v{vals[0]}, v{vals[1]}, v{vals[2]}")
    for i in range(3, 17, 2):
        A(f"v_max3_f32 v{MX}, v{MX}, v{vals[i]}, v{vals[i+1]}\nv_min3_f32 v{MN}, v{MN}, v{vals[i]}, v{vals[i+1]}")
    A(f"v_max_f32 v{MX}, v{MX}, v{vals[17]}\nv_min_f32 v{MN}, v{MN}, v{vals[17]}")
    for p in range(9):
        A(f"v_pk_add_f32 {v(EP+2*p,2)}, {v(PR[p],2)}, {v(MX,2)} op_sel_hi:[1,0] neg_lo:[0,1] neg_hi:[0,1]")
        A(f"v_pk_add_f32 {v(EN+2*p,2)}, {v(PR[p],2)}, {v(MN,2)} op_sel_hi:[1,0] neg_lo:[1,0] neg_hi:[1,0]")
    for i in range(36): A(f"v_exp_f32 v{EP+i}, v{EP+i}")
    A(f"v_pk_add_f32 {v(MX,2)}, {v(EP,2)}, {v(EP+2,2)}\nv_pk_add_f32 {v(MN,2)}, {v(EN,2)}, {v(EN+2,2)}")
    for p in range(2, 9):
        A(f"v_pk_add_f32 {v(MX,2)}, {v(MX,2)}, {v(EP+2*p,2)}\nv_pk_add_f32 {v(MN,2)}, {v(MN,2)}, {v(EN+2*p,2)}")
    A(f"v_add_f32 v{MX}, v{MX}, v{MX+1}\nv_add_f32 v{MN}, v{MN}, v{MN+1}")
    A(f"v_rcp_f32 v{MX}, v{MX}\nv_rcp_f32 v{MN}, v{MN}\ns_nop 0")
    for p in range(9):
        A(f"v_pk_mul_f32 {v(EP+2*p,2)}, {v(EP+2*p,2)}, {v(MX,2)} op_sel_hi:[1,0]")
        A(f"v_pk_mul_f32 {v(EN+2*p,2)}, {v(EN+2*p,2)}, {v(MN,2)} op_sel_hi:[1,0]")
    for m in range(18): A(f"v_cvt_pk_bf16_f32 v{dst(m)}, v{EP+2*m}, v{EP+2*m+1}")

def pairs(st, j, e):
    return [accr(st, (9*e+p) >> 1, j) + 2*((9*e+p) & 1) for p in range(9)]

PHI_RS = 608
V_LDS = 128*PHI_RS
def gen_k1(A):
    kernel_head(A, "k1_kernel")
    stamp(A, 0)
    A("s_cmp_ge_u32 s2, 256\ns_cbranch_scc1 K1_end")
    A(f"s_load_dwordx4 s[4:7], s[0:1], {KA_W1}\ns_load_dwordx2 s[24:25], s[0:1], {KA_WO}\ns_load_dwordx2 s[26:27], s[0:1], {KA_WS}")
    wave_id(A, 16)
    A("s_and_b32 s17, s2, 7\ns_lshr_b32 s18, s2, 3")
    A("s_cmp_ge_u32 s18, 18\ns_cbranch_scc1 K1_notg1")
    A("s_mul_i32 s19, s17, 18\ns_add_u32 s19, s19, s18\ns_and_b32 s22, s19, 3\ns_lshr_b32 s23, s19, 2")
    A("s_waitcnt lgkmcnt(0)")
    A("s_cmp_ge_u32 s16, 6\ns_cbranch_scc1 K1_ldW\ns_cmp_ge_u32 s16, 4\ns_cbranch_scc1 K1_ldP")
    srd(A, 32, 6, F*2)
    srd_off(A, 36, 26, U_OFF, U_SZ)
    A("v_bfe_u32 v8, v0, 4, 2\nv_lshlrev_b32 v8, 3, v8")
    A("s_lshl_b32 s3, s23, 8\ns_lshl_b32 s17, s16, 6\ns_add_u32 s3, s3, s17")
    A("buffer_load_dwordx2 v[12:13], v8, s[32:35], s3 offen\nbuffer_load_dwordx2 v[14:15], v8, s[32:35], s3 offen offset:32")
    emit_compute_addr(A, 16, "std")
    A("s_waitcnt vmcnt(0)")
    for j in range(2):
        A(f"v_lshlrev_b32 v{V_ACC+j*4}, 16, v{12+2*j}\nv_and_b32 v{V_ACC+j*4+1}, 0xffff0000, v{12+2*j}")
        A(f"v_lshlrev_b32 v{V_ACC+j*4+2}, 16, v{13+2*j}\nv_and_b32 v{V_ACC+j*4+3}, 0xffff0000, v{13+2*j}")
    for i in range(8, 72, 2): A(f"v_pk_mov_b32 {v(V_ACC+i,2)}, {v(V_ACC+i%8,2)}, {v(V_ACC+i%8,2)} op_sel:[0,1]")
    emit_compute_loop(A, 32, "std", (True, True), 20)
    stamp(A, 2)
    c0 = -2*math.sqrt(2/math.pi)*LOG2E; c1 = c0*0.044715
    A(f"s_mov_b32 s52, {f2u(c1)}\ns_mov_b32 s53, {f2u(c1)}\nv_mov_b32 v8, {f2u(c0)}\nv_mov_b32 v9, {f2u(c0)}")
    A("s_mul_i32 s17, s22, 144\ns_lshl_b32 s3, s23, 2\ns_add_u32 s17, s17, s3\ns_add_u32 s17, s17, s16\ns_mul_i32 s17, s17, 9216")
    for t in range(9):
        a0 = V_ACC + t*8
        T = 16 + (t % 2) * 12
        for p in range(4): A(f"v_pk_mul_f32 {v(T+2*p,2)}, {v(a0+2*p,2)}, {v(a0+2*p,2)}")
        for p in range(4): A(f"v_pk_fma_f32 {v(T+2*p,2)}, {v(T+2*p,2)}, s[52:53], v[8:9]")
        for p in range(4): A(f"v_pk_mul_f32 {v(T+2*p,2)}, {v(T+2*p,2)}, {v(a0+2*p,2)}")
        for e in range(8): A(f"v_exp_f32 v{T+e}, v{T+e}")
        for p in range(4): A(f"v_pk_add_f32 {v(T+2*p,2)}, {v(T+2*p,2)}, 1.0 op_sel_hi:[1,0]")
        for e in range(8): A(f"v_rcp_f32 v{T+e}, v{T+e}")
        for p in range(4): A(f"v_pk_mul_f32 {v(T+2*p,2)}, {v(T+2*p,2)}, {v(a0+2*p,2)}")
        for p in range(4): A(f"v_cvt_pk_bf16_f32 v{T+8+p}, v{T+2*p}, v{T+2*p+1}")
        if t and t % 4 == 0: A("s_add_u32 s17, s17, 4096")
        A(f"buffer_store_dwordx4 {v(T+8,4)}, v{V_PA}, s[36:39], s17 offen offset:{(t%4)*1024} {CFG.auxSt}")
    stamp(A, 3)
    stamp_flush(A, 1, 4, 26, 16)
    A("s_endpgm")
    A.label("K1_ldP")
    srd_off(A, 8, 26, HT_OFF, HT_SZ)
    A(f"s_sub_u32 s17, s16, 4\ns_mul_i32 s21, s22, {64*9216}")
    emit_loader_lin(A, 32, 9, POFF, 17, 8, 21, 20, 18, CFG.auxP)
    A("s_endpgm")
    A.label("K1_ldW")
    srd(A, 12, 4, S*F*2)
    A("s_sub_u32 s17, s16, 6\ns_lshl_b32 s21, s23, 8")
    emit_loader_W(A, 32, "std", 17, 12, 21, 9216, 20, 18, CFG.auxW1)
    A("s_endpgm")
    A.label("K1_notg1")
    A("s_cmp_ge_u32 s18, 30\ns_cbranch_scc1 K1_spare")
    A("s_sub_u32 s18, s18, 18\ns_and_b32 s22, s18, 3\ns_lshr_b32 s19, s17, 1\ns_lshl_b32 s19, s19, 2\ns_add_u32 s22, s22, s19")
    A("s_lshr_b32 s18, s18, 2\ns_and_b32 s17, s17, 1\ns_lshl_b32 s19, s17, 1\ns_add_u32 s23, s19, s18\ns_add_u32 s17, s17, 4")
    A("s_cmp_eq_u32 s18, 2\ns_cselect_b32 s23, s17, s23")
    A("s_waitcnt lgkmcnt(0)")
    A("s_cmp_ge_u32 s16, 6\ns_cbranch_scc1 K1_ldX\ns_cmp_ge_u32 s16, 4\ns_cbranch_scc1 K1_ldF")
    emit_compute_addr(A, 16, "lin")
    for i in range(0, 144, 2): A(f"v_pk_mov_b32 {v(V_ACC+i,2)}, 0, 0")
    A("s_cmp_ge_u32 s23, 4\ns_cbranch_scc1 K1_q")
    emit_compute_loop(A, 18, "lin", (False, True), 20)
    stamp(A, 2)
    A("s_barrier")
    QB = 48
    A(f"v_and_b32 v2, 15, v1\nv_lshrrev_b32 v3, 4, v1")
    A(f"s_lshl_b32 s3, s16, 5\nv_add_u32 v4, s3, v2\nv_mul_u32_u24 v4, {PHI_RS}, v4\nv_mul_u32_u24 v5, 144, v3\nv_add_u32 v4, v4, v5")
    A(f"s_mul_i32 s3, s16, 9216\ns_add_u32 s3, s3, {V_LDS}\nv_lshlrev_b32 v5, 4, v1\nv_add_u32 v5, s3, v5")
    for t in range(9):
        o = 84 + 4*(t % 3)
        for j in range(2):
            r = accr(1, t, j)
            A(f"v_cvt_pk_bf16_f32 v{o+2*j}, v{r}, v{r+1}\nv_cvt_pk_bf16_f32 v{o+2*j+1}, v{r+2}, v{r+3}")
        A(f"ds_write_b128 v5, {v(o,4)} offset:{t*1024}")
    for j in range(2):
        for e in range(2):
            softmax18(A, pairs(0, j, e), lambda m: QB + 18*e + m)
        for q in range(9): A(f"ds_write_b128 v4, {v(QB+4*q,4)} offset:{j*16*PHI_RS + 16*q}")
    A(f"v_lshrrev_b32 v6, 2, v1\nv_mul_u32_u24 v6, {PHI_RS}, v6\nv_and_b32 v7, 3, v1\nv_lshl_add_u32 v6, v7, 3, v6")
    A("s_mul_i32 s3, s16, 144\nv_add_u32 v6, s3, v6")
    A("s_lshl_b32 s3, s16, 3\nv_subrev_u32 v7, s3, v6")
    A(f"v_add_u32 v8, {64*PHI_RS}, v6\nv_add_u32 v9, {64*PHI_RS}, v7")
    A(f"s_lshl_b32 s3, s16, 11\ns_add_u32 s3, s3, {V_LDS}\nv_lshlrev_b32 v10, 4, v1\nv_add_u32 v10, s3, v10")
    A(f"v_lshlrev_b32 v11, 8, v3\nv_lshrrev_b32 v12, 2, v2\nv_and_b32 v12, 1, v12\nv_lshl_add_u32 v11, v12, 4, v11")
    A(f"s_lshl_b32 s3, s16, 6\ns_add_u32 s3, s3, {V_LDS + 8192}\nv_add_u32 v11, s3, v11")
    A("s_mov_b32 s40, 0x00110011\ns_mov_b32 s41, 0x00110011\nv_mov_b32 v12, 0x3f803f80")
    A("s_waitcnt lgkmcnt(0)\ns_barrier")
    stamp(A, 3)
    DK, FR = 16, 64
    def afr(ks, e, T): return FR + ks*40 + e*12 + T*4
    def bfr(ks, e, mt): return FR + ks*40 + 24 + e*8 + mt*4
    def dk(e, T, mt): return DK + (e*6 + mt*3 + T)*4
    for ks in range(4):
        for e in range(2):
            A(f"ds_read_b128 {v(bfr(ks,e,1),4)}, v11 offset:{ks*9216 + e*32}")
            A(f"ds_read_b128 {v(bfr(ks,e,0),4)}, v10 offset:{ks*9216 + e*1024}")
            for T in range(3):
                a = (7 if T == 2 else 6) + (2 if ks >= 2 else 0)
                off = (ks & 1)*32*PHI_RS + e*72 + T*32
                A(f"ds_read_b64_tr_b16 {v(afr(ks,e,T),2)}, v{a} offset:{off}")
                A(f"ds_read_b64_tr_b16 {v(afr(ks,e,T)+2,2)}, v{a} offset:{off + 16*PHI_RS}")
    srd_off(A, 36, 26, KVP_OFF, KVP_SZ)
    A("s_mul_i32 s17, s22, 72\ns_mul_i32 s18, s23, 18\ns_add_u32 s17, s17, s18\ns_lshl_b32 s17, s17, 11")
    A("s_add_u32 s19, s17, 16384\ns_lshl_b32 s18, s16, 12\ns_add_u32 s17, s17, s18")
    A("v_lshlrev_b32 v2, 4, v1")
    A("s_waitcnt lgkmcnt(0)")
    for ks in range(4):
        for e in range(2):
            for i in range(4): A(f"v_cndmask_b32 v{bfr(ks,e,1)+i}, v12, v{bfr(ks,e,1)+i}, s[40:41]")
    A("s_nop 1")
    for ks in range(4):
        for e in range(2):
            for mt in range(2):
                for T in range(3):
                    c = "0" if ks == 0 else v(dk(e,T,mt),4)
                    A(f"{MF} {v(dk(e,T,mt),4)}, {v(afr(ks,e,T),4)}, {v(bfr(ks,e,mt),4)}, {c}")
    A("s_lshl_b32 s18, s16, 4\ns_lshl_b64 s[42:43], 0xffff, s18\ns_nop 7")
    for mt in range(2):
        for e in range(2):
            for T in range(2):
                A(f"buffer_store_dwordx4 {v(dk(e,T,mt),4)}, v2, s[36:39], s17 offen offset:{e*2048 + T*1024} {CFG.auxSt}")
        A("s_add_u32 s17, s17, 18432")
    A("s_mov_b64 exec, s[42:43]")
    for mt in range(2):
        for e in range(2):
            A(f"buffer_store_dwordx4 {v(dk(e,2,mt),4)}, v2, s[36:39], s19 offen offset:{e*1024} {CFG.auxSt}")
        A("s_add_u32 s19, s19, 18432")
    stamp_flush(A, 1, 4, 26, 16)
    A("s_endpgm")
    A.label("K1_q")
    emit_compute_loop(A, 18, "lin", (False, False), 20)
    stamp(A, 2)
    srd_off(A, 36, 26, PHIQ_OFF, PHIQ_SZ)
    A("v_and_b32 v2, 15, v1\nv_lshrrev_b32 v3, 4, v1\nv_lshlrev_b32 v3, 11, v3\nv_lshl_add_u32 v3, v2, 4, v3")
    A("v_lshlrev_b32 v2, 4, v1\nv_add_u32 v2, 8192, v2")
    A("s_lshl_b32 s17, s22, 3\ns_lshl_b32 s18, s16, 1\ns_add_u32 s17, s17, s18\ns_lshl_b32 s17, s17, 1\ns_add_u32 s17, s17, s23\ns_sub_u32 s17, s17, 4\ns_mul_i32 s17, s17, 18432")
    for j in range(2):
        for st in range(2):
            for e in range(2):
                softmax18(A, pairs(st, j, e), lambda m: (QB + e*16 + 4*((m & 7) >> 1) + (m & 1) + 2*(m >> 3)) if m < 16 else QB + 32 + 2*e + m - 16)
                for gg in range(4):
                    A(f"buffer_store_dwordx4 {v(QB+e*16+4*gg,4)}, v3, s[36:39], s17 offen offset:{e*1024 + gg*256} {CFG.auxSt}")
            A(f"buffer_store_dwordx4 {v(QB+32,4)}, v2, s[36:39], s17 offen {CFG.auxSt}")
            A(f"s_add_u32 s17, s17, {9216 if st == 0 else 36864 - 9216}")
    stamp(A, 3)
    stamp_flush(A, 1, 4, 26, 16)
    A("s_endpgm")
    A.label("K1_ldF")
    srd_off(A, 8, 26, WF_OFF, WF_SZ)
    A(f"s_sub_u32 s17, s16, 4\ns_mul_i32 s21, s23, {18*18432}")
    emit_loader_lin(A, 18, 9, POFF, 17, 8, 21, 20, 18, CFG.auxP)
    A("s_endpgm")
    A.label("K1_ldX")
    srd_off(A, 8, 26, XN_OFF, XN_SZ)
    A(f"s_sub_u32 s17, s16, 6\ns_mul_i32 s21, s22, {18*8192}")
    emit_loader_lin(A, 18, 4, WOFF, 17, 8, 21, 20, 18, CFG.auxP)
    A("s_endpgm")
    A.label("K1_spare")
    A("s_cmp_ge_u32 s16, 5\ns_cbranch_scc1 K1_end")
    A("s_sub_u32 s18, s18, 30\ns_lshl_b32 s17, s17, 1\ns_add_u32 s17, s17, s18\ns_and_b32 s22, s17, 3\ns_lshr_b32 s23, s17, 2")
    A("v_and_b32 v1, 63, v0\nv_and_b32 v2, 15, v1\nv_lshrrev_b32 v3, 4, v1\nv_lshlrev_b32 v2, 1, v2")
    A("v_mul_u32_u24 v4, 4608, v3\nv_add_u32 v4, v4, v2")
    A(f"v_mul_u32_u24 v5, 1152, v3\nv_add_u32 v5, v5, v2\nv_add_u32 v5, {12*1152}, v5")
    A(f"v_cmp_gt_u32 vcc, 2, v3\nv_mov_b32 v6, {OOB}\ns_nop 0\nv_cndmask_b32 v5, v6, v5, vcc")
    A("s_waitcnt lgkmcnt(0)")
    srd(A, 8, 24, D*D*2)
    srd_off(A, 12, 26, WOT_OFF, WOT_SZ)
    A(f"s_mul_i32 s28, s23, {144*1152}\ns_mul_i32 s29, s22, 288\ns_add_u32 s28, s28, s29")
    for i in range(8):
        A(f"s_lshl_b32 s29, s16, 3\ns_add_u32 s29, s29, {i}\ns_mul_i32 s30, s29, 205\ns_lshr_b32 s30, s30, 10")
        A("s_mul_i32 s31, s30, 13\ns_add_u32 s31, s31, s29\ns_mul_i32 s31, s31, 1152\ns_add_u32 s31, s31, s28")
        A("s_mul_i32 s30, s30, 5\ns_sub_u32 s30, s29, s30\ns_cmp_eq_u32 s30, 4\ns_cselect_b64 vcc, -1, 0")
        A("v_cndmask_b32 v6, v4, v5, vcc")
        for rt in range(9):
            A(f"buffer_load_ushort v{8+rt*8+i}, v6, s[8:11], s31 offen offset:{rt*32}")
        if i == 3: A("s_waitcnt vmcnt(20)")
    A("s_lshl_b32 s28, s22, 2\ns_add_u32 s28, s28, s23\ns_mul_i32 s28, s28, 5\ns_add_u32 s28, s28, s16\ns_mul_i32 s28, s28, 9216")
    A("v_lshlrev_b32 v2, 4, v1")
    A("s_waitcnt vmcnt(0)")
    for rt in range(9):
        for q in range(4): A(f"v_lshl_or_b32 v{80+rt*4+q}, v{8+rt*8+2*q+1}, 16, v{8+rt*8+2*q}")
        if rt and rt % 4 == 0: A("s_add_u32 s28, s28, 4096")
        A(f"buffer_store_dwordx4 {v(80+rt*4,4)}, v2, s[12:15], s28 offen offset:{(rt%4)*1024} {CFG.auxSt}")
    stamp_flush(A, 1, 1, 26, 16)
    A.label("K1_end")
    A("s_endpgm")

def k2_decode(A):
    A("s_and_b32 s17, s2, 7\ns_lshr_b32 s18, s2, 3")
    A("s_lshr_b32 s28, s17, 1\ns_and_b32 s22, s18, 3")
    A("s_and_b32 s17, s17, 1\ns_lshl_b32 s17, s17, 3\ns_lshr_b32 s18, s18, 2\ns_add_u32 s23, s17, s18")
def gen_k2(A):
    kernel_head(A, "k2_kernel")
    stamp(A, 0)
    A("s_cmp_ge_u32 s2, 256\ns_cbranch_scc1 K2_end")
    A(f"s_load_dwordx2 s[4:5], s[0:1], {KA_W2}\ns_load_dwordx2 s[26:27], s[0:1], {KA_WS}")
    wave_id(A, 16)
    k2_decode(A)
    A("s_cmp_ge_u32 s16, 4\ns_cbranch_scc1 K2_ld")
    emit_compute_addr(A, 16, "pi")
    for i in range(0, 72, 2): A(f"v_pk_mov_b32 {v(V_ACC+i,2)}, 0, 0")
    A("s_waitcnt lgkmcnt(0)")
    emit_compute_loop(A, 18, "pi", (False, False), 20)
    stamp(A, 2)
    srd_off(A, 36, 26, PART_OFF, PART_SZ)
    A("s_lshl_b32 s17, s23, 2\ns_add_u32 s17, s17, s22\ns_lshl_b32 s17, s17, 2\ns_add_u32 s17, s17, s16\ns_lshl_b32 s17, s17, 2\ns_add_u32 s17, s17, s28\ns_mul_i32 s17, s17, 18432")
    for q in range(18):
        if q and q % 4 == 0: A("s_add_u32 s17, s17, 4096")
        A(f"buffer_store_dwordx4 {v(V_ACC+4*q,4)}, v{V_PA}, s[36:39], s17 offen offset:{(q%4)*1024} {CFG.auxSt}")
    stamp(A, 3)
    stamp_flush(A, 2, 4, 26, 16)
    A("s_endpgm")
    A.label("K2_ld")
    A("s_waitcnt lgkmcnt(0)")
    A("s_cmp_ge_u32 s16, 6\ns_cbranch_scc1 K2_ldW")
    srd_off(A, 8, 26, U_OFF, U_SZ)
    A(f"s_sub_u32 s17, s16, 4\ns_lshl_b32 s21, s22, 2\ns_add_u32 s21, s21, s28\ns_mul_i32 s21, s21, {36*9216}")
    emit_loader_lin(A, 18, 9, POFF, 17, 8, 21, 20, 18, CFG.auxP)
    A("s_cmp_lg_u32 s16, 4\ns_cbranch_scc1 K2_end\ns_cmp_ge_u32 s2, 72\ns_cbranch_scc1 K2_end")
    srd_off(A, 8, 26, KVP_OFF, KVP_SZ)
    srd_off(A, 12, 26, KVF_OFF, KVF_SZ)
    A("s_lshl_b32 s17, s2, 11\ns_lshl_b32 s18, s2, 10")
    for tb in range(16):
        A(f"buffer_load_dwordx4 {v(8+8*tb,4)}, v1, s[8:11], s17 offen\nbuffer_load_dwordx4 {v(12+8*tb,4)}, v1, s[8:11], s17 offen offset:1024")
        A(f"s_add_u32 s17, s17, {72*2048}")
    for tb in range(1, 16):
        A(f"s_waitcnt vmcnt({2*(15-tb)})")
        for p in range(4): A(f"v_pk_add_f32 {v(8+2*p,2)}, {v(8+2*p,2)}, {v(8+8*tb+2*p,2)}")
    for p in range(4): A(f"v_cvt_pk_bf16_f32 v{4+p}, v{8+2*p}, v{9+2*p}")
    A(f"buffer_store_dwordx4 v[4:7], v1, s[12:15], s18 offen {CFG.auxSt}")
    A("s_endpgm")
    A.label("K2_ldW")
    srd(A, 12, 4, S*F*2)
    A(f"s_sub_u32 s17, s16, 6\ns_mul_i32 s21, s28, {1152*4096}\ns_lshl_b32 s18, s23, 8\ns_add_u32 s21, s21, s18")
    emit_loader_W(A, 18, "pi", 17, 12, 21, 4096, 20, 18, CFG.auxW2)
    A.label("K2_end")
    A("s_endpgm")

RED_RS = 592
K3_LDS = 4*32*RED_RS
def gen_k3(A):
    kernel_head(A, "k3_kernel")
    stamp(A, 0)
    A("s_cmp_ge_u32 s2, 256\ns_cbranch_scc1 K3_end")
    A(f"s_load_dwordx2 s[4:5], s[0:1], {KA_X}\ns_load_dwordx4 s[44:47], s[0:1], {KA_B2}\ns_load_dwordx2 s[26:27], s[0:1], {KA_WS}")
    wave_id(A, 16)
    k2_decode(A)
    A("v_and_b32 v1, 63, v0\nv_lshlrev_b32 v2, 4, v1\nv_add_u32 v3, 4096, v2\nv_add_u32 v4, 8192, v2")
    HB, REM, O, TM, WB0, WB1, AC = 8, 136, 152, 192, 220, 80, 8
    def kvm(h, mt): return HB + 16*h + 4*mt
    def phm(h, j): return HB + 16*h + 8 + 4*j
    A("s_mul_i32 s17, s16, 18432\ns_add_u32 s18, s17, 9216")
    A("s_lshl_b32 s19, s23, 2\ns_add_u32 s19, s19, s28\ns_lshl_b32 s19, s19, 3\ns_add_u32 s19, s19, s16\ns_mul_i32 s19, s19, 9216\ns_add_u32 s20, s19, 36864")
    A("s_lshl_b32 s21, s22, 2\ns_add_u32 s21, s21, s16\ns_mul_i32 s21, s21, 46080")
    A("s_waitcnt lgkmcnt(0)")
    srd_off(A, 8, 26, KVF_OFF, KVF_SZ)
    srd_off(A, 12, 26, PHIQ_OFF, PHIQ_SZ)
    srd_off(A, 32, 26, WOT_OFF, WOT_SZ)
    srd_off(A, 36, 26, PART_OFF, PART_SZ)
    def ld(dst, srdn, so, blk):
        A(f"buffer_load_dwordx4 {v(dst,4)}, v{2 + blk//4}, {s(srdn,4)}, s{so} offen offset:{(blk%4)*1024}")
    ld(REM, 8, 17, 8); ld(REM+4, 8, 18, 8); ld(REM+8, 12, 19, 8); ld(REM+12, 12, 20, 8)
    for h in range(8):
        ld(kvm(h,0), 8, 17, h); ld(kvm(h,1), 8, 18, h); ld(phm(h,0), 12, 19, h); ld(phm(h,1), 12, 20, h)
    def ldw(buf):
        for rt in range(9): ld(buf+4*rt, 32, 21, rt)
        A("s_add_u32 s21, s21, 9216")
    ldw(WB0)
    A("s_lshl_b32 s29, s23, 2\ns_add_u32 s29, s29, s22\ns_lshl_b32 s29, s29, 2\ns_add_u32 s29, s29, s28\ns_lshl_b32 s29, s29, 2\ns_add_u32 s29, s29, s16\ns_mul_i32 s29, s29, 18432")
    MA = TM + 16
    A(f"v_mov_b32 v{MA+2}, 0\nv_mov_b32 v{MA+3}, 0\nv_mov_b32 v{MA+8}, 0\nv_mov_b32 v{MA+9}, 0")
    A(f"s_mov_b32 s48, {f2u(1e-6)}")
    for hp in range(4):
        A(f"s_mov_b32 s40, {0xffff << (16*hp) & 0xffffffff}\ns_mov_b32 s41, {(0xffff << (16*hp)) >> 32}")
        A(f"s_waitcnt vmcnt({9 + 8*(3-hp)})")
        if hp == 0: stamp(A, 1)
        for mt in range(2):
            for i in range(4):
                A(f"v_cndmask_b32 v{MA+6*mt+(i if i < 2 else i+2)}, 0, v{REM+4*mt+i}, s[40:41]")
        for j in range(2):
            for e in range(2):
                for mt in range(2):
                    A(f"{MF} {v(TM+8*e+4*mt,4)}, {v(kvm(2*hp+e,mt),4)}, {v(phm(2*hp+e,j),4)}, 0")
            for e in range(2):
                for mt in range(2):
                    A(f"{MF} {v(TM+8*e+4*mt,4)}, {v(MA+6*mt+2*e,4)}, {v(REM+8+4*j,4)}, {v(TM+8*e+4*mt,4)}")
            A("s_nop 7")
            for e in range(2): A(f"v_add_f32 v{TM+8*e+5}, s48, v{TM+8*e+5}")
            for e in range(2): A(f"v_rcp_f32 v{TM+8*e+5}, v{TM+8*e+5}")
            A("s_nop 0")
            vals = []
            for e in range(2):
                for i in range(5):
                    A(f"v_mul_f32 v{TM+8*e+i}, v{TM+8*e+i}, v{TM+8*e+5}"); vals.append(TM+8*e+i)
            for p in range(5):
                pi = 5*hp + p
                A(f"v_cvt_pk_bf16_f32 v{O + (pi>>2)*8 + 4*j + (pi&3)}, v{vals[2*p]}, v{vals[2*p+1]}")
    stamp(A, 2)
    for q in range(18):
        if q and q % 4 == 0: A("s_add_u32 s29, s29, 4096")
        A(f"buffer_load_dwordx4 {v(AC+4*q,4)}, v2, s[36:39], s29 offen offset:{(q%4)*1024}")
    ldw(WB1)
    srd(A, 8, 4, S*D*2)
    srd(A, 12, 44, S*2)
    srd(A, 40, 46, S*D*2)
    A("s_lshl_b32 s30, s23, 2\ns_add_u32 s30, s30, s28\ns_lshl_b32 s31, s30, 6\ns_mul_i32 s30, s30, 36864\ns_mul_i32 s17, s22, 288\ns_add_u32 s30, s30, s17")
    FI = 116
    for n in range(3):
        A(f"v_add_u32 v5, {256*n}, v0\nv_mul_u32_u24 v6, 3641, v5\nv_lshrrev_b32 v6, 16, v6")
        A("v_mul_u32_u24 v7, 18, v6\nv_sub_u32 v7, v5, v7")
        A(f"v_mul_u32_u24 v5, 1152, v6\nv_lshl_add_u32 v{FI+n}, v7, 4, v5")
        A(f"v_mul_u32_u24 v5, {RED_RS}, v6\nv_lshl_add_u32 v{FI+3+n}, v7, 5, v5")
        A(f"v_lshlrev_b32 v{FI+6+n}, 1, v6")
    A(f"v_and_b32 v5, 15, v1\nv_mul_u32_u24 v5, {RED_RS}, v5\nv_lshrrev_b32 v6, 4, v1\nv_lshl_add_u32 v5, v6, 4, v5")
    A(f"s_mul_i32 s17, s16, {32*RED_RS}\nv_add_u32 v5, s17, v5")
    for u in range(5):
        buf = (WB0, WB1)[u & 1]
        A(f"s_waitcnt vmcnt({9 if u < 4 else 0})")
        for t in range(9):
            for j in range(2):
                a = v(AC+(2*t+j)*4, 4)
                A(f"{MF} {a}, {v(buf+4*t,4)}, {v(O+8*u+4*j,4)}, {a}")
        if u < 3: ldw(buf)
    XB = 128
    for n in range(2):
        A(f"buffer_load_dwordx4 {v(XB+4*n,4)}, v{FI+n}, s[8:11], s30 offen\nbuffer_load_ushort v{XB+12+n}, v{FI+6+n}, s[12:15], s31 offen")
    A("s_cmp_lg_u32 s16, 0\ns_cbranch_scc1 K3_nox")
    A(f"buffer_load_dwordx4 {v(XB+8,4)}, v{FI+2}, s[8:11], s30 offen\nbuffer_load_ushort v{XB+14}, v{FI+8}, s[12:15], s31 offen")
    A.label("K3_nox")
    A("s_nop 4")
    for t in range(9):
        for j in range(2):
            A(f"ds_write_b128 v5, {v(AC+(2*t+j)*4,4)} offset:{j*16*RED_RS + t*64}")
    A("s_waitcnt lgkmcnt(0)\ns_barrier")
    stamp(A, 3)
    def fin(n):
        R = 8
        for w in range(4):
            A(f"ds_read_b128 {v(R+8*w,4)}, v{FI+3+n} offset:{w*32*RED_RS}\nds_read_b128 {v(R+8*w+4,4)}, v{FI+3+n} offset:{w*32*RED_RS+16}")
        A("s_waitcnt vmcnt(0)" if n == 0 else "s_nop 0")
        for i in range(4):
            A(f"v_lshlrev_b32 v{40+2*i}, 16, v{XB+4*n+i}\nv_and_b32 v{41+2*i}, 0xffff0000, v{XB+4*n+i}")
        A(f"v_lshlrev_b32 v48, 16, v{XB+12+n}")
        for p in range(4): A(f"v_pk_add_f32 {v(40+2*p,2)}, {v(40+2*p,2)}, v[48:49] op_sel_hi:[1,0]")
        for w in range(4):
            A(f"s_waitcnt lgkmcnt({2*(3-w)})")
            for p in range(4): A(f"v_pk_add_f32 {v(40+2*p,2)}, {v(40+2*p,2)}, {v(R+8*w+2*p,2)}")
        for p in range(4): A(f"v_cvt_pk_bf16_f32 v{52+4*n+p}, v{40+2*p}, v{41+2*p}")
        A(f"buffer_store_dwordx4 {v(52+4*n,4)}, v{FI+n}, s[40:43], s30 offen")
    fin(0); fin(1)
    A("s_cmp_lg_u32 s16, 0\ns_cbranch_scc1 K3_fin")
    fin(2)
    A.label("K3_fin")
    stamp_flush(A, 3, 4, 26, 16)
    A.label("K3_end")
    A("s_endpgm")

HEADER = open("parallel_sum__linear_kernel_hedgehog__mixer_token_mlp__prompt.s.ref").read().split("; Override launch")[0] if __name__ == "__main__" else ""

def gen(**kw):
    global CFG
    for k in dir(Cfg):
        if not k.startswith("_"): setattr(CFG, k, kw.get(k, getattr(Cfg, k)))
    A = Asm()
    if HEADER: A(HEADER.rstrip())
    A(f"; @launch kernel=k0_kernel grid=(472,1,1) block=(256,1,1) lds={K0_LDS}")
    A(f"; @launch kernel=k1_kernel grid=(256,1,1) block=(512,1,1) lds={NST*STAGE}")
    A(f"; @launch kernel=k2_kernel grid=(256,1,1) block=(512,1,1) lds={NST*STAGE}")
    A(f"; @launch kernel=k3_kernel grid=(256,1,1) block=(256,1,1) lds={K3_LDS}")
    A('.amdgcn_target "amdgcn-amd-amdhsa--gfx950"\n.text')
    gen_k0(A); gen_k1(A); gen_k2(A); gen_k3(A)
    A('.section .rodata,"a"')
    kernel_desc(A, "k0_kernel", 88)
    kernel_desc(A, "k1_kernel", 240)
    kernel_desc(A, "k2_kernel", 168)
    kernel_desc(A, "k3_kernel", 256)
    return A.text()

if __name__ == "__main__":
    out = sys.argv[1] if len(sys.argv) > 1 else "parallel_sum__linear_kernel_hedgehog__mixer_token_mlp__prompt.s"
    kw = {}
    for a in sys.argv[2:]:
        k, val = a.split("=")
        kw[k] = val if not val.isdigit() else int(val)
    open(out, "w").write(gen(**kw))
```

```python
import math, struct, sys
from asmlib import *

def f2u(x): return struct.unpack("<I", struct.pack("<f", x))[0]
LOG2E = math.log2(math.e)
OOB = 0x80000000

S, D, F, H, DH = 2048, 576, 4608, 32, 18
KA_X, KA_WQKV, KA_WPHI, KA_WO, KA_BX, KA_W1, KA_B1, KA_W2, KA_B2, KA_OUT, KA_DBG, KA_WS = [8*i for i in range(12)]
XN_OFF, XN_SZ = 0x0, 2359296
HT_OFF, HT_SZ = 0x240000, 2359296
WF_OFF, WF_SZ = 0x480000, 6*18*18*1024
U_OFF, U_SZ = 0x680000, 5308416
PHIQ_OFF, PHIQ_SZ = 0xC00000, 4718592
KVP_OFF, KVP_SZ = 0x1080000, 16*72*2048
KVF_OFF, KVF_SZ = 0x12C0000, 72*1024
WOT_OFF, WOT_SZ = 0x1300000, 16*45*1024
PART_OFF, PART_SZ = 0x1400000, 64*16*18432
STAMP_OFF, STAMP_SZ = 0x3000000, 0x100000

STAGE, POFF, WOFF, NST = 34816, 0, 18432, 4
V_PA, V_PB, V_W0A, V_W1A, V_W0B, V_W1B = 2, 3, 4, 5, 6, 7
V_PF, V_WF, V_ACC = 8, 80, 96
def pf(b, t): return v(V_PF + b*36 + t*4, 4)
def wf(b, j): return v(V_WF + b*8 + j*4, 4)
def accr(st, t, j): return V_ACC + st*72 + (t*2+j)*4
def acc(st, t, j): return v(accr(st, t, j), 4)
MF = "v_mfma_f32_16x16x32_bf16"

class Cfg:
    stamp = False
    auxW1 = ""; auxW2 = ""; auxP = ""; auxSt = ""
    probe = ""
CFG = Cfg()

def stamp(A, i):
    if CFG.stamp: A(f"s_memrealtime s[{70+2*i}:{71+2*i}]")
def stamp_flush(A, kidx, n, s_ws, s_wave):
    if not CFG.stamp: return
    A("s_waitcnt vmcnt(0)")
    A(f"s_memrealtime s[{70+2*n}:{71+2*n}]\ns_waitcnt lgkmcnt(0)")
    srd_off(A, 92, s_ws, STAMP_OFF, STAMP_SZ)
    A(f"s_lshl_b32 s96, s2, 3\ns_add_u32 s96, s96, s{s_wave}\ns_lshl_b32 s96, s96, 6\ns_add_u32 s96, s96, {kidx*0x40000}")
    A("s_mov_b64 exec, 1\nv_mov_b32 v1, 0")
    for i in range(n+1):
        A(f"v_mov_b32 v2, s{70+2*i}\nbuffer_store_dword v2, v1, s[92:95], s96 offen offset:{4*i}")

def emit_compute_addr(A, s_wave, mode):
    A("v_and_b32 v1, 63, v0")
    A(f"v_lshlrev_b32 v{V_PA}, 4, v1")
    A(f"v_add_u32 v{V_PB}, {2*STAGE}, v{V_PA}")
    if mode == "lin":
        A(f"s_lshl_b32 s3, s{s_wave}, 11\ns_add_u32 s3, s3, {WOFF}")
        A(f"v_add_u32 v{V_W0A}, s3, v{V_PA}")
        A(f"v_add_u32 v{V_W0B}, {2*STAGE}, v{V_W0A}")
        return
    A("v_lshrrev_b32 v8, 2, v1")
    A("v_and_b32 v9, 7, v8")
    if mode == "std":
        A("v_and_b32 v10, 12, v8\nv_add_u32 v8, v8, v10")
    A(f"s_lshl_b32 s3, s{s_wave}, 1")
    A("v_xor_b32 v9, s3, v9\nv_lshlrev_b32 v9, 5, v9\nv_lshl_add_u32 v9, v8, 8, v9")
    A("v_and_b32 v8, 3, v1\nv_lshl_add_u32 v9, v8, 3, v9")
    A(f"v_add_u32 v{V_W0A}, {WOFF}, v9")
    A(f"v_xor_b32 v{V_W1A}, 32, v{V_W0A}")
    A(f"v_add_u32 v{V_W0B}, {2*STAGE}, v{V_W0A}")
    A(f"v_add_u32 v{V_W1B}, {2*STAGE}, v{V_W1A}")

def reads_P(slot, sub, b):
    a = V_PB if slot >= 2 else V_PA
    so = (slot & 1) * STAGE
    return [f"ds_read_b128 {pf(b,t)}, v{a} offset:{so + (sub*9+t)*1024}" for t in range(9)]
def reads_W(slot, sub, b, mode):
    hi = slot >= 2
    so = (slot & 1) * STAGE
    R = []
    if mode == "lin":
        a = V_W0B if hi else V_W0A
        return [f"ds_read_b128 {wf(b,j)}, v{a} offset:{so + j*1024}" for j in range(2)]
    second = 1024 if mode == "std" else 4096
    for j in range(2):
        a = (V_W0B, V_W1B)[j] if hi else (V_W0A, V_W1A)[j]
        base = V_WF + b*8 + j*4
        R.append(f"ds_read_b64_tr_b16 {v(base,2)}, v{a} offset:{so + sub*8192}")
        R.append(f"ds_read_b64_tr_b16 {v(base+2,2)}, v{a} offset:{so + sub*8192 + second}")
    return R

def block(A, M, R, barrier):
    A("s_waitcnt lgkmcnt(0)")
    if barrier: A("s_barrier")
    ri = 0
    for m in M:
        A(m)
        if ri < len(R):
            A(R[ri]); ri += 1
    assert ri == len(R)

def mfmas(st, pb, wb, w_is_A):
    M = []
    for t in range(9):
        for j in range(2):
            a, b = (wf(wb,j), pf(pb,t)) if w_is_A else (pf(pb,t), wf(wb,j))
            M.append(f"{MF} {acc(st,t,j)}, {a}, {b}, {acc(st,t,j)}")
    return M

def emit_compute_loop(A, n, mode, w_is_A, s_cnt):
    lin = mode == "lin"
    A("s_barrier")
    stamp(A, 1)
    for r in reads_W(0, 0, 0, mode) + reads_P(0, 0, 0): A(r)
    def stage(i, last):
        slot = i % NST; nxt = (i+1) % NST
        if lin:
            wb = i & 1
            block(A, mfmas(0, 0, wb, w_is_A[0]), reads_P(slot, 1, 1), False)
            block(A, mfmas(1, 1, wb, w_is_A[1]), [] if last else reads_W(nxt, 0, wb ^ 1, mode) + reads_P(nxt, 0, 0), not last)
        else:
            block(A, mfmas(0, 0, 0, w_is_A[0]), reads_W(slot, 1, 1, mode) + reads_P(slot, 1, 1), False)
            block(A, mfmas(0, 1, 1, w_is_A[1]), [] if last else reads_W(nxt, 0, 0, mode) + reads_P(nxt, 0, 0), not last)
    nloop = (n - 1) // NST
    L = A.newlabel("Lc")
    A(f"s_mov_b32 s{s_cnt}, {nloop}")
    A.label(L)
    for i in range(NST): stage(i, False)
    A(f"s_sub_u32 s{s_cnt}, s{s_cnt}, 1\ns_cmp_lg_u32 s{s_cnt}, 0\ns_cbranch_scc1 {L}")
    for i in range(nloop*NST, n): stage(i, i == n-1)

def emit_loader(A, n, cnt, issue, s_cnt):
    for i in range(3): issue(i)
    nmain = n - 3
    nloop = nmain // NST
    def it(i):
        A(f"s_waitcnt vmcnt({2*cnt})\ns_barrier")
        issue((i+3) % NST)
    L = A.newlabel("Ll")
    A(f"s_mov_b32 s{s_cnt}, {nloop}")
    A.label(L)
    for i in range(NST): it(i)
    A(f"s_sub_u32 s{s_cnt}, s{s_cnt}, 1\ns_cmp_lg_u32 s{s_cnt}, 0\ns_cbranch_scc1 {L}")
    for i in range(nloop*NST, nmain): it(i)
    A(f"s_waitcnt vmcnt({2*cnt})\ns_barrier\ns_waitcnt vmcnt({cnt})\ns_barrier\ns_waitcnt vmcnt(0)\ns_barrier")

def emit_loader_lin(A, n, per, ldsoff, s_lw, srdP, s_off, s_cnt, s_tmp, aux=""):
    A("v_and_b32 v1, 63, v0\nv_lshlrev_b32 v1, 4, v1")
    A(f"s_mul_i32 s{s_tmp}, s{s_lw}, {per*1024}")
    A(f"v_add_u32 v2, s{s_tmp}, v1")
    for q in range(1, (per+3)//4): A(f"v_add_u32 v{2+q}, {q*4096}, v2")
    def issue(slot):
        for j in range(per):
            if j % 4 == 0:
                A(f"s_add_u32 m0, s{s_tmp}, {slot*STAGE + ldsoff + (j//4)*4096}\ns_nop 0")
            A(f"buffer_load_dwordx4 v{2+j//4}, {s(srdP,4)}, s{s_off} offen offset:{(j%4)*1024} {aux} lds")
        A(f"s_add_u32 s{s_off}, s{s_off}, {2*per*1024}")
    emit_loader(A, n, per, issue, s_cnt)

def emit_loader_W(A, n, mode, s_lw, srdW, s_off, stride, s_cnt, s_tmp, aux=""):
    A("v_and_b32 v1, 63, v0\nv_lshrrev_b32 v10, 4, v1\nv_and_b32 v11, 15, v1")
    A(f"s_lshl_b32 s{s_tmp}, s{s_lw}, 5\nv_add_u32 v12, s{s_tmp}, v10")
    A(f"s_mov_b32 s3, {stride}\nv_mul_lo_u32 v12, v12, s3")
    for par in range(2):
        A(f"v_or_b32 v13, {4*par}, v10\nv_lshlrev_b32 v13, 1, v13\nv_xor_b32 v13, v13, v11")
        A("v_lshl_add_u32 v13, v13, 4, v12")
        for j in range(8):
            key = (j & 1) if mode == "pi" else ((j >> 1) & 1)
            if key == par:
                A(f"v_add_u32 v{2+j}, {4*j*stride - (j%4)*1024}, v13")
    A(f"s_lshl_b32 s{s_tmp}, s{s_lw}, 13")
    def issue(slot):
        for j in range(8):
            if j % 4 == 0:
                A(f"s_add_u32 m0, s{s_tmp}, {slot*STAGE + WOFF + (j//4)*4096}\ns_nop 0")
            A(f"buffer_load_dwordx4 v{2+j}, {s(srdW,4)}, s{s_off} offen offset:{(j%4)*1024} {aux} lds")
        A(f"s_add_u32 s{s_off}, s{s_off}, {64*stride}")
    emit_loader(A, n, 8, issue, s_cnt)

def wave_id(A, sd):
    A(f"v_lshrrev_b32 v1, 6, v0\ns_nop 1\nv_readfirstlane_b32 s{sd}, v1")

def reduce32(A, regs, tmp):
    pad = "s_nop 1" if len(regs) == 1 else "s_nop 0"
    A("s_nop 1")
    for pat in ["quad_perm:[1,0,3,2]", "quad_perm:[2,3,0,1]", "row_half_mirror", "row_mirror"]:
        for r in regs:
            A(f"v_add_f32_dpp v{r}, v{r}, v{r} {pat} row_mask:0xf bank_mask:0xf")
        A(pad)
    for i, r in enumerate(regs): A(f"v_mov_b32 v{tmp+i}, v{r}")
    A("s_nop 1")
    for i, r in enumerate(regs): A(f"v_permlane16_swap_b32 v{r}, v{tmp+i}")
    A("s_nop 1")
    for i, r in enumerate(regs): A(f"v_add_f32 v{r}, v{r}, v{tmp+i}")

XRS, HRS = 1168, 1216
K0_HL = 8*XRS
K0_DUMMY = K0_HL + 8*HRS
K0_LDS = K0_DUMMY + 2048
def gen_k0(A):
    kernel_head(A, "k0_kernel")
    stamp(A, 0)
    A("s_cmp_ge_u32 s2, 472\ns_cbranch_scc1 K0_end")
    A(f"s_load_dwordx4 s[4:7], s[0:1], {KA_X}\ns_load_dwordx2 s[24:25], s[0:1], {KA_WPHI}\ns_load_dwordx2 s[26:27], s[0:1], {KA_WS}")
    wave_id(A, 16)
    A("s_cmp_ge_u32 s2, 256\ns_cbranch_scc1 K0_fold")
    X, P = 20, 8
    A("v_lshrrev_b32 v2, 5, v0\nv_and_b32 v3, 31, v0")
    A("v_mul_u32_u24 v4, 1152, v2\nv_lshl_add_u32 v4, v3, 4, v4")
    A(f"v_cmp_gt_u32 s[30:31], 24, v3\nv_mov_b32 v5, {OOB}")
    A("s_mul_i32 s3, s2, 9216")
    A("v_cndmask_b32 v4, v5, v4, s[30:31]")
    A("s_waitcnt lgkmcnt(0)")
    srd(A, 8, 4, S*D*2)
    for j in range(3): A(f"buffer_load_dwordx4 {v(P+4*j,4)}, v4, s[8:11], s3 offen offset:{384*j}")
    A(f"v_mul_u32_u24 v6, {XRS}, v2\nv_lshl_add_u32 v6, v3, 4, v6")
    A(f"v_mul_u32_u24 v7, {HRS}, v2\nv_lshl_add_u32 v7, v3, 4, v7\nv_add_u32 v7, {K0_HL}, v7")
    A(f"v_mov_b32 v5, {K0_DUMMY}\nv_cndmask_b32 v6, v5, v6, s[30:31]\nv_cndmask_b32 v7, v5, v7, s[30:31]")
    srd_off(A, 12, 26, XN_OFF, XN_SZ)
    srd_off(A, 20, 26, HT_OFF, HT_SZ)
    A(f"s_mov_b32 s33, {f2u(1.0/576)}\ns_mov_b32 s34, {f2u(1e-5)}")
    def unpack():
        for i in range(12):
            A(f"v_lshlrev_b32 v{X+2*i}, 16, v{P+i}\nv_and_b32 v{X+2*i+1}, 0xffff0000, v{P+i}")
    def xp(i): return v(X+2*i, 2)
    def psum(dst):
        A(f"v_pk_add_f32 {v(dst,2)}, {xp(0)}, {xp(1)}\nv_pk_add_f32 {v(dst+2,2)}, {xp(2)}, {xp(3)}")
        for i in range(4, 12): A(f"v_pk_add_f32 {v(dst+2*(i&1),2)}, {v(dst+2*(i&1),2)}, {xp(i)}")
        A(f"v_pk_add_f32 {v(dst,2)}, {v(dst,2)}, {v(dst+2,2)}\nv_add_f32 v{dst}, v{dst}, v{dst+1}")
    def psq(dst):
        A(f"v_pk_mul_f32 {v(dst,2)}, {xp(0)}, {xp(0)}\nv_pk_mul_f32 {v(dst+2,2)}, {xp(1)}, {xp(1)}")
        for i in range(2, 12): A(f"v_pk_fma_f32 {v(dst+2*(i&1),2)}, {xp(i)}, {xp(i)}, {v(dst+2*(i&1),2)}")
        A(f"v_pk_add_f32 {v(dst,2)}, {v(dst,2)}, {v(dst+2,2)}\nv_add_f32 v{dst}, v{dst}, v{dst+1}")
    def pack():
        for i in range(12): A(f"v_cvt_pk_bf16_f32 v{P+i}, v{X+2*i}, v{X+2*i+1}")
    A("s_waitcnt vmcnt(0)")
    stamp(A, 1)
    unpack()
    psum(44)
    reduce32(A, [44], 52)
    A("v_mul_f32 v44, s33, v44")
    for i in range(12): A(f"v_pk_add_f32 {xp(i)}, {xp(i)}, v[44:45] op_sel_hi:[1,0] neg_lo:[0,1] neg_hi:[0,1]")
    psq(48)
    A("v_cndmask_b32 v48, 0, v48, s[30:31]")
    reduce32(A, [48], 52)
    A("v_mov_b32 v49, s34\nv_fma_f32 v48, v48, s33, v49\nv_rsq_f32 v48, v48\ns_nop 0")
    for i in range(12): A(f"v_pk_mul_f32 {xp(i)}, {xp(i)}, v[48:49] op_sel_hi:[1,0]")
    pack()
    for j in range(3): A(f"ds_write_b128 v6, {v(P+4*j,4)} offset:{384*j}")
    unpack()
    psum(44); psq(48)
    A("v_cndmask_b32 v44, 0, v44, s[30:31]\nv_cndmask_b32 v48, 0, v48, s[30:31]")
    reduce32(A, [44, 48], 52)
    A("v_mul_f32 v44, s33, v44\nv_mov_b32 v49, s34\nv_fma_f32 v48, v48, s33, v49\nv_fma_f32 v48, -v44, v44, v48")
    A("v_rsq_f32 v48, v48\ns_nop 0\nv_mul_f32 v44, v44, v48")
    for i in range(12): A(f"v_pk_fma_f32 {xp(i)}, {xp(i)}, v[48:49], v[44:45] op_sel_hi:[1,0,0] neg_lo:[0,0,1] neg_hi:[0,0,1]")
    pack()
    for j in range(3): A(f"ds_write_b128 v7, {v(P+4*j,4)} offset:{384*j}")
    A("v_and_b32 v1, 63, v0\nv_and_b32 v2, 7, v1\nv_lshrrev_b32 v3, 3, v1")
    A(f"v_mul_u32_u24 v4, {XRS}, v2\nv_lshl_add_u32 v4, v3, 4, v4")
    A("s_lshl_b32 s3, s16, 7\nv_add_u32 v4, s3, v4")
    A("v_lshrrev_b32 v5, 2, v3\nv_lshlrev_b32 v5, 13, v5\nv_and_b32 v3, 3, v3\nv_lshl_add_u32 v5, v3, 8, v5\nv_lshl_add_u32 v5, v2, 4, v5")
    A("s_lshr_b32 s17, s2, 4\ns_mul_i32 s17, s17, 147456\ns_bfe_u32 s18, s2, 0x30001\ns_lshl_b32 s18, s18, 10\ns_add_u32 s17, s17, s18")
    A("s_and_b32 s18, s2, 1\ns_lshl_b32 s18, s18, 7\ns_add_u32 s17, s17, s18\ns_lshl_b32 s18, s16, 14\ns_add_u32 s17, s17, s18")
    A("v_bfe_u32 v2, v1, 2, 2\nv_lshrrev_b32 v3, 4, v1\nv_and_b32 v6, 3, v1")
    A(f"v_mul_u32_u24 v7, {HRS}, v2\nv_lshl_add_u32 v7, v3, 5, v7\nv_lshl_add_u32 v7, v6, 3, v7")
    A(f"s_add_u32 s3, s3, {K0_HL}\nv_add_u32 v7, s3, v7")
    A("s_lshl_b32 s3, s16, 2\nv_add_u32 v3, s3, v3")
    A("v_and_b32 v2, 15, v1\nv_lshlrev_b32 v2, 4, v2")
    A(f"s_mov_b32 s35, {589824-9216}")
    for n in range(3):
        A(f"v_add_u32 v6, {16*n}, v3\nv_mul_u32_u24 v44, 57, v6\nv_lshrrev_b32 v44, 9, v44")
        A(f"v_lshl_add_u32 v6, v6, 10, v2\nv_mad_u32_u24 v{45+n}, v44, s35, v6")
    A("s_lshr_b32 s18, s2, 2\ns_mul_i32 s18, s18, 9216\ns_and_b32 s19, s2, 3\ns_lshl_b32 s19, s19, 8\ns_add_u32 s18, s18, s19")
    A("s_waitcnt lgkmcnt(0)\ns_barrier")
    stamp(A, 2)
    def rb_read(n):
        A(f"ds_read_b128 {v(8+8*n,4)}, v4 offset:{512*n}")
        A(f"ds_read_b64_tr_b16 {v(12+8*n,2)}, v7 offset:{512*n}\nds_read_b64_tr_b16 {v(14+8*n,2)}, v7 offset:{512*n + 4*HRS}")
    def rb_store(n):
        A(f"buffer_store_dwordx4 {v(8+8*n,4)}, v5, s[12:15], s17 offen {CFG.auxSt}")
        A(f"buffer_store_dwordx4 {v(12+8*n,4)}, v{45+n}, s[20:23], s18 offen {CFG.auxSt}")
        A("s_add_u32 s17, s17, 65536")
    rb_read(0); rb_read(1)
    A("s_waitcnt lgkmcnt(3)")
    rb_store(0)
    A("s_waitcnt lgkmcnt(0)")
    rb_store(1)
    A("s_cmp_lg_u32 s16, 0\ns_cbranch_scc1 K0_lnend")
    rb_read(2)
    A("s_waitcnt lgkmcnt(0)")
    rb_store(2)
    A.label("K0_lnend")
    stamp_flush(A, 0, 3, 26, 16)
    A("s_endpgm")
    A.label("K0_fold")
    A("s_sub_u32 s17, s2, 256\ns_mul_i32 s18, s17, 7282\ns_lshr_b32 s18, s18, 16")
    A("s_mul_i32 s19, s18, 9\ns_sub_u32 s17, s17, s19")
    A("s_and_b32 s19, s18, 1\ns_bfe_u32 s28, s18, 0x20001\ns_lshr_b32 s29, s18, 3")
    A("s_lshl_b32 s30, s16, 1\ns_add_u32 s30, s30, s19")
    A("s_lshl_b32 s31, s28, 3\ns_add_u32 s31, s31, s30")
    A("v_and_b32 v1, 63, v0\nv_and_b32 v2, 15, v1\nv_lshrrev_b32 v3, 4, v1")
    A("v_and_b32 v4, 12, v2\nv_add_u32 v4, v4, v2")
    A("v_mul_u32_u24 v4, 3456, v4\nv_lshl_add_u32 v4, v3, 4, v4")
    A(f"v_mov_b32 v10, {OOB}\nv_cmp_gt_u32 s[36:37], 3, v3\nv_cmp_gt_u32 s[38:39], 2, v3\nv_cmp_gt_u32 s[40:41], 2, v2")
    A(f"s_mul_i32 s32, s17, {64*3456}\ns_mul_i32 s33, s29, 1152\ns_add_u32 s32, s32, s33\ns_mul_i32 s33, s31, 36\ns_add_u32 s32, s32, s33")
    A("v_cndmask_b32 v4, v10, v4, s[36:37]")
    A("s_waitcnt lgkmcnt(0)")
    srd(A, 8, 6, D*3*D*2)
    srd(A, 12, 24, H*DH*DH*2)
    srd_off(A, 20, 26, WF_OFF, WF_SZ)
    for q in range(4):
        A(f"buffer_load_dwordx4 {v(12+4*q,4)}, v4, s[8:11], s32 offen")
        if q < 3: A(f"s_add_u32 s32, s32, {4*3456 if q != 1 else 28*3456}")
    B = 28
    A("s_cmp_eq_u32 s29, 2\ns_cbranch_scc1 K0_ident")
    A("v_mul_u32_u24 v5, 288, v3\nv_lshl_add_u32 v5, v2, 1, v5")
    A("v_cndmask_b32 v6, v10, v5, s[36:37]\nv_cndmask_b32 v7, v10, v5, s[38:39]")
    A("v_cndmask_b32 v8, v10, v6, s[40:41]\nv_cndmask_b32 v9, v10, v7, s[40:41]")
    A("s_mul_i32 s33, s31, 648")
    for nt in range(2):
        for ii in range(8):
            a = (6 if ii < 2 else 7) + 2*nt
            A(f"buffer_load_ushort v{36+8*nt+ii}, v{a}, s[12:15], s33 offen offset:{36*ii + 32*nt}")
    A("s_mul_i32 s34, s19, 18\nv_add_u32 v5, s34, v2")
    A("s_lshl_b32 s35, s16, 6")
    for nt in range(2):
        if nt: A("v_add_u32 v5, 16, v5")
        A(f"v_lshrrev_b32 v6, 2, v5\nv_lshlrev_b32 v6, 10, v6\nv_and_b32 v7, 3, v5\nv_lshl_add_u32 v6, v7, 4, v6")
        A(f"v_lshl_add_u32 v6, v3, 8, v6\nv_add_u32 v{52+nt}, s35, v6")
    A("s_lshr_b32 s34, s28, 1\ns_add_u32 s34, s34, 4\ns_and_b32 s35, s28, 1\ns_mul_i32 s35, s35, 9216")
    A("s_cmp_eq_u32 s29, 0\ns_cselect_b32 s34, s34, s28\ns_cselect_b32 s35, s35, 0")
    A(f"s_mov_b32 s42, {f2u(LOG2E)}")
    A("s_waitcnt vmcnt(0)")
    for q in range(8): A(f"v_lshl_or_b32 v{B+q}, v{36+2*q+1}, 16, v{36+2*q}")
    A("s_branch K0_fmm")
    A.label("K0_ident")
    A("v_lshlrev_b32 v5, 3, v3\nv_sub_u32 v5, v2, v5\nv_add_u32 v6, 16, v5\nv_cndmask_b32 v6, v10, v6, s[40:41]")
    A("v_mov_b32 v7, 0x3f80\nv_mov_b32 v8, 0x3f800000")
    for nt in range(2):
        for q in range(4):
            A(f"v_cmp_eq_u32 vcc, {2*q}, v{5+nt}\nv_cmp_eq_u32 s[44:45], {2*q+1}, v{5+nt}\ns_nop 1")
            A(f"v_cndmask_b32 v9, 0, v7, vcc\nv_cndmask_b32 v{B+4*nt+q}, v9, v8, s[44:45]")
    A("v_lshlrev_b32 v6, 8, v3\nv_lshl_add_u32 v6, v2, 4, v6")
    A("s_lshl_b32 s34, s30, 10\nv_add_u32 v52, s34, v6")
    A("s_lshl_b32 s34, s30, 5\ns_add_u32 s34, s34, 8192\nv_add_u32 v53, s34, v6")
    A("s_mov_b32 s34, s28\ns_mov_b32 s35, 9216\ns_mov_b32 s42, 1.0")
    A("s_waitcnt vmcnt(0)")
    A.label("K0_fmm")
    A("v_cndmask_b32 v53, v10, v53, s[40:41]")
    A("s_mul_i32 s34, s34, 18\ns_lshl_b32 s33, s17, 1\ns_add_u32 s34, s34, s33\ns_mul_i32 s34, s34, 18432\ns_add_u32 s34, s34, s35")
    DD = 56
    for kbi in range(2):
        for nt in range(2):
            for a in range(2):
                A(f"{MF} {v(DD+16*kbi+8*nt+4*a,4)}, {v(12+8*kbi+4*a,4)}, {v(B+4*nt,4)}, 0")
    A("s_nop 7")
    for kbi in range(2):
        for nt in range(2):
            d0 = DD+16*kbi+8*nt
            for i in range(8): A(f"v_mul_f32 v{d0+i}, s42, v{d0+i}")
            o = 36 + 8*kbi + 4*nt
            for i in range(4): A(f"v_cvt_pk_bf16_f32 v{o+i}, v{d0+2*i}, v{d0+2*i+1}")
            A(f"buffer_store_dwordx4 {v(o,4)}, v{52+nt}, s[20:23], s34 offen {CFG.auxSt}")
        if kbi == 0: A("s_add_u32 s34, s34, 18432")
    stamp_flush(A, 0, 1, 26, 16)
    A.label("K0_end")
    A("s_endpgm")

def softmax18(A, PR, dst):
    vals = [r + i for r in PR for i in range(2)]
    EP, EN, MX, MN = 8, 26, 44, 46
    A(f"v_max3_f32 v{MX}, v{vals[0]}, v{vals[1]}, v{vals[2]}\nv_min3_f32 v{MN}, v{vals[0]}, v{vals[1]}, v{vals[2]}")
    for i in range(3, 17, 2):
        A(f"v_max3_f32 v{MX}, v{MX}, v{vals[i]}, v{vals[i+1]}\nv_min3_f32 v{MN}, v{MN}, v{vals[i]}, v{vals[i+1]}")
    A(f"v_max_f32 v{MX}, v{MX}, v{vals[17]}\nv_min_f32 v{MN}, v{MN}, v{vals[17]}")
    for p in range(9):
        A(f"v_pk_add_f32 {v(EP+2*p,2)}, {v(PR[p],2)}, {v(MX,2)} op_sel_hi:[1,0] neg_lo:[0,1] neg_hi:[0,1]")
        A(f"v_pk_add_f32 {v(EN+2*p,2)}, {v(PR[p],2)}, {v(MN,2)} op_sel_hi:[1,0] neg_lo:[1,0] neg_hi:[1,0]")
    for i in range(36): A(f"v_exp_f32 v{EP+i}, v{EP+i}")
    A(f"v_pk_add_f32 {v(MX,2)}, {v(EP,2)}, {v(EP+2,2)}\nv_pk_add_f32 {v(MN,2)}, {v(EN,2)}, {v(EN+2,2)}")
    for p in range(2, 9):
        A(f"v_pk_add_f32 {v(MX,2)}, {v(MX,2)}, {v(EP+2*p,2)}\nv_pk_add_f32 {v(MN,2)}, {v(MN,2)}, {v(EN+2*p,2)}")
    A(f"v_add_f32 v{MX}, v{MX}, v{MX+1}\nv_add_f32 v{MN}, v{MN}, v{MN+1}")
    A(f"v_rcp_f32 v{MX}, v{MX}\nv_rcp_f32 v{MN}, v{MN}\ns_nop 0")
    for p in range(9):
        A(f"v_pk_mul_f32 {v(EP+2*p,2)}, {v(EP+2*p,2)}, {v(MX,2)} op_sel_hi:[1,0]")
        A(f"v_pk_mul_f32 {v(EN+2*p,2)}, {v(EN+2*p,2)}, {v(MN,2)} op_sel_hi:[1,0]")
    for m in range(18): A(f"v_cvt_pk_bf16_f32 v{dst(m)}, v{EP+2*m}, v{EP+2*m+1}")

def pairs(st, j, e):
    return [accr(st, (9*e+p) >> 1, j) + 2*((9*e+p) & 1) for p in range(9)]

PHI_RS = 608
V_LDS = 128*PHI_RS
def gen_k1(A):
    kernel_head(A, "k1_kernel")
    stamp(A, 0)
    A("s_cmp_ge_u32 s2, 256\ns_cbranch_scc1 K1_end")
    A(f"s_load_dwordx4 s[4:7], s[0:1], {KA_W1}\ns_load_dwordx2 s[24:25], s[0:1], {KA_WO}\ns_load_dwordx2 s[26:27], s[0:1], {KA_WS}")
    wave_id(A, 16)
    A("s_and_b32 s17, s2, 7\ns_lshr_b32 s18, s2, 3")
    A("s_cmp_ge_u32 s18, 18\ns_cbranch_scc1 K1_notg1")
    A("s_mul_i32 s19, s17, 18\ns_add_u32 s19, s19, s18\ns_and_b32 s22, s19, 3\ns_lshr_b32 s23, s19, 2")
    A("s_waitcnt lgkmcnt(0)")
    A("s_cmp_ge_u32 s16, 6\ns_cbranch_scc1 K1_ldW\ns_cmp_ge_u32 s16, 4\ns_cbranch_scc1 K1_ldP")
    srd(A, 32, 6, F*2)
    srd_off(A, 36, 26, U_OFF, U_SZ)
    A("v_bfe_u32 v8, v0, 4, 2\nv_lshlrev_b32 v8, 3, v8")
    A("s_lshl_b32 s3, s23, 8\ns_lshl_b32 s17, s16, 6\ns_add_u32 s3, s3, s17")
    A("buffer_load_dwordx2 v[12:13], v8, s[32:35], s3 offen\nbuffer_load_dwordx2 v[14:15], v8, s[32:35], s3 offen offset:32")
    emit_compute_addr(A, 16, "std")
    A("s_waitcnt vmcnt(0)")
    for j in range(2):
        A(f"v_lshlrev_b32 v{V_ACC+j*4}, 16, v{12+2*j}\nv_and_b32 v{V_ACC+j*4+1}, 0xffff0000, v{12+2*j}")
        A(f"v_lshlrev_b32 v{V_ACC+j*4+2}, 16, v{13+2*j}\nv_and_b32 v{V_ACC+j*4+3}, 0xffff0000, v{13+2*j}")
    for i in range(8, 72, 2): A(f"v_pk_mov_b32 {v(V_ACC+i,2)}, {v(V_ACC+i%8,2)}, {v(V_ACC+i%8,2)} op_sel:[0,1]")
    emit_compute_loop(A, 32, "std", (True, True), 20)
    stamp(A, 2)
    c0 = -2*math.sqrt(2/math.pi)*LOG2E; c1 = c0*0.044715
    A(f"s_mov_b32 s52, {f2u(c1)}\ns_mov_b32 s53, {f2u(c1)}\nv_mov_b32 v8, {f2u(c0)}\nv_mov_b32 v9, {f2u(c0)}")
    A("s_mul_i32 s17, s22, 144\ns_lshl_b32 s3, s23, 2\ns_add_u32 s17, s17, s3\ns_add_u32 s17, s17, s16\ns_mul_i32 s17, s17, 9216")
    for t in range(9):
        a0 = V_ACC + t*8
        T = 16 + (t % 2) * 12
        for p in range(4): A(f"v_pk_mul_f32 {v(T+2*p,2)}, {v(a0+2*p,2)}, {v(a0+2*p,2)}")
        for p in range(4): A(f"v_pk_fma_f32 {v(T+2*p,2)}, {v(T+2*p,2)}, s[52:53], v[8:9]")
        for p in range(4): A(f"v_pk_mul_f32 {v(T+2*p,2)}, {v(T+2*p,2)}, {v(a0+2*p,2)}")
        for e in range(8): A(f"v_exp_f32 v{T+e}, v{T+e}")
        for p in range(4): A(f"v_pk_add_f32 {v(T+2*p,2)}, {v(T+2*p,2)}, 1.0 op_sel_hi:[1,0]")
        for e in range(8): A(f"v_rcp_f32 v{T+e}, v{T+e}")
        for p in range(4): A(f"v_pk_mul_f32 {v(T+2*p,2)}, {v(T+2*p,2)}, {v(a0+2*p,2)}")
        for p in range(4): A(f"v_cvt_pk_bf16_f32 v{T+8+p}, v{T+2*p}, v{T+2*p+1}")
        if t and t % 4 == 0: A("s_add_u32 s17, s17, 4096")
        A(f"buffer_store_dwordx4 {v(T+8,4)}, v{V_PA}, s[36:39], s17 offen offset:{(t%4)*1024} {CFG.auxSt}")
    stamp(A, 3)
    stamp_flush(A, 1, 4, 26, 16)
    A("s_endpgm")
    A.label("K1_ldP")
    srd_off(A, 8, 26, HT_OFF, HT_SZ)
    A(f"s_sub_u32 s17, s16, 4\ns_mul_i32 s21, s22, {64*9216}")
    emit_loader_lin(A, 32, 9, POFF, 17, 8, 21, 20, 18, CFG.auxP)
    A("s_endpgm")
    A.label("K1_ldW")
    srd(A, 12, 4, S*F*2)
    A("s_sub_u32 s17, s16, 6\ns_lshl_b32 s21, s23, 8")
    emit_loader_W(A, 32, "std", 17, 12, 21, 9216, 20, 18, CFG.auxW1)
    A("s_endpgm")
    A.label("K1_notg1")
    A("s_cmp_ge_u32 s18, 30\ns_cbranch_scc1 K1_spare")
    A("s_sub_u32 s18, s18, 18\ns_and_b32 s22, s18, 3\ns_lshr_b32 s19, s17, 1\ns_lshl_b32 s19, s19, 2\ns_add_u32 s22, s22, s19")
    A("s_lshr_b32 s18, s18, 2\ns_and_b32 s17, s17, 1\ns_lshl_b32 s19, s17, 1\ns_add_u32 s23, s19, s18\ns_add_u32 s17, s17, 4")
    A("s_cmp_eq_u32 s18, 2\ns_cselect_b32 s23, s17, s23")
    A("s_waitcnt lgkmcnt(0)")
    A("s_cmp_ge_u32 s16, 6\ns_cbranch_scc1 K1_ldX\ns_cmp_ge_u32 s16, 4\ns_cbranch_scc1 K1_ldF")
    emit_compute_addr(A, 16, "lin")
    for i in range(0, 144, 2): A(f"v_pk_mov_b32 {v(V_ACC+i,2)}, 0, 0")
    A("s_cmp_ge_u32 s23, 4\ns_cbranch_scc1 K1_q")
    emit_compute_loop(A, 18, "lin", (False, True), 20)
    stamp(A, 2)
    A("s_barrier")
    QB = 48
    A(f"v_and_b32 v2, 15, v1\nv_lshrrev_b32 v3, 4, v1")
    A(f"s_lshl_b32 s3, s16, 5\nv_add_u32 v4, s3, v2\nv_mul_u32_u24 v4, {PHI_RS}, v4\nv_mul_u32_u24 v5, 144, v3\nv_add_u32 v4, v4, v5")
    A(f"s_mul_i32 s3, s16, 9216\ns_add_u32 s3, s3, {V_LDS}\nv_lshlrev_b32 v5, 4, v1\nv_add_u32 v5, s3, v5")
    for t in range(9):
        o = 84 + 4*(t % 3)
        for j in range(2):
            r = accr(1, t, j)
            A(f"v_cvt_pk_bf16_f32 v{o+2*j}, v{r}, v{r+1}\nv_cvt_pk_bf16_f32 v{o+2*j+1}, v{r+2}, v{r+3}")
        A(f"ds_write_b128 v5, {v(o,4)} offset:{t*1024}")
    for j in range(2):
        for e in range(2):
            softmax18(A, pairs(0, j, e), lambda m: QB + 18*e + m)
        for q in range(9): A(f"ds_write_b128 v4, {v(QB+4*q,4)} offset:{j*16*PHI_RS + 16*q}")
    A(f"v_lshrrev_b32 v6, 2, v1\nv_mul_u32_u24 v6, {PHI_RS}, v6\nv_and_b32 v7, 3, v1\nv_lshl_add_u32 v6, v7, 3, v6")
    A("s_mul_i32 s3, s16, 144\nv_add_u32 v6, s3, v6")
    A("s_lshl_b32 s3, s16, 3\nv_subrev_u32 v7, s3, v6")
    A(f"v_add_u32 v8, {64*PHI_RS}, v6\nv_add_u32 v9, {64*PHI_RS}, v7")
    A(f"s_lshl_b32 s3, s16, 11\ns_add_u32 s3, s3, {V_LDS}\nv_lshlrev_b32 v10, 4, v1\nv_add_u32 v10, s3, v10")
    A(f"v_lshlrev_b32 v11, 8, v3\nv_lshrrev_b32 v12, 2, v2\nv_and_b32 v12, 1, v12\nv_lshl_add_u32 v11, v12, 4, v11")
    A(f"s_lshl_b32 s3, s16, 6\ns_add_u32 s3, s3, {V_LDS + 8192}\nv_add_u32 v11, s3, v11")
    A("s_mov_b32 s40, 0x00110011\ns_mov_b32 s41, 0x00110011\nv_mov_b32 v12, 0x3f803f80")
    A("s_waitcnt lgkmcnt(0)\ns_barrier")
    stamp(A, 3)
    DK, FR = 16, 64
    def afr(ks, e, T): return FR + ks*40 + e*12 + T*4
    def bfr(ks, e, mt): return FR + ks*40 + 24 + e*8 + mt*4
    def dk(e, T, mt): return DK + (e*6 + mt*3 + T)*4
    for ks in range(4):
        for e in range(2):
            A(f"ds_read_b128 {v(bfr(ks,e,1),4)}, v11 offset:{ks*9216 + e*32}")
            A(f"ds_read_b128 {v(bfr(ks,e,0),4)}, v10 offset:{ks*9216 + e*1024}")
            for T in range(3):
                a = (7 if T == 2 else 6) + (2 if ks >= 2 else 0)
                off = (ks & 1)*32*PHI_RS + e*72 + T*32
                A(f"ds_read_b64_tr_b16 {v(afr(ks,e,T),2)}, v{a} offset:{off}")
                A(f"ds_read_b64_tr_b16 {v(afr(ks,e,T)+2,2)}, v{a} offset:{off + 16*PHI_RS}")
    srd_off(A, 36, 26, KVP_OFF, KVP_SZ)
    A("s_mul_i32 s17, s22, 72\ns_mul_i32 s18, s23, 18\ns_add_u32 s17, s17, s18\ns_lshl_b32 s17, s17, 11")
    A("s_add_u32 s19, s17, 16384\ns_lshl_b32 s18, s16, 12\ns_add_u32 s17, s17, s18")
    A("v_lshlrev_b32 v2, 4, v1")
    A("s_waitcnt lgkmcnt(0)")
    for ks in range(4):
        for e in range(2):
            for i in range(4): A(f"v_cndmask_b32 v{bfr(ks,e,1)+i}, v12, v{bfr(ks,e,1)+i}, s[40:41]")
    A("s_nop 1")
    for ks in range(4):
        for e in range(2):
            for mt in range(2):
                for T in range(3):
                    c = "0" if ks == 0 else v(dk(e,T,mt),4)
                    A(f"{MF} {v(dk(e,T,mt),4)}, {v(afr(ks,e,T),4)}, {v(bfr(ks,e,mt),4)}, {c}")
    A("s_lshl_b32 s18, s16, 4\ns_lshl_b64 s[42:43], 0xffff, s18\ns_nop 7")
    for mt in range(2):
        for e in range(2):
            for T in range(2):
                A(f"buffer_store_dwordx4 {v(dk(e,T,mt),4)}, v2, s[36:39], s17 offen offset:{e*2048 + T*1024} {CFG.auxSt}")
        A("s_add_u32 s17, s17, 18432")
    A("s_mov_b64 exec, s[42:43]")
    for mt in range(2):
        for e in range(2):
            A(f"buffer_store_dwordx4 {v(dk(e,2,mt),4)}, v2, s[36:39], s19 offen offset:{e*1024} {CFG.auxSt}")
        A("s_add_u32 s19, s19, 18432")
    stamp_flush(A, 1, 4, 26, 16)
    A("s_endpgm")
    A.label("K1_q")
    emit_compute_loop(A, 18, "lin", (False, False), 20)
    stamp(A, 2)
    srd_off(A, 36, 26, PHIQ_OFF, PHIQ_SZ)
    A("v_and_b32 v2, 15, v1\nv_lshrrev_b32 v3, 4, v1\nv_lshlrev_b32 v3, 11, v3\nv_lshl_add_u32 v3, v2, 4, v3")
    A("v_lshlrev_b32 v2, 4, v1\nv_add_u32 v2, 8192, v2")
    A("s_lshl_b32 s17, s22, 3\ns_lshl_b32 s18, s16, 1\ns_add_u32 s17, s17, s18\ns_lshl_b32 s17, s17, 1\ns_add_u32 s17, s17, s23\ns_sub_u32 s17, s17, 4\ns_mul_i32 s17, s17, 18432")
    for j in range(2):
        for st in range(2):
            for e in range(2):
                softmax18(A, pairs(st, j, e), lambda m: (QB + e*16 + 4*((m & 7) >> 1) + (m & 1) + 2*(m >> 3)) if m < 16 else QB + 32 + 2*e + m - 16)
                for gg in range(4):
                    A(f"buffer_store_dwordx4 {v(QB+e*16+4*gg,4)}, v3, s[36:39], s17 offen offset:{e*1024 + gg*256} {CFG.auxSt}")
            A(f"buffer_store_dwordx4 {v(QB+32,4)}, v2, s[36:39], s17 offen {CFG.auxSt}")
            A(f"s_add_u32 s17, s17, {9216 if st == 0 else 36864 - 9216}")
    stamp(A, 3)
    stamp_flush(A, 1, 4, 26, 16)
    A("s_endpgm")
    A.label("K1_ldF")
    srd_off(A, 8, 26, WF_OFF, WF_SZ)
    A(f"s_sub_u32 s17, s16, 4\ns_mul_i32 s21, s23, {18*18432}")
    emit_loader_lin(A, 18, 9, POFF, 17, 8, 21, 20, 18, CFG.auxP)
    A("s_endpgm")
    A.label("K1_ldX")
    srd_off(A, 8, 26, XN_OFF, XN_SZ)
    A(f"s_sub_u32 s17, s16, 6\ns_mul_i32 s21, s22, {18*8192}")
    emit_loader_lin(A, 18, 4, WOFF, 17, 8, 21, 20, 18, CFG.auxP)
    A("s_endpgm")
    A.label("K1_spare")
    A("s_cmp_ge_u32 s16, 5\ns_cbranch_scc1 K1_end")
    A("s_sub_u32 s18, s18, 30\ns_lshl_b32 s17, s17, 1\ns_add_u32 s17, s17, s18\ns_and_b32 s22, s17, 3\ns_lshr_b32 s23, s17, 2")
    A("v_and_b32 v1, 63, v0\nv_and_b32 v2, 15, v1\nv_lshrrev_b32 v3, 4, v1\nv_lshlrev_b32 v2, 1, v2")
    A("v_mul_u32_u24 v4, 4608, v3\nv_add_u32 v4, v4, v2")
    A(f"v_mul_u32_u24 v5, 1152, v3\nv_add_u32 v5, v5, v2\nv_add_u32 v5, {12*1152}, v5")
    A(f"v_cmp_gt_u32 vcc, 2, v3\nv_mov_b32 v6, {OOB}\ns_nop 0\nv_cndmask_b32 v5, v6, v5, vcc")
    A("s_waitcnt lgkmcnt(0)")
    srd(A, 8, 24, D*D*2)
    srd_off(A, 12, 26, WOT_OFF, WOT_SZ)
    A(f"s_mul_i32 s28, s23, {144*1152}\ns_mul_i32 s29, s22, 288\ns_add_u32 s28, s28, s29")
    for i in range(8):
        A(f"s_lshl_b32 s29, s16, 3\ns_add_u32 s29, s29, {i}\ns_mul_i32 s30, s29, 205\ns_lshr_b32 s30, s30, 10")
        A("s_mul_i32 s31, s30, 13\ns_add_u32 s31, s31, s29\ns_mul_i32 s31, s31, 1152\ns_add_u32 s31, s31, s28")
        A("s_mul_i32 s30, s30, 5\ns_sub_u32 s30, s29, s30\ns_cmp_eq_u32 s30, 4\ns_cselect_b64 vcc, -1, 0")
        A("v_cndmask_b32 v6, v4, v5, vcc")
        for rt in range(9):
            A(f"buffer_load_ushort v{8+rt*8+i}, v6, s[8:11], s31 offen offset:{rt*32}")
        if i == 3: A("s_waitcnt vmcnt(20)")
    A("s_lshl_b32 s28, s22, 2\ns_add_u32 s28, s28, s23\ns_mul_i32 s28, s28, 5\ns_add_u32 s28, s28, s16\ns_mul_i32 s28, s28, 9216")
    A("v_lshlrev_b32 v2, 4, v1")
    A("s_waitcnt vmcnt(0)")
    for rt in range(9):
        for q in range(4): A(f"v_lshl_or_b32 v{80+rt*4+q}, v{8+rt*8+2*q+1}, 16, v{8+rt*8+2*q}")
        if rt and rt % 4 == 0: A("s_add_u32 s28, s28, 4096")
        A(f"buffer_store_dwordx4 {v(80+rt*4,4)}, v2, s[12:15], s28 offen offset:{(rt%4)*1024} {CFG.auxSt}")
    stamp_flush(A, 1, 1, 26, 16)
    A.label("K1_end")
    A("s_endpgm")

def k2_decode(A):
    A("s_and_b32 s17, s2, 7\ns_lshr_b32 s18, s2, 3")
    A("s_lshr_b32 s28, s17, 1\ns_and_b32 s22, s18, 3")
    A("s_and_b32 s17, s17, 1\ns_lshl_b32 s17, s17, 3\ns_lshr_b32 s18, s18, 2\ns_add_u32 s23, s17, s18")
def gen_k2(A):
    kernel_head(A, "k2_kernel")
    stamp(A, 0)
    A("s_cmp_ge_u32 s2, 256\ns_cbranch_scc1 K2_end")
    A(f"s_load_dwordx2 s[4:5], s[0:1], {KA_W2}\ns_load_dwordx2 s[26:27], s[0:1], {KA_WS}")
    wave_id(A, 16)
    k2_decode(A)
    A("s_cmp_ge_u32 s16, 4\ns_cbranch_scc1 K2_ld")
    emit_compute_addr(A, 16, "pi")
    for i in range(0, 72, 2): A(f"v_pk_mov_b32 {v(V_ACC+i,2)}, 0, 0")
    A("s_waitcnt lgkmcnt(0)")
    emit_compute_loop(A, 18, "pi", (False, False), 20)
    stamp(A, 2)
    srd_off(A, 36, 26, PART_OFF, PART_SZ)
    A("s_lshl_b32 s17, s23, 2\ns_add_u32 s17, s17, s22\ns_lshl_b32 s17, s17, 2\ns_add_u32 s17, s17, s16\ns_lshl_b32 s17, s17, 2\ns_add_u32 s17, s17, s28\ns_mul_i32 s17, s17, 18432")
    for q in range(18):
        if q and q % 4 == 0: A("s_add_u32 s17, s17, 4096")
        A(f"buffer_store_dwordx4 {v(V_ACC+4*q,4)}, v{V_PA}, s[36:39], s17 offen offset:{(q%4)*1024} {CFG.auxSt}")
    stamp(A, 3)
    stamp_flush(A, 2, 4, 26, 16)
    A("s_endpgm")
    A.label("K2_ld")
    A("s_waitcnt lgkmcnt(0)")
    A("s_cmp_ge_u32 s16, 6\ns_cbranch_scc1 K2_ldW")
    srd_off(A, 8, 26, U_OFF, U_SZ)
    A(f"s_sub_u32 s17, s16, 4\ns_lshl_b32 s21, s22, 2\ns_add_u32 s21, s21, s28\ns_mul_i32 s21, s21, {36*9216}")
    emit_loader_lin(A, 18, 9, POFF, 17, 8, 21, 20, 18, CFG.auxP)
    A("s_cmp_lg_u32 s16, 4\ns_cbranch_scc1 K2_end\ns_cmp_ge_u32 s2, 72\ns_cbranch_scc1 K2_end")
    srd_off(A, 8, 26, KVP_OFF, KVP_SZ)
    srd_off(A, 12, 26, KVF_OFF, KVF_SZ)
    A("s_lshl_b32 s17, s2, 11\ns_lshl_b32 s18, s2, 10")
    for tb in range(16):
        A(f"buffer_load_dwordx4 {v(8+8*tb,4)}, v1, s[8:11], s17 offen\nbuffer_load_dwordx4 {v(12+8*tb,4)}, v1, s[8:11], s17 offen offset:1024")
        A(f"s_add_u32 s17, s17, {72*2048}")
    for tb in range(1, 16):
        A(f"s_waitcnt vmcnt({2*(15-tb)})")
        for p in range(4): A(f"v_pk_add_f32 {v(8+2*p,2)}, {v(8+2*p,2)}, {v(8+8*tb+2*p,2)}")
    for p in range(4): A(f"v_cvt_pk_bf16_f32 v{4+p}, v{8+2*p}, v{9+2*p}")
    A(f"buffer_store_dwordx4 v[4:7], v1, s[12:15], s18 offen {CFG.auxSt}")
    A("s_endpgm")
    A.label("K2_ldW")
    srd(A, 12, 4, S*F*2)
    A(f"s_sub_u32 s17, s16, 6\ns_mul_i32 s21, s28, {1152*4096}\ns_lshl_b32 s18, s23, 8\ns_add_u32 s21, s21, s18")
    emit_loader_W(A, 18, "pi", 17, 12, 21, 4096, 20, 18, CFG.auxW2)
    A.label("K2_end")
    A("s_endpgm")

RED_RS = 592
K3_LDS = 4*32*RED_RS
def gen_k3(A):
    kernel_head(A, "k3_kernel")
    stamp(A, 0)
    A("s_cmp_ge_u32 s2, 256\ns_cbranch_scc1 K3_end")
    A(f"s_load_dwordx2 s[4:5], s[0:1], {KA_X}\ns_load_dwordx4 s[44:47], s[0:1], {KA_B2}\ns_load_dwordx2 s[26:27], s[0:1], {KA_WS}")
    wave_id(A, 16)
    k2_decode(A)
    A("v_and_b32 v1, 63, v0\nv_lshlrev_b32 v2, 4, v1\nv_add_u32 v3, 4096, v2\nv_add_u32 v4, 8192, v2")
    HB, REM, O, TM, WB0, WB1, AC = 8, 136, 152, 192, 220, 80, 8
    def kvm(h, mt): return HB + 16*h + 4*mt
    def phm(h, j): return HB + 16*h + 8 + 4*j
    A("s_mul_i32 s17, s16, 18432\ns_add_u32 s18, s17, 9216")
    A("s_lshl_b32 s19, s23, 2\ns_add_u32 s19, s19, s28\ns_lshl_b32 s19, s19, 3\ns_add_u32 s19, s19, s16\ns_mul_i32 s19, s19, 9216\ns_add_u32 s20, s19, 36864")
    A("s_lshl_b32 s21, s22, 2\ns_add_u32 s21, s21, s16\ns_mul_i32 s21, s21, 46080")
    A("s_waitcnt lgkmcnt(0)")
    srd_off(A, 8, 26, KVF_OFF, KVF_SZ)
    srd_off(A, 12, 26, PHIQ_OFF, PHIQ_SZ)
    srd_off(A, 32, 26, WOT_OFF, WOT_SZ)
    srd_off(A, 36, 26, PART_OFF, PART_SZ)
    def ld(dst, srdn, so, blk):
        A(f"buffer_load_dwordx4 {v(dst,4)}, v{2 + blk//4}, {s(srdn,4)}, s{so} offen offset:{(blk%4)*1024}")
    ld(REM, 8, 17, 8); ld(REM+4, 8, 18, 8); ld(REM+8, 12, 19, 8); ld(REM+12, 12, 20, 8)
    for h in range(8):
        ld(kvm(h,0), 8, 17, h); ld(kvm(h,1), 8, 18, h); ld(phm(h,0), 12, 19, h); ld(phm(h,1), 12, 20, h)
    def ldw(buf):
        for rt in range(9): ld(buf+4*rt, 32, 21, rt)
        A("s_add_u32 s21, s21, 9216")
    ldw(WB0)
    A("s_lshl_b32 s29, s23, 2\ns_add_u32 s29, s29, s22\ns_lshl_b32 s29, s29, 2\ns_add_u32 s29, s29, s28\ns_lshl_b32 s29, s29, 2\ns_add_u32 s29, s29, s16\ns_mul_i32 s29, s29, 18432")
    MA = TM + 16
    A(f"v_mov_b32 v{MA+2}, 0\nv_mov_b32 v{MA+3}, 0\nv_mov_b32 v{MA+8}, 0\nv_mov_b32 v{MA+9}, 0")
    A(f"s_mov_b32 s48, {f2u(1e-6)}")
    for hp in range(4):
        A(f"s_mov_b32 s40, {0xffff << (16*hp) & 0xffffffff}\ns_mov_b32 s41, {(0xffff << (16*hp)) >> 32}")
        A(f"s_waitcnt vmcnt({9 + 8*(3-hp)})")
        if hp == 0: stamp(A, 1)
        for mt in range(2):
            for i in range(4):
                A(f"v_cndmask_b32 v{MA+6*mt+(i if i < 2 else i+2)}, 0, v{REM+4*mt+i}, s[40:41]")
        for j in range(2):
            for e in range(2):
                for mt in range(2):
                    A(f"{MF} {v(TM+8*e+4*mt,4)}, {v(kvm(2*hp+e,mt),4)}, {v(phm(2*hp+e,j),4)}, 0")
            for e in range(2):
                for mt in range(2):
                    A(f"{MF} {v(TM+8*e+4*mt,4)}, {v(MA+6*mt+2*e,4)}, {v(REM+8+4*j,4)}, {v(TM+8*e+4*mt,4)}")
            A("s_nop 7")
            for e in range(2): A(f"v_add_f32 v{TM+8*e+5}, s48, v{TM+8*e+5}")
            for e in range(2): A(f"v_rcp_f32 v{TM+8*e+5}, v{TM+8*e+5}")
            A("s_nop 0")
            vals = []
            for e in range(2):
                for i in range(5):
                    A(f"v_mul_f32 v{TM+8*e+i}, v{TM+8*e+i}, v{TM+8*e+5}"); vals.append(TM+8*e+i)
            for p in range(5):
                pi = 5*hp + p
                A(f"v_cvt_pk_bf16_f32 v{O + (pi>>2)*8 + 4*j + (pi&3)}, v{vals[2*p]}, v{vals[2*p+1]}")
    stamp(A, 2)
    for q in range(18):
        if q and q % 4 == 0: A("s_add_u32 s29, s29, 4096")
        A(f"buffer_load_dwordx4 {v(AC+4*q,4)}, v2, s[36:39], s29 offen offset:{(q%4)*1024}")
    ldw(WB1)
    srd(A, 8, 4, S*D*2)
    srd(A, 12, 44, S*2)
    srd(A, 40, 46, S*D*2)
    A("s_lshl_b32 s30, s23, 2\ns_add_u32 s30, s30, s28\ns_lshl_b32 s31, s30, 6\ns_mul_i32 s30, s30, 36864\ns_mul_i32 s17, s22, 288\ns_add_u32 s30, s30, s17")
    FI = 116
    for n in range(3):
        A(f"v_add_u32 v5, {256*n}, v0\nv_mul_u32_u24 v6, 3641, v5\nv_lshrrev_b32 v6, 16, v6")
        A("v_mul_u32_u24 v7, 18, v6\nv_sub_u32 v7, v5, v7")
        A(f"v_mul_u32_u24 v5, 1152, v6\nv_lshl_add_u32 v{FI+n}, v7, 4, v5")
        A(f"v_mul_u32_u24 v5, {RED_RS}, v6\nv_lshl_add_u32 v{FI+3+n}, v7, 5, v5")
        A(f"v_lshlrev_b32 v{FI+6+n}, 1, v6")
    A(f"v_and_b32 v5, 15, v1\nv_mul_u32_u24 v5, {RED_RS}, v5\nv_lshrrev_b32 v6, 4, v1\nv_lshl_add_u32 v5, v6, 4, v5")
    A(f"s_mul_i32 s17, s16, {32*RED_RS}\nv_add_u32 v5, s17, v5")
    for u in range(5):
        buf = (WB0, WB1)[u & 1]
        A(f"s_waitcnt vmcnt({9 if u < 4 else 0})")
        for t in range(9):
            for j in range(2):
                a = v(AC+(2*t+j)*4, 4)
                A(f"{MF} {a}, {v(buf+4*t,4)}, {v(O+8*u+4*j,4)}, {a}")
        if u < 3: ldw(buf)
    XB = 128
    for n in range(2):
        A(f"buffer_load_dwordx4 {v(XB+4*n,4)}, v{FI+n}, s[8:11], s30 offen\nbuffer_load_ushort v{XB+12+n}, v{FI+6+n}, s[12:15], s31 offen")
    A("s_cmp_lg_u32 s16, 0\ns_cbranch_scc1 K3_nox")
    A(f"buffer_load_dwordx4 {v(XB+8,4)}, v{FI+2}, s[8:11], s30 offen\nbuffer_load_ushort v{XB+14}, v{FI+8}, s[12:15], s31 offen")
    A.label("K3_nox")
    A("s_nop 4")
    for t in range(9):
        for j in range(2):
            A(f"ds_write_b128 v5, {v(AC+(2*t+j)*4,4)} offset:{j*16*RED_RS + t*64}")
    A("s_waitcnt lgkmcnt(0)\ns_barrier")
    stamp(A, 3)
    def fin(n):
        R = 8
        for w in range(4):
            A(f"ds_read_b128 {v(R+8*w,4)}, v{FI+3+n} offset:{w*32*RED_RS}\nds_read_b128 {v(R+8*w+4,4)}, v{FI+3+n} offset:{w*32*RED_RS+16}")
        A("s_waitcnt vmcnt(0)" if n == 0 else "s_nop 0")
        for i in range(4):
            A(f"v_lshlrev_b32 v{40+2*i}, 16, v{XB+4*n+i}\nv_and_b32 v{41+2*i}, 0xffff0000, v{XB+4*n+i}")
        A(f"v_lshlrev_b32 v48, 16, v{XB+12+n}")
        for p in range(4): A(f"v_pk_add_f32 {v(40+2*p,2)}, {v(40+2*p,2)}, v[48:49] op_sel_hi:[1,0]")
        for w in range(4):
            A(f"s_waitcnt lgkmcnt({2*(3-w)})")
            for p in range(4): A(f"v_pk_add_f32 {v(40+2*p,2)}, {v(40+2*p,2)}, {v(R+8*w+2*p,2)}")
        for p in range(4): A(f"v_cvt_pk_bf16_f32 v{52+4*n+p}, v{40+2*p}, v{41+2*p}")
        A(f"buffer_store_dwordx4 {v(52+4*n,4)}, v{FI+n}, s[40:43], s30 offen")
    fin(0); fin(1)
    A("s_cmp_lg_u32 s16, 0\ns_cbranch_scc1 K3_fin")
    fin(2)
    A.label("K3_fin")
    stamp_flush(A, 3, 4, 26, 16)
    A.label("K3_end")
    A("s_endpgm")

def gen_probe(A):
    k, i, lo, hi, mm = CFG.probe.split(",")
    k, i, lo, hi = int(k), int(i), int(lo), int(hi)
    kernel_head(A, "z_kernel")
    A("s_cmp_ge_u32 s2, 1\ns_cbranch_scc1 Z_end")
    A(f"s_load_dwordx2 s[26:27], s[0:1], {KA_WS}\ns_memrealtime s[4:5]\ns_waitcnt lgkmcnt(0)")
    srd_off(A, 8, 26, STAMP_OFF, STAMP_SZ)
    op = "v_min_u32" if mm == "max" else "v_max_u32"
    for n in range(8):
        A(f"v_add_u32 v1, {lo + 64*n}, v0\nv_min_u32 v1, {hi-1}, v1\nv_lshlrev_b32 v1, 9, v1")
        A(f"s_mov_b32 s3, {k*0x40000 + 4*i}\nbuffer_load_dword v{8+n}, v1, s[8:11], s3 offen")
    A("s_waitcnt vmcnt(0)")
    for n in range(8): A(f"v_sub_u32 v{8+n}, s4, v{8+n}")
    for n in range(1, 8): A(f"{op} v8, v8, v{8+n}")
    A("s_nop 1\nv_readlane_b32 s6, v8, 0")
    for l in range(1, 64):
        A(f"v_readlane_b32 s7, v8, {l}\ns_nop 0\n{op.replace('v_','s_')} s6, s6, s7")
    A("s_sub_u32 s6, s4, s6")
    A("Z_loop:\ns_memrealtime s[4:5]\ns_waitcnt lgkmcnt(0)\ns_sub_u32 s7, s4, s6\ns_cmp_lt_u32 s7, 12000\ns_cbranch_scc1 Z_loop")
    A("Z_end:\ns_endpgm")

HEADER = open("parallel_sum__linear_kernel_hedgehog__mixer_token_mlp__prompt.s.ref").read().split("; Override launch")[0] if __name__ == "__main__" else ""

def gen(**kw):
    global CFG
    for k in dir(Cfg):
        if not k.startswith("_"): setattr(CFG, k, kw.get(k, getattr(Cfg, k)))
    A = Asm()
    if HEADER: A(HEADER.rstrip())
    A(f"; @launch kernel=k0_kernel grid=(472,1,1) block=(256,1,1) lds={K0_LDS}")
    A(f"; @launch kernel=k1_kernel grid=(256,1,1) block=(512,1,1) lds={NST*STAGE}")
    A(f"; @launch kernel=k2_kernel grid=(256,1,1) block=(512,1,1) lds={NST*STAGE}")
    A(f"; @launch kernel=k3_kernel grid=(256,1,1) block=(256,1,1) lds={K3_LDS}")
    if CFG.probe: A("; @launch kernel=z_kernel grid=(1,1,1) block=(64,1,1) lds=0")
    A('.amdgcn_target "amdgcn-amd-amdhsa--gfx950"\n.text')
    gen_k0(A); gen_k1(A); gen_k2(A); gen_k3(A)
    if CFG.probe: gen_probe(A)
    A('.section .rodata,"a"')
    if CFG.probe: kernel_desc(A, "z_kernel", 16, 32)
    kernel_desc(A, "k0_kernel", 88)
    kernel_desc(A, "k1_kernel", 240)
    kernel_desc(A, "k2_kernel", 168)
    kernel_desc(A, "k3_kernel", 256)
    return A.text()

if __name__ == "__main__":
    out = sys.argv[1] if len(sys.argv) > 1 else "parallel_sum__linear_kernel_hedgehog__mixer_token_mlp__prompt.s"
    kw = {}
    for a in sys.argv[2:]:
        k, val = a.split("=")
        kw[k] = val if not val.isdigit() else int(val)
    open(out, "w").write(gen(**kw))
```

```python
import math, struct, sys
from asmlib import *

def f2u(x): return struct.unpack("<I", struct.pack("<f", x))[0]
LOG2E = math.log2(math.e)
OOB = 0x80000000

S, D, F, H, DH = 2048, 576, 4608, 32, 18
KA_X, KA_WQKV, KA_WPHI, KA_WO, KA_BX, KA_W1, KA_B1, KA_W2, KA_B2, KA_OUT, KA_DBG, KA_WS = [8*i for i in range(12)]
XN_OFF, XN_SZ = 0x0, 2359296
HT_OFF, HT_SZ = 0x240000, 2359296
WF_OFF, WF_SZ = 0x480000, 6*18*18*1024
U_OFF, U_SZ = 0x680000, 5308416
PHIQ_OFF, PHIQ_SZ = 0xC00000, 4718592
KVP_OFF, KVP_SZ = 0x1080000, 16*48*2048
KVF_OFF, KVF_SZ = 0x12C0000, 48*1024
WOT_OFF, WOT_SZ = 0x1300000, 16*45*1024
PART_OFF, PART_SZ = 0x1400000, 64*16*9216
FLAG_OFF, FLAG_SZ = 0x1F00000, 0x4000
STAMP_OFF, STAMP_SZ = 0x3000000, 0x100000

STAGE, POFF, WOFF, NST = 34816, 0, 18432, 4
STAGE1, STAGE2 = 34816, 36864
def set_stage(x):
    global STAGE
    STAGE = x
V_PA, V_PB, V_W0A, V_W1A, V_W0B, V_W1B = 2, 3, 4, 5, 6, 7
V_PF, V_WF, V_ACC = 8, 80, 96
def pf(b, t): return v(V_PF + b*36 + t*4, 4)
def wf(b, j): return v(V_WF + b*8 + j*4, 4)
def accr(st, t, j): return V_ACC + st*72 + (t*2+j)*4
def acc(st, t, j): return v(accr(st, t, j), 4)
MF = "v_mfma_f32_16x16x32_bf16"

class Cfg:
    stamp = False
    auxW1 = ""; auxW2 = ""; auxP = ""; auxSt = ""
    G1 = 0; G2 = 0; GA = 0
    auxOut = ""; flagpos = 1; pollpos = 1
    pts = "b0,main,v2,o,wo"
    dbg_nopub = 0; dbg_hot = 0; dbg = ""
    pfc = 0
    pf1 = 0
    pf1l = 0; pf1rev = 0; pf2g = 0; pf2pos = 3
    pf1pos = 0
    pf1s = 0
    pft = 0
    pf2kv = 0; pf2q = 0; pf2s = 0
    probe = ""
CFG = Cfg()

def stamp(A, i):
    if CFG.stamp: A(f"s_memrealtime s[{64+4*i}:{65+4*i}]\ns_memtime s[{66+4*i}:{67+4*i}]")
def pt(A, name):
    L = CFG.pts.split(",")
    if name in L: stamp(A, 1 + L.index(name))
def stamp_flush(A, kidx, n, s_ws, s_wave):
    if not CFG.stamp: return
    A("s_waitcnt vmcnt(0)")
    stamp(A, n)
    A("s_waitcnt lgkmcnt(0)")
    srd_off(A, 92, s_ws, STAMP_OFF, STAMP_SZ)
    A(f"s_lshl_b32 s96, s2, 3\ns_add_u32 s96, s96, s{s_wave}\ns_lshl_b32 s96, s96, 6\ns_add_u32 s96, s96, {kidx*0x40000}")
    A("s_mov_b64 exec, 1\nv_mov_b32 v1, 0")
    for i in range(n+1):
        A(f"v_mov_b32 v2, s{64+4*i}\nbuffer_store_dword v2, v1, s[92:95], s96 offen offset:{4*i}")
        A(f"v_mov_b32 v2, s{66+4*i}\nbuffer_store_dword v2, v1, s[92:95], s96 offen offset:{32+4*i}")

def emit_compute_addr(A, s_wave, mode):
    A("v_and_b32 v1, 63, v0")
    A(f"v_lshlrev_b32 v{V_PA}, 4, v1")
    A(f"v_add_u32 v{V_PB}, {2*STAGE}, v{V_PA}")
    if mode == "lin":
        A(f"s_lshl_b32 s3, s{s_wave}, 11\ns_add_u32 s3, s3, {WOFF}")
        A(f"v_add_u32 v{V_W0A}, s3, v{V_PA}")
        A(f"v_add_u32 v{V_W0B}, {2*STAGE}, v{V_W0A}")
        return
    A("v_lshrrev_b32 v8, 2, v1")
    A("v_and_b32 v9, 7, v8")
    if mode == "std":
        A("v_and_b32 v10, 12, v8\nv_add_u32 v8, v8, v10")
    A(f"s_lshl_b32 s3, s{s_wave}, 1")
    A("v_xor_b32 v9, s3, v9\nv_lshlrev_b32 v9, 5, v9\nv_lshl_add_u32 v9, v8, 8, v9")
    A("v_and_b32 v8, 3, v1\nv_lshl_add_u32 v9, v8, 3, v9")
    A(f"v_add_u32 v{V_W0A}, {WOFF}, v9")
    A(f"v_xor_b32 v{V_W1A}, 32, v{V_W0A}")
    A(f"v_add_u32 v{V_W0B}, {2*STAGE}, v{V_W0A}")
    A(f"v_add_u32 v{V_W1B}, {2*STAGE}, v{V_W1A}")

def reads_P(slot, sub, b):
    a = V_PB if slot >= 2 else V_PA
    so = (slot & 1) * STAGE
    return [f"ds_read_b128 {pf(b,t)}, v{a} offset:{so + (sub*9+t)*1024}" for t in range(9)]
def reads_W(slot, sub, b, mode):
    hi = slot >= 2
    so = (slot & 1) * STAGE
    R = []
    if mode == "lin":
        a = V_W0B if hi else V_W0A
        return [f"ds_read_b128 {wf(b,j)}, v{a} offset:{so + j*1024}" for j in range(2)]
    second = 1024 if mode == "std" else 4096
    for j in range(2):
        a = (V_W0B, V_W1B)[j] if hi else (V_W0A, V_W1A)[j]
        base = V_WF + b*8 + j*4
        R.append(f"ds_read_b64_tr_b16 {v(base,2)}, v{a} offset:{so + sub*8192}")
        R.append(f"ds_read_b64_tr_b16 {v(base+2,2)}, v{a} offset:{so + sub*8192 + second}")
    return R

DBG = {"on": False}
def dbg(x): return DBG["on"] and x in CFG.dbg.split(",")
def block(A, M, R, barrier):
    if dbg("nomfma"): M = ["s_nop 3"]*len(M)
    if dbg("noread"): R = []
    if dbg("noreadP"): R = [r for r in R if "tr_b16" in r]
    if dbg("halfP"): R = [r for i, r in enumerate(R) if "tr_b16" in r or i % 2]
    A("s_waitcnt lgkmcnt(0)")
    if barrier: A("s_barrier")
    ri = 0
    for m in M:
        A(m)
        if ri < len(R):
            A(R[ri]); ri += 1
    assert ri == len(R)

def mfmas(st, pb, wb, w_is_A):
    M = []
    for t in range(9):
        for j in range(2):
            a, b = (wf(wb,j), pf(pb,t)) if w_is_A else (pf(pb,t), wf(wb,j))
            M.append(f"{MF} {acc(st,t,j)}, {a}, {b}, {acc(st,t,j)}")
    return M

def emit_compute_loop(A, n, mode, w_is_A, s_cnt, first=None):
    lin = mode == "lin"
    A("s_barrier")
    if first: first()
    else: stamp(A, 1)
    for r in reads_W(0, 0, 0, mode) + reads_P(0, 0, 0): A(r)
    def stage(i, last):
        slot = i % NST; nxt = (i+1) % NST
        if lin:
            wb = i & 1
            block(A, mfmas(0, 0, wb, w_is_A[0]), reads_P(slot, 1, 1), False)
            block(A, mfmas(1, 1, wb, w_is_A[1]), [] if last else reads_W(nxt, 0, wb ^ 1, mode) + reads_P(nxt, 0, 0), not last)
        else:
            block(A, mfmas(0, 0, 0, w_is_A[0]), reads_W(slot, 1, 1, mode) + reads_P(slot, 1, 1), False)
            block(A, mfmas(0, 1, 1, w_is_A[1]), [] if last else reads_W(nxt, 0, 0, mode) + reads_P(nxt, 0, 0), not last)
    nloop = (n - 1) // NST
    L = A.newlabel("Lc")
    A(f"s_mov_b32 s{s_cnt}, {nloop}")
    A.label(L)
    for i in range(NST): stage(i, False)
    A(f"s_sub_u32 s{s_cnt}, s{s_cnt}, 1\ns_cmp_lg_u32 s{s_cnt}, 0\ns_cbranch_scc1 {L}")
    for i in range(nloop*NST, n): stage(i, i == n-1)

def rot_init(A, G, s_rot, s_off, step):
    if not G: return
    A(f"s_mul_i32 s62, s{s_rot}, {step}\ns_add_u32 s{s_off}, s{s_off}, s62")
    A(f"s_sub_u32 s60, {G}, s{s_rot}\ns_mov_b32 s61, {G}")
def rot_step(A, G, s_off, step):
    if dbg("noadv"): return
    if "k1W" in CFG.dbg and step == 64*9216: return
    if "k1P" in CFG.dbg and DBG.get("k1P"): return
    A(f"s_add_u32 s{s_off}, s{s_off}, {step}")
    if not G: return
    A(f"s_sub_u32 s60, s60, 1\ns_cmp_eq_u32 s60, 0\ns_cselect_b32 s62, {G*step}, 0\ns_cselect_b32 s60, {G}, s60\ns_sub_u32 s{s_off}, s{s_off}, s62")
    A(f"s_sub_u32 s61, s61, 1\ns_cmp_eq_u32 s61, 0\ns_cselect_b32 s62, {G*step}, 0\ns_cselect_b32 s61, {G}, s61\ns_add_u32 s{s_off}, s{s_off}, s62")

def emit_loader(A, n, cnt, issue, s_cnt, extra=None, hook=None, post=None):
    extra = extra or []
    tot = n + len(extra)
    hook = hook or {}
    def c(i): return 0 if i >= tot else (cnt + (i in hook) if i < n else extra[i-n][0])
    for i in range(3): issue(i)
    nloop = (n - 3) // NST
    L = A.newlabel("Ll")
    A(f"s_mov_b32 s{s_cnt}, {nloop}")
    A.label(L)
    for i in range(NST):
        A(f"s_waitcnt vmcnt({2*cnt})\ns_barrier")
        issue((i+3) % NST)
    A(f"s_sub_u32 s{s_cnt}, s{s_cnt}, 1\ns_cmp_lg_u32 s{s_cnt}, 0\ns_cbranch_scc1 {L}")
    for i in range(nloop*NST, tot):
        A(f"s_waitcnt vmcnt({c(i+1)+c(i+2) + (post[0] if post and i > n-post[2] else 0)})\ns_barrier")
        if post and i == n-post[2]: post[1]()
        if i+3 in hook: hook[i+3]()
        if i+3 < n: issue((i+3) % NST)
        elif i+3 < tot: extra[i+3-n][1]((i+3) % NST)

def emit_loader_lin(A, n, per, ldsoff, s_lw, srdP, s_off, s_cnt, s_tmp, aux="", G=0, s_rot=59, extra=None, post=None):
    rot_init(A, G, s_rot, s_off, 2*per*1024)
    A("v_and_b32 v1, 63, v0\nv_lshlrev_b32 v1, 4, v1")
    A(f"s_mul_i32 s{s_tmp}, s{s_lw}, {per*1024}")
    A(f"v_add_u32 v2, s{s_tmp}, v1")
    for q in range(1, (per+3)//4): A(f"v_add_u32 v{2+q}, {q*4096}, v2")
    def issue(slot):
        for j in range(per):
            if j % 4 == 0:
                A(f"s_add_u32 m0, s{s_tmp}, {slot*STAGE + ldsoff + (j//4)*4096}\ns_nop 0")
            if not dbg("noload"): A(f"buffer_load_dwordx4 v{2+j//4}, {s(srdP,4)}, s{s_off} offen offset:{(j%4)*1024} {aux} lds")
        rot_step(A, G, s_off, 2*per*1024)
    emit_loader(A, n, per, issue, s_cnt, extra, post=post)

def emit_loader_W(A, n, mode, s_lw, srdW, s_off, stride, s_cnt, s_tmp, aux="", G=0, s_rot=59, extra=None, hook=None, post=None, every=None):
    rot_init(A, G, s_rot, s_off, 64*stride)
    A("v_and_b32 v1, 63, v0\nv_lshrrev_b32 v10, 4, v1\nv_and_b32 v11, 15, v1")
    A(f"s_lshl_b32 s{s_tmp}, s{s_lw}, 5\nv_add_u32 v12, s{s_tmp}, v10")
    A(f"s_mov_b32 s3, {stride}\nv_mul_lo_u32 v12, v12, s3")
    for par in range(2):
        A(f"v_or_b32 v13, {4*par}, v10\nv_lshlrev_b32 v13, 1, v13\nv_xor_b32 v13, v13, v11")
        A("v_lshl_add_u32 v13, v13, 4, v12")
        for j in range(8):
            key = (j & 1) if mode == "pi" else ((j >> 1) & 1)
            if key == par:
                A(f"v_add_u32 v{2+j}, {4*j*stride - (j%4)*1024}, v13")
    A(f"s_lshl_b32 s{s_tmp}, s{s_lw}, 13")
    def issue(slot):
        for j in range(8):
            if j % 4 == 0:
                A(f"s_add_u32 m0, s{s_tmp}, {slot*STAGE + WOFF + (j//4)*4096}\ns_nop 0")
            if not dbg("noload"): A(f"buffer_load_dwordx4 v{2+j}, {s(srdW,4)}, s{s_off} offen offset:{(j%4)*1024} {aux} lds")
        if every: every()
        rot_step(A, G, s_off, 64*stride)
    emit_loader(A, n, 9 if every else 8, issue, s_cnt, extra, hook, post)

def pf_w1(A, srdn, s_col, s_idx, step, count, vl, vt, lim=None, rev=0):
    for c in range(count):
        if rev: A(f"s_sub_u32 s57, {rev-1}, s{s_idx}\ns_lshl_b32 s57, s57, 6")
        else: A(f"s_lshl_b32 s57, s{s_idx}, 6")
        A(f"v_add_u32 v{vt}, s57, v{vl}\nv_mul_u32_u24 v{vt+1}, 52429, v{vt}\nv_lshrrev_b32 v{vt+1}, 19, v{vt+1}")
        A(f"v_mul_u32_u24 v{vt+1}, {9216-1280}, v{vt+1}\nv_lshl_add_u32 v{vt}, v{vt}, 7, v{vt+1}")
        A(f"buffer_load_dword v{vt+2}, v{vt}, {s(srdn,4)}, s{s_col} offen")
        A(f"s_add_u32 s{s_idx}, s{s_idx}, {step}")
        if lim is not None: A(f"s_waitcnt vmcnt({lim})")
def pf_code(A, start):
    L = A.newlabel("Lpc")
    A(f"s_getpc_b64 s[60:61]\n{L}:\ns_add_u32 s60, s60, {start}-{L}\ns_addc_u32 s61, s61, 0")
    A(f"v_lshlrev_b32 v90, 7, v0\nv_min_u32 v90, CODE_END-{start}-4, v90\nglobal_load_dword v91, v90, s[60:61]")
def pf_w1_col(A, s_col):
    A(f"s_and_b32 s{s_col}, s2, 7\ns_mul_i32 s{s_col}, s{s_col}, 18\ns_lshr_b32 s{s_col}, s{s_col}, 2\ns_lshl_b32 s{s_col}, s{s_col}, 8")
def pf_w2(A, s_ptr, s_idx, step, count, lim=None):
    if not count: return
    srd(A, 52, s_ptr, S*F*2)
    A(f"s_bfe_u32 s57, s2, 0x20001\ns_mul_i32 s57, s57, {1152*4096}\ns_and_b32 s58, s2, 1\ns_lshl_b32 s58, s58, 11\ns_add_u32 s57, s57, s58")
    A(f"s_lshl_b32 s58, s{s_idx}, 14\ns_add_u32 s57, s57, s58")
    A("v_bfe_u32 v30, v0, 4, 2\nv_lshlrev_b32 v30, 12, v30\nv_and_b32 v31, 15, v0\nv_lshl_add_u32 v30, v31, 7, v30")
    for c in range(count):
        A(f"buffer_load_dword v31, v30, s[52:55], s57 offen\ns_add_u32 s57, s57, {step*16384}")
        if lim is not None: A(f"s_waitcnt vmcnt({lim})")

SPIN_MAX = 200000
def poll(A, vaddr, vtmp, srdn, soff):
    L = A.newlabel("Lp"); X = A.newlabel("Lx")
    A(f"s_mov_b32 s63, {SPIN_MAX}")
    A.label(L)
    A(f"buffer_load_dword v{vtmp}, v{vaddr}, {s(srdn,4)}, s{soff} offen sc1")
    A(f"s_waitcnt vmcnt(0)\nv_cmp_eq_u32 vcc, 0, v{vtmp}\ns_sub_u32 s63, s63, 1\ns_cbranch_scc1 {X}\ns_nop 2\ns_cbranch_vccnz {L}")
    A.label(X)

def wave_id(A, sd):
    A(f"v_lshrrev_b32 v1, 6, v0\ns_nop 1\nv_readfirstlane_b32 s{sd}, v1")

def reduce32(A, regs, tmp):
    pad = "s_nop 1" if len(regs) == 1 else "s_nop 0"
    A("s_nop 1")
    for pat in ["quad_perm:[1,0,3,2]", "quad_perm:[2,3,0,1]", "row_half_mirror", "row_mirror"]:
        for r in regs:
            A(f"v_add_f32_dpp v{r}, v{r}, v{r} {pat} row_mask:0xf bank_mask:0xf")
        A(pad)
    for i, r in enumerate(regs): A(f"v_mov_b32 v{tmp+i}, v{r}")
    A("s_nop 1")
    for i, r in enumerate(regs): A(f"v_permlane16_swap_b32 v{r}, v{tmp+i}")
    A("s_nop 1")
    for i, r in enumerate(regs): A(f"v_add_f32 v{r}, v{r}, v{tmp+i}")

XRS, HRS = 1168, 1216
K0_HL = 16*XRS
K0_DUMMY = K0_HL + 16*HRS
K0_LDS = 83968
def gen_k0(A):
    kernel_head(A, "k0_kernel")
    stamp(A, 0)
    A("s_cmp_ge_u32 s2, 256\ns_cbranch_scc1 K0_end")
    A(f"s_load_dwordx4 s[4:7], s[0:1], {KA_X}\ns_load_dwordx2 s[26:27], s[0:1], {KA_WS}")
    A(f"s_load_dwordx2 s[24:25], s[0:1], {KA_WPHI}\ns_load_dwordx2 s[48:49], s[0:1], {KA_W1}")
    A("s_cmp_ge_u32 s2, 128\ns_cbranch_scc1 K0_pf")
    X, P, Q = 20, 8, 56
    A("v_lshrrev_b32 v2, 5, v0\nv_and_b32 v3, 31, v0")
    A("v_mul_u32_u24 v4, 1152, v2\nv_lshl_add_u32 v4, v3, 4, v4")
    A(f"v_cmp_gt_u32 s[30:31], 24, v3\nv_mov_b32 v5, {OOB}")
    A("s_mul_i32 s3, s2, 18432")
    A("v_cndmask_b32 v4, v5, v4, s[30:31]")
    A("s_waitcnt lgkmcnt(0)")
    srd(A, 8, 4, S*D*2)
    for j in range(3): A(f"buffer_load_dwordx4 {v(P+4*j,4)}, v4, s[8:11], s3 offen offset:{384*j}")
    A("s_branch K0_ln")
    A.label("K0_pf")
    wave_id(A, 16)
    def pf_setup():
        srd(A, 52, 48, S*F*2)
        pf_w1_col(A, 46)
        A("s_and_b32 s47, s2, 0x78\ns_add_u32 s47, s47, s16\nv_and_b32 v1, 63, v0")
    def pf_round(r):
        n = CFG.pf1 - 128*r
        if n <= 0: return 0
        L = A.newlabel("Lq")
        if n < 128: A(f"s_cmp_ge_u32 s47, {CFG.pf1}\ns_cbranch_scc1 {L}")
        pf_w1(A, 52, 46, 47, 128, 1, 1, 88, rev=CFG.pf1 + CFG.pf1l if CFG.pf1rev else 0)
        A.label(L)
        return 1
    A("s_cmp_ge_u32 s2, 236\ns_cbranch_scc1 K0_nofold")
    A("s_sub_u32 s17, s2, 128\ns_mul_i32 s18, s17, 7282\ns_lshr_b32 s18, s18, 16")
    A("s_mul_i32 s19, s18, 9\ns_sub_u32 s17, s17, s19")
    A("s_and_b32 s28, s18, 3\ns_lshr_b32 s29, s18, 2")
    F_W, F_P = 32768, 32768 + 24576
    for r in range(3):
        A(f"v_add_u32 v4, {512*r}, v0\nv_mul_u32_u24 v5, 55189, v4\nv_lshrrev_b32 v5, 20, v5")
        A(f"v_mul_u32_u24 v5, {3456-304}, v5\nv_lshl_add_u32 v{12+r}, v4, 4, v5")
    A(f"s_mul_i32 s32, s17, {64*3456}\ns_mul_i32 s33, s29, 1152\ns_add_u32 s32, s32, s33\ns_mul_i32 s33, s28, 288\ns_add_u32 s32, s32, s33")
    A(f"s_mul_i32 s33, s28, 5184\nv_lshlrev_b32 v15, 4, v0\ns_lshl_b32 s34, s16, 10\ns_add_u32 m0, s34, {F_W}")
    A("s_waitcnt lgkmcnt(0)")
    stamp(A, 1)
    srd(A, 8, 6, D*3*D*2)
    A(f"buffer_load_dwordx4 v12, s[8:11], s32 offen lds\ns_add_u32 m0, s34, {F_W + 8192}")
    srd(A, 12, 24, H*DH*DH*2)
    A(f"buffer_load_dwordx4 v13, s[8:11], s32 offen lds\ns_add_u32 m0, s34, {F_W + 16384}\ns_cmp_ge_u32 s16, 3\ns_cbranch_scc1 K0_f1")
    A("buffer_load_dwordx4 v14, s[8:11], s32 offen lds")
    A.label("K0_f1")
    A(f"s_add_u32 m0, s34, {F_P}\ns_cmp_ge_u32 s16, 6\ns_cbranch_scc1 K0_f2")
    A("buffer_load_dwordx4 v15, s[12:15], s33 offen lds")
    A.label("K0_f2")
    pf_setup()
    assert CFG.pf1 == 0 or CFG.pf1 >= 128
    npf = pf_round(0)
    A("s_lshr_b32 s19, s16, 2\ns_and_b32 s43, s16, 3\ns_lshl_b32 s30, s43, 1\ns_add_u32 s30, s30, s19")
    srd_off(A, 20, 26, WF_OFF, WF_SZ)
    A("v_and_b32 v2, 15, v1\nv_lshrrev_b32 v3, 4, v1")
    A("v_and_b32 v4, 12, v2\nv_add_u32 v4, v4, v2")
    A(f"v_mul_u32_u24 v4, 304, v4\nv_lshl_add_u32 v4, v3, 4, v4\ns_mul_i32 s33, s30, 36\ns_and_b32 s39, s33, 15\ns_sub_u32 s33, s33, s39\ns_add_u32 s33, s33, {F_W}")
    A("v_add_u32 v76, s33, v4\ns_lshr_b32 s39, s39, 1\nv_lshlrev_b32 v11, 3, v3\nv_subrev_u32 v11, s39, v11")
    A("s_mov_b32 s40, 0x00030003\ns_mov_b32 s41, 0x00030003")
    B = 28
    def a_reads():
        stamp(A, 2)
        A(f"s_waitcnt vmcnt({npf}) lgkmcnt(0)")
        stamp(A, 3)
        A("s_barrier")
        for q in range(4):
            A(f"ds_read_b128 {v(12+4*q,4)}, v76 offset:{304*(32*(q>>1) + 4*(q&1))}")
    A("s_cmp_eq_u32 s29, 2\ns_cbranch_scc1 K0_ident")
    A("s_mul_i32 s34, s19, 18\nv_add_u32 v5, s34, v2")
    A("s_lshl_b32 s35, s43, 6")
    for nt in range(2):
        if nt: A("v_add_u32 v5, 16, v5")
        A(f"v_lshrrev_b32 v6, 2, v5\nv_lshlrev_b32 v6, 10, v6\nv_and_b32 v7, 3, v5\nv_lshl_add_u32 v6, v7, 4, v6")
        A(f"v_lshl_add_u32 v6, v3, 8, v6\nv_add_u32 v{52+nt}, s35, v6")
    A("s_lshr_b32 s34, s28, 1\ns_add_u32 s34, s34, 4\ns_and_b32 s35, s28, 1\ns_mul_i32 s35, s35, 9216")
    A("s_cmp_eq_u32 s29, 0\ns_cselect_b32 s34, s34, s28\ns_cselect_b32 s35, s35, 0")
    A(f"s_mov_b32 s42, {f2u(LOG2E)}")
    A(f"v_mul_i32_i24 v5, 36, v11\nv_lshl_add_u32 v5, v2, 1, v5\ns_mul_i32 s33, s30, 648\ns_add_u32 s33, s33, {F_P}\nv_add_u32 v80, s33, v5")
    for q in range(4): A(f"v_add_u32 v5, {2*q}, v11\nv_cmp_gt_u32 {s((36, 44, 58, 60)[q],2)}, 18, v5")
    a_reads()
    for nt in range(2):
        for ii in range(8):
            A(f"ds_read_u16 v{36+8*nt+ii}, v80 offset:{36*ii + 32*nt}")
    A("s_waitcnt lgkmcnt(0)")
    for q in range(8): A(f"v_lshl_or_b32 v{B+q}, v{36+2*q+1}, 16, v{36+2*q}")
    for q in range(8): A(f"v_cndmask_b32 v{B+q}, 0, v{B+q}, {s((36, 44, 58, 60)[q&3],2)}")
    A("s_branch K0_fmm")
    A.label("K0_ident")
    A("v_sub_u32 v5, v2, v11\nv_add_u32 v6, 16, v5")
    A("v_mov_b32 v7, 0x3f80\nv_mov_b32 v8, 0x3f800000")
    for nt in range(2):
        for q in range(4):
            A(f"v_cmp_eq_u32 vcc, {2*q}, v{5+nt}\nv_cmp_eq_u32 s[44:45], {2*q+1}, v{5+nt}\ns_nop 1")
            A(f"v_cndmask_b32 v9, 0, v7, vcc\nv_cndmask_b32 v{B+4*nt+q}, v9, v8, s[44:45]")
    A("v_lshlrev_b32 v6, 8, v3\nv_lshl_add_u32 v6, v2, 4, v6")
    A("s_lshl_b32 s34, s30, 10\nv_add_u32 v52, s34, v6")
    A("s_lshl_b32 s34, s30, 5\ns_add_u32 s34, s34, 8192\nv_add_u32 v53, s34, v6")
    A("s_mov_b32 s34, s28\ns_mov_b32 s35, 9216\ns_mov_b32 s42, 1.0")
    a_reads()
    A("s_waitcnt lgkmcnt(0)")
    A.label("K0_fmm")
    stamp(A, 4)
    A("s_mul_i32 s34, s34, 18\ns_lshl_b32 s33, s17, 1\ns_add_u32 s34, s34, s33\ns_mul_i32 s34, s34, 18432\ns_add_u32 s34, s34, s35")
    DD = 56
    for kbi in range(2):
        for nt in range(2):
            for a in range(2):
                A(f"{MF} {v(DD+16*kbi+8*nt+4*a,4)}, {v(12+8*kbi+4*a,4)}, {v(B+4*nt,4)}, 0")
    A("s_mov_b32 s43, s42\ns_lshl_b32 s33, s16, 10\nv_lshlrev_b32 v4, 4, v1\nv_add_u32 v5, s33, v4\ns_and_b32 s3, s16, 1\ns_mul_i32 s35, s3, 9216\nv_add_u32 v6, s35, v4")
    A("s_mul_i32 s3, s3, 18432\ns_add_u32 s35, s34, s3\ns_add_u32 s35, s35, 8192\ns_add_u32 s36, s34, 18432")
    for kbi in range(2):
        for nt in range(2):
            d0 = DD+16*kbi+8*nt
            for i in range(4): A(f"v_pk_mul_f32 {v(d0+2*i,2)}, {v(d0+2*i,2)}, s[42:43]")
            o = 36 + 8*kbi + 4*nt
            for i in range(4): A(f"v_cvt_pk_bf16_f32 v{o+i}, v{d0+2*i}, v{d0+2*i+1}")
            if nt == 0: A(f"ds_write_b128 v52, {v(o,4)} offset:{9216*kbi}")
    A("s_mov_b64 exec, s[40:41]\nds_write_b128 v53, v[40:43]\nds_write_b128 v53, v[48:51] offset:9216\ns_mov_b64 exec, -1")
    A("s_waitcnt lgkmcnt(0)\ns_barrier")
    A("ds_read_b128 v[12:15], v5\nds_read_b128 v[16:19], v5 offset:9216\nds_read_b128 v[20:23], v6 offset:8192")
    A(f"s_waitcnt lgkmcnt(2)\nbuffer_store_dwordx4 v[12:15], v5, s[20:23], s34 offen {CFG.auxSt}")
    A(f"s_waitcnt lgkmcnt(1)\nbuffer_store_dwordx4 v[16:19], v5, s[20:23], s36 offen {CFG.auxSt}")
    A("s_cmp_ge_u32 s16, 2\ns_cbranch_scc1 K0_pf2")
    A(f"s_waitcnt lgkmcnt(0)\nbuffer_store_dwordx4 v[20:23], v4, s[20:23], s35 offen {CFG.auxSt}")
    A("s_branch K0_pf2")
    A.label("K0_nofold")
    A("s_waitcnt lgkmcnt(0)")
    pf_setup()
    stamp(A, 1)
    A("s_lshr_b32 s33, s2, 1\ns_cmp_lg_u32 s33, 120\ns_cbranch_scc1 K0_noz")
    srd_off(A, 8, 26, FLAG_OFF, FLAG_SZ)
    A("s_sub_u32 s33, s2, 240\ns_lshl_b32 s33, s33, 13\nv_lshlrev_b32 v5, 4, v0")
    A("v_mov_b32 v12, 0\nv_mov_b32 v13, 0\nv_mov_b32 v14, 0\nv_mov_b32 v15, 0")
    A("buffer_store_dwordx4 v[12:15], v5, s[8:11], s33 offen sc1")
    A.label("K0_noz")
    if CFG.pfc:
        A("s_cmp_lt_u32 s2, 248\ns_cbranch_scc1 K0_noc")
        pf_code(A, "k1_kernel")
        A.label("K0_noc")
    pf_round(0)
    A.label("K0_pf2")
    stamp(A, 5)
    pf_round(1); pf_round(2)
    stamp_flush(A, 0, 6, 26, 16)
    A("s_endpgm")
    A.label("K0_ln")
    wave_id(A, 16)
    A(f"v_mul_u32_u24 v6, {XRS}, v2\nv_lshl_add_u32 v6, v3, 4, v6")
    A(f"v_mul_u32_u24 v7, {HRS}, v2\nv_lshl_add_u32 v7, v3, 4, v7\nv_add_u32 v7, {K0_HL}, v7")
    srd_off(A, 12, 26, XN_OFF, XN_SZ)
    srd_off(A, 20, 26, HT_OFF, HT_SZ)
    A(f"s_mov_b32 s33, {f2u(1.0/576)}\ns_mov_b32 s34, {f2u(1e-5)}")
    A("v_and_b32 v1, 63, v0\nv_and_b32 v2, 15, v1\nv_lshrrev_b32 v3, 4, v1")
    A(f"v_mul_u32_u24 v68, {XRS}, v2\nv_lshl_add_u32 v68, v3, 4, v68\ns_lshl_b32 s3, s16, 6\ns_and_b32 s35, s16, 1\ns_lshl_b32 s36, s35, 6")
    A("v_add_u32 v69, s36, v68\nv_add_u32 v68, s3, v68\nv_lshlrev_b32 v70, 4, v1")
    A("s_lshr_b32 s17, s2, 3\ns_mul_i32 s17, s17, 147456\ns_and_b32 s18, s2, 7\ns_lshl_b32 s18, s18, 10\ns_add_u32 s17, s17, s18")
    A("s_lshl_b32 s18, s35, 13\ns_add_u32 s37, s17, s18\ns_add_u32 s37, s37, 131072\ns_lshl_b32 s18, s16, 13\ns_add_u32 s17, s17, s18")
    A("v_bfe_u32 v4, v1, 2, 2\nv_lshrrev_b32 v5, 5, v1\nv_lshl_add_u32 v4, v5, 3, v4")
    A(f"v_mul_u32_u24 v4, {HRS}, v4\nv_and_b32 v3, 1, v3\nv_lshl_add_u32 v4, v3, 5, v4\nv_and_b32 v44, 3, v1\nv_lshl_add_u32 v4, v44, 3, v4\nv_add_u32 v4, {K0_HL}, v4")
    A("v_add_u32 v72, s36, v4\nv_add_u32 v71, s3, v4")
    A("v_lshlrev_b32 v2, 4, v2\nv_lshl_add_u32 v2, v5, 8, v2")
    A(f"s_mov_b32 s38, {589824-9216}\ns_lshl_b32 s3, s16, 1\ns_lshl_b32 s36, s35, 1\ns_add_u32 s36, s36, 32")
    for n in range(3):
        A(f"v_add_u32 v4, s{3 if n < 2 else 36}, v3")
        if n == 1: A("v_add_u32 v4, 16, v4")
        A(f"v_mul_u32_u24 v44, 57, v4\nv_lshrrev_b32 v44, 9, v44\nv_lshl_add_u32 v4, v4, 10, v2\nv_mad_u32_u24 v{73+n}, v44, s38, v4")
    A("s_lshr_b32 s18, s2, 1\ns_mul_i32 s18, s18, 9216\ns_and_b32 s19, s2, 1\ns_lshl_b32 s19, s19, 9\ns_add_u32 s18, s18, s19")
    def xp(i): return v(X+2*i, 2)
    A("s_waitcnt vmcnt(0)")
    stamp(A, 1)
    for i in range(12):
        A(f"v_lshlrev_b32 v{X+2*i}, 16, v{P+i}\nv_and_b32 v{X+2*i+1}, 0xffff0000, v{P+i}")
    A(f"v_pk_add_f32 v[44:45], {xp(0)}, {xp(1)}\nv_pk_add_f32 v[46:47], {xp(2)}, {xp(3)}")
    for i in range(4, 12): A(f"v_pk_add_f32 {v(44+2*(i&1),2)}, {v(44+2*(i&1),2)}, {xp(i)}")
    A("v_pk_add_f32 v[44:45], v[44:45], v[46:47]\nv_add_f32 v44, v44, v45")
    reduce32(A, [44], 52)
    A("v_mul_f32 v44, s33, v44")
    for i in range(12): A(f"v_pk_add_f32 {xp(i)}, {xp(i)}, v[44:45] op_sel_hi:[1,0] neg_lo:[0,1] neg_hi:[0,1]")
    A(f"v_pk_mul_f32 v[48:49], {xp(0)}, {xp(0)}\nv_pk_mul_f32 v[50:51], {xp(1)}, {xp(1)}")
    for i in range(2, 12): A(f"v_pk_fma_f32 {v(48+2*(i&1),2)}, {xp(i)}, {xp(i)}, {v(48+2*(i&1),2)}")
    A("v_pk_add_f32 v[48:49], v[48:49], v[50:51]\nv_add_f32 v48, v48, v49")
    A("v_cndmask_b32 v48, 0, v48, s[30:31]")
    reduce32(A, [48], 52)
    A("v_mul_f32 v48, s33, v48\nv_add_f32 v44, s34, v48\nv_rsq_f32 v44, v44\nv_mov_b32 v49, s34")
    A("v_mul_f32 v48, v48, v44\nv_fma_f32 v48, v48, v44, v49\nv_rsq_f32 v48, v48")
    A("s_mov_b64 exec, s[30:31]")
    for i in range(12): A(f"v_pk_mul_f32 {xp(i)}, {xp(i)}, v[44:45] op_sel_hi:[1,0]")
    for i in range(12): A(f"v_cvt_pk_bf16_f32 v{P+i}, v{X+2*i}, v{X+2*i+1}")
    for j in range(3): A(f"ds_write_b128 v6, {v(P+4*j,4)} offset:{384*j}")
    for i in range(12): A(f"v_pk_mul_f32 {xp(i)}, {xp(i)}, v[48:49] op_sel_hi:[1,0]")
    for i in range(12): A(f"v_cvt_pk_bf16_f32 v{Q+i}, v{X+2*i}, v{X+2*i+1}")
    for j in range(3): A(f"ds_write_b128 v7, {v(Q+4*j,4)} offset:{384*j}")
    A("s_mov_b64 exec, -1\ns_waitcnt lgkmcnt(0)\ns_barrier")
    stamp(A, 2)
    for n in range(2):
        A(f"ds_read_b64_tr_b16 {v(12+8*n,2)}, v71 offset:{512*n}\nds_read_b64_tr_b16 {v(14+8*n,2)}, v71 offset:{512*n + 4*HRS}")
    for n in range(2): A(f"ds_read_b128 {v(8+8*n,4)}, v68 offset:{512*n}")
    A(f"ds_read_b64_tr_b16 v[28:29], v72 offset:1024\nds_read_b64_tr_b16 v[30:31], v72 offset:{1024 + 4*HRS}\nds_read_b128 v[24:27], v69 offset:1024")
    for n in range(2):
        A(f"s_waitcnt lgkmcnt({7-2*n})\nbuffer_store_dwordx4 {v(12+8*n,4)}, v{73+n}, s[20:23], s18 offen {CFG.auxSt}")
    for n in range(2):
        A(f"s_waitcnt lgkmcnt({4-n})\nbuffer_store_dwordx4 {v(8+8*n,4)}, v70, s[12:15], s17 offen {CFG.auxSt}\ns_add_u32 s17, s17, 65536")
    A("s_waitcnt lgkmcnt(0)\ns_cmp_ge_u32 s16, 4\ns_cbranch_scc1 K0_lnend\ns_cmp_ge_u32 s16, 2\ns_cbranch_scc1 K0_lnx")
    A(f"buffer_store_dwordx4 v[28:31], v75, s[20:23], s18 offen {CFG.auxSt}\ns_branch K0_lnend")
    A.label("K0_lnx")
    A(f"buffer_store_dwordx4 v[24:27], v70, s[12:15], s37 offen {CFG.auxSt}")
    A.label("K0_lnend")
    if CFG.pf1l:
        srd(A, 52, 48, S*F*2)
        pf_w1_col(A, 46)
        A(f"s_and_b32 s47, s2, 0x78\ns_add_u32 s47, s47, s16\ns_cmp_ge_u32 s47, {CFG.pf1l}\ns_cbranch_scc1 K0_lne2\ns_add_u32 s47, s47, {CFG.pf1}")
        pf_w1(A, 52, 46, 47, 128, 1, 1, 88, rev=CFG.pf1 + CFG.pf1l if CFG.pf1rev else 0)
        A.label("K0_lne2")
    stamp_flush(A, 0, 3, 26, 16)
    A.label("K0_end")
    A("s_endpgm")

def softmax18(A, PR, dst):
    vals = [r + i for r in PR for i in range(2)]
    EP, EN, MX, MN = 8, 26, 44, 46
    A(f"v_max3_f32 v{MX}, v{vals[0]}, v{vals[1]}, v{vals[2]}\nv_min3_f32 v{MN}, v{vals[0]}, v{vals[1]}, v{vals[2]}")
    for i in range(3, 17, 2):
        A(f"v_max3_f32 v{MX}, v{MX}, v{vals[i]}, v{vals[i+1]}\nv_min3_f32 v{MN}, v{MN}, v{vals[i]}, v{vals[i+1]}")
    A(f"v_max_f32 v{MX}, v{MX}, v{vals[17]}\nv_min_f32 v{MN}, v{MN}, v{vals[17]}")
    for p in range(9):
        A(f"v_pk_add_f32 {v(EP+2*p,2)}, {v(PR[p],2)}, {v(MX,2)} op_sel_hi:[1,0] neg_lo:[0,1] neg_hi:[0,1]")
        A(f"v_pk_add_f32 {v(EN+2*p,2)}, {v(PR[p],2)}, {v(MN,2)} op_sel_hi:[1,0] neg_lo:[1,0] neg_hi:[1,0]")
    for i in range(36): A(f"v_exp_f32 v{EP+i}, v{EP+i}")
    A(f"v_pk_add_f32 {v(MX,2)}, {v(EP,2)}, {v(EP+2,2)}\nv_pk_add_f32 {v(MN,2)}, {v(EN,2)}, {v(EN+2,2)}")
    for p in range(2, 9):
        A(f"v_pk_add_f32 {v(MX,2)}, {v(MX,2)}, {v(EP+2*p,2)}\nv_pk_add_f32 {v(MN,2)}, {v(MN,2)}, {v(EN+2*p,2)}")
    A(f"v_add_f32 v{MX}, v{MX}, v{MX+1}\nv_add_f32 v{MN}, v{MN}, v{MN+1}")
    A(f"v_rcp_f32 v{MX}, v{MX}\nv_rcp_f32 v{MN}, v{MN}\ns_nop 0")
    for p in range(9):
        A(f"v_pk_mul_f32 {v(EP+2*p,2)}, {v(EP+2*p,2)}, {v(MX,2)} op_sel_hi:[1,0]")
        A(f"v_pk_mul_f32 {v(EN+2*p,2)}, {v(EN+2*p,2)}, {v(MN,2)} op_sel_hi:[1,0]")
    for m in range(18): A(f"v_cvt_pk_bf16_f32 v{dst(m)}, v{EP+2*m}, v{EP+2*m+1}")

def pairs(st, j, e):
    return [accr(st, (9*e+p) >> 1, j) + 2*((9*e+p) & 1) for p in range(9)]

PHI_RS = 608
V_LDS = 128*PHI_RS
def gen_k1(A):
    kernel_head(A, "k1_kernel")
    stamp(A, 0)
    A("s_cmp_ge_u32 s2, 256\ns_cbranch_scc1 K1_end")
    A(f"s_load_dwordx4 s[4:7], s[0:1], {KA_W1}\ns_load_dwordx2 s[24:25], s[0:1], {KA_WO}\ns_load_dwordx2 s[26:27], s[0:1], {KA_WS}\ns_load_dwordx2 s[50:51], s[0:1], {KA_W2}")
    wave_id(A, 16)
    A("s_and_b32 s17, s2, 7\ns_lshr_b32 s18, s2, 3")
    A("s_cmp_ge_u32 s18, 18\ns_cbranch_scc1 K1_notg1")
    A("s_mul_i32 s19, s17, 18\ns_add_u32 s19, s19, s18\ns_and_b32 s22, s19, 3\ns_lshr_b32 s23, s19, 2")
    if CFG.G1: A(f"s_add_u32 s59, s22, s23\ns_and_b32 s59, s59, 3\ns_mul_i32 s59, s59, {CFG.G1//4}")
    A("s_waitcnt lgkmcnt(0)")
    A("s_cmp_ge_u32 s16, 6\ns_cbranch_scc1 K1_ldW\ns_cmp_ge_u32 s16, 4\ns_cbranch_scc1 K1_ldP")
    srd(A, 32, 6, F*2)
    srd_off(A, 36, 26, U_OFF, U_SZ)
    A("v_bfe_u32 v8, v0, 4, 2\nv_lshlrev_b32 v8, 3, v8")
    A("s_lshl_b32 s3, s23, 8\ns_lshl_b32 s17, s16, 6\ns_add_u32 s3, s3, s17")
    A("buffer_load_dwordx2 v[12:13], v8, s[32:35], s3 offen\nbuffer_load_dwordx2 v[14:15], v8, s[32:35], s3 offen offset:32")
    emit_compute_addr(A, 16, "std")
    A("s_waitcnt vmcnt(0)")
    for j in range(2):
        A(f"v_lshlrev_b32 v{V_ACC+j*4}, 16, v{12+2*j}\nv_and_b32 v{V_ACC+j*4+1}, 0xffff0000, v{12+2*j}")
        A(f"v_lshlrev_b32 v{V_ACC+j*4+2}, 16, v{13+2*j}\nv_and_b32 v{V_ACC+j*4+3}, 0xffff0000, v{13+2*j}")
    for i in range(8, 72, 2): A(f"v_pk_mov_b32 {v(V_ACC+i,2)}, {v(V_ACC+i%8,2)}, {v(V_ACC+i%8,2)} op_sel:[0,1]")
    emit_compute_loop(A, 32, "std", (True, True), 20)
    stamp(A, 2)
    c0 = -2*math.sqrt(2/math.pi)*LOG2E; c1 = c0*0.044715
    A(f"s_mov_b32 s52, {f2u(c1)}\ns_mov_b32 s53, {f2u(c1)}\nv_mov_b32 v8, {f2u(c0)}\nv_mov_b32 v9, {f2u(c0)}")
    A("s_mul_i32 s17, s22, 144\ns_lshl_b32 s3, s23, 2\ns_add_u32 s17, s17, s3\ns_add_u32 s17, s17, s16\ns_mul_i32 s17, s17, 9216")
    for t in range(9):
        a0 = V_ACC + t*8
        T = 16 + (t % 2) * 12
        for p in range(4): A(f"v_pk_mul_f32 {v(T+2*p,2)}, {v(a0+2*p,2)}, {v(a0+2*p,2)}")
        for p in range(4): A(f"v_pk_fma_f32 {v(T+2*p,2)}, {v(T+2*p,2)}, s[52:53], v[8:9]")
        for p in range(4): A(f"v_pk_mul_f32 {v(T+2*p,2)}, {v(T+2*p,2)}, {v(a0+2*p,2)}")
        for e in range(8): A(f"v_exp_f32 v{T+e}, v{T+e}")
        for p in range(4): A(f"v_pk_add_f32 {v(T+2*p,2)}, {v(T+2*p,2)}, 1.0 op_sel_hi:[1,0]")
        for e in range(8): A(f"v_rcp_f32 v{T+e}, v{T+e}")
        for p in range(4): A(f"v_pk_mul_f32 {v(T+2*p,2)}, {v(T+2*p,2)}, {v(a0+2*p,2)}")
        for p in range(4): A(f"v_cvt_pk_bf16_f32 v{T+8+p}, v{T+2*p}, v{T+2*p+1}")
        if t and t % 4 == 0: A("s_add_u32 s17, s17, 4096")
        A(f"buffer_store_dwordx4 {v(T+8,4)}, v{V_PA}, s[36:39], s17 offen offset:{(t%4)*1024} {CFG.auxSt}")
    stamp(A, 3)
    stamp_flush(A, 1, 4, 26, 16)
    A("s_endpgm")
    def g_post():
        A("s_lshr_b32 s49, s2, 3\ns_lshl_b32 s49, s49, 2\ns_add_u32 s49, s49, s16\ns_sub_u32 s49, s49, 4")
        pf_w2(A, 50, 49, 72, CFG.pf2g)
    post = (CFG.pf2g, g_post, CFG.pf2pos) if CFG.pf2g else None
    A.label("K1_ldP")
    srd_off(A, 8, 26, HT_OFF, HT_SZ)
    A(f"s_sub_u32 s17, s16, 4\ns_mul_i32 s21, s22, {64*9216}")
    DBG["k1P"] = True
    emit_loader_lin(A, 32, 9, POFF, 17, 8, 21, 20, 18, CFG.auxP, CFG.G1, post=post)
    DBG["k1P"] = False
    A("s_endpgm")
    A.label("K1_ldW")
    srd(A, 12, 4, S*F*2)
    A("s_sub_u32 s17, s16, 6\ns_lshl_b32 s21, s23, 8")
    emit_loader_W(A, 32, "std", 17, 12, 21, 9216, 20, 18, CFG.auxW1, CFG.G1, post=post)
    A("s_endpgm")
    A.label("K1_notg1")
    A("s_cmp_ge_u32 s18, 30\ns_cbranch_scc1 K1_spare")
    A("s_sub_u32 s18, s18, 18\ns_and_b32 s22, s18, 3\ns_lshr_b32 s19, s17, 1\ns_lshl_b32 s19, s19, 2\ns_add_u32 s22, s22, s19")
    A("s_lshr_b32 s18, s18, 2\ns_and_b32 s17, s17, 1\ns_lshl_b32 s19, s17, 1\ns_add_u32 s23, s19, s18\ns_add_u32 s17, s17, 4")
    A("s_cmp_eq_u32 s18, 2\ns_cselect_b32 s23, s17, s23")
    if CFG.GA: A(f"s_add_u32 s59, s22, s18\ns_and_b32 s59, s59, 3\ns_mul_i32 s59, s59, {CFG.GA}\ns_lshr_b32 s59, s59, 2")
    A("s_waitcnt lgkmcnt(0)")
    A("s_cmp_ge_u32 s16, 6\ns_cbranch_scc1 K1_ldX\ns_cmp_ge_u32 s16, 4\ns_cbranch_scc1 K1_ldF")
    emit_compute_addr(A, 16, "lin")
    for i in range(0, 144, 2): A(f"v_pk_mov_b32 {v(V_ACC+i,2)}, 0, 0")
    A("s_cmp_ge_u32 s23, 4\ns_cbranch_scc1 K1_q")
    emit_compute_loop(A, 18, "lin", (False, True), 20)
    stamp(A, 2)
    A("s_barrier")
    QB = 48
    A(f"v_and_b32 v2, 15, v1\nv_lshrrev_b32 v3, 4, v1")
    A(f"s_lshl_b32 s3, s16, 5\nv_add_u32 v4, s3, v2\nv_mul_u32_u24 v4, {PHI_RS}, v4\nv_mul_u32_u24 v5, 144, v3\nv_add_u32 v4, v4, v5")
    A(f"s_mul_i32 s3, s16, 9216\ns_add_u32 s3, s3, {V_LDS}\nv_lshlrev_b32 v5, 4, v1\nv_add_u32 v5, s3, v5")
    for t in range(9):
        o = 84 + 4*(t % 3)
        for j in range(2):
            r = accr(1, t, j)
            A(f"v_cvt_pk_bf16_f32 v{o+2*j}, v{r}, v{r+1}\nv_cvt_pk_bf16_f32 v{o+2*j+1}, v{r+2}, v{r+3}")
        A(f"ds_write_b128 v5, {v(o,4)} offset:{t*1024}")
    for j in range(2):
        for e in range(2):
            softmax18(A, pairs(0, j, e), lambda m: QB + 18*e + m)
        for q in range(9): A(f"ds_write_b128 v4, {v(QB+4*q,4)} offset:{j*16*PHI_RS + 16*q}")
    A(f"v_lshrrev_b32 v6, 2, v1\nv_mul_u32_u24 v6, {PHI_RS}, v6\nv_and_b32 v7, 3, v1\nv_lshl_add_u32 v6, v7, 3, v6")
    A("s_mul_i32 s3, s16, 144\nv_add_u32 v6, s3, v6")
    A("s_lshl_b32 s3, s16, 3\nv_subrev_u32 v7, s3, v6")
    A(f"v_add_u32 v8, {64*PHI_RS}, v6\nv_add_u32 v9, {64*PHI_RS}, v7")
    A(f"s_lshl_b32 s3, s16, 11\ns_add_u32 s3, s3, {V_LDS}\nv_lshlrev_b32 v10, 4, v1\nv_add_u32 v10, s3, v10")
    A(f"v_lshlrev_b32 v11, 8, v3\nv_and_b32 v12, 1, v2\nv_lshl_add_u32 v11, v12, 4, v11")
    A(f"s_lshl_b32 s3, s16, 6\ns_add_u32 s3, s3, {V_LDS + 8192}\nv_add_u32 v11, s3, v11")
    A("s_mov_b32 s40, 0x00030003\ns_mov_b32 s41, 0x00030003\nv_mov_b32 v12, 0x3f803f80")
    A("s_waitcnt lgkmcnt(0)\ns_barrier")
    stamp(A, 3)
    DK, FR = 16, 64
    def afr(ks, e, T): return FR + ks*40 + e*12 + T*4
    def bfr(ks, e, mt): return FR + ks*40 + 24 + e*8 + mt*4
    def dk(e, T, mt): return DK + (e*6 + mt*3 + T)*4
    for ks in range(4):
        for e in range(2):
            A(f"ds_read_b128 {v(bfr(ks,e,1),4)}, v11 offset:{ks*9216 + e*32}")
            A(f"ds_read_b128 {v(bfr(ks,e,0),4)}, v10 offset:{ks*9216 + e*1024}")
            for T in range(3):
                a = (7 if T == 2 else 6) + (2 if ks >= 2 else 0)
                off = (ks & 1)*32*PHI_RS + e*72 + T*32
                A(f"ds_read_b64_tr_b16 {v(afr(ks,e,T),2)}, v{a} offset:{off}")
                A(f"ds_read_b64_tr_b16 {v(afr(ks,e,T)+2,2)}, v{a} offset:{off + 16*PHI_RS}")
    srd_off(A, 36, 26, KVP_OFF, KVP_SZ)
    A("s_lshl_b32 s17, s22, 2\ns_add_u32 s17, s17, s23\ns_mul_i32 s17, s17, 24576")
    A("s_add_u32 s19, s17, 16384\ns_add_u32 s29, s17, 22528")
    A("s_lshr_b32 s18, s16, 1\ns_lshl_b32 s18, s18, 11\ns_and_b32 s3, s16, 1\ns_lshl_b32 s3, s3, 9\ns_add_u32 s18, s18, s3\ns_add_u32 s28, s17, s18\ns_add_u32 s28, s28, 18432")
    A("s_lshl_b32 s18, s16, 12\ns_add_u32 s17, s17, s18")
    A("v_lshlrev_b32 v4, 6, v3\nv_lshl_add_u32 v4, v2, 4, v4\nv_lshlrev_b32 v2, 4, v1")
    A("s_waitcnt lgkmcnt(0)")
    for ks in range(4):
        for e in range(2):
            for i in range(4): A(f"v_cndmask_b32 v{bfr(ks,e,1)+i}, v12, v{bfr(ks,e,1)+i}, s[40:41]")
    A("s_nop 1")
    for ks in range(4):
        for e in range(2):
            for mt in range(2):
                for T in range(3):
                    c = "0" if ks == 0 else v(dk(e,T,mt),4)
                    A(f"{MF} {v(dk(e,T,mt),4)}, {v(afr(ks,e,T),4)}, {v(bfr(ks,e,mt),4)}, {c}")
    A("s_lshl_b32 s18, s16, 4\ns_lshl_b64 s[42:43], 0xffff, s18\ns_mov_b32 s44, 0x000f000f\ns_mov_b32 s45, 0x000f000f\ns_nop 7")
    for e in range(2):
        for T in range(2):
            A(f"buffer_store_dwordx4 {v(dk(e,T,0),4)}, v2, s[36:39], s17 offen offset:{e*2048 + T*1024} sc1")
    A("s_mov_b64 exec, s[44:45]")
    for e in range(2):
        for T in range(2):
            A(f"buffer_store_dwordx4 {v(dk(e,T,1),4)}, v4, s[36:39], s28 offen offset:{e*256 + T*1024} sc1")
    A("s_mov_b64 exec, s[42:43]")
    for e in range(2):
        A(f"buffer_store_dwordx4 {v(dk(e,2,0),4)}, v2, s[36:39], s19 offen offset:{e*1024} sc1")
    A("s_and_b64 exec, s[42:43], s[44:45]")
    for e in range(2):
        A(f"buffer_store_dwordx4 {v(dk(e,2,1),4)}, v4, s[36:39], s29 offen offset:{e*1024} sc1")
    A("s_mov_b64 exec, -1")
    srd_off(A, 40, 26, FLAG_OFF + 0x2000, 512)
    A("s_lshl_b32 s17, s23, 7\ns_lshl_b32 s18, s22, 2\ns_add_u32 s18, s18, s17")
    A("s_waitcnt vmcnt(0)\ns_barrier")
    stamp(A, 4)
    A("s_cmp_lg_u32 s16, 0\ns_cbranch_scc1 K1_kvend")
    A("v_mov_b32 v3, 0\nv_mov_b32 v4, 1\ns_mov_b64 exec, 1\nbuffer_store_dword v4, v3, s[40:43], s18 offen sc1\ns_mov_b64 exec, -1")
    A("s_cmp_ge_u32 s22, 12\ns_cbranch_scc1 K1_kvend")
    A("v_and_b32 v3, 15, v1\nv_lshlrev_b32 v3, 2, v3")
    poll(A, 3, 4, 40, 17)
    srd_off(A, 12, 26, KVF_OFF, KVF_SZ)
    A("s_mul_i32 s18, s23, 12\ns_add_u32 s18, s18, s22\ns_lshl_b32 s17, s18, 11\ns_lshl_b32 s18, s18, 10")
    for tb in range(16):
        A(f"buffer_load_dwordx4 {v(8+8*tb,4)}, v2, s[36:39], s17 offen sc1\nbuffer_load_dwordx4 {v(12+8*tb,4)}, v2, s[36:39], s17 offen offset:1024 sc1")
        A(f"s_add_u32 s17, s17, {48*2048}")
    for tb in range(1, 16):
        A(f"s_waitcnt vmcnt({2*(15-tb)})")
        for p in range(4): A(f"v_pk_add_f32 {v(8+2*p,2)}, {v(8+2*p,2)}, {v(8+8*tb+2*p,2)}")
    for p in range(4): A(f"v_cvt_pk_bf16_f32 v{4+p}, v{8+2*p}, v{9+2*p}")
    A(f"buffer_store_dwordx4 v[4:7], v2, s[12:15], s18 offen {CFG.auxSt}")
    A.label("K1_kvend")
    stamp_flush(A, 1, 5, 26, 16)
    A("s_endpgm")
    A.label("K1_q")
    emit_compute_loop(A, 18, "lin", (False, False), 20)
    stamp(A, 2)
    srd_off(A, 36, 26, PHIQ_OFF, PHIQ_SZ)
    A("v_and_b32 v2, 15, v1\nv_lshrrev_b32 v3, 4, v1\nv_lshlrev_b32 v3, 11, v3\nv_lshl_add_u32 v3, v2, 4, v3")
    A("v_lshlrev_b32 v2, 4, v1\nv_add_u32 v2, 8192, v2")
    A("s_lshl_b32 s17, s22, 3\ns_lshl_b32 s18, s16, 1\ns_add_u32 s17, s17, s18\ns_lshl_b32 s17, s17, 1\ns_add_u32 s17, s17, s23\ns_sub_u32 s17, s17, 4\ns_mul_i32 s17, s17, 18432")
    for j in range(2):
        for st in range(2):
            for e in range(2):
                softmax18(A, pairs(st, j, e), lambda m: (QB + e*16 + 4*((m & 7) >> 1) + (m & 1) + 2*(m >> 3)) if m < 16 else QB + 32 + 2*e + m - 16)
                for gg in range(4):
                    A(f"buffer_store_dwordx4 {v(QB+e*16+4*gg,4)}, v3, s[36:39], s17 offen offset:{e*1024 + gg*256} {CFG.auxSt}")
            A(f"buffer_store_dwordx4 {v(QB+32,4)}, v2, s[36:39], s17 offen {CFG.auxSt}")
            A(f"s_add_u32 s17, s17, {9216 if st == 0 else 36864 - 9216}")
    stamp(A, 3)
    stamp_flush(A, 1, 4, 26, 16)
    A("s_endpgm")
    A.label("K1_ldF")
    srd_off(A, 8, 26, WF_OFF, WF_SZ)
    A(f"s_sub_u32 s17, s16, 4\ns_mul_i32 s21, s23, {18*18432}")
    emit_loader_lin(A, 18, 9, POFF, 17, 8, 21, 20, 18, CFG.auxP, CFG.GA)
    A("s_branch K1_ldtail")
    A.label("K1_ldX")
    srd_off(A, 8, 26, XN_OFF, XN_SZ)
    A(f"s_sub_u32 s17, s16, 6\ns_mul_i32 s21, s22, {18*8192}")
    emit_loader_lin(A, 18, 4, WOFF, 17, 8, 21, 20, 18, CFG.auxP, CFG.GA)
    A.label("K1_ldtail")
    A("s_lshr_b32 s17, s2, 3\ns_sub_u32 s17, s17, 18\ns_lshl_b32 s17, s17, 2\ns_add_u32 s17, s17, s16\ns_sub_u32 s17, s17, 4")
    A("s_cmp_ge_u32 s23, 4\ns_cbranch_scc1 K1_ldq")
    if CFG.pf2kv:
        A(f"s_barrier\ns_add_u32 s17, s17, {72*CFG.pf2g + 16*CFG.pf2s}")
        pf_w2(A, 50, 17, 32, CFG.pf2kv)
    A("s_endpgm")
    A.label("K1_ldq")
    if CFG.pf2q:
        A(f"s_add_u32 s17, s17, {72*CFG.pf2g + 16*CFG.pf2s + 32*CFG.pf2kv - 32}")
        pf_w2(A, 50, 17, 16, CFG.pf2q)
    A("s_endpgm")
    A.label("K1_spare")
    if CFG.pf1s or CFG.pf2s:
        A("s_waitcnt lgkmcnt(0)")
        A("s_sub_u32 s41, s18, 30\ns_lshl_b32 s41, s41, 3\ns_add_u32 s41, s41, s16")
        A(f"s_add_u32 s43, s41, {72*CFG.pf2g}")
    if CFG.pf1s:
        srd(A, 36, 4, S*F*2)
        pf_w1_col(A, 40)
        A(f"s_add_u32 s41, s41, {320 - 16*CFG.pf1s}\nv_and_b32 v56, 63, v0")
        pf_w1(A, 36, 40, 41, 16, CFG.pf1s, 56, 57, lim=1)
    pf_w2(A, 50, 43, 16, CFG.pf2s, lim=1)
    A("s_cmp_ge_u32 s16, 5\ns_cbranch_scc1 K1_end")
    A("s_sub_u32 s18, s18, 30\ns_lshl_b32 s17, s17, 1\ns_add_u32 s17, s17, s18\ns_and_b32 s22, s17, 3\ns_lshr_b32 s23, s17, 2")
    A("v_and_b32 v1, 63, v0\nv_and_b32 v2, 15, v1\nv_lshrrev_b32 v3, 4, v1\nv_lshlrev_b32 v2, 1, v2")
    A("v_mul_u32_u24 v4, 4608, v3\nv_add_u32 v4, v4, v2")
    A(f"v_mul_u32_u24 v5, 1152, v3\nv_add_u32 v5, v5, v2\nv_add_u32 v5, {12*1152}, v5")
    A(f"v_cmp_gt_u32 vcc, 2, v3\nv_mov_b32 v6, {OOB}\ns_nop 0\nv_cndmask_b32 v5, v6, v5, vcc")
    A("s_waitcnt lgkmcnt(0)")
    srd(A, 8, 24, D*D*2)
    srd_off(A, 12, 26, WOT_OFF, WOT_SZ)
    A(f"s_mul_i32 s28, s23, {144*1152}\ns_mul_i32 s29, s22, 288\ns_add_u32 s28, s28, s29")
    for i in range(8):
        A(f"s_lshl_b32 s29, s16, 3\ns_add_u32 s29, s29, {i}\ns_mul_i32 s30, s29, 205\ns_lshr_b32 s30, s30, 10")
        A("s_mul_i32 s31, s30, 13\ns_add_u32 s31, s31, s29\ns_mul_i32 s31, s31, 1152\ns_add_u32 s31, s31, s28")
        A("s_mul_i32 s30, s30, 5\ns_sub_u32 s30, s29, s30\ns_cmp_eq_u32 s30, 4\ns_cselect_b64 vcc, -1, 0")
        A("v_cndmask_b32 v6, v4, v5, vcc")
        for rt in range(9):
            A(f"buffer_load_ushort v{8+rt*8+i}, v6, s[8:11], s31 offen offset:{rt*32}")
        if i == 3: A("s_waitcnt vmcnt(20)")
    A("s_lshl_b32 s28, s22, 2\ns_add_u32 s28, s28, s23\ns_mul_i32 s28, s28, 5\ns_add_u32 s28, s28, s16\ns_mul_i32 s28, s28, 9216")
    A("v_lshlrev_b32 v2, 4, v1")
    A("s_waitcnt vmcnt(0)")
    for rt in range(9):
        for q in range(4): A(f"v_lshl_or_b32 v{80+rt*4+q}, v{8+rt*8+2*q+1}, 16, v{8+rt*8+2*q}")
        if rt and rt % 4 == 0: A("s_add_u32 s28, s28, 4096")
        A(f"buffer_store_dwordx4 {v(80+rt*4,4)}, v2, s[12:15], s28 offen offset:{(rt%4)*1024} {CFG.auxSt}")
    stamp_flush(A, 1, 1, 26, 16)
    A.label("K1_end")
    A("s_endpgm")

def k2_decode(A):
    A("s_and_b32 s17, s2, 7\ns_lshr_b32 s18, s2, 3")
    A("s_lshr_b32 s28, s17, 1\ns_and_b32 s22, s18, 3")
    A("s_and_b32 s17, s17, 1\ns_lshl_b32 s17, s17, 3\ns_lshr_b32 s18, s18, 2\ns_add_u32 s23, s17, s18")
RED_RS = 592
def red_base(w): return w*32*RED_RS if w < 3 else 3*STAGE2
def gen_k2(A):
    set_stage(STAGE2)
    DBG["on"] = True
    kernel_head(A, "k2_kernel")
    stamp(A, 0)
    A("s_cmp_ge_u32 s2, 256\ns_cbranch_scc1 K2_end")
    A(f"s_load_dwordx4 s[4:7], s[0:1], {KA_W2}\ns_load_dwordx2 s[26:27], s[0:1], {KA_WS}\ns_load_dwordx2 s[44:45], s[0:1], {KA_X}\ns_load_dwordx2 s[46:47], s[0:1], {KA_OUT}")
    wave_id(A, 16)
    k2_decode(A)
    A("s_cmp_ge_u32 s16, 4\ns_cbranch_scc1 K2_ld")
    emit_compute_addr(A, 16, "pi")
    for i in range(0, 72, 2): A(f"v_pk_mov_b32 {v(V_ACC+i,2)}, 0, 0")
    A("s_waitcnt lgkmcnt(0)")
    emit_compute_loop(A, 18, "pi", (False, False), 20, first=lambda: pt(A, "b0"))
    pt(A, "main")
    KV, MA, PH, TM, PK, O = 8, 80, 96, 132, 168, 204
    srd_off(A, 36, 26, PART_OFF, PART_SZ)
    srd_off(A, 40, 26, FLAG_OFF, 0x2000)
    A("s_lshl_b32 s17, s23, 2\ns_add_u32 s17, s17, s22")
    A("s_lshl_b32 s30, s16, 2\ns_add_u32 s30, s30, s28\ns_lshl_b32 s31, s28, 2\ns_add_u32 s31, s31, s16")
    A("s_lshl_b32 s18, s17, 4\ns_add_u32 s32, s18, s30\ns_mul_i32 s32, s32, 9216\ns_add_u32 s33, s18, s31\ns_mul_i32 s33, s33, 9216")
    A("s_lshl_b32 s18, s17, 7\ns_lshl_b32 s30, s30, 2\ns_add_u32 s30, s30, s18\ns_lshl_b32 s31, s31, 2\ns_add_u32 s31, s31, s18")
    A(f"s_cmp_eq_u32 s16, s28\ns_cselect_b32 s3, {OOB}, 0\nv_or_b32 v6, s3, v{V_PA}")
    for t in range(9):
        for p in range(4): A(f"v_cvt_pk_bf16_f32 v{PK+4*t+p}, v{V_ACC+8*t+2*p}, v{V_ACC+8*t+2*p+1}")
        if t and t % 4 == 0: A("s_add_u32 s32, s32, 4096")
        if not CFG.dbg_nopub: A(f"buffer_store_dwordx4 {v(PK+4*t,4)}, v6, s[36:39], s32 offen offset:{(t%4)*1024} sc1")
    pt(A, "pub")
    A(f"s_mul_i32 s3, s16, 9216\nv_add_u32 v4, s3, v{V_PA}\nv_add_u32 v5, {2*STAGE}, v4")
    def vread(stage, dst):
        slot = stage % NST
        return [f"ds_read_b128 {v(dst+4*b,4)}, v{5 if slot >= 2 else 4} offset:{(slot & 1)*STAGE + b*1024}" for b in range(9)]
    A("s_barrier")
    for r in vread(18, KV): A(r)
    A("v_and_b32 v6, 15, v1\nv_cmp_eq_u32 vcc, 0, v6\nv_cmp_eq_u32 s[34:35], 4, v6\nv_lshrrev_b32 v7, 4, v1\nv_lshlrev_b32 v7, 6, v7")
    A(f"v_cndmask_b32 v6, 32, 0, vcc\nv_cndmask_b32 v6, v6, 16, s[34:35]\ns_add_u32 s3, s3, {3*STAGE}\nv_add3_u32 v6, v6, v7, s3")
    A(f"v_mov_b32 v{MA+2}, 0\nv_mov_b32 v{MA+3}, 0\nv_mov_b32 v{MA+8}, 0\nv_mov_b32 v{MA+9}, 0")
    A(f"s_mov_b32 s48, {f2u(1e-6)}")
    A("s_waitcnt lgkmcnt(0)")
    pt(A, "v0")
    A("s_barrier")
    for b in range(9): A(f"ds_read_b128 {v(KV+36+4*b,4)}, v6 offset:{b*256}")
    A("s_waitcnt lgkmcnt(0)")
    pt(A, "v1")
    A("s_barrier")
    for r in vread(20, PH): A(r)
    def o_mask(hp):
        L = [f"s_mov_b32 s34, {0xffff << (16*hp) & 0xffffffff}", f"s_mov_b32 s35, {(0xffff << (16*hp)) >> 32}"]
        return L + [f"v_cndmask_b32 v{MA+6*mt+(i if i < 2 else i+2)}, 0, v{KV+36*mt+32+i}, s[34:35]" for mt in range(2) for i in range(4)]
    def o_mfma(hp):
        T = TM + 16*(hp & 1)
        a = [f"{MF} {v(T+8*e+4*mt,4)}, {v(MA+6*mt+2*e,4)}, {v(PH+32,4)}, 0" for e in range(2) for mt in (1, 0)]
        b = [f"{MF} {v(T+8*e+4*mt,4)}, {v(KV+36*mt+4*(2*hp+e),4)}, {v(PH+4*(2*hp+e),4)}, {v(T+8*e+4*mt,4)}" for e in range(2) for mt in (1, 0)]
        return a, b
    def o_valu(hp, j):
        T = TM + 16*(hp & 1)
        L = [f"v_add_f32 v{T+8*e+5}, s48, v{T+8*e+5}" for e in range(2)]
        L += [f"v_rcp_f32 v{T+8*e+6}, v{T+8*e+5}" for e in range(2)]
        L += ["s_nop 0"]
        for e in range(2):
            L += [f"v_pk_mul_f32 {v(T+8*e+2*q,2)}, {v(T+8*e+2*q,2)}, {v(T+8*e+6,2)} op_sel_hi:[1,0]" for q in range(2)]
            L += [f"v_mul_f32 v{T+8*e+4}, v{T+8*e+4}, v{T+8*e+6}"]
        vals = [T+8*e+i for e in range(2) for i in range(5)]
        for p in range(5):
            pi = 5*hp + p
            L.append(f"v_cvt_pk_bf16_f32 v{O + (pi>>2)*8 + 4*j + (pi&3)}, v{vals[2*p]}, v{vals[2*p+1]}")
        return L
    def ophase(j):
        for x in o_mask(0): A(x)
        A("s_waitcnt lgkmcnt(0)")
        if j == 0: pt(A, "v2")
        A("s_nop 0")
        for hp in range(4):
            a, b = o_mfma(hp)
            for m in a: A(m)
            fill = (o_mask(hp+1) if hp < 3 else ["s_nop 3"]) + (o_valu(hp-1, j) if hp else ["s_nop 1"])
            k = 0
            for i, m in enumerate(b):
                A(m)
                n = (len(fill) - k + (3 - i)) // (4 - i)
                for x in fill[k:k+n]: A(x)
                k += n
        A("s_nop 3")
        for x in o_valu(3, j): A(x)
    def raise_flag():
        A(f"s_cmp_eq_u32 s16, s28\ns_cselect_b32 s3, {OOB}, 0\nv_mov_b32 v6, s3\nv_mov_b32 v7, 1")
        A("s_waitcnt vmcnt(0)\ns_mov_b64 exec, 1\nbuffer_store_dword v7, v6, s[40:43], s30 offen sc1\ns_mov_b64 exec, -1")
    if CFG.flagpos == 0: raise_flag()
    ophase(0)
    if CFG.flagpos == 1: raise_flag()
    A("s_barrier")
    for r in vread(21, PH): A(r)
    ophase(1)
    if CFG.flagpos == 2: raise_flag()
    A("s_barrier")
    for r in vread(22, KV): A(r)
    pt(A, "o")
    k2_final_prep(A, 1)
    SM = 80
    A("v_bfe_u32 v6, v1, 2, 2\nv_lshrrev_b32 v7, 4, v1\nv_cmp_eq_u32 vcc, v6, v7\nv_and_b32 v6, 1, v1\nv_lshlrev_b32 v6, 4, v6\nv_mov_b32 v7, 0x3f80")
    A("v_lshlrev_b32 v7, v6, v7\nv_cndmask_b32 v7, 0, v7, vcc\nv_and_b32 v6, 2, v1\nv_cmp_eq_u32 vcc, 0, v6\ns_nop 1")
    A(f"v_cndmask_b32 v{SM}, 0, v7, vcc\nv_cndmask_b32 v{SM+1}, v7, 0, vcc\nv_mov_b32 v{SM+4}, v{SM}\nv_mov_b32 v{SM+5}, v{SM+1}")
    A(f"v_and_b32 v6, 15, v1\nv_mul_u32_u24 v6, {RED_RS}, v6\nv_lshrrev_b32 v7, 4, v1\nv_lshl_add_u32 v6, v7, 4, v6")
    A(f"s_mul_i32 s17, s16, {32*RED_RS}\ns_cmp_eq_u32 s16, 3\ns_cselect_b32 s17, {red_base(3)}, s17\nv_add_u32 v3, s17, v6")
    A("v_mov_b32 v6, 0")
    for u in range(4):
        M = [f"{MF} {acc(0,t,j)}, {v(KV+36*(u&1)+4*t,4)}, {v(O+8*u+4*j,4)}, {acc(0,t,j) if u else 0}" for t in range(9) for j in range(2)]
        if u == CFG.pollpos: A("buffer_load_dword v7, v6, s[40:43], s31 offen sc1")
        block(A, M, vread(23+u, KV+36*((u+1)&1)), True)
        if u == CFG.pollpos:
            L = A.newlabel("Lr"); L2 = A.newlabel("Lr")
            A(f"s_cmp_eq_u32 s16, s28\ns_cbranch_scc1 {L}")
            pt(A, "poll0")
            A(f"s_waitcnt vmcnt(0)\nv_cmp_eq_u32 vcc, 0, v7\ns_nop 4\ns_cbranch_vccz {L2}")
            poll(A, 6, 7, 40, 31)
            A.label(L2)
            pt(A, "poll1")
            for t in range(9):
                if t and t % 4 == 0: A("s_add_u32 s33, s33, 4096")
                A(f"buffer_load_dwordx4 {v(PK+4*t,4)}, v{V_PA}, s[36:39], s33 offen offset:{(t%4)*1024} sc1")
            A.label(L)
    pt(A, "wo")
    A("s_waitcnt lgkmcnt(0)")
    def wr(t): return "\n".join(f"ds_write_b128 v3, {acc(0,t,j)} offset:{j*16*RED_RS + t*64}" for j in range(2))
    for t in range(9):
        for j in range(2): A(f"{MF} {acc(0,t,j)}, {v(KV+4*t,4)}, {v(O+32+4*j,4)}, {acc(0,t,j)}")
        A(f"s_waitcnt vmcnt({8-t})")
        for j in range(2): A(f"{MF} {acc(0,t,j)}, {v(SM+2*j,4)}, {v(PK+4*t,4)}, {acc(0,t,j)}")
        if t >= 2: A(wr(t-2))
    pt(A, "add")
    A("s_nop 0")
    A(wr(7))
    A("s_nop 3")
    A(wr(8))
    A.label("K2_fin")
    A("s_waitcnt lgkmcnt(0)")
    pt(A, "ldsw")
    A("s_barrier")
    pt(A, "red")
    def fin(n):
        R = 8
        FI = (244, 232)[n]; XB = FI + 4
        for w in range(4):
            a, o = (FI+1, red_base(w)) if w < 3 else (FI+2, 0)
            A(f"ds_read_b128 {v(R+8*w,4)}, v{a} offset:{o}\nds_read_b128 {v(R+8*w+4,4)}, v{a} offset:{o+16}")
        A("s_waitcnt vmcnt(0)" if n == 0 else "s_nop 0")
        for i in range(4):
            A(f"v_lshlrev_b32 v{40+2*i}, 16, v{XB+i}\nv_and_b32 v{41+2*i}, 0xffff0000, v{XB+i}")
        A(f"v_lshlrev_b32 v48, 16, v{FI+3}")
        for p in range(4): A(f"v_pk_add_f32 {v(40+2*p,2)}, {v(40+2*p,2)}, v[48:49] op_sel_hi:[1,0]")
        for w in range(4):
            A(f"s_waitcnt lgkmcnt({2*(3-w)})")
            for p in range(4): A(f"v_pk_add_f32 {v(40+2*p,2)}, {v(40+2*p,2)}, {v(R+8*w+2*p,2)}")
        for p in range(4): A(f"v_cvt_pk_bf16_f32 v{52+4*n+p}, v{40+2*p}, v{41+2*p}")
        A(f"buffer_store_dwordx4 {v(52+4*n,4)}, v{FI}, s[52:55], s50 offen {CFG.auxOut}")
    fin(0)
    A("s_cmp_lg_u32 s16, 7\ns_cbranch_scc1 K2_done")
    fin(1)
    A.label("K2_done")
    pt(A, "fin")
    stamp_flush(A, 2, 6, 26, 16)
    A("s_endpgm")
    A.label("K2_ld")
    if CFG.G2: A(f"s_add_u32 s59, s22, s23\ns_and_b32 s59, s59, 3\ns_mul_i32 s59, s59, {CFG.G2}\ns_lshr_b32 s59, s59, 2")
    A(f"s_sub_u32 s29, s16, 4\ns_mul_i32 s34, s29, 9216")
    A(f"s_mul_i32 s30, s29, 12288\ns_add_u32 s30, s30, {KVF_OFF}")
    A(f"s_lshl_b32 s31, s23, 2\ns_add_u32 s31, s31, s28\ns_mul_i32 s31, s31, 73728\ns_add_u32 s31, s31, s34\ns_add_u32 s31, s31, {PHIQ_OFF}")
    A(f"s_lshl_b32 s32, s22, 2\ns_add_u32 s32, s32, s29\ns_mul_i32 s32, s32, 46080\ns_add_u32 s32, s32, {WOT_OFF}")
    A("v_and_b32 v20, 63, v0\nv_lshlrev_b32 v20, 4, v20\nv_add_u32 v21, 4096, v20\nv_add_u32 v22, 8192, v20")
    A("s_waitcnt lgkmcnt(0)")
    srd(A, 36, 26, PART_OFF)
    def tail(so, step, nb=9, last=False):
        def emit(slot):
            if last: k2_final_prep(A, 2)
            for j in range(nb):
                if j % 4 == 0: A(f"s_add_u32 m0, s34, {slot*STAGE + (j//4)*4096}\ns_nop 0")
                A(f"buffer_load_dwordx4 v{20+j//4}, s[36:39], s{so} offen offset:{(j%4)*1024} lds")
            A(f"s_add_u32 s{so}, s{so}, {step}")
        return (nb + (4 if last else 0), emit)
    extra = [tail(30, 9216), tail(30, 0, 3)] + [tail(31, 36864)]*2 + [tail(32, 9216)]*4 + [tail(32, 0, 9, True)]
    if CFG.dbg_hot: extra = [tail(30, 9216), tail(30, -9216)]*4 + [tail(30, 0)]
    A("s_cmp_ge_u32 s16, 6\ns_cbranch_scc1 K2_ldW")
    srd_off(A, 8, 26, U_OFF, U_SZ)
    A(f"s_sub_u32 s17, s16, 4\ns_lshl_b32 s21, s22, 2\ns_add_u32 s21, s21, s28\ns_mul_i32 s21, s21, {36*9216}")
    emit_loader_lin(A, 18, 9, POFF, 17, 8, 21, 20, 18, CFG.auxP, CFG.G2, extra=extra)
    A("s_branch K2_ldend")
    A.label("K2_ldW")
    srd(A, 12, 4, S*F*2)
    A(f"s_sub_u32 s17, s16, 6\ns_mul_i32 s21, s28, {1152*4096}\ns_lshl_b32 s18, s23, 8\ns_add_u32 s21, s21, s18")
    every = None
    if CFG.pft:
        A("v_and_b32 v24, 63, v0\nv_mul_u32_u24 v25, 2304, v24")
        A(f"s_lshl_b32 s40, s23, 2\ns_add_u32 s40, s40, s28\ns_lshl_b32 s40, s40, 2\ns_add_u32 s40, s40, s22\ns_mul_i32 s40, s40, 18432\ns_add_u32 s40, s40, {PHIQ_OFF}")
        A(f"s_and_b32 s41, s23, 7\ns_lshl_b32 s42, s22, 3\ns_add_u32 s41, s41, s42\ns_mul_i32 s42, s41, 1536\ns_add_u32 s42, s42, {KVF_OFF}\ns_mul_i32 s41, s41, 23040\ns_add_u32 s41, s41, {WOT_OFF}")
        A(f"s_cmp_eq_u32 s16, 6\ns_cselect_b32 s40, s40, s41\ns_cselect_b32 s41, 8, 10\ns_cselect_b32 s48, 0x1ff, -1\ns_and_b32 s48, s48, 0x3ff\ns_mov_b32 s49, 0")
        A("v_cmp_gt_u32 vcc, s41, v24\nv_add_u32 v25, s40, v25\nv_mov_b32 v26, s42\ns_mov_b32 s42, 0\nv_cndmask_b32 v25, v26, v25, vcc")
        def every():
            A("s_mov_b64 exec, s[48:49]\nbuffer_load_dword v28, v25, s[36:39], s42 offen\ns_mov_b64 exec, -1\ns_add_u32 s42, s42, 128")
    emit_loader_W(A, 18, "pi", 17, 12, 21, 4096, 20, 18, CFG.auxW2, CFG.G2, extra=extra, every=every)
    A.label("K2_ldend")
    A("s_branch K2_fin")
    A.label("K2_end")
    A("s_endpgm")
    set_stage(STAGE1)
    DBG["on"] = False

def k2_final_prep(A, nitems):
    srd(A, 8, 44, S*D*2)
    srd(A, 12, 6, S*2)
    srd(A, 52, 46, S*D*2)
    A("s_lshl_b32 s50, s23, 2\ns_add_u32 s50, s50, s28\ns_lshl_b32 s51, s50, 6\ns_mul_i32 s50, s50, 36864\ns_mul_i32 s17, s22, 288\ns_add_u32 s50, s50, s17")
    for n in range(nitems):
        FI = (244, 232)[n]; XB = FI + 4
        A("v_mov_b32 v252, v0" if n == 0 else "v_and_b32 v252, 63, v0\nv_add_u32 v252, 512, v252")
        A("v_mul_u32_u24 v253, 3641, v252\nv_lshrrev_b32 v253, 16, v253\nv_mul_u32_u24 v254, 18, v253\nv_sub_u32 v254, v252, v254")
        A(f"v_mul_u32_u24 v252, 1152, v253\nv_lshl_add_u32 v{FI}, v254, 4, v252")
        A(f"v_mul_u32_u24 v252, {RED_RS}, v253\nv_lshl_add_u32 v{FI+1}, v254, 5, v252\nv_add_u32 v{FI+2}, {red_base(3)}, v{FI+1}")
        A("v_lshlrev_b32 v253, 1, v253")
        A(f"buffer_load_dwordx4 {v(XB,4)}, v{FI}, s[8:11], s50 offen\nbuffer_load_ushort v{FI+3}, v253, s[12:15], s51 offen")

def gen_probe(A):
    k, i, lo, hi, mm = CFG.probe.split(",")
    k, i, lo, hi = int(k), int(i), int(lo), int(hi)
    kernel_head(A, "z_kernel")
    A("s_cmp_ge_u32 s2, 1\ns_cbranch_scc1 Z_end")
    A(f"s_load_dwordx2 s[26:27], s[0:1], {KA_WS}\ns_memrealtime s[4:5]\ns_waitcnt lgkmcnt(0)")
    srd_off(A, 8, 26, STAMP_OFF, STAMP_SZ)
    op = "v_min_u32" if mm == "max" else "v_max_u32"
    for n in range(8):
        A(f"v_add_u32 v1, {lo + 64*n}, v0\nv_min_u32 v1, {hi-1}, v1\nv_lshlrev_b32 v1, 9, v1")
        A(f"s_mov_b32 s3, {k*0x40000 + 4*i}\nbuffer_load_dword v{8+n}, v1, s[8:11], s3 offen")
    A("s_waitcnt vmcnt(0)")
    for n in range(8): A(f"v_sub_u32 v{8+n}, s4, v{8+n}")
    for n in range(1, 8): A(f"{op} v8, v8, v{8+n}")
    A("s_nop 1\nv_readlane_b32 s6, v8, 0")
    for l in range(1, 64):
        A(f"v_readlane_b32 s7, v8, {l}\ns_nop 0\n{op.replace('v_','s_')} s6, s6, s7")
    A("s_sub_u32 s6, s4, s6")
    A("Z_loop:\ns_memrealtime s[4:5]\ns_waitcnt lgkmcnt(0)\ns_sub_u32 s7, s4, s6\ns_cmp_lt_u32 s7, 12000\ns_cbranch_scc1 Z_loop")
    A("Z_end:\ns_endpgm")

HEADER = open("parallel_sum__linear_kernel_hedgehog__mixer_token_mlp__prompt.s.ref").read().split("; Override launch")[0] if __name__ == "__main__" else ""

def gen(**kw):
    global CFG
    for k in dir(Cfg):
        if not k.startswith("_"): setattr(CFG, k, kw.get(k, getattr(Cfg, k)))
    A = Asm()
    if HEADER: A(HEADER.rstrip())
    A(f"; @launch kernel=k0_kernel grid=(256,1,1) block=(512,1,1) lds={K0_LDS}")
    A(f"; @launch kernel=k1_kernel grid=(256,1,1) block=(512,1,1) lds={NST*STAGE}")
    A(f"; @launch kernel=k2_kernel grid=(256,1,1) block=(512,1,1) lds={NST*STAGE2}")
    if CFG.probe: A("; @launch kernel=z_kernel grid=(1,1,1) block=(64,1,1) lds=0")
    A('.amdgcn_target "amdgcn-amd-amdhsa--gfx950"\n.text')
    gen_k0(A); gen_k1(A); gen_k2(A)
    A.label("CODE_END")
    A("s_endpgm")
    if CFG.probe: gen_probe(A)
    A('.section .rodata,"a"')
    if CFG.probe: kernel_desc(A, "z_kernel", 16, 32)
    kernel_desc(A, "k0_kernel", 96)
    kernel_desc(A, "k1_kernel", 240)
    kernel_desc(A, "k2_kernel", 256)
    return A.text()

if __name__ == "__main__":
    out = sys.argv[1] if len(sys.argv) > 1 else "parallel_sum__linear_kernel_hedgehog__mixer_token_mlp__prompt.s"
    kw = {}
    for a in sys.argv[2:]:
        k, val = a.split("=")
        kw[k] = val if not val.isdigit() else int(val)
    open(out, "w").write(gen(**kw))
```

```python
import math, struct, sys
from asmlib import *

def f2u(x): return struct.unpack("<I", struct.pack("<f", x))[0]
LOG2E = math.log2(math.e)
OOB = 0x80000000

S, D, F, H, DH = 2048, 576, 4608, 32, 18
KA_X, KA_WQKV, KA_WPHI, KA_WO, KA_BX, KA_W1, KA_B1, KA_W2, KA_B2, KA_OUT, KA_DBG, KA_WS = [8*i for i in range(12)]
XN_OFF, XN_SZ = 0x0, 2359296
HT_OFF, HT_SZ = 0x240000, 2359296
WF_OFF, WF_SZ = 0x480000, 6*18*18*1024
U_OFF, U_SZ = 0x680000, 5308416
PHIQ_OFF, PHIQ_SZ = 0xC00000, 4718592
KVP_OFF, KVP_SZ = 0x1080000, 16*48*2048
KVF_OFF, KVF_SZ = 0x12C0000, 48*1024
WOT_OFF, WOT_SZ = 0x1300000, 16*45*1024
PART_OFF, PART_SZ = 0x1400000, 64*16*9216
FLAG_OFF, FLAG_SZ = 0x1F00000, 0x23000
F0, FU, FQ, FW, FK, FP, FX, FE = 0, 256, 832, 960, 1040, 1088, 1152, 2176
KNAME = "parallel_sum__linear_kernel_hedgehog__mixer_token_mlp__prompt_kernel"
SINK = 255
STAMP_OFF, STAMP_SZ = 0x3000000, 0x100000

STAGE, POFF, WOFF, NST = 36864, 0, 18432, 4
STAGE2 = STAGE
V_PA, V_PB, V_W0A, V_W1A, V_W0B, V_W1B = 2, 3, 4, 5, 6, 7
V_PF, V_WF, V_ACC = 8, 80, 96
def pf(b, t): return v(V_PF + b*36 + t*4, 4)
def wf(b, j): return v(V_WF + b*8 + j*4, 4)
def accr(st, t, j): return V_ACC + st*72 + (t*2+j)*4
def acc(st, t, j): return v(accr(st, t, j), 4)
MF = "v_mfma_f32_16x16x32_bf16"

class Cfg:
    stamp = False
    auxW1 = ""; auxW2 = ""; auxP = "sc1"; auxSt = "sc1"
    G1 = 0; G2 = 0; GA = 0
    auxOut = ""; flagpos = 1; pollpos = 1
    pts = ""; pf1b = 0; pf2w = 0; pubpos = 0; tlb = 0; sl1 = 0; sl2 = 0; bgo = 0; sl0 = 0; slk = 0
    dbg_nopub = 0; dbg_hot = 0; dbg = ""
    pfc = 0
    pf1 = 0
    pf1l = 0; pf1rev = 0; pf2g = 0; pf2pos = 3
    pf1pos = 0
    pf1s = 0
    pft = 0
    pf2kv = 0; pf2q = 0; pf2s = 0
    probe = ""
CFG = Cfg()

def stamp(A, i):
    if CFG.stamp: A(f"{'s_memtime' if CFG.stamp == 2 else 's_memrealtime'} s[{64+2*i}:{65+2*i}]")
def pt(A, name):
    L = CFG.pts.split(",")
    if name in L: stamp(A, 1 + L.index(name))
def stamp_flush(A):
    if not CFG.stamp: return
    A("s_waitcnt vmcnt(0)")
    stamp(A, 13)
    A("s_waitcnt lgkmcnt(0)")
    srd_off(A, 92, 26, STAMP_OFF, STAMP_SZ)
    A("s_lshl_b32 s63, s2, 3\ns_add_u32 s63, s63, s16\ns_lshl_b32 s63, s63, 6\ns_mov_b64 exec, 1\nv_mov_b32 v1, 0")
    for i in range(14):
        A(f"v_mov_b32 v2, s{64+2*i}\nbuffer_store_dword v2, v1, s[92:95], s63 offen offset:{4*i}")

def emit_compute_addr(A, s_wave, mode):
    A("v_and_b32 v1, 63, v0")
    A(f"v_lshlrev_b32 v{V_PA}, 4, v1")
    A(f"v_add_u32 v{V_PB}, {2*STAGE}, v{V_PA}")
    if mode == "lin":
        A(f"s_lshl_b32 s3, s{s_wave}, 11\ns_add_u32 s3, s3, {WOFF}")
        A(f"v_add_u32 v{V_W0A}, s3, v{V_PA}")
        A(f"v_add_u32 v{V_W0B}, {2*STAGE}, v{V_W0A}")
        return
    A("v_lshrrev_b32 v8, 2, v1")
    A("v_and_b32 v9, 7, v8")
    if mode == "std":
        A("v_and_b32 v10, 12, v8\nv_add_u32 v8, v8, v10")
    A(f"s_lshl_b32 s3, s{s_wave}, 1")
    A("v_xor_b32 v9, s3, v9\nv_lshlrev_b32 v9, 5, v9\nv_lshl_add_u32 v9, v8, 8, v9")
    A("v_and_b32 v8, 3, v1\nv_lshl_add_u32 v9, v8, 3, v9")
    A(f"v_add_u32 v{V_W0A}, {WOFF}, v9")
    A(f"v_xor_b32 v{V_W1A}, 32, v{V_W0A}")
    A(f"v_add_u32 v{V_W0B}, {2*STAGE}, v{V_W0A}")
    A(f"v_add_u32 v{V_W1B}, {2*STAGE}, v{V_W1A}")

def reads_P(slot, sub, b):
    a = V_PB if slot >= 2 else V_PA
    so = (slot & 1) * STAGE
    return [f"ds_read_b128 {pf(b,t)}, v{a} offset:{so + (sub*9+t)*1024}" for t in range(9)]
def reads_W(slot, sub, b, mode):
    hi = slot >= 2
    so = (slot & 1) * STAGE
    R = []
    if mode == "lin":
        a = V_W0B if hi else V_W0A
        return [f"ds_read_b128 {wf(b,j)}, v{a} offset:{so + j*1024}" for j in range(2)]
    second = 1024 if mode == "std" else 4096
    for j in range(2):
        a = (V_W0B, V_W1B)[j] if hi else (V_W0A, V_W1A)[j]
        base = V_WF + b*8 + j*4
        R.append(f"ds_read_b64_tr_b16 {v(base,2)}, v{a} offset:{so + sub*8192}")
        R.append(f"ds_read_b64_tr_b16 {v(base+2,2)}, v{a} offset:{so + sub*8192 + second}")
    return R

DBG = {"on": False}
def dbg(x): return DBG["on"] and x in CFG.dbg.split(",")
def block(A, M, R, barrier):
    if dbg("nomfma"): M = ["s_nop 3"]*len(M)
    if dbg("noread"): R = []
    if dbg("noreadP"): R = [r for r in R if "tr_b16" in r]
    if dbg("halfP"): R = [r for i, r in enumerate(R) if "tr_b16" in r or i % 2]
    A("s_waitcnt lgkmcnt(0)")
    if barrier: A("s_barrier")
    ri = 0
    for m in M:
        A(m)
        if ri < len(R):
            if R[ri]: A(R[ri])
            ri += 1
    assert ri == len(R)

def mfmas(st, pb, wb, w_is_A):
    M = []
    for t in range(9):
        for j in range(2):
            a, b = (wf(wb,j), pf(pb,t)) if w_is_A else (pf(pb,t), wf(wb,j))
            M.append(f"{MF} {acc(st,t,j)}, {a}, {b}, {acc(st,t,j)}")
    return M

def emit_compute_loop(A, n, mode, w_is_A, s_cnt, first=None, lastfill=None):
    lin = mode == "lin"
    A("s_barrier")
    if first: first()
    for r in reads_W(0, 0, 0, mode) + reads_P(0, 0, 0): A(r)
    def stage(i, last):
        slot = i % NST; nxt = (i+1) % NST
        if lin:
            wb = i & 1
            block(A, mfmas(0, 0, wb, w_is_A[0]), reads_P(slot, 1, 1), False)
            block(A, mfmas(1, 1, wb, w_is_A[1]), [] if last else reads_W(nxt, 0, wb ^ 1, mode) + reads_P(nxt, 0, 0), not last)
        else:
            block(A, mfmas(0, 0, 0, w_is_A[0]), reads_W(slot, 1, 1, mode) + reads_P(slot, 1, 1), False)
            block(A, mfmas(0, 1, 1, w_is_A[1]), (lastfill or []) if last else reads_W(nxt, 0, 0, mode) + reads_P(nxt, 0, 0), not last)
    nloop = (n - 1) // NST
    L = A.newlabel("Lc")
    A(f"s_mov_b32 s{s_cnt}, {nloop}")
    A.label(L)
    for i in range(NST): stage(i, False)
    A(f"s_sub_u32 s{s_cnt}, s{s_cnt}, 1\ns_cmp_lg_u32 s{s_cnt}, 0\ns_cbranch_scc1 {L}")
    for i in range(nloop*NST, n): stage(i, i == n-1)

def rot_init(A, G, s_rot, s_off, step):
    if not G: return
    A(f"s_mul_i32 s62, s{s_rot}, {step}\ns_add_u32 s{s_off}, s{s_off}, s62")
    A(f"s_sub_u32 s60, {G}, s{s_rot}\ns_mov_b32 s61, {G}")
def rot_step(A, G, s_off, step):
    if dbg("noadv"): return
    if "k1W" in CFG.dbg and step == 64*9216: return
    if "k1P" in CFG.dbg and DBG.get("k1P"): return
    A(f"s_add_u32 s{s_off}, s{s_off}, {step}")
    if not G: return
    A(f"s_sub_u32 s60, s60, 1\ns_cmp_eq_u32 s60, 0\ns_cselect_b32 s62, {G*step}, 0\ns_cselect_b32 s60, {G}, s60\ns_sub_u32 s{s_off}, s{s_off}, s62")
    A(f"s_sub_u32 s61, s61, 1\ns_cmp_eq_u32 s61, 0\ns_cselect_b32 s62, {G*step}, 0\ns_cselect_b32 s61, {G}, s61\ns_add_u32 s{s_off}, s{s_off}, s62")

def emit_loader(A, n, cnt, issue, s_cnt, extra=None, hook=None, post=None, pre=None, mid=None):
    extra = extra or []
    tot = n + len(extra)
    hook = hook or {}
    def c(i): return 0 if i >= tot else (cnt + (i in hook) if i < n else extra[i-n][0])
    if pre: pre()
    for i in range(3): issue(i)
    if mid: mid()
    nloop = (n - 3) // NST
    L = A.newlabel("Ll")
    A(f"s_mov_b32 s{s_cnt}, {nloop}")
    A.label(L)
    for i in range(NST):
        A(f"s_waitcnt vmcnt({2*cnt})\ns_barrier")
        issue((i+3) % NST)
    A(f"s_sub_u32 s{s_cnt}, s{s_cnt}, 1\ns_cmp_lg_u32 s{s_cnt}, 0\ns_cbranch_scc1 {L}")
    for i in range(nloop*NST, tot):
        A(f"s_waitcnt vmcnt({c(i+1)+c(i+2) + (post[0] if post and i > n-post[2] else 0)})\ns_barrier")
        if post and i == n-post[2]: post[1]()
        if i+3 in hook: hook[i+3]()
        if i+3 < n: issue((i+3) % NST)
        elif i+3 < tot: extra[i+3-n][1]((i+3) % NST)

def emit_loader_lin(A, n, per, ldsoff, s_lw, srdP, s_off, s_cnt, s_tmp, aux="", G=0, s_rot=59, extra=None, post=None, pre=None):
    rot_init(A, G, s_rot, s_off, 2*per*1024)
    A("v_and_b32 v1, 63, v0\nv_lshlrev_b32 v1, 4, v1")
    A(f"s_mul_i32 s{s_tmp}, s{s_lw}, {per*1024}")
    A(f"v_add_u32 v2, s{s_tmp}, v1")
    for q in range(1, (per+3)//4): A(f"v_add_u32 v{2+q}, {q*4096}, v2")
    def issue(slot):
        for j in range(per):
            if j % 4 == 0:
                A(f"s_add_u32 m0, s{s_tmp}, {slot*STAGE + ldsoff + (j//4)*4096}\ns_nop 0")
            if not dbg("noload"): A(f"buffer_load_dwordx4 v{2+j//4}, {s(srdP,4)}, s{s_off} offen offset:{(j%4)*1024} {aux} lds")
        rot_step(A, G, s_off, 2*per*1024)
    emit_loader(A, n, per, issue, s_cnt, extra, post=post, pre=pre)

def emit_loader_W(A, n, mode, s_lw, srdW, s_off, stride, s_cnt, s_tmp, aux="", G=0, s_rot=59, extra=None, hook=None, post=None, every=None, mid=None):
    rot_init(A, G, s_rot, s_off, 64*stride)
    A("v_and_b32 v1, 63, v0\nv_lshrrev_b32 v10, 4, v1\nv_and_b32 v11, 15, v1")
    A(f"s_lshl_b32 s{s_tmp}, s{s_lw}, 5\nv_add_u32 v12, s{s_tmp}, v10")
    A(f"s_mov_b32 s3, {stride}\nv_mul_lo_u32 v12, v12, s3")
    for par in range(2):
        A(f"v_or_b32 v13, {4*par}, v10\nv_lshlrev_b32 v13, 1, v13\nv_xor_b32 v13, v13, v11")
        A("v_lshl_add_u32 v13, v13, 4, v12")
        for j in range(8):
            key = (j & 1) if mode == "pi" else ((j >> 1) & 1)
            if key == par:
                A(f"v_add_u32 v{2+j}, {4*j*stride - (j%4)*1024}, v13")
    A(f"s_lshl_b32 s{s_tmp}, s{s_lw}, 13")
    def issue(slot):
        for j in range(8):
            if j % 4 == 0:
                A(f"s_add_u32 m0, s{s_tmp}, {slot*STAGE + WOFF + (j//4)*4096}\ns_nop 0")
            if not dbg("noload"): A(f"buffer_load_dwordx4 v{2+j}, {s(srdW,4)}, s{s_off} offen offset:{(j%4)*1024} {aux} lds")
        if every: every()
        rot_step(A, G, s_off, 64*stride)
    emit_loader(A, n, 9 if every else 8, issue, s_cnt, extra, hook, post, mid=mid)

def pf_w1(A, srdn, s_col, s_idx, step, count, vl, vt, lim=None, rev=0):
    for c in range(count):
        if rev: A(f"s_sub_u32 s57, {rev-1}, s{s_idx}\ns_lshl_b32 s57, s57, 6")
        else: A(f"s_lshl_b32 s57, s{s_idx}, 6")
        A(f"v_add_u32 v{vt}, s57, v{vl}\nv_mul_u32_u24 v{vt+1}, 52429, v{vt}\nv_lshrrev_b32 v{vt+1}, 19, v{vt+1}")
        A(f"v_mul_u32_u24 v{vt+1}, {9216-1280}, v{vt+1}\nv_lshl_add_u32 v{vt}, v{vt}, 7, v{vt+1}")
        A(f"buffer_load_dword v{SINK}, v{vt}, {s(srdn,4)}, s{s_col} offen")
        A(f"s_add_u32 s{s_idx}, s{s_idx}, {step}")
        if lim is not None: A(f"s_waitcnt vmcnt({lim})")
def pf_code(A, start):
    L = A.newlabel("Lpc")
    A(f"s_getpc_b64 s[60:61]\n{L}:\ns_add_u32 s60, s60, {start}-{L}\ns_addc_u32 s61, s61, 0")
    A(f"v_lshlrev_b32 v90, 7, v0\nv_min_u32 v90, CODE_END-{start}-4, v90\nglobal_load_dword v{SINK}, v90, s[60:61]")
def pf_w1_col(A, s_col):
    A(f"s_and_b32 s{s_col}, s2, 7\ns_mul_i32 s{s_col}, s{s_col}, 18\ns_lshr_b32 s{s_col}, s{s_col}, 2\ns_lshl_b32 s{s_col}, s{s_col}, 8")
def pf_w2(A, s_ptr, s_idx, step, count, lim=None):
    if not count: return
    srd(A, 52, s_ptr, S*F*2)
    A(f"s_bfe_u32 s57, s2, 0x20001\ns_mul_i32 s57, s57, {1152*4096}\ns_and_b32 s58, s2, 1\ns_lshl_b32 s58, s58, 11\ns_add_u32 s57, s57, s58")
    A(f"s_lshl_b32 s58, s{s_idx}, 14\ns_add_u32 s57, s57, s58")
    A("v_bfe_u32 v30, v0, 4, 2\nv_lshlrev_b32 v30, 12, v30\nv_and_b32 v31, 15, v0\nv_lshl_add_u32 v30, v31, 7, v30")
    for c in range(count):
        A(f"buffer_load_dword v{SINK}, v30, s[52:55], s57 offen\ns_add_u32 s57, s57, {step*16384}")
        if lim is not None: A(f"s_waitcnt vmcnt({lim})")

SPIN_MAX = 60000
def flag_setup(A):
    srd_off(A, 96, 26, FLAG_OFF, FLAG_SZ)
    A(f"s_load_dword s100, s[96:97], {FE*64}")
def tag_make(A):
    A("s_add_u32 s100, s100, 1\ns_mul_i32 s101, s100, 0x9e3779b1\ns_add_u32 s101, s101, 0x7f4a7c15")
def raise_flag(A, s_off, vt):
    A(f"v_mov_b32 v{vt}, s100\nv_mov_b32 v{vt+1}, s101\nv_mov_b32 v{vt+2}, s{s_off}")
    A(f"s_mov_b64 exec, 1\nbuffer_store_dwordx2 {v(vt,2)}, v{vt+2}, s[96:99], 0 offen sc1\ns_mov_b64 exec, -1")
def poll(A, vaddr, vtmp, sleep=0):
    L = A.newlabel("Lp"); X = A.newlabel("Lx")
    A(f"s_mov_b32 s63, {SPIN_MAX}")
    A.label(L)
    A(f"buffer_load_dwordx2 {v(vtmp,2)}, v{vaddr}, s[96:99], 0 offen sc1")
    A(f"s_waitcnt vmcnt(0)\nv_cmp_ne_u64 vcc, s[100:101], {v(vtmp,2)}\ns_sub_u32 s63, s63, 1\ns_cbranch_scc1 {X}\ns_nop 2\ns_cbranch_vccz {X}")
    A("s_mov_b64 exec, vcc")
    if sleep: A(f"s_sleep {sleep}")
    A(f"s_branch {L}")
    A.label(X)
    A("s_mov_b64 exec, -1")
def poll2(A, vaddr, vtmp, sleep1, sleep2):
    if sleep1:
        A("s_mov_b64 exec, 1")
        poll(A, vaddr, vtmp, sleep1)
    poll(A, vaddr, vtmp, sleep2)

def wave_id(A, sd):
    A(f"v_lshrrev_b32 v1, 6, v0\ns_nop 1\nv_readfirstlane_b32 s{sd}, v1")

def reduce32(A, regs, tmp):
    pad = "s_nop 1" if len(regs) == 1 else "s_nop 0"
    A("s_nop 1")
    for pat in ["quad_perm:[1,0,3,2]", "quad_perm:[2,3,0,1]", "row_half_mirror", "row_mirror"]:
        for r in regs:
            A(f"v_add_f32_dpp v{r}, v{r}, v{r} {pat} row_mask:0xf bank_mask:0xf")
        A(pad)
    for i, r in enumerate(regs): A(f"v_mov_b32 v{tmp+i}, v{r}")
    A("s_nop 1")
    for i, r in enumerate(regs): A(f"v_permlane16_swap_b32 v{r}, v{tmp+i}")
    A("s_nop 1")
    for i, r in enumerate(regs): A(f"v_add_f32 v{r}, v{r}, v{tmp+i}")

XRS, HRS = 1168, 1216
K0_HL = 16*XRS
K0_DUMMY = K0_HL + 16*HRS
K0_LDS = 83968
def gen_k0(A):
    kernel_head(A, KNAME)
    stamp(A, 0)
    A("s_cmp_ge_u32 s2, 256\ns_cbranch_scc1 K_end")
    A(f"s_load_dwordx4 s[4:7], s[0:1], {KA_X}\ns_load_dwordx2 s[26:27], s[0:1], {KA_WS}")
    A(f"s_load_dwordx2 s[24:25], s[0:1], {KA_WPHI}\ns_load_dwordx2 s[48:49], s[0:1], {KA_W1}")
    A("s_cmp_lt_u32 s2, 128\ns_cbranch_scc1 K0_pf")
    X, P, Q = 20, 8, 56
    A("v_lshrrev_b32 v2, 5, v0\nv_and_b32 v3, 31, v0")
    A("v_mul_u32_u24 v4, 1152, v2\nv_lshl_add_u32 v4, v3, 4, v4")
    A(f"v_cmp_gt_u32 s[30:31], 24, v3\nv_mov_b32 v5, {OOB}")
    A("s_sub_u32 s44, s2, 128\ns_mul_i32 s3, s44, 18432")
    A("v_cndmask_b32 v4, v5, v4, s[30:31]")
    A("s_waitcnt lgkmcnt(0)")
    srd(A, 8, 4, S*D*2)
    for j in range(3): A(f"buffer_load_dwordx4 {v(P+4*j,4)}, v4, s[8:11], s3 offen offset:{384*j}")
    A("s_branch K0_ln")
    A.label("K0_pf")
    wave_id(A, 16)
    def pf_setup():
        flag_setup(A)
        srd(A, 52, 48, S*F*2)
        pf_w1_col(A, 46)
        A("s_and_b32 s47, s2, 0x78\ns_add_u32 s47, s47, s16\nv_and_b32 v1, 63, v0")
    def pf_round(r):
        n = CFG.pf1 - 128*r
        if n <= 0: return 0
        L = A.newlabel("Lq")
        if n < 128: A(f"s_cmp_ge_u32 s47, {CFG.pf1}\ns_cbranch_scc1 {L}")
        pf_w1(A, 52, 46, 47, 128, 1, 1, 88)
        A.label(L)
        return 1
    A("s_cmp_ge_u32 s2, 108\ns_cbranch_scc1 K0_nofold")
    A("s_mul_i32 s18, s2, 7282\ns_lshr_b32 s18, s18, 16")
    A("s_mul_i32 s19, s18, 9\ns_sub_u32 s17, s2, s19")
    A("s_and_b32 s28, s18, 3\ns_lshr_b32 s29, s18, 2")
    F_W, F_P = 32768, 32768 + 24576
    for r in range(3):
        A(f"v_add_u32 v4, {512*r}, v0\nv_mul_u32_u24 v5, 55189, v4\nv_lshrrev_b32 v5, 20, v5")
        A(f"v_mul_u32_u24 v5, {3456-304}, v5\nv_lshl_add_u32 v{12+r}, v4, 4, v5")
    A(f"s_mul_i32 s32, s17, {64*3456}\ns_mul_i32 s33, s29, 1152\ns_add_u32 s32, s32, s33\ns_mul_i32 s33, s28, 288\ns_add_u32 s32, s32, s33")
    A(f"s_mul_i32 s33, s28, 5184\nv_lshlrev_b32 v15, 4, v0\ns_lshl_b32 s34, s16, 10\ns_add_u32 m0, s34, {F_W}")
    A("s_waitcnt lgkmcnt(0)")
    srd(A, 8, 6, D*3*D*2)
    A(f"buffer_load_dwordx4 v12, s[8:11], s32 offen lds\ns_add_u32 m0, s34, {F_W + 8192}")
    srd(A, 12, 24, H*DH*DH*2)
    A(f"buffer_load_dwordx4 v13, s[8:11], s32 offen lds\ns_add_u32 m0, s34, {F_W + 16384}\ns_cmp_ge_u32 s16, 3\ns_cbranch_scc1 K0_f1")
    A("buffer_load_dwordx4 v14, s[8:11], s32 offen lds")
    A.label("K0_f1")
    A(f"s_add_u32 m0, s34, {F_P}\ns_cmp_ge_u32 s16, 6\ns_cbranch_scc1 K0_f2")
    A("buffer_load_dwordx4 v15, s[12:15], s33 offen lds")
    A.label("K0_f2")
    pf_setup()
    assert CFG.pf1 in (0, 128)
    npf = pf_round(0)
    A("s_lshr_b32 s19, s16, 2\ns_and_b32 s43, s16, 3\ns_lshl_b32 s30, s43, 1\ns_add_u32 s30, s30, s19")
    srd_off(A, 20, 26, WF_OFF, WF_SZ)
    A("v_and_b32 v2, 15, v1\nv_lshrrev_b32 v3, 4, v1")
    A("v_and_b32 v4, 12, v2\nv_add_u32 v4, v4, v2")
    A(f"v_mul_u32_u24 v4, 304, v4\nv_lshl_add_u32 v4, v3, 4, v4\ns_mul_i32 s33, s30, 36\ns_and_b32 s39, s33, 15\ns_sub_u32 s33, s33, s39\ns_add_u32 s33, s33, {F_W}")
    A("v_add_u32 v76, s33, v4\ns_lshr_b32 s39, s39, 1\nv_lshlrev_b32 v11, 3, v3\nv_subrev_u32 v11, s39, v11")
    A("s_mov_b32 s40, 0x00030003\ns_mov_b32 s41, 0x00030003")
    B = 28
    def a_reads():
        A(f"s_waitcnt vmcnt({npf}) lgkmcnt(0)")
        pt(A, "x")
        A("s_barrier")
        for q in range(4):
            A(f"ds_read_b128 {v(12+4*q,4)}, v76 offset:{304*(32*(q>>1) + 4*(q&1))}")
    A("s_cmp_eq_u32 s29, 2\ns_cbranch_scc1 K0_ident")
    A("s_mul_i32 s34, s19, 18\nv_add_u32 v5, s34, v2")
    A("s_lshl_b32 s35, s43, 6")
    for nt in range(2):
        if nt: A("v_add_u32 v5, 16, v5")
        A(f"v_lshrrev_b32 v6, 2, v5\nv_lshlrev_b32 v6, 10, v6\nv_and_b32 v7, 3, v5\nv_lshl_add_u32 v6, v7, 4, v6")
        A(f"v_lshl_add_u32 v6, v3, 8, v6\nv_add_u32 v{52+nt}, s35, v6")
    A("s_lshr_b32 s34, s28, 1\ns_add_u32 s34, s34, 4\ns_and_b32 s35, s28, 1\ns_mul_i32 s35, s35, 9216")
    A("s_cmp_eq_u32 s29, 0\ns_cselect_b32 s34, s34, s28\ns_cselect_b32 s35, s35, 0")
    A(f"s_mov_b32 s42, {f2u(LOG2E)}")
    A(f"v_mul_i32_i24 v5, 36, v11\nv_lshl_add_u32 v5, v2, 1, v5\ns_mul_i32 s33, s30, 648\ns_add_u32 s33, s33, {F_P}\nv_add_u32 v80, s33, v5")
    for q in range(4): A(f"v_add_u32 v5, {2*q}, v11\nv_cmp_gt_u32 {s((36, 44, 58, 60)[q],2)}, 18, v5")
    a_reads()
    for nt in range(2):
        for ii in range(8):
            A(f"ds_read_u16 v{36+8*nt+ii}, v80 offset:{36*ii + 32*nt}")
    A("s_waitcnt lgkmcnt(0)")
    for q in range(8): A(f"v_lshl_or_b32 v{B+q}, v{36+2*q+1}, 16, v{36+2*q}")
    for q in range(8): A(f"v_cndmask_b32 v{B+q}, 0, v{B+q}, {s((36, 44, 58, 60)[q&3],2)}")
    A("s_branch K0_fmm")
    A.label("K0_ident")
    A("v_sub_u32 v5, v2, v11\nv_add_u32 v6, 16, v5")
    A("v_mov_b32 v7, 0x3f80\nv_mov_b32 v8, 0x3f800000")
    for nt in range(2):
        for q in range(4):
            A(f"v_cmp_eq_u32 vcc, {2*q}, v{5+nt}\nv_cmp_eq_u32 s[44:45], {2*q+1}, v{5+nt}\ns_nop 1")
            A(f"v_cndmask_b32 v9, 0, v7, vcc\nv_cndmask_b32 v{B+4*nt+q}, v9, v8, s[44:45]")
    A("v_lshlrev_b32 v6, 8, v3\nv_lshl_add_u32 v6, v2, 4, v6")
    A("s_lshl_b32 s34, s30, 10\nv_add_u32 v52, s34, v6")
    A("s_lshl_b32 s34, s30, 5\ns_add_u32 s34, s34, 8192\nv_add_u32 v53, s34, v6")
    A("s_mov_b32 s34, s28\ns_mov_b32 s35, 9216\ns_mov_b32 s42, 1.0")
    a_reads()
    A("s_waitcnt lgkmcnt(0)")
    A.label("K0_fmm")
    A("s_mul_i32 s34, s34, 18\ns_lshl_b32 s33, s17, 1\ns_add_u32 s34, s34, s33\ns_mul_i32 s34, s34, 18432\ns_add_u32 s34, s34, s35")
    DD = 56
    for kbi in range(2):
        for nt in range(2):
            for a in range(2):
                A(f"{MF} {v(DD+16*kbi+8*nt+4*a,4)}, {v(12+8*kbi+4*a,4)}, {v(B+4*nt,4)}, 0")
    A("s_mov_b32 s43, s42\ns_lshl_b32 s33, s16, 10\nv_lshlrev_b32 v4, 4, v1\nv_add_u32 v5, s33, v4\ns_and_b32 s3, s16, 1\ns_mul_i32 s35, s3, 9216\nv_add_u32 v6, s35, v4")
    A("s_mul_i32 s3, s3, 18432\ns_add_u32 s35, s34, s3\ns_add_u32 s35, s35, 8192\ns_add_u32 s36, s34, 18432")
    for kbi in range(2):
        for nt in range(2):
            d0 = DD+16*kbi+8*nt
            for i in range(4): A(f"v_pk_mul_f32 {v(d0+2*i,2)}, {v(d0+2*i,2)}, s[42:43]")
            o = 36 + 8*kbi + 4*nt
            for i in range(4): A(f"v_cvt_pk_bf16_f32 v{o+i}, v{d0+2*i}, v{d0+2*i+1}")
            if nt == 0: A(f"ds_write_b128 v52, {v(o,4)} offset:{9216*kbi}")
    A("s_mov_b64 exec, s[40:41]\nds_write_b128 v53, v[40:43]\nds_write_b128 v53, v[48:51] offset:9216\ns_mov_b64 exec, -1")
    A("s_waitcnt lgkmcnt(0)\ns_barrier")
    A("ds_read_b128 v[12:15], v5\nds_read_b128 v[16:19], v5 offset:9216\nds_read_b128 v[20:23], v6 offset:8192")
    A(f"s_waitcnt lgkmcnt(2)\nbuffer_store_dwordx4 v[12:15], v5, s[20:23], s34 offen {CFG.auxSt}")
    A(f"s_waitcnt lgkmcnt(1)\nbuffer_store_dwordx4 v[16:19], v5, s[20:23], s36 offen {CFG.auxSt}")
    A("s_waitcnt lgkmcnt(0)\ns_cmp_ge_u32 s16, 2\ns_cbranch_scc1 K0_seam")
    A(f"s_waitcnt lgkmcnt(0)\nbuffer_store_dwordx4 v[20:23], v4, s[20:23], s35 offen {CFG.auxSt}")
    A("s_branch K0_seam")
    A.label("K0_nofold")
    A("s_waitcnt lgkmcnt(0)")
    pf_setup()
    if CFG.pfc:
        A("s_cmp_lt_u32 s2, 120\ns_cbranch_scc1 K0_noc")
        pf_code(A, "K0_ln")
        A.label("K0_noc")
    pf_round(0)
    A("s_waitcnt lgkmcnt(0)\ns_branch K0_seam")
    A.label("K0_ln")
    flag_setup(A)
    wave_id(A, 16)
    A(f"v_mul_u32_u24 v6, {XRS}, v2\nv_lshl_add_u32 v6, v3, 4, v6")
    A(f"v_mul_u32_u24 v7, {HRS}, v2\nv_lshl_add_u32 v7, v3, 4, v7\nv_add_u32 v7, {K0_HL}, v7")
    srd_off(A, 12, 26, XN_OFF, XN_SZ)
    srd_off(A, 20, 26, HT_OFF, HT_SZ)
    A(f"s_mov_b32 s33, {f2u(1.0/576)}\ns_mov_b32 s34, {f2u(1e-5)}")
    A("v_and_b32 v1, 63, v0\nv_and_b32 v2, 15, v1\nv_lshrrev_b32 v3, 4, v1")
    A(f"v_mul_u32_u24 v68, {XRS}, v2\nv_lshl_add_u32 v68, v3, 4, v68\ns_lshl_b32 s3, s16, 6\ns_and_b32 s35, s16, 1\ns_lshl_b32 s36, s35, 6")
    A("v_add_u32 v69, s36, v68\nv_add_u32 v68, s3, v68\nv_lshlrev_b32 v70, 4, v1")
    A("s_lshr_b32 s17, s44, 3\ns_mul_i32 s17, s17, 147456\ns_and_b32 s18, s44, 7\ns_lshl_b32 s18, s18, 10\ns_add_u32 s17, s17, s18")
    A("s_lshl_b32 s18, s35, 13\ns_add_u32 s37, s17, s18\ns_add_u32 s37, s37, 131072\ns_lshl_b32 s18, s16, 13\ns_add_u32 s17, s17, s18")
    A("v_bfe_u32 v4, v1, 2, 2\nv_lshrrev_b32 v5, 5, v1\nv_lshl_add_u32 v4, v5, 3, v4")
    A(f"v_mul_u32_u24 v4, {HRS}, v4\nv_and_b32 v3, 1, v3\nv_lshl_add_u32 v4, v3, 5, v4\nv_and_b32 v44, 3, v1\nv_lshl_add_u32 v4, v44, 3, v4\nv_add_u32 v4, {K0_HL}, v4")
    A("v_add_u32 v72, s36, v4\nv_add_u32 v71, s3, v4")
    A("v_lshlrev_b32 v2, 4, v2\nv_lshl_add_u32 v2, v5, 8, v2")
    A(f"s_mov_b32 s38, {589824-9216}\ns_lshl_b32 s3, s16, 1\ns_lshl_b32 s36, s35, 1\ns_add_u32 s36, s36, 32")
    for n in range(3):
        A(f"v_add_u32 v4, s{3 if n < 2 else 36}, v3")
        if n == 1: A("v_add_u32 v4, 16, v4")
        A(f"v_mul_u32_u24 v44, 57, v4\nv_lshrrev_b32 v44, 9, v44\nv_lshl_add_u32 v4, v4, 10, v2\nv_mad_u32_u24 v{73+n}, v44, s38, v4")
    A("s_lshr_b32 s18, s44, 1\ns_mul_i32 s18, s18, 9216\ns_and_b32 s19, s44, 1\ns_lshl_b32 s19, s19, 9\ns_add_u32 s18, s18, s19")
    def xp(i): return v(X+2*i, 2)
    A("s_waitcnt vmcnt(0)")
    pt(A, "x")
    for i in range(12):
        A(f"v_lshlrev_b32 v{X+2*i}, 16, v{P+i}\nv_and_b32 v{X+2*i+1}, 0xffff0000, v{P+i}")
    A(f"v_pk_add_f32 v[44:45], {xp(0)}, {xp(1)}\nv_pk_add_f32 v[46:47], {xp(2)}, {xp(3)}")
    for i in range(4, 12): A(f"v_pk_add_f32 {v(44+2*(i&1),2)}, {v(44+2*(i&1),2)}, {xp(i)}")
    A("v_pk_add_f32 v[44:45], v[44:45], v[46:47]\nv_add_f32 v44, v44, v45")
    reduce32(A, [44], 52)
    A("v_mul_f32 v44, s33, v44")
    for i in range(12): A(f"v_pk_add_f32 {xp(i)}, {xp(i)}, v[44:45] op_sel_hi:[1,0] neg_lo:[0,1] neg_hi:[0,1]")
    A(f"v_pk_mul_f32 v[48:49], {xp(0)}, {xp(0)}\nv_pk_mul_f32 v[50:51], {xp(1)}, {xp(1)}")
    for i in range(2, 12): A(f"v_pk_fma_f32 {v(48+2*(i&1),2)}, {xp(i)}, {xp(i)}, {v(48+2*(i&1),2)}")
    A("v_pk_add_f32 v[48:49], v[48:49], v[50:51]\nv_add_f32 v48, v48, v49")
    A("v_cndmask_b32 v48, 0, v48, s[30:31]")
    reduce32(A, [48], 52)
    A("v_mul_f32 v48, s33, v48\nv_add_f32 v44, s34, v48\nv_rsq_f32 v44, v44\nv_mov_b32 v49, s34")
    A("v_mul_f32 v48, v48, v44\nv_fma_f32 v48, v48, v44, v49\nv_rsq_f32 v48, v48")
    A("s_mov_b64 exec, s[30:31]")
    for i in range(12): A(f"v_pk_mul_f32 {xp(i)}, {xp(i)}, v[44:45] op_sel_hi:[1,0]")
    for i in range(12): A(f"v_cvt_pk_bf16_f32 v{P+i}, v{X+2*i}, v{X+2*i+1}")
    for j in range(3): A(f"ds_write_b128 v6, {v(P+4*j,4)} offset:{384*j}")
    for i in range(12): A(f"v_pk_mul_f32 {xp(i)}, {xp(i)}, v[48:49] op_sel_hi:[1,0]")
    for i in range(12): A(f"v_cvt_pk_bf16_f32 v{Q+i}, v{X+2*i}, v{X+2*i+1}")
    for j in range(3): A(f"ds_write_b128 v7, {v(Q+4*j,4)} offset:{384*j}")
    A("s_mov_b64 exec, -1\ns_waitcnt lgkmcnt(0)\ns_barrier")
    pt(A, "ln")
    for n in range(2):
        A(f"ds_read_b64_tr_b16 {v(12+8*n,2)}, v71 offset:{512*n}\nds_read_b64_tr_b16 {v(14+8*n,2)}, v71 offset:{512*n + 4*HRS}")
    for n in range(2): A(f"ds_read_b128 {v(8+8*n,4)}, v68 offset:{512*n}")
    A(f"ds_read_b64_tr_b16 v[28:29], v72 offset:1024\nds_read_b64_tr_b16 v[30:31], v72 offset:{1024 + 4*HRS}\nds_read_b128 v[24:27], v69 offset:1024")
    for n in range(2):
        A(f"s_waitcnt lgkmcnt({7-2*n})\nbuffer_store_dwordx4 {v(12+8*n,4)}, v{73+n}, s[20:23], s18 offen {CFG.auxSt}")
    for n in range(2):
        A(f"s_waitcnt lgkmcnt({4-n})\nbuffer_store_dwordx4 {v(8+8*n,4)}, v70, s[12:15], s17 offen {CFG.auxSt}\ns_add_u32 s17, s17, 65536")
    A("s_waitcnt lgkmcnt(0)\ns_cmp_ge_u32 s16, 4\ns_cbranch_scc1 K0_lnend\ns_cmp_ge_u32 s16, 2\ns_cbranch_scc1 K0_lnx")
    A(f"buffer_store_dwordx4 v[28:31], v75, s[20:23], s18 offen {CFG.auxSt}\ns_branch K0_lnend")
    A.label("K0_lnx")
    A(f"buffer_store_dwordx4 v[24:27], v70, s[12:15], s37 offen {CFG.auxSt}")
    A.label("K0_lnend")
    A.label("K0_seam")
    pt(A, "st0")
    tag_make(A)
    A(f"s_lshl_b32 s49, s2, 6\ns_cmp_eq_u32 s16, 0\ns_cselect_b32 s49, s49, {OOB}")
    A(f"s_load_dwordx4 s[4:7], s[0:1], {KA_W1}\ns_load_dwordx2 s[24:25], s[0:1], {KA_WO}\ns_load_dwordx2 s[50:51], s[0:1], {KA_W2}")
    A("s_waitcnt vmcnt(0)\ns_barrier")
    raise_flag(A, 49, 4)
    pt(A, "fl0")
    if CFG.tlb:
        A(f"s_cmp_lg_u32 s16, 1\ns_cbranch_scc1 K0_notlb\nv_and_b32 v4, 63, v0\nv_lshlrev_b32 v4, {CFG.tlb}, v4\ns_waitcnt lgkmcnt(0)")
        for ptr, nb in ((4, S*F*2), (50, S*F*2), (26, FLAG_OFF)):
            srd(A, 8, ptr, nb)
            for q in range(-(-nb // (64 << CFG.tlb))):
                A(f"s_mov_b32 s3, {q*(64 << CFG.tlb)}\nbuffer_load_dword v{SINK}, v4, s[8:11], s3 offen sc1")
        A.label("K0_notlb")
def softmax18(A, PR, dst):
    vals = [r + i for r in PR for i in range(2)]
    EP, EN, MX, MN = 8, 26, 44, 46
    A(f"v_max3_f32 v{MX}, v{vals[0]}, v{vals[1]}, v{vals[2]}\nv_min3_f32 v{MN}, v{vals[0]}, v{vals[1]}, v{vals[2]}")
    for i in range(3, 17, 2):
        A(f"v_max3_f32 v{MX}, v{MX}, v{vals[i]}, v{vals[i+1]}\nv_min3_f32 v{MN}, v{MN}, v{vals[i]}, v{vals[i+1]}")
    A(f"v_max_f32 v{MX}, v{MX}, v{vals[17]}\nv_min_f32 v{MN}, v{MN}, v{vals[17]}")
    for p in range(9):
        A(f"v_pk_add_f32 {v(EP+2*p,2)}, {v(PR[p],2)}, {v(MX,2)} op_sel_hi:[1,0] neg_lo:[0,1] neg_hi:[0,1]")
        A(f"v_pk_add_f32 {v(EN+2*p,2)}, {v(PR[p],2)}, {v(MN,2)} op_sel_hi:[1,0] neg_lo:[1,0] neg_hi:[1,0]")
    for i in range(36): A(f"v_exp_f32 v{EP+i}, v{EP+i}")
    A(f"v_pk_add_f32 {v(MX,2)}, {v(EP,2)}, {v(EP+2,2)}\nv_pk_add_f32 {v(MN,2)}, {v(EN,2)}, {v(EN+2,2)}")
    for p in range(2, 9):
        A(f"v_pk_add_f32 {v(MX,2)}, {v(MX,2)}, {v(EP+2*p,2)}\nv_pk_add_f32 {v(MN,2)}, {v(MN,2)}, {v(EN+2*p,2)}")
    A(f"v_add_f32 v{MX}, v{MX}, v{MX+1}\nv_add_f32 v{MN}, v{MN}, v{MN+1}")
    A(f"v_rcp_f32 v{MX}, v{MX}\nv_rcp_f32 v{MN}, v{MN}\ns_nop 0")
    for p in range(9):
        A(f"v_pk_mul_f32 {v(EP+2*p,2)}, {v(EP+2*p,2)}, {v(MX,2)} op_sel_hi:[1,0]")
        A(f"v_pk_mul_f32 {v(EN+2*p,2)}, {v(EN+2*p,2)}, {v(MN,2)} op_sel_hi:[1,0]")
    for m in range(18): A(f"v_cvt_pk_bf16_f32 v{dst(m)}, v{EP+2*m}, v{EP+2*m+1}")

def pairs(st, j, e):
    return [accr(st, (9*e+p) >> 1, j) + 2*((9*e+p) & 1) for p in range(9)]

PHI_RS = 608
V_LDS = 128*PHI_RS
def gen_k1(A):
    A("s_and_b32 s17, s2, 7\ns_lshr_b32 s18, s2, 3")
    A("s_cmp_ge_u32 s18, 18\ns_cbranch_scc1 K1_notg1")
    A("s_mul_i32 s19, s17, 18\ns_add_u32 s19, s19, s18\ns_and_b32 s22, s19, 3\ns_lshr_b32 s23, s19, 2")
    if CFG.G1: A(f"s_add_u32 s59, s22, s23\ns_and_b32 s59, s59, 3\ns_mul_i32 s59, s59, {CFG.G1//4}")
    A("s_waitcnt lgkmcnt(0)")
    A("s_cmp_ge_u32 s16, 6\ns_cbranch_scc1 K1_ldW\ns_cmp_ge_u32 s16, 4\ns_cbranch_scc1 K1_ldP")
    srd(A, 32, 6, F*2)
    srd_off(A, 36, 26, U_OFF, U_SZ)
    A("v_bfe_u32 v8, v0, 4, 2\nv_lshlrev_b32 v8, 3, v8")
    A("s_lshl_b32 s3, s23, 8\ns_lshl_b32 s17, s16, 6\ns_add_u32 s3, s3, s17")
    A("buffer_load_dwordx2 v[12:13], v8, s[32:35], s3 offen\nbuffer_load_dwordx2 v[14:15], v8, s[32:35], s3 offen offset:32")
    emit_compute_addr(A, 16, "std")
    A("s_waitcnt vmcnt(0)")
    if CFG.pf1b:
        A(f"s_cmp_ge_u32 s2, 128\ns_cbranch_scc1 K1_nopf\ns_and_b32 s47, s2, 0x78\ns_lshr_b32 s47, s47, 1\ns_add_u32 s47, s47, s16\ns_add_u32 s47, s47, {CFG.pf1}")
        srd(A, 52, 4, S*F*2)
        pf_w1_col(A, 46)
        pf_w1(A, 52, 46, 47, 64, CFG.pf1b, 1, 16)
        A.label("K1_nopf")
    for j in range(2):
        A(f"v_lshlrev_b32 v{V_ACC+j*4}, 16, v{12+2*j}\nv_and_b32 v{V_ACC+j*4+1}, 0xffff0000, v{12+2*j}")
        A(f"v_lshlrev_b32 v{V_ACC+j*4+2}, 16, v{13+2*j}\nv_and_b32 v{V_ACC+j*4+3}, 0xffff0000, v{13+2*j}")
    for i in range(8, 72, 2): A(f"v_pk_mov_b32 {v(V_ACC+i,2)}, {v(V_ACC+i%8,2)}, {v(V_ACC+i%8,2)} op_sel:[0,1]")
    emit_compute_loop(A, 32, "std", (True, True), 20, first=lambda: pt(A, "b1"))
    A("s_barrier")
    pt(A, "m1")
    c0 = -2*math.sqrt(2/math.pi)*LOG2E; c1 = c0*0.044715
    A(f"s_mov_b32 s52, {f2u(c1)}\ns_mov_b32 s53, {f2u(c1)}\nv_mov_b32 v8, {f2u(c0)}\nv_mov_b32 v9, {f2u(c0)}")
    A("s_mul_i32 s17, s22, 144\ns_lshl_b32 s3, s23, 2\ns_add_u32 s17, s17, s3\ns_add_u32 s17, s17, s16")
    A(f"s_add_u32 s49, s17, {FU}\ns_lshl_b32 s49, s49, 6\ns_mul_i32 s17, s17, 9216")
    for t in range(9):
        a0 = V_ACC + t*8
        T = 16 + (t % 2) * 12
        for p in range(4): A(f"v_pk_mul_f32 {v(T+2*p,2)}, {v(a0+2*p,2)}, {v(a0+2*p,2)}")
        for p in range(4): A(f"v_pk_fma_f32 {v(T+2*p,2)}, {v(T+2*p,2)}, s[52:53], v[8:9]")
        for p in range(4): A(f"v_pk_mul_f32 {v(T+2*p,2)}, {v(T+2*p,2)}, {v(a0+2*p,2)}")
        for e in range(8): A(f"v_exp_f32 v{T+e}, v{T+e}")
        for p in range(4): A(f"v_pk_add_f32 {v(T+2*p,2)}, {v(T+2*p,2)}, 1.0 op_sel_hi:[1,0]")
        for e in range(8): A(f"v_rcp_f32 v{T+e}, v{T+e}")
        for p in range(4): A(f"v_pk_mul_f32 {v(T+2*p,2)}, {v(T+2*p,2)}, {v(a0+2*p,2)}")
        for p in range(4): A(f"v_cvt_pk_bf16_f32 v{T+8+p}, v{T+2*p}, v{T+2*p+1}")
        if t and t % 4 == 0: A("s_add_u32 s17, s17, 4096")
        A(f"buffer_store_dwordx4 {v(T+8,4)}, v{V_PA}, s[36:39], s17 offen offset:{(t%4)*1024} {CFG.auxSt}")
    A("s_branch K2_c")
    def g_post():
        A("s_lshr_b32 s49, s2, 3\ns_lshl_b32 s49, s49, 2\ns_add_u32 s49, s49, s16\ns_sub_u32 s49, s49, 4")
        pf_w2(A, 50, 49, 72, CFG.pf2g)
    post = (CFG.pf2g, g_post, CFG.pf2pos) if CFG.pf2g else None
    A.label("K1_ldP")
    srd_off(A, 8, 26, HT_OFF, HT_SZ)
    A(f"s_sub_u32 s17, s16, 4\ns_mul_i32 s21, s22, {64*9216}")
    def wait_ln():
        A(f"v_and_b32 v8, 62, v0\nv_and_b32 v9, 1, v0\nv_lshl_add_u32 v8, v8, 1, v9\ns_lshl_b32 s3, s17, 1\ns_add_u32 s3, s3, {F0+128}\nv_add_lshl_u32 v8, v8, s3, 6")
        poll(A, 8, 10, CFG.sl0)
        pt(A, "go1")
    emit_loader_lin(A, 32, 9, POFF, 17, 8, 21, 20, 18, CFG.auxP, CFG.G1, post=post, pre=wait_ln)
    A("s_branch K1_ldseam")
    A.label("K1_ldW")
    srd(A, 12, 4, S*F*2)
    A("s_sub_u32 s17, s16, 6\ns_lshl_b32 s21, s23, 8")
    emit_loader_W(A, 32, "std", 17, 12, 21, 9216, 20, 18, CFG.auxW1, CFG.G1, post=post)
    A.label("K1_ldseam")
    A(f"s_barrier\ns_mov_b32 s49, {OOB}\ns_branch K2_ld")
    A.label("K1_notg1")
    A("s_cmp_ge_u32 s18, 30\ns_cbranch_scc1 K1_spare")
    A("s_sub_u32 s18, s18, 18\ns_and_b32 s22, s18, 3\ns_lshr_b32 s19, s17, 1\ns_lshl_b32 s19, s19, 2\ns_add_u32 s22, s22, s19")
    A("s_lshr_b32 s18, s18, 2\ns_and_b32 s17, s17, 1\ns_lshl_b32 s19, s17, 1\ns_add_u32 s23, s19, s18\ns_add_u32 s17, s17, 4")
    A("s_cmp_eq_u32 s18, 2\ns_cselect_b32 s23, s17, s23")
    if CFG.GA: A(f"s_add_u32 s59, s22, s18\ns_and_b32 s59, s59, 3\ns_mul_i32 s59, s59, {CFG.GA}\ns_lshr_b32 s59, s59, 2")
    A("s_waitcnt lgkmcnt(0)")
    A("s_cmp_ge_u32 s16, 6\ns_cbranch_scc1 K1_ldX\ns_cmp_ge_u32 s16, 4\ns_cbranch_scc1 K1_ldF")
    emit_compute_addr(A, 16, "lin")
    for i in range(0, 144, 2): A(f"v_pk_mov_b32 {v(V_ACC+i,2)}, 0, 0")
    A("s_cmp_ge_u32 s23, 4\ns_cbranch_scc1 K1_q")
    emit_compute_loop(A, 18, "lin", (False, True), 20, first=lambda: pt(A, "b1"))
    pt(A, "m1")
    A("s_barrier")
    QB = 48
    A(f"v_and_b32 v2, 15, v1\nv_lshrrev_b32 v3, 4, v1")
    A(f"s_lshl_b32 s3, s16, 5\nv_add_u32 v4, s3, v2\nv_mul_u32_u24 v4, {PHI_RS}, v4\nv_mul_u32_u24 v5, 144, v3\nv_add_u32 v4, v4, v5")
    A(f"s_mul_i32 s3, s16, 9216\ns_add_u32 s3, s3, {V_LDS}\nv_lshlrev_b32 v5, 4, v1\nv_add_u32 v5, s3, v5")
    for t in range(9):
        o = 84 + 4*(t % 3)
        for j in range(2):
            r = accr(1, t, j)
            A(f"v_cvt_pk_bf16_f32 v{o+2*j}, v{r}, v{r+1}\nv_cvt_pk_bf16_f32 v{o+2*j+1}, v{r+2}, v{r+3}")
        A(f"ds_write_b128 v5, {v(o,4)} offset:{t*1024}")
    for j in range(2):
        for e in range(2):
            softmax18(A, pairs(0, j, e), lambda m: QB + 18*e + m)
        for q in range(9): A(f"ds_write_b128 v4, {v(QB+4*q,4)} offset:{j*16*PHI_RS + 16*q}")
    A(f"v_lshrrev_b32 v6, 2, v1\nv_mul_u32_u24 v6, {PHI_RS}, v6\nv_and_b32 v7, 3, v1\nv_lshl_add_u32 v6, v7, 3, v6")
    A("s_mul_i32 s3, s16, 144\nv_add_u32 v6, s3, v6")
    A("s_lshl_b32 s3, s16, 3\nv_subrev_u32 v7, s3, v6")
    A(f"v_add_u32 v8, {64*PHI_RS}, v6\nv_add_u32 v9, {64*PHI_RS}, v7")
    A(f"s_lshl_b32 s3, s16, 11\ns_add_u32 s3, s3, {V_LDS}\nv_lshlrev_b32 v10, 4, v1\nv_add_u32 v10, s3, v10")
    A(f"v_lshlrev_b32 v11, 8, v3\nv_and_b32 v12, 1, v2\nv_lshl_add_u32 v11, v12, 4, v11")
    A(f"s_lshl_b32 s3, s16, 6\ns_add_u32 s3, s3, {V_LDS + 8192}\nv_add_u32 v11, s3, v11")
    A("s_mov_b32 s40, 0x00030003\ns_mov_b32 s41, 0x00030003\nv_mov_b32 v12, 0x3f803f80")
    A("s_waitcnt lgkmcnt(0)\ns_barrier")
    pt(A, "go1")
    DK, FR = 16, 64
    def afr(ks, e, T): return FR + ks*40 + e*12 + T*4
    def bfr(ks, e, mt): return FR + ks*40 + 24 + e*8 + mt*4
    def dk(e, T, mt): return DK + (e*6 + mt*3 + T)*4
    for ks in range(4):
        for e in range(2):
            A(f"ds_read_b128 {v(bfr(ks,e,1),4)}, v11 offset:{ks*9216 + e*32}")
            A(f"ds_read_b128 {v(bfr(ks,e,0),4)}, v10 offset:{ks*9216 + e*1024}")
            for T in range(3):
                a = (7 if T == 2 else 6) + (2 if ks >= 2 else 0)
                off = (ks & 1)*32*PHI_RS + e*72 + T*32
                A(f"ds_read_b64_tr_b16 {v(afr(ks,e,T),2)}, v{a} offset:{off}")
                A(f"ds_read_b64_tr_b16 {v(afr(ks,e,T)+2,2)}, v{a} offset:{off + 16*PHI_RS}")
    srd_off(A, 36, 26, KVP_OFF, KVP_SZ)
    A("s_lshl_b32 s17, s22, 2\ns_add_u32 s17, s17, s23\ns_mul_i32 s17, s17, 24576")
    A("s_add_u32 s19, s17, 16384\ns_add_u32 s29, s17, 22528")
    A("s_lshr_b32 s18, s16, 1\ns_lshl_b32 s18, s18, 11\ns_and_b32 s3, s16, 1\ns_lshl_b32 s3, s3, 9\ns_add_u32 s18, s18, s3\ns_add_u32 s28, s17, s18\ns_add_u32 s28, s28, 18432")
    A("s_lshl_b32 s18, s16, 12\ns_add_u32 s17, s17, s18")
    A("v_lshlrev_b32 v4, 6, v3\nv_lshl_add_u32 v4, v2, 4, v4\nv_lshlrev_b32 v2, 4, v1")
    A("s_waitcnt lgkmcnt(0)")
    for ks in range(4):
        for e in range(2):
            for i in range(4): A(f"v_cndmask_b32 v{bfr(ks,e,1)+i}, v12, v{bfr(ks,e,1)+i}, s[40:41]")
    A("s_nop 1")
    for ks in range(4):
        for e in range(2):
            for mt in range(2):
                for T in range(3):
                    c = "0" if ks == 0 else v(dk(e,T,mt),4)
                    A(f"{MF} {v(dk(e,T,mt),4)}, {v(afr(ks,e,T),4)}, {v(bfr(ks,e,mt),4)}, {c}")
    A("s_lshl_b32 s18, s16, 4\ns_lshl_b64 s[42:43], 0xffff, s18\ns_mov_b32 s44, 0x000f000f\ns_mov_b32 s45, 0x000f000f\ns_nop 7")
    for e in range(2):
        for T in range(2):
            A(f"buffer_store_dwordx4 {v(dk(e,T,0),4)}, v2, s[36:39], s17 offen offset:{e*2048 + T*1024} sc1")
    A("s_mov_b64 exec, s[44:45]")
    for e in range(2):
        for T in range(2):
            A(f"buffer_store_dwordx4 {v(dk(e,T,1),4)}, v4, s[36:39], s28 offen offset:{e*256 + T*1024} sc1")
    A("s_mov_b64 exec, s[42:43]")
    for e in range(2):
        A(f"buffer_store_dwordx4 {v(dk(e,2,0),4)}, v2, s[36:39], s19 offen offset:{e*1024} sc1")
    A("s_and_b64 exec, s[42:43], s[44:45]")
    for e in range(2):
        A(f"buffer_store_dwordx4 {v(dk(e,2,1),4)}, v4, s[36:39], s29 offen offset:{e*1024} sc1")
    A("s_mov_b64 exec, -1")
    A(f"s_lshl_b32 s17, s23, 4\ns_add_u32 s17, s17, {FP}\ns_add_u32 s18, s17, s22\ns_lshl_b32 s18, s18, 6\ns_mov_b32 s49, {OOB}")
    A("s_waitcnt vmcnt(0)\ns_barrier")
    pt(A, "kvp")
    A("s_cmp_lg_u32 s16, 0\ns_cbranch_scc1 K2_c")
    raise_flag(A, 18, 4)
    A("s_cmp_ge_u32 s22, 12\ns_cbranch_scc1 K2_c")
    A("v_and_b32 v3, 15, v1\nv_add_lshl_u32 v3, v3, s17, 6")
    poll(A, 3, 4, CFG.slk)
    srd_off(A, 12, 26, KVF_OFF, KVF_SZ)
    A("s_mul_i32 s18, s23, 12\ns_add_u32 s18, s18, s22")
    A(f"s_add_u32 s49, s18, {FK}\ns_lshl_b32 s49, s49, 6\ns_lshl_b32 s17, s18, 11\ns_lshl_b32 s18, s18, 10")
    for tb in range(16):
        A(f"buffer_load_dwordx4 {v(8+8*tb,4)}, v2, s[36:39], s17 offen sc1\nbuffer_load_dwordx4 {v(12+8*tb,4)}, v2, s[36:39], s17 offen offset:1024 sc1")
        A(f"s_add_u32 s17, s17, {48*2048}")
    for tb in range(1, 16):
        A(f"s_waitcnt vmcnt({2*(15-tb)})")
        for p in range(4): A(f"v_pk_add_f32 {v(8+2*p,2)}, {v(8+2*p,2)}, {v(8+8*tb+2*p,2)}")
    for p in range(4): A(f"v_cvt_pk_bf16_f32 v{4+p}, v{8+2*p}, v{9+2*p}")
    A(f"buffer_store_dwordx4 v[4:7], v2, s[12:15], s18 offen {CFG.auxSt}")
    A("s_branch K2_c")
    A.label("K1_q")
    emit_compute_loop(A, 18, "lin", (False, False), 20, first=lambda: pt(A, "b1"))
    A("s_barrier")
    pt(A, "m1")
    A(f"s_lshl_b32 s49, s22, 1\ns_add_u32 s49, s49, s23\ns_lshl_b32 s49, s49, 2\ns_add_u32 s49, s49, s16\ns_add_u32 s49, s49, {FQ-16}\ns_lshl_b32 s49, s49, 6")
    srd_off(A, 36, 26, PHIQ_OFF, PHIQ_SZ)
    A("v_and_b32 v2, 15, v1\nv_lshrrev_b32 v3, 4, v1\nv_lshlrev_b32 v3, 11, v3\nv_lshl_add_u32 v3, v2, 4, v3")
    A("v_lshlrev_b32 v2, 4, v1\nv_add_u32 v2, 8192, v2")
    A("s_lshl_b32 s17, s22, 3\ns_lshl_b32 s18, s16, 1\ns_add_u32 s17, s17, s18\ns_lshl_b32 s17, s17, 1\ns_add_u32 s17, s17, s23\ns_sub_u32 s17, s17, 4\ns_mul_i32 s17, s17, 18432")
    for j in range(2):
        for st in range(2):
            for e in range(2):
                softmax18(A, pairs(st, j, e), lambda m: (QB + e*16 + 4*((m & 7) >> 1) + (m & 1) + 2*(m >> 3)) if m < 16 else QB + 32 + 2*e + m - 16)
                for gg in range(4):
                    A(f"buffer_store_dwordx4 {v(QB+e*16+4*gg,4)}, v3, s[36:39], s17 offen offset:{e*1024 + gg*256} {CFG.auxSt}")
            A(f"buffer_store_dwordx4 {v(QB+32,4)}, v2, s[36:39], s17 offen {CFG.auxSt}")
            A(f"s_add_u32 s17, s17, {9216 if st == 0 else 36864 - 9216}")
    A("s_branch K2_c")
    A.label("K1_ldF")
    srd_off(A, 8, 26, WF_OFF, WF_SZ)
    A(f"s_sub_u32 s17, s16, 4\ns_mul_i32 s21, s23, {18*18432}")
    def wait_fold():
        A("s_lshl_b32 s3, s17, 2\ns_add_u32 s3, s3, s23\ns_add_u32 s3, s3, 4\ns_lshl_b32 s19, s23, 1\ns_add_u32 s19, s19, s17\ns_sub_u32 s19, s19, 8")
        A("s_cmp_ge_u32 s23, 4\ns_cselect_b32 s3, s19, s3\ns_mul_i32 s3, s3, 9\nv_and_b32 v8, 63, v0\nv_min_u32 v8, 8, v8\nv_add_lshl_u32 v8, v8, s3, 6")
        poll(A, 8, 10, CFG.sl0)
        pt(A, "go1")
    emit_loader_lin(A, 18, 9, POFF, 17, 8, 21, 20, 18, CFG.auxP, CFG.GA, pre=wait_fold)
    A("s_branch K1_ldtail")
    A.label("K1_ldX")
    srd_off(A, 8, 26, XN_OFF, XN_SZ)
    A(f"s_sub_u32 s17, s16, 6\ns_mul_i32 s21, s22, {18*8192}")
    def wait_xn():
        A(f"s_lshl_b32 s3, s22, 1\ns_add_u32 s3, s3, s17\ns_lshl_b32 s3, s3, 2\ns_add_u32 s3, s3, {F0+128}\nv_and_b32 v8, 3, v0\nv_add_lshl_u32 v8, v8, s3, 6")
        poll(A, 8, 10, CFG.sl0)
        pt(A, "go1")
    emit_loader_lin(A, 18, 4, WOFF, 17, 8, 21, 20, 18, CFG.auxP, CFG.GA, pre=wait_xn)
    A.label("K1_ldtail")
    A("s_lshr_b32 s17, s2, 3\ns_sub_u32 s17, s17, 18\ns_lshl_b32 s17, s17, 2\ns_add_u32 s17, s17, s16\ns_sub_u32 s17, s17, 4")
    A(f"s_mov_b32 s49, {OOB}\ns_barrier\ns_cmp_ge_u32 s23, 4\ns_cbranch_scc1 K1_ldq")
    if CFG.pf2kv:
        A(f"s_add_u32 s17, s17, {72*CFG.pf2g + 16*CFG.pf2s}")
        pf_w2(A, 50, 17, 32, CFG.pf2kv)
    A("s_barrier\ns_barrier\ns_branch K2_ld")
    A.label("K1_ldq")
    if CFG.pf2q:
        A(f"s_add_u32 s17, s17, {72*CFG.pf2g + 16*CFG.pf2s + 32*CFG.pf2kv - 32}")
        pf_w2(A, 50, 17, 16, CFG.pf2q)
    A("s_branch K2_ld")
    A.label("K1_spare")
    A("s_waitcnt lgkmcnt(0)")
    if CFG.pf1s or CFG.pf2s:
        A("s_sub_u32 s41, s18, 30\ns_lshl_b32 s41, s41, 3\ns_add_u32 s41, s41, s16")
        A(f"s_add_u32 s43, s41, {72*CFG.pf2g}")
    if CFG.pf1s:
        srd(A, 36, 4, S*F*2)
        pf_w1_col(A, 40)
        A(f"s_add_u32 s41, s41, {320 - 16*CFG.pf1s}\nv_and_b32 v56, 63, v0")
        pf_w1(A, 36, 40, 41, 16, CFG.pf1s, 56, 57, lim=1)
    pf_w2(A, 50, 43, 16, CFG.pf2s, lim=1)
    pt(A, "m1")
    A(f"s_mov_b32 s49, {OOB}\ns_cmp_lt_u32 s16, 5\ns_cbranch_scc1 K1_wot\ns_cmp_lg_u32 s16, 7\ns_cbranch_scc1 K2_ld\ns_cmp_lg_u32 s2, 255\ns_cbranch_scc1 K2_ld")
    for q in range(4):
        A(f"v_and_b32 v8, 63, v0\nv_add_u32 v8, {F0 + 64*q}, v8\nv_lshlrev_b32 v8, 6, v8")
        poll(A, 8, 10)
    A(f"s_mov_b32 s49, {FE*64}\ns_branch K2_ld")
    A.label("K1_wot")
    A("s_sub_u32 s18, s18, 30\ns_lshl_b32 s17, s17, 1\ns_add_u32 s17, s17, s18\ns_and_b32 s22, s17, 3\ns_lshr_b32 s23, s17, 2")
    A("v_and_b32 v1, 63, v0\nv_and_b32 v2, 15, v1\nv_lshrrev_b32 v3, 4, v1\nv_lshlrev_b32 v2, 1, v2")
    A("v_mul_u32_u24 v4, 4608, v3\nv_add_u32 v4, v4, v2")
    A(f"v_mul_u32_u24 v5, 1152, v3\nv_add_u32 v5, v5, v2\nv_add_u32 v5, {12*1152}, v5")
    A(f"v_cmp_gt_u32 vcc, 2, v3\nv_mov_b32 v6, {OOB}\ns_nop 0\nv_cndmask_b32 v5, v6, v5, vcc")
    A("s_waitcnt lgkmcnt(0)")
    srd(A, 8, 24, D*D*2)
    srd_off(A, 12, 26, WOT_OFF, WOT_SZ)
    A(f"s_mul_i32 s28, s23, {144*1152}\ns_mul_i32 s29, s22, 288\ns_add_u32 s28, s28, s29")
    for i in range(8):
        A(f"s_lshl_b32 s29, s16, 3\ns_add_u32 s29, s29, {i}\ns_mul_i32 s30, s29, 205\ns_lshr_b32 s30, s30, 10")
        A("s_mul_i32 s31, s30, 13\ns_add_u32 s31, s31, s29\ns_mul_i32 s31, s31, 1152\ns_add_u32 s31, s31, s28")
        A("s_mul_i32 s30, s30, 5\ns_sub_u32 s30, s29, s30\ns_cmp_eq_u32 s30, 4\ns_cselect_b64 vcc, -1, 0")
        A("v_cndmask_b32 v6, v4, v5, vcc")
        for rt in range(9):
            A(f"buffer_load_ushort v{8+rt*8+i}, v6, s[8:11], s31 offen offset:{rt*32}")
        if i == 3: A("s_waitcnt vmcnt(20)")
    A("s_lshl_b32 s28, s22, 2\ns_add_u32 s28, s28, s23\ns_mul_i32 s28, s28, 5\ns_add_u32 s28, s28, s16")
    A(f"s_add_u32 s49, s28, {FW}\ns_lshl_b32 s49, s49, 6\ns_mul_i32 s28, s28, 9216")
    A("v_lshlrev_b32 v2, 4, v1")
    A("s_waitcnt vmcnt(0)")
    for rt in range(9):
        for q in range(4): A(f"v_lshl_or_b32 v{80+rt*4+q}, v{8+rt*8+2*q+1}, 16, v{8+rt*8+2*q}")
        if rt and rt % 4 == 0: A("s_add_u32 s28, s28, 4096")
        A(f"buffer_store_dwordx4 {v(80+rt*4,4)}, v2, s[12:15], s28 offen offset:{(rt%4)*1024} {CFG.auxSt}")
    A("s_cmp_ge_u32 s16, 4\ns_cbranch_scc1 K2_ld")

def k2_decode(A):
    A("s_and_b32 s17, s2, 7\ns_lshr_b32 s18, s2, 3")
    A("s_lshr_b32 s28, s17, 1\ns_and_b32 s22, s18, 3")
    A("s_and_b32 s17, s17, 1\ns_lshl_b32 s17, s17, 3\ns_lshr_b32 s18, s18, 2\ns_add_u32 s23, s17, s18")
RED_RS = 592
def red_base(w): return w*32*RED_RS if w < 3 else 3*STAGE2
def k2_enter(A):
    A(f"s_load_dwordx4 s[4:7], s[0:1], {KA_W2}\ns_load_dwordx2 s[44:45], s[0:1], {KA_X}\ns_load_dwordx2 s[46:47], s[0:1], {KA_OUT}")
    k2_decode(A)
def gen_k2(A):
    DBG["on"] = True
    KV, MB, CI, PH, TM, PK, O = 8, 80, 92, 96, 132, 168, 204
    A.label("K2_c")
    pt(A, "e1")
    k2_enter(A)
    emit_compute_addr(A, 16, "pi")
    for i in range(0, 72, 2): A(f"v_pk_mov_b32 {v(V_ACC+i,2)}, 0, 0")
    A("s_waitcnt vmcnt(0)")
    raise_flag(A, 49, 8)
    if CFG.bgo: A("s_barrier")
    pt(A, "fl1")
    srd_off(A, 36, 26, PART_OFF, PART_SZ)
    A("s_lshl_b32 s17, s23, 2\ns_add_u32 s17, s17, s22\ns_lshl_b32 s18, s17, 4")
    A("s_lshl_b32 s30, s16, 2\ns_add_u32 s30, s30, s28\ns_add_u32 s30, s30, s18\ns_lshl_b32 s31, s28, 2\ns_add_u32 s31, s31, s16\ns_add_u32 s31, s31, s18")
    A(f"s_mul_i32 s32, s30, 9216\ns_mul_i32 s33, s31, 9216\ns_add_u32 s30, s30, {FX}\ns_lshl_b32 s30, s30, 6\ns_add_u32 s31, s31, {FX}\ns_lshl_b32 s31, s31, 6")
    A(f"s_cmp_eq_u32 s16, s28\ns_cselect_b32 s3, {OOB}, 0\ns_cselect_b32 s30, {OOB}, s30\nv_or_b32 v240, s3, v{V_PA}")
    A(f"s_add_u32 s34, s32, 4096\ns_add_u32 s35, s32, 8192")
    A("s_waitcnt lgkmcnt(0)")
    k2_final_prep(A, 1)
    A(f"s_mul_i32 s3, s16, 9216\nv_add_u32 v241, s3, v{V_PA}")
    A("v_and_b32 v8, 15, v1\nv_cmp_eq_u32 vcc, 0, v8\nv_cmp_eq_u32 s[40:41], 4, v8\nv_lshrrev_b32 v9, 4, v1\nv_lshlrev_b32 v10, 6, v9")
    A(f"v_cndmask_b32 v11, 32, 0, vcc\nv_cndmask_b32 v11, v11, 16, s[40:41]\ns_add_u32 s3, s3, {3*STAGE}\nv_add3_u32 v242, v11, v10, s3")
    A("v_bfe_u32 v10, v1, 2, 2\nv_cmp_eq_u32 vcc, v10, v9\nv_and_b32 v10, 1, v1\nv_lshlrev_b32 v10, 4, v10\nv_mov_b32 v11, 0x3f80")
    A("v_lshlrev_b32 v11, v10, v11\nv_cndmask_b32 v11, 0, v11, vcc\nv_and_b32 v10, 2, v1\nv_cmp_eq_u32 vcc, 0, v10")
    A(f"v_mul_u32_u24 v8, {RED_RS}, v8\nv_lshl_add_u32 v8, v9, 4, v8")
    A("v_cndmask_b32 v252, 0, v11, vcc\nv_cndmask_b32 v253, v11, 0, vcc")
    A(f"s_mul_i32 s17, s16, {32*RED_RS}\ns_cmp_eq_u32 s16, 3\ns_cselect_b32 s17, {red_base(3)}, s17\nv_add_u32 v254, s17, v8")
    for hp in range(4): A(f"s_mov_b32 s{8+2*hp}, {0xffff << (16*hp) & 0xffffffff}\ns_mov_b32 s{9+2*hp}, {(0xffff << (16*hp)) >> 32}")
    def pub(t):
        L = [f"v_cvt_pk_bf16_f32 v{PK+4*t+p}, v{V_ACC+8*t+2*p}, v{V_ACC+8*t+2*p+1}" for p in range(4)]
        L.append(f"buffer_store_dwordx4 {v(PK+4*t,4)}, v240, s[36:39], s{(32, 34, 35)[t//4]} offen offset:{(t%4)*1024} sc1")
        return L
    lastfill = [""]*9
    for t in range(4): lastfill += ["\n".join(pub(t)[:3]), "\n".join(pub(t)[3:])]
    lastfill += ["\n".join(pub(4))]
    emit_compute_loop(A, 18, "pi", (False, False), 20, first=lambda: pt(A, "b2"), lastfill=lastfill)
    pt(A, "m2")
    def vread(stage, dst):
        slot = stage % NST
        return [f"ds_read_b128 {v(dst+4*b,4)}, v{5 if slot >= 2 else 4} offset:{(slot & 1)*STAGE + b*1024}" for b in range(9)]
    A(f"v_mov_b32 v4, v241\nv_add_u32 v5, {2*STAGE}, v241")
    if CFG.pubpos == 0:
        for t in range(5, 9):
            for x in pub(t): A(x)
    A("s_barrier")
    for r in vread(18, KV): A(r)
    if CFG.pubpos == 1:
        for t in range(5, 9):
            for x in pub(t): A(x)
    pt(A, "pub")
    A(f"v_mov_b32 v{MB+2}, 0\nv_mov_b32 v{MB+3}, 0\nv_mov_b32 v{CI}, 0\nv_mov_b32 v{CI+1}, {f2u(1e-6)}\nv_mov_b32 v{CI+2}, 0\nv_mov_b32 v{CI+3}, 0")
    A("s_waitcnt lgkmcnt(0)")
    pt(A, "v0")
    A("s_barrier")
    for b in range(9): A(f"ds_read_b128 {v(KV+36+4*b,4)}, v242 offset:{b*256}")
    A("s_waitcnt lgkmcnt(0)")
    pt(A, "v1")
    def o_mask(hp):
        return [f"v_cndmask_b32 v{MB+(i if i < 2 else i+2)}, 0, v{PH+32+i}, {s(8+2*hp,2)}" for i in range(4)]
    def o_mfma(hp):
        T = TM + 16*(hp & 1)
        a = [f"{MF} {v(T+8*e+4*mt,4)}, {v(KV+36*mt+4*(2*hp+e),4)}, {v(PH+4*(2*hp+e),4)}, {v(CI,4) if mt else 0}" for e in range(2) for mt in (1, 0)]
        b = [f"{MF} {v(T+8*e+4*mt,4)}, {v(KV+36*mt+32,4)}, {v(MB+2*e,4)}, {v(T+8*e+4*mt,4)}" for e in range(2) for mt in (1, 0)]
        return a, b
    def o_valu(hp, j):
        T = TM + 16*(hp & 1)
        L = [f"v_rcp_f32 v{T+8*e+6}, v{T+8*e+5}" for e in range(2)]
        L += ["s_nop 0"]
        for e in range(2):
            L += [f"v_pk_mul_f32 {v(T+8*e+2*q,2)}, {v(T+8*e+2*q,2)}, {v(T+8*e+6,2)} op_sel_hi:[1,0]" for q in range(2)]
            L += [f"v_mul_f32 v{T+8*e+4}, v{T+8*e+4}, v{T+8*e+6}"]
        vals = [T+8*e+i for e in range(2) for i in range(5)]
        for p in range(5):
            pi = 5*hp + p
            L.append(f"v_cvt_pk_bf16_f32 v{O + (pi>>2)*8 + 4*j + (pi&3)}, v{vals[2*p]}, v{vals[2*p+1]}")
        return L
    def ophase(j):
        A("s_waitcnt lgkmcnt(0)")
        if j == 0: pt(A, "v2")
        for hp in range(4):
            a, b = o_mfma(hp)
            mk = o_mask(hp)
            va = o_valu(hp-1, j) if hp else []
            A(a[0]); A(mk[0]); A(mk[1]); A(a[1]); A(mk[2]); A(mk[3]); A(a[2]); A(a[3])
            k = 0
            for i, m in enumerate([None] + b):
                if m: A(m)
                n = (len(va) - k + (4 - i)) // (5 - i)
                for x in va[k:k+n]: A(x)
                k += n
        A("s_nop 5")
        for x in o_valu(3, j): A(x)
    def flag_x():
        A("s_waitcnt vmcnt(0)")
        raise_flag(A, 30, 88)
    A("s_barrier")
    for r in vread(20, PH): A(r)
    if CFG.flagpos == 0: flag_x()
    ophase(0)
    pt(A, "o0")
    if CFG.flagpos == 1: flag_x()
    A("s_barrier")
    for r in vread(21, PH): A(r)
    ophase(1)
    pt(A, "o1")
    if CFG.flagpos == 2: flag_x()
    A("s_barrier")
    for r in vread(22, KV): A(r)
    SM = MB
    A(f"v_mov_b32 v{SM}, v252\nv_mov_b32 v{SM+1}, v253\nv_mov_b32 v{SM+4}, v252\nv_mov_b32 v{SM+5}, v253\nv_mov_b32 v3, s31")
    for u in range(4):
        M = [f"{MF} {acc(0,t,j)}, {v(KV+36*(u&1)+4*t,4)}, {v(O+8*u+4*j,4)}, {acc(0,t,j) if u else 0}" for t in range(9) for j in range(2)]
        if u == CFG.pollpos: A("buffer_load_dwordx2 v[6:7], v3, s[96:99], 0 offen sc1")
        block(A, M, vread(23+u, KV+36*((u+1)&1)), True)
        pt(A, f"u{u}")
        if u == CFG.pollpos:
            L = A.newlabel("Lr"); L2 = A.newlabel("Lr")
            A(f"s_cmp_eq_u32 s16, s28\ns_cbranch_scc1 {L}")
            A(f"s_waitcnt vmcnt(0)\nv_cmp_ne_u64 vcc, s[100:101], v[6:7]\ns_nop 4\ns_cbranch_vccz {L2}")
            poll(A, 3, 6)
            A.label(L2)
            for t in range(9):
                if t and t % 4 == 0: A("s_add_u32 s33, s33, 4096")
                A(f"buffer_load_dwordx4 {v(PK+4*t,4)}, v{V_PA}, s[36:39], s33 offen offset:{(t%4)*1024} sc1")
            A.label(L)
            pt(A, "poll")
    A("s_waitcnt lgkmcnt(0)")
    def wr(t): return "\n".join(f"ds_write_b128 v254, {acc(0,t,j)} offset:{j*16*RED_RS + t*64}" for j in range(2))
    for t in range(9):
        for j in range(2): A(f"{MF} {acc(0,t,j)}, {v(KV+4*t,4)}, {v(O+32+4*j,4)}, {acc(0,t,j)}")
        A(f"s_waitcnt vmcnt({8-t})")
        for j in range(2): A(f"{MF} {acc(0,t,j)}, {v(SM+2*j,4)}, {v(PK+4*t,4)}, {acc(0,t,j)}")
        if t >= 2: A(wr(t-2))
    pt(A, "add")
    A("s_nop 0")
    A(wr(7))
    A("s_nop 3")
    A(wr(8))
    A.label("K2_fin")
    A("s_waitcnt lgkmcnt(0)\ns_barrier")
    pt(A, "red")
    def fin(n):
        R = 8
        FI = (244, 232)[n]; XB = FI + 4
        for w in range(4):
            a, o = (FI+1, red_base(w)) if w < 3 else (FI+2, 0)
            A(f"ds_read_b128 {v(R+8*w,4)}, v{a} offset:{o}\nds_read_b128 {v(R+8*w+4,4)}, v{a} offset:{o+16}")
        if n == 0: A("s_waitcnt vmcnt(0)")
        for i in range(4):
            A(f"v_lshlrev_b32 v{40+2*i}, 16, v{XB+i}\nv_and_b32 v{41+2*i}, 0xffff0000, v{XB+i}")
        A(f"v_lshlrev_b32 v48, 16, v{FI+3}")
        for p in range(4): A(f"v_pk_add_f32 {v(40+2*p,2)}, {v(40+2*p,2)}, v[48:49] op_sel_hi:[1,0]")
        for w in range(4):
            A(f"s_waitcnt lgkmcnt({2*(3-w)})")
            for p in range(4): A(f"v_pk_add_f32 {v(40+2*p,2)}, {v(40+2*p,2)}, {v(R+8*w+2*p,2)}")
        for p in range(4): A(f"v_cvt_pk_bf16_f32 v{52+4*n+p}, v{40+2*p}, v{41+2*p}")
        A(f"buffer_store_dwordx4 {v(52+4*n,4)}, v{FI}, s[52:55], s50 offen {CFG.auxOut}")
    fin(0)
    A("s_cmp_lg_u32 s16, 7\ns_cbranch_scc1 K2_done")
    fin(1)
    A.label("K2_done")
    pt(A, "fin")
    stamp_flush(A)
    A("s_endpgm")
    A.label("K2_ld")
    pt(A, "e1")
    k2_enter(A)
    A(f"s_cmp_eq_u32 s49, {OOB}\ns_cbranch_scc1 K2_ld1\ns_waitcnt vmcnt(0)")
    raise_flag(A, 49, 8)
    A.label("K2_ld1")
    if CFG.G2: A(f"s_add_u32 s59, s22, s23\ns_and_b32 s59, s59, 3\ns_mul_i32 s59, s59, {CFG.G2}\ns_lshr_b32 s59, s59, 2")
    A(f"s_sub_u32 s29, s16, 4\ns_mul_i32 s34, s29, 9216")
    A(f"s_mul_i32 s30, s29, 12288\ns_add_u32 s30, s30, {KVF_OFF}")
    A(f"s_lshl_b32 s31, s23, 2\ns_add_u32 s31, s31, s28\ns_mul_i32 s31, s31, 73728\ns_add_u32 s31, s31, s34\ns_add_u32 s31, s31, {PHIQ_OFF}")
    A(f"s_lshl_b32 s32, s22, 2\ns_add_u32 s32, s32, s29\ns_mul_i32 s32, s32, 46080\ns_add_u32 s32, s32, {WOT_OFF}")
    A("v_and_b32 v24, 63, v0\nv_lshlrev_b32 v20, 4, v24\nv_add_u32 v21, 4096, v20\nv_add_u32 v22, 8192, v20")
    srd(A, 36, 26, PART_OFF)
    A("s_waitcnt lgkmcnt(0)")
    k2_final_prep(A, 2)
    def tail(so, step, nb=9):
        def emit(slot):
            for j in range(nb):
                if j % 4 == 0: A(f"s_add_u32 m0, s34, {slot*STAGE + (j//4)*4096}\ns_nop 0")
                A(f"buffer_load_dwordx4 v{20+j//4}, s[36:39], s{so} offen offset:{(j%4)*1024} sc1 lds")
            A(f"s_add_u32 s{so}, s{so}, {step}")
        return (nb, emit)
    extra = [tail(30, 9216), tail(30, 0, 3)] + [tail(31, 36864)]*2 + [tail(32, 9216)]*5
    A("s_cmp_ge_u32 s16, 6\ns_cbranch_scc1 K2_ldW")
    srd_off(A, 8, 26, U_OFF, U_SZ)
    A(f"s_sub_u32 s17, s16, 4\ns_lshl_b32 s21, s22, 2\ns_add_u32 s21, s21, s28\ns_mul_i32 s40, s21, 36\ns_mul_i32 s21, s21, {36*9216}")
    def wait_u():
        A(f"s_add_u32 s40, s40, s17\ns_add_u32 s40, s40, {FU}\nv_lshl_add_u32 v8, v24, 1, s40")
        A(f"s_mul_i32 s40, s17, 24\ns_add_u32 s40, s40, {FK-18}\nv_add_u32 v9, s40, v24\nv_cmp_gt_u32 vcc, 18, v24")
        A(f"s_lshl_b32 s40, s22, 1\ns_add_u32 s40, s40, s17\ns_mul_i32 s40, s40, 10\ns_add_u32 s40, s40, {FW-42}\nv_cndmask_b32 v8, v9, v8, vcc")
        A("v_add_u32 v9, s40, v24\nv_cmp_gt_u32 vcc, 42, v24")
        A(f"s_lshl_b32 s40, s23, 1\ns_add_u32 s40, s40, s17\ns_lshl_b32 s40, s40, 2\ns_add_u32 s40, s40, s28\ns_add_u32 s40, s40, {FQ}\nv_cndmask_b32 v8, v9, v8, vcc")
        A("v_mov_b32 v9, s40\nv_cmp_gt_u32 vcc, 52, v24\ns_nop 1\nv_cndmask_b32 v8, v9, v8, vcc\nv_lshlrev_b32 v8, 6, v8")
        if CFG.bgo: A("s_barrier")
        poll2(A, 8, 10, CFG.sl1, CFG.sl2)
        pt(A, "go2")
    emit_loader_lin(A, 18, 9, POFF, 17, 8, 21, 20, 18, CFG.auxP, CFG.G2, extra=extra, pre=wait_u)
    A("s_branch K2_fin")
    A.label("K2_ldW")
    srd(A, 12, 4, S*F*2)
    A(f"s_sub_u32 s17, s16, 6\ns_mul_i32 s21, s28, {1152*4096}\ns_lshl_b32 s18, s23, 8\ns_add_u32 s21, s21, s18")
    every = None
    if CFG.pft:
        A("v_mul_u32_u24 v25, 1920, v24")
        A(f"s_lshl_b32 s40, s23, 2\ns_add_u32 s40, s40, s28\ns_lshl_b32 s40, s40, 2\ns_add_u32 s40, s40, s22\ns_mul_i32 s40, s40, 18432\ns_add_u32 s40, s40, {PHIQ_OFF}")
        A(f"s_and_b32 s41, s23, 7\ns_lshl_b32 s42, s22, 3\ns_add_u32 s41, s41, s42\ns_mul_i32 s42, s41, 1536\ns_add_u32 s42, s42, {KVF_OFF}\ns_mul_i32 s41, s41, 23040\ns_add_u32 s41, s41, {WOT_OFF}")
        A(f"s_cmp_eq_u32 s16, 6\ns_cselect_b32 s40, s40, s41\ns_cselect_b32 s41, 10, 12\ns_cselect_b32 s48, 0x7ff, -1\ns_and_b32 s48, s48, 0xfff\ns_mov_b32 s49, 0")
        A(f"v_cmp_gt_u32 vcc, s41, v24\nv_add_u32 v25, s40, v25\nv_mov_b32 v26, s42\ns_mov_b32 s42, 0\nv_cndmask_b32 v26, v26, v25, vcc\nv_mov_b32 v25, {OOB}")
        def every():
            A(f"s_mov_b64 exec, s[48:49]\nbuffer_load_dword v{SINK}, v25, s[36:39], s42 offen sc1\ns_mov_b64 exec, -1\ns_add_u32 s42, s42, 128")
    def mid():
        if CFG.pft: A("v_mov_b32 v25, v26\ns_mov_b32 s42, 0")
        if CFG.bgo == 1: A("s_barrier")
    if CFG.bgo == 2: A("s_barrier")
    emit_loader_W(A, 18, "pi", 17, 12, 21, 4096, 20, 18, CFG.auxW2, CFG.G2, extra=extra, every=every, mid=mid)
    A("s_branch K2_fin")
    A.label("K_end")
    A("s_endpgm")
    DBG["on"] = False

def k2_final_prep(A, nitems):
    srd(A, 8, 44, S*D*2)
    srd(A, 12, 6, S*2)
    srd(A, 52, 46, S*D*2)
    A("s_lshl_b32 s50, s23, 2\ns_add_u32 s50, s50, s28\ns_lshl_b32 s51, s50, 6\ns_mul_i32 s50, s50, 36864\ns_mul_i32 s17, s22, 288\ns_add_u32 s50, s50, s17")
    for n in range(nitems):
        FI = (244, 232)[n]; XB = FI + 4
        if n: A(f"v_mov_b32 v{FI}, {OOB}\ns_cmp_lg_u32 s16, 7\ns_cbranch_scc1 K2_fp1")
        A("v_mov_b32 v252, v0" if n == 0 else "v_and_b32 v252, 63, v0\nv_add_u32 v252, 512, v252")
        A("v_mul_u32_u24 v253, 3641, v252\nv_lshrrev_b32 v253, 16, v253\nv_mul_u32_u24 v254, 18, v253\nv_sub_u32 v254, v252, v254")
        A(f"v_mul_u32_u24 v252, 1152, v253\nv_lshl_add_u32 v{FI}, v254, 4, v252")
        A(f"v_mul_u32_u24 v252, {RED_RS}, v253\nv_lshl_add_u32 v{FI+1}, v254, 5, v252\nv_add_u32 v{FI+2}, {red_base(3)}, v{FI+1}")
        A("v_lshlrev_b32 v253, 1, v253")
        A(f"buffer_load_dwordx4 {v(XB,4)}, v{FI}, s[8:11], s50 offen\nbuffer_load_ushort v{FI+3}, v253, s[12:15], s51 offen")
        if n: A.label("K2_fp1")

HEADER = open("parallel_sum__linear_kernel_hedgehog__mixer_token_mlp__prompt.s.ref").read().split("; Override launch")[0] if __name__ == "__main__" else ""

def gen(**kw):
    global CFG
    for k in dir(Cfg):
        if not k.startswith("_"): setattr(CFG, k, kw.get(k, getattr(Cfg, k)))
    A = Asm()
    if HEADER: A(HEADER.rstrip())
    A(f"; @launch grid=(256,1,1) block=(512,1,1) lds={NST*STAGE}")
    A('.amdgcn_target "amdgcn-amd-amdhsa--gfx950"\n.text')
    gen_k0(A); gen_k1(A); gen_k2(A)
    A.label("CODE_END")
    A("s_endpgm")
    A('.section .rodata,"a"')
    kernel_desc(A, KNAME, 256)
    return A.text()

if __name__ == "__main__":
    out = sys.argv[1] if len(sys.argv) > 1 else "parallel_sum__linear_kernel_hedgehog__mixer_token_mlp__prompt.s"
    kw = {}
    for a in sys.argv[2:]:
        k, val = a.split("=")
        kw[k] = val if not val.isdigit() else int(val)
    open(out, "w").write(gen(**kw))
```

```python
import math, struct, sys
from asmlib import *

def f2u(x): return struct.unpack("<I", struct.pack("<f", x))[0]
LOG2E = math.log2(math.e)
OOB = 0x80000000

S, D, F, H, DH = 2048, 576, 4608, 32, 18
KA_X, KA_WQKV, KA_WPHI, KA_WO, KA_BX, KA_W1, KA_B1, KA_W2, KA_B2, KA_OUT, KA_DBG, KA_WS = [8*i for i in range(12)]
XN_OFF, XN_SZ = 0x0, 2359296
HT_OFF, HT_SZ = 0x240000, 2359296
WF_OFF, WF_SZ = 0x480000, 6*18*18*1024
U_OFF, U_SZ = 0x680000, 5308416
PHIQ_OFF, PHIQ_SZ = 0xC00000, 4718592
KVP_OFF, KVP_SZ = 0x1080000, 16*48*2048
KVF_OFF, KVF_SZ = 0x12C0000, 48*1024
WOT_OFF, WOT_SZ = 0x1300000, 16*45*1024
PART_OFF, PART_SZ = 0x1400000, 64*16*9216
FLAG_OFF, FLAG_SZ = 0x1F00000, 0x23000
F0, FU, FQ, FW, FK, FP, FX, FE = 0, 256, 832, 960, 1040, 1088, 1152, 2176
KNAME = "parallel_sum__linear_kernel_hedgehog__mixer_token_mlp__prompt_kernel"
SINK = 255
STAMP_OFF, STAMP_SZ = 0x3000000, 0x100000

STAGE, POFF, WOFF, NST = 36864, 0, 18432, 4
STAGE2 = STAGE
V_PA, V_PB, V_W0A, V_W1A, V_W0B, V_W1B = 2, 3, 4, 5, 6, 7
V_PF, V_WF, V_ACC = 8, 80, 96
def pf(b, t): return v(V_PF + b*36 + t*4, 4)
def wf(b, j): return v(V_WF + b*8 + j*4, 4)
def accr(st, t, j): return V_ACC + st*72 + (t*2+j)*4
def acc(st, t, j): return v(accr(st, t, j), 4)
MF = "v_mfma_f32_16x16x32_bf16"

class Cfg:
    stamp = False
    auxW1 = ""; auxW2 = ""; auxP = "sc1"; auxSt = "sc1"
    G1 = 0; G2 = 0; GA = 0
    auxOut = ""; flagpos = 1; pollpos = 1
    pts = ""; pf1b = 0; pf2w = 0; pubpos = 0; unroll = 0; sl0a = 0; wlate = 0; qlim = -1; pfbar = 0; pf1a = 0; c3w2 = 0; c3w1 = 0; swap13 = 1; tlb = 0; sl1 = 0; sl2 = 0; bgo = 0; sl0 = 0; slk = 0
    dbg_nopub = 0; dbg_hot = 0; dbg = ""
    pfc = 0
    pf1 = 0
    pf1l = 0; pf1rev = 0; pf2g = 0; pf2pos = 3
    pf1pos = 0
    pf1s = 0
    pft = 0
    pf2kv = 0; pf2q = 0; pf2s = 0
    probe = ""
CFG = Cfg()

def stamp(A, i):
    if CFG.stamp: A(f"{'s_memtime' if CFG.stamp == 2 else 's_memrealtime'} s[{64+2*i}:{65+2*i}]")
def pt(A, name):
    L = CFG.pts.split(",")
    if name in L: stamp(A, 1 + L.index(name))
def stamp_flush(A):
    if not CFG.stamp: return
    A("s_waitcnt vmcnt(0)")
    stamp(A, 13)
    A("s_waitcnt lgkmcnt(0)")
    srd_off(A, 92, 26, STAMP_OFF, STAMP_SZ)
    A("s_lshl_b32 s63, s2, 3\ns_add_u32 s63, s63, s16\ns_lshl_b32 s63, s63, 6\ns_mov_b64 exec, 1\nv_mov_b32 v1, 0")
    for i in range(14):
        A(f"v_mov_b32 v2, s{64+2*i}\nbuffer_store_dword v2, v1, s[92:95], s63 offen offset:{4*i}")

def emit_compute_addr(A, s_wave, mode):
    A("v_and_b32 v1, 63, v0")
    A(f"v_lshlrev_b32 v{V_PA}, 4, v1")
    A(f"v_add_u32 v{V_PB}, {2*STAGE}, v{V_PA}")
    if mode == "lin":
        A(f"s_lshl_b32 s3, s{s_wave}, 11\ns_add_u32 s3, s3, {WOFF}")
        A(f"v_add_u32 v{V_W0A}, s3, v{V_PA}")
        A(f"v_add_u32 v{V_W0B}, {2*STAGE}, v{V_W0A}")
        return
    A("v_lshrrev_b32 v8, 2, v1")
    A("v_and_b32 v9, 7, v8")
    if mode == "std":
        A("v_and_b32 v10, 12, v8\nv_add_u32 v8, v8, v10")
    A(f"s_lshl_b32 s3, s{s_wave}, 1")
    A("v_xor_b32 v9, s3, v9\nv_lshlrev_b32 v9, 5, v9\nv_lshl_add_u32 v9, v8, 8, v9")
    A("v_and_b32 v8, 3, v1\nv_lshl_add_u32 v9, v8, 3, v9")
    A(f"v_add_u32 v{V_W0A}, {WOFF}, v9")
    A(f"v_xor_b32 v{V_W1A}, 32, v{V_W0A}")
    A(f"v_add_u32 v{V_W0B}, {2*STAGE}, v{V_W0A}")
    A(f"v_add_u32 v{V_W1B}, {2*STAGE}, v{V_W1A}")

def reads_P(slot, sub, b):
    a = V_PB if slot >= 2 else V_PA
    so = (slot & 1) * STAGE
    return [f"ds_read_b128 {pf(b,t)}, v{a} offset:{so + (sub*9+t)*1024}" for t in range(9)]
def reads_W(slot, sub, b, mode):
    hi = slot >= 2
    so = (slot & 1) * STAGE
    R = []
    if mode == "lin":
        a = V_W0B if hi else V_W0A
        return [f"ds_read_b128 {wf(b,j)}, v{a} offset:{so + j*1024}" for j in range(2)]
    second = 1024 if mode == "std" else 4096
    for j in range(2):
        a = (V_W0B, V_W1B)[j] if hi else (V_W0A, V_W1A)[j]
        base = V_WF + b*8 + j*4
        R.append(f"ds_read_b64_tr_b16 {v(base,2)}, v{a} offset:{so + sub*8192}")
        R.append(f"ds_read_b64_tr_b16 {v(base+2,2)}, v{a} offset:{so + sub*8192 + second}")
    return R

DBG = {"on": False}
def dbg(x): return DBG["on"] and x in CFG.dbg.split(",")
def block(A, M, R, barrier):
    if dbg("nomfma"): M = ["s_nop 3"]*len(M)
    if dbg("noread"): R = []
    if dbg("noreadP"): R = [r for r in R if "tr_b16" in r]
    if dbg("halfP"): R = [r for i, r in enumerate(R) if "tr_b16" in r or i % 2]
    A("s_waitcnt lgkmcnt(0)")
    if barrier: A("s_barrier")
    ri = 0
    for m in M:
        A(m)
        if ri < len(R):
            if R[ri]: A(R[ri])
            ri += 1
    assert ri == len(R)

def mfmas(st, pb, wb, w_is_A):
    M = []
    for t in range(9):
        for j in range(2):
            a, b = (wf(wb,j), pf(pb,t)) if w_is_A else (pf(pb,t), wf(wb,j))
            M.append(f"{MF} {acc(st,t,j)}, {a}, {b}, {acc(st,t,j)}")
    return M

def emit_compute_loop(A, n, mode, w_is_A, s_cnt, first=None, lastfill=None):
    lin = mode == "lin"
    A("s_barrier")
    if first: first()
    for r in reads_W(0, 0, 0, mode) + reads_P(0, 0, 0): A(r)
    def stage(i, last):
        slot = i % NST; nxt = (i+1) % NST
        if lin:
            wb = i & 1
            block(A, mfmas(0, 0, wb, w_is_A[0]), reads_P(slot, 1, 1), False)
            block(A, mfmas(1, 1, wb, w_is_A[1]), [] if last else reads_W(nxt, 0, wb ^ 1, mode) + reads_P(nxt, 0, 0), not last)
        else:
            block(A, mfmas(0, 0, 0, w_is_A[0]), reads_W(slot, 1, 1, mode) + reads_P(slot, 1, 1), False)
            block(A, mfmas(0, 1, 1, w_is_A[1]), (lastfill or []) if last else reads_W(nxt, 0, 0, mode) + reads_P(nxt, 0, 0), not last)
    if CFG.unroll and mode == ("std", "pi")[CFG.unroll-1]:
        for i in range(n):
            stage(i, i == n-1); pt(A, f"s{i}")
        return
    nloop = (n - 1) // NST
    L = A.newlabel("Lc")
    A(f"s_mov_b32 s{s_cnt}, {nloop}")
    A.label(L)
    for i in range(NST): stage(i, False)
    A(f"s_sub_u32 s{s_cnt}, s{s_cnt}, 1\ns_cmp_lg_u32 s{s_cnt}, 0\ns_cbranch_scc1 {L}")
    for i in range(nloop*NST, n): stage(i, i == n-1)

def rot_init(A, G, s_rot, s_off, step):
    if not G: return
    A(f"s_mul_i32 s62, s{s_rot}, {step}\ns_add_u32 s{s_off}, s{s_off}, s62")
    A(f"s_sub_u32 s60, {G}, s{s_rot}\ns_mov_b32 s61, {G}")
def rot_step(A, G, s_off, step):
    if dbg("noadv"): return
    if "k1W" in CFG.dbg and step == 64*9216: return
    if "k1P" in CFG.dbg and DBG.get("k1P"): return
    A(f"s_add_u32 s{s_off}, s{s_off}, {step}")
    if not G: return
    A(f"s_sub_u32 s60, s60, 1\ns_cmp_eq_u32 s60, 0\ns_cselect_b32 s62, {G*step}, 0\ns_cselect_b32 s60, {G}, s60\ns_sub_u32 s{s_off}, s{s_off}, s62")
    A(f"s_sub_u32 s61, s61, 1\ns_cmp_eq_u32 s61, 0\ns_cselect_b32 s62, {G*step}, 0\ns_cselect_b32 s61, {G}, s61\ns_add_u32 s{s_off}, s{s_off}, s62")

def emit_loader(A, n, cnt, issue, s_cnt, extra=None, hook=None, post=None, pre=None, mid=None):
    extra = extra or []
    tot = n + len(extra)
    hook = hook or {}
    def c(i): return 0 if i >= tot else (cnt + (i in hook) if i < n else extra[i-n][0])
    if pre: pre()
    for i in range(3): issue(i)
    if mid: mid()
    nloop = (n - 3) // NST
    L = A.newlabel("Ll")
    A(f"s_mov_b32 s{s_cnt}, {nloop}")
    A.label(L)
    for i in range(NST):
        A(f"s_waitcnt vmcnt({2*cnt})\ns_barrier")
        issue((i+3) % NST)
    A(f"s_sub_u32 s{s_cnt}, s{s_cnt}, 1\ns_cmp_lg_u32 s{s_cnt}, 0\ns_cbranch_scc1 {L}")
    for i in range(nloop*NST, tot):
        A(f"s_waitcnt vmcnt({c(i+1)+c(i+2) + (post[0] if post and i > n-post[2] else 0)})\ns_barrier")
        if post and i == n-post[2]: post[1]()
        if i+3 in hook: hook[i+3]()
        if i+3 < n: issue((i+3) % NST)
        elif i+3 < tot: extra[i+3-n][1]((i+3) % NST)

def emit_loader_lin(A, n, per, ldsoff, s_lw, srdP, s_off, s_cnt, s_tmp, aux="", G=0, s_rot=59, extra=None, post=None, pre=None, hook=None):
    rot_init(A, G, s_rot, s_off, 2*per*1024)
    A("v_and_b32 v1, 63, v0\nv_lshlrev_b32 v1, 4, v1")
    A(f"s_mul_i32 s{s_tmp}, s{s_lw}, {per*1024}")
    A(f"v_add_u32 v2, s{s_tmp}, v1")
    for q in range(1, (per+3)//4): A(f"v_add_u32 v{2+q}, {q*4096}, v2")
    def issue(slot):
        for j in range(per):
            if j % 4 == 0:
                A(f"s_add_u32 m0, s{s_tmp}, {slot*STAGE + ldsoff + (j//4)*4096}\ns_nop 0")
            if not dbg("noload"): A(f"buffer_load_dwordx4 v{2+j//4}, {s(srdP,4)}, s{s_off} offen offset:{(j%4)*1024} {aux} lds")
        rot_step(A, G, s_off, 2*per*1024)
    emit_loader(A, n, per, issue, s_cnt, extra, hook=hook, post=post, pre=pre)

def emit_loader_W(A, n, mode, s_lw, srdW, s_off, stride, s_cnt, s_tmp, aux="", G=0, s_rot=59, extra=None, hook=None, post=None, every=None, mid=None):
    rot_init(A, G, s_rot, s_off, 64*stride)
    A("v_and_b32 v1, 63, v0\nv_lshrrev_b32 v10, 4, v1\nv_and_b32 v11, 15, v1")
    A(f"s_lshl_b32 s{s_tmp}, s{s_lw}, 5\nv_add_u32 v12, s{s_tmp}, v10")
    A(f"s_mov_b32 s3, {stride}\nv_mul_lo_u32 v12, v12, s3")
    for par in range(2):
        A(f"v_or_b32 v13, {4*par}, v10\nv_lshlrev_b32 v13, 1, v13\nv_xor_b32 v13, v13, v11")
        A("v_lshl_add_u32 v13, v13, 4, v12")
        for j in range(8):
            key = (j & 1) if mode == "pi" else ((j >> 1) & 1)
            if key == par:
                A(f"v_add_u32 v{2+j}, {4*j*stride - (j%4)*1024}, v13")
    A(f"s_lshl_b32 s{s_tmp}, s{s_lw}, 13")
    def issue(slot):
        for j in range(8):
            if j % 4 == 0:
                A(f"s_add_u32 m0, s{s_tmp}, {slot*STAGE + WOFF + (j//4)*4096}\ns_nop 0")
            if not dbg("noload"): A(f"buffer_load_dwordx4 v{2+j}, {s(srdW,4)}, s{s_off} offen offset:{(j%4)*1024} {aux} lds")
        if every: every()
        rot_step(A, G, s_off, 64*stride)
    emit_loader(A, n, 9 if every else 8, issue, s_cnt, extra, hook, post, mid=mid)

def pf_w1(A, srdn, s_col, s_idx, step, count, vl, vt, lim=None, rev=0, lanes=64, base=0):
    for c in range(count):
        if rev: A(f"s_sub_u32 s57, {rev-1}, s{s_idx}\ns_lshl_b32 s57, s57, 6")
        else: A(f"s_mul_i32 s57, s{s_idx}, {lanes}")
        if base: A(f"s_add_u32 s57, s57, {base}")
        A(f"v_add_u32 v{vt}, s57, v{vl}\nv_mul_u32_u24 v{vt+1}, 52429, v{vt}\nv_lshrrev_b32 v{vt+1}, 19, v{vt+1}")
        A(f"v_mul_u32_u24 v{vt+1}, {9216-1280}, v{vt+1}\nv_lshl_add_u32 v{vt}, v{vt}, 7, v{vt+1}")
        if lanes < 64: A(f"s_bfm_b64 exec, {lanes}, 0")
        A(f"buffer_load_dword v{SINK}, v{vt}, {s(srdn,4)}, s{s_col} offen")
        if lanes < 64: A("s_mov_b64 exec, -1")
        A(f"s_add_u32 s{s_idx}, s{s_idx}, {step}")
        if lim is not None: A(f"s_waitcnt vmcnt({lim})")
def pf_code(A, start):
    L = A.newlabel("Lpc")
    A(f"s_getpc_b64 s[60:61]\n{L}:\ns_add_u32 s60, s60, {start}-{L}\ns_addc_u32 s61, s61, 0")
    A(f"v_lshlrev_b32 v90, 7, v0\nv_min_u32 v90, CODE_END-{start}-4, v90\nglobal_load_dword v{SINK}, v90, s[60:61]")
def pf_w1_col(A, s_col):
    A(f"s_and_b32 s{s_col}, s2, 7\ns_mul_i32 s{s_col}, s{s_col}, 18\ns_lshr_b32 s{s_col}, s{s_col}, 2\ns_lshl_b32 s{s_col}, s{s_col}, 8")
def pf_w2(A, s_ptr, s_idx, step, count, lim=None):
    if not count: return
    srd(A, 52, s_ptr, S*F*2)
    A(f"s_bfe_u32 s57, s2, 0x20001\ns_mul_i32 s57, s57, {1152*4096}\ns_and_b32 s58, s2, 1\ns_lshl_b32 s58, s58, 11\ns_add_u32 s57, s57, s58")
    A(f"s_lshl_b32 s58, s{s_idx}, 14\ns_add_u32 s57, s57, s58")
    A("v_bfe_u32 v30, v0, 4, 2\nv_lshlrev_b32 v30, 12, v30\nv_and_b32 v31, 15, v0\nv_lshl_add_u32 v30, v31, 7, v30")
    for c in range(count):
        A(f"buffer_load_dword v{SINK}, v30, s[52:55], s57 offen\ns_add_u32 s57, s57, {step*16384}")
        if lim is not None: A(f"s_waitcnt vmcnt({lim})")

def pf_w2c3(A, s_ptr, s_idx, step, count, lim=None):
    srd(A, 52, s_ptr, S*F*2)
    A(f"s_bfe_u32 s57, s2, 0x20001\ns_mul_i32 s57, s57, {1152*4096}\ns_and_b32 s58, s2, 1\ns_lshl_b32 s58, s58, 11\ns_add_u32 s57, s57, s58")
    A(f"s_lshl_b32 s58, s{s_idx}, 17\ns_add_u32 s57, s57, s58\ns_add_u32 s57, s57, 384")
    A("v_bfe_u32 v30, v0, 1, 5\nv_lshlrev_b32 v30, 12, v30\nv_and_b32 v31, 1, v0\nv_lshl_add_u32 v30, v31, 10, v30")
    for c in range(count):
        L = A.newlabel("Lc3")
        A(f"s_cmp_ge_u32 s{s_idx}, {36 - c*step}\ns_cbranch_scc1 {L}")
        A(f"buffer_load_dword v{SINK}, v30, s[52:55], s57 offen\ns_add_u32 s57, s57, {step << 17}")
        if lim is not None: A(f"s_waitcnt vmcnt({lim})")
        A.label(L)

SPIN_MAX = 60000
def flag_setup(A):
    srd_off(A, 96, 26, FLAG_OFF, FLAG_SZ)
    A(f"s_load_dword s100, s[96:97], {FE*64}")
def tag_make(A):
    A("s_add_u32 s100, s100, 1\ns_mul_i32 s101, s100, 0x9e3779b1\ns_add_u32 s101, s101, 0x7f4a7c15")
def raise_flag(A, s_off, vt):
    A(f"v_mov_b32 v{vt}, s100\nv_mov_b32 v{vt+1}, s101\nv_mov_b32 v{vt+2}, s{s_off}")
    A(f"s_mov_b64 exec, 1\nbuffer_store_dwordx2 {v(vt,2)}, v{vt+2}, s[96:99], 0 offen sc1\ns_mov_b64 exec, -1")
def poll(A, vaddr, vtmp, sleep=0):
    L = A.newlabel("Lp"); X = A.newlabel("Lx")
    A(f"s_mov_b32 s63, {SPIN_MAX}")
    A.label(L)
    A(f"buffer_load_dwordx2 {v(vtmp,2)}, v{vaddr}, s[96:99], 0 offen sc1")
    A(f"s_waitcnt vmcnt(0)\nv_cmp_ne_u64 vcc, s[100:101], {v(vtmp,2)}\ns_sub_u32 s63, s63, 1\ns_cbranch_scc1 {X}\ns_nop 2\ns_cbranch_vccz {X}")
    A("s_mov_b64 exec, vcc")
    if sleep: A(f"s_sleep {sleep}")
    A(f"s_branch {L}")
    A.label(X)
    A("s_mov_b64 exec, -1")
def poll2(A, vaddr, vtmp, sleep1, sleep2):
    if sleep1:
        A("s_mov_b64 exec, 1")
        poll(A, vaddr, vtmp, sleep1)
    poll(A, vaddr, vtmp, sleep2)

def wave_id(A, sd):
    A(f"v_lshrrev_b32 v1, 6, v0\ns_nop 1\nv_readfirstlane_b32 s{sd}, v1")

def reduce32(A, regs, tmp):
    pad = "s_nop 1" if len(regs) == 1 else "s_nop 0"
    A("s_nop 1")
    for pat in ["quad_perm:[1,0,3,2]", "quad_perm:[2,3,0,1]", "row_half_mirror", "row_mirror"]:
        for r in regs:
            A(f"v_add_f32_dpp v{r}, v{r}, v{r} {pat} row_mask:0xf bank_mask:0xf")
        A(pad)
    for i, r in enumerate(regs): A(f"v_mov_b32 v{tmp+i}, v{r}")
    A("s_nop 1")
    for i, r in enumerate(regs): A(f"v_permlane16_swap_b32 v{r}, v{tmp+i}")
    A("s_nop 1")
    for i, r in enumerate(regs): A(f"v_add_f32 v{r}, v{r}, v{tmp+i}")

XRS, HRS = 1168, 1216
K0_HL = 16*XRS
K0_DUMMY = K0_HL + 16*HRS
K0_LDS = 83968
def gen_k0(A):
    kernel_head(A, KNAME)
    stamp(A, 0)
    A("s_cmp_ge_u32 s2, 256\ns_cbranch_scc1 K_end")
    A(f"s_load_dwordx4 s[4:7], s[0:1], {KA_X}\ns_load_dwordx2 s[26:27], s[0:1], {KA_WS}")
    A(f"s_load_dwordx2 s[24:25], s[0:1], {KA_WPHI}\ns_load_dwordx2 s[48:49], s[0:1], {KA_W1}")
    A("s_cmp_lt_u32 s2, 128\ns_cbranch_scc1 K0_pf")
    X, P, Q = 20, 8, 56
    A("v_lshrrev_b32 v2, 5, v0\nv_and_b32 v3, 31, v0")
    A("v_mul_u32_u24 v4, 1152, v2\nv_lshl_add_u32 v4, v3, 4, v4")
    A(f"v_cmp_gt_u32 s[30:31], 24, v3\nv_mov_b32 v5, {OOB}")
    A("s_sub_u32 s44, s2, 128\ns_mul_i32 s3, s44, 18432")
    A("v_cndmask_b32 v4, v5, v4, s[30:31]")
    A("s_waitcnt lgkmcnt(0)")
    srd(A, 8, 4, S*D*2)
    for j in range(3): A(f"buffer_load_dwordx4 {v(P+4*j,4)}, v4, s[8:11], s3 offen offset:{384*j}")
    A("s_branch K0_ln")
    A.label("K0_pf")
    wave_id(A, 16)
    def pf_setup():
        flag_setup(A)
        srd(A, 52, 48, S*F*2)
        pf_w1_col(A, 46)
        A("s_and_b32 s47, s2, 0x78\ns_add_u32 s47, s47, s16\nv_and_b32 v1, 63, v0")
    def pf_round(r):
        if not CFG.pf1: return 0
        pf_w1(A, 52, 46, 47, 128, 1, 1, 88, lanes=CFG.pf1 // 2)
        return 1
    A("s_cmp_ge_u32 s2, 108\ns_cbranch_scc1 K0_nofold")
    A("s_mul_i32 s18, s2, 7282\ns_lshr_b32 s18, s18, 16")
    A("s_mul_i32 s19, s18, 9\ns_sub_u32 s17, s2, s19")
    A("s_and_b32 s28, s18, 3\ns_lshr_b32 s29, s18, 2")
    F_W, F_P = 32768, 32768 + 24576
    for r in range(3):
        A(f"v_add_u32 v4, {512*r}, v0\nv_mul_u32_u24 v5, 55189, v4\nv_lshrrev_b32 v5, 20, v5")
        A(f"v_mul_u32_u24 v5, {3456-304}, v5\nv_lshl_add_u32 v{12+r}, v4, 4, v5")
    A(f"s_mul_i32 s32, s17, {64*3456}\ns_mul_i32 s33, s29, 1152\ns_add_u32 s32, s32, s33\ns_mul_i32 s33, s28, 288\ns_add_u32 s32, s32, s33")
    A(f"s_mul_i32 s33, s28, 5184\nv_lshlrev_b32 v15, 4, v0\ns_lshl_b32 s34, s16, 10\ns_add_u32 m0, s34, {F_W}")
    A("s_waitcnt lgkmcnt(0)")
    srd(A, 8, 6, D*3*D*2)
    A(f"buffer_load_dwordx4 v12, s[8:11], s32 offen lds\ns_add_u32 m0, s34, {F_W + 8192}")
    srd(A, 12, 24, H*DH*DH*2)
    A(f"buffer_load_dwordx4 v13, s[8:11], s32 offen lds\ns_add_u32 m0, s34, {F_W + 16384}\ns_cmp_ge_u32 s16, 3\ns_cbranch_scc1 K0_f1")
    A("buffer_load_dwordx4 v14, s[8:11], s32 offen lds")
    A.label("K0_f1")
    A(f"s_add_u32 m0, s34, {F_P}\ns_cmp_ge_u32 s16, 6\ns_cbranch_scc1 K0_f2")
    A("buffer_load_dwordx4 v15, s[12:15], s33 offen lds")
    A.label("K0_f2")
    pf_setup()
    if CFG.pfbar: A("s_barrier")
    npf = pf_round(0)
    A("s_lshr_b32 s19, s16, 2\ns_and_b32 s43, s16, 3\ns_lshl_b32 s30, s43, 1\ns_add_u32 s30, s30, s19")
    srd_off(A, 20, 26, WF_OFF, WF_SZ)
    A("v_and_b32 v2, 15, v1\nv_lshrrev_b32 v3, 4, v1")
    A("v_and_b32 v4, 12, v2\nv_add_u32 v4, v4, v2")
    A(f"v_mul_u32_u24 v4, 304, v4\nv_lshl_add_u32 v4, v3, 4, v4\ns_mul_i32 s33, s30, 36\ns_and_b32 s39, s33, 15\ns_sub_u32 s33, s33, s39\ns_add_u32 s33, s33, {F_W}")
    A("v_add_u32 v76, s33, v4\ns_lshr_b32 s39, s39, 1\nv_lshlrev_b32 v11, 3, v3\nv_subrev_u32 v11, s39, v11")
    A("s_mov_b32 s40, 0x00030003\ns_mov_b32 s41, 0x00030003")
    B = 28
    def a_reads():
        A(f"s_waitcnt vmcnt({npf}) lgkmcnt(0)")
        pt(A, "x")
        A("s_barrier")
        for q in range(4):
            A(f"ds_read_b128 {v(12+4*q,4)}, v76 offset:{304*(32*(q>>1) + 4*(q&1))}")
    A("s_cmp_eq_u32 s29, 2\ns_cbranch_scc1 K0_ident")
    A("s_mul_i32 s34, s19, 18\nv_add_u32 v5, s34, v2")
    A("s_lshl_b32 s35, s43, 6")
    for nt in range(2):
        if nt: A("v_add_u32 v5, 16, v5")
        A(f"v_lshrrev_b32 v6, 2, v5\nv_lshlrev_b32 v6, 10, v6\nv_and_b32 v7, 3, v5\nv_lshl_add_u32 v6, v7, 4, v6")
        A(f"v_lshl_add_u32 v6, v3, 8, v6\nv_add_u32 v{52+nt}, s35, v6")
    A("s_lshr_b32 s34, s28, 1\ns_add_u32 s34, s34, 4\ns_and_b32 s35, s28, 1\ns_mul_i32 s35, s35, 9216")
    A("s_cmp_eq_u32 s29, 0\ns_cselect_b32 s34, s34, s28\ns_cselect_b32 s35, s35, 0")
    A(f"s_mov_b32 s42, {f2u(LOG2E)}")
    A(f"v_mul_i32_i24 v5, 36, v11\nv_lshl_add_u32 v5, v2, 1, v5\ns_mul_i32 s33, s30, 648\ns_add_u32 s33, s33, {F_P}\nv_add_u32 v80, s33, v5")
    for q in range(4): A(f"v_add_u32 v5, {2*q}, v11\nv_cmp_gt_u32 {s((36, 44, 58, 60)[q],2)}, 18, v5")
    a_reads()
    for nt in range(2):
        for ii in range(8):
            A(f"ds_read_u16 v{36+8*nt+ii}, v80 offset:{36*ii + 32*nt}")
    A("s_waitcnt lgkmcnt(0)")
    for q in range(8): A(f"v_lshl_or_b32 v{B+q}, v{36+2*q+1}, 16, v{36+2*q}")
    for q in range(8): A(f"v_cndmask_b32 v{B+q}, 0, v{B+q}, {s((36, 44, 58, 60)[q&3],2)}")
    A("s_branch K0_fmm")
    A.label("K0_ident")
    A("v_sub_u32 v5, v2, v11\nv_add_u32 v6, 16, v5")
    A("v_mov_b32 v7, 0x3f80\nv_mov_b32 v8, 0x3f800000")
    for nt in range(2):
        for q in range(4):
            A(f"v_cmp_eq_u32 vcc, {2*q}, v{5+nt}\nv_cmp_eq_u32 s[44:45], {2*q+1}, v{5+nt}\ns_nop 1")
            A(f"v_cndmask_b32 v9, 0, v7, vcc\nv_cndmask_b32 v{B+4*nt+q}, v9, v8, s[44:45]")
    A("v_lshlrev_b32 v6, 8, v3\nv_lshl_add_u32 v6, v2, 4, v6")
    A("s_lshl_b32 s34, s30, 10\nv_add_u32 v52, s34, v6")
    A("s_lshl_b32 s34, s30, 5\ns_add_u32 s34, s34, 8192\nv_add_u32 v53, s34, v6")
    A("s_mov_b32 s34, s28\ns_mov_b32 s35, 9216\ns_mov_b32 s42, 1.0")
    a_reads()
    A("s_waitcnt lgkmcnt(0)")
    A.label("K0_fmm")
    A("s_mul_i32 s34, s34, 18\ns_lshl_b32 s33, s17, 1\ns_add_u32 s34, s34, s33\ns_mul_i32 s34, s34, 18432\ns_add_u32 s34, s34, s35")
    DD = 56
    for kbi in range(2):
        for nt in range(2):
            for a in range(2):
                A(f"{MF} {v(DD+16*kbi+8*nt+4*a,4)}, {v(12+8*kbi+4*a,4)}, {v(B+4*nt,4)}, 0")
    A("s_mov_b32 s43, s42\ns_lshl_b32 s33, s16, 10\nv_lshlrev_b32 v4, 4, v1\nv_add_u32 v5, s33, v4\ns_and_b32 s3, s16, 1\ns_mul_i32 s35, s3, 9216\nv_add_u32 v6, s35, v4")
    A("s_mul_i32 s3, s3, 18432\ns_add_u32 s35, s34, s3\ns_add_u32 s35, s35, 8192\ns_add_u32 s36, s34, 18432")
    for kbi in range(2):
        for nt in range(2):
            d0 = DD+16*kbi+8*nt
            for i in range(4): A(f"v_pk_mul_f32 {v(d0+2*i,2)}, {v(d0+2*i,2)}, s[42:43]")
            o = 36 + 8*kbi + 4*nt
            for i in range(4): A(f"v_cvt_pk_bf16_f32 v{o+i}, v{d0+2*i}, v{d0+2*i+1}")
            if nt == 0: A(f"ds_write_b128 v52, {v(o,4)} offset:{9216*kbi}")
    A("s_mov_b64 exec, s[40:41]\nds_write_b128 v53, v[40:43]\nds_write_b128 v53, v[48:51] offset:9216\ns_mov_b64 exec, -1")
    A("s_waitcnt lgkmcnt(0)\ns_barrier")
    A("ds_read_b128 v[12:15], v5\nds_read_b128 v[16:19], v5 offset:9216\nds_read_b128 v[20:23], v6 offset:8192")
    A(f"s_waitcnt lgkmcnt(2)\nbuffer_store_dwordx4 v[12:15], v5, s[20:23], s34 offen {CFG.auxSt}")
    A(f"s_waitcnt lgkmcnt(1)\nbuffer_store_dwordx4 v[16:19], v5, s[20:23], s36 offen {CFG.auxSt}")
    A("s_waitcnt lgkmcnt(0)\ns_cmp_ge_u32 s16, 2\ns_cbranch_scc1 K0_seam")
    A(f"s_waitcnt lgkmcnt(0)\nbuffer_store_dwordx4 v[20:23], v4, s[20:23], s35 offen {CFG.auxSt}")
    A("s_branch K0_seam")
    A.label("K0_nofold")
    A("s_waitcnt lgkmcnt(0)")
    pf_setup()
    if CFG.pfc:
        A("s_cmp_lt_u32 s2, 120\ns_cbranch_scc1 K0_noc")
        pf_code(A, "K0_ln")
        A.label("K0_noc")
    pf_round(0)
    A("s_waitcnt lgkmcnt(0)\ns_branch K0_seam")
    A.label("K0_ln")
    flag_setup(A)
    wave_id(A, 16)
    A(f"v_mul_u32_u24 v6, {XRS}, v2\nv_lshl_add_u32 v6, v3, 4, v6")
    A(f"v_mul_u32_u24 v7, {HRS}, v2\nv_lshl_add_u32 v7, v3, 4, v7\nv_add_u32 v7, {K0_HL}, v7")
    srd_off(A, 12, 26, XN_OFF, XN_SZ)
    srd_off(A, 20, 26, HT_OFF, HT_SZ)
    A(f"s_mov_b32 s33, {f2u(1.0/576)}\ns_mov_b32 s34, {f2u(1e-5)}")
    A("v_and_b32 v1, 63, v0\nv_and_b32 v2, 15, v1\nv_lshrrev_b32 v3, 4, v1")
    A(f"v_mul_u32_u24 v68, {XRS}, v2\nv_lshl_add_u32 v68, v3, 4, v68\ns_lshl_b32 s3, s16, 6\ns_and_b32 s35, s16, 1\ns_lshl_b32 s36, s35, 6")
    A("v_add_u32 v69, s36, v68\nv_add_u32 v68, s3, v68\nv_lshlrev_b32 v70, 4, v1")
    A("s_lshr_b32 s17, s44, 3\ns_mul_i32 s17, s17, 147456\ns_and_b32 s18, s44, 7\ns_lshl_b32 s18, s18, 10\ns_add_u32 s17, s17, s18")
    A("s_lshl_b32 s18, s35, 13\ns_add_u32 s37, s17, s18\ns_add_u32 s37, s37, 131072\ns_lshl_b32 s18, s16, 13\ns_add_u32 s17, s17, s18")
    A("v_bfe_u32 v4, v1, 2, 2\nv_lshrrev_b32 v5, 5, v1\nv_lshl_add_u32 v4, v5, 3, v4")
    A(f"v_mul_u32_u24 v4, {HRS}, v4\nv_and_b32 v3, 1, v3\nv_lshl_add_u32 v4, v3, 5, v4\nv_and_b32 v44, 3, v1\nv_lshl_add_u32 v4, v44, 3, v4\nv_add_u32 v4, {K0_HL}, v4")
    A("v_add_u32 v72, s36, v4\nv_add_u32 v71, s3, v4")
    A("v_lshlrev_b32 v2, 4, v2\nv_lshl_add_u32 v2, v5, 8, v2")
    A(f"s_mov_b32 s38, {589824-9216}\ns_lshl_b32 s3, s16, 1\ns_lshl_b32 s36, s35, 1\ns_add_u32 s36, s36, 32")
    for n in range(3):
        A(f"v_add_u32 v4, s{3 if n < 2 else 36}, v3")
        if n == 1: A("v_add_u32 v4, 16, v4")
        A(f"v_mul_u32_u24 v44, 57, v4\nv_lshrrev_b32 v44, 9, v44\nv_lshl_add_u32 v4, v4, 10, v2\nv_mad_u32_u24 v{73+n}, v44, s38, v4")
    A("s_lshr_b32 s18, s44, 1\ns_mul_i32 s18, s18, 9216\ns_and_b32 s19, s44, 1\ns_lshl_b32 s19, s19, 9\ns_add_u32 s18, s18, s19")
    def xp(i): return v(X+2*i, 2)
    A("s_waitcnt vmcnt(0)")
    pt(A, "x")
    for i in range(12):
        A(f"v_lshlrev_b32 v{X+2*i}, 16, v{P+i}\nv_and_b32 v{X+2*i+1}, 0xffff0000, v{P+i}")
    A(f"v_pk_add_f32 v[44:45], {xp(0)}, {xp(1)}\nv_pk_add_f32 v[46:47], {xp(2)}, {xp(3)}")
    for i in range(4, 12): A(f"v_pk_add_f32 {v(44+2*(i&1),2)}, {v(44+2*(i&1),2)}, {xp(i)}")
    A("v_pk_add_f32 v[44:45], v[44:45], v[46:47]\nv_add_f32 v44, v44, v45")
    reduce32(A, [44], 52)
    A("v_mul_f32 v44, s33, v44")
    for i in range(12): A(f"v_pk_add_f32 {xp(i)}, {xp(i)}, v[44:45] op_sel_hi:[1,0] neg_lo:[0,1] neg_hi:[0,1]")
    A(f"v_pk_mul_f32 v[48:49], {xp(0)}, {xp(0)}\nv_pk_mul_f32 v[50:51], {xp(1)}, {xp(1)}")
    for i in range(2, 12): A(f"v_pk_fma_f32 {v(48+2*(i&1),2)}, {xp(i)}, {xp(i)}, {v(48+2*(i&1),2)}")
    A("v_pk_add_f32 v[48:49], v[48:49], v[50:51]\nv_add_f32 v48, v48, v49")
    A("v_cndmask_b32 v48, 0, v48, s[30:31]")
    reduce32(A, [48], 52)
    A("v_mul_f32 v48, s33, v48\nv_add_f32 v44, s34, v48\nv_rsq_f32 v44, v44\nv_mov_b32 v49, s34")
    A("v_mul_f32 v48, v48, v44\nv_fma_f32 v48, v48, v44, v49\nv_rsq_f32 v48, v48")
    A("s_mov_b64 exec, s[30:31]")
    for i in range(12): A(f"v_pk_mul_f32 {xp(i)}, {xp(i)}, v[44:45] op_sel_hi:[1,0]")
    for i in range(12): A(f"v_cvt_pk_bf16_f32 v{P+i}, v{X+2*i}, v{X+2*i+1}")
    for j in range(3): A(f"ds_write_b128 v6, {v(P+4*j,4)} offset:{384*j}")
    for i in range(12): A(f"v_pk_mul_f32 {xp(i)}, {xp(i)}, v[48:49] op_sel_hi:[1,0]")
    for i in range(12): A(f"v_cvt_pk_bf16_f32 v{Q+i}, v{X+2*i}, v{X+2*i+1}")
    for j in range(3): A(f"ds_write_b128 v7, {v(Q+4*j,4)} offset:{384*j}")
    A("s_mov_b64 exec, -1\ns_waitcnt lgkmcnt(0)\ns_barrier")
    pt(A, "ln")
    for n in range(2):
        A(f"ds_read_b64_tr_b16 {v(12+8*n,2)}, v71 offset:{512*n}\nds_read_b64_tr_b16 {v(14+8*n,2)}, v71 offset:{512*n + 4*HRS}")
    for n in range(2): A(f"ds_read_b128 {v(8+8*n,4)}, v68 offset:{512*n}")
    A(f"ds_read_b64_tr_b16 v[28:29], v72 offset:1024\nds_read_b64_tr_b16 v[30:31], v72 offset:{1024 + 4*HRS}\nds_read_b128 v[24:27], v69 offset:1024")
    for n in range(2):
        A(f"s_waitcnt lgkmcnt({7-2*n})\nbuffer_store_dwordx4 {v(12+8*n,4)}, v{73+n}, s[20:23], s18 offen {CFG.auxSt}")
    for n in range(2):
        A(f"s_waitcnt lgkmcnt({4-n})\nbuffer_store_dwordx4 {v(8+8*n,4)}, v70, s[12:15], s17 offen {CFG.auxSt}\ns_add_u32 s17, s17, 65536")
    A("s_waitcnt lgkmcnt(0)\ns_cmp_ge_u32 s16, 4\ns_cbranch_scc1 K0_lnend\ns_cmp_ge_u32 s16, 2\ns_cbranch_scc1 K0_lnx")
    A(f"buffer_store_dwordx4 v[28:31], v75, s[20:23], s18 offen {CFG.auxSt}\ns_branch K0_lnend")
    A.label("K0_lnx")
    A(f"buffer_store_dwordx4 v[24:27], v70, s[12:15], s37 offen {CFG.auxSt}")
    A.label("K0_lnend")
    A.label("K0_seam")
    pt(A, "st0")
    tag_make(A)
    A(f"s_lshl_b32 s49, s2, 6\ns_cmp_eq_u32 s16, 0\ns_cselect_b32 s49, s49, {OOB}")
    A(f"s_load_dwordx4 s[4:7], s[0:1], {KA_W1}\ns_load_dwordx2 s[24:25], s[0:1], {KA_WO}\ns_load_dwordx2 s[50:51], s[0:1], {KA_W2}")
    A("s_waitcnt vmcnt(0)\ns_barrier")
    raise_flag(A, 49, 4)
    pt(A, "fl0")
    if CFG.pf1a:
        A(f"s_cmp_lt_u32 s2, 144\ns_cbranch_scc1 K0_noa\ns_cmp_ge_u32 s16, 4\ns_cbranch_scc1 K0_noa")
        A("s_lshr_b32 s47, s2, 3\ns_sub_u32 s47, s47, 18\ns_lshl_b32 s47, s47, 2\ns_add_u32 s47, s47, s16\ns_waitcnt lgkmcnt(0)")
        srd(A, 52, 4, S*F*2)
        pf_w1_col(A, 46)
        pf_w1(A, 52, 46, 47, 56, CFG.pf1a, 1, 88, base=64*CFG.pf1)
        A.label("K0_noa")
    if CFG.tlb:
        A(f"s_cmp_lg_u32 s16, 1\ns_cbranch_scc1 K0_notlb\nv_and_b32 v4, 63, v0\nv_lshlrev_b32 v4, {CFG.tlb}, v4\ns_waitcnt lgkmcnt(0)")
        for ptr, nb in ((4, S*F*2), (50, S*F*2), (26, FLAG_OFF)):
            srd(A, 8, ptr, nb)
            for q in range(-(-nb // (64 << CFG.tlb))):
                A(f"s_mov_b32 s3, {q*(64 << CFG.tlb)}\nbuffer_load_dword v{SINK}, v4, s[8:11], s3 offen sc1")
        A.label("K0_notlb")
def softmax18(A, PR, dst):
    vals = [r + i for r in PR for i in range(2)]
    EP, EN, MX, MN = 8, 26, 44, 46
    A(f"v_max3_f32 v{MX}, v{vals[0]}, v{vals[1]}, v{vals[2]}\nv_min3_f32 v{MN}, v{vals[0]}, v{vals[1]}, v{vals[2]}")
    for i in range(3, 17, 2):
        A(f"v_max3_f32 v{MX}, v{MX}, v{vals[i]}, v{vals[i+1]}\nv_min3_f32 v{MN}, v{MN}, v{vals[i]}, v{vals[i+1]}")
    A(f"v_max_f32 v{MX}, v{MX}, v{vals[17]}\nv_min_f32 v{MN}, v{MN}, v{vals[17]}")
    for p in range(9):
        A(f"v_pk_add_f32 {v(EP+2*p,2)}, {v(PR[p],2)}, {v(MX,2)} op_sel_hi:[1,0] neg_lo:[0,1] neg_hi:[0,1]")
        A(f"v_pk_add_f32 {v(EN+2*p,2)}, {v(PR[p],2)}, {v(MN,2)} op_sel_hi:[1,0] neg_lo:[1,0] neg_hi:[1,0]")
    for i in range(36): A(f"v_exp_f32 v{EP+i}, v{EP+i}")
    A(f"v_pk_add_f32 {v(MX,2)}, {v(EP,2)}, {v(EP+2,2)}\nv_pk_add_f32 {v(MN,2)}, {v(EN,2)}, {v(EN+2,2)}")
    for p in range(2, 9):
        A(f"v_pk_add_f32 {v(MX,2)}, {v(MX,2)}, {v(EP+2*p,2)}\nv_pk_add_f32 {v(MN,2)}, {v(MN,2)}, {v(EN+2*p,2)}")
    A(f"v_add_f32 v{MX}, v{MX}, v{MX+1}\nv_add_f32 v{MN}, v{MN}, v{MN+1}")
    A(f"v_rcp_f32 v{MX}, v{MX}\nv_rcp_f32 v{MN}, v{MN}\ns_nop 0")
    for p in range(9):
        A(f"v_pk_mul_f32 {v(EP+2*p,2)}, {v(EP+2*p,2)}, {v(MX,2)} op_sel_hi:[1,0]")
        A(f"v_pk_mul_f32 {v(EN+2*p,2)}, {v(EN+2*p,2)}, {v(MN,2)} op_sel_hi:[1,0]")
    for m in range(18): A(f"v_cvt_pk_bf16_f32 v{dst(m)}, v{EP+2*m}, v{EP+2*m+1}")

def pairs(st, j, e):
    return [accr(st, (9*e+p) >> 1, j) + 2*((9*e+p) & 1) for p in range(9)]

PHI_RS = 608
V_LDS = 128*PHI_RS
def gen_k1(A):
    A("s_and_b32 s17, s2, 7\ns_lshr_b32 s18, s2, 3")
    A("s_cmp_ge_u32 s18, 18\ns_cbranch_scc1 K1_notg1")
    A("s_mul_i32 s19, s17, 18\ns_add_u32 s19, s19, s18\ns_and_b32 s22, s19, 3\ns_lshr_b32 s23, s19, 2")
    if CFG.swap13: A("s_or_b32 s19, s23, 1\ns_cmp_eq_u32 s19, 13\ns_cselect_b32 s19, 1, 0\ns_xor_b32 s23, s23, s19")
    if CFG.G1: A(f"s_add_u32 s59, s22, s23\ns_and_b32 s59, s59, 3\ns_mul_i32 s59, s59, {CFG.G1//4}")
    A("s_waitcnt lgkmcnt(0)")
    A("s_cmp_ge_u32 s16, 6\ns_cbranch_scc1 K1_ldW\ns_cmp_ge_u32 s16, 4\ns_cbranch_scc1 K1_ldP")
    srd(A, 32, 6, F*2)
    srd_off(A, 36, 26, U_OFF, U_SZ)
    A("v_bfe_u32 v8, v0, 4, 2\nv_lshlrev_b32 v8, 3, v8")
    A("s_lshl_b32 s3, s23, 8\ns_lshl_b32 s17, s16, 6\ns_add_u32 s3, s3, s17")
    A("buffer_load_dwordx2 v[12:13], v8, s[32:35], s3 offen\nbuffer_load_dwordx2 v[14:15], v8, s[32:35], s3 offen offset:32")
    emit_compute_addr(A, 16, "std")
    A("s_waitcnt vmcnt(0)")
    if CFG.pf1b:
        A(f"s_cmp_ge_u32 s2, 128\ns_cbranch_scc1 K1_nopf\ns_and_b32 s47, s2, 0x78\ns_lshr_b32 s47, s47, 1\ns_add_u32 s47, s47, s16\ns_add_u32 s47, s47, {CFG.pf1}")
        srd(A, 52, 4, S*F*2)
        pf_w1_col(A, 46)
        pf_w1(A, 52, 46, 47, 64, CFG.pf1b, 1, 16)
        A.label("K1_nopf")
    for j in range(2):
        A(f"v_lshlrev_b32 v{V_ACC+j*4}, 16, v{12+2*j}\nv_and_b32 v{V_ACC+j*4+1}, 0xffff0000, v{12+2*j}")
        A(f"v_lshlrev_b32 v{V_ACC+j*4+2}, 16, v{13+2*j}\nv_and_b32 v{V_ACC+j*4+3}, 0xffff0000, v{13+2*j}")
    for i in range(8, 72, 2): A(f"v_pk_mov_b32 {v(V_ACC+i,2)}, {v(V_ACC+i%8,2)}, {v(V_ACC+i%8,2)} op_sel:[0,1]")
    emit_compute_loop(A, 32, "std", (True, True), 20, first=lambda: pt(A, "b1"))
    A("s_barrier")
    pt(A, "m1")
    c0 = -2*math.sqrt(2/math.pi)*LOG2E; c1 = c0*0.044715
    A(f"s_mov_b32 s52, {f2u(c1)}\ns_mov_b32 s53, {f2u(c1)}\nv_mov_b32 v8, {f2u(c0)}\nv_mov_b32 v9, {f2u(c0)}")
    A("s_mul_i32 s17, s22, 144\ns_lshl_b32 s3, s23, 2\ns_add_u32 s17, s17, s3\ns_add_u32 s17, s17, s16")
    A(f"s_add_u32 s49, s17, {FU}\ns_lshl_b32 s49, s49, 6\ns_mul_i32 s17, s17, 9216")
    for t in range(9):
        a0 = V_ACC + t*8
        T = 16 + (t % 2) * 12
        for p in range(4): A(f"v_pk_mul_f32 {v(T+2*p,2)}, {v(a0+2*p,2)}, {v(a0+2*p,2)}")
        for p in range(4): A(f"v_pk_fma_f32 {v(T+2*p,2)}, {v(T+2*p,2)}, s[52:53], v[8:9]")
        for p in range(4): A(f"v_pk_mul_f32 {v(T+2*p,2)}, {v(T+2*p,2)}, {v(a0+2*p,2)}")
        for e in range(8): A(f"v_exp_f32 v{T+e}, v{T+e}")
        for p in range(4): A(f"v_pk_add_f32 {v(T+2*p,2)}, {v(T+2*p,2)}, 1.0 op_sel_hi:[1,0]")
        for e in range(8): A(f"v_rcp_f32 v{T+e}, v{T+e}")
        for p in range(4): A(f"v_pk_mul_f32 {v(T+2*p,2)}, {v(T+2*p,2)}, {v(a0+2*p,2)}")
        for p in range(4): A(f"v_cvt_pk_bf16_f32 v{T+8+p}, v{T+2*p}, v{T+2*p+1}")
        if t and t % 4 == 0: A("s_add_u32 s17, s17, 4096")
        A(f"buffer_store_dwordx4 {v(T+8,4)}, v{V_PA}, s[36:39], s17 offen offset:{(t%4)*1024} {CFG.auxSt}")
    A("s_branch K2_c")
    def g_post():
        A("s_lshr_b32 s49, s2, 3\ns_lshl_b32 s49, s49, 2\ns_add_u32 s49, s49, s16\ns_sub_u32 s49, s49, 4")
        pf_w2(A, 50, 49, 72, CFG.pf2g)
    post = (CFG.pf2g, g_post, CFG.pf2pos) if CFG.pf2g else None
    A.label("K1_ldP")
    srd_off(A, 8, 26, HT_OFF, HT_SZ)
    A(f"s_sub_u32 s17, s16, 4\ns_mul_i32 s21, s22, {64*9216}")
    def wait_ln():
        A(f"v_and_b32 v8, 62, v0\nv_and_b32 v9, 1, v0\nv_lshl_add_u32 v8, v8, 1, v9\ns_lshl_b32 s3, s17, 1\ns_add_u32 s3, s3, {F0+128}\nv_add_lshl_u32 v8, v8, s3, 6")
        poll2(A, 8, 10, CFG.sl0a, CFG.sl0)
        pt(A, "go1")
    emit_loader_lin(A, 32, 9, POFF, 17, 8, 21, 20, 18, CFG.auxP, CFG.G1, post=post, pre=wait_ln)
    A("s_branch K1_ldseam")
    A.label("K1_ldW")
    srd(A, 12, 4, S*F*2)
    A("s_sub_u32 s17, s16, 6\ns_lshl_b32 s21, s23, 8")
    emit_loader_W(A, 32, "std", 17, 12, 21, 9216, 20, 18, CFG.auxW1, CFG.G1, post=post)
    A.label("K1_ldseam")
    A(f"s_barrier\ns_mov_b32 s49, {OOB}\ns_branch K2_ld")
    A.label("K1_notg1")
    A("s_cmp_ge_u32 s18, 30\ns_cbranch_scc1 K1_spare")
    A("s_sub_u32 s18, s18, 18\ns_and_b32 s22, s18, 3\ns_lshr_b32 s19, s17, 1\ns_lshl_b32 s19, s19, 2\ns_add_u32 s22, s22, s19")
    A("s_lshr_b32 s18, s18, 2\ns_and_b32 s17, s17, 1\ns_lshl_b32 s19, s17, 1\ns_add_u32 s23, s19, s18\ns_add_u32 s17, s17, 4")
    A("s_cmp_eq_u32 s18, 2\ns_cselect_b32 s23, s17, s23")
    if CFG.GA: A(f"s_add_u32 s59, s22, s18\ns_and_b32 s59, s59, 3\ns_mul_i32 s59, s59, {CFG.GA}\ns_lshr_b32 s59, s59, 2")
    A("s_waitcnt lgkmcnt(0)")
    A("s_cmp_ge_u32 s16, 6\ns_cbranch_scc1 K1_ldX\ns_cmp_ge_u32 s16, 4\ns_cbranch_scc1 K1_ldF")
    emit_compute_addr(A, 16, "lin")
    for i in range(0, 144, 2): A(f"v_pk_mov_b32 {v(V_ACC+i,2)}, 0, 0")
    A("s_cmp_ge_u32 s23, 4\ns_cbranch_scc1 K1_q")
    emit_compute_loop(A, 18, "lin", (False, True), 20, first=lambda: pt(A, "b1"))
    pt(A, "m1")
    A("s_barrier")
    QB = 48
    A(f"v_and_b32 v2, 15, v1\nv_lshrrev_b32 v3, 4, v1")
    A(f"s_lshl_b32 s3, s16, 5\nv_add_u32 v4, s3, v2\nv_mul_u32_u24 v4, {PHI_RS}, v4\nv_mul_u32_u24 v5, 144, v3\nv_add_u32 v4, v4, v5")
    A(f"s_mul_i32 s3, s16, 9216\ns_add_u32 s3, s3, {V_LDS}\nv_lshlrev_b32 v5, 4, v1\nv_add_u32 v5, s3, v5")
    for t in range(9):
        o = 84 + 4*(t % 3)
        for j in range(2):
            r = accr(1, t, j)
            A(f"v_cvt_pk_bf16_f32 v{o+2*j}, v{r}, v{r+1}\nv_cvt_pk_bf16_f32 v{o+2*j+1}, v{r+2}, v{r+3}")
        A(f"ds_write_b128 v5, {v(o,4)} offset:{t*1024}")
    for j in range(2):
        for e in range(2):
            softmax18(A, pairs(0, j, e), lambda m: QB + 18*e + m)
        for q in range(9): A(f"ds_write_b128 v4, {v(QB+4*q,4)} offset:{j*16*PHI_RS + 16*q}")
    A(f"v_lshrrev_b32 v6, 2, v1\nv_mul_u32_u24 v6, {PHI_RS}, v6\nv_and_b32 v7, 3, v1\nv_lshl_add_u32 v6, v7, 3, v6")
    A("s_mul_i32 s3, s16, 144\nv_add_u32 v6, s3, v6")
    A("s_lshl_b32 s3, s16, 3\nv_subrev_u32 v7, s3, v6")
    A(f"v_add_u32 v8, {64*PHI_RS}, v6\nv_add_u32 v9, {64*PHI_RS}, v7")
    A(f"s_lshl_b32 s3, s16, 11\ns_add_u32 s3, s3, {V_LDS}\nv_lshlrev_b32 v10, 4, v1\nv_add_u32 v10, s3, v10")
    A(f"v_lshlrev_b32 v11, 8, v3\nv_and_b32 v12, 1, v2\nv_lshl_add_u32 v11, v12, 4, v11")
    A(f"s_lshl_b32 s3, s16, 6\ns_add_u32 s3, s3, {V_LDS + 8192}\nv_add_u32 v11, s3, v11")
    A("s_mov_b32 s40, 0x00030003\ns_mov_b32 s41, 0x00030003\nv_mov_b32 v12, 0x3f803f80")
    A("s_waitcnt lgkmcnt(0)\ns_barrier")
    pt(A, "go1")
    DK, FR = 16, 64
    def afr(ks, e, T): return FR + ks*40 + e*12 + T*4
    def bfr(ks, e, mt): return FR + ks*40 + 24 + e*8 + mt*4
    def dk(e, T, mt): return DK + (e*6 + mt*3 + T)*4
    for ks in range(4):
        for e in range(2):
            A(f"ds_read_b128 {v(bfr(ks,e,1),4)}, v11 offset:{ks*9216 + e*32}")
            A(f"ds_read_b128 {v(bfr(ks,e,0),4)}, v10 offset:{ks*9216 + e*1024}")
            for T in range(3):
                a = (7 if T == 2 else 6) + (2 if ks >= 2 else 0)
                off = (ks & 1)*32*PHI_RS + e*72 + T*32
                A(f"ds_read_b64_tr_b16 {v(afr(ks,e,T),2)}, v{a} offset:{off}")
                A(f"ds_read_b64_tr_b16 {v(afr(ks,e,T)+2,2)}, v{a} offset:{off + 16*PHI_RS}")
    srd_off(A, 36, 26, KVP_OFF, KVP_SZ)
    A("s_lshl_b32 s17, s22, 2\ns_add_u32 s17, s17, s23\ns_mul_i32 s17, s17, 24576")
    A("s_add_u32 s19, s17, 16384\ns_add_u32 s29, s17, 22528")
    A("s_lshr_b32 s18, s16, 1\ns_lshl_b32 s18, s18, 11\ns_and_b32 s3, s16, 1\ns_lshl_b32 s3, s3, 9\ns_add_u32 s18, s18, s3\ns_add_u32 s28, s17, s18\ns_add_u32 s28, s28, 18432")
    A("s_lshl_b32 s18, s16, 12\ns_add_u32 s17, s17, s18")
    A("v_lshlrev_b32 v4, 6, v3\nv_lshl_add_u32 v4, v2, 4, v4\nv_lshlrev_b32 v2, 4, v1")
    A("s_waitcnt lgkmcnt(0)")
    for ks in range(4):
        for e in range(2):
            for i in range(4): A(f"v_cndmask_b32 v{bfr(ks,e,1)+i}, v12, v{bfr(ks,e,1)+i}, s[40:41]")
    A("s_nop 1")
    for ks in range(4):
        for e in range(2):
            for mt in range(2):
                for T in range(3):
                    c = "0" if ks == 0 else v(dk(e,T,mt),4)
                    A(f"{MF} {v(dk(e,T,mt),4)}, {v(afr(ks,e,T),4)}, {v(bfr(ks,e,mt),4)}, {c}")
    A("s_lshl_b32 s18, s16, 4\ns_lshl_b64 s[42:43], 0xffff, s18\ns_mov_b32 s44, 0x000f000f\ns_mov_b32 s45, 0x000f000f\ns_nop 7")
    for e in range(2):
        for T in range(2):
            A(f"buffer_store_dwordx4 {v(dk(e,T,0),4)}, v2, s[36:39], s17 offen offset:{e*2048 + T*1024} sc1")
    A("s_mov_b64 exec, s[44:45]")
    for e in range(2):
        for T in range(2):
            A(f"buffer_store_dwordx4 {v(dk(e,T,1),4)}, v4, s[36:39], s28 offen offset:{e*256 + T*1024} sc1")
    A("s_mov_b64 exec, s[42:43]")
    for e in range(2):
        A(f"buffer_store_dwordx4 {v(dk(e,2,0),4)}, v2, s[36:39], s19 offen offset:{e*1024} sc1")
    A("s_and_b64 exec, s[42:43], s[44:45]")
    for e in range(2):
        A(f"buffer_store_dwordx4 {v(dk(e,2,1),4)}, v4, s[36:39], s29 offen offset:{e*1024} sc1")
    A("s_mov_b64 exec, -1")
    A(f"s_lshl_b32 s17, s23, 4\ns_add_u32 s17, s17, {FP}\ns_add_u32 s18, s17, s22\ns_lshl_b32 s18, s18, 6\ns_mov_b32 s49, {OOB}")
    A("s_waitcnt vmcnt(0)\ns_barrier")
    pt(A, "kvp")
    A("s_cmp_lg_u32 s16, 0\ns_cbranch_scc1 K2_c")
    raise_flag(A, 18, 4)
    A("s_cmp_ge_u32 s22, 12\ns_cbranch_scc1 K2_c")
    A("v_and_b32 v3, 15, v1\nv_add_lshl_u32 v3, v3, s17, 6")
    poll(A, 3, 4, CFG.slk)
    srd_off(A, 12, 26, KVF_OFF, KVF_SZ)
    A("s_mul_i32 s18, s23, 12\ns_add_u32 s18, s18, s22")
    A(f"s_add_u32 s49, s18, {FK}\ns_lshl_b32 s49, s49, 6\ns_lshl_b32 s17, s18, 11\ns_lshl_b32 s18, s18, 10")
    A("s_cmp_eq_u32 s22, 11\ns_cselect_b64 exec, 0xffff, -1")
    for tb in range(16):
        A(f"buffer_load_dwordx4 {v(8+8*tb,4)}, v2, s[36:39], s17 offen sc1\nbuffer_load_dwordx4 {v(12+8*tb,4)}, v2, s[36:39], s17 offen offset:1024 sc1")
        A(f"s_add_u32 s17, s17, {48*2048}")
    for tb in range(1, 16):
        A(f"s_waitcnt vmcnt({2*(15-tb)})")
        for p in range(4): A(f"v_pk_add_f32 {v(8+2*p,2)}, {v(8+2*p,2)}, {v(8+8*tb+2*p,2)}")
    for p in range(4): A(f"v_cvt_pk_bf16_f32 v{4+p}, v{8+2*p}, v{9+2*p}")
    A(f"buffer_store_dwordx4 v[4:7], v2, s[12:15], s18 offen {CFG.auxSt}")
    A("s_mov_b64 exec, -1\ns_branch K2_c")
    A.label("K1_q")
    emit_compute_loop(A, 18, "lin", (False, False), 20, first=lambda: pt(A, "b1"))
    A("s_barrier")
    pt(A, "m1")
    A(f"s_lshl_b32 s49, s22, 1\ns_add_u32 s49, s49, s23\ns_lshl_b32 s49, s49, 2\ns_add_u32 s49, s49, s16\ns_add_u32 s49, s49, {FQ-16}\ns_lshl_b32 s49, s49, 6")
    srd_off(A, 36, 26, PHIQ_OFF, PHIQ_SZ)
    A("v_and_b32 v2, 15, v1\nv_lshrrev_b32 v3, 4, v1\nv_lshlrev_b32 v3, 11, v3\nv_lshl_add_u32 v3, v2, 4, v3")
    A("v_lshlrev_b32 v2, 4, v1\nv_add_u32 v2, 8192, v2")
    A("s_lshl_b32 s17, s22, 3\ns_lshl_b32 s18, s16, 1\ns_add_u32 s17, s17, s18\ns_lshl_b32 s17, s17, 1\ns_add_u32 s17, s17, s23\ns_sub_u32 s17, s17, 4\ns_mul_i32 s17, s17, 18432")
    for j in range(2):
        for st in range(2):
            for e in range(2):
                softmax18(A, pairs(st, j, e), lambda m: (QB + e*16 + 4*((m & 7) >> 1) + (m & 1) + 2*(m >> 3)) if m < 16 else QB + 32 + 2*e + m - 16)
                for gg in range(4):
                    A(f"buffer_store_dwordx4 {v(QB+e*16+4*gg,4)}, v3, s[36:39], s17 offen offset:{e*1024 + gg*256} {CFG.auxSt}")
            A(f"buffer_store_dwordx4 {v(QB+32,4)}, v2, s[36:39], s17 offen {CFG.auxSt}")
            A(f"s_add_u32 s17, s17, {9216 if st == 0 else 36864 - 9216}")
    A("s_branch K2_c")
    A.label("K1_ldF")
    srd_off(A, 8, 26, WF_OFF, WF_SZ)
    A(f"s_sub_u32 s17, s16, 4\ns_mul_i32 s21, s23, {18*18432}")
    def wait_fold():
        A("s_lshl_b32 s3, s17, 2\ns_add_u32 s3, s3, s23\ns_add_u32 s3, s3, 4\ns_lshl_b32 s19, s23, 1\ns_add_u32 s19, s19, s17\ns_sub_u32 s19, s19, 8")
        A("s_cmp_ge_u32 s23, 4\ns_cselect_b32 s3, s19, s3\ns_mul_i32 s3, s3, 9\nv_and_b32 v8, 63, v0\nv_min_u32 v8, 8, v8\nv_add_lshl_u32 v8, v8, s3, 6")
        poll2(A, 8, 10, CFG.sl0a, CFG.sl0)
        pt(A, "go1")
    emit_loader_lin(A, 18, 9, POFF, 17, 8, 21, 20, 18, CFG.auxP, CFG.GA, pre=wait_fold)
    A("s_branch K1_ldtail")
    A.label("K1_ldX")
    srd_off(A, 8, 26, XN_OFF, XN_SZ)
    A(f"s_sub_u32 s17, s16, 6\ns_mul_i32 s21, s22, {18*8192}")
    def wait_xn():
        A(f"s_lshl_b32 s3, s22, 1\ns_add_u32 s3, s3, s17\ns_lshl_b32 s3, s3, 2\ns_add_u32 s3, s3, {F0+128}\nv_and_b32 v8, 3, v0\nv_add_lshl_u32 v8, v8, s3, 6")
        poll2(A, 8, 10, CFG.sl0a, CFG.sl0)
        pt(A, "go1")
    emit_loader_lin(A, 18, 4, WOFF, 17, 8, 21, 20, 18, CFG.auxP, CFG.GA, pre=wait_xn)
    A.label("K1_ldtail")
    A("s_lshr_b32 s17, s2, 3\ns_sub_u32 s17, s17, 18\ns_lshl_b32 s17, s17, 2\ns_add_u32 s17, s17, s16\ns_sub_u32 s17, s17, 4")
    A(f"s_mov_b32 s49, {OOB}\ns_barrier\ns_cmp_ge_u32 s23, 4\ns_cbranch_scc1 K1_ldq")
    if CFG.pf2kv:
        A(f"s_add_u32 s17, s17, {72*CFG.pf2g + 16*CFG.pf2s}")
        pf_w2(A, 50, 17, 32, CFG.pf2kv, lim=None if CFG.qlim < 0 else CFG.qlim)
    A("s_barrier\ns_barrier\ns_branch K2_ld")
    A.label("K1_ldq")
    if CFG.c3w2 == 1:
        A("s_sub_u32 s19, s17, 32")
        pf_w2c3(A, 50, 19, 16, 3, lim=0)
    if CFG.pf2q:
        A(f"s_add_u32 s17, s17, {72*CFG.pf2g + 16*CFG.pf2s + 32*CFG.pf2kv - 32}")
        pf_w2(A, 50, 17, 16, CFG.pf2q, lim=None if CFG.qlim < 0 else CFG.qlim)
    A("s_branch K2_ld")
    A.label("K1_spare")
    A("s_waitcnt lgkmcnt(0)")
    if CFG.pf1s or CFG.pf2s:
        A("s_sub_u32 s41, s18, 30\ns_lshl_b32 s41, s41, 3\ns_add_u32 s41, s41, s16")
        A(f"s_add_u32 s43, s41, {72*CFG.pf2g}")
    if CFG.pf1s:
        srd(A, 36, 4, S*F*2)
        pf_w1_col(A, 40)
        A(f"s_add_u32 s41, s41, {320 - 16*CFG.pf1s}\nv_and_b32 v56, 63, v0")
        pf_w1(A, 36, 40, 41, 16, CFG.pf1s, 56, 57, lim=1)
    if CFG.c3w2 == 2:
        A("s_sub_u32 s19, s18, 30\ns_lshl_b32 s19, s19, 3\ns_add_u32 s19, s19, s16")
        pf_w2c3(A, 50, 19, 16, 3, lim=1)
    pf_w2(A, 50, 43, 16, CFG.pf2s, lim=1)
    pt(A, "m1")
    A(f"s_mov_b32 s49, {OOB}\ns_cmp_lt_u32 s16, 5\ns_cbranch_scc1 K1_wot\ns_cmp_lg_u32 s16, 7\ns_cbranch_scc1 K2_ld\ns_cmp_lg_u32 s2, 255\ns_cbranch_scc1 K2_ld")
    for q in range(4):
        A(f"v_and_b32 v8, 63, v0\nv_add_u32 v8, {F0 + 64*q}, v8\nv_lshlrev_b32 v8, 6, v8")
        poll(A, 8, 10)
    A(f"s_mov_b32 s49, {FE*64}\ns_branch K2_ld")
    A.label("K1_wot")
    A("s_sub_u32 s18, s18, 30\ns_lshl_b32 s17, s17, 1\ns_add_u32 s17, s17, s18\ns_and_b32 s22, s17, 3\ns_lshr_b32 s23, s17, 2")
    A("v_and_b32 v1, 63, v0\nv_and_b32 v2, 15, v1\nv_lshrrev_b32 v3, 4, v1\nv_lshlrev_b32 v2, 1, v2")
    A("v_mul_u32_u24 v4, 4608, v3\nv_add_u32 v4, v4, v2")
    A(f"v_mul_u32_u24 v5, 1152, v3\nv_add_u32 v5, v5, v2\nv_add_u32 v5, {12*1152}, v5")
    A(f"v_cmp_gt_u32 vcc, 2, v3\nv_mov_b32 v6, {OOB}\ns_nop 0\nv_cndmask_b32 v5, v6, v5, vcc")
    A("s_waitcnt lgkmcnt(0)")
    srd(A, 8, 24, D*D*2)
    srd_off(A, 12, 26, WOT_OFF, WOT_SZ)
    A(f"s_mul_i32 s28, s23, {144*1152}\ns_mul_i32 s29, s22, 288\ns_add_u32 s28, s28, s29")
    for i in range(8):
        A(f"s_lshl_b32 s29, s16, 3\ns_add_u32 s29, s29, {i}\ns_mul_i32 s30, s29, 205\ns_lshr_b32 s30, s30, 10")
        A("s_mul_i32 s31, s30, 13\ns_add_u32 s31, s31, s29\ns_mul_i32 s31, s31, 1152\ns_add_u32 s31, s31, s28")
        A("s_mul_i32 s30, s30, 5\ns_sub_u32 s30, s29, s30\ns_cmp_eq_u32 s30, 4\ns_cselect_b64 vcc, -1, 0")
        A("v_cndmask_b32 v6, v4, v5, vcc")
        for rt in range(9):
            A(f"buffer_load_ushort v{8+rt*8+i}, v6, s[8:11], s31 offen offset:{rt*32}")
        if i == 3: A("s_waitcnt vmcnt(20)")
    A("s_lshl_b32 s28, s22, 2\ns_add_u32 s28, s28, s23\ns_mul_i32 s28, s28, 5\ns_add_u32 s28, s28, s16")
    A(f"s_add_u32 s49, s28, {FW}\ns_lshl_b32 s49, s49, 6\ns_mul_i32 s28, s28, 9216")
    A("v_lshlrev_b32 v2, 4, v1")
    A("s_waitcnt vmcnt(0)")
    for rt in range(9):
        for q in range(4): A(f"v_lshl_or_b32 v{80+rt*4+q}, v{8+rt*8+2*q+1}, 16, v{8+rt*8+2*q}")
        if rt and rt % 4 == 0: A("s_add_u32 s28, s28, 4096")
        A(f"buffer_store_dwordx4 {v(80+rt*4,4)}, v2, s[12:15], s28 offen offset:{(rt%4)*1024} {CFG.auxSt}")
    A("s_cmp_ge_u32 s16, 4\ns_cbranch_scc1 K2_ld")

def k2_decode(A):
    A("s_and_b32 s17, s2, 7\ns_lshr_b32 s18, s2, 3")
    A("s_lshr_b32 s28, s17, 1\ns_and_b32 s22, s18, 3")
    A("s_and_b32 s17, s17, 1\ns_lshl_b32 s17, s17, 3\ns_lshr_b32 s18, s18, 2\ns_add_u32 s23, s17, s18")
RED_RS = 592
def red_base(w): return w*32*RED_RS if w < 3 else 3*STAGE2
def k2_enter(A):
    A(f"s_load_dwordx4 s[4:7], s[0:1], {KA_W2}\ns_load_dwordx2 s[44:45], s[0:1], {KA_X}\ns_load_dwordx2 s[46:47], s[0:1], {KA_OUT}")
    k2_decode(A)
def gen_k2(A):
    DBG["on"] = True
    KV, MB, CI, PH, TM, PK, O = 8, 80, 92, 96, 132, 168, 204
    A.label("K2_c")
    pt(A, "e1")
    k2_enter(A)
    emit_compute_addr(A, 16, "pi")
    for i in range(0, 72, 2): A(f"v_pk_mov_b32 {v(V_ACC+i,2)}, 0, 0")
    A("s_waitcnt vmcnt(0)")
    raise_flag(A, 49, 8)
    if CFG.bgo: A("s_barrier")
    pt(A, "fl1")
    srd_off(A, 36, 26, PART_OFF, PART_SZ)
    A("s_lshl_b32 s17, s23, 2\ns_add_u32 s17, s17, s22\ns_lshl_b32 s18, s17, 4")
    A("s_lshl_b32 s30, s16, 2\ns_add_u32 s30, s30, s28\ns_add_u32 s30, s30, s18\ns_lshl_b32 s31, s28, 2\ns_add_u32 s31, s31, s16\ns_add_u32 s31, s31, s18")
    A(f"s_mul_i32 s32, s30, 9216\ns_mul_i32 s33, s31, 9216\ns_add_u32 s30, s30, {FX}\ns_lshl_b32 s30, s30, 6\ns_add_u32 s31, s31, {FX}\ns_lshl_b32 s31, s31, 6")
    A(f"s_cmp_eq_u32 s16, s28\ns_cselect_b32 s3, {OOB}, 0\ns_cselect_b32 s30, {OOB}, s30\nv_or_b32 v240, s3, v{V_PA}")
    A(f"s_add_u32 s34, s32, 4096\ns_add_u32 s35, s32, 8192")
    A("s_waitcnt lgkmcnt(0)")
    k2_final_prep(A, 1)
    A(f"s_mul_i32 s3, s16, 9216\nv_add_u32 v241, s3, v{V_PA}")
    A("v_and_b32 v8, 15, v1\nv_cmp_eq_u32 vcc, 0, v8\nv_cmp_eq_u32 s[40:41], 4, v8\nv_lshrrev_b32 v9, 4, v1\nv_lshlrev_b32 v10, 6, v9")
    A(f"v_cndmask_b32 v11, 32, 0, vcc\nv_cndmask_b32 v11, v11, 16, s[40:41]\ns_add_u32 s3, s3, {3*STAGE}\nv_add3_u32 v242, v11, v10, s3")
    A("v_bfe_u32 v10, v1, 2, 2\nv_cmp_eq_u32 vcc, v10, v9\nv_and_b32 v10, 1, v1\nv_lshlrev_b32 v10, 4, v10\nv_mov_b32 v11, 0x3f80")
    A("v_lshlrev_b32 v11, v10, v11\nv_cndmask_b32 v11, 0, v11, vcc\nv_and_b32 v10, 2, v1\nv_cmp_eq_u32 vcc, 0, v10")
    A(f"v_mul_u32_u24 v8, {RED_RS}, v8\nv_lshl_add_u32 v8, v9, 4, v8")
    A("v_cndmask_b32 v252, 0, v11, vcc\nv_cndmask_b32 v253, v11, 0, vcc")
    A(f"s_mul_i32 s17, s16, {32*RED_RS}\ns_cmp_eq_u32 s16, 3\ns_cselect_b32 s17, {red_base(3)}, s17\nv_add_u32 v254, s17, v8")
    for hp in range(4): A(f"s_mov_b32 s{8+2*hp}, {0xffff << (16*hp) & 0xffffffff}\ns_mov_b32 s{9+2*hp}, {(0xffff << (16*hp)) >> 32}")
    def pub(t):
        L = [f"v_cvt_pk_bf16_f32 v{PK+4*t+p}, v{V_ACC+8*t+2*p}, v{V_ACC+8*t+2*p+1}" for p in range(4)]
        L.append(f"buffer_store_dwordx4 {v(PK+4*t,4)}, v240, s[36:39], s{(32, 34, 35)[t//4]} offen offset:{(t%4)*1024} sc1")
        return L
    lastfill = [""]*9
    for t in range(4): lastfill += ["\n".join(pub(t)[:3]), "\n".join(pub(t)[3:])]
    lastfill += ["\n".join(pub(4))]
    emit_compute_loop(A, 18, "pi", (False, False), 20, first=lambda: pt(A, "b2"), lastfill=lastfill)
    pt(A, "m2")
    def vread(stage, dst):
        slot = stage % NST
        return [f"ds_read_b128 {v(dst+4*b,4)}, v{5 if slot >= 2 else 4} offset:{(slot & 1)*STAGE + b*1024}" for b in range(9)]
    A(f"v_mov_b32 v4, v241\nv_add_u32 v5, {2*STAGE}, v241")
    if CFG.pubpos == 0:
        for t in range(5, 9):
            for x in pub(t): A(x)
    A("s_barrier")
    for r in vread(18, KV): A(r)
    if CFG.pubpos == 1:
        for t in range(5, 9):
            for x in pub(t): A(x)
    pt(A, "pub")
    A(f"v_mov_b32 v{MB+2}, 0\nv_mov_b32 v{MB+3}, 0\nv_mov_b32 v{CI}, 0\nv_mov_b32 v{CI+1}, {f2u(1e-6)}\nv_mov_b32 v{CI+2}, 0\nv_mov_b32 v{CI+3}, 0")
    A("s_waitcnt lgkmcnt(0)")
    pt(A, "v0")
    A("s_barrier")
    for b in range(9): A(f"ds_read_b128 {v(KV+36+4*b,4)}, v242 offset:{b*256}")
    A("s_waitcnt lgkmcnt(0)")
    pt(A, "v1")
    def o_mask(hp):
        return [f"v_cndmask_b32 v{MB+(i if i < 2 else i+2)}, 0, v{PH+32+i}, {s(8+2*hp,2)}" for i in range(4)]
    def o_mfma(hp):
        T = TM + 16*(hp & 1)
        a = [f"{MF} {v(T+8*e+4*mt,4)}, {v(KV+36*mt+4*(2*hp+e),4)}, {v(PH+4*(2*hp+e),4)}, {v(CI,4) if mt else 0}" for e in range(2) for mt in (1, 0)]
        b = [f"{MF} {v(T+8*e+4*mt,4)}, {v(KV+36*mt+32,4)}, {v(MB+2*e,4)}, {v(T+8*e+4*mt,4)}" for e in range(2) for mt in (1, 0)]
        return a, b
    def o_valu(hp, j):
        T = TM + 16*(hp & 1)
        L = [f"v_rcp_f32 v{T+8*e+6}, v{T+8*e+5}" for e in range(2)]
        L += ["s_nop 0"]
        for e in range(2):
            L += [f"v_pk_mul_f32 {v(T+8*e+2*q,2)}, {v(T+8*e+2*q,2)}, {v(T+8*e+6,2)} op_sel_hi:[1,0]" for q in range(2)]
            L += [f"v_mul_f32 v{T+8*e+4}, v{T+8*e+4}, v{T+8*e+6}"]
        vals = [T+8*e+i for e in range(2) for i in range(5)]
        for p in range(5):
            pi = 5*hp + p
            L.append(f"v_cvt_pk_bf16_f32 v{O + (pi>>2)*8 + 4*j + (pi&3)}, v{vals[2*p]}, v{vals[2*p+1]}")
        return L
    def ophase(j):
        A("s_waitcnt lgkmcnt(0)")
        if j == 0: pt(A, "v2")
        for hp in range(4):
            a, b = o_mfma(hp)
            mk = o_mask(hp)
            va = o_valu(hp-1, j) if hp else []
            A(a[0]); A(mk[0]); A(mk[1]); A(a[1]); A(mk[2]); A(mk[3]); A(a[2]); A(a[3])
            k = 0
            for i, m in enumerate([None] + b):
                if m: A(m)
                n = (len(va) - k + (4 - i)) // (5 - i)
                for x in va[k:k+n]: A(x)
                k += n
        A("s_nop 5")
        for x in o_valu(3, j): A(x)
    def flag_x():
        A("s_waitcnt vmcnt(0)")
        raise_flag(A, 30, 88)
    A("s_barrier")
    for r in vread(20, PH): A(r)
    if CFG.flagpos == 0: flag_x()
    ophase(0)
    pt(A, "o0")
    if CFG.flagpos == 1: flag_x()
    A("s_barrier")
    for r in vread(21, PH): A(r)
    ophase(1)
    pt(A, "o1")
    if CFG.flagpos == 2: flag_x()
    A("s_barrier")
    for r in vread(22, KV): A(r)
    SM = MB
    A(f"v_mov_b32 v{SM}, v252\nv_mov_b32 v{SM+1}, v253\nv_mov_b32 v{SM+4}, v252\nv_mov_b32 v{SM+5}, v253\nv_mov_b32 v3, s31")
    for u in range(4):
        M = [f"{MF} {acc(0,t,j)}, {v(KV+36*(u&1)+4*t,4)}, {v(O+8*u+4*j,4)}, {acc(0,t,j) if u else 0}" for t in range(9) for j in range(2)]
        if u == CFG.pollpos: A("buffer_load_dwordx2 v[6:7], v3, s[96:99], 0 offen sc1")
        block(A, M, vread(23+u, KV+36*((u+1)&1)), True)
        pt(A, f"u{u}")
        if u == CFG.pollpos:
            L = A.newlabel("Lr"); L2 = A.newlabel("Lr")
            A(f"s_cmp_eq_u32 s16, s28\ns_cbranch_scc1 {L}")
            A(f"s_waitcnt vmcnt(0)\nv_cmp_ne_u64 vcc, s[100:101], v[6:7]\ns_nop 4\ns_cbranch_vccz {L2}")
            poll(A, 3, 6)
            A.label(L2)
            for t in range(9):
                if t and t % 4 == 0: A("s_add_u32 s33, s33, 4096")
                A(f"buffer_load_dwordx4 {v(PK+4*t,4)}, v{V_PA}, s[36:39], s33 offen offset:{(t%4)*1024} sc1")
            A.label(L)
            pt(A, "poll")
    A("s_waitcnt lgkmcnt(0)")
    def wr(t): return "\n".join(f"ds_write_b128 v254, {acc(0,t,j)} offset:{j*16*RED_RS + t*64}" for j in range(2))
    for t in range(9):
        for j in range(2): A(f"{MF} {acc(0,t,j)}, {v(KV+4*t,4)}, {v(O+32+4*j,4)}, {acc(0,t,j)}")
        A(f"s_waitcnt vmcnt({8-t})")
        for j in range(2): A(f"{MF} {acc(0,t,j)}, {v(SM+2*j,4)}, {v(PK+4*t,4)}, {acc(0,t,j)}")
        if t >= 2: A(wr(t-2))
    pt(A, "add")
    A("s_nop 0")
    A(wr(7))
    A("s_nop 3")
    A(wr(8))
    A.label("K2_fin")
    A("s_waitcnt lgkmcnt(0)\ns_barrier")
    pt(A, "red")
    def fin(n):
        R = 8
        FI = (244, 232)[n]; XB = FI + 4
        for w in range(4):
            a, o = (FI+1, red_base(w)) if w < 3 else (FI+2, 0)
            A(f"ds_read_b128 {v(R+8*w,4)}, v{a} offset:{o}\nds_read_b128 {v(R+8*w+4,4)}, v{a} offset:{o+16}")
        if n == 0: A("s_waitcnt vmcnt(0)")
        for i in range(4):
            A(f"v_lshlrev_b32 v{40+2*i}, 16, v{XB+i}\nv_and_b32 v{41+2*i}, 0xffff0000, v{XB+i}")
        A(f"v_lshlrev_b32 v48, 16, v{FI+3}")
        for p in range(4): A(f"v_pk_add_f32 {v(40+2*p,2)}, {v(40+2*p,2)}, v[48:49] op_sel_hi:[1,0]")
        for w in range(4):
            A(f"s_waitcnt lgkmcnt({2*(3-w)})")
            for p in range(4): A(f"v_pk_add_f32 {v(40+2*p,2)}, {v(40+2*p,2)}, {v(R+8*w+2*p,2)}")
        for p in range(4): A(f"v_cvt_pk_bf16_f32 v{52+4*n+p}, v{40+2*p}, v{41+2*p}")
        A(f"buffer_store_dwordx4 {v(52+4*n,4)}, v{FI}, s[52:55], s50 offen {CFG.auxOut}")
    fin(0)
    A("s_cmp_lg_u32 s16, 7\ns_cbranch_scc1 K2_done")
    fin(1)
    A.label("K2_done")
    pt(A, "fin")
    stamp_flush(A)
    A("s_endpgm")
    A.label("K2_ld")
    pt(A, "e1")
    k2_enter(A)
    A(f"s_cmp_eq_u32 s49, {OOB}\ns_cbranch_scc1 K2_ld1\ns_waitcnt vmcnt(0)")
    raise_flag(A, 49, 8)
    A.label("K2_ld1")
    if CFG.G2: A(f"s_add_u32 s59, s22, s23\ns_and_b32 s59, s59, 3\ns_mul_i32 s59, s59, {CFG.G2}\ns_lshr_b32 s59, s59, 2")
    A(f"s_sub_u32 s29, s16, 4\ns_mul_i32 s34, s29, 9216")
    A(f"s_mul_i32 s30, s29, 12288\ns_add_u32 s30, s30, {KVF_OFF}")
    A(f"s_lshl_b32 s31, s23, 2\ns_add_u32 s31, s31, s28\ns_mul_i32 s31, s31, 73728\ns_add_u32 s31, s31, s34\ns_add_u32 s31, s31, {PHIQ_OFF}")
    A(f"s_lshl_b32 s32, s22, 2\ns_add_u32 s32, s32, s29\ns_mul_i32 s32, s32, 46080\ns_add_u32 s32, s32, {WOT_OFF}")
    A("v_and_b32 v24, 63, v0\nv_lshlrev_b32 v20, 4, v24\nv_add_u32 v21, 4096, v20\nv_add_u32 v22, 8192, v20")
    srd(A, 36, 26, PART_OFF)
    A("s_waitcnt lgkmcnt(0)")
    k2_final_prep(A, 2)
    A(f"s_mul_i32 s40, s29, 12\ns_add_u32 s40, s40, {FK}\nv_add_u32 v28, s40, v24\nv_cmp_gt_u32 vcc, 12, v24")
    A(f"s_lshl_b32 s40, s22, 2\ns_add_u32 s40, s40, s29\ns_mul_i32 s40, s40, 5\ns_add_u32 s40, s40, {FW-12}\nv_add_u32 v29, s40, v24\nv_cndmask_b32 v28, v29, v28, vcc")
    A("v_cmp_gt_u32 vcc, 17, v24\ns_lshl_b32 s40, s23, 1\ns_lshr_b32 s41, s29, 1\ns_add_u32 s40, s40, s41\ns_lshl_b32 s40, s40, 2\ns_add_u32 s40, s40, s28")
    A(f"s_add_u32 s40, s40, {FQ}\nv_mov_b32 v29, s40\nv_cndmask_b32 v28, v29, v28, vcc\nv_lshlrev_b32 v28, 6, v28")
    hook = {15: lambda: A("buffer_load_dwordx2 v[30:31], v28, s[96:99], 0 offen sc1")}
    def tail(so, step, nb=9, check=False):
        def emit(slot):
            if check:
                L = A.newlabel("Lt")
                A(f"v_cmp_ne_u64 vcc, s[100:101], v[30:31]\ns_nop 4\ns_cbranch_vccz {L}")
                poll(A, 28, 30)
                A.label(L)
            for j in range(nb):
                if j % 4 == 0: A(f"s_add_u32 m0, s34, {slot*STAGE + (j//4)*4096}\ns_nop 0")
                if nb == 3 and j == 2: A("s_mov_b64 exec, 0xffff")
                A(f"buffer_load_dwordx4 v{20+j//4}, s[36:39], s{so} offen offset:{(j%4)*1024} sc1 lds")
                if nb == 3 and j == 2: A("s_mov_b64 exec, -1")
            A(f"s_add_u32 s{so}, s{so}, {step}")
        return (nb, emit)
    extra = [tail(30, 9216, check=True), tail(30, 0, 3)] + [tail(31, 36864)]*2 + [tail(32, 9216)]*5
    A("s_cmp_ge_u32 s16, 6\ns_cbranch_scc1 K2_ldW")
    srd_off(A, 8, 26, U_OFF, U_SZ)
    A(f"s_sub_u32 s17, s16, 4\ns_lshl_b32 s21, s22, 2\ns_add_u32 s21, s21, s28\ns_mul_i32 s40, s21, 36\ns_mul_i32 s21, s21, {36*9216}")
    def wait_u():
        A(f"s_add_u32 s40, s40, s17\ns_add_u32 s40, s40, {FU}\nv_min_u32 v8, 17, v24\nv_lshl_add_u32 v8, v8, 1, s40\nv_lshlrev_b32 v8, 6, v8")
        if CFG.bgo: A("s_barrier")
        poll2(A, 8, 10, CFG.sl1, CFG.sl2)
        pt(A, "go2")
    emit_loader_lin(A, 18, 9, POFF, 17, 8, 21, 20, 18, CFG.auxP, CFG.G2, extra=extra, pre=wait_u, hook=hook)
    A("s_branch K2_fin")
    A.label("K2_ldW")
    srd(A, 12, 4, S*F*2)
    A(f"s_sub_u32 s17, s16, 6\ns_mul_i32 s21, s28, {1152*4096}\ns_lshl_b32 s18, s23, 8\ns_add_u32 s21, s21, s18")
    every = None
    if CFG.pft:
        A("v_mul_u32_u24 v25, 1920, v24")
        A(f"s_lshl_b32 s40, s23, 2\ns_add_u32 s40, s40, s28\ns_lshl_b32 s40, s40, 2\ns_add_u32 s40, s40, s22\ns_mul_i32 s40, s40, 18432\ns_add_u32 s40, s40, {PHIQ_OFF}")
        A(f"s_and_b32 s41, s23, 7\ns_lshl_b32 s42, s22, 3\ns_add_u32 s41, s41, s42\ns_mul_i32 s42, s41, 1536\ns_add_u32 s42, s42, {KVF_OFF}\ns_mul_i32 s41, s41, 23040\ns_add_u32 s41, s41, {WOT_OFF}")
        A(f"s_cmp_eq_u32 s16, 6\ns_cselect_b32 s40, s40, s41\ns_cselect_b32 s41, 10, 12\ns_cselect_b32 s48, 0x7ff, -1\ns_and_b32 s48, s48, 0xfff\ns_mov_b32 s49, 0")
        A(f"v_cmp_gt_u32 vcc, s41, v24\nv_add_u32 v25, s40, v25\nv_mov_b32 v26, s42\ns_mov_b32 s42, 0\nv_cndmask_b32 v26, v26, v25, vcc\nv_mov_b32 v25, {OOB}")
        def every():
            A(f"s_mov_b64 exec, s[48:49]\nbuffer_load_dword v{SINK}, v25, s[36:39], s42 offen sc1\ns_mov_b64 exec, -1\ns_add_u32 s42, s42, 128")
    def mid():
        if CFG.pft: A("v_mov_b32 v25, v26\ns_mov_b32 s42, 0")
        if CFG.bgo == 1: A("s_barrier")
    if CFG.bgo == 2: A("s_barrier")
    emit_loader_W(A, 18, "pi", 17, 12, 21, 4096, 20, 18, CFG.auxW2, CFG.G2, extra=extra, every=every, mid=mid, hook=hook)
    A("s_branch K2_fin")
    A.label("K_end")
    A("s_endpgm")
    DBG["on"] = False

def k2_final_prep(A, nitems):
    srd(A, 8, 44, S*D*2)
    srd(A, 12, 6, S*2)
    srd(A, 52, 46, S*D*2)
    A("s_lshl_b32 s50, s23, 2\ns_add_u32 s50, s50, s28\ns_lshl_b32 s51, s50, 6\ns_mul_i32 s50, s50, 36864\ns_mul_i32 s17, s22, 288\ns_add_u32 s50, s50, s17")
    for n in range(nitems):
        FI = (244, 232)[n]; XB = FI + 4
        if n: A(f"v_mov_b32 v{FI}, {OOB}\ns_cmp_lg_u32 s16, 7\ns_cbranch_scc1 K2_fp1")
        A("v_mov_b32 v252, v0" if n == 0 else "v_and_b32 v252, 63, v0\nv_add_u32 v252, 512, v252")
        A("v_mul_u32_u24 v253, 3641, v252\nv_lshrrev_b32 v253, 16, v253\nv_mul_u32_u24 v254, 18, v253\nv_sub_u32 v254, v252, v254")
        A(f"v_mul_u32_u24 v252, 1152, v253\nv_lshl_add_u32 v{FI}, v254, 4, v252")
        A(f"v_mul_u32_u24 v252, {RED_RS}, v253\nv_lshl_add_u32 v{FI+1}, v254, 5, v252\nv_add_u32 v{FI+2}, {red_base(3)}, v{FI+1}")
        A("v_lshlrev_b32 v253, 1, v253")
        A(f"buffer_load_dwordx4 {v(XB,4)}, v{FI}, s[8:11], s50 offen\nbuffer_load_ushort v{FI+3}, v253, s[12:15], s51 offen")
        if n: A.label("K2_fp1")

HEADER = open("parallel_sum__linear_kernel_hedgehog__mixer_token_mlp__prompt.s.ref").read().split("; Override launch")[0] if __name__ == "__main__" else ""

def gen(**kw):
    global CFG
    for k in dir(Cfg):
        if not k.startswith("_"): setattr(CFG, k, kw.get(k, getattr(Cfg, k)))
    A = Asm()
    if HEADER: A(HEADER.rstrip())
    A(f"; @launch grid=(256,1,1) block=(512,1,1) lds={NST*STAGE}")
    A('.amdgcn_target "amdgcn-amd-amdhsa--gfx950"\n.text')
    gen_k0(A); gen_k1(A); gen_k2(A)
    A.label("CODE_END")
    A("s_endpgm")
    A('.section .rodata,"a"')
    kernel_desc(A, KNAME, 256)
    return A.text()

if __name__ == "__main__":
    out = sys.argv[1] if len(sys.argv) > 1 else "parallel_sum__linear_kernel_hedgehog__mixer_token_mlp__prompt.s"
    kw = {}
    for a in sys.argv[2:]:
        k, val = a.split("=")
        kw[k] = val if not val.isdigit() else int(val)
    open(out, "w").write(gen(**kw))
```

```python
import math, struct, sys
from asmlib import *

def f2u(x): return struct.unpack("<I", struct.pack("<f", x))[0]
LOG2E = math.log2(math.e)
OOB = 0x80000000

S, D, F, H, DH = 2048, 576, 4608, 32, 18
KA_X, KA_WQKV, KA_WPHI, KA_WO, KA_BX, KA_W1, KA_B1, KA_W2, KA_B2, KA_OUT, KA_DBG, KA_WS = [8*i for i in range(12)]
RS_OFF, RS_SZ = 0x0, 128*128
HT_OFF, HT_SZ = 0x240000, 2359296
WF_OFF, WF_SZ = 0x480000, 6*18*18*1024
U_OFF, U_SZ = 0x680000, 5308416
PHIQ_OFF, PHIQ_SZ = 0xC00000, 4718592
KVP_OFF, KVP_SZ = 0x1080000, 16*48*2048
KVF_OFF, KVF_SZ = 0x12C0000, 48*1024
WOT_OFF, WOT_SZ = 0x1300000, 16*45*1024
OB_OFF, OB_SZ = 0x2000000, 64*4*10240
PART_OFF, PART_SZ = 0x1400000, 64*16*9216
FLAG_OFF, FLAG_SZ = 0x1F00000, 0x37000
F0, FU, FQ, FW, FK, FP, FX, FE, F1, FO = 0, 256, 832, 960, 1040, 1088, 1152, 2176, 2240, 3264
KNAME = "parallel_sum__linear_kernel_hedgehog__mixer_token_mlp__prompt_kernel"
SINK = 255
STAMP_OFF, STAMP_SZ = 0x3000000, 0x100000

STAGE, POFF, WOFF, NST = 36864, 0, 18432, 4
STAGE2 = STAGE
V_PA, V_PB, V_W0A, V_W1A, V_W0B, V_W1B = 2, 3, 4, 5, 6, 7
V_PF, V_WF, V_ACC = 8, 80, 96
def pf(b, t): return v(V_PF + b*36 + t*4, 4)
def wf(b, j): return v(V_WF + b*8 + j*4, 4)
def accr(st, t, j): return V_ACC + st*72 + (t*2+j)*4
def acc(st, t, j): return v(accr(st, t, j), 4)
MF = "v_mfma_f32_16x16x32_bf16"

class Cfg:
    stamp = False
    auxW1 = ""; auxW2 = ""; auxP = "sc1"; auxSt = "sc1"
    G1 = 0; G2 = 0; GA = 0
    auxOut = ""; flagpos = 1; pollpos = 1
    pts = ""; pf1b = 0; pf2w = 0; pubpos = 0; pf2l = 0; pf2ls = 0; ost = 0; slo2 = 1; slx = 0; slo = 4; opos = 0; dl0 = 0; dlf = 0; dlw = 0; pff = 0; wide = 0; wot1 = 0; pf1q = 0; slim = 1; unroll = 0; sl0a = 0; wlate = 0; qlim = -1; pfbar = 0; pf1a = 0; c3w2 = 0; c3w1 = 0; swap13 = 1; tlb = 0; sl1 = 0; sl2 = 0; bgo = 0; sl0 = 0; slk = 0
    dbg_nopub = 0; dbg_hot = 0; dbg = ""
    pfc = 0
    pf1 = 0
    pf1l = 0; pf1rev = 0; pf2g = 0; pf2pos = 3
    pf1pos = 0
    pf1s = 0
    pft = 0
    pf2kv = 0; pf2q = 0; pf2s = 0
    probe = ""
CFG = Cfg()

def stamp(A, i):
    if CFG.stamp: A(f"{'s_memtime' if CFG.stamp == 2 else 's_memrealtime'} s[{64+2*i}:{65+2*i}]")
def pt(A, name):
    L = CFG.pts.split(",")
    if name in L: stamp(A, 1 + L.index(name))
def stamp_flush(A):
    if not CFG.stamp: return
    A("s_waitcnt vmcnt(0)")
    stamp(A, 13)
    A("s_waitcnt lgkmcnt(0)")
    srd_off(A, 92, 26, STAMP_OFF, STAMP_SZ)
    A("s_lshl_b32 s63, s2, 3\ns_add_u32 s63, s63, s16\ns_lshl_b32 s63, s63, 6\ns_mov_b64 exec, 1\nv_mov_b32 v1, 0")
    for i in range(14):
        A(f"v_mov_b32 v2, s{64+2*i}\nbuffer_store_dword v2, v1, s[92:95], s63 offen offset:{4*i}")

def emit_compute_addr(A, s_wave, mode):
    A("v_and_b32 v1, 63, v0")
    A(f"v_lshlrev_b32 v{V_PA}, 4, v1")
    A(f"v_add_u32 v{V_PB}, {2*STAGE}, v{V_PA}")
    if mode == "lin":
        A("v_lshrrev_b32 v8, 5, v1\nv_lshlrev_b32 v8, 12, v8\nv_bfe_u32 v9, v1, 4, 1\nv_lshl_add_u32 v8, v9, 7, v8\nv_bfe_u32 v9, v1, 2, 2\nv_lshl_add_u32 v8, v9, 4, v8")
        A("v_bfe_u32 v9, v1, 1, 1\nv_mul_u32_u24 v9, 320, v9\nv_add_u32 v8, v8, v9\nv_and_b32 v9, 1, v1\nv_lshl_add_u32 v8, v9, 3, v8")
        A(f"s_lshl_b32 s3, s{s_wave}, 10\ns_add_u32 s3, s3, {WOFF}\nv_add_u32 v{V_W0A}, s3, v8")
        A(f"v_xor_b32 v{V_W1A}, 64, v{V_W0A}\nv_add_u32 v{V_W0B}, {2*STAGE}, v{V_W0A}\nv_add_u32 v{V_W1B}, {2*STAGE}, v{V_W1A}")
        return
    A("v_lshrrev_b32 v8, 2, v1")
    A("v_and_b32 v9, 7, v8")
    if mode == "std":
        A("v_and_b32 v10, 12, v8\nv_add_u32 v8, v8, v10")
    A(f"s_lshl_b32 s3, s{s_wave}, 1")
    A("v_xor_b32 v9, s3, v9\nv_lshlrev_b32 v9, 5, v9\nv_lshl_add_u32 v9, v8, 8, v9")
    A("v_and_b32 v8, 3, v1\nv_lshl_add_u32 v9, v8, 3, v9")
    A(f"v_add_u32 v{V_W0A}, {WOFF}, v9")
    A(f"v_xor_b32 v{V_W1A}, 32, v{V_W0A}")
    A(f"v_add_u32 v{V_W0B}, {2*STAGE}, v{V_W0A}")
    A(f"v_add_u32 v{V_W1B}, {2*STAGE}, v{V_W1A}")

def reads_P(slot, sub, b):
    a = V_PB if slot >= 2 else V_PA
    so = (slot & 1) * STAGE
    return [f"ds_read_b128 {pf(b,t)}, v{a} offset:{so + (sub*9+t)*1024}" for t in range(9)]
def reads_W(slot, sub, b, mode):
    hi = slot >= 2
    so = (slot & 1) * STAGE
    R = []
    if mode == "lin":
        a = (V_W0B, V_W1B) if hi else (V_W0A, V_W1A)
        return [f"ds_read_b64_tr_b16 {v(V_WF + b*8 + j*4 + 2*h, 2)}, v{a[h]} offset:{so + j*512}" for j in range(2) for h in range(2)]
    second = 1024 if mode == "std" else 4096
    for j in range(2):
        a = (V_W0B, V_W1B)[j] if hi else (V_W0A, V_W1A)[j]
        base = V_WF + b*8 + j*4
        R.append(f"ds_read_b64_tr_b16 {v(base,2)}, v{a} offset:{so + sub*8192}")
        R.append(f"ds_read_b64_tr_b16 {v(base+2,2)}, v{a} offset:{so + sub*8192 + second}")
    return R

DBG = {"on": False}
def dbg(x): return DBG["on"] and x in CFG.dbg.split(",")
def block(A, M, R, barrier):
    if dbg("nomfma"): M = ["s_nop 3"]*len(M)
    if dbg("noread"): R = []
    if dbg("noreadP"): R = [r for r in R if "tr_b16" in r]
    if dbg("halfP"): R = [r for i, r in enumerate(R) if "tr_b16" in r or i % 2]
    A("s_waitcnt lgkmcnt(0)")
    if barrier: A("s_barrier")
    ri = 0
    for m in M:
        A(m)
        if ri < len(R):
            if R[ri]: A(R[ri])
            ri += 1
    assert ri == len(R)

def mfmas(st, pb, wb, w_is_A):
    M = []
    for t in range(9):
        for j in range(2):
            a, b = (wf(wb,j), pf(pb,t)) if w_is_A else (pf(pb,t), wf(wb,j))
            M.append(f"{MF} {acc(st,t,j)}, {a}, {b}, {acc(st,t,j)}")
    return M

def emit_compute_loop(A, n, mode, w_is_A, s_cnt, first=None, lastfill=None, hooks=None, loopend=None, more=None):
    lin = mode == "lin"
    A("s_barrier")
    if first: first()
    for r in reads_W(0, 0, 0, mode) + reads_P(0, 0, 0): A(r)
    def stage(i, last):
        slot = i % NST; nxt = (i+1) % NST
        if lin:
            wb = i & 1
            block(A, mfmas(0, 0, wb, w_is_A[0]), reads_P(slot, 1, 1), False)
            block(A, mfmas(1, 1, wb, w_is_A[1]), (lastfill or []) if last else reads_W(nxt, 0, wb ^ 1, mode) + reads_P(nxt, 0, 0), not last)
        else:
            x0, x1 = (more or {}).get(i, ([], []))
            block(A, mfmas(0, 0, 0, w_is_A[0]), reads_W(slot, 1, 1, mode) + reads_P(slot, 1, 1) + x0, False)
            block(A, mfmas(0, 1, 1, w_is_A[1]), (lastfill or []) if last else reads_W(nxt, 0, 0, mode) + reads_P(nxt, 0, 0) + x1, not last)
    if CFG.unroll and mode == ("std", "pi")[CFG.unroll-1]:
        for i in range(n):
            stage(i, i == n-1); pt(A, f"s{i}")
        return
    nloop = (n - 1) // NST
    L = A.newlabel("Lc")
    A(f"s_mov_b32 s{s_cnt}, {nloop}")
    A.label(L)
    for i in range(NST): stage(i, False)
    if loopend: loopend()
    A(f"s_sub_u32 s{s_cnt}, s{s_cnt}, 1\ns_cmp_lg_u32 s{s_cnt}, 0\ns_cbranch_scc1 {L}")
    for i in range(nloop*NST, n):
        if hooks and i in hooks: hooks[i]()
        stage(i, i == n-1)

def rot_init(A, G, s_rot, s_off, step):
    if not G: return
    A(f"s_mul_i32 s62, s{s_rot}, {step}\ns_add_u32 s{s_off}, s{s_off}, s62")
    A(f"s_sub_u32 s60, {G}, s{s_rot}\ns_mov_b32 s61, {G}")
def rot_step(A, G, s_off, step):
    if dbg("noadv"): return
    if "k1W" in CFG.dbg and step == 64*9216: return
    if "k1P" in CFG.dbg and DBG.get("k1P"): return
    A(f"s_add_u32 s{s_off}, s{s_off}, {step}")
    if not G: return
    A(f"s_sub_u32 s60, s60, 1\ns_cmp_eq_u32 s60, 0\ns_cselect_b32 s62, {G*step}, 0\ns_cselect_b32 s60, {G}, s60\ns_sub_u32 s{s_off}, s{s_off}, s62")
    A(f"s_sub_u32 s61, s61, 1\ns_cmp_eq_u32 s61, 0\ns_cselect_b32 s62, {G*step}, 0\ns_cselect_b32 s61, {G}, s61\ns_add_u32 s{s_off}, s{s_off}, s62")

def emit_loader(A, n, cnt, issue, s_cnt, extra=None, hook=None, post=None, pre=None, mid=None):
    extra = extra or []
    tot = n + len(extra)
    hook = hook or {}
    def c(i): return 0 if i >= tot else (cnt + (i in hook) if i < n else extra[i-n][0])
    if pre: pre()
    for i in range(3): issue(i)
    if mid: mid()
    nloop = (n - 3) // NST
    L = A.newlabel("Ll")
    A(f"s_mov_b32 s{s_cnt}, {nloop}")
    A.label(L)
    for i in range(NST):
        A(f"s_waitcnt vmcnt({2*cnt})\ns_barrier")
        issue((i+3) % NST)
    A(f"s_sub_u32 s{s_cnt}, s{s_cnt}, 1\ns_cmp_lg_u32 s{s_cnt}, 0\ns_cbranch_scc1 {L}")
    for i in range(nloop*NST, tot):
        A(f"s_waitcnt vmcnt({c(i+1)+c(i+2) + (post[0] if post and i > n-post[2] else 0)})\ns_barrier")
        if post and i == n-post[2]: post[1]()
        if i+3 in hook: hook[i+3]()
        if i+3 < n: issue((i+3) % NST)
        elif i+3 < tot: extra[i+3-n][1]((i+3) % NST)

def emit_loader_lin(A, n, per, ldsoff, s_lw, srdP, s_off, s_cnt, s_tmp, aux="", G=0, s_rot=59, extra=None, post=None, pre=None, hook=None):
    rot_init(A, G, s_rot, s_off, 2*per*1024)
    A("v_and_b32 v1, 63, v0\nv_lshlrev_b32 v1, 4, v1")
    A(f"s_mul_i32 s{s_tmp}, s{s_lw}, {per*1024}")
    A(f"v_add_u32 v2, s{s_tmp}, v1")
    for q in range(1, (per+3)//4): A(f"v_add_u32 v{2+q}, {q*4096}, v2")
    def issue(slot):
        for j in range(per):
            if j % 4 == 0:
                A(f"s_add_u32 m0, s{s_tmp}, {slot*STAGE + ldsoff + (j//4)*4096}\ns_nop 0")
            if not dbg("noload"): A(f"buffer_load_dwordx4 v{2+j//4}, {s(srdP,4)}, s{s_off} offen offset:{(j%4)*1024} {aux} lds")
        rot_step(A, G, s_off, 2*per*1024)
    emit_loader(A, n, per, issue, s_cnt, extra, hook=hook, post=post, pre=pre)

def emit_loader_W(A, n, mode, s_lw, srdW, s_off, stride, s_cnt, s_tmp, aux="", G=0, s_rot=59, extra=None, hook=None, post=None, every=None, mid=None):
    rot_init(A, G, s_rot, s_off, 64*stride)
    A("v_and_b32 v1, 63, v0\nv_lshrrev_b32 v10, 4, v1\nv_and_b32 v11, 15, v1")
    A(f"s_lshl_b32 s{s_tmp}, s{s_lw}, 5\nv_add_u32 v12, s{s_tmp}, v10")
    A(f"s_mov_b32 s3, {stride}\nv_mul_lo_u32 v12, v12, s3")
    for par in range(2):
        A(f"v_or_b32 v13, {4*par}, v10\nv_lshlrev_b32 v13, 1, v13\nv_xor_b32 v13, v13, v11")
        A("v_lshl_add_u32 v13, v13, 4, v12")
        for j in range(8):
            key = (j & 1) if mode == "pi" else ((j >> 1) & 1)
            if key == par:
                A(f"v_add_u32 v{2+j}, {4*j*stride - (j%4)*1024}, v13")
    A(f"s_lshl_b32 s{s_tmp}, s{s_lw}, 13")
    def issue(slot):
        for j in range(8):
            if j % 4 == 0:
                A(f"s_add_u32 m0, s{s_tmp}, {slot*STAGE + WOFF + (j//4)*4096}\ns_nop 0")
            if not dbg("noload"): A(f"buffer_load_dwordx4 v{2+j}, {s(srdW,4)}, s{s_off} offen offset:{(j%4)*1024} {aux} lds")
        if every: every()
        rot_step(A, G, s_off, 64*stride)
    emit_loader(A, n, 9 if every else 8, issue, s_cnt, extra, hook, post, mid=mid)

def pf_w1(A, srdn, s_col, s_idx, step, count, vl, vt, lim=None, rev=0, lanes=64, base=0):
    for c in range(count):
        if rev: A(f"s_sub_u32 s57, {rev-1}, s{s_idx}\ns_lshl_b32 s57, s57, 6")
        else: A(f"s_mul_i32 s57, s{s_idx}, {lanes}")
        if base: A(f"s_add_u32 s57, s57, {base}")
        A(f"v_add_u32 v{vt}, s57, v{vl}\nv_mul_u32_u24 v{vt+1}, 52429, v{vt}\nv_lshrrev_b32 v{vt+1}, 19, v{vt+1}")
        A(f"v_mul_u32_u24 v{vt+1}, {9216-1280}, v{vt+1}\nv_lshl_add_u32 v{vt}, v{vt}, 7, v{vt+1}")
        if lanes < 64: A(f"s_bfm_b64 exec, {lanes}, 0")
        A(f"buffer_load_dword v{SINK}, v{vt}, {s(srdn,4)}, s{s_col} offen")
        if lanes < 64: A("s_mov_b64 exec, -1")
        A(f"s_add_u32 s{s_idx}, s{s_idx}, {step}")
        if lim is not None: A(f"s_waitcnt vmcnt({lim})")
def pf_code(A, start):
    L = A.newlabel("Lpc")
    A(f"s_getpc_b64 s[60:61]\n{L}:\ns_add_u32 s60, s60, {start}-{L}\ns_addc_u32 s61, s61, 0")
    A(f"v_lshlrev_b32 v90, 7, v0\nv_min_u32 v90, CODE_END-{start}-4, v90\nglobal_load_dword v{SINK}, v90, s[60:61]")
def pf_w1_col(A, s_col):
    A(f"s_and_b32 s{s_col}, s2, 7\ns_mul_i32 s{s_col}, s{s_col}, 18\ns_lshr_b32 s{s_col}, s{s_col}, 2\ns_lshl_b32 s{s_col}, s{s_col}, 8")
def pf_w2(A, s_ptr, s_idx, step, count, lim=None, srdn=52):
    if not count: return
    srd(A, srdn, s_ptr, S*F*2)
    A(f"s_bfe_u32 s57, s2, 0x20001\ns_mul_i32 s57, s57, {1152*4096}\ns_and_b32 s58, s2, 1\ns_lshl_b32 s58, s58, 11\ns_add_u32 s57, s57, s58")
    A(f"s_lshl_b32 s58, s{s_idx}, 14\ns_add_u32 s57, s57, s58")
    A("v_bfe_u32 v30, v0, 4, 2\nv_lshlrev_b32 v30, 12, v30\nv_and_b32 v31, 15, v0\nv_lshl_add_u32 v30, v31, 7, v30")
    for c in range(count):
        A(f"buffer_load_dword v{SINK}, v30, {s(srdn,4)}, s57 offen\ns_add_u32 s57, s57, {step*16384}")
        if lim is not None: A(f"s_waitcnt vmcnt({lim})")

def pf_w2c3(A, s_ptr, s_idx, step, count, lim=None):
    srd(A, 52, s_ptr, S*F*2)
    A(f"s_bfe_u32 s57, s2, 0x20001\ns_mul_i32 s57, s57, {1152*4096}\ns_and_b32 s58, s2, 1\ns_lshl_b32 s58, s58, 11\ns_add_u32 s57, s57, s58")
    A(f"s_lshl_b32 s58, s{s_idx}, 17\ns_add_u32 s57, s57, s58\ns_add_u32 s57, s57, 384")
    A("v_bfe_u32 v30, v0, 1, 5\nv_lshlrev_b32 v30, 12, v30\nv_and_b32 v31, 1, v0\nv_lshl_add_u32 v30, v31, 10, v30")
    for c in range(count):
        L = A.newlabel("Lc3")
        A(f"s_cmp_ge_u32 s{s_idx}, {36 - c*step}\ns_cbranch_scc1 {L}")
        A(f"buffer_load_dword v{SINK}, v30, s[52:55], s57 offen\ns_add_u32 s57, s57, {step << 17}")
        if lim is not None: A(f"s_waitcnt vmcnt({lim})")
        A.label(L)

SPIN_MAX = 60000
def flag_setup(A):
    srd_off(A, 96, 26, FLAG_OFF, FLAG_SZ)
    A(f"s_load_dword s100, s[96:97], {FE*64}")
def tag_make(A):
    A("s_add_u32 s100, s100, 1\ns_mul_i32 s101, s100, 0x9e3779b1\ns_add_u32 s101, s101, 0x7f4a7c15")
def raise_flag(A, s_off, vt):
    A(f"v_mov_b32 v{vt}, s100\nv_mov_b32 v{vt+1}, s101\nv_mov_b32 v{vt+2}, s{s_off}")
    if CFG.wide:
        A(f"v_and_b32 v{vt+2}, 7, v0\nv_lshl_add_u32 v{vt+2}, v{vt+2}, 3, s{s_off}")
    A(f"s_mov_b64 exec, {0xff if CFG.wide else 1}\nbuffer_store_dwordx2 {v(vt,2)}, v{vt+2}, s[96:99], 0 offen sc1\ns_mov_b64 exec, -1")
def poll(A, vaddr, vtmp, sleep=0):
    L = A.newlabel("Lp"); X = A.newlabel("Lx")
    A(f"s_mov_b32 s63, {SPIN_MAX}")
    A.label(L)
    A(f"buffer_load_dwordx2 {v(vtmp,2)}, v{vaddr}, s[96:99], 0 offen sc1")
    A(f"s_waitcnt vmcnt(0)\nv_cmp_ne_u64 vcc, s[100:101], {v(vtmp,2)}\ns_sub_u32 s63, s63, 1\ns_cbranch_scc1 {X}\ns_nop 2\ns_cbranch_vccz {X}")
    A("s_mov_b64 exec, vcc")
    if sleep: A(f"s_sleep {sleep}")
    A(f"s_branch {L}")
    A.label(X)
    A("s_mov_b64 exec, -1")
def poll2(A, vaddr, vtmp, sleep1, sleep2):
    if sleep1:
        A("s_mov_b64 exec, 1")
        poll(A, vaddr, vtmp, sleep1)
    poll(A, vaddr, vtmp, sleep2)

def wave_id(A, sd):
    A(f"v_lshrrev_b32 v1, 6, v0\ns_nop 1\nv_readfirstlane_b32 s{sd}, v1")

def reduce32(A, regs, tmp):
    pad = "s_nop 1" if len(regs) == 1 else "s_nop 0"
    A("s_nop 1")
    for pat in ["quad_perm:[1,0,3,2]", "quad_perm:[2,3,0,1]", "row_half_mirror", "row_mirror"]:
        for r in regs:
            A(f"v_add_f32_dpp v{r}, v{r}, v{r} {pat} row_mask:0xf bank_mask:0xf")
        A(pad)
    for i, r in enumerate(regs): A(f"v_mov_b32 v{tmp+i}, v{r}")
    A("s_nop 1")
    for i, r in enumerate(regs): A(f"v_permlane16_swap_b32 v{r}, v{tmp+i}")
    A("s_nop 1")
    for i, r in enumerate(regs): A(f"v_add_f32 v{r}, v{r}, v{tmp+i}")

XRS, HRS = 1168, 1216
P0 = 3*STAGE
LDS_BYTES = 163840
K0_HL = P0 + 256
K0_DUMMY = K0_HL + 16*HRS
K0_LDS = 83968
def seam_pre(A):
    tag_make(A)
    A(f"s_lshl_b32 s49, s2, 2\ns_add_u32 s49, s49, s16\ns_add_u32 s49, s49, {F1}\ns_cmp_eq_u32 s16, 4\ns_cselect_b32 s49, s2, s49\ns_lshl_b32 s49, s49, 6")
    A(f"s_cmp_gt_u32 s16, 4\ns_cselect_b32 s49, {OOB}, s49")
    A(f"s_load_dwordx4 s[4:7], s[0:1], {KA_W1}\ns_load_dwordx2 s[24:25], s[0:1], {KA_WO}\ns_load_dwordx2 s[50:51], s[0:1], {KA_W2}")
def gen_k0(A):
    kernel_head(A, KNAME)
    stamp(A, 0)
    A("s_cmp_ge_u32 s2, 256\ns_cbranch_scc1 K_end")
    A(f"s_load_dwordx4 s[4:7], s[0:1], {KA_X}\ns_load_dwordx2 s[26:27], s[0:1], {KA_WS}")
    A(f"s_load_dwordx2 s[24:25], s[0:1], {KA_WPHI}\ns_load_dwordx2 s[48:49], s[0:1], {KA_W1}")
    A("s_sub_u32 s44, s2, 112\ns_cmp_ge_u32 s44, 128\ns_cbranch_scc1 K0_pf")
    X, P, Q = 20, 8, 56
    A("v_lshrrev_b32 v2, 5, v0\nv_and_b32 v3, 31, v0")
    A("v_mul_u32_u24 v4, 1152, v2\nv_lshl_add_u32 v4, v3, 4, v4")
    A(f"v_cmp_gt_u32 s[30:31], 24, v3\nv_mov_b32 v5, {OOB}")
    A("s_mul_i32 s3, s44, 18432")
    A("v_cndmask_b32 v4, v5, v4, s[30:31]")
    A("s_waitcnt lgkmcnt(0)")
    srd(A, 8, 4, S*D*2)
    for j in range(3): A(f"buffer_load_dwordx4 {v(P+4*j,4)}, v4, s[8:11], s3 offen offset:{384*j}")
    A("s_branch K0_ln")
    A.label("K0_pf")
    wave_id(A, 16)
    def pf_setup():
        flag_setup(A)
        srd(A, 52, 48, S*F*2)
        pf_w1_col(A, 46)
        A("s_and_b32 s47, s2, 0x78\ns_add_u32 s47, s47, s16\nv_and_b32 v1, 63, v0")
    def pf_round(r):
        if not CFG.pf1: return 0
        pf_w1(A, 52, 46, 47, 128, 1, 1, 88, lanes=CFG.pf1)
        return 1
    A("s_cmp_ge_u32 s2, 108\ns_cbranch_scc1 K0_nofold")
    A("s_mul_i32 s18, s2, 7282\ns_lshr_b32 s18, s18, 16")
    A("s_mul_i32 s19, s18, 9\ns_sub_u32 s17, s2, s19")
    A("s_and_b32 s28, s18, 3\ns_lshr_b32 s29, s18, 2")
    F_W, F_P = P0 + 18432, P0 + 18432 + 18432
    for r in range(3):
        A(f"v_add_u32 v4, {512*r}, v0\nv_mul_u32_u24 v5, 58255, v4\nv_lshrrev_b32 v5, 20, v5")
        A(f"v_mul_u32_u24 v5, {3456-288}, v5\nv_lshl_add_u32 v{12+r}, v4, 4, v5")
    A(f"s_mul_i32 s32, s17, {64*3456}\ns_mul_i32 s33, s29, 1152\ns_add_u32 s32, s32, s33\ns_mul_i32 s33, s28, 288\ns_add_u32 s32, s32, s33")
    A(f"s_mul_i32 s33, s28, 5184\nv_lshlrev_b32 v15, 4, v0\nv_subrev_u32 v15, 2048, v15\ns_lshl_b32 s34, s16, 10\ns_add_u32 m0, s34, {F_W}")
    A("s_waitcnt lgkmcnt(0)")
    srd(A, 8, 6, D*3*D*2)
    A(f"buffer_load_dwordx4 v12, s[8:11], s32 offen lds\ns_add_u32 m0, s34, {F_W + 8192}")
    srd(A, 12, 24, H*DH*DH*2)
    A(f"buffer_load_dwordx4 v13, s[8:11], s32 offen lds\ns_add_u32 m0, s34, {F_W + 16384}\ns_cmp_ge_u32 s16, 2\ns_cbranch_scc1 K0_f1")
    A("buffer_load_dwordx4 v14, s[8:11], s32 offen lds")
    A.label("K0_f1")
    A(f"s_add_u32 m0, s34, {F_P - 2048}\ns_cmp_eq_u32 s29, 2\ns_cselect_b32 s3, 1, 6\ns_sub_u32 s35, s16, 2\ns_cmp_ge_u32 s35, s3\ns_cbranch_scc1 K0_f2")
    A("buffer_load_dwordx4 v15, s[12:15], s33 offen lds")
    A.label("K0_f2")
    pf_setup()
    if CFG.pfbar: A("s_barrier")
    npf = pf_round(0)
    A("s_lshr_b32 s19, s16, 2\ns_and_b32 s43, s16, 3\ns_lshl_b32 s30, s43, 1\ns_add_u32 s30, s30, s19")
    srd_off(A, 20, 26, WF_OFF, WF_SZ)
    A("v_and_b32 v2, 15, v1\nv_lshrrev_b32 v3, 4, v1")
    A("v_and_b32 v4, 12, v2\nv_add_u32 v4, v4, v2")
    A(f"v_mul_u32_u24 v4, 288, v4\nv_lshl_add_u32 v4, v3, 4, v4\ns_mul_i32 s33, s30, 36\ns_and_b32 s39, s33, 15\ns_sub_u32 s33, s33, s39\ns_add_u32 s33, s33, {F_W}")
    A("v_add_u32 v76, s33, v4\ns_lshr_b32 s39, s39, 1\nv_lshlrev_b32 v11, 3, v3\nv_subrev_u32 v11, s39, v11")
    A("s_mov_b32 s40, 0x00030003\ns_mov_b32 s41, 0x00030003")
    B = 28
    def a_reads():
        A(f"s_waitcnt vmcnt({npf}) lgkmcnt(0)")
        pt(A, "x")
        A("s_barrier")
        for q in range(4):
            A(f"ds_read_b128 {v(12+4*q,4)}, v76 offset:{288*(32*(q>>1) + 4*(q&1))}")
    A("s_cmp_eq_u32 s29, 2\ns_cbranch_scc1 K0_ident")
    A("s_mul_i32 s34, s19, 18\nv_add_u32 v5, s34, v2")
    A(f"s_lshl_b32 s35, s43, 6\ns_add_u32 s35, s35, {P0}")
    for nt in range(2):
        if nt: A("v_add_u32 v5, 16, v5")
        A(f"v_lshrrev_b32 v6, 2, v5\nv_lshlrev_b32 v6, 10, v6\nv_and_b32 v7, 3, v5\nv_lshl_add_u32 v6, v7, 4, v6")
        A(f"v_lshl_add_u32 v6, v3, 8, v6\nv_add_u32 v{52+nt}, s35, v6")
    A("s_lshr_b32 s34, s28, 1\ns_add_u32 s34, s34, 4\ns_and_b32 s35, s28, 1\ns_mul_i32 s35, s35, 9216")
    A("s_cmp_eq_u32 s29, 0\ns_cselect_b32 s34, s34, s28\ns_cselect_b32 s35, s35, 0")
    A(f"s_mov_b32 s42, {f2u(LOG2E)}")
    A(f"v_mul_i32_i24 v5, 36, v11\nv_lshl_add_u32 v5, v2, 1, v5\ns_mul_i32 s33, s30, 648\ns_add_u32 s33, s33, {F_P}\nv_add_u32 v80, s33, v5")
    for q in range(4): A(f"v_add_u32 v5, {2*q}, v11\nv_cmp_gt_u32 {s((36, 44, 58, 60)[q],2)}, 18, v5")
    a_reads()
    for nt in range(2):
        for ii in range(8):
            A(f"ds_read_u16 v{36+8*nt+ii}, v80 offset:{36*ii + 32*nt}")
    A("s_waitcnt lgkmcnt(0)")
    for q in range(8): A(f"v_lshl_or_b32 v{B+q}, v{36+2*q+1}, 16, v{36+2*q}")
    for q in range(8): A(f"v_cndmask_b32 v{B+q}, 0, v{B+q}, {s((36, 44, 58, 60)[q&3],2)}")
    A("s_branch K0_fmm")
    A.label("K0_ident")
    A("v_sub_u32 v5, v2, v11\nv_add_u32 v6, 16, v5")
    A("v_mov_b32 v7, 0x3f80\nv_mov_b32 v8, 0x3f800000")
    for nt in range(2):
        for q in range(4):
            A(f"v_cmp_eq_u32 vcc, {2*q}, v{5+nt}\nv_cmp_eq_u32 s[44:45], {2*q+1}, v{5+nt}\ns_nop 1")
            A(f"v_cndmask_b32 v9, 0, v7, vcc\nv_cndmask_b32 v{B+4*nt+q}, v9, v8, s[44:45]")
    A(f"v_lshlrev_b32 v6, 8, v3\nv_lshl_add_u32 v6, v2, 4, v6\nv_add_u32 v6, {P0}, v6")
    A("s_lshl_b32 s34, s30, 10\nv_add_u32 v52, s34, v6")
    A("s_lshl_b32 s34, s30, 5\ns_add_u32 s34, s34, 8192\nv_add_u32 v53, s34, v6")
    A("s_mov_b32 s34, s28\ns_mov_b32 s35, 9216\ns_mov_b32 s42, 1.0")
    a_reads()
    A("s_waitcnt lgkmcnt(0)")
    A.label("K0_fmm")
    A("s_mul_i32 s34, s34, 18\ns_lshl_b32 s33, s17, 1\ns_add_u32 s34, s34, s33\ns_mul_i32 s34, s34, 18432\ns_add_u32 s34, s34, s35")
    DD = 56
    for kbi in range(2):
        for nt in range(2):
            for a in range(2):
                A(f"{MF} {v(DD+16*kbi+8*nt+4*a,4)}, {v(12+8*kbi+4*a,4)}, {v(B+4*nt,4)}, 0")
    seam_pre(A)
    A("s_mov_b32 s43, s42\ns_lshl_b32 s33, s16, 10\nv_lshlrev_b32 v89, 4, v1\ns_and_b32 s3, s16, 1\ns_mul_i32 s35, s3, 9216")
    A(f"s_add_u32 s37, s33, {P0}\nv_add_u32 v90, s37, v89\ns_add_u32 s35, s35, {P0 + 8192}\nv_add_u32 v91, s35, v89")
    A("s_mul_i32 s3, s3, 18432\ns_add_u32 s37, s34, s3\ns_add_u32 s37, s37, 8192\ns_add_u32 s17, s34, s33")
    for kbi in range(2):
        for nt in range(2):
            d0 = DD+16*kbi+8*nt
            for i in range(4): A(f"v_pk_mul_f32 {v(d0+2*i,2)}, {v(d0+2*i,2)}, s[42:43]")
            o = 36 + 8*kbi + 4*nt
            for i in range(4): A(f"v_cvt_pk_bf16_f32 v{o+i}, v{d0+2*i}, v{d0+2*i+1}")
            if nt == 0: A(f"ds_write_b128 v52, {v(o,4)} offset:{9216*kbi}")
    A("s_mov_b64 exec, s[40:41]\nds_write_b128 v53, v[40:43]\nds_write_b128 v53, v[48:51] offset:9216\ns_mov_b64 exec, -1")
    A("s_waitcnt lgkmcnt(0)\ns_barrier\ns_cmp_ge_u32 s16, 4\ns_cbranch_scc1 K0_seam")
    pt(A, "st0")
    for q in range(4): A(f"ds_read_b128 {v(12+4*q,4)}, v90 offset:{9216*(q>>1) + 4096*(q&1)}")
    A("ds_read_b128 v[28:31], v91")
    for q in range(4):
        A(f"s_waitcnt lgkmcnt({4-q})\nbuffer_store_dwordx4 {v(12+4*q,4)}, v89, s[20:23], s17 offen {CFG.auxSt}\ns_add_u32 s17, s17, {4096 if q != 1 else 18432-4096}")
    A("s_branch K0_last")
    A.label("K0_nofold")
    A("s_waitcnt lgkmcnt(0)")
    pf_setup()
    if CFG.pff:
        A(f"s_sub_u32 s3, s2, 240\ns_cmp_ge_u32 s3, 4\ns_cbranch_scc1 K0_nof\ns_lshl_b32 s3, s3, 16\nv_lshl_add_u32 v90, v0, 7, s3\nbuffer_load_dword v{SINK}, v90, s[96:99], 0 offen sc1")
        A.label("K0_nof")
    if CFG.pfc:
        A("s_cmp_lt_u32 s2, 248\ns_cbranch_scc1 K0_noc")
        pf_code(A, "K0_ln")
        A.label("K0_noc")
    A("s_cmp_ge_u32 s2, 240\ns_cbranch_scc1 K1_spare")
    pf_round(0)
    A("s_waitcnt lgkmcnt(0)")
    seam_pre(A)
    A("s_waitcnt lgkmcnt(0)\ns_barrier\ns_branch K0_seam")
    A.label("K0_ln")
    flag_setup(A)
    wave_id(A, 16)
    A(f"v_lshlrev_b32 v6, 2, v2\nv_add_u32 v6, {P0}, v6")
    A(f"v_mul_u32_u24 v7, {HRS}, v2\nv_lshl_add_u32 v7, v3, 4, v7\nv_add_u32 v7, {K0_HL}, v7")
    srd_off(A, 12, 26, RS_OFF, RS_SZ)
    srd_off(A, 20, 26, HT_OFF, HT_SZ)
    A(f"s_mov_b32 s33, {f2u(1.0/576)}\ns_mov_b32 s34, {f2u(1e-5)}")
    A("v_and_b32 v1, 63, v0\nv_and_b32 v2, 15, v1\nv_lshrrev_b32 v3, 4, v1")
    A(f"s_lshl_b32 s3, s16, 6\ns_and_b32 s35, s16, 1\ns_lshl_b32 s36, s35, 6\nv_lshlrev_b32 v69, 2, v2\nv_add_u32 v68, {P0}, v69\ns_lshl_b32 s17, s44, 7")
    A("v_bfe_u32 v4, v1, 2, 2\nv_lshrrev_b32 v5, 5, v1\nv_lshl_add_u32 v4, v5, 3, v4")
    A(f"v_mul_u32_u24 v4, {HRS}, v4\nv_and_b32 v3, 1, v3\nv_lshl_add_u32 v4, v3, 5, v4\nv_and_b32 v44, 3, v1\nv_lshl_add_u32 v4, v44, 3, v4\nv_add_u32 v4, {K0_HL}, v4")
    A("v_add_u32 v72, s36, v4\nv_add_u32 v71, s3, v4")
    A("v_lshlrev_b32 v2, 4, v2\nv_lshl_add_u32 v2, v5, 8, v2")
    A(f"s_mov_b32 s38, {589824-9216}\ns_lshl_b32 s3, s16, 1\ns_lshl_b32 s36, s35, 1\ns_add_u32 s36, s36, 32")
    for n in range(3):
        A(f"v_add_u32 v4, s{3 if n < 2 else 36}, v3")
        if n == 1: A("v_add_u32 v4, 16, v4")
        A(f"v_mul_u32_u24 v44, 57, v4\nv_lshrrev_b32 v44, 9, v44\nv_lshl_add_u32 v4, v4, 10, v2\nv_mad_u32_u24 v{73+n}, v44, s38, v4")
    A("s_lshr_b32 s18, s44, 1\ns_mul_i32 s18, s18, 9216\ns_and_b32 s19, s44, 1\ns_lshl_b32 s19, s19, 9\ns_add_u32 s18, s18, s19")
    def xp(i): return v(X+2*i, 2)
    A("s_waitcnt vmcnt(0)")
    pt(A, "x")
    for i in range(12):
        A(f"v_lshlrev_b32 v{X+2*i}, 16, v{P+i}\nv_and_b32 v{X+2*i+1}, 0xffff0000, v{P+i}")
    A(f"v_pk_add_f32 v[44:45], {xp(0)}, {xp(1)}\nv_pk_add_f32 v[46:47], {xp(2)}, {xp(3)}")
    for i in range(4, 12): A(f"v_pk_add_f32 {v(44+2*(i&1),2)}, {v(44+2*(i&1),2)}, {xp(i)}")
    A("v_pk_add_f32 v[44:45], v[44:45], v[46:47]\nv_add_f32 v44, v44, v45")
    reduce32(A, [44], 52)
    A("v_mul_f32 v44, s33, v44")
    for i in range(12): A(f"v_pk_add_f32 {xp(i)}, {xp(i)}, v[44:45] op_sel_hi:[1,0] neg_lo:[0,1] neg_hi:[0,1]")
    A(f"v_pk_mul_f32 v[48:49], {xp(0)}, {xp(0)}\nv_pk_mul_f32 v[50:51], {xp(1)}, {xp(1)}")
    for i in range(2, 12): A(f"v_pk_fma_f32 {v(48+2*(i&1),2)}, {xp(i)}, {xp(i)}, {v(48+2*(i&1),2)}")
    A("v_pk_add_f32 v[48:49], v[48:49], v[50:51]\nv_add_f32 v48, v48, v49")
    A("v_cndmask_b32 v48, 0, v48, s[30:31]")
    reduce32(A, [48], 52)
    A("v_mul_f32 v48, s33, v48\nv_add_f32 v44, s34, v48\nv_rsq_f32 v44, v44\nv_mov_b32 v49, s34")
    A("v_mul_f32 v48, v48, v44\nv_fma_f32 v50, v48, v44, v49\nv_rsq_f32 v48, v50")
    A("s_mov_b64 exec, s[30:31]\nv_mul_f32 v50, v50, v48\nv_mul_f32 v48, v48, v44\nds_write_b32 v6, v50")
    for j in range(3):
        for i in range(4): A(f"v_pk_mul_f32 {v(Q+2*i,2)}, {xp(4*j+i)}, v[48:49] op_sel_hi:[1,0]")
        for i in range(4): A(f"v_cvt_pk_bf16_f32 v{P+4*j+i}, v{Q+2*i}, v{Q+2*i+1}")
        A(f"ds_write_b128 v7, {v(P+4*j,4)} offset:{384*j}")
    A("s_mov_b64 exec, -1\ns_waitcnt lgkmcnt(0)\ns_barrier")
    pt(A, "ln")
    for n in range(2):
        A(f"ds_read_b64_tr_b16 {v(76+4*n,2)}, v71 offset:{512*n}\nds_read_b64_tr_b16 {v(78+4*n,2)}, v71 offset:{512*n + 4*HRS}")
    A(f"ds_read_b64_tr_b16 v[84:85], v72 offset:1024\nds_read_b64_tr_b16 v[86:87], v72 offset:{1024 + 4*HRS}\nds_read_b32 v88, v68")
    A(f"s_cmp_lt_u32 s16, 2\ns_cselect_b32 s3, 0, {OOB}\nv_or_b32 v75, s3, v75")
    for n in range(3):
        A(f"s_waitcnt lgkmcnt({5-2*n})\nbuffer_store_dwordx4 {v(76+4*n,4)}, v{73+n}, s[20:23], s18 offen {CFG.auxSt}")
    A("s_waitcnt lgkmcnt(0)\ns_cmp_lg_u32 s16, 2\ns_cbranch_scc1 K0_nors")
    A(f"s_mov_b64 exec, 0xffff\nbuffer_store_dword v88, v69, s[12:15], s17 offen {CFG.auxSt}\ns_mov_b64 exec, -1")
    A.label("K0_nors")
    pt(A, "st0")
    seam_pre(A)
    A(f"s_cmp_eq_u32 s16, 4\ns_cselect_b32 s49, s49, {OOB}")
    A("s_waitcnt vmcnt(0)\ns_barrier\ns_branch K0_seam")
    A.label("K0_last")
    A("s_waitcnt lgkmcnt(0)\ns_cmp_ge_u32 s16, 2\ns_cbranch_scc1 K0_last2")
    A(f"buffer_store_dwordx4 v[28:31], v89, s[20:23], s37 offen {CFG.auxSt}")
    A.label("K0_last2")
    A("s_waitcnt vmcnt(0)")
    A.label("K0_seam")
    raise_flag(A, 49, 4)
    pt(A, "fl0")
    if CFG.pf1a or CFG.pf1q:
        A(f"s_cmp_lt_u32 s2, {144 if CFG.pf1a else 208}\ns_cbranch_scc1 K0_noa\ns_cmp_ge_u32 s2, 240\ns_cbranch_scc1 K0_noa\ns_cmp_ge_u32 s16, 4\ns_cbranch_scc1 K0_noa")
        A("s_lshr_b32 s47, s2, 3\ns_sub_u32 s47, s47, 18\ns_lshl_b32 s47, s47, 2\ns_add_u32 s47, s47, s16\ns_waitcnt lgkmcnt(0)")
        srd(A, 52, 4, S*F*2)
        pf_w1_col(A, 46)
        pf_w1(A, 52, 46, 47, 48, CFG.pf1a, 1, 88, base=112*CFG.pf1)
        if CFG.pf1q:
            A("s_cmp_lt_u32 s2, 208\ns_cbranch_scc1 K0_noa\ns_sub_u32 s47, s47, 32")
            pf_w1(A, 52, 46, 47, 16, CFG.pf1q, 1, 88, base=112*CFG.pf1)
        A.label("K0_noa")
    if CFG.tlb:
        A(f"s_cmp_lg_u32 s16, 1\ns_cbranch_scc1 K0_notlb\nv_and_b32 v4, 63, v0\nv_lshlrev_b32 v4, {CFG.tlb}, v4\ns_waitcnt lgkmcnt(0)")
        for ptr, nb in ((4, S*F*2), (50, S*F*2), (26, FLAG_OFF)):
            srd(A, 8, ptr, nb)
            for q in range(-(-nb // (64 << CFG.tlb))):
                A(f"s_mov_b32 s3, {q*(64 << CFG.tlb)}\nbuffer_load_dword v{SINK}, v4, s[8:11], s3 offen sc1")
        A.label("K0_notlb")
def softmax18(A, PR, dst, C):
    vals = [r + i for r in PR for i in range(2)]
    EP, EN, MX, MN = 8, 26, 44, 46
    A(f"v_max3_f32 v{MX}, v{vals[0]}, v{vals[1]}, v{vals[2]}\nv_min3_f32 v{MN}, v{vals[0]}, v{vals[1]}, v{vals[2]}")
    for i in range(3, 17, 2):
        A(f"v_max3_f32 v{MX}, v{MX}, v{vals[i]}, v{vals[i+1]}\nv_min3_f32 v{MN}, v{MN}, v{vals[i]}, v{vals[i+1]}")
    A(f"v_max_f32 v{MX}, v{MX}, v{vals[17]}\nv_min_f32 v{MN}, v{MN}, v{vals[17]}")
    A(f"v_mul_f32 v{MX}, v{MX}, v{C}\nv_mul_f32 v{MN}, v{MN}, v{C}")
    for p in range(9):
        A(f"v_pk_fma_f32 {v(EP+2*p,2)}, {v(PR[p],2)}, {v(C,2)}, {v(MX,2)} op_sel_hi:[1,0,0] neg_lo:[0,0,1] neg_hi:[0,0,1]")
        A(f"v_pk_fma_f32 {v(EN+2*p,2)}, {v(PR[p],2)}, {v(C,2)}, {v(MN,2)} op_sel_hi:[1,0,0] neg_lo:[1,0,0] neg_hi:[1,0,0]")
    for i in range(36): A(f"v_exp_f32 v{EP+i}, v{EP+i}")
    A(f"v_pk_add_f32 {v(MX,2)}, {v(EP,2)}, {v(EP+2,2)}\nv_pk_add_f32 {v(MN,2)}, {v(EN,2)}, {v(EN+2,2)}")
    for p in range(2, 9):
        A(f"v_pk_add_f32 {v(MX,2)}, {v(MX,2)}, {v(EP+2*p,2)}\nv_pk_add_f32 {v(MN,2)}, {v(MN,2)}, {v(EN+2*p,2)}")
    A(f"v_add_f32 v{MX}, v{MX}, v{MX+1}\nv_add_f32 v{MN}, v{MN}, v{MN+1}")
    A(f"v_rcp_f32 v{MX}, v{MX}\nv_rcp_f32 v{MN}, v{MN}\ns_nop 0")
    for p in range(9):
        A(f"v_pk_mul_f32 {v(EP+2*p,2)}, {v(EP+2*p,2)}, {v(MX,2)} op_sel_hi:[1,0]")
        A(f"v_pk_mul_f32 {v(EN+2*p,2)}, {v(EN+2*p,2)}, {v(MN,2)} op_sel_hi:[1,0]")
    for m in range(18): A(f"v_cvt_pk_bf16_f32 v{dst(m)}, v{EP+2*m}, v{EP+2*m+1}")

def pairs(st, j, e):
    return [accr(st, (9*e+p) >> 1, j) + 2*((9*e+p) & 1) for p in range(9)]

PHI_RS = 608
V_LDS = 128*PHI_RS
def gen_k1(A):
    A("s_and_b32 s17, s2, 7\ns_lshr_b32 s18, s2, 3")
    A("s_cmp_ge_u32 s18, 18\ns_cbranch_scc1 K1_notg1")
    A("s_mul_i32 s19, s17, 18\ns_add_u32 s19, s19, s18\ns_and_b32 s22, s19, 3\ns_lshr_b32 s23, s19, 2")
    if CFG.swap13: A("s_or_b32 s19, s23, 1\ns_cmp_eq_u32 s19, 13\ns_cselect_b32 s19, 1, 0\ns_xor_b32 s23, s23, s19")
    if CFG.G1: A(f"s_add_u32 s59, s22, s23\ns_and_b32 s59, s59, 3\ns_mul_i32 s59, s59, {CFG.G1//4}")
    A("s_waitcnt lgkmcnt(0)")
    A("s_cmp_ge_u32 s16, 6\ns_cbranch_scc1 K1_ldW\ns_cmp_ge_u32 s16, 4\ns_cbranch_scc1 K1_ldP")
    srd(A, 32, 6, F*2)
    srd_off(A, 36, 26, U_OFF, U_SZ)
    A("v_bfe_u32 v8, v0, 4, 2\nv_lshlrev_b32 v8, 3, v8")
    A("s_lshl_b32 s3, s23, 8\ns_lshl_b32 s17, s16, 6\ns_add_u32 s3, s3, s17")
    A("buffer_load_dwordx2 v[12:13], v8, s[32:35], s3 offen\nbuffer_load_dwordx2 v[14:15], v8, s[32:35], s3 offen offset:32")
    emit_compute_addr(A, 16, "std")
    A("s_waitcnt vmcnt(0)")
    if CFG.pf1b:
        A(f"s_cmp_ge_u32 s2, 128\ns_cbranch_scc1 K1_nopf\ns_and_b32 s47, s2, 0x78\ns_lshr_b32 s47, s47, 1\ns_add_u32 s47, s47, s16\ns_add_u32 s47, s47, {CFG.pf1}")
        srd(A, 52, 4, S*F*2)
        pf_w1_col(A, 46)
        pf_w1(A, 52, 46, 47, 64, CFG.pf1b, 1, 16)
        A.label("K1_nopf")
    for j in range(2):
        A(f"v_lshlrev_b32 v{V_ACC+j*4}, 16, v{12+2*j}\nv_and_b32 v{V_ACC+j*4+1}, 0xffff0000, v{12+2*j}")
        A(f"v_lshlrev_b32 v{V_ACC+j*4+2}, 16, v{13+2*j}\nv_and_b32 v{V_ACC+j*4+3}, 0xffff0000, v{13+2*j}")
    for i in range(8, 72, 2): A(f"v_pk_mov_b32 {v(V_ACC+i,2)}, {v(V_ACC+i%8,2)}, {v(V_ACC+i%8,2)} op_sel:[0,1]")
    emit_compute_loop(A, 32, "std", (True, True), 20, first=lambda: pt(A, "b1"))
    A("s_barrier")
    pt(A, "m1")
    c0 = -2*math.sqrt(2/math.pi)*LOG2E; c1 = c0*0.044715
    A(f"s_mov_b32 s52, {f2u(c1)}\ns_mov_b32 s53, {f2u(c1)}\nv_mov_b32 v8, {f2u(c0)}\nv_mov_b32 v9, {f2u(c0)}")
    A("s_mul_i32 s17, s22, 144\ns_lshl_b32 s3, s23, 2\ns_add_u32 s17, s17, s3\ns_add_u32 s17, s17, s16")
    A(f"s_add_u32 s49, s17, {FU}\ns_lshl_b32 s49, s49, 6\ns_mul_i32 s17, s17, 9216")
    for t in range(9):
        a0 = V_ACC + t*8
        T = 16 + (t % 2) * 12
        for p in range(4): A(f"v_pk_mul_f32 {v(T+2*p,2)}, {v(a0+2*p,2)}, {v(a0+2*p,2)}")
        for p in range(4): A(f"v_pk_fma_f32 {v(T+2*p,2)}, {v(T+2*p,2)}, s[52:53], v[8:9]")
        for p in range(4): A(f"v_pk_mul_f32 {v(T+2*p,2)}, {v(T+2*p,2)}, {v(a0+2*p,2)}")
        for e in range(8): A(f"v_exp_f32 v{T+e}, v{T+e}")
        for p in range(4): A(f"v_pk_add_f32 {v(T+2*p,2)}, {v(T+2*p,2)}, 1.0 op_sel_hi:[1,0]")
        for e in range(8): A(f"v_rcp_f32 v{T+e}, v{T+e}")
        for p in range(4): A(f"v_pk_mul_f32 {v(T+2*p,2)}, {v(T+2*p,2)}, {v(a0+2*p,2)}")
        for p in range(4): A(f"v_cvt_pk_bf16_f32 v{T+8+p}, v{T+2*p}, v{T+2*p+1}")
        if t and t % 4 == 0: A("s_add_u32 s17, s17, 4096")
        A(f"buffer_store_dwordx4 {v(T+8,4)}, v{V_PA}, s[36:39], s17 offen offset:{(t%4)*1024} {CFG.auxSt}")
    A("s_branch K2_c")
    def g_post():
        A("s_lshr_b32 s49, s2, 3\ns_lshl_b32 s49, s49, 2\ns_add_u32 s49, s49, s16\ns_sub_u32 s49, s49, 4")
        pf_w2(A, 50, 49, 72, CFG.pf2g)
    post = (CFG.pf2g, g_post, CFG.pf2pos) if CFG.pf2g else None
    A.label("K1_ldP")
    srd_off(A, 8, 26, HT_OFF, HT_SZ)
    A(f"s_sub_u32 s17, s16, 4\ns_mul_i32 s21, s22, {64*9216}")
    def wait_ln():
        A(f"v_and_b32 v8, 62, v0\nv_and_b32 v9, 1, v0\nv_lshl_add_u32 v8, v8, 1, v9\ns_lshl_b32 s3, s17, 1\ns_add_u32 s3, s3, {F0+112}\nv_add_lshl_u32 v8, v8, s3, 6")
        if CFG.dl0: A(f"s_sleep {CFG.dl0}")
        if CFG.dlf: A(f"s_cmp_ge_u32 s2, 112\ns_cbranch_scc1 K1_nodl\ns_sleep {CFG.dlf}\nK1_nodl:")
        poll2(A, 8, 10, CFG.sl0a, CFG.sl0)
        pt(A, "go1")
    emit_loader_lin(A, 32, 9, POFF, 17, 8, 21, 20, 18, CFG.auxP, CFG.G1, post=post, pre=wait_ln)
    A("s_branch K1_ldseam")
    A.label("K1_ldW")
    srd(A, 12, 4, S*F*2)
    A("s_sub_u32 s17, s16, 6\ns_lshl_b32 s21, s23, 8")
    emit_loader_W(A, 32, "std", 17, 12, 21, 9216, 20, 18, CFG.auxW1, CFG.G1, post=post)
    A.label("K1_ldseam")
    A(f"s_barrier\ns_mov_b32 s49, {OOB}\ns_branch K2_ld")
    A.label("K1_notg1")
    A("s_sub_u32 s18, s18, 18\ns_and_b32 s22, s18, 3\ns_lshr_b32 s19, s17, 1\ns_lshl_b32 s19, s19, 2\ns_add_u32 s22, s22, s19")
    A("s_lshr_b32 s18, s18, 2\ns_and_b32 s17, s17, 1\ns_lshl_b32 s19, s17, 1\ns_add_u32 s23, s19, s18\ns_add_u32 s17, s17, 4")
    A("s_cmp_eq_u32 s18, 2\ns_cselect_b32 s23, s17, s23")
    if CFG.GA: A(f"s_add_u32 s59, s22, s18\ns_and_b32 s59, s59, 3\ns_mul_i32 s59, s59, {CFG.GA}\ns_lshr_b32 s59, s59, 2")
    A("s_waitcnt lgkmcnt(0)")
    A("s_cmp_ge_u32 s16, 6\ns_cbranch_scc1 K1_ldX\ns_cmp_ge_u32 s16, 4\ns_cbranch_scc1 K1_ldF")
    emit_compute_addr(A, 16, "lin")
    for i in range(0, 144, 2): A(f"v_pk_mov_b32 {v(V_ACC+i,2)}, 0, 0")
    srd_off(A, 32, 26, RS_OFF, RS_SZ)
    A("s_lshl_b32 s30, s22, 2\ns_add_u32 s30, s30, s16\ns_lshl_b32 s30, s30, 8\nv_and_b32 v252, 15, v1\nv_lshlrev_b32 v252, 2, v252\nv_and_b32 v253, 48, v1")
    def ld_scale():
        pt(A, "b1")
        for j in range(2):
            A(f"buffer_load_dword v{240+2*j}, v252, s[32:35], s30 offen offset:{128*j} sc1\nbuffer_load_dwordx4 {v(244+4*j,4)}, v253, s[32:35], s30 offen offset:{128*j} sc1")
    A("s_cmp_ge_u32 s23, 4\ns_cbranch_scc1 K1_q")
    HO = V_LDS + 36864
    A(f"s_mul_i32 s3, s16, 9216\ns_add_u32 s3, s3, {HO}\nv_add_u32 v254, s3, v{V_PA}")
    emit_compute_loop(A, 18, "lin", (False, True), 20, first=ld_scale, lastfill=[f"ds_write_b128 v254, {acc(0,t,1)} offset:{t*1024}" for t in range(9)])
    pt(A, "m1")
    A(f"v_subrev_u32 v5, 36864, v254\ns_waitcnt vmcnt(0) lgkmcnt(0)\ns_barrier")
    QB = 48
    for t in range(9):
        o = 84 + 4*(t % 3)
        for j in range(2):
            r = accr(1, t, j)
            A(f"v_pk_mul_f32 {v(r,2)}, {v(r,2)}, {v(244+4*j,2)}\nv_pk_mul_f32 {v(r+2,2)}, {v(r+2,2)}, {v(246+4*j,2)}")
            A(f"v_cvt_pk_bf16_f32 v{o+2*j}, v{r}, v{r+1}\nv_cvt_pk_bf16_f32 v{o+2*j+1}, v{r+2}, v{r+3}")
        A(f"ds_write_b128 v5, {v(o,4)} offset:{t*1024}")
    A.label("K1_kvsm")
    A("s_and_b32 s30, s16, 3\ns_lshr_b32 s31, s16, 2\nv_and_b32 v2, 15, v1\nv_lshrrev_b32 v3, 4, v1")
    A(f"s_lshl_b32 s3, s30, 1\ns_add_u32 s33, s3, s31\ns_lshl_b32 s3, s33, 4\nv_add_u32 v4, s3, v2\nv_mul_u32_u24 v4, {PHI_RS}, v4\nv_mul_u32_u24 v5, 144, v3\nv_add_u32 v4, v4, v5")
    for e in range(2):
        softmax18(A, pairs(0, 0, e), lambda m: QB + 18*e + m, 240)
        for q in (range(4) if e == 0 else range(4, 9)): A(f"ds_write_b128 v4, {v(QB+4*q,4)} offset:{16*q}")
    A(f"v_lshrrev_b32 v6, 2, v1\nv_mul_u32_u24 v6, {PHI_RS}, v6\nv_and_b32 v7, 3, v1\nv_lshl_add_u32 v6, v7, 3, v6")
    A("s_mul_i32 s3, s33, 72\nv_add_u32 v6, s3, v6")
    A("s_lshl_b32 s3, s30, 3\nv_subrev_u32 v7, s3, v6")
    A(f"v_add_u32 v8, {64*PHI_RS}, v6\nv_add_u32 v9, {64*PHI_RS}, v7")
    A(f"s_lshl_b32 s3, s33, 10\ns_add_u32 s3, s3, {V_LDS}\nv_lshlrev_b32 v10, 4, v1\nv_add_u32 v10, s3, v10")
    A(f"v_lshlrev_b32 v11, 8, v3\nv_and_b32 v12, 1, v2\nv_lshl_add_u32 v11, v12, 4, v11")
    A(f"s_lshl_b32 s3, s33, 5\ns_add_u32 s3, s3, {V_LDS + 8192}\nv_add_u32 v11, s3, v11")
    A("s_mov_b32 s40, 0x00030003\ns_mov_b32 s41, 0x00030003\nv_mov_b32 v12, 0x3f803f80")
    srd_off(A, 36, 26, KVP_OFF, KVP_SZ)
    A("s_lshl_b32 s17, s22, 2\ns_add_u32 s17, s17, s23\ns_mul_i32 s17, s17, 24576")
    A("s_lshl_b32 s3, s31, 10\ns_add_u32 s19, s17, s3\ns_add_u32 s29, s19, 22528\ns_add_u32 s19, s19, 16384")
    A("s_lshr_b32 s18, s33, 2\ns_lshl_b32 s18, s18, 11\ns_and_b32 s3, s33, 3\ns_lshl_b32 s3, s3, 8\ns_add_u32 s18, s18, s3\ns_add_u32 s28, s17, s18\ns_add_u32 s28, s28, 18432")
    A("s_lshl_b32 s18, s33, 11\ns_add_u32 s17, s17, s18")
    A("v_lshlrev_b32 v4, 6, v3\nv_lshl_add_u32 v4, v2, 4, v4\nv_lshlrev_b32 v2, 4, v1")
    A("s_lshl_b32 s18, s30, 4\ns_lshl_b64 s[42:43], 0xffff, s18\ns_mov_b32 s44, 0x000f000f\ns_mov_b32 s45, 0x000f000f")
    A("s_waitcnt lgkmcnt(0)\ns_barrier")
    pt(A, "go1")
    DK, FR = 16, 96
    def afr(ks, T): return FR + ks*20 + T*4
    def bfr(ks, mt): return FR + ks*20 + 12 + mt*4
    def dk(T, mt): return DK + (mt*3 + T)*4
    def kreads(ks):
        A(f"ds_read_b128 {v(bfr(ks,1),4)}, v11 offset:{ks*9216}\nds_read_b128 {v(bfr(ks,0),4)}, v10 offset:{ks*9216}")
        for T in range(3):
            a = (7 if T == 2 else 6) + (2 if ks >= 2 else 0)
            off = (ks & 1)*32*PHI_RS + T*32
            A(f"ds_read_b64_tr_b16 {v(afr(ks,T),2)}, v{a} offset:{off}\nds_read_b64_tr_b16 {v(afr(ks,T)+2,2)}, v{a} offset:{off + 16*PHI_RS}")
    kreads(0)
    for ks in range(4):
        if ks < 3: kreads(ks+1)
        A(f"s_waitcnt lgkmcnt({8 if ks < 3 else 0})")
        for i in range(4): A(f"v_cndmask_b32 v{bfr(ks,1)+i}, v12, v{bfr(ks,1)+i}, s[40:41]")
        for mt in range(2):
            for T in range(3):
                A(f"{MF} {v(dk(T,mt),4)}, {v(afr(ks,T),4)}, {v(bfr(ks,mt),4)}, {0 if ks == 0 else v(dk(T,mt),4)}")
    A("s_nop 4")
    for T in range(2): A(f"buffer_store_dwordx4 {v(dk(T,0),4)}, v2, s[36:39], s17 offen offset:{T*1024} sc1")
    A(f"s_mov_b64 exec, s[42:43]\nbuffer_store_dwordx4 {v(dk(2,0),4)}, v2, s[36:39], s19 offen sc1")
    A("s_mov_b64 exec, s[44:45]")
    for T in range(2): A(f"buffer_store_dwordx4 {v(dk(T,1),4)}, v4, s[36:39], s28 offen offset:{T*1024} sc1")
    A(f"s_and_b64 exec, s[42:43], s[44:45]\nbuffer_store_dwordx4 {v(dk(2,1),4)}, v4, s[36:39], s29 offen sc1")
    A("s_mov_b64 exec, -1")
    A(f"s_lshl_b32 s17, s23, 4\ns_add_u32 s17, s17, {FP}\ns_add_u32 s18, s17, s22\ns_lshl_b32 s18, s18, 6\ns_mov_b32 s49, {OOB}")
    srd_off(A, 44, 26, KVF_OFF, KVF_SZ)
    A("s_waitcnt vmcnt(0)\ns_barrier")
    pt(A, "kvp")
    A("s_cmp_ge_u32 s16, 4\ns_cbranch_scc1 K2_ld\ns_cmp_lg_u32 s16, 0\ns_cbranch_scc1 K2_c")
    raise_flag(A, 18, 4)
    A("s_cmp_ge_u32 s22, 12\ns_cbranch_scc1 K2_c")
    A("v_and_b32 v3, 15, v1\nv_add_lshl_u32 v3, v3, s17, 6")
    poll(A, 3, 4, CFG.slk)
    A("s_mul_i32 s18, s23, 12\ns_add_u32 s18, s18, s22")
    A(f"s_add_u32 s49, s18, {FK}\ns_lshl_b32 s49, s49, 6\ns_lshl_b32 s17, s18, 11\ns_lshl_b32 s18, s18, 10")
    A("s_cmp_eq_u32 s22, 11\ns_cselect_b64 exec, 0xffff, -1")
    for tb in range(16):
        A(f"buffer_load_dwordx4 {v(8+8*tb,4)}, v2, s[36:39], s17 offen sc1\nbuffer_load_dwordx4 {v(12+8*tb,4)}, v2, s[36:39], s17 offen offset:1024 sc1")
        A(f"s_add_u32 s17, s17, {48*2048}")
    for tb in range(1, 16):
        A(f"s_waitcnt vmcnt({2*(15-tb)})")
        for p in range(4): A(f"v_pk_add_f32 {v(8+2*p,2)}, {v(8+2*p,2)}, {v(8+8*tb+2*p,2)}")
    for p in range(4): A(f"v_cvt_pk_bf16_f32 v{4+p}, v{8+2*p}, v{9+2*p}")
    A(f"buffer_store_dwordx4 v[4:7], v2, s[44:47], s18 offen {CFG.auxSt}")
    A("s_mov_b64 exec, -1\ns_waitcnt vmcnt(0)")
    raise_flag(A, 49, 8)
    A(f"s_mov_b32 s49, {OOB}\ns_branch K2_c")
    A.label("K1_q")
    emit_compute_loop(A, 18, "lin", (False, False), 20, first=ld_scale)
    A("s_waitcnt vmcnt(0)")
    A("s_barrier")
    pt(A, "m1")
    A("v_and_b32 v6, 15, v1\nv_lshrrev_b32 v7, 4, v1\nv_lshlrev_b32 v3, 11, v7\nv_lshl_add_u32 v3, v6, 4, v3")
    A(f"s_lshr_b32 s3, s16, 1\ns_mul_i32 s3, s3, {STAGE - 18432}\ns_mul_i32 s17, s16, 9216\ns_add_u32 s3, s3, s17")
    A(f"v_add_u32 v3, s3, v3\nv_add_u32 v4, s3, v{V_PA}")
    for st in range(2):
        for j in range(2):
            for e in range(2):
                softmax18(A, pairs(st, j, e), lambda m: (QB + e*16 + 4*((m & 7) >> 1) + (m & 1) + 2*(m >> 3)) if m < 16 else QB + 32 + 2*e + m - 16, 240 + 2*j)
                for gg in range(4): A(f"ds_write_b128 v3, {v(QB+e*16+4*gg,4)} offset:{e*1024 + gg*256}")
            for b in range(8): A(f"ds_read_b128 {acc(st,b,j)}, v4 offset:{b*1024}")
            for i in range(2): A(f"v_pk_mov_b32 {v(accr(st,8,j)+2*i,2)}, {v(QB+32+2*i,2)}, {v(QB+32+2*i,2)} op_sel:[0,1]")
    pt(A, "kvp")
    KVB, KR, TM, MB, CI = 8, 40, 56, 88, 240
    A(f"v_add_u32 v4, {P0}, v{V_PA}\nv_cmp_eq_u32 vcc, 0, v6\nv_cmp_eq_u32 s[40:41], 4, v6\nv_lshlrev_b32 v7, 6, v7\ns_mov_b32 s3, {P0 + 9216}")
    A("v_cndmask_b32 v5, 32, 0, vcc\nv_cndmask_b32 v5, v5, 16, s[40:41]\nv_add3_u32 v5, v5, v7, s3")
    for hp in range(4): A(f"s_mov_b32 s{8+2*hp}, {0xffff << (16*hp) & 0xffffffff}\ns_mov_b32 s{9+2*hp}, {(0xffff << (16*hp)) >> 32}")
    A(f"v_mov_b32 v{MB+2}, 0\nv_mov_b32 v{MB+3}, 0\nv_mov_b32 v{CI}, 0\nv_mov_b32 v{CI+1}, {f2u(1e-6)}\nv_mov_b32 v{CI+2}, 0\nv_mov_b32 v{CI+3}, 0")
    A(f"v_add_u32 v6, 4096, v{V_PA}\nv_add_u32 v7, 8192, v{V_PA}")
    srd_off(A, 36, 26, OB_OFF, OB_SZ)
    A("s_lshl_b32 s29, s22, 2\ns_add_u32 s29, s29, s16\ns_lshl_b32 s29, s29, 1\ns_add_u32 s29, s29, s23\ns_sub_u32 s29, s29, 4")
    A(f"s_add_u32 s49, s29, {FO}\ns_lshl_b32 s49, s49, 6\ns_mul_i32 s29, s29, 20480\ns_add_u32 s30, s29, 10240")
    def kvf(g, e, mt): return KVB + 16*(g & 1) + 8*e + 4*mt
    def kv_reads(g):
        st, hp = g >> 2, g & 3
        return [f"ds_read_b128 {v(kvf(g,e,mt),4)}, v{4+mt} offset:{st*12288 + (2*hp+e)*(256 if mt else 1024)}" for e in range(2) for mt in range(2)]
    A("s_waitcnt lgkmcnt(0)\ns_barrier")
    pt(A, "kvf")
    for x in kv_reads(0): A(x)
    for st in range(2):
        for mt in range(2): A(f"ds_read_b128 {v(KR+8*st+4*mt,4)}, v{4+mt} offset:{st*12288 + 8*(256 if mt else 1024)}")
    def o_store(st, u, j):
        b = 2*u + j
        return f"buffer_store_dwordx4 {acc(st,u,j)}, v{(V_PA,6,7)[b//4]}, s[36:39], s{29+st} offen offset:{(b%4)*1024} {CFG.auxSt}"
    def o_valu(k):
        st, hp, j = k >> 3, (k >> 1) & 3, k & 1
        T = TM + 16*j
        L = [f"v_rcp_f32 v{T+8*e+6}, v{T+8*e+5}" for e in range(2)] + ["s_nop 0"]
        for e in range(2):
            L += [f"v_pk_mul_f32 {v(T+8*e+2*q,2)}, {v(T+8*e+2*q,2)}, {v(T+8*e+6,2)} op_sel_hi:[1,0]" for q in range(2)]
            L += [f"v_mul_f32 v{T+8*e+4}, v{T+8*e+4}, v{T+8*e+6}"]
        vals = [T+8*e+i for e in range(2) for i in range(5)]
        for p in range(5):
            pi = 5*hp + p
            L.append(f"v_cvt_pk_bf16_f32 v{accr(st, pi >> 2, j) + (pi & 3)}, v{vals[2*p]}, v{vals[2*p+1]}")
        if CFG.ost == 0: L += [o_store(st, u, j) for u in ([hp] if hp < 3 else [3, 4])]
        return L
    for k in range(16):
        st, hp, j = k >> 3, (k >> 1) & 3, k & 1
        g = k >> 1; T = TM + 16*j
        a = [f"{MF} {v(T+8*e+4*mt,4)}, {v(kvf(g,e,mt),4)}, {acc(st,2*hp+e,j)}, {v(CI,4) if mt else 0}" for e in range(2) for mt in (1, 0)]
        b = [f"{MF} {v(T+8*e+4*mt,4)}, {v(KR+8*st+4*mt,4)}, {v(MB+2*e,4)}, {v(T+8*e+4*mt,4)}" for e in range(2) for mt in (1, 0)]
        mk = [f"v_cndmask_b32 v{MB+(i if i < 2 else i+2)}, 0, v{accr(st,8,j)+i}, {s(8+2*hp,2)}" for i in range(4)]
        va = o_valu(k-1) if k else []
        if j == 0:
            A("s_waitcnt lgkmcnt(0)")
            if g < 7: va = va + kv_reads(g+1)
        A(a[0]); A(mk[0]); A(mk[1]); A(a[1]); A(mk[2]); A(mk[3]); A(a[2]); A(a[3])
        n0 = 0
        for i, m in enumerate([None] + b):
            if m: A(m)
            n = (len(va) - n0 + (4 - i)) // (5 - i)
            for x in va[n0:n0+n]: A(x)
            n0 += n
    A("s_nop 5")
    for x in o_valu(15): A(x)
    pt(A, "go1")
    if CFG.ost == 1:
        for st in range(2):
            for u in range(5):
                for j in range(2): A(o_store(st, u, j))
    A("s_branch K2_c")
    A.label("K1_ldF")
    srd_off(A, 8, 26, WF_OFF, WF_SZ)
    A(f"s_sub_u32 s17, s16, 4\ns_mul_i32 s21, s23, {18*18432}")
    def wait_fold():
        A("s_lshl_b32 s3, s17, 2\ns_add_u32 s3, s3, s23\ns_add_u32 s3, s3, 4\ns_lshl_b32 s19, s23, 1\ns_add_u32 s19, s19, s17\ns_sub_u32 s19, s19, 8")
        A("s_cmp_ge_u32 s23, 4\ns_cselect_b32 s3, s19, s3\ns_mul_i32 s3, s3, 36")
        A(f"s_add_u32 s3, s3, {F1}\nv_and_b32 v8, 63, v0\nv_min_u32 v8, 35, v8\nv_add_lshl_u32 v8, v8, s3, 6")
        if CFG.dlw: A(f"s_sleep {CFG.dlw}")
        poll2(A, 8, 10, CFG.sl0a, CFG.sl0)
        pt(A, "go1")
    emit_loader_lin(A, 18, 9, POFF, 17, 8, 21, 20, 18, CFG.auxP, CFG.GA, pre=wait_fold)
    A("s_branch K1_ldtail")
    A.label("K1_ldX")
    srd_off(A, 8, 26, HT_OFF, HT_SZ)
    A(f"s_sub_u32 s17, s16, 6\ns_mul_i32 s21, s22, {4*9216}\ns_lshl_b32 s18, s17, 10\ns_add_u32 s21, s21, s18\ns_lshl_b32 s18, s17, 12\ns_mov_b32 s19, s17")
    A("v_and_b32 v1, 63, v0\nv_and_b32 v2, 16, v1\nv_lshrrev_b32 v2, 2, v2\nv_xor_b32 v2, v2, v1\nv_lshlrev_b32 v2, 4, v2")
    for w in range(1, 4): A(f"v_add_u32 v{2+w}, {8192*w}, v2")
    def issue_x(slot):
        A(f"s_add_u32 m0, s18, {slot*STAGE + WOFF}\ns_add_u32 s19, s19, 2")
        for w in range(4): A(f"buffer_load_dwordx4 v{2+w}, s[8:11], s21 offen offset:{1024*w} {CFG.auxP} lds")
        A(f"s_cmp_ge_u32 s19, 9\ns_cselect_b32 s3, 9, 0\ns_cselect_b32 s28, {589824-9216}, 0\ns_sub_u32 s19, s19, s3\ns_add_u32 s21, s21, s28\ns_add_u32 s21, s21, 2048")
    def wait_xn():
        A(f"s_lshl_b32 s3, s22, 3\ns_add_u32 s3, s3, {F0+112}\nv_and_b32 v8, 7, v0\nv_add_lshl_u32 v8, v8, s3, 6")
        if CFG.dl0: A(f"s_sleep {CFG.dl0}")
        poll2(A, 8, 10, CFG.sl0a, CFG.sl0)
        pt(A, "go1")
    assert not CFG.GA
    emit_loader(A, 18, 4, issue_x, 20, pre=wait_xn)
    A.label("K1_ldtail")
    A("s_lshr_b32 s17, s2, 3\ns_sub_u32 s17, s17, 18\ns_lshl_b32 s17, s17, 2\ns_add_u32 s17, s17, s16\ns_sub_u32 s17, s17, 4")
    A(f"s_mov_b32 s49, {OOB}\ns_cmp_ge_u32 s23, 4\ns_cbranch_scc1 K1_ldq")
    srd_off(A, 32, 26, RS_OFF, RS_SZ)
    A("s_and_b32 s31, s16, 3\ns_lshl_b32 s30, s22, 2\ns_add_u32 s30, s30, s31\ns_lshl_b32 s30, s30, 8\nv_and_b32 v1, 63, v0\nv_and_b32 v2, 15, v1\nv_lshlrev_b32 v2, 2, v2")
    A("buffer_load_dword v240, v2, s[32:35], s30 offen offset:128 sc1")
    if CFG.pf2kv:
        A(f"s_add_u32 s17, s17, {72*CFG.pf2g + 16*CFG.pf2s}")
        pf_w2(A, 50, 17, 32, CFG.pf2kv)
    A(f"s_mul_i32 s3, s31, 9216\ns_add_u32 s3, s3, {HO}\nv_lshl_add_u32 v2, v1, 4, s3\ns_barrier")
    for t in range(9): A(f"ds_read_b128 {acc(0,t,0)}, v2 offset:{t*1024}")
    A(f"s_waitcnt vmcnt({CFG.pf2kv}) lgkmcnt(0)\ns_branch K1_kvsm")
    A.label("K1_ldq")
    A("s_barrier")
    if CFG.c3w2 == 1:
        A("s_sub_u32 s19, s17, 32")
        pf_w2c3(A, 50, 19, 16, 3, lim=0)
    if CFG.pf2q:
        A(f"s_add_u32 s17, s17, {72*CFG.pf2g + 16*CFG.pf2s + 32*CFG.pf2kv - 32}")
        pf_w2(A, 50, 17, 16, CFG.pf2q, lim=None if CFG.qlim < 0 else CFG.qlim)
    A("s_branch K2_ld")
    A.label("K1_spare")
    A(f"s_load_dwordx2 s[24:25], s[0:1], {KA_WO}\ns_load_dwordx2 s[50:51], s[0:1], {KA_W2}")
    A("s_and_b32 s17, s2, 7\ns_lshr_b32 s18, s2, 3\ns_sub_u32 s41, s18, 30\ns_lshl_b32 s41, s41, 3\ns_add_u32 s41, s41, s16")
    A(f"s_add_u32 s43, s41, {72*CFG.pf2g}")
    if CFG.pf1s:
        A(f"s_add_u32 s41, s41, {320 - 16*CFG.pf1s}")
        A.label("K1_spf")
        pf_w1(A, 52, 46, 41, 16, 1, 1, 57, lim=CFG.slim)
        A("s_cmp_lt_u32 s41, 320\ns_cbranch_scc1 K1_spf")
    A("s_waitcnt lgkmcnt(0)")
    tag_make(A)
    if CFG.c3w2 == 2:
        A("s_sub_u32 s19, s18, 30\ns_lshl_b32 s19, s19, 3\ns_add_u32 s19, s19, s16")
        pf_w2c3(A, 50, 19, 16, 3, lim=1)
    pf_w2(A, 50, 43, 16, CFG.pf2s, lim=1)
    pt(A, "m1")
    A("s_sub_u32 s18, s18, 30\ns_lshl_b32 s17, s17, 1\ns_add_u32 s17, s17, s18\ns_and_b32 s22, s17, 3\ns_lshr_b32 s23, s17, 2")
    srd(A, 8, 24, D*D*2)
    A(f"s_mul_i32 s28, s23, {144*1152}\ns_mul_i32 s29, s22, 288\ns_add_u32 s28, s28, s29\ns_lshl_b32 s29, s16, 10")
    for r in range(6):
        if r == 5: A("s_cmp_lg_u32 s16, 0\ns_cbranch_scc1 K1_w5\ns_bfm_b64 exec, 32, 0")
        A(f"v_add_u32 v4, {512*r}, v0\nv_mul_u32_u24 v5, 58255, v4\nv_lshrrev_b32 v5, 20, v5\ns_add_u32 m0, s29, {8192*r}")
        A(f"v_mul_u32_u24 v5, {1152-288}, v5\nv_lshl_add_u32 v4, v4, 4, v5\nbuffer_load_dwordx4 v4, s[8:11], s28 offen lds")
    A("s_mov_b64 exec, -1")
    A.label("K1_w5")
    ZR = 144*288
    A(f"v_lshlrev_b32 v4, 2, v0\nv_add_u32 v4, {ZR}, v4\nv_mov_b32 v5, 0\nds_write_b32 v4, v5")
    srd_off(A, 12, 26, WOT_OFF, WOT_SZ)
    A("v_and_b32 v1, 63, v0\nv_lshrrev_b32 v3, 4, v1\nv_bfe_u32 v2, v1, 2, 2\ns_lshl_b32 s3, s16, 3\nv_and_b32 v10, 3, v1\nv_lshlrev_b32 v10, 3, v10")
    A(f"v_add_u32 v11, 16, v3\nv_cmp_gt_u32 s[30:31], 2, v3\nv_mov_b32 v12, 144")
    for hf in range(2):
        A(f"v_add3_u32 v4, v2, s3, {4*hf}\nv_mul_u32_u24 v5, 205, v4\nv_lshrrev_b32 v5, 10, v5\nv_mul_u32_u24 v6, 5, v5\nv_sub_u32 v6, v4, v6")
        A("v_cmp_eq_u32 vcc, 4, v6\nv_lshl_add_u32 v6, v3, 2, v6\nv_mul_u32_u24 v5, 18, v5\nv_cndmask_b32 v6, v6, v11, vcc\ns_andn2_b64 vcc, vcc, s[30:31]")
        A(f"v_add_u32 v6, v6, v5\nv_cndmask_b32 v6, v6, v12, vcc\nv_min_u32 v6, 144, v6\nv_mul_u32_u24 v6, 288, v6\nv_add_u32 v{8+hf}, v6, v10")
    A("s_lshl_b32 s28, s22, 2\ns_add_u32 s28, s28, s23\ns_mul_i32 s28, s28, 5\ns_add_u32 s28, s28, s16")
    A(f"s_add_u32 s49, s28, {FW}\ns_lshl_b32 s49, s49, 6\ns_mul_i32 s28, s28, 9216\nv_lshlrev_b32 v2, 4, v1")
    A("s_waitcnt vmcnt(0) lgkmcnt(0)\ns_barrier")
    for rt in range(9):
        A(f"ds_read_b64_tr_b16 {v(16+4*rt,2)}, v8 offset:{rt*32}\nds_read_b64_tr_b16 {v(18+4*rt,2)}, v9 offset:{rt*32}")
    A("s_waitcnt lgkmcnt(0)\ns_barrier")
    A("s_cmp_lt_u32 s16, 5\ns_cbranch_scc1 K1_wot")
    A(f"s_lshl_b32 s49, s2, 6\ns_cmp_eq_u32 s16, 5\ns_cbranch_scc1 K2_ld")
    A(f"s_mov_b32 s49, {OOB}\ns_cmp_lg_u32 s16, 7\ns_cbranch_scc1 K2_ld\ns_cmp_lg_u32 s2, 255\ns_cbranch_scc1 K2_ld")
    for q in range(4):
        A(f"v_add_u32 v8, {F0 + 64*q}, v1\nv_lshlrev_b32 v8, 6, v8")
        poll(A, 8, 10, 8)
    A(f"s_mov_b32 s49, {FE*64}\ns_branch K2_ld")
    A.label("K1_wot")
    for rt in range(9):
        if rt and rt % 4 == 0: A("s_add_u32 s28, s28, 4096")
        A(f"buffer_store_dwordx4 {v(16+rt*4,4)}, v2, s[12:15], s28 offen offset:{(rt%4)*1024} {CFG.auxSt}")
    A("s_cmp_ge_u32 s16, 4\ns_cbranch_scc1 K2_ld")

def k2_decode(A):
    A("s_and_b32 s17, s2, 7\ns_lshr_b32 s18, s2, 3")
    A("s_lshr_b32 s28, s17, 1\ns_and_b32 s22, s18, 3")
    A("s_and_b32 s17, s17, 1\ns_lshl_b32 s17, s17, 3\ns_lshr_b32 s18, s18, 2\ns_add_u32 s23, s17, s18")
RED_RS = 592
def red_base(w): return w*32*RED_RS if w < 3 else 3*STAGE2
PB, PBS = 3*STAGE2 + 32*RED_RS, 1056
def k2_enter(A):
    A(f"s_load_dwordx4 s[4:7], s[0:1], {KA_W2}\ns_load_dwordx2 s[44:45], s[0:1], {KA_X}\ns_load_dwordx2 s[46:47], s[0:1], {KA_OUT}")
    k2_decode(A)
def gen_k2(A):
    DBG["on"] = True
    KV, MB, CI, PH, TM, PK, O = 8, 80, 92, 96, 132, 168, 204
    A.label("K2_c")
    pt(A, "e1")
    k2_enter(A)
    emit_compute_addr(A, 16, "pi")
    for i in range(0, 72, 2): A(f"v_pk_mov_b32 {v(V_ACC+i,2)}, 0, 0")
    A("s_sub_u32 s3, s2, 208\ns_cmp_lt_u32 s3, 32\ns_cbranch_scc1 K2_c1\ns_waitcnt vmcnt(0)")
    raise_flag(A, 49, 8)
    A(f"s_mov_b32 s49, {OOB}")
    if CFG.bgo: A("s_barrier")
    A.label("K2_c1")
    pt(A, "fl1")
    srd_off(A, 36, 26, PART_OFF, PART_SZ)
    A("s_lshl_b32 s17, s23, 2\ns_add_u32 s17, s17, s22\ns_lshl_b32 s18, s17, 4")
    A("s_lshl_b32 s30, s16, 2\ns_add_u32 s30, s30, s28\ns_add_u32 s30, s30, s18")
    A(f"s_mul_i32 s32, s30, 9216\ns_add_u32 s30, s30, {FX}\ns_lshl_b32 s30, s30, 6")
    A(f"s_cmp_eq_u32 s16, s28\ns_cselect_b32 s48, {OOB}, 0\ns_cselect_b32 s30, {OOB}, s30")
    A(f"s_add_u32 s34, s32, 4096\ns_add_u32 s35, s32, 8192")
    A("s_waitcnt lgkmcnt(0)")
    k2_final_prep(A, 1)
    if CFG.pf2l or CFG.pf2ls:
        base = 72*CFG.pf2g + 16*CFG.pf2s + 32*CFG.pf2kv + 16*CFG.pf2q
        A(f"s_lshr_b32 s17, s2, 3\ns_lshl_b32 s19, s17, 2\ns_add_u32 s19, s19, s16\ns_cmp_ge_u32 s17, 30\ns_cbranch_scc1 K2_pls\ns_sub_u32 s17, s17, 18\ns_cmp_ge_u32 s17, 8\ns_cbranch_scc1 K2_nopl")
        A(f"s_add_u32 s19, s19, {base - 72}")
        pf_w2(A, 4, 19, 32, CFG.pf2l, srdn=8)
        A("s_branch K2_nopl")
        A.label("K2_pls")
        A(f"s_add_u32 s19, s19, {base + 32*CFG.pf2l - 120}")
        pf_w2(A, 4, 19, 8, CFG.pf2ls, srdn=8, lim=1)
        A.label("K2_nopl")
    A(f"v_or_b32 v0, s48, v{V_PA}\ns_mul_i32 s48, s16, 9216")
    A("v_and_b32 v8, 15, v1\nv_lshrrev_b32 v9, 4, v1")
    srd_off(A, 40, 26, OB_OFF, OB_SZ)
    A(f"s_lshl_b32 s29, s23, 2\ns_add_u32 s29, s29, s28\ns_lshl_b32 s29, s29, 2\ns_add_u32 s29, s29, s16\ns_lshr_b32 s3, s29, 1\ns_add_u32 s3, s3, {FO}\ns_lshl_b32 s3, s3, 6\nv_mov_b32 v170, s3\ns_mul_i32 s29, s29, 10240")
    A(f"v_mul_u32_u24 v8, {RED_RS}, v8\nv_lshl_add_u32 v8, v9, 4, v8")
    A(f"s_mul_i32 s17, s16, {32*RED_RS}\ns_cmp_eq_u32 s16, 3\ns_cselect_b32 s17, {red_base(3)}, s17\nv_add_u32 v254, s17, v8")
    def pub(t):
        L = [f"v_cvt_pk_bf16_f32 v{PK+4*t+p}, v{V_ACC+8*t+2*p}, v{V_ACC+8*t+2*p+1}" for p in range(4)]
        L.append(f"buffer_store_dwordx4 {v(PK+4*t,4)}, v0, s[36:39], s{(32, 34, 35)[t//4]} offen offset:{(t%4)*1024} sc1")
        return L
    lastfill = [""]*9
    for t in range(4): lastfill += ["\n".join(pub(t)[:3]), "\n".join(pub(t)[3:])]
    lastfill += ["\n".join(pub(4))]
    def ld_o(k):
        if k == 0:
            A("buffer_load_dwordx2 v[168:169], v170, s[96:99], 0 offen sc1")
            return
        L = A.newlabel("Lo")
        A(f"s_waitcnt vmcnt(0)\nv_cmp_ne_u64 vcc, s[100:101], v[168:169]\ns_nop 4\ns_cbranch_vccz {L}")
        poll(A, 170, 168)
        A.label(L)
    def o_loads():
        L = []
        for b in range(10):
            L.append((f"s_add_u32 s29, s29, 4096\n" if b and b % 4 == 0 else "") + f"buffer_load_dwordx4 {v(O+4*b,4)}, v{V_PA}, s[40:43], s29 offen offset:{(b%4)*1024} sc1")
        return L
    def late_flag():
        A(f"s_cmp_eq_u32 s49, {OOB}\ns_cbranch_scc1 K2_nolate\ns_waitcnt vmcnt(0)")
        raise_flag(A, 49, 172)
        A(f"s_mov_b32 s49, {OOB}")
        A.label("K2_nolate")
        A("s_cmp_lg_u32 s20, 2\ns_cbranch_scc1 K2_nofo")
        ld_o(0)
        A.label("K2_nofo")
    emit_compute_loop(A, 18, "pi", (False, False), 20, first=lambda: pt(A, "b2"), lastfill=lastfill, loopend=late_flag, hooks={16: lambda: ld_o(1)}, more={16: (o_loads()[:5], o_loads()[5:])})
    pt(A, "m2")
    def vread(stage, dst):
        slot = stage % NST
        return [f"ds_read_b128 {v(dst+4*b,4)}, v{5 if slot >= 2 else 4} offset:{(slot & 1)*STAGE + b*1024}" for b in range(9)]
    A(f"v_add_u32 v4, s48, v{V_PA}\nv_add_u32 v5, s48, v{V_PB}")
    A("s_barrier")
    for r in vread(18, KV): A(r)
    for t in range(5, 9):
        for x in pub(t): A(x)
    pt(A, "pub")
    def flag_x():
        A("s_waitcnt vmcnt(0)")
        raise_flag(A, 30, 88)
        pt(A, "flx")
    A("s_waitcnt vmcnt(9)")
    def wo(u, keep):
        return [f"{MF} {acc(0,t,j)}, {v(KV+36*(u&1)+4*t,4)}, {v(O+8*u+4*j,4)}, {acc(0,t,j) if keep else 0}" for t in range(9) for j in range(2)]
    A("s_cmp_eq_u32 s16, s28\ns_cbranch_scc1 K2_own")
    block(A, wo(0, False), vread(19, KV+36), True)
    A("s_branch K2_u1")
    A.label("K2_own")
    block(A, wo(0, True), vread(19, KV+36), True)
    A.label("K2_u1")
    for u in range(4):
        if u: block(A, wo(u, True), vread(19+u, KV+36*((u+1)&1)), True)
        pt(A, f"u{u}")
        if u == CFG.flagpos: flag_x()
    def wr(k): return f"ds_write_b128 v254, {acc(0,k>>1,k&1)} offset:{(k&1)*16*RED_RS + (k>>1)*64}"
    block(A, wo(4, True), [""]*8 + [wr(k) for k in range(10)], False)
    for k in range(10, 18): A(wr(k))
    pt(A, "add")
    A.label("K2_fin")
    def fin_x(n):
        FI = (244, 232)[n]; XB = FI + 4; D0 = 40 + 56*n
        for i in range(4): A(f"v_lshlrev_b32 v{D0+2*i}, 16, v{XB+i}\nv_and_b32 v{D0+1+2*i}, 0xffff0000, v{XB+i}")
        A(f"v_lshlrev_b32 v48, 16, v{FI+3}")
        for p in range(4): A(f"v_pk_add_f32 {v(D0+2*p,2)}, {v(D0+2*p,2)}, v[48:49] op_sel_hi:[1,0]")
    def fin(items):
        for n in items: fin_x(n)
        A("s_waitcnt lgkmcnt(0)\ns_barrier")
        pt(A, "red")
        for n in items:
            FI = (244, 232)[n]; R = 8 + 96*n
            for w in range(4):
                a, o = (FI+1, red_base(w)) if w < 3 else (FI+2, 0)
                A(f"ds_read_b128 {v(R+8*w,4)}, v{a} offset:{o}\nds_read_b128 {v(R+8*w+4,4)}, v{a} offset:{o+16}")
        left = 8*len(items)
        for n in items:
            R = 8 + 96*n; D0 = 40 + 56*n
            for w in range(4):
                left -= 2
                A(f"s_waitcnt lgkmcnt({left})")
                for p in range(4): A(f"v_pk_add_f32 {v(D0+2*p,2)}, {v(D0+2*p,2)}, {v(R+8*w+2*p,2)}")
        A("s_waitcnt vmcnt(0)\ns_barrier")
        pt(A, "rx")
        for n in items:
            for q in range(3):
                A(f"ds_read_b64 {v(60+12*n+4*q,2)}, v{(252, 240)[n]} offset:{q*9*PBS}\nds_read_b64 {v(62+12*n+4*q,2)}, v{(252, 240)[n]} offset:{q*9*PBS + 256}")
        left = 6*len(items)
        for n in items:
            D0 = 40 + 56*n
            for q in range(3):
                left -= 2
                A(f"s_waitcnt lgkmcnt({left})")
                for i in range(4): A(f"v_lshlrev_b32 v{8+2*i}, 16, v{60+12*n+4*q+i}\nv_and_b32 v{9+2*i}, 0xffff0000, v{60+12*n+4*q+i}")
                for p in range(4): A(f"v_pk_add_f32 {v(D0+2*p,2)}, {v(D0+2*p,2)}, {v(8+2*p,2)}")
            for p in range(4): A(f"v_cvt_pk_bf16_f32 v{52+4*n+p}, v{D0+2*p}, v{D0+1+2*p}")
            A(f"buffer_store_dwordx4 {v(52+4*n,4)}, v{(244, 232)[n]}, s[52:55], s50 offen {CFG.auxOut}")
    A("s_cmp_eq_u32 s16, 7\ns_cbranch_scc1 K2_fin2")
    fin([0])
    A("s_branch K2_done")
    A.label("K2_fin2")
    fin([0, 1])
    A.label("K2_done")
    pt(A, "fin")
    stamp_flush(A)
    A("s_endpgm")
    A.label("K2_ld")
    pt(A, "e1")
    k2_enter(A)
    A(f"s_cmp_eq_u32 s49, {OOB}\ns_cbranch_scc1 K2_ld1\ns_waitcnt vmcnt(0)")
    raise_flag(A, 49, 8)
    A.label("K2_ld1")
    if CFG.G2: A(f"s_add_u32 s59, s22, s23\ns_and_b32 s59, s59, 3\ns_mul_i32 s59, s59, {CFG.G2}\ns_lshr_b32 s59, s59, 2")
    A(f"s_sub_u32 s29, s16, 4\ns_mul_i32 s34, s29, 9216")
    A(f"s_lshl_b32 s32, s22, 2\ns_add_u32 s32, s32, s29\ns_mul_i32 s32, s32, 46080\ns_add_u32 s32, s32, {WOT_OFF}")
    A("v_and_b32 v24, 63, v0\nv_lshlrev_b32 v20, 4, v24\nv_add_u32 v21, 4096, v20\nv_add_u32 v22, 8192, v20")
    srd(A, 36, 26, PART_OFF)
    A("s_waitcnt lgkmcnt(0)")
    k2_final_prep(A, 2)
    A("s_lshl_b32 s30, s23, 2\ns_add_u32 s30, s30, s22\ns_lshl_b32 s30, s30, 2\ns_add_u32 s30, s30, s28\ns_lshl_b32 s30, s30, 2\ns_add_u32 s30, s30, s29")
    A(f"s_add_u32 s3, s30, {FX}\ns_lshl_b32 s3, s3, 6\nv_mov_b32 v32, s3\ns_mul_i32 s30, s30, 9216")
    A(f"s_cmp_gt_u32 s29, s28\ns_cselect_b32 s3, 1, 0\ns_sub_u32 s31, s29, s3\ns_mul_i32 s31, s31, {9*PBS}")
    A(f"s_lshl_b32 s40, s22, 2\ns_add_u32 s40, s40, s29\ns_mul_i32 s40, s40, 5\ns_add_u32 s40, s40, {FW}\nv_min_u32 v28, 4, v24\nv_add_lshl_u32 v28, v28, s40, 6")
    def go_barrier(only_q=False):
        L = A.newlabel("Lg")
        A(f"s_sub_u32 s3, s2, 208\ns_cmp_ge_u32 s3, 32\ns_cbranch_scc1 {L}")
        A(f"s_and_b32 s3, s2, 1\ns_lshl_b32 s3, s3, 2\ns_add_u32 s3, s3, s29\ns_mul_i32 s3, s3, 6\ns_lshl_b32 s41, s3, 10\ns_add_u32 s41, s41, {KVF_OFF}\ns_add_u32 s3, s3, {FK}")
        A(f"v_min_u32 v14, 5, v24\nv_add_lshl_u32 v14, v14, s3, 6\ns_mul_i32 s43, s29, 6144\ns_add_u32 m0, s43, {P0}")
        poll2(A, 14, 16, CFG.slo, CFG.slo2)
        for b in range(6):
            if b == 4: A(f"s_add_u32 m0, s43, {P0 + 4096}\ns_nop 0")
            if b == 5: A("s_bitcmp1_b32 s29, 0\ns_cselect_b64 exec, 0xffff, -1")
            A(f"buffer_load_dwordx4 v{20+b//4}, s[36:39], s41 offen offset:{(b%4)*1024} sc1 lds")
        A("s_mov_b64 exec, -1\ns_waitcnt vmcnt(0)")
        if only_q: A("s_barrier")
        A.label(L)
        if not only_q: A("s_barrier")
    assert CFG.bgo == 2 and not CFG.pft
    hook = {15: lambda: A("buffer_load_dwordx2 v[30:31], v28, s[96:99], 0 offen sc1")}
    def tail(so, step, nb=9, check=False, sample=False):
        def emit(slot):
            if check:
                L = A.newlabel("Lt")
                A(f"v_cmp_ne_u64 vcc, s[100:101], v[30:31]\ns_nop 4\ns_cbranch_vccz {L}")
                poll(A, 28, 30)
                A.label(L)
            for j in range(nb):
                if j % 4 == 0: A(f"s_add_u32 m0, s34, {slot*STAGE + (j//4)*4096}\ns_nop 0")
                if nb == 3 and j == 2: A("s_mov_b64 exec, 0xffff")
                A(f"buffer_load_dwordx4 v{20+j//4}, s[36:39], s{so} offen offset:{(j%4)*1024} sc1 lds")
                if nb == 3 and j == 2: A("s_mov_b64 exec, -1")
            A(f"s_add_u32 s{so}, s{so}, {step}")
            if sample: A("buffer_load_dwordx2 v[34:35], v32, s[96:99], 0 offen sc1")
        return (nb + sample, emit)
    extra = [tail(32, 9216, check=True)] + [tail(32, 9216)]*3 + [tail(32, 9216, sample=True)]
    A("s_cmp_ge_u32 s16, 6\ns_cbranch_scc1 K2_ldW")
    srd_off(A, 8, 26, U_OFF, U_SZ)
    A(f"s_sub_u32 s17, s16, 4\ns_lshl_b32 s21, s22, 2\ns_add_u32 s21, s21, s28\ns_mul_i32 s40, s21, 36\ns_mul_i32 s21, s21, {36*9216}")
    def wait_u():
        A(f"s_add_u32 s40, s40, s17\ns_add_u32 s40, s40, {FU}\nv_min_u32 v8, 17, v24\nv_lshl_add_u32 v8, v8, 1, s40\nv_lshlrev_b32 v8, 6, v8")
        go_barrier()
        poll2(A, 8, 10, CFG.sl1, CFG.sl2)
        pt(A, "go2")
    emit_loader_lin(A, 18, 9, POFF, 17, 8, 21, 20, 18, CFG.auxP, CFG.G2, extra=extra, pre=wait_u, hook=hook)
    A("s_branch K2_rx")
    A.label("K2_ldW")
    srd(A, 12, 4, S*F*2)
    A(f"s_sub_u32 s17, s16, 6\ns_mul_i32 s21, s28, {1152*4096}\ns_lshl_b32 s18, s23, 8\ns_add_u32 s21, s21, s18")
    every = None
    if CFG.pft:
        A("v_mul_u32_u24 v25, 1920, v24")
        A(f"s_lshl_b32 s40, s23, 2\ns_add_u32 s40, s40, s28\ns_lshl_b32 s40, s40, 2\ns_add_u32 s40, s40, s22\ns_mul_i32 s40, s40, 18432\ns_add_u32 s40, s40, {PHIQ_OFF}")
        A(f"s_and_b32 s41, s23, 7\ns_lshl_b32 s42, s22, 3\ns_add_u32 s41, s41, s42\ns_mul_i32 s42, s41, 1536\ns_add_u32 s42, s42, {KVF_OFF}\ns_mul_i32 s41, s41, 23040\ns_add_u32 s41, s41, {WOT_OFF}")
        A(f"s_cmp_eq_u32 s16, 6\ns_cselect_b32 s40, s40, s41\ns_cselect_b32 s41, 10, 12\ns_cselect_b32 s48, 0x7ff, -1\ns_and_b32 s48, s48, 0xfff\ns_mov_b32 s49, 0")
        A(f"v_cmp_gt_u32 vcc, s41, v24\nv_add_u32 v25, s40, v25\nv_mov_b32 v26, s42\ns_mov_b32 s42, 0\nv_cndmask_b32 v26, v26, v25, vcc\nv_mov_b32 v25, {OOB}")
        def every():
            A(f"s_mov_b64 exec, s[48:49]\nbuffer_load_dword v{SINK}, v25, s[36:39], s42 offen sc1\ns_mov_b64 exec, -1\ns_add_u32 s42, s42, 128")
    def mid():
        if CFG.pft: A("v_mov_b32 v25, v26\ns_mov_b32 s42, 0")
        go_barrier(True)
    A("s_sub_u32 s3, s2, 208\ns_cmp_lt_u32 s3, 32\ns_cbranch_scc1 K2_nob\ns_barrier\nK2_nob:")
    emit_loader_W(A, 18, "pi", 17, 12, 21, 4096, 20, 18, CFG.auxW2, CFG.G2, extra=extra, every=every, mid=mid, hook=hook)
    A.label("K2_rx")
    A("s_cmp_eq_u32 s29, s28\ns_cbranch_scc1 K2_fin")
    srd_off(A, 8, 26, PART_OFF, PART_SZ)
    A(f"s_add_u32 m0, s31, {PB}\nv_cmp_ne_u64 vcc, s[100:101], v[34:35]\nv_lshrrev_b32 v2, 5, v24\nv_xor_b32 v2, v2, v24\nv_lshlrev_b32 v2, 4, v2\ns_nop 1\ns_cbranch_vccz K2_rx1\ns_mov_b64 exec, 1")
    poll(A, 32, 34, CFG.slx)
    A.label("K2_rx1")
    pt(A, "poll")
    for t in range(9):
        A(f"buffer_load_dwordx4 v2, s[8:11], s30 offen sc1 lds\ns_add_u32 m0, m0, {PBS}\ns_add_u32 s30, s30, 1024")
    A("s_branch K2_fin")
    A.label("K_end")
    A("s_endpgm")
    DBG["on"] = False

def k2_final_prep(A, nitems):
    srd(A, 8, 44, S*D*2)
    srd(A, 12, 6, S*2)
    srd(A, 52, 46, S*D*2)
    A("s_lshl_b32 s50, s23, 2\ns_add_u32 s50, s50, s28\ns_lshl_b32 s51, s50, 6\ns_mul_i32 s50, s50, 36864\ns_mul_i32 s17, s22, 288\ns_add_u32 s50, s50, s17")
    for n in range(nitems):
        FI = (244, 232)[n]; XB = FI + 4
        if n: A(f"v_mov_b32 v{FI}, {OOB}\ns_cmp_lg_u32 s16, 7\ns_cbranch_scc1 K2_fp1")
        A("v_mov_b32 v252, v0" if n == 0 else "v_and_b32 v252, 63, v0\nv_add_u32 v252, 512, v252")
        A("v_mul_u32_u24 v253, 3641, v252\nv_lshrrev_b32 v253, 16, v253\nv_mul_u32_u24 v254, 18, v253\nv_sub_u32 v254, v252, v254")
        A(f"v_mul_u32_u24 v252, 1152, v253\nv_lshl_add_u32 v{FI}, v254, 4, v252")
        A(f"v_mul_u32_u24 v252, {RED_RS}, v253\nv_lshl_add_u32 v{FI+1}, v254, 5, v252\nv_add_u32 v{FI+2}, {red_base(3)}, v{FI+1}")
        A(f"v_lshrrev_b32 v252, 1, v254\nv_mul_u32_u24 v252, {PBS}, v252\nv_and_b32 v254, 1, v254\nv_lshl_add_u32 v252, v254, 9, v252\nv_xor_b32 v254, v254, v253\nv_and_b32 v254, 15, v254")
        A(f"v_lshl_add_u32 v252, v254, 4, v252\nv_lshrrev_b32 v254, 4, v253\nv_lshl_add_u32 v252, v254, 3, v252\nv_add_u32 v{(241, 240)[n]}, {PB}, v252")
        A("v_lshlrev_b32 v253, 1, v253")
        A(f"buffer_load_dwordx4 {v(XB,4)}, v{FI}, s[8:11], s50 offen\nbuffer_load_ushort v{FI+3}, v253, s[12:15], s51 offen")
        if n: A.label("K2_fp1")
    A("v_mov_b32 v252, v241")

HEADER = open("parallel_sum__linear_kernel_hedgehog__mixer_token_mlp__prompt.s.ref").read().split("; Override launch")[0] if __name__ == "__main__" else ""

def gen(**kw):
    global CFG
    for k in dir(Cfg):
        if not k.startswith("_"): setattr(CFG, k, kw.get(k, getattr(Cfg, k)))
    A = Asm()
    if HEADER: A(HEADER.rstrip())
    A(f"; @launch grid=(256,1,1) block=(512,1,1) lds={LDS_BYTES}")
    A('.amdgcn_target "amdgcn-amd-amdhsa--gfx950"\n.text')
    gen_k0(A); gen_k1(A); gen_k2(A)
    A.label("CODE_END")
    A("s_endpgm")
    A('.section .rodata,"a"')
    kernel_desc(A, KNAME, 256)
    return A.text()

if __name__ == "__main__":
    out = sys.argv[1] if len(sys.argv) > 1 else "parallel_sum__linear_kernel_hedgehog__mixer_token_mlp__prompt.s"
    kw = {}
    for a in sys.argv[2:]:
        k, val = a.split("=")
        kw[k] = val if not val.isdigit() else int(val)
    open(out, "w").write(gen(**kw))
```

```python
import math, struct, sys
from asmlib import *

def f2u(x): return struct.unpack("<I", struct.pack("<f", x))[0]
LOG2E = math.log2(math.e)
OOB = 0x80000000

S, D, F, H, DH = 2048, 576, 4608, 32, 18
KA_X, KA_WQKV, KA_WPHI, KA_WO, KA_BX, KA_W1, KA_B1, KA_W2, KA_B2, KA_OUT, KA_DBG, KA_WS = [8*i for i in range(12)]
RS_OFF, RS_SZ = 0x0, 128*128
HT_OFF, HT_SZ = 0x240000, 2359296
WF_OFF, WF_SZ = 0x480000, 6*18*18*1024
U_OFF, U_SZ = 0x680000, 5308416
PHIQ_OFF, PHIQ_SZ = 0xC00000, 4718592
KVP_OFF, KVP_SZ = 0x1080000, 16*48*2048
KVF_OFF, KVF_SZ = 0x12C0000, 48*1024
WOT_OFF, WOT_SZ = 0x1300000, 16*45*1024
OB_OFF, OB_SZ = 0x2000000, 64*4*10240
PART_OFF, PART_SZ = 0x1400000, 64*16*9216
FLAG_OFF, FLAG_SZ = 0x1F00000, 0x37000
F0, FU, FQ, FW, FK, FP, FX, FE, F1, FO = 0, 256, 832, 960, 1040, 1088, 1152, 2176, 2240, 3264
KNAME = "parallel_sum__linear_kernel_hedgehog__mixer_token_mlp__prompt_kernel"
SINK = 255
STAMP_OFF, STAMP_SZ = 0x3000000, 0x100000

STAGE, POFF, WOFF, NST = 36864, 0, 18432, 4
STAGE2 = STAGE
V_PA, V_PB, V_W0A, V_W1A, V_W0B, V_W1B = 2, 3, 4, 5, 6, 7
V_PF, V_WF, V_ACC = 8, 80, 96
def pf(b, t): return v(V_PF + b*36 + t*4, 4)
def wf(b, j): return v(V_WF + b*8 + j*4, 4)
def accr(st, t, j): return V_ACC + st*72 + (t*2+j)*4
def acc(st, t, j): return v(accr(st, t, j), 4)
MF = "v_mfma_f32_16x16x32_bf16"

class Cfg:
    stamp = False
    auxW1 = ""; auxW2 = ""; auxP = "sc1"; auxSt = "sc1"
    G1 = 0; G2 = 0; GA = 0
    auxOut = ""; flagpos = 1; pollpos = 1
    pts = ""; pf1b = 0; pf2w = 0; pubpos = 0; pf2l = 0; pf2ls = 0; ost = 0; slo2 = 1; slx = 0; slo = 4; opos = 0; dl0 = 0; dlf = 0; dlw = 0; pff = 0; wide = 0; wot1 = 0; pf1q = 0; slim = 1; unroll = 0; sl0a = 0; wlate = 0; qlim = -1; pfbar = 0; pf1a = 0; c3w2 = 0; c3w1 = 0; swap13 = 1; tlb = 0; sl1 = 0; sl2 = 0; bgo = 0; sl0 = 0; slk = 0
    dbg_nopub = 0; dbg_hot = 0; dbg = ""
    pfc = 0
    pf1 = 0
    pf1l = 0; pf1rev = 0; pf2g = 0; pf2pos = 3
    pf1pos = 0
    pf1s = 0
    pft = 0
    pf2kv = 0; pf2q = 0; pf2s = 0
    probe = ""
CFG = Cfg()

def stamp(A, i):
    if CFG.stamp: A(f"{'s_memtime' if CFG.stamp == 2 else 's_memrealtime'} s[{64+2*i}:{65+2*i}]")
def pt(A, name):
    L = CFG.pts.split(",")
    if name in L: stamp(A, 1 + L.index(name))
def stamp_flush(A):
    if not CFG.stamp: return
    A("s_waitcnt vmcnt(0)")
    stamp(A, 13)
    A("s_waitcnt lgkmcnt(0)")
    srd_off(A, 92, 26, STAMP_OFF, STAMP_SZ)
    A("s_lshl_b32 s63, s2, 3\ns_add_u32 s63, s63, s16\ns_lshl_b32 s63, s63, 6\ns_mov_b64 exec, 1\nv_mov_b32 v1, 0")
    for i in range(14):
        A(f"v_mov_b32 v2, s{64+2*i}\nbuffer_store_dword v2, v1, s[92:95], s63 offen offset:{4*i}")

def emit_compute_addr(A, s_wave, mode):
    A("v_and_b32 v1, 63, v0")
    A(f"v_lshlrev_b32 v{V_PA}, 4, v1")
    A(f"v_add_u32 v{V_PB}, {2*STAGE}, v{V_PA}")
    if mode == "lin":
        A("v_lshrrev_b32 v8, 5, v1\nv_lshlrev_b32 v8, 12, v8\nv_bfe_u32 v9, v1, 4, 1\nv_lshl_add_u32 v8, v9, 7, v8\nv_bfe_u32 v9, v1, 2, 2\nv_lshl_add_u32 v8, v9, 4, v8")
        A("v_bfe_u32 v9, v1, 1, 1\nv_mul_u32_u24 v9, 320, v9\nv_add_u32 v8, v8, v9\nv_and_b32 v9, 1, v1\nv_lshl_add_u32 v8, v9, 3, v8")
        A(f"s_lshl_b32 s3, s{s_wave}, 10\ns_add_u32 s3, s3, {WOFF}\nv_add_u32 v{V_W0A}, s3, v8")
        A(f"v_xor_b32 v{V_W1A}, 64, v{V_W0A}\nv_add_u32 v{V_W0B}, {2*STAGE}, v{V_W0A}\nv_add_u32 v{V_W1B}, {2*STAGE}, v{V_W1A}")
        return
    A("v_lshrrev_b32 v8, 2, v1")
    A("v_and_b32 v9, 7, v8")
    if mode == "std":
        A("v_and_b32 v10, 12, v8\nv_add_u32 v8, v8, v10")
    A(f"s_lshl_b32 s3, s{s_wave}, 1")
    A("v_xor_b32 v9, s3, v9\nv_lshlrev_b32 v9, 5, v9\nv_lshl_add_u32 v9, v8, 8, v9")
    A("v_and_b32 v8, 3, v1\nv_lshl_add_u32 v9, v8, 3, v9")
    A(f"v_add_u32 v{V_W0A}, {WOFF}, v9")
    A(f"v_xor_b32 v{V_W1A}, 32, v{V_W0A}")
    A(f"v_add_u32 v{V_W0B}, {2*STAGE}, v{V_W0A}")
    A(f"v_add_u32 v{V_W1B}, {2*STAGE}, v{V_W1A}")

def reads_P(slot, sub, b):
    a = V_PB if slot >= 2 else V_PA
    so = (slot & 1) * STAGE
    return [f"ds_read_b128 {pf(b,t)}, v{a} offset:{so + (sub*9+t)*1024}" for t in range(9)]
def reads_W(slot, sub, b, mode):
    hi = slot >= 2
    so = (slot & 1) * STAGE
    R = []
    if mode == "lin":
        a = (V_W0B, V_W1B) if hi else (V_W0A, V_W1A)
        return [f"ds_read_b64_tr_b16 {v(V_WF + b*8 + j*4 + 2*h, 2)}, v{a[h]} offset:{so + j*512}" for j in range(2) for h in range(2)]
    second = 1024 if mode == "std" else 4096
    for j in range(2):
        a = (V_W0B, V_W1B)[j] if hi else (V_W0A, V_W1A)[j]
        base = V_WF + b*8 + j*4
        R.append(f"ds_read_b64_tr_b16 {v(base,2)}, v{a} offset:{so + sub*8192}")
        R.append(f"ds_read_b64_tr_b16 {v(base+2,2)}, v{a} offset:{so + sub*8192 + second}")
    return R

DBG = {"on": False}
def dbg(x): return DBG["on"] and x in CFG.dbg.split(",")
def block(A, M, R, barrier):
    if dbg("nomfma"): M = ["s_nop 3"]*len(M)
    if dbg("noread"): R = []
    if dbg("noreadP"): R = [r for r in R if "tr_b16" in r]
    if dbg("halfP"): R = [r for i, r in enumerate(R) if "tr_b16" in r or i % 2]
    A("s_waitcnt lgkmcnt(0)")
    if barrier: A("s_barrier")
    ri = 0
    for m in M:
        A(m)
        if ri < len(R):
            if R[ri]: A(R[ri])
            ri += 1
    assert ri == len(R)

def mfmas(st, pb, wb, w_is_A):
    M = []
    for t in range(9):
        for j in range(2):
            a, b = (wf(wb,j), pf(pb,t)) if w_is_A else (pf(pb,t), wf(wb,j))
            M.append(f"{MF} {acc(st,t,j)}, {a}, {b}, {acc(st,t,j)}")
    return M

def emit_compute_loop(A, n, mode, w_is_A, s_cnt, first=None, lastfill=None, hooks=None, loopend=None, more=None):
    lin = mode == "lin"
    A("s_barrier")
    if first: first()
    for r in reads_W(0, 0, 0, mode) + reads_P(0, 0, 0): A(r)
    def stage(i, last):
        slot = i % NST; nxt = (i+1) % NST
        if lin:
            wb = i & 1
            block(A, mfmas(0, 0, wb, w_is_A[0]), reads_P(slot, 1, 1), False)
            block(A, mfmas(1, 1, wb, w_is_A[1]), (lastfill or []) if last else reads_W(nxt, 0, wb ^ 1, mode) + reads_P(nxt, 0, 0), not last)
        else:
            x0, x1 = (more or {}).get(i, ([], []))
            block(A, mfmas(0, 0, 0, w_is_A[0]), reads_W(slot, 1, 1, mode) + reads_P(slot, 1, 1) + x0, False)
            block(A, mfmas(0, 1, 1, w_is_A[1]), (lastfill or []) if last else reads_W(nxt, 0, 0, mode) + reads_P(nxt, 0, 0) + x1, not last)
    if CFG.unroll and mode == ("std", "pi")[CFG.unroll-1]:
        for i in range(n):
            stage(i, i == n-1); pt(A, f"s{i}")
        return
    nloop = (n - 1) // NST
    L = A.newlabel("Lc")
    A(f"s_mov_b32 s{s_cnt}, {nloop}")
    A.label(L)
    for i in range(NST): stage(i, False)
    if loopend: loopend()
    A(f"s_sub_u32 s{s_cnt}, s{s_cnt}, 1\ns_cmp_lg_u32 s{s_cnt}, 0\ns_cbranch_scc1 {L}")
    for i in range(nloop*NST, n):
        if hooks and i in hooks: hooks[i]()
        stage(i, i == n-1)

def rot_init(A, G, s_rot, s_off, step):
    if not G: return
    A(f"s_mul_i32 s62, s{s_rot}, {step}\ns_add_u32 s{s_off}, s{s_off}, s62")
    A(f"s_sub_u32 s60, {G}, s{s_rot}\ns_mov_b32 s61, {G}")
def rot_step(A, G, s_off, step):
    if dbg("noadv"): return
    if "k1W" in CFG.dbg and step == 64*9216: return
    if "k1P" in CFG.dbg and DBG.get("k1P"): return
    A(f"s_add_u32 s{s_off}, s{s_off}, {step}")
    if not G: return
    A(f"s_sub_u32 s60, s60, 1\ns_cmp_eq_u32 s60, 0\ns_cselect_b32 s62, {G*step}, 0\ns_cselect_b32 s60, {G}, s60\ns_sub_u32 s{s_off}, s{s_off}, s62")
    A(f"s_sub_u32 s61, s61, 1\ns_cmp_eq_u32 s61, 0\ns_cselect_b32 s62, {G*step}, 0\ns_cselect_b32 s61, {G}, s61\ns_add_u32 s{s_off}, s{s_off}, s62")

def emit_loader(A, n, cnt, issue, s_cnt, extra=None, hook=None, post=None, pre=None, mid=None):
    extra = extra or []
    tot = n + len(extra)
    hook = hook or {}
    def c(i): return 0 if i >= tot else (cnt + (i in hook) if i < n else extra[i-n][0])
    if pre: pre()
    for i in range(3): issue(i)
    if mid: mid()
    nloop = (n - 3) // NST
    L = A.newlabel("Ll")
    A(f"s_mov_b32 s{s_cnt}, {nloop}")
    A.label(L)
    for i in range(NST):
        A(f"s_waitcnt vmcnt({2*cnt})\ns_barrier")
        issue((i+3) % NST)
    A(f"s_sub_u32 s{s_cnt}, s{s_cnt}, 1\ns_cmp_lg_u32 s{s_cnt}, 0\ns_cbranch_scc1 {L}")
    for i in range(nloop*NST, tot):
        A(f"s_waitcnt vmcnt({c(i+1)+c(i+2) + (post[0] if post and i > n-post[2] else 0)})\ns_barrier")
        if post and i == n-post[2]: post[1]()
        if i+3 in hook: hook[i+3]()
        if i+3 < n: issue((i+3) % NST)
        elif i+3 < tot: extra[i+3-n][1]((i+3) % NST)

def emit_loader_lin(A, n, per, ldsoff, s_lw, srdP, s_off, s_cnt, s_tmp, aux="", G=0, s_rot=59, extra=None, post=None, pre=None, hook=None):
    rot_init(A, G, s_rot, s_off, 2*per*1024)
    A("v_and_b32 v1, 63, v0\nv_lshlrev_b32 v1, 4, v1")
    A(f"s_mul_i32 s{s_tmp}, s{s_lw}, {per*1024}")
    A(f"v_add_u32 v2, s{s_tmp}, v1")
    for q in range(1, (per+3)//4): A(f"v_add_u32 v{2+q}, {q*4096}, v2")
    def issue(slot):
        for j in range(per):
            if j % 4 == 0:
                A(f"s_add_u32 m0, s{s_tmp}, {slot*STAGE + ldsoff + (j//4)*4096}\ns_nop 0")
            if not dbg("noload"): A(f"buffer_load_dwordx4 v{2+j//4}, {s(srdP,4)}, s{s_off} offen offset:{(j%4)*1024} {aux} lds")
        rot_step(A, G, s_off, 2*per*1024)
    emit_loader(A, n, per, issue, s_cnt, extra, hook=hook, post=post, pre=pre)

def emit_loader_W(A, n, mode, s_lw, srdW, s_off, stride, s_cnt, s_tmp, aux="", G=0, s_rot=59, extra=None, hook=None, post=None, every=None, mid=None):
    rot_init(A, G, s_rot, s_off, 64*stride)
    A("v_and_b32 v1, 63, v0\nv_lshrrev_b32 v10, 4, v1\nv_and_b32 v11, 15, v1")
    A(f"s_lshl_b32 s{s_tmp}, s{s_lw}, 5\nv_add_u32 v12, s{s_tmp}, v10")
    A(f"s_mov_b32 s3, {stride}\nv_mul_lo_u32 v12, v12, s3")
    for par in range(2):
        A(f"v_or_b32 v13, {4*par}, v10\nv_lshlrev_b32 v13, 1, v13\nv_xor_b32 v13, v13, v11")
        A("v_lshl_add_u32 v13, v13, 4, v12")
        for j in range(8):
            key = (j & 1) if mode == "pi" else ((j >> 1) & 1)
            if key == par:
                A(f"v_add_u32 v{2+j}, {4*j*stride - (j%4)*1024}, v13")
    A(f"s_lshl_b32 s{s_tmp}, s{s_lw}, 13")
    def issue(slot):
        for j in range(8):
            if j % 4 == 0:
                A(f"s_add_u32 m0, s{s_tmp}, {slot*STAGE + WOFF + (j//4)*4096}\ns_nop 0")
            if not dbg("noload"): A(f"buffer_load_dwordx4 v{2+j}, {s(srdW,4)}, s{s_off} offen offset:{(j%4)*1024} {aux} lds")
        if every: every()
        rot_step(A, G, s_off, 64*stride)
    emit_loader(A, n, 9 if every else 8, issue, s_cnt, extra, hook, post, mid=mid)

def pf_w1(A, srdn, s_col, s_idx, step, count, vl, vt, lim=None, rev=0, lanes=64, base=0):
    for c in range(count):
        if rev: A(f"s_sub_u32 s57, {rev-1}, s{s_idx}\ns_lshl_b32 s57, s57, 6")
        else: A(f"s_mul_i32 s57, s{s_idx}, {lanes}")
        if base: A(f"s_add_u32 s57, s57, {base}")
        A(f"v_add_u32 v{vt}, s57, v{vl}\nv_mul_u32_u24 v{vt+1}, 52429, v{vt}\nv_lshrrev_b32 v{vt+1}, 19, v{vt+1}")
        A(f"v_mul_u32_u24 v{vt+1}, {9216-1280}, v{vt+1}\nv_lshl_add_u32 v{vt}, v{vt}, 7, v{vt+1}")
        if lanes < 64: A(f"s_bfm_b64 exec, {lanes}, 0")
        A(f"buffer_load_dword v{SINK}, v{vt}, {s(srdn,4)}, s{s_col} offen")
        if lanes < 64: A("s_mov_b64 exec, -1")
        A(f"s_add_u32 s{s_idx}, s{s_idx}, {step}")
        if lim is not None: A(f"s_waitcnt vmcnt({lim})")
def pf_code(A, start):
    L = A.newlabel("Lpc")
    A(f"s_getpc_b64 s[60:61]\n{L}:\ns_add_u32 s60, s60, {start}-{L}\ns_addc_u32 s61, s61, 0")
    A(f"v_lshlrev_b32 v90, 7, v0\nv_min_u32 v90, CODE_END-{start}-4, v90\nglobal_load_dword v{SINK}, v90, s[60:61]")
def pf_w1_col(A, s_col):
    A(f"s_and_b32 s{s_col}, s2, 7\ns_mul_i32 s{s_col}, s{s_col}, 18\ns_lshr_b32 s{s_col}, s{s_col}, 2\ns_lshl_b32 s{s_col}, s{s_col}, 8")
def pf_w2(A, s_ptr, s_idx, step, count, lim=None, srdn=52):
    if not count: return
    srd(A, srdn, s_ptr, S*F*2)
    A(f"s_bfe_u32 s57, s2, 0x20001\ns_mul_i32 s57, s57, {1152*4096}\ns_and_b32 s58, s2, 1\ns_lshl_b32 s58, s58, 11\ns_add_u32 s57, s57, s58")
    A(f"s_lshl_b32 s58, s{s_idx}, 14\ns_add_u32 s57, s57, s58")
    A("v_bfe_u32 v30, v0, 4, 2\nv_lshlrev_b32 v30, 12, v30\nv_and_b32 v31, 15, v0\nv_lshl_add_u32 v30, v31, 7, v30")
    for c in range(count):
        A(f"buffer_load_dword v{SINK}, v30, {s(srdn,4)}, s57 offen\ns_add_u32 s57, s57, {step*16384}")
        if lim is not None: A(f"s_waitcnt vmcnt({lim})")

def pf_w2c3(A, s_ptr, s_idx, step, count, lim=None):
    srd(A, 52, s_ptr, S*F*2)
    A(f"s_bfe_u32 s57, s2, 0x20001\ns_mul_i32 s57, s57, {1152*4096}\ns_and_b32 s58, s2, 1\ns_lshl_b32 s58, s58, 11\ns_add_u32 s57, s57, s58")
    A(f"s_lshl_b32 s58, s{s_idx}, 17\ns_add_u32 s57, s57, s58\ns_add_u32 s57, s57, 384")
    A("v_bfe_u32 v30, v0, 1, 5\nv_lshlrev_b32 v30, 12, v30\nv_and_b32 v31, 1, v0\nv_lshl_add_u32 v30, v31, 10, v30")
    for c in range(count):
        L = A.newlabel("Lc3")
        A(f"s_cmp_ge_u32 s{s_idx}, {36 - c*step}\ns_cbranch_scc1 {L}")
        A(f"buffer_load_dword v{SINK}, v30, s[52:55], s57 offen\ns_add_u32 s57, s57, {step << 17}")
        if lim is not None: A(f"s_waitcnt vmcnt({lim})")
        A.label(L)

SPIN_MAX = 60000
def flag_setup(A):
    srd_off(A, 96, 26, FLAG_OFF, FLAG_SZ)
    A(f"s_load_dword s100, s[96:97], {FE*64}")
def tag_make(A):
    A("s_add_u32 s100, s100, 1\ns_mul_i32 s101, s100, 0x9e3779b1\ns_add_u32 s101, s101, 0x7f4a7c15")
def raise_flag(A, s_off, vt):
    A(f"v_mov_b32 v{vt}, s100\nv_mov_b32 v{vt+1}, s101\nv_mov_b32 v{vt+2}, s{s_off}")
    if CFG.wide:
        A(f"v_and_b32 v{vt+2}, 7, v0\nv_lshl_add_u32 v{vt+2}, v{vt+2}, 3, s{s_off}")
    A(f"s_mov_b64 exec, {0xff if CFG.wide else 1}\nbuffer_store_dwordx2 {v(vt,2)}, v{vt+2}, s[96:99], 0 offen sc1\ns_mov_b64 exec, -1")
def poll(A, vaddr, vtmp, sleep=0):
    L = A.newlabel("Lp"); X = A.newlabel("Lx")
    A(f"s_mov_b32 s63, {SPIN_MAX}")
    A.label(L)
    A(f"buffer_load_dwordx2 {v(vtmp,2)}, v{vaddr}, s[96:99], 0 offen sc1")
    A(f"s_waitcnt vmcnt(0)\nv_cmp_ne_u64 vcc, s[100:101], {v(vtmp,2)}\ns_sub_u32 s63, s63, 1\ns_cbranch_scc1 {X}\ns_nop 2\ns_cbranch_vccz {X}")
    A("s_mov_b64 exec, vcc")
    if sleep: A(f"s_sleep {sleep}")
    A(f"s_branch {L}")
    A.label(X)
    A("s_mov_b64 exec, -1")
def poll2(A, vaddr, vtmp, sleep1, sleep2):
    if sleep1:
        A("s_mov_b64 exec, 1")
        poll(A, vaddr, vtmp, sleep1)
    poll(A, vaddr, vtmp, sleep2)

def wave_id(A, sd):
    A(f"v_lshrrev_b32 v1, 6, v0\ns_nop 1\nv_readfirstlane_b32 s{sd}, v1")

def reduce32(A, regs, tmp):
    pad = "s_nop 1" if len(regs) == 1 else "s_nop 0"
    A("s_nop 1")
    for pat in ["quad_perm:[1,0,3,2]", "quad_perm:[2,3,0,1]", "row_half_mirror", "row_mirror"]:
        for r in regs:
            A(f"v_add_f32_dpp v{r}, v{r}, v{r} {pat} row_mask:0xf bank_mask:0xf")
        A(pad)
    for i, r in enumerate(regs): A(f"v_mov_b32 v{tmp+i}, v{r}")
    A("s_nop 1")
    for i, r in enumerate(regs): A(f"v_permlane16_swap_b32 v{r}, v{tmp+i}")
    A("s_nop 1")
    for i, r in enumerate(regs): A(f"v_add_f32 v{r}, v{r}, v{tmp+i}")

XRS, HRS = 1168, 1216
P0 = 3*STAGE
LDS_BYTES = 163840
K0_HL = P0 + 256
K0_DUMMY = K0_HL + 16*HRS
K0_LDS = 83968
def seam_pre(A):
    tag_make(A)
    A(f"s_lshl_b32 s49, s2, 2\ns_add_u32 s49, s49, s16\ns_add_u32 s49, s49, {F1}\ns_cmp_eq_u32 s16, 4\ns_cselect_b32 s49, s2, s49\ns_lshl_b32 s49, s49, 6")
    A(f"s_cmp_gt_u32 s16, 4\ns_cselect_b32 s49, {OOB}, s49")
    A(f"s_load_dwordx4 s[4:7], s[0:1], {KA_W1}\ns_load_dwordx2 s[24:25], s[0:1], {KA_WO}\ns_load_dwordx2 s[50:51], s[0:1], {KA_W2}")
def gen_k0(A):
    kernel_head(A, KNAME)
    stamp(A, 0)
    A("s_cmp_ge_u32 s2, 256\ns_cbranch_scc1 K_end")
    A(f"s_load_dwordx4 s[4:7], s[0:1], {KA_X}\ns_load_dwordx2 s[26:27], s[0:1], {KA_WS}")
    A(f"s_load_dwordx2 s[24:25], s[0:1], {KA_WPHI}\ns_load_dwordx2 s[48:49], s[0:1], {KA_W1}")
    A("s_sub_u32 s44, s2, 112\ns_cmp_ge_u32 s44, 128\ns_cbranch_scc1 K0_pf")
    X, P, Q = 20, 8, 56
    A("v_lshrrev_b32 v2, 5, v0\nv_and_b32 v3, 31, v0")
    A("v_mul_u32_u24 v4, 1152, v2\nv_lshl_add_u32 v4, v3, 4, v4")
    A(f"v_cmp_gt_u32 s[30:31], 24, v3\nv_mov_b32 v5, {OOB}")
    A("s_mul_i32 s3, s44, 18432")
    A("v_cndmask_b32 v4, v5, v4, s[30:31]")
    A("s_waitcnt lgkmcnt(0)")
    srd(A, 8, 4, S*D*2)
    for j in range(3): A(f"buffer_load_dwordx4 {v(P+4*j,4)}, v4, s[8:11], s3 offen offset:{384*j}")
    A("s_branch K0_ln")
    A.label("K0_pf")
    wave_id(A, 16)
    def pf_setup():
        flag_setup(A)
        srd(A, 52, 48, S*F*2)
        pf_w1_col(A, 46)
        A("s_and_b32 s47, s2, 0x78\ns_add_u32 s47, s47, s16\nv_and_b32 v1, 63, v0")
    def pf_round(r):
        if not CFG.pf1: return 0
        pf_w1(A, 52, 46, 47, 128, 1, 1, 88, lanes=CFG.pf1)
        return 1
    A("s_cmp_ge_u32 s2, 108\ns_cbranch_scc1 K0_nofold")
    A("s_mul_i32 s18, s2, 7282\ns_lshr_b32 s18, s18, 16")
    A("s_mul_i32 s19, s18, 9\ns_sub_u32 s17, s2, s19")
    A("s_and_b32 s28, s18, 3\ns_lshr_b32 s29, s18, 2")
    F_W, F_P = P0 + 18432, P0 + 18432 + 18432
    for r in range(3):
        A(f"v_add_u32 v4, {512*r}, v0\nv_mul_u32_u24 v5, 58255, v4\nv_lshrrev_b32 v5, 20, v5")
        A(f"v_mul_u32_u24 v5, {3456-288}, v5\nv_lshl_add_u32 v{12+r}, v4, 4, v5")
    A(f"s_mul_i32 s32, s17, {64*3456}\ns_mul_i32 s33, s29, 1152\ns_add_u32 s32, s32, s33\ns_mul_i32 s33, s28, 288\ns_add_u32 s32, s32, s33")
    A(f"s_mul_i32 s33, s28, 5184\nv_lshlrev_b32 v15, 4, v0\nv_subrev_u32 v15, 2048, v15\ns_lshl_b32 s34, s16, 10\ns_add_u32 m0, s34, {F_W}")
    A("s_waitcnt lgkmcnt(0)")
    srd(A, 8, 6, D*3*D*2)
    A(f"buffer_load_dwordx4 v12, s[8:11], s32 offen lds\ns_add_u32 m0, s34, {F_W + 8192}")
    srd(A, 12, 24, H*DH*DH*2)
    A(f"buffer_load_dwordx4 v13, s[8:11], s32 offen lds\ns_add_u32 m0, s34, {F_W + 16384}\ns_cmp_ge_u32 s16, 2\ns_cbranch_scc1 K0_f1")
    A("buffer_load_dwordx4 v14, s[8:11], s32 offen lds")
    A.label("K0_f1")
    A(f"s_add_u32 m0, s34, {F_P - 2048}\ns_cmp_eq_u32 s29, 2\ns_cselect_b32 s3, 1, 6\ns_sub_u32 s35, s16, 2\ns_cmp_ge_u32 s35, s3\ns_cbranch_scc1 K0_f2")
    A("buffer_load_dwordx4 v15, s[12:15], s33 offen lds")
    A.label("K0_f2")
    pf_setup()
    if CFG.pfbar: A("s_barrier")
    npf = pf_round(0)
    A("s_lshr_b32 s19, s16, 2\ns_and_b32 s43, s16, 3\ns_lshl_b32 s30, s43, 1\ns_add_u32 s30, s30, s19")
    srd_off(A, 20, 26, WF_OFF, WF_SZ)
    A("v_and_b32 v2, 15, v1\nv_lshrrev_b32 v3, 4, v1")
    A("v_and_b32 v4, 12, v2\nv_add_u32 v4, v4, v2")
    A(f"v_mul_u32_u24 v4, 288, v4\nv_lshl_add_u32 v4, v3, 4, v4\ns_mul_i32 s33, s30, 36\ns_and_b32 s39, s33, 15\ns_sub_u32 s33, s33, s39\ns_add_u32 s33, s33, {F_W}")
    A("v_add_u32 v76, s33, v4\ns_lshr_b32 s39, s39, 1\nv_lshlrev_b32 v11, 3, v3\nv_subrev_u32 v11, s39, v11")
    A("s_mov_b32 s40, 0x00030003\ns_mov_b32 s41, 0x00030003")
    B = 28
    def a_reads():
        A(f"s_waitcnt vmcnt({npf}) lgkmcnt(0)")
        pt(A, "x")
        A("s_barrier")
        for q in range(4):
            A(f"ds_read_b128 {v(12+4*q,4)}, v76 offset:{288*(32*(q>>1) + 4*(q&1))}")
    A("s_cmp_eq_u32 s29, 2\ns_cbranch_scc1 K0_ident")
    A("s_mul_i32 s34, s19, 18\nv_add_u32 v5, s34, v2")
    A(f"s_lshl_b32 s35, s43, 6\ns_add_u32 s35, s35, {P0}")
    for nt in range(2):
        if nt: A("v_add_u32 v5, 16, v5")
        A(f"v_lshrrev_b32 v6, 2, v5\nv_lshlrev_b32 v6, 10, v6\nv_and_b32 v7, 3, v5\nv_lshl_add_u32 v6, v7, 4, v6")
        A(f"v_lshl_add_u32 v6, v3, 8, v6\nv_add_u32 v{52+nt}, s35, v6")
    A("s_lshr_b32 s34, s28, 1\ns_add_u32 s34, s34, 4\ns_and_b32 s35, s28, 1\ns_mul_i32 s35, s35, 9216")
    A("s_cmp_eq_u32 s29, 0\ns_cselect_b32 s34, s34, s28\ns_cselect_b32 s35, s35, 0")
    A(f"s_mov_b32 s42, {f2u(LOG2E)}")
    A(f"v_mul_i32_i24 v5, 36, v11\nv_lshl_add_u32 v5, v2, 1, v5\ns_mul_i32 s33, s30, 648\ns_add_u32 s33, s33, {F_P}\nv_add_u32 v80, s33, v5")
    for q in range(4): A(f"v_add_u32 v5, {2*q}, v11\nv_cmp_gt_u32 {s((36, 44, 58, 60)[q],2)}, 18, v5")
    a_reads()
    for nt in range(2):
        for ii in range(8):
            A(f"ds_read_u16 v{36+8*nt+ii}, v80 offset:{36*ii + 32*nt}")
    A("s_waitcnt lgkmcnt(0)")
    for q in range(8): A(f"v_lshl_or_b32 v{B+q}, v{36+2*q+1}, 16, v{36+2*q}")
    for q in range(8): A(f"v_cndmask_b32 v{B+q}, 0, v{B+q}, {s((36, 44, 58, 60)[q&3],2)}")
    A("s_branch K0_fmm")
    A.label("K0_ident")
    A("v_sub_u32 v5, v2, v11\nv_add_u32 v6, 16, v5")
    A("v_mov_b32 v7, 0x3f80\nv_mov_b32 v8, 0x3f800000")
    for nt in range(2):
        for q in range(4):
            A(f"v_cmp_eq_u32 vcc, {2*q}, v{5+nt}\nv_cmp_eq_u32 s[44:45], {2*q+1}, v{5+nt}\ns_nop 1")
            A(f"v_cndmask_b32 v9, 0, v7, vcc\nv_cndmask_b32 v{B+4*nt+q}, v9, v8, s[44:45]")
    A(f"v_lshlrev_b32 v6, 8, v3\nv_lshl_add_u32 v6, v2, 4, v6\nv_add_u32 v6, {P0}, v6")
    A("s_lshl_b32 s34, s30, 10\nv_add_u32 v52, s34, v6")
    A("s_lshl_b32 s34, s30, 5\ns_add_u32 s34, s34, 8192\nv_add_u32 v53, s34, v6")
    A("s_mov_b32 s34, s28\ns_mov_b32 s35, 9216\ns_mov_b32 s42, 1.0")
    a_reads()
    A("s_waitcnt lgkmcnt(0)")
    A.label("K0_fmm")
    A("s_mul_i32 s34, s34, 18\ns_lshl_b32 s33, s17, 1\ns_add_u32 s34, s34, s33\ns_mul_i32 s34, s34, 18432\ns_add_u32 s34, s34, s35")
    DD = 56
    for kbi in range(2):
        for nt in range(2):
            for a in range(2):
                A(f"{MF} {v(DD+16*kbi+8*nt+4*a,4)}, {v(12+8*kbi+4*a,4)}, {v(B+4*nt,4)}, 0")
    seam_pre(A)
    A("s_mov_b32 s43, s42\ns_lshl_b32 s33, s16, 10\nv_lshlrev_b32 v89, 4, v1\ns_and_b32 s3, s16, 1\ns_mul_i32 s35, s3, 9216")
    A(f"s_add_u32 s37, s33, {P0}\nv_add_u32 v90, s37, v89\ns_add_u32 s35, s35, {P0 + 8192}\nv_add_u32 v91, s35, v89")
    A("s_mul_i32 s3, s3, 18432\ns_add_u32 s37, s34, s3\ns_add_u32 s37, s37, 8192\ns_add_u32 s17, s34, s33")
    for kbi in range(2):
        for nt in range(2):
            d0 = DD+16*kbi+8*nt
            for i in range(4): A(f"v_pk_mul_f32 {v(d0+2*i,2)}, {v(d0+2*i,2)}, s[42:43]")
            o = 36 + 8*kbi + 4*nt
            for i in range(4): A(f"v_cvt_pk_bf16_f32 v{o+i}, v{d0+2*i}, v{d0+2*i+1}")
            if nt == 0: A(f"ds_write_b128 v52, {v(o,4)} offset:{9216*kbi}")
    A("s_mov_b64 exec, s[40:41]\nds_write_b128 v53, v[40:43]\nds_write_b128 v53, v[48:51] offset:9216\ns_mov_b64 exec, -1")
    A("s_waitcnt lgkmcnt(0)\ns_barrier\ns_cmp_ge_u32 s16, 4\ns_cbranch_scc1 K0_seam")
    pt(A, "st0")
    for q in range(4): A(f"ds_read_b128 {v(12+4*q,4)}, v90 offset:{9216*(q>>1) + 4096*(q&1)}")
    A("ds_read_b128 v[28:31], v91")
    for q in range(4):
        A(f"s_waitcnt lgkmcnt({4-q})\nbuffer_store_dwordx4 {v(12+4*q,4)}, v89, s[20:23], s17 offen {CFG.auxSt}\ns_add_u32 s17, s17, {4096 if q != 1 else 18432-4096}")
    A("s_branch K0_last")
    A.label("K0_nofold")
    A("s_waitcnt lgkmcnt(0)")
    pf_setup()
    if CFG.pff:
        A(f"s_sub_u32 s3, s2, 240\ns_cmp_ge_u32 s3, 4\ns_cbranch_scc1 K0_nof\ns_lshl_b32 s3, s3, 16\nv_lshl_add_u32 v90, v0, 7, s3\nbuffer_load_dword v{SINK}, v90, s[96:99], 0 offen sc1")
        A.label("K0_nof")
    if CFG.pfc:
        A("s_cmp_lt_u32 s2, 248\ns_cbranch_scc1 K0_noc")
        pf_code(A, "K0_ln")
        A.label("K0_noc")
    A("s_cmp_ge_u32 s2, 240\ns_cbranch_scc1 K1_spare")
    pf_round(0)
    A("s_waitcnt lgkmcnt(0)")
    seam_pre(A)
    A("s_waitcnt lgkmcnt(0)\ns_barrier\ns_branch K0_seam")
    A.label("K0_ln")
    flag_setup(A)
    wave_id(A, 16)
    A(f"v_lshlrev_b32 v6, 2, v2\nv_add_u32 v6, {P0}, v6")
    A(f"v_mul_u32_u24 v7, {HRS}, v2\nv_lshl_add_u32 v7, v3, 4, v7\nv_add_u32 v7, {K0_HL}, v7")
    srd_off(A, 12, 26, RS_OFF, RS_SZ)
    srd_off(A, 20, 26, HT_OFF, HT_SZ)
    A(f"s_mov_b32 s33, {f2u(1.0/576)}\ns_mov_b32 s34, {f2u(1e-5)}")
    A("v_and_b32 v1, 63, v0\nv_and_b32 v2, 15, v1\nv_lshrrev_b32 v3, 4, v1")
    A(f"s_lshl_b32 s3, s16, 6\ns_and_b32 s35, s16, 1\ns_lshl_b32 s36, s35, 6\nv_lshlrev_b32 v69, 2, v2\nv_add_u32 v68, {P0}, v69\ns_lshl_b32 s17, s44, 7")
    A("v_bfe_u32 v4, v1, 2, 2\nv_lshrrev_b32 v5, 5, v1\nv_lshl_add_u32 v4, v5, 3, v4")
    A(f"v_mul_u32_u24 v4, {HRS}, v4\nv_and_b32 v3, 1, v3\nv_lshl_add_u32 v4, v3, 5, v4\nv_and_b32 v44, 3, v1\nv_lshl_add_u32 v4, v44, 3, v4\nv_add_u32 v4, {K0_HL}, v4")
    A("v_add_u32 v72, s36, v4\nv_add_u32 v71, s3, v4")
    A("v_lshlrev_b32 v2, 4, v2\nv_lshl_add_u32 v2, v5, 8, v2")
    A(f"s_mov_b32 s38, {589824-9216}\ns_lshl_b32 s3, s16, 1\ns_lshl_b32 s36, s35, 1\ns_add_u32 s36, s36, 32")
    for n in range(3):
        A(f"v_add_u32 v4, s{3 if n < 2 else 36}, v3")
        if n == 1: A("v_add_u32 v4, 16, v4")
        A(f"v_mul_u32_u24 v44, 57, v4\nv_lshrrev_b32 v44, 9, v44\nv_lshl_add_u32 v4, v4, 10, v2\nv_mad_u32_u24 v{73+n}, v44, s38, v4")
    A("s_lshr_b32 s18, s44, 1\ns_mul_i32 s18, s18, 9216\ns_and_b32 s19, s44, 1\ns_lshl_b32 s19, s19, 9\ns_add_u32 s18, s18, s19")
    def xp(i): return v(X+2*i, 2)
    A("s_waitcnt vmcnt(0)")
    pt(A, "x")
    for i in range(12):
        A(f"v_lshlrev_b32 v{X+2*i}, 16, v{P+i}\nv_and_b32 v{X+2*i+1}, 0xffff0000, v{P+i}")
    A(f"v_pk_add_f32 v[44:45], {xp(0)}, {xp(1)}\nv_pk_add_f32 v[46:47], {xp(2)}, {xp(3)}")
    for i in range(4, 12): A(f"v_pk_add_f32 {v(44+2*(i&1),2)}, {v(44+2*(i&1),2)}, {xp(i)}")
    A("v_pk_add_f32 v[44:45], v[44:45], v[46:47]\nv_add_f32 v44, v44, v45")
    reduce32(A, [44], 52)
    A("v_mul_f32 v44, s33, v44")
    for i in range(12): A(f"v_pk_add_f32 {xp(i)}, {xp(i)}, v[44:45] op_sel_hi:[1,0] neg_lo:[0,1] neg_hi:[0,1]")
    A(f"v_pk_mul_f32 v[48:49], {xp(0)}, {xp(0)}\nv_pk_mul_f32 v[50:51], {xp(1)}, {xp(1)}")
    for i in range(2, 12): A(f"v_pk_fma_f32 {v(48+2*(i&1),2)}, {xp(i)}, {xp(i)}, {v(48+2*(i&1),2)}")
    A("v_pk_add_f32 v[48:49], v[48:49], v[50:51]\nv_add_f32 v48, v48, v49")
    A("v_cndmask_b32 v48, 0, v48, s[30:31]")
    reduce32(A, [48], 52)
    A("v_mul_f32 v48, s33, v48\nv_add_f32 v44, s34, v48\nv_rsq_f32 v44, v44\nv_mov_b32 v49, s34")
    A("v_mul_f32 v48, v48, v44\nv_fma_f32 v50, v48, v44, v49\nv_rsq_f32 v48, v50")
    A("s_mov_b64 exec, s[30:31]\nv_mul_f32 v50, v50, v48\nv_mul_f32 v48, v48, v44\nds_write_b32 v6, v50")
    for j in range(3):
        for i in range(4): A(f"v_pk_mul_f32 {v(Q+2*i,2)}, {xp(4*j+i)}, v[48:49] op_sel_hi:[1,0]")
        for i in range(4): A(f"v_cvt_pk_bf16_f32 v{P+4*j+i}, v{Q+2*i}, v{Q+2*i+1}")
        A(f"ds_write_b128 v7, {v(P+4*j,4)} offset:{384*j}")
    A("s_mov_b64 exec, -1\ns_waitcnt lgkmcnt(0)\ns_barrier")
    pt(A, "ln")
    for n in range(2):
        A(f"ds_read_b64_tr_b16 {v(76+4*n,2)}, v71 offset:{512*n}\nds_read_b64_tr_b16 {v(78+4*n,2)}, v71 offset:{512*n + 4*HRS}")
    A(f"ds_read_b64_tr_b16 v[84:85], v72 offset:1024\nds_read_b64_tr_b16 v[86:87], v72 offset:{1024 + 4*HRS}\nds_read_b32 v88, v68")
    A(f"s_cmp_lt_u32 s16, 2\ns_cselect_b32 s3, 0, {OOB}\nv_or_b32 v75, s3, v75")
    for n in range(3):
        A(f"s_waitcnt lgkmcnt({5-2*n})\nbuffer_store_dwordx4 {v(76+4*n,4)}, v{73+n}, s[20:23], s18 offen {CFG.auxSt}")
    A("s_waitcnt lgkmcnt(0)\ns_cmp_lg_u32 s16, 2\ns_cbranch_scc1 K0_nors")
    A(f"s_mov_b64 exec, 0xffff\nbuffer_store_dword v88, v69, s[12:15], s17 offen {CFG.auxSt}\ns_mov_b64 exec, -1")
    A.label("K0_nors")
    pt(A, "st0")
    seam_pre(A)
    A(f"s_cmp_eq_u32 s16, 4\ns_cselect_b32 s49, s49, {OOB}")
    A("s_waitcnt vmcnt(0)\ns_barrier\ns_branch K0_seam")
    A.label("K0_last")
    A("s_waitcnt lgkmcnt(0)\ns_cmp_ge_u32 s16, 2\ns_cbranch_scc1 K0_last2")
    A(f"buffer_store_dwordx4 v[28:31], v89, s[20:23], s37 offen {CFG.auxSt}")
    A.label("K0_last2")
    A("s_waitcnt vmcnt(0)")
    A.label("K0_seam")
    raise_flag(A, 49, 4)
    pt(A, "fl0")
    if CFG.pf1a or CFG.pf1q:
        A(f"s_cmp_lt_u32 s2, {144 if CFG.pf1a else 208}\ns_cbranch_scc1 K0_noa\ns_cmp_ge_u32 s2, 240\ns_cbranch_scc1 K0_noa\ns_cmp_ge_u32 s16, 4\ns_cbranch_scc1 K0_noa")
        A("s_lshr_b32 s47, s2, 3\ns_sub_u32 s47, s47, 18\ns_lshl_b32 s47, s47, 2\ns_add_u32 s47, s47, s16\ns_waitcnt lgkmcnt(0)")
        srd(A, 52, 4, S*F*2)
        pf_w1_col(A, 46)
        pf_w1(A, 52, 46, 47, 48, CFG.pf1a, 1, 88, base=112*CFG.pf1)
        if CFG.pf1q:
            A("s_cmp_lt_u32 s2, 208\ns_cbranch_scc1 K0_noa\ns_sub_u32 s47, s47, 32")
            pf_w1(A, 52, 46, 47, 16, CFG.pf1q, 1, 88, base=112*CFG.pf1)
        A.label("K0_noa")
    if CFG.tlb:
        A(f"s_cmp_lg_u32 s16, 1\ns_cbranch_scc1 K0_notlb\nv_and_b32 v4, 63, v0\nv_lshlrev_b32 v4, {CFG.tlb}, v4\ns_waitcnt lgkmcnt(0)")
        for ptr, nb in ((4, S*F*2), (50, S*F*2), (26, FLAG_OFF)):
            srd(A, 8, ptr, nb)
            for q in range(-(-nb // (64 << CFG.tlb))):
                A(f"s_mov_b32 s3, {q*(64 << CFG.tlb)}\nbuffer_load_dword v{SINK}, v4, s[8:11], s3 offen sc1")
        A.label("K0_notlb")
def softmax18(A, PR, dst, C):
    vals = [r + i for r in PR for i in range(2)]
    EP, EN, MX, MN = 8, 26, 44, 46
    A(f"v_max3_f32 v{MX}, v{vals[0]}, v{vals[1]}, v{vals[2]}\nv_min3_f32 v{MN}, v{vals[0]}, v{vals[1]}, v{vals[2]}")
    for i in range(3, 17, 2):
        A(f"v_max3_f32 v{MX}, v{MX}, v{vals[i]}, v{vals[i+1]}\nv_min3_f32 v{MN}, v{MN}, v{vals[i]}, v{vals[i+1]}")
    A(f"v_max_f32 v{MX}, v{MX}, v{vals[17]}\nv_min_f32 v{MN}, v{MN}, v{vals[17]}")
    A(f"v_mul_f32 v{MX}, v{MX}, v{C}\nv_mul_f32 v{MN}, v{MN}, v{C}")
    for p in range(9):
        A(f"v_pk_fma_f32 {v(EP+2*p,2)}, {v(PR[p],2)}, {v(C,2)}, {v(MX,2)} op_sel_hi:[1,0,0] neg_lo:[0,0,1] neg_hi:[0,0,1]")
        A(f"v_pk_fma_f32 {v(EN+2*p,2)}, {v(PR[p],2)}, {v(C,2)}, {v(MN,2)} op_sel_hi:[1,0,0] neg_lo:[1,0,0] neg_hi:[1,0,0]")
    for i in range(36): A(f"v_exp_f32 v{EP+i}, v{EP+i}")
    A(f"v_pk_add_f32 {v(MX,2)}, {v(EP,2)}, {v(EP+2,2)}\nv_pk_add_f32 {v(MN,2)}, {v(EN,2)}, {v(EN+2,2)}")
    for p in range(2, 9):
        A(f"v_pk_add_f32 {v(MX,2)}, {v(MX,2)}, {v(EP+2*p,2)}\nv_pk_add_f32 {v(MN,2)}, {v(MN,2)}, {v(EN+2*p,2)}")
    A(f"v_add_f32 v{MX}, v{MX}, v{MX+1}\nv_add_f32 v{MN}, v{MN}, v{MN+1}")
    A(f"v_rcp_f32 v{MX}, v{MX}\nv_rcp_f32 v{MN}, v{MN}\ns_nop 0")
    for p in range(9):
        A(f"v_pk_mul_f32 {v(EP+2*p,2)}, {v(EP+2*p,2)}, {v(MX,2)} op_sel_hi:[1,0]")
        A(f"v_pk_mul_f32 {v(EN+2*p,2)}, {v(EN+2*p,2)}, {v(MN,2)} op_sel_hi:[1,0]")
    for m in range(18): A(f"v_cvt_pk_bf16_f32 v{dst(m)}, v{EP+2*m}, v{EP+2*m+1}")

def pairs(st, j, e):
    return [accr(st, (9*e+p) >> 1, j) + 2*((9*e+p) & 1) for p in range(9)]

PHI_RS = 608
V_LDS = 128*PHI_RS
def gen_k1(A):
    A("s_and_b32 s17, s2, 7\ns_lshr_b32 s18, s2, 3")
    A("s_cmp_ge_u32 s18, 18\ns_cbranch_scc1 K1_notg1")
    A("s_mul_i32 s19, s17, 18\ns_add_u32 s19, s19, s18\ns_and_b32 s22, s19, 3\ns_lshr_b32 s23, s19, 2")
    if CFG.swap13: A("s_or_b32 s19, s23, 1\ns_cmp_eq_u32 s19, 13\ns_cselect_b32 s19, 1, 0\ns_xor_b32 s23, s23, s19")
    if CFG.G1: A(f"s_add_u32 s59, s22, s23\ns_and_b32 s59, s59, 3\ns_mul_i32 s59, s59, {CFG.G1//4}")
    A("s_waitcnt lgkmcnt(0)")
    A("s_cmp_ge_u32 s16, 6\ns_cbranch_scc1 K1_ldW\ns_cmp_ge_u32 s16, 4\ns_cbranch_scc1 K1_ldP")
    srd(A, 32, 6, F*2)
    srd_off(A, 36, 26, U_OFF, U_SZ)
    A("v_bfe_u32 v8, v0, 4, 2\nv_lshlrev_b32 v8, 3, v8")
    A("s_lshl_b32 s3, s23, 8\ns_lshl_b32 s17, s16, 6\ns_add_u32 s3, s3, s17")
    A("buffer_load_dwordx2 v[12:13], v8, s[32:35], s3 offen\nbuffer_load_dwordx2 v[14:15], v8, s[32:35], s3 offen offset:32")
    emit_compute_addr(A, 16, "std")
    A("s_waitcnt vmcnt(0)")
    if CFG.pf1b:
        A(f"s_cmp_ge_u32 s2, 128\ns_cbranch_scc1 K1_nopf\ns_and_b32 s47, s2, 0x78\ns_lshr_b32 s47, s47, 1\ns_add_u32 s47, s47, s16\ns_add_u32 s47, s47, {CFG.pf1}")
        srd(A, 52, 4, S*F*2)
        pf_w1_col(A, 46)
        pf_w1(A, 52, 46, 47, 64, CFG.pf1b, 1, 16)
        A.label("K1_nopf")
    for j in range(2):
        A(f"v_lshlrev_b32 v{V_ACC+j*4}, 16, v{12+2*j}\nv_and_b32 v{V_ACC+j*4+1}, 0xffff0000, v{12+2*j}")
        A(f"v_lshlrev_b32 v{V_ACC+j*4+2}, 16, v{13+2*j}\nv_and_b32 v{V_ACC+j*4+3}, 0xffff0000, v{13+2*j}")
    for i in range(8, 72, 2): A(f"v_pk_mov_b32 {v(V_ACC+i,2)}, {v(V_ACC+i%8,2)}, {v(V_ACC+i%8,2)} op_sel:[0,1]")
    emit_compute_loop(A, 32, "std", (True, True), 20, first=lambda: pt(A, "b1"))
    A("s_barrier")
    pt(A, "m1")
    c0 = -2*math.sqrt(2/math.pi)*LOG2E; c1 = c0*0.044715
    A(f"s_mov_b32 s52, {f2u(c1)}\ns_mov_b32 s53, {f2u(c1)}\nv_mov_b32 v8, {f2u(c0)}\nv_mov_b32 v9, {f2u(c0)}")
    A("s_mul_i32 s17, s22, 144\ns_lshl_b32 s3, s23, 2\ns_add_u32 s17, s17, s3\ns_add_u32 s17, s17, s16")
    A(f"s_add_u32 s49, s17, {FU}\ns_lshl_b32 s49, s49, 6\ns_mul_i32 s17, s17, 9216")
    for t in range(9):
        a0 = V_ACC + t*8
        T = 16 + (t % 2) * 12
        for p in range(4): A(f"v_pk_mul_f32 {v(T+2*p,2)}, {v(a0+2*p,2)}, {v(a0+2*p,2)}")
        for p in range(4): A(f"v_pk_fma_f32 {v(T+2*p,2)}, {v(T+2*p,2)}, s[52:53], v[8:9]")
        for p in range(4): A(f"v_pk_mul_f32 {v(T+2*p,2)}, {v(T+2*p,2)}, {v(a0+2*p,2)}")
        for e in range(8): A(f"v_exp_f32 v{T+e}, v{T+e}")
        for p in range(4): A(f"v_pk_add_f32 {v(T+2*p,2)}, {v(T+2*p,2)}, 1.0 op_sel_hi:[1,0]")
        for e in range(8): A(f"v_rcp_f32 v{T+e}, v{T+e}")
        for p in range(4): A(f"v_pk_mul_f32 {v(T+2*p,2)}, {v(T+2*p,2)}, {v(a0+2*p,2)}")
        for p in range(4): A(f"v_cvt_pk_bf16_f32 v{T+8+p}, v{T+2*p}, v{T+2*p+1}")
        if t and t % 4 == 0: A("s_add_u32 s17, s17, 4096")
        A(f"buffer_store_dwordx4 {v(T+8,4)}, v{V_PA}, s[36:39], s17 offen offset:{(t%4)*1024} {CFG.auxSt}")
    A("s_branch K2_c")
    def g_post():
        A("s_lshr_b32 s49, s2, 3\ns_lshl_b32 s49, s49, 2\ns_add_u32 s49, s49, s16\ns_sub_u32 s49, s49, 4")
        pf_w2(A, 50, 49, 72, CFG.pf2g)
    post = (CFG.pf2g, g_post, CFG.pf2pos) if CFG.pf2g else None
    A.label("K1_ldP")
    srd_off(A, 8, 26, HT_OFF, HT_SZ)
    A(f"s_sub_u32 s17, s16, 4\ns_mul_i32 s21, s22, {64*9216}")
    def wait_ln():
        A(f"v_and_b32 v8, 62, v0\nv_and_b32 v9, 1, v0\nv_lshl_add_u32 v8, v8, 1, v9\ns_lshl_b32 s3, s17, 1\ns_add_u32 s3, s3, {F0+112}\nv_add_lshl_u32 v8, v8, s3, 6")
        if CFG.dl0: A(f"s_sleep {CFG.dl0}")
        if CFG.dlf: A(f"s_cmp_ge_u32 s2, 112\ns_cbranch_scc1 K1_nodl\ns_sleep {CFG.dlf}\nK1_nodl:")
        poll2(A, 8, 10, CFG.sl0a, CFG.sl0)
        pt(A, "go1")
    emit_loader_lin(A, 32, 9, POFF, 17, 8, 21, 20, 18, CFG.auxP, CFG.G1, post=post, pre=wait_ln)
    A("s_branch K1_ldseam")
    A.label("K1_ldW")
    srd(A, 12, 4, S*F*2)
    A("s_sub_u32 s17, s16, 6\ns_lshl_b32 s21, s23, 8")
    emit_loader_W(A, 32, "std", 17, 12, 21, 9216, 20, 18, CFG.auxW1, CFG.G1, post=post)
    A.label("K1_ldseam")
    A(f"s_barrier\ns_mov_b32 s49, {OOB}\ns_branch K2_ld")
    A.label("K1_notg1")
    A("s_sub_u32 s18, s18, 18\ns_and_b32 s22, s18, 3\ns_lshr_b32 s19, s17, 1\ns_lshl_b32 s19, s19, 2\ns_add_u32 s22, s22, s19")
    A("s_lshr_b32 s18, s18, 2\ns_and_b32 s17, s17, 1\ns_lshl_b32 s19, s17, 1\ns_add_u32 s23, s19, s18\ns_add_u32 s17, s17, 4")
    A("s_cmp_eq_u32 s18, 2\ns_cselect_b32 s23, s17, s23")
    if CFG.GA: A(f"s_add_u32 s59, s22, s18\ns_and_b32 s59, s59, 3\ns_mul_i32 s59, s59, {CFG.GA}\ns_lshr_b32 s59, s59, 2")
    A("s_waitcnt lgkmcnt(0)")
    A("s_cmp_ge_u32 s16, 6\ns_cbranch_scc1 K1_ldX\ns_cmp_ge_u32 s16, 4\ns_cbranch_scc1 K1_ldF")
    emit_compute_addr(A, 16, "lin")
    for i in range(0, 144, 2): A(f"v_pk_mov_b32 {v(V_ACC+i,2)}, 0, 0")
    srd_off(A, 32, 26, RS_OFF, RS_SZ)
    A("s_lshl_b32 s30, s22, 2\ns_add_u32 s30, s30, s16\ns_lshl_b32 s30, s30, 8\nv_and_b32 v252, 15, v1\nv_lshlrev_b32 v252, 2, v252\nv_and_b32 v253, 48, v1")
    def ld_scale():
        pt(A, "b1")
        for j in range(2):
            A(f"buffer_load_dword v{240+2*j}, v252, s[32:35], s30 offen offset:{128*j} sc1\nbuffer_load_dwordx4 {v(244+4*j,4)}, v253, s[32:35], s30 offen offset:{128*j} sc1")
    A("s_cmp_ge_u32 s23, 4\ns_cbranch_scc1 K1_q")
    HO = V_LDS + 36864
    A(f"s_mul_i32 s3, s16, 9216\ns_add_u32 s3, s3, {HO}\nv_add_u32 v254, s3, v{V_PA}")
    emit_compute_loop(A, 18, "lin", (False, True), 20, first=ld_scale, lastfill=[f"ds_write_b128 v254, {acc(0,t,1)} offset:{t*1024}" for t in range(9)])
    pt(A, "m1")
    A(f"v_subrev_u32 v5, 36864, v254\ns_waitcnt vmcnt(0) lgkmcnt(0)\ns_barrier")
    QB = 48
    for t in range(9):
        o = 84 + 4*(t % 3)
        for j in range(2):
            r = accr(1, t, j)
            A(f"v_pk_mul_f32 {v(r,2)}, {v(r,2)}, {v(244+4*j,2)}\nv_pk_mul_f32 {v(r+2,2)}, {v(r+2,2)}, {v(246+4*j,2)}")
            A(f"v_cvt_pk_bf16_f32 v{o+2*j}, v{r}, v{r+1}\nv_cvt_pk_bf16_f32 v{o+2*j+1}, v{r+2}, v{r+3}")
        A(f"ds_write_b128 v5, {v(o,4)} offset:{t*1024}")
    A.label("K1_kvsm")
    A("s_and_b32 s30, s16, 3\ns_lshr_b32 s31, s16, 2\nv_and_b32 v2, 15, v1\nv_lshrrev_b32 v3, 4, v1")
    A(f"s_lshl_b32 s3, s30, 1\ns_add_u32 s33, s3, s31\ns_lshl_b32 s3, s33, 4\nv_add_u32 v4, s3, v2\nv_mul_u32_u24 v4, {PHI_RS}, v4\nv_mul_u32_u24 v5, 144, v3\nv_add_u32 v4, v4, v5")
    for e in range(2):
        softmax18(A, pairs(0, 0, e), lambda m: QB + 18*e + m, 240)
        for q in (range(4) if e == 0 else range(4, 9)): A(f"ds_write_b128 v4, {v(QB+4*q,4)} offset:{16*q}")
    A(f"v_lshrrev_b32 v6, 2, v1\nv_mul_u32_u24 v6, {PHI_RS}, v6\nv_and_b32 v7, 3, v1\nv_lshl_add_u32 v6, v7, 3, v6")
    A("s_mul_i32 s3, s33, 72\nv_add_u32 v6, s3, v6")
    A("s_lshl_b32 s3, s30, 3\nv_subrev_u32 v7, s3, v6")
    A(f"v_add_u32 v8, {64*PHI_RS}, v6\nv_add_u32 v9, {64*PHI_RS}, v7")
    A(f"s_lshl_b32 s3, s33, 10\ns_add_u32 s3, s3, {V_LDS}\nv_lshlrev_b32 v10, 4, v1\nv_add_u32 v10, s3, v10")
    A(f"v_lshlrev_b32 v11, 8, v3\nv_and_b32 v12, 1, v2\nv_lshl_add_u32 v11, v12, 4, v11")
    A(f"s_lshl_b32 s3, s33, 5\ns_add_u32 s3, s3, {V_LDS + 8192}\nv_add_u32 v11, s3, v11")
    A("s_mov_b32 s40, 0x00030003\ns_mov_b32 s41, 0x00030003\nv_mov_b32 v12, 0x3f803f80")
    srd_off(A, 36, 26, KVP_OFF, KVP_SZ)
    A("s_lshl_b32 s17, s22, 2\ns_add_u32 s17, s17, s23\ns_mul_i32 s17, s17, 24576")
    A("s_lshl_b32 s3, s31, 10\ns_add_u32 s19, s17, s3\ns_add_u32 s29, s19, 22528\ns_add_u32 s19, s19, 16384")
    A("s_lshr_b32 s18, s33, 2\ns_lshl_b32 s18, s18, 11\ns_and_b32 s3, s33, 3\ns_lshl_b32 s3, s3, 8\ns_add_u32 s18, s18, s3\ns_add_u32 s28, s17, s18\ns_add_u32 s28, s28, 18432")
    A("s_lshl_b32 s18, s33, 11\ns_add_u32 s17, s17, s18")
    A("v_lshlrev_b32 v4, 6, v3\nv_lshl_add_u32 v4, v2, 4, v4\nv_lshlrev_b32 v2, 4, v1")
    A("s_lshl_b32 s18, s30, 4\ns_lshl_b64 s[42:43], 0xffff, s18\ns_mov_b32 s44, 0x000f000f\ns_mov_b32 s45, 0x000f000f")
    A("s_waitcnt lgkmcnt(0)\ns_barrier")
    pt(A, "go1")
    DK, FR = 16, 96
    def afr(ks, T): return FR + ks*20 + T*4
    def bfr(ks, mt): return FR + ks*20 + 12 + mt*4
    def dk(T, mt): return DK + (mt*3 + T)*4
    def kreads(ks):
        A(f"ds_read_b128 {v(bfr(ks,1),4)}, v11 offset:{ks*9216}\nds_read_b128 {v(bfr(ks,0),4)}, v10 offset:{ks*9216}")
        for T in range(3):
            a = (7 if T == 2 else 6) + (2 if ks >= 2 else 0)
            off = (ks & 1)*32*PHI_RS + T*32
            A(f"ds_read_b64_tr_b16 {v(afr(ks,T),2)}, v{a} offset:{off}\nds_read_b64_tr_b16 {v(afr(ks,T)+2,2)}, v{a} offset:{off + 16*PHI_RS}")
    kreads(0)
    for ks in range(4):
        if ks < 3: kreads(ks+1)
        A(f"s_waitcnt lgkmcnt({8 if ks < 3 else 0})")
        for i in range(4): A(f"v_cndmask_b32 v{bfr(ks,1)+i}, v12, v{bfr(ks,1)+i}, s[40:41]")
        for mt in range(2):
            for T in range(3):
                A(f"{MF} {v(dk(T,mt),4)}, {v(afr(ks,T),4)}, {v(bfr(ks,mt),4)}, {0 if ks == 0 else v(dk(T,mt),4)}")
    A("s_nop 4")
    for T in range(2): A(f"buffer_store_dwordx4 {v(dk(T,0),4)}, v2, s[36:39], s17 offen offset:{T*1024} sc1")
    A(f"s_mov_b64 exec, s[42:43]\nbuffer_store_dwordx4 {v(dk(2,0),4)}, v2, s[36:39], s19 offen sc1")
    A("s_mov_b64 exec, s[44:45]")
    for T in range(2): A(f"buffer_store_dwordx4 {v(dk(T,1),4)}, v4, s[36:39], s28 offen offset:{T*1024} sc1")
    A(f"s_and_b64 exec, s[42:43], s[44:45]\nbuffer_store_dwordx4 {v(dk(2,1),4)}, v4, s[36:39], s29 offen sc1")
    A("s_mov_b64 exec, -1")
    A(f"s_lshl_b32 s17, s23, 4\ns_add_u32 s17, s17, {FP}\ns_add_u32 s18, s17, s22\ns_lshl_b32 s18, s18, 6\ns_mov_b32 s49, {OOB}")
    srd_off(A, 44, 26, KVF_OFF, KVF_SZ)
    A("s_waitcnt vmcnt(0)\ns_barrier")
    pt(A, "kvp")
    A("s_cmp_ge_u32 s16, 4\ns_cbranch_scc1 K2_ld\ns_cmp_lg_u32 s16, 0\ns_cbranch_scc1 K2_c")
    raise_flag(A, 18, 4)
    A("s_cmp_ge_u32 s22, 12\ns_cbranch_scc1 K2_c")
    A("v_and_b32 v3, 15, v1\nv_add_lshl_u32 v3, v3, s17, 6")
    poll(A, 3, 4, CFG.slk)
    A("s_mul_i32 s18, s23, 12\ns_add_u32 s18, s18, s22")
    A(f"s_add_u32 s49, s18, {FK}\ns_lshl_b32 s49, s49, 6\ns_lshl_b32 s17, s18, 11\ns_lshl_b32 s18, s18, 10")
    A("s_cmp_eq_u32 s22, 11\ns_cselect_b64 exec, 0xffff, -1")
    for tb in range(16):
        A(f"buffer_load_dwordx4 {v(8+8*tb,4)}, v2, s[36:39], s17 offen sc1\nbuffer_load_dwordx4 {v(12+8*tb,4)}, v2, s[36:39], s17 offen offset:1024 sc1")
        A(f"s_add_u32 s17, s17, {48*2048}")
    for tb in range(1, 16):
        A(f"s_waitcnt vmcnt({2*(15-tb)})")
        for p in range(4): A(f"v_pk_add_f32 {v(8+2*p,2)}, {v(8+2*p,2)}, {v(8+8*tb+2*p,2)}")
    for p in range(4): A(f"v_cvt_pk_bf16_f32 v{4+p}, v{8+2*p}, v{9+2*p}")
    A(f"buffer_store_dwordx4 v[4:7], v2, s[44:47], s18 offen {CFG.auxSt}")
    A("s_mov_b64 exec, -1\ns_waitcnt vmcnt(0)")
    raise_flag(A, 49, 8)
    A(f"s_mov_b32 s49, {OOB}\ns_branch K2_c")
    A.label("K1_q")
    emit_compute_loop(A, 18, "lin", (False, False), 20, first=ld_scale)
    A("s_waitcnt vmcnt(0)")
    A("s_barrier")
    pt(A, "m1")
    A("v_and_b32 v6, 15, v1\nv_lshrrev_b32 v7, 4, v1\nv_lshlrev_b32 v3, 11, v7\nv_lshl_add_u32 v3, v6, 4, v3")
    A(f"s_lshr_b32 s3, s16, 1\ns_mul_i32 s3, s3, {STAGE - 18432}\ns_mul_i32 s17, s16, 9216\ns_add_u32 s3, s3, s17")
    A(f"v_add_u32 v3, s3, v3\nv_add_u32 v4, s3, v{V_PA}")
    for st in range(2):
        for j in range(2):
            for e in range(2):
                softmax18(A, pairs(st, j, e), lambda m: (QB + e*16 + 4*((m & 7) >> 1) + (m & 1) + 2*(m >> 3)) if m < 16 else QB + 32 + 2*e + m - 16, 240 + 2*j)
                for gg in range(4): A(f"ds_write_b128 v3, {v(QB+e*16+4*gg,4)} offset:{e*1024 + gg*256}")
            for b in range(8): A(f"ds_read_b128 {acc(st,b,j)}, v4 offset:{b*1024}")
            for i in range(2): A(f"v_pk_mov_b32 {v(accr(st,8,j)+2*i,2)}, {v(QB+32+2*i,2)}, {v(QB+32+2*i,2)} op_sel:[0,1]")
    pt(A, "kvp")
    KVB, KR, TM, MB, CI = 8, 40, 56, 88, 240
    A(f"v_add_u32 v4, {P0}, v{V_PA}\nv_cmp_eq_u32 vcc, 0, v6\nv_cmp_eq_u32 s[40:41], 4, v6\nv_lshlrev_b32 v7, 6, v7\ns_mov_b32 s3, {P0 + 9216}")
    A("v_cndmask_b32 v5, 32, 0, vcc\nv_cndmask_b32 v5, v5, 16, s[40:41]\nv_add3_u32 v5, v5, v7, s3")
    for hp in range(4): A(f"s_mov_b32 s{8+2*hp}, {0xffff << (16*hp) & 0xffffffff}\ns_mov_b32 s{9+2*hp}, {(0xffff << (16*hp)) >> 32}")
    A(f"v_mov_b32 v{MB+2}, 0\nv_mov_b32 v{MB+3}, 0\nv_mov_b32 v{CI}, 0\nv_mov_b32 v{CI+1}, {f2u(1e-6)}\nv_mov_b32 v{CI+2}, 0\nv_mov_b32 v{CI+3}, 0")
    A(f"v_add_u32 v6, 4096, v{V_PA}\nv_add_u32 v7, 8192, v{V_PA}")
    srd_off(A, 36, 26, OB_OFF, OB_SZ)
    A("s_lshl_b32 s29, s22, 2\ns_add_u32 s29, s29, s16\ns_lshl_b32 s29, s29, 1\ns_add_u32 s29, s29, s23\ns_sub_u32 s29, s29, 4")
    A(f"s_add_u32 s49, s29, {FO}\ns_lshl_b32 s49, s49, 6\ns_mul_i32 s29, s29, 20480\ns_add_u32 s30, s29, 10240")
    def kvf(g, e, mt): return KVB + 16*(g & 1) + 8*e + 4*mt
    def kv_reads(g):
        st, hp = g >> 2, g & 3
        return [f"ds_read_b128 {v(kvf(g,e,mt),4)}, v{4+mt} offset:{st*12288 + (2*hp+e)*(256 if mt else 1024)}" for e in range(2) for mt in range(2)]
    A("s_waitcnt lgkmcnt(0)\ns_barrier")
    pt(A, "kvf")
    for x in kv_reads(0): A(x)
    for st in range(2):
        for mt in range(2): A(f"ds_read_b128 {v(KR+8*st+4*mt,4)}, v{4+mt} offset:{st*12288 + 8*(256 if mt else 1024)}")
    def o_store(st, u, j):
        b = 2*u + j
        return f"buffer_store_dwordx4 {acc(st,u,j)}, v{(V_PA,6,7)[b//4]}, s[36:39], s{29+st} offen offset:{(b%4)*1024} {CFG.auxSt}"
    def o_valu(k):
        st, hp, j = k >> 3, (k >> 1) & 3, k & 1
        T = TM + 16*j
        L = [f"v_rcp_f32 v{T+8*e+6}, v{T+8*e+5}" for e in range(2)] + ["s_nop 0"]
        for e in range(2):
            L += [f"v_pk_mul_f32 {v(T+8*e+2*q,2)}, {v(T+8*e+2*q,2)}, {v(T+8*e+6,2)} op_sel_hi:[1,0]" for q in range(2)]
            L += [f"v_mul_f32 v{T+8*e+4}, v{T+8*e+4}, v{T+8*e+6}"]
        vals = [T+8*e+i for e in range(2) for i in range(5)]
        for p in range(5):
            pi = 5*hp + p
            L.append(f"v_cvt_pk_bf16_f32 v{accr(st, pi >> 2, j) + (pi & 3)}, v{vals[2*p]}, v{vals[2*p+1]}")
        if CFG.ost == 0: L += [o_store(st, u, j) for u in ([hp] if hp < 3 else [3, 4])]
        return L
    for k in range(16):
        st, hp, j = k >> 3, (k >> 1) & 3, k & 1
        g = k >> 1; T = TM + 16*j
        a = [f"{MF} {v(T+8*e+4*mt,4)}, {v(kvf(g,e,mt),4)}, {acc(st,2*hp+e,j)}, {v(CI,4) if mt else 0}" for e in range(2) for mt in (1, 0)]
        b = [f"{MF} {v(T+8*e+4*mt,4)}, {v(KR+8*st+4*mt,4)}, {v(MB+2*e,4)}, {v(T+8*e+4*mt,4)}" for e in range(2) for mt in (1, 0)]
        mk = [f"v_cndmask_b32 v{MB+(i if i < 2 else i+2)}, 0, v{accr(st,8,j)+i}, {s(8+2*hp,2)}" for i in range(4)]
        va = o_valu(k-1) if k else []
        if j == 0:
            A("s_waitcnt lgkmcnt(0)")
            if g < 7: va = va + kv_reads(g+1)
        A(a[0]); A(mk[0]); A(mk[1]); A(a[1]); A(mk[2]); A(mk[3]); A(a[2]); A(a[3])
        n0 = 0
        for i, m in enumerate([None] + b):
            if m: A(m)
            n = (len(va) - n0 + (4 - i)) // (5 - i)
            for x in va[n0:n0+n]: A(x)
            n0 += n
    A("s_nop 5")
    for x in o_valu(15): A(x)
    pt(A, "go1")
    if CFG.ost == 1:
        for st in range(2):
            for u in range(5):
                for j in range(2): A(o_store(st, u, j))
    A("s_branch K2_c")
    A.label("K1_ldF")
    srd_off(A, 8, 26, WF_OFF, WF_SZ)
    A(f"s_sub_u32 s17, s16, 4\ns_mul_i32 s21, s23, {18*18432}")
    def wait_fold():
        A("s_lshl_b32 s3, s17, 2\ns_add_u32 s3, s3, s23\ns_add_u32 s3, s3, 4\ns_lshl_b32 s19, s23, 1\ns_add_u32 s19, s19, s17\ns_sub_u32 s19, s19, 8")
        A("s_cmp_ge_u32 s23, 4\ns_cselect_b32 s3, s19, s3\ns_mul_i32 s3, s3, 36")
        A(f"s_add_u32 s3, s3, {F1}\nv_and_b32 v8, 63, v0\nv_min_u32 v8, 35, v8\nv_add_lshl_u32 v8, v8, s3, 6")
        if CFG.dlw: A(f"s_sleep {CFG.dlw}")
        poll2(A, 8, 10, CFG.sl0a, CFG.sl0)
        pt(A, "go1")
    emit_loader_lin(A, 18, 9, POFF, 17, 8, 21, 20, 18, CFG.auxP, CFG.GA, pre=wait_fold)
    A("s_branch K1_ldtail")
    A.label("K1_ldX")
    srd_off(A, 8, 26, HT_OFF, HT_SZ)
    A(f"s_sub_u32 s17, s16, 6\ns_mul_i32 s21, s22, {4*9216}\ns_lshl_b32 s18, s17, 10\ns_add_u32 s21, s21, s18\ns_lshl_b32 s18, s17, 12\ns_mov_b32 s19, s17")
    A("v_and_b32 v1, 63, v0\nv_and_b32 v2, 16, v1\nv_lshrrev_b32 v2, 2, v2\nv_xor_b32 v2, v2, v1\nv_lshlrev_b32 v2, 4, v2")
    for w in range(1, 4): A(f"v_add_u32 v{2+w}, {8192*w}, v2")
    def issue_x(slot):
        A(f"s_add_u32 m0, s18, {slot*STAGE + WOFF}\ns_add_u32 s19, s19, 2")
        for w in range(4): A(f"buffer_load_dwordx4 v{2+w}, s[8:11], s21 offen offset:{1024*w} {CFG.auxP} lds")
        A(f"s_cmp_ge_u32 s19, 9\ns_cselect_b32 s3, 9, 0\ns_cselect_b32 s28, {589824-9216}, 0\ns_sub_u32 s19, s19, s3\ns_add_u32 s21, s21, s28\ns_add_u32 s21, s21, 2048")
    def wait_xn():
        A(f"s_lshl_b32 s3, s22, 3\ns_add_u32 s3, s3, {F0+112}\nv_and_b32 v8, 7, v0\nv_add_lshl_u32 v8, v8, s3, 6")
        if CFG.dl0: A(f"s_sleep {CFG.dl0}")
        poll2(A, 8, 10, CFG.sl0a, CFG.sl0)
        pt(A, "go1")
    assert not CFG.GA
    emit_loader(A, 18, 4, issue_x, 20, pre=wait_xn)
    A.label("K1_ldtail")
    A("s_lshr_b32 s17, s2, 3\ns_sub_u32 s17, s17, 18\ns_lshl_b32 s17, s17, 2\ns_add_u32 s17, s17, s16\ns_sub_u32 s17, s17, 4")
    A(f"s_mov_b32 s49, {OOB}\ns_cmp_ge_u32 s23, 4\ns_cbranch_scc1 K1_ldq")
    srd_off(A, 32, 26, RS_OFF, RS_SZ)
    A("s_and_b32 s31, s16, 3\ns_lshl_b32 s30, s22, 2\ns_add_u32 s30, s30, s31\ns_lshl_b32 s30, s30, 8\nv_and_b32 v1, 63, v0\nv_and_b32 v2, 15, v1\nv_lshlrev_b32 v2, 2, v2")
    A("buffer_load_dword v240, v2, s[32:35], s30 offen offset:128 sc1")
    if CFG.pf2kv:
        A(f"s_add_u32 s17, s17, {72*CFG.pf2g + 16*CFG.pf2s}")
        pf_w2(A, 50, 17, 32, CFG.pf2kv)
    A(f"s_mul_i32 s3, s31, 9216\ns_add_u32 s3, s3, {HO}\nv_lshl_add_u32 v2, v1, 4, s3\ns_barrier")
    for t in range(9): A(f"ds_read_b128 {acc(0,t,0)}, v2 offset:{t*1024}")
    A(f"s_waitcnt vmcnt({CFG.pf2kv}) lgkmcnt(0)\ns_branch K1_kvsm")
    A.label("K1_ldq")
    A("s_barrier")
    if CFG.c3w2 == 1:
        A("s_sub_u32 s19, s17, 32")
        pf_w2c3(A, 50, 19, 16, 3, lim=0)
    if CFG.pf2q:
        A(f"s_add_u32 s17, s17, {72*CFG.pf2g + 16*CFG.pf2s + 32*CFG.pf2kv - 32}")
        pf_w2(A, 50, 17, 16, CFG.pf2q, lim=None if CFG.qlim < 0 else CFG.qlim)
    A("s_branch K2_ld")
    A.label("K1_spare")
    A(f"s_load_dwordx2 s[24:25], s[0:1], {KA_WO}\ns_load_dwordx2 s[50:51], s[0:1], {KA_W2}")
    A("s_and_b32 s17, s2, 7\ns_lshr_b32 s18, s2, 3\ns_sub_u32 s41, s18, 30\ns_lshl_b32 s41, s41, 3\ns_add_u32 s41, s41, s16")
    A(f"s_add_u32 s43, s41, {72*CFG.pf2g}")
    if CFG.pf1s:
        A(f"s_add_u32 s41, s41, {320 - 16*CFG.pf1s}")
        A.label("K1_spf")
        pf_w1(A, 52, 46, 41, 16, 1, 1, 57, lim=CFG.slim)
        A("s_cmp_lt_u32 s41, 320\ns_cbranch_scc1 K1_spf")
    A("s_waitcnt lgkmcnt(0)")
    tag_make(A)
    if CFG.c3w2 == 2:
        A("s_sub_u32 s19, s18, 30\ns_lshl_b32 s19, s19, 3\ns_add_u32 s19, s19, s16")
        pf_w2c3(A, 50, 19, 16, 3, lim=1)
    pf_w2(A, 50, 43, 16, CFG.pf2s, lim=1)
    pt(A, "m1")
    A("s_sub_u32 s18, s18, 30\ns_lshl_b32 s17, s17, 1\ns_add_u32 s17, s17, s18\ns_and_b32 s22, s17, 3\ns_lshr_b32 s23, s17, 2")
    srd(A, 8, 24, D*D*2)
    A(f"s_mul_i32 s28, s23, {144*1152}\ns_mul_i32 s29, s22, 288\ns_add_u32 s28, s28, s29\ns_lshl_b32 s29, s16, 10")
    for r in range(6):
        if r == 5: A("s_cmp_lg_u32 s16, 0\ns_cbranch_scc1 K1_w5\ns_bfm_b64 exec, 32, 0")
        A(f"v_add_u32 v4, {512*r}, v0\nv_mul_u32_u24 v5, 58255, v4\nv_lshrrev_b32 v5, 20, v5\ns_add_u32 m0, s29, {8192*r}")
        A(f"v_mul_u32_u24 v5, {1152-288}, v5\nv_lshl_add_u32 v4, v4, 4, v5\nbuffer_load_dwordx4 v4, s[8:11], s28 offen lds")
    A("s_mov_b64 exec, -1")
    A.label("K1_w5")
    ZR = 144*288
    A(f"v_lshlrev_b32 v4, 2, v0\nv_add_u32 v4, {ZR}, v4\nv_mov_b32 v5, 0\nds_write_b32 v4, v5")
    srd_off(A, 12, 26, WOT_OFF, WOT_SZ)
    A("v_and_b32 v1, 63, v0\nv_lshrrev_b32 v3, 4, v1\nv_bfe_u32 v2, v1, 2, 2\ns_lshl_b32 s3, s16, 3\nv_and_b32 v10, 3, v1\nv_lshlrev_b32 v10, 3, v10")
    A(f"v_add_u32 v11, 16, v3\nv_cmp_gt_u32 s[30:31], 2, v3\nv_mov_b32 v12, 144")
    for hf in range(2):
        A(f"v_add3_u32 v4, v2, s3, {4*hf}\nv_mul_u32_u24 v5, 205, v4\nv_lshrrev_b32 v5, 10, v5\nv_mul_u32_u24 v6, 5, v5\nv_sub_u32 v6, v4, v6")
        A("v_cmp_eq_u32 vcc, 4, v6\nv_lshl_add_u32 v6, v3, 2, v6\nv_mul_u32_u24 v5, 18, v5\nv_cndmask_b32 v6, v6, v11, vcc\ns_andn2_b64 vcc, vcc, s[30:31]")
        A(f"v_add_u32 v6, v6, v5\nv_cndmask_b32 v6, v6, v12, vcc\nv_min_u32 v6, 144, v6\nv_mul_u32_u24 v6, 288, v6\nv_add_u32 v{8+hf}, v6, v10")
    A("s_lshl_b32 s28, s22, 2\ns_add_u32 s28, s28, s23\ns_mul_i32 s28, s28, 5\ns_add_u32 s28, s28, s16")
    A(f"s_add_u32 s49, s28, {FW}\ns_lshl_b32 s49, s49, 6\ns_mul_i32 s28, s28, 9216\nv_lshlrev_b32 v2, 4, v1")
    A("s_waitcnt vmcnt(0) lgkmcnt(0)\ns_barrier")
    for rt in range(9):
        A(f"ds_read_b64_tr_b16 {v(16+4*rt,2)}, v8 offset:{rt*32}\nds_read_b64_tr_b16 {v(18+4*rt,2)}, v9 offset:{rt*32}")
    A("s_waitcnt lgkmcnt(0)\ns_barrier")
    A("s_cmp_lt_u32 s16, 5\ns_cbranch_scc1 K1_wot")
    A(f"s_lshl_b32 s49, s2, 6\ns_cmp_eq_u32 s16, 5\ns_cbranch_scc1 K2_ld")
    A(f"s_mov_b32 s49, {OOB}\ns_cmp_lg_u32 s16, 7\ns_cbranch_scc1 K2_ld\ns_cmp_lg_u32 s2, 255\ns_cbranch_scc1 K2_ld")
    for q in range(4):
        A(f"v_add_u32 v8, {F0 + 64*q}, v1\nv_lshlrev_b32 v8, 6, v8")
        poll(A, 8, 10, 8)
    A(f"s_mov_b32 s49, {FE*64}\ns_branch K2_ld")
    A.label("K1_wot")
    for rt in range(9):
        if rt and rt % 4 == 0: A("s_add_u32 s28, s28, 4096")
        A(f"buffer_store_dwordx4 {v(16+rt*4,4)}, v2, s[12:15], s28 offen offset:{(rt%4)*1024} {CFG.auxSt}")
    A("s_cmp_ge_u32 s16, 4\ns_cbranch_scc1 K2_ld")

def k2_decode(A):
    A("s_and_b32 s17, s2, 7\ns_lshr_b32 s18, s2, 3")
    A("s_lshr_b32 s28, s17, 1\ns_and_b32 s22, s18, 3")
    A("s_and_b32 s17, s17, 1\ns_lshl_b32 s17, s17, 3\ns_lshr_b32 s18, s18, 2\ns_add_u32 s23, s17, s18")
RED_RS = 592
def red_base(w): return w*32*RED_RS if w < 3 else 3*STAGE2
PB, PBS = 3*STAGE2 + 32*RED_RS, 1056
def k2_enter(A):
    A(f"s_load_dwordx4 s[4:7], s[0:1], {KA_W2}\ns_load_dwordx2 s[44:45], s[0:1], {KA_X}\ns_load_dwordx2 s[46:47], s[0:1], {KA_OUT}")
    k2_decode(A)
def gen_k2(A):
    DBG["on"] = True
    KV, MB, CI, PH, TM, PK, O = 8, 80, 92, 96, 132, 168, 204
    A.label("K2_c")
    pt(A, "e1")
    k2_enter(A)
    emit_compute_addr(A, 16, "pi")
    for i in range(0, 72, 2): A(f"v_pk_mov_b32 {v(V_ACC+i,2)}, 0, 0")
    A("s_sub_u32 s3, s2, 208\ns_cmp_lt_u32 s3, 32\ns_cbranch_scc1 K2_c1\ns_waitcnt vmcnt(0)")
    raise_flag(A, 49, 8)
    A(f"s_mov_b32 s49, {OOB}")
    if CFG.bgo: A("s_barrier")
    A.label("K2_c1")
    pt(A, "fl1")
    srd_off(A, 36, 26, PART_OFF, PART_SZ)
    A("s_lshl_b32 s17, s23, 2\ns_add_u32 s17, s17, s22\ns_lshl_b32 s18, s17, 4")
    A("s_lshl_b32 s30, s16, 2\ns_add_u32 s30, s30, s28\ns_add_u32 s30, s30, s18")
    A(f"s_mul_i32 s32, s30, 9216\ns_add_u32 s30, s30, {FX}\ns_lshl_b32 s30, s30, 6")
    A(f"s_cmp_eq_u32 s16, s28\ns_cselect_b32 s48, {OOB}, 0\ns_cselect_b32 s30, {OOB}, s30")
    A(f"s_add_u32 s34, s32, 4096\ns_add_u32 s35, s32, 8192")
    A("s_waitcnt lgkmcnt(0)")
    k2_final_prep(A, 1)
    if CFG.pf2l or CFG.pf2ls:
        base = 72*CFG.pf2g + 16*CFG.pf2s + 32*CFG.pf2kv + 16*CFG.pf2q
        A(f"s_lshr_b32 s17, s2, 3\ns_lshl_b32 s19, s17, 2\ns_add_u32 s19, s19, s16\ns_cmp_ge_u32 s17, 30\ns_cbranch_scc1 K2_pls\ns_sub_u32 s17, s17, 18\ns_cmp_ge_u32 s17, 8\ns_cbranch_scc1 K2_nopl")
        A(f"s_add_u32 s19, s19, {base - 72}")
        pf_w2(A, 4, 19, 32, CFG.pf2l, srdn=8)
        A("s_branch K2_nopl")
        A.label("K2_pls")
        A(f"s_add_u32 s19, s19, {base + 32*CFG.pf2l - 120}")
        pf_w2(A, 4, 19, 8, CFG.pf2ls, srdn=8, lim=1)
        A.label("K2_nopl")
    A(f"v_or_b32 v0, s48, v{V_PA}\ns_mul_i32 s48, s16, 9216")
    A("v_and_b32 v8, 15, v1\nv_lshrrev_b32 v9, 4, v1")
    srd_off(A, 40, 26, OB_OFF, OB_SZ)
    A(f"s_lshl_b32 s29, s23, 2\ns_add_u32 s29, s29, s28\ns_lshl_b32 s29, s29, 2\ns_add_u32 s29, s29, s16\ns_lshr_b32 s3, s29, 1\ns_add_u32 s3, s3, {FO}\ns_lshl_b32 s3, s3, 6\nv_mov_b32 v170, s3\ns_mul_i32 s29, s29, 10240")
    A(f"v_mul_u32_u24 v8, {RED_RS}, v8\nv_lshl_add_u32 v8, v9, 4, v8")
    A(f"s_mul_i32 s17, s16, {32*RED_RS}\ns_cmp_eq_u32 s16, 3\ns_cselect_b32 s17, {red_base(3)}, s17\nv_add_u32 v254, s17, v8")
    def pub(t):
        L = [f"v_cvt_pk_bf16_f32 v{PK+4*t+p}, v{V_ACC+8*t+2*p}, v{V_ACC+8*t+2*p+1}" for p in range(4)]
        L.append(f"buffer_store_dwordx4 {v(PK+4*t,4)}, v0, s[36:39], s{(32, 34, 35)[t//4]} offen offset:{(t%4)*1024} sc1")
        return L
    lastfill = [""]*9
    for t in range(4): lastfill += ["\n".join(pub(t)[:3]), "\n".join(pub(t)[3:])]
    lastfill += ["\n".join(pub(4))]
    def ld_o(k):
        if k == 0:
            A("buffer_load_dwordx2 v[168:169], v170, s[96:99], 0 offen sc1")
            return
        L = A.newlabel("Lo")
        A(f"s_waitcnt vmcnt(0)\nv_cmp_ne_u64 vcc, s[100:101], v[168:169]\ns_nop 4\ns_cbranch_vccz {L}")
        poll(A, 170, 168)
        A.label(L)
    def o_loads():
        L = []
        for b in range(10):
            L.append((f"s_add_u32 s29, s29, 4096\n" if b and b % 4 == 0 else "") + f"buffer_load_dwordx4 {v(O+4*b,4)}, v{V_PA}, s[40:43], s29 offen offset:{(b%4)*1024} sc1")
        return L
    def late_flag():
        A(f"s_cmp_eq_u32 s49, {OOB}\ns_cbranch_scc1 K2_nolate\ns_waitcnt vmcnt(0)")
        raise_flag(A, 49, 172)
        A(f"s_mov_b32 s49, {OOB}")
        A.label("K2_nolate")
        A("s_cmp_lg_u32 s20, 2\ns_cbranch_scc1 K2_nofo")
        ld_o(0)
        A.label("K2_nofo")
    emit_compute_loop(A, 18, "pi", (False, False), 20, first=lambda: pt(A, "b2"), lastfill=lastfill, loopend=late_flag, hooks={16: lambda: ld_o(1)}, more={16: (o_loads()[:5], o_loads()[5:])})
    pt(A, "m2")
    def vread(stage, dst):
        slot = stage % NST
        return [f"ds_read_b128 {v(dst+4*b,4)}, v{5 if slot >= 2 else 4} offset:{(slot & 1)*STAGE + b*1024}" for b in range(9)]
    A(f"v_add_u32 v4, s48, v{V_PA}\nv_add_u32 v5, s48, v{V_PB}")
    A("s_barrier")
    for r in vread(18, KV): A(r)
    for t in range(5, 9):
        for x in pub(t): A(x)
    pt(A, "pub")
    def flag_x():
        A("s_waitcnt vmcnt(0)")
        raise_flag(A, 30, 88)
        pt(A, "flx")
    A("s_waitcnt vmcnt(9)")
    def wo(u, keep):
        return [f"{MF} {acc(0,t,j)}, {v(KV+36*(u&1)+4*t,4)}, {v(O+8*u+4*j,4)}, {acc(0,t,j) if keep else 0}" for t in range(9) for j in range(2)]
    A("s_cmp_eq_u32 s16, s28\ns_cbranch_scc1 K2_own")
    block(A, wo(0, False), vread(19, KV+36), True)
    A("s_branch K2_u1")
    A.label("K2_own")
    block(A, wo(0, True), vread(19, KV+36), True)
    A.label("K2_u1")
    for u in range(4):
        if u: block(A, wo(u, True), vread(19+u, KV+36*((u+1)&1)), True)
        pt(A, f"u{u}")
        if u == CFG.flagpos: flag_x()
    def wr(k): return f"ds_write_b128 v254, {acc(0,k>>1,k&1)} offset:{(k&1)*16*RED_RS + (k>>1)*64}"
    block(A, wo(4, True), [""]*8 + [wr(k) for k in range(10)], False)
    for k in range(10, 18): A(wr(k))
    pt(A, "add")
    A.label("K2_fin")
    def fin_x(n):
        FI = (244, 232)[n]; XB = FI + 4; D0 = 40 + 56*n
        for i in range(4): A(f"v_lshlrev_b32 v{D0+2*i}, 16, v{XB+i}\nv_and_b32 v{D0+1+2*i}, 0xffff0000, v{XB+i}")
        A(f"v_lshlrev_b32 v48, 16, v{FI+3}")
        for p in range(4): A(f"v_pk_add_f32 {v(D0+2*p,2)}, {v(D0+2*p,2)}, v[48:49] op_sel_hi:[1,0]")
    def fin(items):
        for n in items: fin_x(n)
        A("s_waitcnt lgkmcnt(0)\ns_barrier")
        pt(A, "red")
        for n in items:
            FI = (244, 232)[n]; R = 8 + 96*n
            for w in range(4):
                a, o = (FI+1, red_base(w)) if w < 3 else (FI+2, 0)
                A(f"ds_read_b128 {v(R+8*w,4)}, v{a} offset:{o}\nds_read_b128 {v(R+8*w+4,4)}, v{a} offset:{o+16}")
        left = 8*len(items)
        for n in items:
            R = 8 + 96*n; D0 = 40 + 56*n
            for w in range(4):
                left -= 2
                A(f"s_waitcnt lgkmcnt({left})")
                for p in range(4): A(f"v_pk_add_f32 {v(D0+2*p,2)}, {v(D0+2*p,2)}, {v(R+8*w+2*p,2)}")
        A("s_waitcnt vmcnt(0)\ns_barrier")
        pt(A, "rx")
        for n in items:
            for q in range(3):
                A(f"ds_read_b64 {v(60+12*n+4*q,2)}, v{(252, 240)[n]} offset:{q*9*PBS}\nds_read_b64 {v(62+12*n+4*q,2)}, v{(252, 240)[n]} offset:{q*9*PBS + 256}")
        left = 6*len(items)
        for n in items:
            D0 = 40 + 56*n
            for q in range(3):
                left -= 2
                A(f"s_waitcnt lgkmcnt({left})")
                for i in range(4): A(f"v_lshlrev_b32 v{8+2*i}, 16, v{60+12*n+4*q+i}\nv_and_b32 v{9+2*i}, 0xffff0000, v{60+12*n+4*q+i}")
                for p in range(4): A(f"v_pk_add_f32 {v(D0+2*p,2)}, {v(D0+2*p,2)}, {v(8+2*p,2)}")
            for p in range(4): A(f"v_cvt_pk_bf16_f32 v{52+4*n+p}, v{D0+2*p}, v{D0+1+2*p}")
            A(f"buffer_store_dwordx4 {v(52+4*n,4)}, v{(244, 232)[n]}, s[52:55], s50 offen {CFG.auxOut}")
    A("s_cmp_eq_u32 s16, 7\ns_cbranch_scc1 K2_fin2")
    fin([0])
    A("s_branch K2_done")
    A.label("K2_fin2")
    fin([0, 1])
    A.label("K2_done")
    pt(A, "fin")
    if CFG.probe:
        i, lo, hi = [int(x) for x in CFG.probe.split(",")]
        A(f"s_cmp_lg_u32 s16, 0\ns_cbranch_scc1 Z_end\ns_cmp_lt_u32 s2, {lo}\ns_cbranch_scc1 Z_end\ns_cmp_ge_u32 s2, {hi}\ns_cbranch_scc1 Z_end")
        A(f"Z_loop:\ns_sleep 1\ns_memrealtime s[4:5]\ns_waitcnt lgkmcnt(0)\ns_sub_u32 s7, s4, s{64+2*i}\ns_cmp_lt_u32 s7, 10000\ns_cbranch_scc1 Z_loop\nZ_end:")
    else: stamp_flush(A)
    A("s_endpgm")
    A.label("K2_ld")
    pt(A, "e1")
    k2_enter(A)
    A(f"s_cmp_eq_u32 s49, {OOB}\ns_cbranch_scc1 K2_ld1\ns_waitcnt vmcnt(0)")
    raise_flag(A, 49, 8)
    A.label("K2_ld1")
    if CFG.G2: A(f"s_add_u32 s59, s22, s23\ns_and_b32 s59, s59, 3\ns_mul_i32 s59, s59, {CFG.G2}\ns_lshr_b32 s59, s59, 2")
    A(f"s_sub_u32 s29, s16, 4\ns_mul_i32 s34, s29, 9216")
    A(f"s_lshl_b32 s32, s22, 2\ns_add_u32 s32, s32, s29\ns_mul_i32 s32, s32, 46080\ns_add_u32 s32, s32, {WOT_OFF}")
    A("v_and_b32 v24, 63, v0\nv_lshlrev_b32 v20, 4, v24\nv_add_u32 v21, 4096, v20\nv_add_u32 v22, 8192, v20")
    srd(A, 36, 26, PART_OFF)
    A("s_waitcnt lgkmcnt(0)")
    k2_final_prep(A, 2)
    A("s_lshl_b32 s30, s23, 2\ns_add_u32 s30, s30, s22\ns_lshl_b32 s30, s30, 2\ns_add_u32 s30, s30, s28\ns_lshl_b32 s30, s30, 2\ns_add_u32 s30, s30, s29")
    A(f"s_add_u32 s3, s30, {FX}\ns_lshl_b32 s3, s3, 6\nv_mov_b32 v32, s3\ns_mul_i32 s30, s30, 9216")
    A(f"s_cmp_gt_u32 s29, s28\ns_cselect_b32 s3, 1, 0\ns_sub_u32 s31, s29, s3\ns_mul_i32 s31, s31, {9*PBS}")
    A(f"s_lshl_b32 s40, s22, 2\ns_add_u32 s40, s40, s29\ns_mul_i32 s40, s40, 5\ns_add_u32 s40, s40, {FW}\nv_min_u32 v28, 4, v24\nv_add_lshl_u32 v28, v28, s40, 6")
    def go_barrier(only_q=False):
        L = A.newlabel("Lg")
        A(f"s_sub_u32 s3, s2, 208\ns_cmp_ge_u32 s3, 32\ns_cbranch_scc1 {L}")
        A(f"s_and_b32 s3, s2, 1\ns_lshl_b32 s3, s3, 2\ns_add_u32 s3, s3, s29\ns_mul_i32 s3, s3, 6\ns_lshl_b32 s41, s3, 10\ns_add_u32 s41, s41, {KVF_OFF}\ns_add_u32 s3, s3, {FK}")
        A(f"v_min_u32 v14, 5, v24\nv_add_lshl_u32 v14, v14, s3, 6\ns_mul_i32 s43, s29, 6144\ns_add_u32 m0, s43, {P0}")
        poll2(A, 14, 16, CFG.slo, CFG.slo2)
        for b in range(6):
            if b == 4: A(f"s_add_u32 m0, s43, {P0 + 4096}\ns_nop 0")
            if b == 5: A("s_bitcmp1_b32 s29, 0\ns_cselect_b64 exec, 0xffff, -1")
            A(f"buffer_load_dwordx4 v{20+b//4}, s[36:39], s41 offen offset:{(b%4)*1024} sc1 lds")
        A("s_mov_b64 exec, -1\ns_waitcnt vmcnt(0)")
        if only_q: A("s_barrier")
        A.label(L)
        if not only_q: A("s_barrier")
    assert CFG.bgo == 2 and not CFG.pft
    hook = {15: lambda: A("buffer_load_dwordx2 v[30:31], v28, s[96:99], 0 offen sc1")}
    def tail(so, step, nb=9, check=False, sample=False):
        def emit(slot):
            if check:
                L = A.newlabel("Lt")
                A(f"v_cmp_ne_u64 vcc, s[100:101], v[30:31]\ns_nop 4\ns_cbranch_vccz {L}")
                poll(A, 28, 30)
                A.label(L)
            for j in range(nb):
                if j % 4 == 0: A(f"s_add_u32 m0, s34, {slot*STAGE + (j//4)*4096}\ns_nop 0")
                if nb == 3 and j == 2: A("s_mov_b64 exec, 0xffff")
                A(f"buffer_load_dwordx4 v{20+j//4}, s[36:39], s{so} offen offset:{(j%4)*1024} sc1 lds")
                if nb == 3 and j == 2: A("s_mov_b64 exec, -1")
            A(f"s_add_u32 s{so}, s{so}, {step}")
            if sample: A("buffer_load_dwordx2 v[34:35], v32, s[96:99], 0 offen sc1")
        return (nb + sample, emit)
    extra = [tail(32, 9216, check=True)] + [tail(32, 9216)]*3 + [tail(32, 9216, sample=True)]
    A("s_cmp_ge_u32 s16, 6\ns_cbranch_scc1 K2_ldW")
    srd_off(A, 8, 26, U_OFF, U_SZ)
    A(f"s_sub_u32 s17, s16, 4\ns_lshl_b32 s21, s22, 2\ns_add_u32 s21, s21, s28\ns_mul_i32 s40, s21, 36\ns_mul_i32 s21, s21, {36*9216}")
    def wait_u():
        A(f"s_add_u32 s40, s40, s17\ns_add_u32 s40, s40, {FU}\nv_min_u32 v8, 17, v24\nv_lshl_add_u32 v8, v8, 1, s40\nv_lshlrev_b32 v8, 6, v8")
        go_barrier()
        poll2(A, 8, 10, CFG.sl1, CFG.sl2)
        pt(A, "go2")
    emit_loader_lin(A, 18, 9, POFF, 17, 8, 21, 20, 18, CFG.auxP, CFG.G2, extra=extra, pre=wait_u, hook=hook)
    A("s_branch K2_rx")
    A.label("K2_ldW")
    srd(A, 12, 4, S*F*2)
    A(f"s_sub_u32 s17, s16, 6\ns_mul_i32 s21, s28, {1152*4096}\ns_lshl_b32 s18, s23, 8\ns_add_u32 s21, s21, s18")
    every = None
    if CFG.pft:
        A("v_mul_u32_u24 v25, 1920, v24")
        A(f"s_lshl_b32 s40, s23, 2\ns_add_u32 s40, s40, s28\ns_lshl_b32 s40, s40, 2\ns_add_u32 s40, s40, s22\ns_mul_i32 s40, s40, 18432\ns_add_u32 s40, s40, {PHIQ_OFF}")
        A(f"s_and_b32 s41, s23, 7\ns_lshl_b32 s42, s22, 3\ns_add_u32 s41, s41, s42\ns_mul_i32 s42, s41, 1536\ns_add_u32 s42, s42, {KVF_OFF}\ns_mul_i32 s41, s41, 23040\ns_add_u32 s41, s41, {WOT_OFF}")
        A(f"s_cmp_eq_u32 s16, 6\ns_cselect_b32 s40, s40, s41\ns_cselect_b32 s41, 10, 12\ns_cselect_b32 s48, 0x7ff, -1\ns_and_b32 s48, s48, 0xfff\ns_mov_b32 s49, 0")
        A(f"v_cmp_gt_u32 vcc, s41, v24\nv_add_u32 v25, s40, v25\nv_mov_b32 v26, s42\ns_mov_b32 s42, 0\nv_cndmask_b32 v26, v26, v25, vcc\nv_mov_b32 v25, {OOB}")
        def every():
            A(f"s_mov_b64 exec, s[48:49]\nbuffer_load_dword v{SINK}, v25, s[36:39], s42 offen sc1\ns_mov_b64 exec, -1\ns_add_u32 s42, s42, 128")
    def mid():
        if CFG.pft: A("v_mov_b32 v25, v26\ns_mov_b32 s42, 0")
        go_barrier(True)
    A("s_sub_u32 s3, s2, 208\ns_cmp_lt_u32 s3, 32\ns_cbranch_scc1 K2_nob\ns_barrier\nK2_nob:")
    emit_loader_W(A, 18, "pi", 17, 12, 21, 4096, 20, 18, CFG.auxW2, CFG.G2, extra=extra, every=every, mid=mid, hook=hook)
    A.label("K2_rx")
    A("s_cmp_eq_u32 s29, s28\ns_cbranch_scc1 K2_fin")
    srd_off(A, 8, 26, PART_OFF, PART_SZ)
    A(f"s_add_u32 m0, s31, {PB}\nv_cmp_ne_u64 vcc, s[100:101], v[34:35]\nv_lshrrev_b32 v2, 5, v24\nv_xor_b32 v2, v2, v24\nv_lshlrev_b32 v2, 4, v2\ns_nop 1\ns_cbranch_vccz K2_rx1\ns_mov_b64 exec, 1")
    poll(A, 32, 34, CFG.slx)
    A.label("K2_rx1")
    pt(A, "poll")
    for t in range(9):
        A(f"buffer_load_dwordx4 v2, s[8:11], s30 offen sc1 lds\ns_add_u32 m0, m0, {PBS}\ns_add_u32 s30, s30, 1024")
    A("s_branch K2_fin")
    A.label("K_end")
    A("s_endpgm")
    DBG["on"] = False

def k2_final_prep(A, nitems):
    srd(A, 8, 44, S*D*2)
    srd(A, 12, 6, S*2)
    srd(A, 52, 46, S*D*2)
    A("s_lshl_b32 s50, s23, 2\ns_add_u32 s50, s50, s28\ns_lshl_b32 s51, s50, 6\ns_mul_i32 s50, s50, 36864\ns_mul_i32 s17, s22, 288\ns_add_u32 s50, s50, s17")
    for n in range(nitems):
        FI = (244, 232)[n]; XB = FI + 4
        if n: A(f"v_mov_b32 v{FI}, {OOB}\ns_cmp_lg_u32 s16, 7\ns_cbranch_scc1 K2_fp1")
        A("v_mov_b32 v252, v0" if n == 0 else "v_and_b32 v252, 63, v0\nv_add_u32 v252, 512, v252")
        A("v_mul_u32_u24 v253, 3641, v252\nv_lshrrev_b32 v253, 16, v253\nv_mul_u32_u24 v254, 18, v253\nv_sub_u32 v254, v252, v254")
        A(f"v_mul_u32_u24 v252, 1152, v253\nv_lshl_add_u32 v{FI}, v254, 4, v252")
        A(f"v_mul_u32_u24 v252, {RED_RS}, v253\nv_lshl_add_u32 v{FI+1}, v254, 5, v252\nv_add_u32 v{FI+2}, {red_base(3)}, v{FI+1}")
        A(f"v_lshrrev_b32 v252, 1, v254\nv_mul_u32_u24 v252, {PBS}, v252\nv_and_b32 v254, 1, v254\nv_lshl_add_u32 v252, v254, 9, v252\nv_xor_b32 v254, v254, v253\nv_and_b32 v254, 15, v254")
        A(f"v_lshl_add_u32 v252, v254, 4, v252\nv_lshrrev_b32 v254, 4, v253\nv_lshl_add_u32 v252, v254, 3, v252\nv_add_u32 v{(241, 240)[n]}, {PB}, v252")
        A("v_lshlrev_b32 v253, 1, v253")
        A(f"buffer_load_dwordx4 {v(XB,4)}, v{FI}, s[8:11], s50 offen\nbuffer_load_ushort v{FI+3}, v253, s[12:15], s51 offen")
        if n: A.label("K2_fp1")
    A("v_mov_b32 v252, v241")

HEADER = open("parallel_sum__linear_kernel_hedgehog__mixer_token_mlp__prompt.s.ref").read().split("; Override launch")[0] if __name__ == "__main__" else ""

def gen(**kw):
    global CFG
    for k in dir(Cfg):
        if not k.startswith("_"): setattr(CFG, k, kw.get(k, getattr(Cfg, k)))
    A = Asm()
    if HEADER: A(HEADER.rstrip())
    A(f"; @launch grid=(256,1,1) block=(512,1,1) lds={LDS_BYTES}")
    A('.amdgcn_target "amdgcn-amd-amdhsa--gfx950"\n.text')
    gen_k0(A); gen_k1(A); gen_k2(A)
    A.label("CODE_END")
    A("s_endpgm")
    A('.section .rodata,"a"')
    kernel_desc(A, KNAME, 256)
    return A.text()

if __name__ == "__main__":
    out = sys.argv[1] if len(sys.argv) > 1 else "parallel_sum__linear_kernel_hedgehog__mixer_token_mlp__prompt.s"
    kw = {}
    for a in sys.argv[2:]:
        k, val = a.split("=")
        kw[k] = val if not val.isdigit() else int(val)
    open(out, "w").write(gen(**kw))
```

```python
import math, struct, sys
from asmlib import *

def f2u(x): return struct.unpack("<I", struct.pack("<f", x))[0]
LOG2E = math.log2(math.e)
OOB = 0x80000000

S, D, F, H, DH = 2048, 576, 4608, 32, 18
KA_X, KA_WQKV, KA_WPHI, KA_WO, KA_BX, KA_W1, KA_B1, KA_W2, KA_B2, KA_OUT, KA_DBG, KA_WS = [8*i for i in range(12)]
RS_OFF, RS_SZ = 0x0, 128*128
HT_OFF, HT_SZ = 0x240000, 2359296
WF_OFF, WF_SZ = 0x480000, 6*18*18*1024
U_OFF, U_SZ = 0x680000, 5308416
PHIQ_OFF, PHIQ_SZ = 0xC00000, 4718592
KVP_OFF, KVP_SZ = 0x1080000, 16*48*2048
KVF_OFF, KVF_SZ = 0x12C0000, 48*1024
WOT_OFF, WOT_SZ = 0x1300000, 16*45*1024
OB_OFF, OB_SZ = 0x2000000, 64*4*10240
PART_OFF, PART_SZ = 0x1400000, 64*16*9216
FLAG_OFF, FLAG_SZ = 0x1F00000, 0x58000
F0, F1, FU, FW, FK, FP, FO, FX, FE = 0, 256, 704, 1280, 1360, 1408, 1472, 1600, 2624
FH, FG = 2632, 2640
KNAME = "parallel_sum__linear_kernel_hedgehog__mixer_token_mlp__prompt_kernel"
SINK = 255
STAMP_OFF, STAMP_SZ = 0x3000000, 0x100000

STAGE, POFF, WOFF, NST = 36864, 0, 18432, 4
STAGE2 = STAGE
V_PA, V_PB, V_W0A, V_W1A, V_W0B, V_W1B = 2, 3, 4, 5, 6, 7
V_PF, V_WF, V_ACC = 8, 80, 96
def pf(b, t): return v(V_PF + b*36 + t*4, 4)
def wf(b, j): return v(V_WF + b*8 + j*4, 4)
def accr(st, t, j): return V_ACC + st*72 + (t*2+j)*4
def acc(st, t, j): return v(accr(st, t, j), 4)
MF = "v_mfma_f32_16x16x32_bf16"

class Cfg:
    stamp = False
    auxW1 = ""; auxW2 = ""; auxP = "sc1"; auxSt = "sc1"
    G1 = 0; G2 = 0; GA = 0
    auxOut = ""; flagpos = 1; pollpos = 1
    pts = ""; pf1b = 0; pf2w = 0; pubpos = 0; wn = 2; w0 = 2; rev2 = 0; early = 0; own = 0; ownpf = 0; GO = 4; burn = ""; w22 = 0; koff = 0; dstag = ""; wreg = 0; wpos = 3; glag = 0; hold = 1; smp = 20; prio = 0; prio1 = 0; pfpos = 0; c3s = 0; hint2 = -1; hint1 = 0; prew = 0; gdir = 0; half = 0; pf2l = 0; pf2ls = 0; ost = 0; slo2 = 1; slx = 0; slo = 4; opos = 0; dl0 = 0; dlf = 0; dlw = 0; pff = 0; wide = 0; wot1 = 0; pf1q = 0; slim = 1; unroll = 0; sl0a = 0; wlate = 0; qlim = -1; pfbar = 0; pf1a = 0; c3w2 = 0; c3w1 = 0; swap13 = 1; tlb = 0; sl1 = 0; sl2 = 0; bgo = 0; sl0 = 0; slk = 0
    dbg_nopub = 0; dbg_hot = 0; dbg = ""
    pfc = 0
    pf1 = 0
    pf1l = 0; pf1rev = 0; pf2g = 0; pf2pos = 3
    pf1pos = 0
    pf1s = 0
    pft = 0
    pf2kv = 0; pf2q = 0; pf2s = 0
    probe = ""
CFG = Cfg()

def stamp(A, i):
    if CFG.stamp: A(f"{'s_memtime' if CFG.stamp == 2 else 's_memrealtime'} s[{64+2*i}:{65+2*i}]")
def pt(A, name):
    L = CFG.pts.split(",")
    if name in L: stamp(A, 1 + L.index(name))
def stamp_flush(A):
    if not CFG.stamp: return
    A("s_waitcnt vmcnt(0)")
    stamp(A, 13)
    A("s_waitcnt lgkmcnt(0)")
    srd_off(A, 92, 26, STAMP_OFF, STAMP_SZ)
    A("s_lshl_b32 s63, s2, 3\ns_add_u32 s63, s63, s16\ns_lshl_b32 s63, s63, 6\ns_mov_b64 exec, 1\nv_mov_b32 v1, 0")
    for i in range(14):
        A(f"v_mov_b32 v2, s{64+2*i}\nbuffer_store_dword v2, v1, s[92:95], s63 offen offset:{4*i}")

def emit_compute_addr(A, s_wave, mode):
    if CFG.w22 and mode != "lin": return addr22(A, s_wave, mode)
    A("v_and_b32 v1, 63, v0")
    A(f"v_lshlrev_b32 v{V_PA}, 4, v1")
    A(f"v_add_u32 v{V_PB}, {2*STAGE}, v{V_PA}")
    if mode == "lin":
        A("v_lshrrev_b32 v8, 5, v1\nv_lshlrev_b32 v8, 12, v8\nv_bfe_u32 v9, v1, 4, 1\nv_lshl_add_u32 v8, v9, 7, v8\nv_bfe_u32 v9, v1, 2, 2\nv_lshl_add_u32 v8, v9, 4, v8")
        A("v_bfe_u32 v9, v1, 1, 1\nv_mul_u32_u24 v9, 320, v9\nv_add_u32 v8, v8, v9\nv_and_b32 v9, 1, v1\nv_lshl_add_u32 v8, v9, 3, v8")
        A(f"s_lshl_b32 s3, s{s_wave}, 10\ns_add_u32 s3, s3, {WOFF}\nv_add_u32 v{V_W0A}, s3, v8")
        A(f"v_xor_b32 v{V_W1A}, 64, v{V_W0A}\nv_add_u32 v{V_W0B}, {2*STAGE}, v{V_W0A}\nv_add_u32 v{V_W1B}, {2*STAGE}, v{V_W1A}")
        return
    A("v_lshrrev_b32 v8, 2, v1")
    A("v_and_b32 v9, 7, v8")
    if mode == "std":
        A("v_and_b32 v10, 12, v8\nv_add_u32 v8, v8, v10")
    A(f"s_lshl_b32 s3, s{s_wave}, 1")
    A("v_xor_b32 v9, s3, v9\nv_lshlrev_b32 v9, 5, v9\nv_lshl_add_u32 v9, v8, 8, v9")
    A("v_and_b32 v8, 3, v1\nv_lshl_add_u32 v9, v8, 3, v9")
    A(f"v_add_u32 v{V_W0A}, {WOFF}, v9")
    A(f"v_xor_b32 v{V_W1A}, 32, v{V_W0A}")
    A(f"v_add_u32 v{V_W0B}, {2*STAGE}, v{V_W0A}")
    A(f"v_add_u32 v{V_W1B}, {2*STAGE}, v{V_W1A}")

X22 = 80
def addr22(A, s_wave, mode):
    A("v_and_b32 v1, 63, v0")
    A(f"v_lshlrev_b32 v{V_PA}, 4, v1\nv_add_u32 v{V_PB}, {2*STAGE}, v{V_PA}")
    A(f"s_and_b32 s3, s{s_wave}, 1\ns_mul_i32 s3, s3, 5120\nv_add_u32 v4, s3, v{V_PA}\nv_add_u32 v5, s3, v{V_PB}")
    A("v_lshrrev_b32 v8, 2, v1\nv_and_b32 v9, 7, v8")
    if mode == "std": A("v_and_b32 v10, 12, v8\nv_add_u32 v8, v8, v10")
    A(f"s_lshl_b32 s3, s{s_wave}, 1")
    A("v_xor_b32 v9, s3, v9\nv_lshlrev_b32 v9, 5, v9\nv_lshl_add_u32 v9, v8, 8, v9")
    A(f"v_and_b32 v8, 3, v1\nv_lshl_add_u32 v9, v8, 3, v9\nv_add_u32 v{X22}, {WOFF}, v9")
    for jj in range(1, 4): A(f"v_xor_b32 v{X22+jj}, {32*jj}, v{X22}")
    for jj in range(4): A(f"v_add_u32 v{X22+4+jj}, {2*STAGE}, v{X22+jj}")
def pf22(b, i): return V_PF + 36*b + 4*i
def wf22(b, jj): return V_PF + 36*b + 20 + 4*jj
def reads22(slot, sub, b, mode):
    hi = slot >= 2; so = (slot & 1) * STAGE
    second = 1024 if mode == "std" else 4096
    W = []
    for jj in range(4):
        a = X22 + jj + (4 if hi else 0)
        W.append([f"ds_read_b64_tr_b16 {v(wf22(b,jj)+2*h,2)}, v{a} offset:{so + sub*8192 + h*second}" for h in range(2)])
    P = [f"ds_read_b128 {v(pf22(b,i),4)}, v{(5 if hi else 4) if i < 4 else (V_PB if hi else V_PA)} offset:{so + (sub*9+i)*1024}" for i in range(5)]
    return W[0] + W[1] + W[2] + W[3] + P
def mfmas22(b, w_is_A):
    M = []
    for blk in range(9):
        i, h = (blk >> 1, blk & 1) if blk < 8 else (4, 0)
        for j in range(2):
            p_, w_ = v(pf22(b,i),4), v(wf22(b,2*h+j),4)
            M.append(f"{MF} {acc(0,blk,j)}, {w_ if w_is_A else p_}, {p_ if w_is_A else w_}, {acc(0,blk,j)}")
    return M

def reads_P(slot, sub, b):
    a = V_PB if slot >= 2 else V_PA
    so = (slot & 1) * STAGE
    return [f"ds_read_b128 {pf(b,t)}, v{a} offset:{so + (sub*9+t)*1024}" for t in range(9)]
def reads_W(slot, sub, b, mode):
    hi = slot >= 2
    so = (slot & 1) * STAGE
    R = []
    if mode == "lin":
        a = (V_W0B, V_W1B) if hi else (V_W0A, V_W1A)
        return [f"ds_read_b64_tr_b16 {v(V_WF + b*8 + j*4 + 2*h, 2)}, v{a[h]} offset:{so + j*512}" for j in range(2) for h in range(2)]
    second = 1024 if mode == "std" else 4096
    for j in range(2):
        a = (V_W0B, V_W1B)[j] if hi else (V_W0A, V_W1A)[j]
        base = V_WF + b*8 + j*4
        R.append(f"ds_read_b64_tr_b16 {v(base,2)}, v{a} offset:{so + sub*8192}")
        R.append(f"ds_read_b64_tr_b16 {v(base+2,2)}, v{a} offset:{so + sub*8192 + second}")
    return R

DBG = {"on": False}
def dbg(x): return DBG["on"] and x in CFG.dbg.split(",")
def block(A, M, R, barrier):
    if dbg("nomfma"): M = ["s_nop 3"]*len(M)
    if dbg("noread"): R = []
    if dbg("noreadP"): R = [r for r in R if "tr_b16" in r]
    if dbg("halfP"): R = [r for i, r in enumerate(R) if "tr_b16" in r or i % 2]
    A("s_waitcnt lgkmcnt(0)")
    if barrier: A("s_barrier")
    ri = 0
    for m in M:
        A(m)
        if ri < len(R):
            if R[ri]: A(R[ri])
            ri += 1
    assert ri == len(R)

def mfmas(st, pb, wb, w_is_A):
    M = []
    for t in range(9):
        for j in range(2):
            a, b = (wf(wb,j), pf(pb,t)) if w_is_A else (pf(pb,t), wf(wb,j))
            M.append(f"{MF} {acc(st,t,j)}, {a}, {b}, {acc(st,t,j)}")
    return M

def emit_compute_loop(A, n, mode, w_is_A, s_cnt, first=None, lastfill=None, hooks=None, loopend=None, more=None, own=False):
    lin = mode == "lin"
    if own:
        rd = lambda sl, sub, b: reads_W(sl, sub, b, mode) + reads_P(sl, sub, b)
        A("s_cmp_ge_u32 s2, 144\ns_cbranch_scc1 K2_cn")
        pt(A, "own")
        for r in rd(0, 0, 0): A(r)
        for k in range(4): block(A, mfmas(0, k & 1, k & 1, w_is_A[0]), rd((k+1) >> 1, (k+1) & 1, (k+1) & 1) if k < 3 else [], False)
        A("s_barrier")
        if first: first()
        for r in rd(2, 0, 0): A(r)
        A(f"s_mov_b32 s{s_cnt}, {(n - 1) // NST}\ns_branch K2_c2")
        A.label("K2_cn")
    A("s_barrier")
    if first: first()
    w22 = CFG.w22 and not lin
    for r in (reads22(0, 0, 0, mode) if w22 else reads_W(0, 0, 0, mode) + reads_P(0, 0, 0)): A(r)
    def stage(i, last):
        slot = i % NST; nxt = (i+1) % NST
        if lin:
            wb = i & 1
            block(A, mfmas(0, 0, wb, w_is_A[0]), reads_P(slot, 1, 1), False)
            block(A, mfmas(1, 1, wb, w_is_A[1]), (lastfill or []) if last else reads_W(nxt, 0, wb ^ 1, mode) + reads_P(nxt, 0, 0), not last)
        elif w22:
            block(A, mfmas22(0, w_is_A[0]), reads22(slot, 1, 1, mode), False)
            block(A, mfmas22(1, w_is_A[1]), (lastfill or []) if last else reads22(nxt, 0, 0, mode), not last)
        else:
            x0, x1 = (more or {}).get(i, ([], []))
            block(A, mfmas(0, 0, 0, w_is_A[0]), reads_W(slot, 1, 1, mode) + reads_P(slot, 1, 1) + x0, False)
            block(A, mfmas(0, 1, 1, w_is_A[1]), (lastfill or []) if last else reads_W(nxt, 0, 0, mode) + reads_P(nxt, 0, 0) + x1, not last)
    if CFG.unroll and mode == ("std", "pi")[CFG.unroll-1]:
        for i in range(n):
            stage(i, i == n-1); pt(A, f"s{i}")
            if i == 3 and loopend: loopend()
        return
    nloop = (n - 1) // NST
    L = A.newlabel("Lc")
    A(f"s_mov_b32 s{s_cnt}, {nloop}")
    A.label(L)
    for i in range(NST):
        if own and i == 2: A.label("K2_c2")
        stage(i, False)
    if loopend: loopend()
    A(f"s_sub_u32 s{s_cnt}, s{s_cnt}, 1\ns_cmp_lg_u32 s{s_cnt}, 0\ns_cbranch_scc1 {L}")
    for i in range(nloop*NST, n):
        if hooks and i in hooks: hooks[i]()
        stage(i, i == n-1)

def seq_off(A, s_off, step):
    A(f"s_cmp_ge_u32 s59, s57\ns_cselect_b32 s62, 2, 0\ns_add_u32 s62, s62, s59\ns_mul_i32 s62, s62, s19\ns_add_u32 s{s_off}, s35, s62")
def rot_init(A, G, s_rot, s_off, step):
    if G == "seq":
        A(f"s_mov_b32 s35, s{s_off}\ns_sub_u32 s60, s58, s59\ns_mov_b32 s61, s58\ns_mov_b32 s19, {step}")
        if CFG.rev2: A(f"s_bitcmp1_b32 s2, 0\ns_cselect_b32 s62, {17*step}, 0\ns_cselect_b32 s19, {-step}, s19\ns_add_u32 s35, s35, s62")
        return seq_off(A, s_off, step)
    if DBG.get("koff"):
        A(f"s_and_b32 s58, s2, 6\ns_lshl_b32 s58, s58, 2\ns_mul_i32 s62, s58, {step}\ns_add_u32 s{s_off}, s{s_off}, s62\ns_sub_u32 s58, 32, s58")
    if not G: return
    A(f"s_mul_i32 s62, s{s_rot}, {step}\ns_add_u32 s{s_off}, s{s_off}, s62")
    A(f"s_sub_u32 s60, {G}, s{s_rot}\ns_mov_b32 s61, {G}")
def rot_step(A, G, s_off, step):
    if dbg("noadv"): return
    if dbg("k2W") and step == 64*4096: return
    if dbg("k2P") and step == 18432: return
    if "k1W" in CFG.dbg and step == 64*9216: return
    if "k1P" in CFG.dbg and DBG.get("k1P"): return
    if G == "none": return
    if G == "seq":
        A("s_add_u32 s59, s59, 1\ns_sub_u32 s60, s60, 1\ns_cmp_eq_u32 s60, 0\ns_cselect_b32 s62, s58, 0\ns_cselect_b32 s60, s58, s60\ns_sub_u32 s59, s59, s62")
        A("s_sub_u32 s61, s61, 1\ns_cmp_eq_u32 s61, 0\ns_cselect_b32 s62, s58, 0\ns_cselect_b32 s61, s58, s61\ns_add_u32 s59, s59, s62")
        return seq_off(A, s_off, step)
    A(f"s_add_u32 s{s_off}, s{s_off}, {step}")
    if DBG.get("koff"):
        A(f"s_sub_u32 s58, s58, 1\ns_cmp_eq_u32 s58, 0\ns_cselect_b32 s62, {32*step}, 0\ns_sub_u32 s{s_off}, s{s_off}, s62")
    if not G: return
    A(f"s_sub_u32 s60, s60, 1\ns_cmp_eq_u32 s60, 0\ns_cselect_b32 s62, {G*step}, 0\ns_cselect_b32 s60, {G}, s60\ns_sub_u32 s{s_off}, s{s_off}, s62")
    A(f"s_sub_u32 s61, s61, 1\ns_cmp_eq_u32 s61, 0\ns_cselect_b32 s62, {G*step}, 0\ns_cselect_b32 s61, {G}, s61\ns_add_u32 s{s_off}, s{s_off}, s62")

def emit_loader(A, n, cnt, issue, s_cnt, extra=None, hook=None, post=None, pre=None, mid=None, sched=None, loopend=None, alt=None):
    extra = extra or []
    tot = n + len(extra)
    hook = hook or {}
    def c(i): return 0 if i >= tot else (cnt + (i in hook) if i < n else extra[i-n][0])
    nloop = (n - 3) // NST
    L = A.newlabel("Ll")
    A(f"s_mov_b32 s{s_cnt}, {nloop}")
    if alt: alt(issue, L)
    if pre: pre()
    for i in range(3): issue(i)
    if mid: mid()
    A.label(L)
    for i in range(NST):
        if i >= 2: A.label(L + f"_{i}")
        A(f"s_waitcnt vmcnt({2*cnt})\ns_barrier")
        issue((i+3) % NST)
    if loopend: loopend()
    A(f"s_sub_u32 s{s_cnt}, s{s_cnt}, 1\ns_cmp_lg_u32 s{s_cnt}, 0\ns_cbranch_scc1 {L}")
    def run_sched(sched):
        nbar, after, need, lg = sched
        order = [(k, cnt) for k in range(nloop*NST + 3)]
        for i in range(nloop*NST, nbar):
            name = need.get(i, i)
            pos = max(p for p, (k, _) in enumerate(order) if k == name)
            A(f"s_waitcnt vmcnt({sum(c_ for _, c_ in order[pos+1:])})" + (f" lgkmcnt({lg[i]})" if i in lg else "") + "\ns_barrier")
            if i+3 in hook: hook[i+3](); order.append((i+3, 1))
            if i+3 < n: issue((i+3) % NST); order.append((i+3, cnt))
            for name, c_, emit in after.get(i, []):
                emit(); order.append((name, c_))
    if sched:
        X = A.newlabel("Lz")
        if len(sched) > 1: A(f"{sched[1][0]}\ns_cbranch_scc1 {X}_b")
        run_sched(sched[0])
        if len(sched) > 1:
            A(f"s_branch {X}\n{X}_b:")
            run_sched(sched[1][1])
        A.label(X)
        return
    for i in range(nloop*NST, tot):
        A(f"s_waitcnt vmcnt({c(i+1)+c(i+2) + (post[0] if post and i > n-post[2] else 0)})\ns_barrier")
        if post and i == n-post[2]: post[1]()
        if i+3 in hook: hook[i+3]()
        if i+3 < n: issue((i+3) % NST)
        elif i+3 < tot: extra[i+3-n][1]((i+3) % NST)

def emit_loader_lin(A, n, per, ldsoff, s_lw, srdP, s_off, s_cnt, s_tmp, aux="", G=0, s_rot=59, extra=None, post=None, pre=None, hook=None, sched=None, loopend=None, alt=None):
    rot_init(A, G, s_rot, s_off, 2*per*1024)
    A("v_and_b32 v1, 63, v0\nv_lshlrev_b32 v1, 4, v1")
    A(f"s_mul_i32 s{s_tmp}, s{s_lw}, {per*1024}")
    A(f"v_add_u32 v2, s{s_tmp}, v1")
    for q in range(1, (per+3)//4): A(f"v_add_u32 v{2+q}, {q*4096}, v2")
    def issue(slot):
        for j in range(per):
            if j % 4 == 0:
                A(f"s_add_u32 m0, s{s_tmp}, {slot*STAGE + ldsoff + (j//4)*4096}\ns_nop 0")
            if not dbg("noload"): A(f"buffer_load_dwordx4 v{2+j//4}, {s(srdP,4)}, s{s_off} offen offset:{(j%4)*1024} {aux} lds")
        rot_step(A, G, s_off, 2*per*1024)
    emit_loader(A, n, per, issue, s_cnt, extra, hook=hook, post=post, pre=pre, sched=sched, loopend=loopend, alt=alt)

def emit_loader_W(A, n, mode, s_lw, srdW, s_off, stride, s_cnt, s_tmp, aux="", G=0, s_rot=59, extra=None, hook=None, post=None, every=None, mid=None, sched=None, loopend=None, alt=None):
    rot_init(A, G, s_rot, s_off, 64*stride)
    A("v_and_b32 v1, 63, v0\nv_lshrrev_b32 v10, 4, v1\nv_and_b32 v11, 15, v1")
    A(f"s_lshl_b32 s{s_tmp}, s{s_lw}, 5\nv_add_u32 v12, s{s_tmp}, v10")
    A(f"s_mov_b32 s3, {stride}\nv_mul_lo_u32 v12, v12, s3")
    for par in range(2):
        A(f"v_or_b32 v13, {4*par}, v10\nv_lshlrev_b32 v13, 1, v13\nv_xor_b32 v13, v13, v11")
        A("v_lshl_add_u32 v13, v13, 4, v12")
        for j in range(8):
            key = (j & 1) if mode == "pi" else ((j >> 1) & 1)
            if key == par:
                A(f"v_add_u32 v{2+j}, {4*j*stride - (j%4)*1024}, v13")
    A(f"s_lshl_b32 s{s_tmp}, s{s_lw}, 13")
    def issue(slot, adv=True):
        for j in range(8):
            if j % 4 == 0:
                A(f"s_add_u32 m0, s{s_tmp}, {slot*STAGE + WOFF + (j//4)*4096}\ns_nop 0")
            if not dbg("noload"): A(f"buffer_load_dwordx4 v{2+j}, {s(srdW,4)}, s{s_off} offen offset:{(j%4)*1024} {aux} lds")
        if every: every()
        rot_step(A, G if adv else 'none', s_off, 64*stride)
    emit_loader(A, n, 9 if every else 8, issue, s_cnt, extra, hook, post, mid=mid, sched=sched, loopend=loopend, alt=alt)

def pf_w1(A, srdn, s_col, s_idx, step, count, vl, vt, lim=None, rev=0, lanes=64, base=0):
    for c in range(count):
        if rev: A(f"s_sub_u32 s57, {rev-1}, s{s_idx}\ns_lshl_b32 s57, s57, 6")
        else: A(f"s_mul_i32 s57, s{s_idx}, {lanes}")
        if base: A(f"s_add_u32 s57, s57, {base}")
        A(f"v_add_u32 v{vt}, s57, v{vl}")
        if CFG.koff:
            A(f"s_and_b32 s57, s2, 6\ns_mul_i32 s57, s57, 2560\nv_add_u32 v{vt}, s57, v{vt}\nv_subrev_u32 v{vt+1}, 20480, v{vt}\nv_min_u32 v{vt}, v{vt}, v{vt+1}")
        A(f"v_mul_u32_u24 v{vt+1}, 52429, v{vt}\nv_lshrrev_b32 v{vt+1}, 19, v{vt+1}")
        A(f"v_mul_u32_u24 v{vt+1}, {9216-1280}, v{vt+1}\nv_lshl_add_u32 v{vt}, v{vt}, 7, v{vt+1}")
        if lanes < 64: A(f"s_bfm_b64 exec, {lanes}, 0")
        A(f"buffer_load_dword v{SINK}, v{vt}, {s(srdn,4)}, s{s_col} offen")
        if lanes < 64: A("s_mov_b64 exec, -1")
        A(f"s_add_u32 s{s_idx}, s{s_idx}, {step}")
        if lim is not None: A(f"s_waitcnt vmcnt({lim})")
def pf_code(A, start):
    L = A.newlabel("Lpc")
    A(f"s_getpc_b64 s[60:61]\n{L}:\ns_add_u32 s60, s60, {start}-{L}\ns_addc_u32 s61, s61, 0")
    A(f"v_lshlrev_b32 v90, 7, v0\nv_min_u32 v90, CODE_END-{start}-4, v90\nglobal_load_dword v{SINK}, v90, s[60:61]")
def pf_w1_col(A, s_col):
    A(f"s_and_b32 s{s_col}, s2, 7\ns_mul_i32 s{s_col}, s{s_col}, 18\ns_lshr_b32 s{s_col}, s{s_col}, 2\ns_lshl_b32 s{s_col}, s{s_col}, 8")
def pf_w2(A, s_ptr, s_idx, step, count, lim=None, srdn=52):
    if not count: return
    srd(A, srdn, s_ptr, S*F*2)
    A(f"s_bfe_u32 s57, s2, 0x20001\ns_mul_i32 s57, s57, {1152*4096}\ns_and_b32 s58, s2, 1\ns_lshl_b32 s58, s58, 11\ns_add_u32 s57, s57, s58")
    if CFG.rev2:
        A(f"s_sub_u32 s58, 287, s{s_idx}\ns_bitcmp1_b32 s2, 0\ns_cselect_b32 s58, s58, s{s_idx}\ns_lshl_b32 s58, s58, 14\ns_add_u32 s57, s57, s58")
        A(f"s_mov_b32 s58, {step*16384}\ns_bitcmp1_b32 s2, 0\ns_cselect_b32 s58, {-step*16384}, s58")
    else: A(f"s_lshl_b32 s58, s{s_idx}, 14\ns_add_u32 s57, s57, s58\ns_mov_b32 s58, {step*16384}")
    A("v_bfe_u32 v30, v0, 4, 2\nv_lshlrev_b32 v30, 12, v30\nv_and_b32 v31, 15, v0\nv_lshl_add_u32 v30, v31, 7, v30")
    for c in range(count):
        A(f"buffer_load_dword v{SINK}, v30, {s(srdn,4)}, s57 offen\ns_add_u32 s57, s57, s58")
        if lim is not None: A(f"s_waitcnt vmcnt({lim})")

def pf_w2c3(A, s_ptr, s_idx, step, count, lim=None):
    srd(A, 52, s_ptr, S*F*2)
    A(f"s_bfe_u32 s57, s2, 0x20001\ns_mul_i32 s57, s57, {1152*4096}\ns_and_b32 s58, s2, 1\ns_lshl_b32 s58, s58, 11\ns_add_u32 s57, s57, s58")
    A(f"s_lshl_b32 s58, s{s_idx}, 17\ns_add_u32 s57, s57, s58\ns_add_u32 s57, s57, 384")
    A("v_bfe_u32 v30, v0, 1, 5\nv_lshlrev_b32 v30, 12, v30\nv_and_b32 v31, 1, v0\nv_lshl_add_u32 v30, v31, 10, v30")
    for c in range(count):
        L = A.newlabel("Lc3")
        A(f"s_cmp_ge_u32 s{s_idx}, {36 - c*step}\ns_cbranch_scc1 {L}")
        A(f"buffer_load_dword v{SINK}, v30, s[52:55], s57 offen\ns_add_u32 s57, s57, {step << 17}")
        if lim is not None: A(f"s_waitcnt vmcnt({lim})")
        A.label(L)

SPIN_MAX = 60000
def flag_setup(A):
    srd_off(A, 96, 26, FLAG_OFF, FLAG_SZ)
    A(f"s_load_dword s100, s[96:97], {FE*128}")
def tag_make(A):
    A("s_add_u32 s100, s100, 1\ns_mul_i32 s101, s100, 0x9e3779b1\ns_add_u32 s101, s101, 0x7f4a7c15")
def raise_flag(A, s_off, vt):
    A(f"v_mov_b32 v{vt}, s100\nv_mov_b32 v{vt+1}, s101\nv_mov_b32 v{vt+2}, s{s_off}")
    if CFG.wide:
        A(f"v_and_b32 v{vt+2}, 7, v0\nv_lshl_add_u32 v{vt+2}, v{vt+2}, 3, s{s_off}")
    A(f"s_mov_b64 exec, {0xff if CFG.wide else 1}\nbuffer_store_dwordx2 {v(vt,2)}, v{vt+2}, s[96:99], 0 offen sc1\ns_mov_b64 exec, -1")
def clear_flag(A, s_off, vt):
    if not CFG.prew: return
    A(f"v_and_b32 v{vt}, 31, v0\nv_lshl_add_u32 v{vt}, v{vt}, 2, s{s_off}\nv_mov_b32 v{vt+1}, 0\ns_bfm_b64 exec, 32, 0\nbuffer_store_dword v{vt+1}, v{vt}, s[96:99], 0 offen sc1\ns_mov_b64 exec, -1")
def poll(A, vaddr, vtmp, sleep=0):
    L = A.newlabel("Lp"); X = A.newlabel("Lx")
    A(f"s_mov_b32 s63, {SPIN_MAX}")
    A.label(L)
    A(f"buffer_load_dwordx2 {v(vtmp,2)}, v{vaddr}, s[96:99], 0 offen sc1")
    A(f"s_waitcnt vmcnt(0)\nv_cmp_ne_u64 vcc, s[100:101], {v(vtmp,2)}\ns_sub_u32 s63, s63, 1\ns_cbranch_scc1 {X}\ns_nop 2\ns_cbranch_vccz {X}")
    A("s_mov_b64 exec, vcc")
    if sleep: A(f"s_sleep {sleep}")
    A(f"s_branch {L}")
    A.label(X)
    A("s_mov_b64 exec, -1")
def poll2(A, vaddr, vtmp, sleep1, sleep2, skip=None, vfirst=None):
    if sleep1:
        L = A.newlabel("Ls")
        if skip: A(f"{skip}\ns_cbranch_scc1 {L}")
        A("s_mov_b64 exec, 1")
        poll(A, vaddr if vfirst is None else vfirst, vtmp, sleep1)
        A.label(L)
    poll(A, vaddr, vtmp, sleep2)

def wave_id(A, sd):
    A(f"v_lshrrev_b32 v1, 6, v0\ns_nop 1\nv_readfirstlane_b32 s{sd}, v1")

def reduce32(A, regs, tmp):
    pad = "s_nop 1" if len(regs) == 1 else "s_nop 0"
    A("s_nop 1")
    for pat in ["quad_perm:[1,0,3,2]", "quad_perm:[2,3,0,1]", "row_half_mirror", "row_mirror"]:
        for r in regs:
            A(f"v_add_f32_dpp v{r}, v{r}, v{r} {pat} row_mask:0xf bank_mask:0xf")
        A(pad)
    for i, r in enumerate(regs): A(f"v_mov_b32 v{tmp+i}, v{r}")
    A("s_nop 1")
    for i, r in enumerate(regs): A(f"v_permlane16_swap_b32 v{r}, v{tmp+i}")
    A("s_nop 1")
    for i, r in enumerate(regs): A(f"v_add_f32 v{r}, v{r}, v{tmp+i}")

XRS, HRS = 1168, 1216
P0 = 3*STAGE
LDS_BYTES = 163840
K0_HL = P0 + 256
K0_DUMMY = K0_HL + 16*HRS
K0_LDS = 83968
def seam_pre(A):
    tag_make(A)
    A(f"s_lshl_b32 s49, s2, 2\ns_add_u32 s49, s49, s16\ns_add_u32 s49, s49, {F1}\ns_cmp_eq_u32 s16, 4\ns_cselect_b32 s49, s2, s49\ns_lshl_b32 s49, s49, 7")
    A(f"s_cmp_gt_u32 s16, 4\ns_cselect_b32 s49, {OOB}, s49")
    A(f"s_load_dwordx4 s[4:7], s[0:1], {KA_W1}\ns_load_dwordx2 s[50:51], s[0:1], {KA_W2}")
def gen_k0(A):
    kernel_head(A, KNAME)
    stamp(A, 0)
    A("s_cmp_ge_u32 s2, 256\ns_cbranch_scc1 K_end")
    A(f"s_load_dwordx4 s[4:7], s[0:1], {KA_X}\ns_load_dwordx2 s[26:27], s[0:1], {KA_WS}")
    A(f"s_load_dwordx4 s[20:23], s[0:1], {KA_WPHI}\ns_load_dwordx2 s[48:49], s[0:1], {KA_W1}")
    A("s_sub_u32 s44, s2, 112\ns_cmp_ge_u32 s44, 128\ns_cbranch_scc1 K0_pf")
    X, P, Q = 20, 8, 56
    A("v_lshrrev_b32 v2, 5, v0\nv_and_b32 v3, 31, v0")
    A("v_mul_u32_u24 v4, 1152, v2\nv_lshl_add_u32 v4, v3, 4, v4")
    A(f"v_cmp_gt_u32 s[30:31], 24, v3\nv_mov_b32 v5, {OOB}")
    A("s_mul_i32 s3, s44, 18432")
    A("v_cndmask_b32 v4, v5, v4, s[30:31]")
    A("s_waitcnt lgkmcnt(0)")
    srd(A, 8, 4, S*D*2)
    for j in range(3): A(f"buffer_load_dwordx4 {v(P+4*j,4)}, v4, s[8:11], s3 offen offset:{384*j}")
    A("s_branch K0_ln")
    A.label("K0_pf")
    wave_id(A, 16)
    def pf_setup():
        flag_setup(A)
        srd(A, 52, 48, S*F*2)
        pf_w1_col(A, 46)
        A("s_and_b32 s47, s2, 0x78\ns_add_u32 s47, s47, s16\nv_and_b32 v1, 63, v0")
    def pf_round(r):
        if not CFG.pf1: return 0
        pf_w1(A, 52, 46, 47, 128, 1, 1, 88, lanes=CFG.pf1)
        return 1
    A("s_cmp_ge_u32 s2, 108\ns_cbranch_scc1 K0_nofold")
    A("s_mul_i32 s18, s2, 7282\ns_lshr_b32 s18, s18, 16")
    A("s_mul_i32 s19, s18, 9\ns_sub_u32 s17, s2, s19")
    A("s_and_b32 s28, s18, 3\ns_lshr_b32 s29, s18, 2")
    F_W, F_P = P0 + 18432, P0 + 18432 + 18432
    for r in range(3):
        A(f"v_add_u32 v4, {512*r}, v0\nv_mul_u32_u24 v5, 58255, v4\nv_lshrrev_b32 v5, 20, v5")
        A(f"v_mul_u32_u24 v5, {3456-288}, v5\nv_lshl_add_u32 v{12+r}, v4, 4, v5")
    A(f"s_mul_i32 s32, s17, {64*3456}\ns_mul_i32 s33, s29, 1152\ns_add_u32 s32, s32, s33\ns_mul_i32 s33, s28, 288\ns_add_u32 s32, s32, s33")
    A(f"s_mul_i32 s33, s28, 5184\nv_lshlrev_b32 v15, 4, v0\nv_subrev_u32 v15, 2048, v15\ns_lshl_b32 s34, s16, 10\ns_add_u32 m0, s34, {F_W}")
    A("s_waitcnt lgkmcnt(0)")
    srd(A, 8, 6, D*3*D*2)
    A(f"buffer_load_dwordx4 v12, s[8:11], s32 offen lds\ns_add_u32 m0, s34, {F_W + 8192}")
    srd(A, 12, 20, H*DH*DH*2)
    A(f"buffer_load_dwordx4 v13, s[8:11], s32 offen lds\ns_add_u32 m0, s34, {F_W + 16384}\ns_cmp_ge_u32 s16, 2\ns_cbranch_scc1 K0_f1")
    A("buffer_load_dwordx4 v14, s[8:11], s32 offen lds")
    A.label("K0_f1")
    A(f"s_add_u32 m0, s34, {F_P - 2048}\ns_cmp_eq_u32 s29, 2\ns_cselect_b32 s3, 1, 6\ns_sub_u32 s35, s16, 2\ns_cmp_ge_u32 s35, s3\ns_cbranch_scc1 K0_f2")
    A("buffer_load_dwordx4 v15, s[12:15], s33 offen lds")
    A.label("K0_f2")
    pt(A, "fi")
    pf_setup()
    if CFG.pfbar: A("s_barrier")
    if CFG.prew:
        A(f"s_lshl_b32 s3, s2, 2\ns_add_u32 s3, s3, s16\ns_add_u32 s3, s3, {F1}\ns_lshl_b32 s3, s3, 7\ns_cmp_lt_u32 s16, 4\ns_cselect_b32 s3, s3, {OOB}")
        clear_flag(A, 3, 90)
    npf = (pf_round(0) if CFG.pfpos == 0 else 0) + (1 if CFG.prew else 0)
    A("s_lshr_b32 s19, s16, 2\ns_and_b32 s43, s16, 3\ns_lshl_b32 s30, s43, 1\ns_add_u32 s30, s30, s19")
    srd_off(A, 20, 26, WF_OFF, WF_SZ)
    A("v_and_b32 v2, 15, v1\nv_lshrrev_b32 v3, 4, v1")
    A("v_and_b32 v4, 12, v2\nv_add_u32 v4, v4, v2")
    A(f"v_mul_u32_u24 v4, 288, v4\nv_lshl_add_u32 v4, v3, 4, v4\ns_mul_i32 s33, s30, 36\ns_and_b32 s39, s33, 15\ns_sub_u32 s33, s33, s39\ns_add_u32 s33, s33, {F_W}")
    A("v_add_u32 v76, s33, v4\ns_lshr_b32 s39, s39, 1\nv_lshlrev_b32 v11, 3, v3\nv_subrev_u32 v11, s39, v11")
    A("s_mov_b32 s40, 0x00030003\ns_mov_b32 s41, 0x00030003")
    B = 28
    def a_reads():
        pt(A, "f0")
        A(f"s_waitcnt vmcnt({npf})")
        pt(A, "x")
        if CFG.pfpos == 1: pf_round(0)
        A("s_barrier")
        pt(A, "f1")
        for q in range(4):
            A(f"ds_read_b128 {v(12+4*q,4)}, v76 offset:{288*(32*(q>>1) + 4*(q&1))}")
    A("s_cmp_eq_u32 s29, 2\ns_cbranch_scc1 K0_ident")
    A("s_mul_i32 s34, s19, 18\nv_add_u32 v5, s34, v2")
    A(f"s_lshl_b32 s35, s43, 6\ns_add_u32 s35, s35, {P0}")
    for nt in range(2):
        if nt: A("v_add_u32 v5, 16, v5")
        A(f"v_lshrrev_b32 v6, 2, v5\nv_lshlrev_b32 v6, 10, v6\nv_and_b32 v7, 3, v5\nv_lshl_add_u32 v6, v7, 4, v6")
        A(f"v_lshl_add_u32 v6, v3, 8, v6\nv_add_u32 v{52+nt}, s35, v6")
    A("s_lshr_b32 s34, s28, 1\ns_add_u32 s34, s34, 4\ns_and_b32 s35, s28, 1\ns_mul_i32 s35, s35, 9216")
    A("s_cmp_eq_u32 s29, 0\ns_cselect_b32 s34, s34, s28\ns_cselect_b32 s35, s35, 0")
    A(f"s_mov_b32 s42, {f2u(LOG2E)}")
    A(f"v_mul_i32_i24 v5, 36, v11\nv_lshl_add_u32 v5, v2, 1, v5\ns_mul_i32 s33, s30, 648\ns_add_u32 s33, s33, {F_P}\nv_add_u32 v80, s33, v5")
    for q in range(4): A(f"v_add_u32 v5, {2*q}, v11\nv_cmp_gt_u32 {s((36, 44, 58, 60)[q],2)}, 18, v5")
    a_reads()
    for nt in range(2):
        for ii in range(8):
            A(f"ds_read_u16 v{36+8*nt+ii}, v80 offset:{36*ii + 32*nt}")
    A("s_waitcnt lgkmcnt(0)")
    for q in range(8): A(f"v_lshl_or_b32 v{B+q}, v{36+2*q+1}, 16, v{36+2*q}")
    for q in range(8): A(f"v_cndmask_b32 v{B+q}, 0, v{B+q}, {s((36, 44, 58, 60)[q&3],2)}")
    A("s_branch K0_fmm")
    A.label("K0_ident")
    A("v_sub_u32 v5, v2, v11\nv_add_u32 v6, 16, v5")
    A("v_mov_b32 v7, 0x3f80\nv_mov_b32 v8, 0x3f800000")
    for nt in range(2):
        for q in range(4):
            A(f"v_cmp_eq_u32 vcc, {2*q}, v{5+nt}\nv_cmp_eq_u32 s[44:45], {2*q+1}, v{5+nt}\ns_nop 1")
            A(f"v_cndmask_b32 v9, 0, v7, vcc\nv_cndmask_b32 v{B+4*nt+q}, v9, v8, s[44:45]")
    A(f"v_lshlrev_b32 v6, 8, v3\nv_lshl_add_u32 v6, v2, 4, v6\nv_add_u32 v6, {P0}, v6")
    A("s_lshl_b32 s34, s30, 10\nv_add_u32 v52, s34, v6")
    A("s_lshl_b32 s34, s30, 5\ns_add_u32 s34, s34, 8192\nv_add_u32 v53, s34, v6")
    A("s_mov_b32 s34, s28\ns_mov_b32 s35, 9216\ns_mov_b32 s42, 1.0")
    a_reads()
    A("s_waitcnt lgkmcnt(0)")
    A.label("K0_fmm")
    pt(A, "f2")
    A("s_mul_i32 s34, s34, 18\ns_lshl_b32 s33, s17, 1\ns_add_u32 s34, s34, s33\ns_mul_i32 s34, s34, 18432\ns_add_u32 s34, s34, s35")
    DD = 56
    for kbi in range(2):
        for nt in range(2):
            for a in range(2):
                A(f"{MF} {v(DD+16*kbi+8*nt+4*a,4)}, {v(12+8*kbi+4*a,4)}, {v(B+4*nt,4)}, 0")
    seam_pre(A)
    A("s_mov_b32 s43, s42\ns_lshl_b32 s33, s16, 10\nv_lshlrev_b32 v89, 4, v1\ns_and_b32 s3, s16, 1\ns_mul_i32 s35, s3, 9216")
    A(f"s_add_u32 s37, s33, {P0}\nv_add_u32 v90, s37, v89\ns_add_u32 s35, s35, {P0 + 8192}\nv_add_u32 v91, s35, v89")
    A("s_mul_i32 s3, s3, 18432\ns_add_u32 s37, s34, s3\ns_add_u32 s37, s37, 8192\ns_add_u32 s17, s34, s33")
    for kbi in range(2):
        for nt in range(2):
            d0 = DD+16*kbi+8*nt
            for i in range(4): A(f"v_pk_mul_f32 {v(d0+2*i,2)}, {v(d0+2*i,2)}, s[42:43]")
            o = 36 + 8*kbi + 4*nt
            for i in range(4): A(f"v_cvt_pk_bf16_f32 v{o+i}, v{d0+2*i}, v{d0+2*i+1}")
            if nt == 0: A(f"ds_write_b128 v52, {v(o,4)} offset:{9216*kbi}")
    A("s_mov_b64 exec, s[40:41]\nds_write_b128 v53, v[40:43]\nds_write_b128 v53, v[48:51] offset:9216\ns_mov_b64 exec, -1")
    A("s_waitcnt lgkmcnt(0)\ns_barrier\ns_cmp_ge_u32 s16, 4\ns_cbranch_scc1 K0_seam")
    pt(A, "st0")
    for q in range(4): A(f"ds_read_b128 {v(12+4*q,4)}, v90 offset:{9216*(q>>1) + 4096*(q&1)}")
    A("ds_read_b128 v[28:31], v91")
    for q in range(4):
        A(f"s_waitcnt lgkmcnt({4-q})\nbuffer_store_dwordx4 {v(12+4*q,4)}, v89, s[20:23], s17 offen {CFG.auxSt}\ns_add_u32 s17, s17, {4096 if q != 1 else 18432-4096}")
    A("s_branch K0_last")
    A.label("K0_nofold")
    A("s_waitcnt lgkmcnt(0)")
    pf_setup()
    if CFG.pff:
        A(f"s_sub_u32 s3, s2, 240\ns_cmp_ge_u32 s3, 6\ns_cbranch_scc1 K0_nof\ns_lshl_b32 s3, s3, 16\nv_lshl_add_u32 v90, v0, 7, s3\nbuffer_load_dword v{SINK}, v90, s[96:99], 0 offen sc1")
        A.label("K0_nof")
    if CFG.pfc:
        A("s_cmp_lt_u32 s2, 248\ns_cbranch_scc1 K0_noc")
        pf_code(A, "K0_ln")
        A.label("K0_noc")
    A("s_cmp_ge_u32 s2, 240\ns_cbranch_scc1 K1_spare")
    pf_round(0)
    A("s_waitcnt lgkmcnt(0)")
    seam_pre(A)
    A("s_waitcnt lgkmcnt(0)\ns_barrier\ns_branch K0_seam")
    A.label("K0_ln")
    pt(A, "fi")
    flag_setup(A)
    wave_id(A, 16)
    A(f"v_lshlrev_b32 v6, 2, v2\nv_add_u32 v6, {P0}, v6")
    A(f"v_mul_u32_u24 v7, {HRS}, v2\nv_lshl_add_u32 v7, v3, 4, v7\nv_add_u32 v7, {K0_HL}, v7")
    srd_off(A, 12, 26, RS_OFF, RS_SZ)
    srd_off(A, 20, 26, HT_OFF, HT_SZ)
    A(f"s_mov_b32 s33, {f2u(1.0/576)}\ns_mov_b32 s34, {f2u(1e-5)}")
    A("v_and_b32 v1, 63, v0\nv_and_b32 v2, 15, v1\nv_lshrrev_b32 v3, 4, v1")
    A(f"s_lshl_b32 s3, s16, 6\ns_and_b32 s35, s16, 1\ns_lshl_b32 s36, s35, 6\nv_lshlrev_b32 v69, 2, v2\nv_add_u32 v68, {P0}, v69\ns_lshl_b32 s17, s44, 7")
    A("v_bfe_u32 v4, v1, 2, 2\nv_lshrrev_b32 v5, 5, v1\nv_lshl_add_u32 v4, v5, 3, v4")
    A(f"v_mul_u32_u24 v4, {HRS}, v4\nv_and_b32 v3, 1, v3\nv_lshl_add_u32 v4, v3, 5, v4\nv_and_b32 v44, 3, v1\nv_lshl_add_u32 v4, v44, 3, v4\nv_add_u32 v4, {K0_HL}, v4")
    A("v_add_u32 v72, s36, v4\nv_add_u32 v71, s3, v4")
    A("v_lshlrev_b32 v2, 4, v2\nv_lshl_add_u32 v2, v5, 8, v2")
    A(f"s_mov_b32 s38, {589824-9216}\ns_lshl_b32 s3, s16, 1\ns_lshl_b32 s36, s35, 1\ns_add_u32 s36, s36, 32")
    for n in range(3):
        A(f"v_add_u32 v4, s{3 if n < 2 else 36}, v3")
        if n == 1: A("v_add_u32 v4, 16, v4")
        A(f"v_mul_u32_u24 v44, 57, v4\nv_lshrrev_b32 v44, 9, v44\nv_lshl_add_u32 v4, v4, 10, v2\nv_mad_u32_u24 v{73+n}, v44, s38, v4")
    A("s_lshr_b32 s18, s44, 1\ns_mul_i32 s18, s18, 9216\ns_and_b32 s19, s44, 1\ns_lshl_b32 s19, s19, 9\ns_add_u32 s18, s18, s19")
    def xp(i): return v(X+2*i, 2)
    if CFG.prew:
        A(f"s_lshl_b32 s3, s2, 7\ns_cmp_eq_u32 s16, 4\ns_cselect_b32 s3, s3, {OOB}")
        clear_flag(A, 3, 90)
    pt(A, "f0")
    A(f"s_waitcnt vmcnt({1 if CFG.prew else 0})")
    pt(A, "x")
    for i in range(12):
        A(f"v_lshlrev_b32 v{X+2*i}, 16, v{P+i}\nv_and_b32 v{X+2*i+1}, 0xffff0000, v{P+i}")
    A(f"v_pk_add_f32 v[44:45], {xp(0)}, {xp(1)}\nv_pk_add_f32 v[46:47], {xp(2)}, {xp(3)}")
    for i in range(4, 12): A(f"v_pk_add_f32 {v(44+2*(i&1),2)}, {v(44+2*(i&1),2)}, {xp(i)}")
    A("v_pk_add_f32 v[44:45], v[44:45], v[46:47]\nv_add_f32 v44, v44, v45")
    reduce32(A, [44], 52)
    A("v_mul_f32 v44, s33, v44")
    for i in range(12): A(f"v_pk_add_f32 {xp(i)}, {xp(i)}, v[44:45] op_sel_hi:[1,0] neg_lo:[0,1] neg_hi:[0,1]")
    A(f"v_pk_mul_f32 v[48:49], {xp(0)}, {xp(0)}\nv_pk_mul_f32 v[50:51], {xp(1)}, {xp(1)}")
    for i in range(2, 12): A(f"v_pk_fma_f32 {v(48+2*(i&1),2)}, {xp(i)}, {xp(i)}, {v(48+2*(i&1),2)}")
    A("v_pk_add_f32 v[48:49], v[48:49], v[50:51]\nv_add_f32 v48, v48, v49")
    A("v_cndmask_b32 v48, 0, v48, s[30:31]")
    reduce32(A, [48], 52)
    A("v_mul_f32 v48, s33, v48\nv_add_f32 v44, s34, v48\nv_rsq_f32 v44, v44\nv_mov_b32 v49, s34")
    A("v_mul_f32 v48, v48, v44\nv_fma_f32 v50, v48, v44, v49\nv_rsq_f32 v48, v50")
    A("s_mov_b64 exec, s[30:31]\nv_mul_f32 v50, v50, v48\nv_mul_f32 v48, v48, v44\nds_write_b32 v6, v50")
    for j in range(3):
        for i in range(4): A(f"v_pk_mul_f32 {v(Q+2*i,2)}, {xp(4*j+i)}, v[48:49] op_sel_hi:[1,0]")
        for i in range(4): A(f"v_cvt_pk_bf16_f32 v{P+4*j+i}, v{Q+2*i}, v{Q+2*i+1}")
        A(f"ds_write_b128 v7, {v(P+4*j,4)} offset:{384*j}")
    A("s_mov_b64 exec, -1\ns_waitcnt lgkmcnt(0)\ns_barrier")
    pt(A, "ln")
    for n in range(2):
        A(f"ds_read_b64_tr_b16 {v(76+4*n,2)}, v71 offset:{512*n}\nds_read_b64_tr_b16 {v(78+4*n,2)}, v71 offset:{512*n + 4*HRS}")
    A(f"ds_read_b64_tr_b16 v[84:85], v72 offset:1024\nds_read_b64_tr_b16 v[86:87], v72 offset:{1024 + 4*HRS}\nds_read_b32 v88, v68")
    A(f"s_cmp_lt_u32 s16, 2\ns_cselect_b32 s3, 0, {OOB}\nv_or_b32 v75, s3, v75")
    for n in range(3):
        A(f"s_waitcnt lgkmcnt({5-2*n})\nbuffer_store_dwordx4 {v(76+4*n,4)}, v{73+n}, s[20:23], s18 offen {CFG.auxSt}")
    A("s_waitcnt lgkmcnt(0)\ns_cmp_lg_u32 s16, 2\ns_cbranch_scc1 K0_nors")
    A(f"s_mov_b64 exec, 0xffff\nbuffer_store_dword v88, v69, s[12:15], s17 offen {CFG.auxSt}\ns_mov_b64 exec, -1")
    A.label("K0_nors")
    pt(A, "st0")
    seam_pre(A)
    A(f"s_cmp_eq_u32 s16, 4\ns_cselect_b32 s49, s49, {OOB}")
    if CFG.hint1:
        A(f"s_cmp_lg_u32 s16, 5\ns_cbranch_scc1 K0_noh\ns_cmp_ge_u32 s44, 8\ns_cbranch_scc1 K0_noh\ns_add_u32 s3, s44, {FH}\ns_lshl_b32 s3, s3, 7")
        raise_flag(A, 3, 4)
        A.label("K0_noh")
    A("s_waitcnt vmcnt(0)\ns_barrier\ns_branch K0_seam")
    A.label("K0_last")
    A("s_waitcnt lgkmcnt(0)\ns_cmp_ge_u32 s16, 2\ns_cbranch_scc1 K0_last2")
    A(f"buffer_store_dwordx4 v[28:31], v89, s[20:23], s37 offen {CFG.auxSt}")
    A.label("K0_last2")
    A("s_waitcnt vmcnt(0)")
    A.label("K0_seam")
    raise_flag(A, 49, 4)
    pt(A, "fl0")
    if CFG.pf1a or CFG.pf1q:
        A(f"s_cmp_lt_u32 s2, {144 if CFG.pf1a else 208}\ns_cbranch_scc1 K0_noa\ns_cmp_ge_u32 s2, 240\ns_cbranch_scc1 K0_noa\ns_cmp_ge_u32 s16, 4\ns_cbranch_scc1 K0_noa")
        A("s_lshr_b32 s47, s2, 3\ns_sub_u32 s47, s47, 18\ns_lshl_b32 s47, s47, 2\ns_add_u32 s47, s47, s16\ns_waitcnt lgkmcnt(0)")
        srd(A, 52, 4, S*F*2)
        pf_w1_col(A, 46)
        pf_w1(A, 52, 46, 47, 48, CFG.pf1a, 1, 88, base=112*CFG.pf1)
        if CFG.pf1q:
            A("s_cmp_lt_u32 s2, 208\ns_cbranch_scc1 K0_noa\ns_sub_u32 s47, s47, 32")
            pf_w1(A, 52, 46, 47, 16, CFG.pf1q, 1, 88, base=112*CFG.pf1)
        if CFG.c3w1:
            A("s_lshr_b32 s3, s46, 8\ns_add_u32 s3, s3, 2\ns_andn2_b32 s3, s3, 3\ns_add_u32 s3, s3, 1\ns_lshl_b32 s3, s3, 8\ns_add_u32 s3, s3, 128")
            A(f"s_lshr_b32 s47, s2, 3\ns_sub_u32 s47, s47, 26\ns_lshl_b32 s47, s47, 2\ns_add_u32 s47, s47, s16\ns_mul_i32 s47, s47, {32*9216}\ns_add_u32 s47, s47, {CFG.c3w1*9216}\ns_add_u32 s47, s47, s3")
            A("s_sub_u32 s3, s3, s46\ns_cmp_lt_u32 s3, 256\ns_cselect_b32 s3, -1, 0\ns_mov_b32 exec_hi, s3")
            A(f"v_and_b32 v88, 31, v1\nv_mul_u32_u24 v88, 9216, v88\nv_lshrrev_b32 v89, 5, v1\nv_lshl_add_u32 v88, v89, 10, v88\nbuffer_load_dword v{SINK}, v88, s[52:55], s47 offen\ns_mov_b64 exec, -1")
        A.label("K0_noa")
    if CFG.tlb:
        A(f"s_cmp_lg_u32 s16, 1\ns_cbranch_scc1 K0_notlb\nv_and_b32 v4, 63, v0\nv_lshlrev_b32 v4, {CFG.tlb}, v4\ns_waitcnt lgkmcnt(0)")
        for ptr, nb in ((4, S*F*2), (50, S*F*2), (26, FLAG_OFF)):
            srd(A, 8, ptr, nb)
            for q in range(-(-nb // (64 << CFG.tlb))):
                A(f"s_mov_b32 s3, {q*(64 << CFG.tlb)}\nbuffer_load_dword v{SINK}, v4, s[8:11], s3 offen sc1")
        A.label("K0_notlb")
def softmax18(A, PR, dst, C):
    vals = [r + i for r in PR for i in range(2)]
    EP, EN, MX, MN = 8, 26, 44, 46
    A(f"v_max3_f32 v{MX}, v{vals[0]}, v{vals[1]}, v{vals[2]}\nv_min3_f32 v{MN}, v{vals[0]}, v{vals[1]}, v{vals[2]}")
    for i in range(3, 17, 2):
        A(f"v_max3_f32 v{MX}, v{MX}, v{vals[i]}, v{vals[i+1]}\nv_min3_f32 v{MN}, v{MN}, v{vals[i]}, v{vals[i+1]}")
    A(f"v_max_f32 v{MX}, v{MX}, v{vals[17]}\nv_min_f32 v{MN}, v{MN}, v{vals[17]}")
    A(f"v_mul_f32 v{MX}, v{MX}, v{C}\nv_mul_f32 v{MN}, v{MN}, v{C}")
    for p in range(9):
        A(f"v_pk_fma_f32 {v(EP+2*p,2)}, {v(PR[p],2)}, {v(C,2)}, {v(MX,2)} op_sel_hi:[1,0,0] neg_lo:[0,0,1] neg_hi:[0,0,1]")
        A(f"v_pk_fma_f32 {v(EN+2*p,2)}, {v(PR[p],2)}, {v(C,2)}, {v(MN,2)} op_sel_hi:[1,0,0] neg_lo:[1,0,0] neg_hi:[1,0,0]")
    for i in range(36): A(f"v_exp_f32 v{EP+i}, v{EP+i}")
    A(f"v_pk_add_f32 {v(MX,2)}, {v(EP,2)}, {v(EP+2,2)}\nv_pk_add_f32 {v(MN,2)}, {v(EN,2)}, {v(EN+2,2)}")
    for p in range(2, 9):
        A(f"v_pk_add_f32 {v(MX,2)}, {v(MX,2)}, {v(EP+2*p,2)}\nv_pk_add_f32 {v(MN,2)}, {v(MN,2)}, {v(EN+2*p,2)}")
    A(f"v_add_f32 v{MX}, v{MX}, v{MX+1}\nv_add_f32 v{MN}, v{MN}, v{MN+1}")
    A(f"v_rcp_f32 v{MX}, v{MX}\nv_rcp_f32 v{MN}, v{MN}\ns_nop 0")
    for p in range(9):
        A(f"v_pk_mul_f32 {v(EP+2*p,2)}, {v(EP+2*p,2)}, {v(MX,2)} op_sel_hi:[1,0]")
        A(f"v_pk_mul_f32 {v(EN+2*p,2)}, {v(EN+2*p,2)}, {v(MN,2)} op_sel_hi:[1,0]")
    for m in range(18): A(f"v_cvt_pk_bf16_f32 v{dst(m)}, v{EP+2*m}, v{EP+2*m+1}")

def pairs(st, j, e):
    return [accr(st, (9*e+p) >> 1, j) + 2*((9*e+p) & 1) for p in range(9)]

PHI_RS = 608
V_LDS = 128*PHI_RS
def gen_k1(A):
    A("s_and_b32 s17, s2, 7\ns_lshr_b32 s18, s2, 3")
    A("s_cmp_ge_u32 s18, 18\ns_cbranch_scc1 K1_notg1")
    A("s_mul_i32 s19, s17, 18\ns_add_u32 s19, s19, s18\ns_and_b32 s22, s19, 3\ns_lshr_b32 s23, s19, 2")
    if CFG.swap13: A("s_or_b32 s19, s23, 1\ns_cmp_eq_u32 s19, 13\ns_cselect_b32 s19, 1, 0\ns_xor_b32 s23, s23, s19")
    if CFG.G1: A(f"s_add_u32 s59, s22, s23\ns_and_b32 s59, s59, 3\ns_mul_i32 s59, s59, {CFG.G1//4}")
    A("s_waitcnt lgkmcnt(0)")
    A("s_cmp_ge_u32 s16, 6\ns_cbranch_scc1 K1_ldW\ns_cmp_ge_u32 s16, 4\ns_cbranch_scc1 K1_ldP")
    if CFG.prio1: A(f"s_setprio {CFG.prio1}")
    srd(A, 32, 6, F*2)
    srd_off(A, 36, 26, U_OFF, U_SZ)
    A("v_bfe_u32 v8, v0, 4, 2\nv_lshlrev_b32 v8, 3, v8")
    A("s_lshl_b32 s3, s23, 8\ns_lshl_b32 s17, s16, 6\ns_add_u32 s3, s3, s17")
    A("buffer_load_dwordx2 v[12:13], v8, s[32:35], s3 offen\nbuffer_load_dwordx2 v[14:15], v8, s[32:35], s3 offen offset:32")
    emit_compute_addr(A, 16, "std")
    A("s_waitcnt vmcnt(0)")
    if CFG.pf1b:
        A(f"s_cmp_ge_u32 s2, 128\ns_cbranch_scc1 K1_nopf\ns_and_b32 s47, s2, 0x78\ns_lshr_b32 s47, s47, 1\ns_add_u32 s47, s47, s16\ns_add_u32 s47, s47, {CFG.pf1}")
        srd(A, 52, 4, S*F*2)
        pf_w1_col(A, 46)
        pf_w1(A, 52, 46, 47, 64, CFG.pf1b, 1, 16)
        A.label("K1_nopf")
    for j in range(2):
        A(f"v_lshlrev_b32 v{V_ACC+j*4}, 16, v{12+2*j}\nv_and_b32 v{V_ACC+j*4+1}, 0xffff0000, v{12+2*j}")
        A(f"v_lshlrev_b32 v{V_ACC+j*4+2}, 16, v{13+2*j}\nv_and_b32 v{V_ACC+j*4+3}, 0xffff0000, v{13+2*j}")
    for i in range(8, 72, 2): A(f"v_pk_mov_b32 {v(V_ACC+i,2)}, {v(V_ACC+i%8,2)}, {v(V_ACC+i%8,2)} op_sel:[0,1]")
    A("s_mul_i32 s17, s22, 144\ns_lshl_b32 s3, s23, 2\ns_add_u32 s17, s17, s3\ns_add_u32 s17, s17, s16")
    A(f"s_add_u32 s49, s17, {FU}\ns_lshl_b32 s49, s49, 7\ns_mul_i32 s17, s17, 9216")
    if CFG.hint2 >= 0:
        A(f"s_mul_i32 s48, s22, 36\ns_add_u32 s48, s48, s23\ns_add_u32 s48, s48, {FG}\ns_lshl_b32 s48, s48, 7\ns_cmp_eq_u32 s16, 0\ns_cselect_b32 s48, s48, {OOB}")
    emit_compute_loop(A, 32, "std", (True, True), 20, first=lambda: (pt(A, "b1"), clear_flag(A, 49, 170)))
    A("s_barrier")
    pt(A, "m1")
    c0 = -2*math.sqrt(2/math.pi)*LOG2E; c1 = c0*0.044715
    A(f"s_mov_b32 s52, {f2u(c1)}\ns_mov_b32 s53, {f2u(c1)}\nv_mov_b32 v8, {f2u(c0)}\nv_mov_b32 v9, {f2u(c0)}")
    if CFG.own:
        A(f"s_lshr_b32 s3, s16, 1\ns_mul_i32 s3, s3, {STAGE - 18432}\ns_mul_i32 s18, s16, 9216\ns_add_u32 s3, s3, s18\nv_add_u32 v10, s3, v{V_PA}")
    else: A("s_nop 2")
    for t in range(9):
        a0 = V_ACC + t*8
        T = 16 + (t % 2) * 12
        for p in range(4): A(f"v_pk_mul_f32 {v(T+2*p,2)}, {v(a0+2*p,2)}, {v(a0+2*p,2)}")
        for p in range(4): A(f"v_pk_fma_f32 {v(T+2*p,2)}, {v(T+2*p,2)}, s[52:53], v[8:9]")
        for p in range(4): A(f"v_pk_mul_f32 {v(T+2*p,2)}, {v(T+2*p,2)}, {v(a0+2*p,2)}")
        for e in range(8): A(f"v_exp_f32 v{T+e}, v{T+e}")
        for p in range(4): A(f"v_pk_add_f32 {v(T+2*p,2)}, {v(T+2*p,2)}, 1.0 op_sel_hi:[1,0]")
        for e in range(8): A(f"v_rcp_f32 v{T+e}, v{T+e}")
        for p in range(4): A(f"v_pk_mul_f32 {v(T+2*p,2)}, {v(T+2*p,2)}, {v(a0+2*p,2)}")
        for p in range(4): A(f"v_cvt_pk_bf16_f32 v{44+4*t+p}, v{T+2*p}, v{T+2*p+1}")
        for tt in ([] if t < CFG.glag else (range(t+1) if t == CFG.glag else [t])):
            if tt and tt % 4 == 0: A("s_add_u32 s17, s17, 4096")
            A(f"buffer_store_dwordx4 {v(44+4*tt,4)}, v{V_PA}, s[36:39], s17 offen offset:{(tt%4)*1024} {CFG.auxSt}")
        if CFG.own: A(f"ds_write_b128 v10, {v(44+4*t,4)} offset:{t*1024}")
        if t == CFG.hint2: raise_flag(A, 48, 40)
    A("s_branch K2_c")
    def g_post():
        A("s_lshr_b32 s49, s2, 3\ns_lshl_b32 s49, s49, 2\ns_add_u32 s49, s49, s16\ns_sub_u32 s49, s49, 4")
        pf_w2(A, 50, 49, 72, CFG.pf2g)
    post = (CFG.pf2g, g_post, CFG.pf2pos) if CFG.pf2g else None
    lend = None
    if CFG.wreg in (1, 2):
        post = (9*CFG.wn, lambda: wot_regs(A, True), CFG.wpos)
        def lend():
            L = A.newlabel("Lv")
            A(f"s_cmp_lg_u32 s20, 3\ns_cbranch_scc1 {L}")
            A("buffer_load_dwordx2 v[38:39], v36, s[96:99], 0 offen sc1")
            if CFG.ownpf:
                A(f"s_cmp_lt_u32 s16, 6\ns_cbranch_scc1 {L}")
                srd(A, 52, 50, S*F*2)
                A("s_lshl_b32 s3, s23, 1\ns_and_b32 s57, s22, 1\ns_add_u32 s3, s3, s57\ns_lshl_b32 s3, s3, 1\ns_add_u32 s3, s3, s17\ns_lshl_b32 s3, s3, 17")
                A("s_and_b32 s57, s2, 1\ns_lshl_b32 s57, s57, 11\ns_add_u32 s3, s3, s57\ns_lshr_b32 s57, s2, 5\ns_lshl_b32 s57, s57, 8\ns_add_u32 s3, s3, s57")
                A(f"v_bfe_u32 v30, v0, 1, 5\nv_lshlrev_b32 v30, 12, v30\nv_and_b32 v31, 1, v0\nv_lshl_add_u32 v30, v31, 7, v30\nbuffer_load_dword v{SINK}, v30, s[52:55], s3 offen")
            A.label(L)
    A.label("K1_ldP")
    if CFG.wreg in (1, 2): wot_flagaddr(A)
    srd_off(A, 8, 26, HT_OFF, HT_SZ)
    A(f"s_sub_u32 s17, s16, 4\ns_mul_i32 s21, s22, {64*9216}")
    def wait_ln():
        A(f"v_and_b32 v8, 62, v0\nv_and_b32 v9, 1, v0\nv_lshl_add_u32 v8, v8, 1, v9\ns_lshl_b32 s3, s17, 1\ns_add_u32 s3, s3, {F0+112}\nv_add_lshl_u32 v8, v8, s3, 7")
        if CFG.dl0: A(f"s_sleep {CFG.dl0}")
        if CFG.dlf: A(f"s_cmp_ge_u32 s2, 112\ns_cbranch_scc1 K1_nodl\ns_sleep {CFG.dlf}\nK1_nodl:")
        if CFG.hint1: A(f"s_and_b32 s3, s2, 7\ns_add_u32 s3, s3, {FH}\ns_lshl_b32 s3, s3, 7\nv_mov_b32 v9, s3")
        poll2(A, 8, 10, CFG.sl0a, CFG.sl0, None, 9 if CFG.hint1 else None)
        pt(A, "go1")
    DBG["k1P"] = True; DBG["koff"] = CFG.koff
    emit_loader_lin(A, 32, 9, POFF, 17, 8, 21, 20, 18, CFG.auxP, CFG.G1, post=post, pre=wait_ln, loopend=lend)
    DBG["k1P"] = False
    A("s_branch K1_ldseam")
    A.label("K1_ldW")
    srd(A, 12, 4, S*F*2)
    A("s_sub_u32 s17, s16, 6\ns_lshl_b32 s21, s23, 8")
    emit_loader_W(A, 32, "std", 17, 12, 21, 9216, 20, 18, CFG.auxW1, CFG.G1, post=post, loopend=lend, mid=(lambda: wot_flagaddr(A)) if CFG.wreg in (1, 2) else None)
    DBG["koff"] = 0
    A.label("K1_ldseam")
    A(f"s_barrier\ns_mov_b32 s49, {OOB}\ns_mov_b32 s24, s23\ns_branch K2_ld")
    A.label("K1_notg1")
    A("s_sub_u32 s18, s18, 18\ns_and_b32 s22, s18, 3\ns_lshr_b32 s19, s17, 1\ns_lshl_b32 s19, s19, 2\ns_add_u32 s22, s22, s19")
    A("s_lshr_b32 s18, s18, 2\ns_and_b32 s17, s17, 1\ns_lshl_b32 s19, s17, 1\ns_add_u32 s23, s19, s18\ns_add_u32 s17, s17, 4")
    A("s_cmp_eq_u32 s18, 2\ns_cselect_b32 s23, s17, s23")
    if CFG.GA: A(f"s_add_u32 s59, s22, s18\ns_and_b32 s59, s59, 3\ns_mul_i32 s59, s59, {CFG.GA}\ns_lshr_b32 s59, s59, 2")
    A("s_waitcnt lgkmcnt(0)")
    A("s_cmp_ge_u32 s16, 6\ns_cbranch_scc1 K1_ldX\ns_cmp_ge_u32 s16, 4\ns_cbranch_scc1 K1_ldF")
    emit_compute_addr(A, 16, "lin")
    for i in range(0, 144, 2): A(f"v_pk_mov_b32 {v(V_ACC+i,2)}, 0, 0")
    srd_off(A, 32, 26, RS_OFF, RS_SZ)
    A("s_lshl_b32 s30, s22, 2\ns_add_u32 s30, s30, s16\ns_lshl_b32 s30, s30, 8\nv_and_b32 v252, 15, v1\nv_lshlrev_b32 v252, 2, v252\nv_and_b32 v253, 48, v1")
    def ld_scale():
        pt(A, "b1")
        for j in range(2):
            A(f"buffer_load_dword v{240+2*j}, v252, s[32:35], s30 offen offset:{128*j} sc1\nbuffer_load_dwordx4 {v(244+4*j,4)}, v253, s[32:35], s30 offen offset:{128*j} sc1")
    A("s_cmp_ge_u32 s23, 4\ns_cbranch_scc1 K1_q")
    HO = V_LDS + 36864
    A(f"s_mul_i32 s3, s16, 9216\ns_add_u32 s3, s3, {HO}\nv_add_u32 v254, s3, v{V_PA}")
    emit_compute_loop(A, 18, "lin", (False, True), 20, first=ld_scale, lastfill=[f"ds_write_b128 v254, {acc(0,t,1)} offset:{t*1024}" for t in range(9)])
    pt(A, "m1")
    A(f"v_subrev_u32 v5, 36864, v254\ns_waitcnt vmcnt(0) lgkmcnt(0)\ns_barrier")
    QB = 48
    for t in range(9):
        o = 84 + 4*(t % 3)
        for j in range(2):
            r = accr(1, t, j)
            A(f"v_pk_mul_f32 {v(r,2)}, {v(r,2)}, {v(244+4*j,2)}\nv_pk_mul_f32 {v(r+2,2)}, {v(r+2,2)}, {v(246+4*j,2)}")
            A(f"v_cvt_pk_bf16_f32 v{o+2*j}, v{r}, v{r+1}\nv_cvt_pk_bf16_f32 v{o+2*j+1}, v{r+2}, v{r+3}")
        A(f"ds_write_b128 v5, {v(o,4)} offset:{t*1024}")
    if CFG.prew:
        A(f"s_cmp_lg_u32 s16, 0\ns_cbranch_scc1 K1_kvsm\ns_lshl_b32 s3, s23, 4\ns_add_u32 s3, s3, s22\ns_add_u32 s3, s3, {FP}\ns_lshl_b32 s3, s3, 7")
        clear_flag(A, 3, 8)
        A(f"s_mul_i32 s3, s23, 12\ns_add_u32 s3, s3, s22\ns_add_u32 s3, s3, {FK}\ns_lshl_b32 s3, s3, 7\ns_cmp_lt_u32 s22, 12\ns_cselect_b32 s3, s3, {OOB}")
        clear_flag(A, 3, 8)
    A.label("K1_kvsm")
    A("s_and_b32 s30, s16, 3\ns_lshr_b32 s31, s16, 2\nv_and_b32 v2, 15, v1\nv_lshrrev_b32 v3, 4, v1")
    A(f"s_lshl_b32 s3, s30, 1\ns_add_u32 s33, s3, s31\ns_lshl_b32 s3, s33, 4\nv_add_u32 v4, s3, v2\nv_mul_u32_u24 v4, {PHI_RS}, v4\nv_mul_u32_u24 v5, 144, v3\nv_add_u32 v4, v4, v5")
    for e in range(2):
        softmax18(A, pairs(0, 0, e), lambda m: QB + 18*e + m, 240)
        for q in (range(4) if e == 0 else range(4, 9)): A(f"ds_write_b128 v4, {v(QB+4*q,4)} offset:{16*q}")
    A(f"v_lshrrev_b32 v6, 2, v1\nv_mul_u32_u24 v6, {PHI_RS}, v6\nv_and_b32 v7, 3, v1\nv_lshl_add_u32 v6, v7, 3, v6")
    A("s_mul_i32 s3, s33, 72\nv_add_u32 v6, s3, v6")
    A("s_lshl_b32 s3, s30, 3\nv_subrev_u32 v7, s3, v6")
    A(f"v_add_u32 v8, {64*PHI_RS}, v6\nv_add_u32 v9, {64*PHI_RS}, v7")
    A(f"s_lshl_b32 s3, s33, 10\ns_add_u32 s3, s3, {V_LDS}\nv_lshlrev_b32 v10, 4, v1\nv_add_u32 v10, s3, v10")
    A(f"v_lshlrev_b32 v11, 8, v3\nv_and_b32 v12, 1, v2\nv_lshl_add_u32 v11, v12, 4, v11")
    A(f"s_lshl_b32 s3, s33, 5\ns_add_u32 s3, s3, {V_LDS + 8192}\nv_add_u32 v11, s3, v11")
    A("s_mov_b32 s40, 0x00030003\ns_mov_b32 s41, 0x00030003\nv_mov_b32 v12, 0x3f803f80")
    srd_off(A, 36, 26, KVP_OFF, KVP_SZ)
    A("s_lshl_b32 s17, s22, 2\ns_add_u32 s17, s17, s23\ns_mul_i32 s17, s17, 24576")
    A("s_lshl_b32 s3, s31, 10\ns_add_u32 s19, s17, s3\ns_add_u32 s29, s19, 22528\ns_add_u32 s19, s19, 16384")
    A("s_lshr_b32 s18, s33, 2\ns_lshl_b32 s18, s18, 11\ns_and_b32 s3, s33, 3\ns_lshl_b32 s3, s3, 8\ns_add_u32 s18, s18, s3\ns_add_u32 s28, s17, s18\ns_add_u32 s28, s28, 18432")
    A("s_lshl_b32 s18, s33, 11\ns_add_u32 s17, s17, s18")
    A("v_lshlrev_b32 v4, 6, v3\nv_lshl_add_u32 v4, v2, 4, v4\nv_lshlrev_b32 v2, 4, v1")
    A("s_lshl_b32 s18, s30, 4\ns_lshl_b64 s[42:43], 0xffff, s18\ns_mov_b32 s44, 0x000f000f\ns_mov_b32 s45, 0x000f000f")
    A("s_waitcnt lgkmcnt(0)\ns_barrier")
    pt(A, "go1")
    DK, FR = 16, 96
    def afr(ks, T): return FR + ks*20 + T*4
    def bfr(ks, mt): return FR + ks*20 + 12 + mt*4
    def dk(T, mt): return DK + (mt*3 + T)*4
    def kreads(ks):
        A(f"ds_read_b128 {v(bfr(ks,1),4)}, v11 offset:{ks*9216}\nds_read_b128 {v(bfr(ks,0),4)}, v10 offset:{ks*9216}")
        for T in range(3):
            a = (7 if T == 2 else 6) + (2 if ks >= 2 else 0)
            off = (ks & 1)*32*PHI_RS + T*32
            A(f"ds_read_b64_tr_b16 {v(afr(ks,T),2)}, v{a} offset:{off}\nds_read_b64_tr_b16 {v(afr(ks,T)+2,2)}, v{a} offset:{off + 16*PHI_RS}")
    kreads(0)
    for ks in range(4):
        if ks < 3: kreads(ks+1)
        A(f"s_waitcnt lgkmcnt({8 if ks < 3 else 0})")
        for i in range(4): A(f"v_cndmask_b32 v{bfr(ks,1)+i}, v12, v{bfr(ks,1)+i}, s[40:41]")
        for mt in range(2):
            for T in range(3):
                A(f"{MF} {v(dk(T,mt),4)}, {v(afr(ks,T),4)}, {v(bfr(ks,mt),4)}, {0 if ks == 0 else v(dk(T,mt),4)}")
    A("s_nop 4")
    for T in range(2): A(f"buffer_store_dwordx4 {v(dk(T,0),4)}, v2, s[36:39], s17 offen offset:{T*1024} sc1")
    A(f"s_mov_b64 exec, s[42:43]\nbuffer_store_dwordx4 {v(dk(2,0),4)}, v2, s[36:39], s19 offen sc1")
    A("s_mov_b64 exec, s[44:45]")
    for T in range(2): A(f"buffer_store_dwordx4 {v(dk(T,1),4)}, v4, s[36:39], s28 offen offset:{T*1024} sc1")
    A(f"s_and_b64 exec, s[42:43], s[44:45]\nbuffer_store_dwordx4 {v(dk(2,1),4)}, v4, s[36:39], s29 offen sc1")
    A("s_mov_b64 exec, -1")
    A(f"s_lshl_b32 s17, s23, 4\ns_add_u32 s17, s17, {FP}\ns_add_u32 s18, s17, s22\ns_lshl_b32 s18, s18, 7\ns_mov_b32 s49, {OOB}")
    srd_off(A, 44, 26, KVF_OFF, KVF_SZ)
    A("s_waitcnt vmcnt(0)\ns_barrier")
    pt(A, "kvp")
    A("s_cmp_ge_u32 s16, 4\ns_cbranch_scc1 K2_ld\ns_cmp_lg_u32 s16, 0\ns_cbranch_scc1 K2_c")
    raise_flag(A, 18, 4)
    A("s_cmp_ge_u32 s22, 12\ns_cbranch_scc1 K2_c")
    A("v_and_b32 v3, 15, v1\nv_add_lshl_u32 v3, v3, s17, 7")
    poll(A, 3, 4, CFG.slk)
    A("s_mul_i32 s18, s23, 12\ns_add_u32 s18, s18, s22")
    A(f"s_add_u32 s49, s18, {FK}\ns_lshl_b32 s49, s49, 7\ns_lshl_b32 s17, s18, 11\ns_lshl_b32 s18, s18, 10")
    A("s_cmp_eq_u32 s22, 11\ns_cselect_b64 exec, 0xffff, -1")
    for tb in range(16):
        A(f"buffer_load_dwordx4 {v(8+8*tb,4)}, v2, s[36:39], s17 offen sc1\nbuffer_load_dwordx4 {v(12+8*tb,4)}, v2, s[36:39], s17 offen offset:1024 sc1")
        A(f"s_add_u32 s17, s17, {48*2048}")
    for tb in range(1, 16):
        A(f"s_waitcnt vmcnt({2*(15-tb)})")
        for p in range(4): A(f"v_pk_add_f32 {v(8+2*p,2)}, {v(8+2*p,2)}, {v(8+8*tb+2*p,2)}")
    for p in range(4): A(f"v_cvt_pk_bf16_f32 v{4+p}, v{8+2*p}, v{9+2*p}")
    A(f"buffer_store_dwordx4 v[4:7], v2, s[44:47], s18 offen {CFG.auxSt}")
    A("s_mov_b64 exec, -1\ns_waitcnt vmcnt(0)")
    raise_flag(A, 49, 8)
    A(f"s_mov_b32 s49, {OOB}\ns_branch K2_c")
    A.label("K1_q")
    emit_compute_loop(A, 18, "lin", (False, False), 20, first=ld_scale)
    A("s_waitcnt vmcnt(0)")
    A("s_barrier")
    pt(A, "m1")
    A("v_and_b32 v6, 15, v1\nv_lshrrev_b32 v7, 4, v1\nv_lshlrev_b32 v3, 11, v7\nv_lshl_add_u32 v3, v6, 4, v3")
    A(f"s_lshr_b32 s3, s16, 1\ns_mul_i32 s3, s3, {STAGE - 18432}\ns_mul_i32 s17, s16, 9216\ns_add_u32 s3, s3, s17")
    A(f"v_add_u32 v3, s3, v3\nv_add_u32 v4, s3, v{V_PA}")
    for st in range(2):
        for j in range(2):
            for e in range(2):
                softmax18(A, pairs(st, j, e), lambda m: (QB + e*16 + 4*((m & 7) >> 1) + (m & 1) + 2*(m >> 3)) if m < 16 else QB + 32 + 2*e + m - 16, 240 + 2*j)
                for gg in range(4): A(f"ds_write_b128 v3, {v(QB+e*16+4*gg,4)} offset:{e*1024 + gg*256}")
            for b in range(8): A(f"ds_read_b128 {acc(st,b,j)}, v4 offset:{b*1024}")
            for i in range(2): A(f"v_pk_mov_b32 {v(accr(st,8,j)+2*i,2)}, {v(QB+32+2*i,2)}, {v(QB+32+2*i,2)} op_sel:[0,1]")
    pt(A, "kvp")
    KVB, KR, TM, MB, CI = 8, 40, 56, 88, 240
    A(f"v_add_u32 v4, {P0}, v{V_PA}\nv_cmp_eq_u32 vcc, 0, v6\nv_cmp_eq_u32 s[40:41], 4, v6\nv_lshlrev_b32 v7, 6, v7\ns_mov_b32 s3, {P0 + 9216}")
    A("v_cndmask_b32 v5, 32, 0, vcc\nv_cndmask_b32 v5, v5, 16, s[40:41]\nv_add3_u32 v5, v5, v7, s3")
    A("s_lshl_b32 s56, s22, 2\ns_add_u32 s56, s56, s16\ns_lshl_b32 s56, s56, 1\ns_add_u32 s56, s56, s23\ns_sub_u32 s56, s56, 4")
    A(f"s_add_u32 s49, s56, {FO}\ns_lshl_b32 s49, s49, 7\ns_mul_i32 s56, s56, 20480\ns_add_u32 s57, s56, 10240")
    k2_enter(A)
    k2_setup(A, False)
    for hp in range(4): A(f"s_mov_b32 s{8+2*hp}, {0xffff << (16*hp) & 0xffffffff}\ns_mov_b32 s{9+2*hp}, {(0xffff << (16*hp)) >> 32}")
    A(f"v_mov_b32 v{MB+2}, 0\nv_mov_b32 v{MB+3}, 0\nv_mov_b32 v{CI}, 0\nv_mov_b32 v{CI+1}, {f2u(1e-6)}\nv_mov_b32 v{CI+2}, 0\nv_mov_b32 v{CI+3}, 0")
    A(f"v_add_u32 v6, 4096, v{V_PA}\nv_add_u32 v7, 8192, v{V_PA}")
    def kvf(g, e, mt): return KVB + 16*(g & 1) + 8*e + 4*mt
    def kv_reads(g):
        st, hp = g >> 2, g & 3
        return [f"ds_read_b128 {v(kvf(g,e,mt),4)}, v{4+mt} offset:{st*12288 + (2*hp+e)*(256 if mt else 1024)}" for e in range(2) for mt in range(2)]
    A("s_waitcnt lgkmcnt(0)\ns_barrier")
    pt(A, "kvf")
    for x in kv_reads(0): A(x)
    for st in range(2):
        for mt in range(2): A(f"ds_read_b128 {v(KR+8*st+4*mt,4)}, v{4+mt} offset:{st*12288 + 8*(256 if mt else 1024)}")
    def o_store(st, u, j):
        b = 2*u + j
        return f"buffer_store_dwordx4 {acc(st,u,j)}, v{(V_PA,6,7)[b//4]}, s[40:43], s{56+st} offen offset:{(b%4)*1024} {CFG.auxSt}"
    def o_valu(k):
        st, hp, j = k >> 3, (k >> 1) & 3, k & 1
        T = TM + 16*j
        L = [f"v_rcp_f32 v{T+8*e+6}, v{T+8*e+5}" for e in range(2)] + ["s_nop 0"]
        for e in range(2):
            L += [f"v_pk_mul_f32 {v(T+8*e+2*q,2)}, {v(T+8*e+2*q,2)}, {v(T+8*e+6,2)} op_sel_hi:[1,0]" for q in range(2)]
            L += [f"v_mul_f32 v{T+8*e+4}, v{T+8*e+4}, v{T+8*e+6}"]
        vals = [T+8*e+i for e in range(2) for i in range(5)]
        for p in range(5):
            pi = 5*hp + p
            L.append(f"v_cvt_pk_bf16_f32 v{accr(st, pi >> 2, j) + (pi & 3)}, v{vals[2*p]}, v{vals[2*p+1]}")
        if CFG.ost == 0: L += [o_store(st, u, j) for u in ([hp] if hp < 3 else [3, 4])]
        return L
    for k in range(16):
        st, hp, j = k >> 3, (k >> 1) & 3, k & 1
        g = k >> 1; T = TM + 16*j
        a = [f"{MF} {v(T+8*e+4*mt,4)}, {v(kvf(g,e,mt),4)}, {acc(st,2*hp+e,j)}, {v(CI,4) if mt else 0}" for e in range(2) for mt in (1, 0)]
        b = [f"{MF} {v(T+8*e+4*mt,4)}, {v(KR+8*st+4*mt,4)}, {v(MB+2*e,4)}, {v(T+8*e+4*mt,4)}" for e in range(2) for mt in (1, 0)]
        mk = [f"v_cndmask_b32 v{MB+(i if i < 2 else i+2)}, 0, v{accr(st,8,j)+i}, {s(8+2*hp,2)}" for i in range(4)]
        va = o_valu(k-1) if k else []
        if j == 0:
            A("s_waitcnt lgkmcnt(0)")
            if g < 7: va = va + kv_reads(g+1)
        A(a[0]); A(mk[0]); A(mk[1]); A(a[1]); A(mk[2]); A(mk[3]); A(a[2]); A(a[3])
        n0 = 0
        for i, m in enumerate([None] + b):
            if m: A(m)
            n = (len(va) - n0 + (4 - i)) // (5 - i)
            for x in va[n0:n0+n]: A(x)
            n0 += n
    A("s_nop 5")
    for x in o_valu(15): A(x)
    pt(A, "go1")
    if CFG.ost == 1:
        for st in range(2):
            for u in range(5):
                for j in range(2): A(o_store(st, u, j))
    A("s_nop 1\ns_branch K2_cq")
    A.label("K1_ldF")
    srd_off(A, 8, 26, WF_OFF, WF_SZ)
    A(f"s_sub_u32 s17, s16, 4\ns_mul_i32 s21, s23, {18*18432}")
    def wait_fold():
        A("s_lshl_b32 s3, s17, 2\ns_add_u32 s3, s3, s23\ns_add_u32 s3, s3, 4\ns_lshl_b32 s19, s23, 1\ns_add_u32 s19, s19, s17\ns_sub_u32 s19, s19, 8")
        A("s_cmp_ge_u32 s23, 4\ns_cselect_b32 s3, s19, s3\ns_mul_i32 s3, s3, 36")
        A(f"s_add_u32 s3, s3, {F1}\nv_and_b32 v8, 63, v0\nv_min_u32 v8, 35, v8\nv_add_lshl_u32 v8, v8, s3, 7")
        if CFG.dlw: A(f"s_sleep {CFG.dlw}")
        poll2(A, 8, 10, CFG.sl0a, CFG.sl0)
        pt(A, "go1")
    emit_loader_lin(A, 18, 9, POFF, 17, 8, 21, 20, 18, CFG.auxP, CFG.GA, pre=wait_fold)
    A("s_branch K1_ldtail")
    A.label("K1_ldX")
    srd_off(A, 8, 26, HT_OFF, HT_SZ)
    A(f"s_sub_u32 s17, s16, 6\ns_mul_i32 s21, s22, {4*9216}\ns_lshl_b32 s18, s17, 10\ns_add_u32 s21, s21, s18\ns_lshl_b32 s18, s17, 12\ns_mov_b32 s19, s17")
    A("v_and_b32 v1, 63, v0\nv_and_b32 v2, 16, v1\nv_lshrrev_b32 v2, 2, v2\nv_xor_b32 v2, v2, v1\nv_lshlrev_b32 v2, 4, v2")
    for w in range(1, 4): A(f"v_add_u32 v{2+w}, {8192*w}, v2")
    def issue_x(slot):
        A(f"s_add_u32 m0, s18, {slot*STAGE + WOFF}\ns_add_u32 s19, s19, 2")
        for w in range(4): A(f"buffer_load_dwordx4 v{2+w}, s[8:11], s21 offen offset:{1024*w} {CFG.auxP} lds")
        A(f"s_cmp_ge_u32 s19, 9\ns_cselect_b32 s3, 9, 0\ns_cselect_b32 s28, {589824-9216}, 0\ns_sub_u32 s19, s19, s3\ns_add_u32 s21, s21, s28\ns_add_u32 s21, s21, 2048")
    def wait_xn():
        A(f"s_lshl_b32 s3, s22, 3\ns_add_u32 s3, s3, {F0+112}\nv_and_b32 v8, 7, v0\nv_add_lshl_u32 v8, v8, s3, 7")
        if CFG.dl0: A(f"s_sleep {CFG.dl0}")
        poll2(A, 8, 10, CFG.sl0a, CFG.sl0)
        pt(A, "go1")
    assert not CFG.GA
    emit_loader(A, 18, 4, issue_x, 20, pre=wait_xn)
    A.label("K1_ldtail")
    A("s_lshr_b32 s17, s2, 3\ns_sub_u32 s17, s17, 18\ns_lshl_b32 s17, s17, 2\ns_add_u32 s17, s17, s16\ns_sub_u32 s17, s17, 4")
    A(f"s_mov_b32 s49, {OOB}\ns_cmp_ge_u32 s23, 4\ns_cbranch_scc1 K1_ldq")
    srd_off(A, 32, 26, RS_OFF, RS_SZ)
    A("s_and_b32 s31, s16, 3\ns_lshl_b32 s30, s22, 2\ns_add_u32 s30, s30, s31\ns_lshl_b32 s30, s30, 8\nv_and_b32 v1, 63, v0\nv_and_b32 v2, 15, v1\nv_lshlrev_b32 v2, 2, v2")
    A("buffer_load_dword v240, v2, s[32:35], s30 offen offset:128 sc1")
    if CFG.pf2kv:
        A(f"s_add_u32 s17, s17, {72*CFG.pf2g + 16*CFG.pf2s}")
        pf_w2(A, 50, 17, 32, CFG.pf2kv)
    A(f"s_mul_i32 s3, s31, 9216\ns_add_u32 s3, s3, {HO}\nv_lshl_add_u32 v2, v1, 4, s3\ns_barrier")
    for t in range(9): A(f"ds_read_b128 {acc(0,t,0)}, v2 offset:{t*1024}")
    A(f"s_waitcnt vmcnt({CFG.pf2kv}) lgkmcnt(0)\ns_branch K1_kvsm")
    A.label("K1_ldq")
    A("s_barrier")
    if CFG.c3w2 == 1:
        A(f"s_sub_u32 s19, s17, {32 - CFG.c3s}")
        pf_w2c3(A, 50, 19, 16, -(-(36 - CFG.c3s) // 16), lim=0)
    if CFG.pf2q:
        A(f"s_add_u32 s17, s17, {72*CFG.pf2g + 16*CFG.pf2s + 32*CFG.pf2kv - 32}")
        pf_w2(A, 50, 17, 16, CFG.pf2q, lim=None if CFG.qlim < 0 else CFG.qlim)
    A("s_branch K2_ld")
    A.label("K1_spare")
    A(f"s_load_dwordx2 s[50:51], s[0:1], {KA_W2}")
    srd(A, 8, 22, D*D*2)
    A("s_and_b32 s17, s2, 7\ns_lshr_b32 s18, s2, 3\ns_sub_u32 s41, s18, 30\ns_lshl_b32 s41, s41, 3\ns_add_u32 s41, s41, s16")
    A(f"s_add_u32 s43, s41, {72*CFG.pf2g}")
    A("s_sub_u32 s18, s18, 30\ns_lshl_b32 s17, s17, 1\ns_add_u32 s17, s17, s18\ns_and_b32 s22, s17, 3\ns_lshr_b32 s23, s17, 2")
    A(f"s_mul_i32 s28, s23, {144*1152}\ns_mul_i32 s29, s22, 288\ns_add_u32 s28, s28, s29\ns_lshl_b32 s29, s16, 10")
    for r in range(6):
        if r == 5: A("s_cmp_lg_u32 s16, 0\ns_cbranch_scc1 K1_w5\ns_bfm_b64 exec, 32, 0")
        A(f"v_add_u32 v4, {512*r}, v0\nv_mul_u32_u24 v5, 58255, v4\nv_lshrrev_b32 v5, 20, v5\ns_add_u32 m0, s29, {8192*r}")
        A(f"v_mul_u32_u24 v5, {1152-288}, v5\nv_lshl_add_u32 v4, v4, 4, v5\nbuffer_load_dwordx4 v4, s[8:11], s28 offen lds")
    A("s_mov_b64 exec, -1")
    A.label("K1_w5")
    assert CFG.pf1s > 2
    A(f"s_add_u32 s41, s41, {320 - 16*CFG.pf1s}")
    pf_w1(A, 52, 46, 41, 16, 1, 1, 57)
    ZR = 144*288
    A(f"v_lshlrev_b32 v4, 2, v0\nv_add_u32 v4, {ZR}, v4\nv_mov_b32 v5, 0\nds_write_b32 v4, v5")
    srd_off(A, 12, 26, WOT_OFF, WOT_SZ)
    A("v_and_b32 v1, 63, v0\nv_lshrrev_b32 v3, 4, v1\nv_bfe_u32 v2, v1, 2, 2\ns_lshl_b32 s3, s16, 3\nv_and_b32 v10, 3, v1\nv_lshlrev_b32 v10, 3, v10")
    A(f"v_add_u32 v11, 16, v3\nv_cmp_gt_u32 s[30:31], 2, v3\nv_mov_b32 v12, 144")
    for hf in range(2):
        A(f"v_add3_u32 v4, v2, s3, {4*hf}\nv_mul_u32_u24 v5, 205, v4\nv_lshrrev_b32 v5, 10, v5\nv_mul_u32_u24 v6, 5, v5\nv_sub_u32 v6, v4, v6")
        A("v_cmp_eq_u32 vcc, 4, v6\nv_lshl_add_u32 v6, v3, 2, v6\nv_mul_u32_u24 v5, 18, v5\nv_cndmask_b32 v6, v6, v11, vcc\ns_andn2_b64 vcc, vcc, s[30:31]")
        A(f"v_add_u32 v6, v6, v5\nv_cndmask_b32 v6, v6, v12, vcc\nv_min_u32 v6, 144, v6\nv_mul_u32_u24 v6, 288, v6\nv_add_u32 v{8+hf}, v6, v10")
    A("s_lshl_b32 s28, s22, 2\ns_add_u32 s28, s28, s23\ns_mul_i32 s28, s28, 5\ns_add_u32 s28, s28, s16")
    A(f"s_add_u32 s49, s28, {FW}\ns_lshl_b32 s49, s49, 7\ns_mul_i32 s28, s28, 9216\nv_lshlrev_b32 v2, 4, v1")
    A("s_waitcnt vmcnt(1) lgkmcnt(0)\ns_barrier")
    tag_make(A)
    for rt in range(9):
        A(f"ds_read_b64_tr_b16 {v(16+4*rt,2)}, v8 offset:{rt*32}\nds_read_b64_tr_b16 {v(18+4*rt,2)}, v9 offset:{rt*32}")
    A("s_waitcnt lgkmcnt(0)\ns_barrier")
    A("s_cmp_lt_u32 s16, 5\ns_cbranch_scc1 K1_wot")
    A(f"s_lshl_b32 s49, s2, 7\ns_cmp_eq_u32 s16, 5\ns_cselect_b32 s49, s49, {OOB}\ns_branch K1_wot1")
    A.label("K1_wot")
    for rt in range(9):
        if rt and rt % 4 == 0: A("s_add_u32 s28, s28, 4096")
        A(f"buffer_store_dwordx4 {v(16+rt*4,4)}, v2, s[12:15], s28 offen offset:{(rt%4)*1024} {CFG.auxSt}")
    A.label("K1_wot1")
    pf_w1(A, 52, 46, 41, 16, 1, 1, 57, lim=0)
    raise_flag(A, 49, 4)
    pt(A, "go1")
    assert CFG.c3w2 != 2
    if CFG.pf1s:
        A.label("K1_spf")
        pf_w1(A, 52, 46, 41, 16, 1, 1, 57, lim=CFG.slim)
        A("s_cmp_lt_u32 s41, 320\ns_cbranch_scc1 K1_spf")
    if CFG.c3w2 == 2:
        A("s_sub_u32 s19, s18, 30\ns_lshl_b32 s19, s19, 3\ns_add_u32 s19, s19, s16")
        pf_w2c3(A, 50, 19, 16, 3, lim=1)
    pf_w2(A, 50, 43, 16, CFG.pf2s, lim=1)
    pt(A, "m1")
    A(f"s_mov_b32 s49, {OOB}\ns_cmp_lt_u32 s16, 4\ns_cbranch_scc1 K2_c\ns_cmp_lg_u32 s16, 7\ns_cbranch_scc1 K2_ld\ns_cmp_lg_u32 s2, 255\ns_cbranch_scc1 K2_ld")
    for q in range(4):
        A(f"v_add_u32 v8, {F0 + 64*q}, v1\nv_lshlrev_b32 v8, 7, v8")
        poll(A, 8, 10, 8)
    A(f"s_mov_b32 s49, {FE*128}\ns_branch K2_ld")

WR = 40
def wot_flagaddr(A):
    A(f"s_lshr_b32 s56, s2, 3\ns_lshl_b32 s3, s2, 1\ns_add_u32 s56, s56, s3\ns_and_b32 s56, s56, 3\ns_lshl_b32 s56, s56, 2\ns_add_u32 s56, s56, s16\ns_sub_u32 s56, s56, 4\ns_mul_i32 s56, s56, 5")
    A(f"s_add_u32 s3, s56, {FW}\nv_and_b32 v36, 63, v0\nv_lshlrev_b32 v37, 4, v36\nv_min_u32 v36, 4, v36\nv_add_lshl_u32 v36, v36, s3, 7")
def wot_regs(A, sampled):
    L = A.newlabel("Lw")
    if sampled: A(f"v_cmp_ne_u64 vcc, s[100:101], v[38:39]\ns_nop 4\ns_cbranch_vccz {L}")
    poll(A, 36, 38, 2)
    A.label(L)
    srd_off(A, 92, 26, WOT_OFF, WOT_SZ)
    A(f"s_add_u32 s56, s56, {CFG.w0}\ns_mul_i32 s56, s56, 9216")
    for b in range(9*CFG.wn):
        if b and b % 4 == 0: A("s_add_u32 s56, s56, 4096")
        A(f"buffer_load_dwordx4 {v(WR+4*b,4)}, v37, s[92:95], s56 offen offset:{(b%4)*1024} sc1")
def k2_decode(A):
    A("s_and_b32 s17, s2, 7\ns_lshr_b32 s18, s2, 3")
    A("s_lshr_b32 s28, s17, 1\ns_lshl_b32 s22, s17, 1\ns_add_u32 s22, s22, s18\ns_and_b32 s22, s22, 3")
    A("s_and_b32 s17, s17, 1\ns_lshl_b32 s17, s17, 3\ns_lshr_b32 s18, s18, 2\ns_add_u32 s23, s17, s18")
RED_RS = 592
PBS = 1056
O_LDS, O_TOP = 2*STAGE, 159744
W_SLOT = (3, 0, 1, 3, 0)
PB = STAGE
RED = 3*STAGE
PB_OWN = RED + 32*RED_RS
def k2_enter(A):
    A(f"s_load_dwordx4 s[4:7], s[0:1], {KA_W2}\ns_load_dwordx2 s[44:45], s[0:1], {KA_X}\ns_load_dwordx2 s[46:47], s[0:1], {KA_OUT}")
    k2_decode(A)
def k2_setup(A, early):
    srd_off(A, 36, 26, PART_OFF, PART_SZ)
    A("s_lshl_b32 s17, s23, 2\ns_add_u32 s17, s17, s22\ns_lshl_b32 s18, s17, 4")
    A("s_lshl_b32 s30, s16, 2\ns_add_u32 s30, s30, s28\ns_add_u32 s30, s30, s18")
    A(f"s_mul_i32 s32, s30, 9216\ns_add_u32 s30, s30, {FX}\ns_lshl_b32 s30, s30, 7")
    A(f"s_cmp_eq_u32 s16, s28\ns_cselect_b32 s48, {OOB}, 0\ns_cselect_b32 s30, {OOB}, s30")
    A(f"s_add_u32 s34, s32, 4096\ns_add_u32 s35, s32, 8192")
    A("s_waitcnt lgkmcnt(0)")
    k2_final_prep(A, 1)
    if early and (CFG.pf2l or CFG.pf2ls):
        base = 72*CFG.pf2g + 16*CFG.pf2s + 32*CFG.pf2kv + 16*CFG.pf2q
        A(f"s_lshr_b32 s17, s2, 3\ns_lshl_b32 s19, s17, 2\ns_add_u32 s19, s19, s16\ns_cmp_ge_u32 s17, 30\ns_cbranch_scc1 K2_pls\ns_sub_u32 s17, s17, 18\ns_cmp_ge_u32 s17, 8\ns_cbranch_scc1 K2_nopl")
        A(f"s_add_u32 s19, s19, {base - 72}")
        pf_w2(A, 4, 19, 32, CFG.pf2l, srdn=8)
        A("s_branch K2_nopl")
        A.label("K2_pls")
        A(f"s_add_u32 s19, s19, {base + 32*CFG.pf2l - 120}")
        pf_w2(A, 4, 19, 8, CFG.pf2ls, srdn=8, lim=1)
        A.label("K2_nopl")
    clear_flag(A, 30, 8)
    A(f"v_and_b32 v8, 15, v1\nv_lshrrev_b32 v9, 4, v1\nv_mul_u32_u24 v8, {RED_RS}, v8\nv_lshl_add_u32 v8, v9, 4, v8\nv_add_u32 v254, {RED}, v8")
    srd_off(A, 40, 26, OB_OFF, OB_SZ)

def gen_k2(A):
    DBG["on"] = True
    KV, MB, CI, PH, TM, PK, O = 8, 80, 92, 96, 132, 168, 204
    A.label("K2_c")
    pt(A, "e1")
    k2_enter(A)
    def common():
        emit_compute_addr(A, 16, "pi")
        for i in range(0, 72, 2): A(f"v_pk_mov_b32 {v(V_ACC+i,2)}, 0, 0")
    common()
    A("s_waitcnt vmcnt(0) lgkmcnt(0)")
    raise_flag(A, 49, 8)
    A(f"s_mov_b32 s49, {OOB}\ns_barrier")
    pt(A, "fl1")
    k2_setup(A, True)
    if CFG.burn:
        ng, nn = CFG.burn.split(",")
        A(f"s_cmp_lt_u32 s2, 144\ns_cselect_b32 s20, {ng}, {nn}\ns_cmp_eq_u32 s20, 0\ns_cbranch_scc1 K2_c1\nK2_burn:")
        for k in range(18):
            A(f"{MF} {v(168+4*(k%9),4)}, {v(8+4*(k%9),4)}, {v(44+4*(k%7),4)}, {v(168+4*(k%9),4)}")
            if k < 11: A(f"ds_read_b128 {v(8+4*((k*5)%18),4)}, v{V_PB} offset:{STAGE + k*1024}")
        A("s_waitcnt lgkmcnt(0)\ns_sub_u32 s20, s20, 1\ns_cmp_lg_u32 s20, 0\ns_cbranch_scc1 K2_burn")
    A("s_branch K2_c1")
    A.label("K2_cq")
    pt(A, "e1")
    common()
    A.label("K2_c1")
    if CFG.prio: A(f"s_setprio {CFG.prio}")
    A(f"v_or_b32 v0, s48, v{V_PA}")
    def pub(t):
        L = [f"v_cvt_pk_bf16_f32 v{PK+4*t+p}, v{V_ACC+8*t+2*p}, v{V_ACC+8*t+2*p+1}" for p in range(4)]
        L.append(f"buffer_store_dwordx4 {v(PK+4*t,4)}, v0, s[36:39], s{(32, 34, 35)[t//4]} offen offset:{(t%4)*1024} sc1")
        return L
    lastfill = [""]*9
    for t in range(4): lastfill += ["\n".join(pub(t)[:3]), "\n".join(pub(t)[3:])]
    lastfill += ["\n".join(pub(4))]
    def late_flag():
        A(f"s_cmp_eq_u32 s49, {OOB}\ns_cbranch_scc1 K2_nolate\ns_waitcnt vmcnt(0)")
        raise_flag(A, 49, 172)
        A(f"s_mov_b32 s49, {OOB}")
        A.label("K2_nolate")
    emit_compute_loop(A, 18, "pi", (False, False), 20, first=lambda: pt(A, "b2"), lastfill=lastfill, loopend=late_flag, own=CFG.own == 2)
    pt(A, "m2")
    for t in range(5, 9):
        for x in pub(t): A(x)
    pt(A, "pub")
    FB, WA = 8, 204
    A(f"s_lshl_b32 s3, s16, 10\nv_add_u32 v4, s3, v{V_PA}\nv_add_u32 v5, {3*STAGE}, v4\nv_add_u32 v3, {3*STAGE}, v{V_PA}")
    A(f"s_and_b32 s17, s16, 1\ns_lshl_b32 s3, s17, 10\ns_add_u32 s3, s3, {O_LDS}\nv_add_u32 v6, s3, v{V_PA}\nv_xor_b32 v7, 1024, v6")
    A(f"s_cmp_eq_u32 s17, 0\ns_cselect_b32 s3, {O_LDS + 8192}, 0\ns_cselect_b32 s18, 0, {O_LDS + 8192}")
    A(f"s_cselect_b32 s19, 0, {O_TOP}\ns_cselect_b32 s21, {O_TOP}, 0\ns_add_u32 s3, s3, s19\ns_add_u32 s18, s18, s21")
    A(f"s_cmp_eq_u32 s17, 0\ns_cselect_b32 s19, 9, 1\ns_cselect_b32 s21, 1, 9\ns_lshl_b32 s19, s19, 10\ns_lshl_b32 s21, s21, 10")
    for g in range(4):
        A(f"v_add_u32 v{224+2*g}, s3, v{V_PA}\nv_add_u32 v{225+2*g}, s18, v{V_PA}\ns_add_u32 s3, s3, s19\ns_add_u32 s18, s18, s21")
    def fo(b, g, j): return FB + 80*b + 20*g + 4*j
    def fw(b, g, k): return FB + 80*b + 20*g + 8 + 4*k
    def wreads(u):
        b = u & 1; sl = W_SLOT[u]; R = []
        for g in range(4):
            for j in range(2):
                R.append(f"ds_read_b128 {v(fo(b,g,j),4)}, v{6+j} offset:{g*9216 + u*2048}" if u < 4 else f"ds_read_b128 {v(fo(b,g,j),4)}, v{224+2*g+j}")
            so = (0 if sl == 3 else sl*STAGE) + g*9216
            for k in range(2): R.append(f"ds_read_b128 {v(fw(b,g,k),4)}, v{5 if sl == 3 else (4 if so + 4096*k < 65536 else 232)} offset:{(so + 4096*k) % 65536}")
            R.append(f"ds_read_b128 {v(fw(b,g,2),4)}, v{3 if sl == 3 else (V_PA if so + 8192 < 65536 else 233)} offset:{(so + 8192) % 65536}")
        return R
    A(f"v_add_u32 v232, 65536, v4\nv_add_u32 v233, 65536, v{V_PA}")
    def wmf(u):
        b = u & 1; M = []
        for g in range(4):
            for k, j in ((0, 0), (0, 1), (1, 0), (1, 1), (2, 0)):
                d = v(WA + 4*(2*k + j), 4)
                M.append(f"{MF} {d}, {v(fw(b,g,k),4)}, {v(fo(b,g,j),4)}, {d if u or g else 0}")
        return M
    def flag_x():
        A("s_waitcnt vmcnt(0)")
        raise_flag(A, 30, 236)
        pt(A, "flx")
    if CFG.flagpos == -2: flag_x()
    A("s_barrier")
    pt(A, "t0")
    for r in wreads(0): A(r)
    if CFG.flagpos == -1: flag_x()
    for u in range(4):
        block(A, wmf(u), wreads(u+1), True)
        pt(A, f"u{u}")
        if u == CFG.flagpos: flag_x()
    A(f"s_mul_i32 s3, s17, {16*RED_RS}\nv_add_u32 v6, s3, v254\ns_lshl_b32 s18, s16, 6\nv_add_u32 v4, s18, v6\ns_xor_b32 s17, s17, 1\ns_mul_i32 s3, s17, {16*RED_RS}\ns_add_u32 s3, s3, s18\nv_add_u32 v5, s3, v254")
    A("s_cmp_lg_u32 s16, s28\ns_cbranch_scc1 K2_nown")
    A(f"v_lshrrev_b32 v7, 5, v1\nv_xor_b32 v7, v7, v1\nv_lshlrev_b32 v7, 4, v7\nv_add_u32 v7, {PB_OWN}, v7")
    block(A, wmf(4), [x for t in range(9) for x in (f"ds_write_b128 v7, {v(PK+4*t,4)} offset:{t*PBS}", "")], False)
    A("s_branch K2_nown1")
    A.label("K2_nown")
    block(A, wmf(4), [], False)
    A.label("K2_nown1")
    A("s_nop 3")
    for k in range(2):
        for j in range(2): A(f"ds_write_b128 v{4+j}, {v(WA+4*(2*k+j),4)} offset:{k*256}")
    A(f"ds_write_b128 v6, {v(WA+16,4)} offset:512")
    pt(A, "add")
    A.label("K2_fin")
    def fin_x(n):
        FI = (244, 232)[n]; XB = FI + 4; D0 = 40 + 56*n
        for i in range(4): A(f"v_lshlrev_b32 v{D0+2*i}, 16, v{XB+i}\nv_and_b32 v{D0+1+2*i}, 0xffff0000, v{XB+i}")
        A(f"v_lshlrev_b32 v48, 16, v{FI+3}")
        for p in range(4): A(f"v_pk_add_f32 {v(D0+2*p,2)}, {v(D0+2*p,2)}, v[48:49] op_sel_hi:[1,0]")
    def fin(items):
        def addp(n, r):
            D0 = 40 + 56*n
            for i in range(4): A(f"v_lshlrev_b32 v{8+2*i}, 16, v{r+i}\nv_and_b32 v{9+2*i}, 0xffff0000, v{r+i}")
            for p in range(4): A(f"v_pk_add_f32 {v(D0+2*p,2)}, {v(D0+2*p,2)}, {v(8+2*p,2)}")
        for n in items: fin_x(n)
        A("s_waitcnt lgkmcnt(0)\ns_barrier")
        pt(A, "red")
        for n in items:
            FI = (244, 232)[n]; R = 16 + 12*n
            A(f"ds_read_b128 {v(R,4)}, v{FI+1}\nds_read_b128 {v(R+4,4)}, v{FI+1} offset:16\nds_read_b64 {v(R+8,2)}, v{FI+2}\nds_read_b64 {v(R+10,2)}, v{FI+2} offset:256")
        left = 4*len(items)
        for n in items:
            R = 16 + 12*n; D0 = 40 + 56*n
            A(f"s_waitcnt lgkmcnt({left-2})")
            for p in range(4): A(f"v_pk_add_f32 {v(D0+2*p,2)}, {v(D0+2*p,2)}, {v(R+2*p,2)}")
            left -= 4
            A(f"s_waitcnt lgkmcnt({left})")
            addp(n, R+8)
        A("s_waitcnt vmcnt(0)\ns_barrier")
        pt(A, "rx")
        for n in items:
            for q in range(3):
                A(f"ds_read_b64 {v(60+12*n+4*q,2)}, v{(252, 240)[n]} offset:{q*9*PBS}\nds_read_b64 {v(62+12*n+4*q,2)}, v{(252, 240)[n]} offset:{q*9*PBS + 256}")
        left = 6*len(items)
        for n in items:
            D0 = 40 + 56*n
            for q in range(3):
                left -= 2
                A(f"s_waitcnt lgkmcnt({left})")
                addp(n, 60+12*n+4*q)
            for p in range(4): A(f"v_cvt_pk_bf16_f32 v{52+4*n+p}, v{D0+2*p}, v{D0+1+2*p}")
            A(f"buffer_store_dwordx4 {v(52+4*n,4)}, v{(244, 232)[n]}, s[52:55], s50 offen {CFG.auxOut}")
    A("s_cmp_eq_u32 s16, 7\ns_cbranch_scc1 K2_fin2")
    fin([0])
    A("s_branch K2_done")
    A.label("K2_fin2")
    fin([0, 1])
    A.label("K2_done")
    pt(A, "fin")
    if CFG.probe:
        i, lo, hi = [int(x) for x in CFG.probe.split(",")]
        A(f"s_cmp_lg_u32 s16, 0\ns_cbranch_scc1 Z_end\ns_cmp_lt_u32 s2, {lo}\ns_cbranch_scc1 Z_end\ns_cmp_ge_u32 s2, {hi}\ns_cbranch_scc1 Z_end")
        A(f"Z_loop:\ns_sleep 1\ns_memrealtime s[4:5]\ns_waitcnt lgkmcnt(0)\ns_sub_u32 s7, s4, s{64+2*i}\ns_cmp_lt_u32 s7, 10000\ns_cbranch_scc1 Z_loop\nZ_end:")
    else: stamp_flush(A)
    A("s_endpgm")
    A.label("K2_ld")
    pt(A, "e1")
    k2_enter(A)
    A(f"s_cmp_eq_u32 s49, {OOB}\ns_cbranch_scc1 K2_ld1\ns_waitcnt vmcnt(0)")
    raise_flag(A, 49, 8)
    A.label("K2_ld1")
    if CFG.wreg == 1:
        A("s_cmp_lt_u32 s2, 144\ns_cbranch_scc1 K2_ld2")
        wot_flagaddr(A); wot_regs(A, False)
        A.label("K2_ld2")
    G2 = CFG.G2; altP = altW = None
    if CFG.own:
        G2 = "seq"
        A(f"s_mul_i32 s57, s28, 9\ns_sub_u32 s57, s24, s57\ns_lshl_b32 s57, s57, 1")
        if CFG.rev2: A("s_sub_u32 s58, 16, s57\ns_bitcmp1_b32 s2, 0\ns_cselect_b32 s57, s58, s57")
        A(f"s_cmp_lt_u32 s2, 144\ns_cselect_b32 s57, s57, 64\ns_cselect_b32 s58, {CFG.GO}, {CFG.G2}")
        A("s_add_u32 s59, s22, s23\ns_and_b32 s59, s59, 3\ns_mul_i32 s59, s59, s58\ns_lshr_b32 s59, s59, 2")
    elif G2: A(f"s_add_u32 s59, s22, s23\ns_and_b32 s59, s59, 3\ns_mul_i32 s59, s59, {CFG.G2}\ns_lshr_b32 s59, s59, 2")
    A(f"s_sub_u32 s29, s16, 4\ns_mul_i32 s34, s29, 9216")
    A(f"s_lshl_b32 s32, s22, 2\ns_add_u32 s32, s32, s29\ns_mul_i32 s32, s32, 46080\ns_add_u32 s32, s32, {WOT_OFF}")
    A("v_and_b32 v24, 63, v0\nv_lshlrev_b32 v20, 4, v24\nv_add_u32 v21, 4096, v20\nv_add_u32 v22, 8192, v20")
    srd(A, 36, 26, OB_OFF + OB_SZ)
    A("s_waitcnt lgkmcnt(0)")
    k2_final_prep(A, 2)
    A("s_lshl_b32 s30, s23, 2\ns_add_u32 s30, s30, s22\ns_lshl_b32 s30, s30, 2\ns_add_u32 s30, s30, s28\ns_lshl_b32 s30, s30, 2\ns_add_u32 s30, s30, s29")
    A(f"s_add_u32 s3, s30, {FX}\ns_lshl_b32 s3, s3, 7\nv_mov_b32 v32, s3\ns_mul_i32 s30, s30, 9216")
    A(f"s_cmp_gt_u32 s29, s28\ns_cselect_b32 s3, 1, 0\ns_sub_u32 s31, s29, s3\ns_mul_i32 s31, s31, {9*PBS}")
    A(f"s_lshl_b32 s40, s22, 2\ns_add_u32 s40, s40, s29\ns_mul_i32 s40, s40, 5\ns_add_u32 s40, s40, {FW}\nv_add_u32 v28, s40, v24\nv_cmp_gt_u32 vcc, 5, v24")
    A(f"s_lshl_b32 s33, s23, 2\ns_add_u32 s33, s33, s28\ns_lshl_b32 s33, s33, 2\ns_add_u32 s33, s33, s29\ns_lshr_b32 s40, s33, 1\ns_add_u32 s40, s40, {FO}")
    A(f"v_mov_b32 v29, s40\nv_cndmask_b32 v28, v29, v28, vcc\nv_lshlrev_b32 v28, 7, v28\ns_mul_i32 s33, s33, 10240\ns_add_u32 s33, s33, {OB_OFF}")
    def go_barrier(only_q=False):
        L = A.newlabel("Lg")
        A(f"s_sub_u32 s3, s2, 208\ns_cmp_ge_u32 s3, 32\ns_cbranch_scc1 {L}")
        if CFG.wreg >= 2:
            wot_flagaddr(A); wot_regs(A, False)
        A(f"s_and_b32 s3, s2, 1\ns_lshl_b32 s3, s3, 2\ns_add_u32 s3, s3, s29\ns_mul_i32 s3, s3, 6\ns_lshl_b32 s41, s3, 10\ns_add_u32 s41, s41, {KVF_OFF}\ns_add_u32 s3, s3, {FK}")
        A(f"v_min_u32 v14, 5, v24\nv_add_lshl_u32 v14, v14, s3, 7\ns_mul_i32 s43, s29, 6144\ns_add_u32 m0, s43, {P0}")
        poll2(A, 14, 16, CFG.slo, CFG.slo2)
        for b in range(6):
            if b == 4: A(f"s_add_u32 m0, s43, {P0 + 4096}\ns_nop 0")
            if b == 5: A("s_bitcmp1_b32 s29, 0\ns_cselect_b64 exec, 0xffff, -1")
            A(f"buffer_load_dwordx4 v{20+b//4}, s[36:39], s41 offen offset:{(b%4)*1024} sc1 lds")
        A("s_mov_b64 exec, -1\ns_waitcnt vmcnt(0)")
        if only_q: A("s_barrier")
        A.label(L)
        if not only_q: A("s_barrier")
        if CFG.wreg >= 2:
            L = A.newlabel("Lg")
            A(f"s_cmp_lt_u32 s2, 144\ns_cbranch_scc1 {L}\ns_sub_u32 s3, s2, 208\ns_cmp_lt_u32 s3, 32\ns_cbranch_scc1 {L}")
            wot_flagaddr(A); wot_regs(A, False)
            A("s_waitcnt vmcnt(0)")
            A.label(L)
    assert CFG.bgo == 2
    hook = {15: lambda: A("buffer_load_dwordx2 v[30:31], v28, s[96:99], 0 offen sc1")}
    def nine(so, base):
        for j in range(9):
            if j % 4 == 0: A(f"s_add_u32 m0, s34, {base + (j//4)*4096}\ns_nop 0")
            A(f"buffer_load_dwordx4 v{20+j//4}, s[36:39], s{so} offen offset:{(j%4)*1024} sc1 lds")
    def ld_o():
        L = A.newlabel("Lt")
        A(f"v_cmp_ne_u64 vcc, s[100:101], v[30:31]\ns_nop 4\ns_cbranch_vccz {L}")
        poll(A, 28, 30)
        A.label(L)
        nine(33, O_LDS)
        A(f"s_lshl_b32 s3, s29, 10\ns_add_u32 m0, s3, {O_TOP - 1024}\ns_nop 0\nbuffer_load_dwordx4 v22, s[36:39], s33 offen offset:1024 sc1 lds")
    def ld_w(u, regs):
        if regs and CFG.w0 <= u < CFG.w0 + CFG.wn:
            def put():
                A(f"s_add_u32 s3, s34, {W_SLOT[u]*STAGE}\nv_add_u32 v36, s3, v20\ns_add_u32 s32, s32, 9216")
                for b in range(9): A(f"ds_write_b128 v36, {v(WR+36*(u-CFG.w0)+4*b,4)} offset:{b*1024}")
            return (f"w{u}", 0, put)
        def emit():
            nine(32, W_SLOT[u]*STAGE)
            A("s_add_u32 s32, s32, 9216")
        return (f"w{u}", 9, emit)
    sample = ("fx", 1, lambda: A("buffer_load_dwordx2 v[34:35], v32, s[96:99], 0 offen sc1"))
    def mksched(regs):
        after = {15: [("o", 10, ld_o)], 16: [ld_w(0, regs)], 17: [], 18: [ld_w(2, regs)], 19: [ld_w(3, regs)], 20: [ld_w(4, regs)], 21: []}
        after[18 if CFG.hold else 17].insert(0, ld_w(1, regs))
        after[CFG.smp].append(sample)
        inreg = [u for u in range(5) if regs and CFG.w0 <= u < CFG.w0 + CFG.wn]
        lg = {18+u: (9 if u+1 in inreg else 0) for u in inreg}
        return (23, after, {18+u: f"w{u}" for u in range(4)} | {22: "fx"}, lg)
    sched = [mksched(CFG.wreg in (1, 2))]
    if CFG.wreg == 3: sched = [mksched(True), ("s_cmp_lt_u32 s2, 144", mksched(False))]
    A("s_cmp_ge_u32 s16, 6\ns_cbranch_scc1 K2_ldW")
    srd_off(A, 8, 26, U_OFF, U_SZ)
    A(f"s_sub_u32 s17, s16, 4\ns_lshl_b32 s21, s22, 2\ns_add_u32 s21, s21, s28\ns_mul_i32 s40, s21, 36\ns_mul_i32 s21, s21, {36*9216}")
    if 1:
        if CFG.hint2 >= 0:
            A(f"s_lshr_b32 s3, s40, 2\ns_and_b32 s41, s23, 7\ns_add_u32 s3, s3, s41\ns_add_u32 s3, s3, {FG}\ns_lshl_b32 s3, s3, 7\nv_mov_b32 v9, s3")
        A(f"s_add_u32 s40, s40, s17\ns_add_u32 s40, s40, {FU}\nv_min_u32 v8, 17, v24\nv_lshl_add_u32 v8, v8, 1, s40\nv_lshlrev_b32 v8, 7, v8")
    if CFG.own:
        def altP(issue, L):
            A("s_cmp_ge_u32 s2, 144\ns_cbranch_scc1 K2_pn\ns_barrier\ns_mov_b64 exec, 1\nbuffer_load_dwordx2 v[10:11], v8, s[96:99], 0 offen sc1\ns_barrier\ns_barrier")
            A("s_waitcnt vmcnt(0)\nv_cmp_ne_u64 vcc, s[100:101], v[10:11]\ns_nop 4\ns_cbranch_vccz K2_pg")
            poll(A, 8, 10, CFG.sl1)
            A.label("K2_pg")
            A("s_mov_b64 exec, -1")
            poll(A, 8, 10, CFG.sl2)
            pt(A, "go2")
            for sl in (2, 3, 0): issue(sl)
            A(f"s_branch {L}_2")
            A.label("K2_pn")
        def altW(issue, L):
            A(f"s_cmp_ge_u32 s2, 144\ns_cbranch_scc1 K2_wn\ns_mov_b32 s25, s21\ns_mul_i32 s21, s24, {128*4096}\ns_lshl_b32 s3, s23, 8\ns_add_u32 s21, s21, s3")
            issue(0, False)
            A(f"s_add_u32 s21, s21, {64*4096}")
            issue(1, False)
            A("s_mov_b32 s21, s25")
            if CFG.early: A("s_barrier")
            issue(2)
            A(f"s_branch {L}")
            A.label("K2_wn")
    if CFG.own == 2:
        def altP(issue, L):
            A("s_cmp_ge_u32 s2, 144\ns_cbranch_scc1 K2_pn\ns_barrier")
            poll2(A, 8, 10, CFG.sl1, CFG.sl2)
            pt(A, "go2")
            issue(2); issue(3)
            A("s_waitcnt vmcnt(9)\ns_barrier")
            issue(0); issue(1)
            A(f"s_branch {L}_3")
            A.label("K2_pn")
        def altW(issue, L):
            A(f"s_cmp_ge_u32 s2, 144\ns_cbranch_scc1 K2_wn\ns_mov_b32 s25, s21\ns_mul_i32 s21, s24, {128*4096}\ns_lshl_b32 s3, s23, 8\ns_add_u32 s21, s21, s3")
            issue(0, False)
            A(f"s_add_u32 s21, s21, {64*4096}")
            issue(1, False)
            A("s_mov_b32 s21, s25\ns_waitcnt vmcnt(0)\ns_barrier")
            issue(2); issue(3)
            A("s_waitcnt vmcnt(8)\ns_barrier")
            issue(0); issue(1)
            A(f"s_branch {L}_3")
            A.label("K2_wn")
        assert CFG.early and not CFG.pft
    def wait_u():
        go_barrier()
        poll2(A, 8, 10, CFG.sl1, CFG.sl2, "s_cmp_lt_u32 s2, 144" if CFG.gdir else None, 9 if CFG.hint2 >= 0 else None)
        if CFG.dstag:
            mode, n = CFG.dstag.split(",")
            if mode == "ramp":
                A(f"s_lshr_b32 s3, s2, 5\nK2_ds:\ns_cmp_eq_u32 s3, 0\ns_cbranch_scc1 K2_ds1\ns_sleep {n}\ns_sub_u32 s3, s3, 1\ns_branch K2_ds\nK2_ds1:")
            else:
                A(f"s_cmp_lt_u32 s2, {mode}\ns_cbranch_scc1 K2_ds1\ns_sleep {n}\nK2_ds1:")
        pt(A, "go2")
    emit_loader_lin(A, 18, 9, POFF, 17, 8, 21, 20, 18, CFG.auxP, G2, pre=wait_u, hook=hook, sched=sched, alt=altP)
    A("s_branch K2_rx")
    A.label("K2_ldW")
    srd(A, 12, 4, S*F*2)
    A(f"s_sub_u32 s17, s16, 6\ns_mul_i32 s21, s28, {1152*4096}\ns_lshl_b32 s18, s23, 8\ns_add_u32 s21, s21, s18")
    every = None
    if CFG.pft:
        nl = -(-90 // CFG.pft)
        A(f"s_and_b32 s41, s23, 7\ns_lshl_b32 s42, s22, 3\ns_add_u32 s41, s41, s42\ns_lshl_b32 s41, s41, 1\ns_add_u32 s41, s41, s17\ns_mul_i32 s41, s41, 11520\ns_add_u32 s41, s41, {WOT_OFF}")
        A(f"v_mul_u32_u24 v26, {128*CFG.pft}, v24\nv_add_u32 v26, s41, v26\ns_bfm_b64 s[48:49], {nl}, 0\ns_mov_b32 s42, {-128*(18 - CFG.pft)}")
        def every():
            A(f"s_max_i32 s3, s42, 0\ns_cmp_lt_i32 s42, 0\ns_cselect_b32 s41, {OOB}, 0\nv_or_b32 v25, s41, v26\ns_mov_b64 exec, s[48:49]")
            A(f"buffer_load_dword v{SINK}, v25, s[36:39], s3 offen sc1\ns_mov_b64 exec, -1\ns_add_u32 s42, s42, 128")
    def mid():
        go_barrier(True)
    if CFG.early: A("s_cmp_lt_u32 s2, 144\ns_cbranch_scc1 K2_nob")
    A("s_sub_u32 s3, s2, 208\ns_cmp_lt_u32 s3, 32\ns_cbranch_scc1 K2_nob\ns_barrier\nK2_nob:")
    emit_loader_W(A, 18, "pi", 17, 12, 21, 4096, 20, 18, CFG.auxW2, G2, every=every, mid=mid, hook=hook, sched=sched, alt=altW)
    A.label("K2_rx")
    A("s_cmp_eq_u32 s29, s28\ns_cbranch_scc1 K2_fin")
    srd_off(A, 8, 26, PART_OFF, PART_SZ)
    A(f"s_add_u32 m0, s31, {PB}\nv_cmp_ne_u64 vcc, s[100:101], v[34:35]\nv_lshrrev_b32 v2, 5, v24\nv_xor_b32 v2, v2, v24\nv_lshlrev_b32 v2, 4, v2\ns_nop 1\ns_cbranch_vccz K2_rx1\ns_mov_b64 exec, 1")
    poll(A, 32, 34, CFG.slx)
    A.label("K2_rx1")
    pt(A, "poll")
    for t in range(9):
        A(f"buffer_load_dwordx4 v2, s[8:11], s30 offen sc1 lds\ns_add_u32 m0, m0, {PBS}\ns_add_u32 s30, s30, 1024")
    A("s_branch K2_fin")
    A.label("K_end")
    A("s_endpgm")
    DBG["on"] = False

def k2_final_prep(A, nitems):
    srd(A, 8, 44, S*D*2)
    srd(A, 12, 6, S*2)
    srd(A, 52, 46, S*D*2)
    A("s_lshl_b32 s50, s23, 2\ns_add_u32 s50, s50, s28\ns_lshl_b32 s51, s50, 6\ns_mul_i32 s50, s50, 36864\ns_mul_i32 s17, s22, 288\ns_add_u32 s50, s50, s17")
    for n in range(nitems):
        FI = (244, 232)[n]; XB = FI + 4
        if n: A(f"v_mov_b32 v{FI}, {OOB}\ns_cmp_lg_u32 s16, 7\ns_cbranch_scc1 K2_fp1")
        A("v_mov_b32 v252, v0" if n == 0 else "v_and_b32 v252, 63, v0\nv_add_u32 v252, 512, v252")
        A("v_mul_u32_u24 v253, 3641, v252\nv_lshrrev_b32 v253, 16, v253\nv_mul_u32_u24 v254, 18, v253\nv_sub_u32 v254, v252, v254")
        A(f"v_mul_u32_u24 v252, 1152, v253\nv_lshl_add_u32 v{FI}, v254, 4, v252")
        A(f"v_mul_u32_u24 v252, {RED_RS}, v253\nv_lshl_add_u32 v{FI+1}, v254, 5, v252\nv_add_u32 v{FI+1}, {RED}, v{FI+1}")
        A(f"v_lshrrev_b32 v252, 1, v254\nv_mul_u32_u24 v252, {PBS}, v252\nv_and_b32 v254, 1, v254\nv_lshl_add_u32 v252, v254, 9, v252\nv_xor_b32 v254, v254, v253\nv_and_b32 v254, 15, v254")
        A(f"v_lshl_add_u32 v252, v254, 4, v252\nv_lshrrev_b32 v254, 4, v253\nv_lshl_add_u32 v252, v254, 3, v252\nv_add_u32 v{(241, 240)[n]}, {PB}, v252\nv_add_u32 v{FI+2}, {PB_OWN}, v252")
        A("v_lshlrev_b32 v253, 1, v253")
        A(f"buffer_load_dwordx4 {v(XB,4)}, v{FI}, s[8:11], s50 offen\nbuffer_load_ushort v{FI+3}, v253, s[12:15], s51 offen")
        if n: A.label("K2_fp1")
    A("v_mov_b32 v252, v241")

HEADER = open("parallel_sum__linear_kernel_hedgehog__mixer_token_mlp__prompt.s.ref").read().split("; Override launch")[0] if __name__ == "__main__" else ""

def gen(**kw):
    global CFG
    for k in dir(Cfg):
        if not k.startswith("_"): setattr(CFG, k, kw.get(k, getattr(Cfg, k)))
    A = Asm()
    if HEADER: A(HEADER.rstrip())
    A(f"; @launch grid=(256,1,1) block=(512,1,1) lds={LDS_BYTES}")
    A('.amdgcn_target "amdgcn-amd-amdhsa--gfx950"\n.text')
    gen_k0(A); gen_k1(A); gen_k2(A)
    A.label("CODE_END")
    A("s_endpgm")
    A('.section .rodata,"a"')
    kernel_desc(A, KNAME, 256)
    return A.text()

if __name__ == "__main__":
    out = sys.argv[1] if len(sys.argv) > 1 else "parallel_sum__linear_kernel_hedgehog__mixer_token_mlp__prompt.s"
    kw = {}
    for a in sys.argv[2:]:
        k, val = a.split("=")
        kw[k] = val if not val.lstrip("-").isdigit() else int(val)
    open(out, "w").write(gen(**kw))
```

```python
import math, struct, sys
from asmlib import *

def f2u(x): return struct.unpack("<I", struct.pack("<f", x))[0]
LOG2E = math.log2(math.e)
OOB = 0x80000000

S, D, F, H, DH = 2048, 576, 4608, 32, 18
KA_X, KA_WQKV, KA_WPHI, KA_WO, KA_BX, KA_W1, KA_B1, KA_W2, KA_B2, KA_OUT, KA_DBG, KA_WS = [8*i for i in range(12)]
RS_OFF, RS_SZ = 0x0, 128*128
HT_OFF, HT_SZ = 0x240000, 2359296
WF_OFF, WF_SZ = 0x480000, 6*18*18*1024
U_OFF, U_SZ = 0x680000, 5308416
PHIQ_OFF, PHIQ_SZ = 0xC00000, 4718592
KVP_OFF, KVP_SZ = 0x1080000, 16*48*2048
KVF_OFF, KVF_SZ = 0x12C0000, 48*1024
WOT_OFF, WOT_SZ = 0x1300000, 16*45*1024
OB_OFF, OB_SZ = 0x2000000, 64*4*10240
PART_OFF, PART_SZ = 0x1400000, 64*16*9216
FLAG_OFF, FLAG_SZ = 0x1F00000, 0x58000
F0, F1, FU, FW, FK, FP, FO, FX, FE = 0, 256, 704, 1280, 1360, 1408, 1472, 1600, 2624
FH, FG = 2632, 2640
KNAME = "parallel_sum__linear_kernel_hedgehog__mixer_token_mlp__prompt_kernel"
SINK = 255
STAMP_OFF, STAMP_SZ = 0x3000000, 0x100000

STAGE, POFF, WOFF, NST = 36864, 0, 18432, 4
STAGE2 = STAGE
V_PA, V_PB, V_W0A, V_W1A, V_W0B, V_W1B = 2, 3, 4, 5, 6, 7
V_PF, V_WF, V_ACC = 8, 80, 96
def pf(b, t): return v(V_PF + b*36 + t*4, 4)
def wf(b, j): return v(V_WF + b*8 + j*4, 4)
def accr(st, t, j): return V_ACC + st*72 + (t*2+j)*4
def acc(st, t, j): return v(accr(st, t, j), 4)
MF = "v_mfma_f32_16x16x32_bf16"

class Cfg:
    stamp = False
    auxW1 = ""; auxW2 = ""; auxP = "sc1"; auxSt = "sc1"
    G1 = 0; G2 = 0; GA = 0
    auxOut = ""; flagpos = 1; pollpos = 1
    pts = ""; pf1b = 0; pf2w = 0; pubpos = 0; pf1kv = 0; dfold = 0; tl0 = 0; rot8 = 0; pf2G = 0; pf2Gp = 0; sl1g = 8; sl2g = 1; sA = 0; wn = 2; w0 = 2; rev2 = 0; early = 0; own = 0; ownpf = 0; GO = 4; burn = ""; w22 = 0; koff = 0; dstag = ""; wreg = 0; wpos = 3; glag = 0; hold = 1; smp = 20; prio = 0; prio1 = 0; pfpos = 0; c3s = 0; hint2 = -1; hint1 = 0; prew = 0; gdir = 0; half = 0; pf2l = 0; pf2ls = 0; ost = 0; slo2 = 1; slx = 0; slo = 4; opos = 0; dl0 = 0; dlf = 0; dlw = 0; pff = 0; wide = 0; wot1 = 0; pf1q = 0; slim = 1; unroll = 0; sl0a = 0; wlate = 0; qlim = -1; pfbar = 0; pf1a = 0; c3w2 = 0; c3w1 = 0; swap13 = 1; tlb = 0; sl1 = 0; sl2 = 0; bgo = 0; sl0 = 0; slk = 0
    dbg_nopub = 0; dbg_hot = 0; dbg = ""
    pfc = 0
    pf1 = 0
    pf1l = 0; pf1rev = 0; pf2g = 0; pf2pos = 3
    pf1pos = 0
    pf1s = 0
    pft = 0
    pf2kv = 0; pf2q = 0; pf2s = 0
    probe = ""
CFG = Cfg()

def stamp(A, i):
    if CFG.stamp: A(f"{'s_memtime' if CFG.stamp == 2 else 's_memrealtime'} s[{64+2*i}:{65+2*i}]")
def pt(A, name):
    L = CFG.pts.split(",")
    if name in L: stamp(A, 1 + L.index(name))
def stamp_flush(A):
    if not CFG.stamp: return
    A("s_waitcnt vmcnt(0)")
    stamp(A, 13)
    A("s_waitcnt lgkmcnt(0)")
    srd_off(A, 92, 26, STAMP_OFF, STAMP_SZ)
    A("s_lshl_b32 s63, s2, 3\ns_add_u32 s63, s63, s16\ns_lshl_b32 s63, s63, 6\ns_mov_b64 exec, 1\nv_mov_b32 v1, 0")
    for i in range(14):
        A(f"v_mov_b32 v2, s{64+2*i}\nbuffer_store_dword v2, v1, s[92:95], s63 offen offset:{4*i}")

def emit_compute_addr(A, s_wave, mode):
    if CFG.w22 and mode != "lin": return addr22(A, s_wave, mode)
    A("v_and_b32 v1, 63, v0")
    A(f"v_lshlrev_b32 v{V_PA}, 4, v1")
    A(f"v_add_u32 v{V_PB}, {2*STAGE}, v{V_PA}")
    if mode == "lin":
        A("v_lshrrev_b32 v8, 5, v1\nv_lshlrev_b32 v8, 12, v8\nv_bfe_u32 v9, v1, 4, 1\nv_lshl_add_u32 v8, v9, 7, v8\nv_bfe_u32 v9, v1, 2, 2\nv_lshl_add_u32 v8, v9, 4, v8")
        A("v_bfe_u32 v9, v1, 1, 1\nv_mul_u32_u24 v9, 320, v9\nv_add_u32 v8, v8, v9\nv_and_b32 v9, 1, v1\nv_lshl_add_u32 v8, v9, 3, v8")
        A(f"s_lshl_b32 s3, s{s_wave}, 10\ns_add_u32 s3, s3, {WOFF}\nv_add_u32 v{V_W0A}, s3, v8")
        A(f"v_xor_b32 v{V_W1A}, 64, v{V_W0A}\nv_add_u32 v{V_W0B}, {2*STAGE}, v{V_W0A}\nv_add_u32 v{V_W1B}, {2*STAGE}, v{V_W1A}")
        return
    A("v_lshrrev_b32 v8, 2, v1")
    A("v_and_b32 v9, 7, v8")
    if mode == "std":
        A("v_and_b32 v10, 12, v8\nv_add_u32 v8, v8, v10")
    A(f"s_lshl_b32 s3, s{s_wave}, 1")
    A("v_xor_b32 v9, s3, v9\nv_lshlrev_b32 v9, 5, v9\nv_lshl_add_u32 v9, v8, 8, v9")
    A("v_and_b32 v8, 3, v1\nv_lshl_add_u32 v9, v8, 3, v9")
    A(f"v_add_u32 v{V_W0A}, {WOFF}, v9")
    A(f"v_xor_b32 v{V_W1A}, 32, v{V_W0A}")
    A(f"v_add_u32 v{V_W0B}, {2*STAGE}, v{V_W0A}")
    A(f"v_add_u32 v{V_W1B}, {2*STAGE}, v{V_W1A}")

X22 = 80
def addr22(A, s_wave, mode):
    A("v_and_b32 v1, 63, v0")
    A(f"v_lshlrev_b32 v{V_PA}, 4, v1\nv_add_u32 v{V_PB}, {2*STAGE}, v{V_PA}")
    A(f"s_and_b32 s3, s{s_wave}, 1\ns_mul_i32 s3, s3, 5120\nv_add_u32 v4, s3, v{V_PA}\nv_add_u32 v5, s3, v{V_PB}")
    A("v_lshrrev_b32 v8, 2, v1\nv_and_b32 v9, 7, v8")
    if mode == "std": A("v_and_b32 v10, 12, v8\nv_add_u32 v8, v8, v10")
    A(f"s_lshl_b32 s3, s{s_wave}, 1")
    A("v_xor_b32 v9, s3, v9\nv_lshlrev_b32 v9, 5, v9\nv_lshl_add_u32 v9, v8, 8, v9")
    A(f"v_and_b32 v8, 3, v1\nv_lshl_add_u32 v9, v8, 3, v9\nv_add_u32 v{X22}, {WOFF}, v9")
    for jj in range(1, 4): A(f"v_xor_b32 v{X22+jj}, {32*jj}, v{X22}")
    for jj in range(4): A(f"v_add_u32 v{X22+4+jj}, {2*STAGE}, v{X22+jj}")
def pf22(b, i): return V_PF + 36*b + 4*i
def wf22(b, jj): return V_PF + 36*b + 20 + 4*jj
def reads22(slot, sub, b, mode):
    hi = slot >= 2; so = (slot & 1) * STAGE
    second = 1024 if mode == "std" else 4096
    W = []
    for jj in range(4):
        a = X22 + jj + (4 if hi else 0)
        W.append([f"ds_read_b64_tr_b16 {v(wf22(b,jj)+2*h,2)}, v{a} offset:{so + sub*8192 + h*second}" for h in range(2)])
    P = [f"ds_read_b128 {v(pf22(b,i),4)}, v{(5 if hi else 4) if i < 4 else (V_PB if hi else V_PA)} offset:{so + (sub*9+i)*1024}" for i in range(5)]
    return W[0] + W[1] + W[2] + W[3] + P
def mfmas22(b, w_is_A):
    M = []
    for blk in range(9):
        i, h = (blk >> 1, blk & 1) if blk < 8 else (4, 0)
        for j in range(2):
            p_, w_ = v(pf22(b,i),4), v(wf22(b,2*h+j),4)
            M.append(f"{MF} {acc(0,blk,j)}, {w_ if w_is_A else p_}, {p_ if w_is_A else w_}, {acc(0,blk,j)}")
    return M

def reads_P(slot, sub, b):
    a = V_PB if slot >= 2 else V_PA
    so = (slot & 1) * STAGE
    return [f"ds_read_b128 {pf(b,t)}, v{a} offset:{so + (sub*9+t)*1024}" for t in range(9)]
def reads_W(slot, sub, b, mode):
    hi = slot >= 2
    so = (slot & 1) * STAGE
    R = []
    if mode == "lin":
        a = (V_W0B, V_W1B) if hi else (V_W0A, V_W1A)
        return [f"ds_read_b64_tr_b16 {v(V_WF + b*8 + j*4 + 2*h, 2)}, v{a[h]} offset:{so + j*512}" for j in range(2) for h in range(2)]
    second = 1024 if mode == "std" else 4096
    for j in range(2):
        a = (V_W0B, V_W1B)[j] if hi else (V_W0A, V_W1A)[j]
        base = V_WF + b*8 + j*4
        R.append(f"ds_read_b64_tr_b16 {v(base,2)}, v{a} offset:{so + sub*8192}")
        R.append(f"ds_read_b64_tr_b16 {v(base+2,2)}, v{a} offset:{so + sub*8192 + second}")
    return R

DBG = {"on": False}
def dbg(x): return DBG["on"] and x in CFG.dbg.split(",")
def block(A, M, R, barrier):
    if dbg("nomfma"): M = ["s_nop 3"]*len(M)
    if dbg("noread"): R = []
    if dbg("noreadP"): R = [r for r in R if "tr_b16" in r]
    if dbg("halfP"): R = [r for i, r in enumerate(R) if "tr_b16" in r or i % 2]
    A("s_waitcnt lgkmcnt(0)")
    if barrier: A("s_barrier")
    ri = 0
    for m in M:
        A(m)
        if ri < len(R):
            if R[ri]: A(R[ri])
            ri += 1
    assert ri == len(R)

def mfmas(st, pb, wb, w_is_A):
    M = []
    for t in range(9):
        for j in range(2):
            a, b = (wf(wb,j), pf(pb,t)) if w_is_A else (pf(pb,t), wf(wb,j))
            M.append(f"{MF} {acc(st,t,j)}, {a}, {b}, {acc(st,t,j)}")
    return M

def emit_compute_loop(A, n, mode, w_is_A, s_cnt, first=None, lastfill=None, hooks=None, loopend=None, more=None, own=False):
    lin = mode == "lin"
    if own:
        rd = lambda sl, sub, b: reads_W(sl, sub, b, mode) + reads_P(sl, sub, b)
        A("s_cmp_ge_u32 s2, 144\ns_cbranch_scc1 K2_cn")
        if CFG.own > 2: A("s_barrier")
        pt(A, "own")
        for r in rd(0, 0, 0): A(r)
        for k in range(4): block(A, mfmas(0, k & 1, k & 1, w_is_A[0]), rd((k+1) >> 1, (k+1) & 1, (k+1) & 1) if k < 3 else [], False)
        A("s_barrier")
        if first: first()
        for r in rd(2, 0, 0): A(r)
        A(f"s_mov_b32 s{s_cnt}, {(n - 1) // NST}\ns_branch K2_c2")
        A.label("K2_cn")
    A("s_barrier")
    if first: first()
    w22 = CFG.w22 and not lin
    for r in (reads22(0, 0, 0, mode) if w22 else reads_W(0, 0, 0, mode) + reads_P(0, 0, 0)): A(r)
    def stage(i, last):
        slot = i % NST; nxt = (i+1) % NST
        if lin:
            wb = i & 1
            block(A, mfmas(0, 0, wb, w_is_A[0]), reads_P(slot, 1, 1), False)
            block(A, mfmas(1, 1, wb, w_is_A[1]), (lastfill or []) if last else reads_W(nxt, 0, wb ^ 1, mode) + reads_P(nxt, 0, 0), not last)
        elif w22:
            block(A, mfmas22(0, w_is_A[0]), reads22(slot, 1, 1, mode), False)
            block(A, mfmas22(1, w_is_A[1]), (lastfill or []) if last else reads22(nxt, 0, 0, mode), not last)
        else:
            x0, x1 = (more or {}).get(i, ([], []))
            block(A, mfmas(0, 0, 0, w_is_A[0]), reads_W(slot, 1, 1, mode) + reads_P(slot, 1, 1) + x0, False)
            block(A, mfmas(0, 1, 1, w_is_A[1]), (lastfill or []) if last else reads_W(nxt, 0, 0, mode) + reads_P(nxt, 0, 0) + x1, not last)
    if CFG.unroll and mode == ("std", "pi")[CFG.unroll-1]:
        for i in range(n):
            stage(i, i == n-1); pt(A, f"s{i}")
            if i == 3 and loopend: loopend()
        return
    nloop = (n - 1) // NST
    L = A.newlabel("Lc")
    A(f"s_mov_b32 s{s_cnt}, {nloop}")
    A.label(L)
    for i in range(NST):
        if own and i == 2: A.label("K2_c2")
        stage(i, False)
    if loopend: loopend()
    A(f"s_sub_u32 s{s_cnt}, s{s_cnt}, 1\ns_cmp_lg_u32 s{s_cnt}, 0\ns_cbranch_scc1 {L}")
    for i in range(nloop*NST, n):
        if hooks and i in hooks: hooks[i]()
        stage(i, i == n-1)

def seq_off(A, s_off, step):
    A(f"s_cmp_ge_u32 s59, s57\ns_cselect_b32 s62, 2, 0\ns_add_u32 s62, s62, s59\ns_mul_i32 s62, s62, s19\ns_add_u32 s{s_off}, s35, s62")
def rot_init(A, G, s_rot, s_off, step):
    if G == "seq":
        A(f"s_mov_b32 s35, s{s_off}\ns_sub_u32 s60, s58, s59\ns_mov_b32 s61, s58\ns_mov_b32 s19, {step}")
        if CFG.rev2: A(f"s_bitcmp1_b32 s2, 0\ns_cselect_b32 s62, {17*step}, 0\ns_cselect_b32 s19, {-step}, s19\ns_add_u32 s35, s35, s62")
        return seq_off(A, s_off, step)
    if DBG.get("koff"):
        A(f"s_and_b32 s58, s2, 6\ns_lshl_b32 s58, s58, 2\ns_mul_i32 s62, s58, {step}\ns_add_u32 s{s_off}, s{s_off}, s62\ns_sub_u32 s58, 32, s58")
    if not G: return
    A(f"s_mul_i32 s62, s{s_rot}, {step}\ns_add_u32 s{s_off}, s{s_off}, s62")
    A(f"s_sub_u32 s60, {G}, s{s_rot}\ns_mov_b32 s61, {G}")
def rot_step(A, G, s_off, step):
    if dbg("noadv"): return
    if dbg("k2W") and step == 64*4096: return
    if dbg("k2P") and step == 18432: return
    if "k1W" in CFG.dbg and step == 64*9216: return
    if "k1P" in CFG.dbg and DBG.get("k1P"): return
    if G == "none": return
    if G == "seq":
        A("s_add_u32 s59, s59, 1\ns_sub_u32 s60, s60, 1\ns_cmp_eq_u32 s60, 0\ns_cselect_b32 s62, s58, 0\ns_cselect_b32 s60, s58, s60\ns_sub_u32 s59, s59, s62")
        A("s_sub_u32 s61, s61, 1\ns_cmp_eq_u32 s61, 0\ns_cselect_b32 s62, s58, 0\ns_cselect_b32 s61, s58, s61\ns_add_u32 s59, s59, s62")
        return seq_off(A, s_off, step)
    A(f"s_add_u32 s{s_off}, s{s_off}, {step}")
    if DBG.get("koff"):
        A(f"s_sub_u32 s58, s58, 1\ns_cmp_eq_u32 s58, 0\ns_cselect_b32 s62, {32*step}, 0\ns_sub_u32 s{s_off}, s{s_off}, s62")
    if not G: return
    A(f"s_sub_u32 s60, s60, 1\ns_cmp_eq_u32 s60, 0\ns_cselect_b32 s62, {G*step}, 0\ns_cselect_b32 s60, {G}, s60\ns_sub_u32 s{s_off}, s{s_off}, s62")
    A(f"s_sub_u32 s61, s61, 1\ns_cmp_eq_u32 s61, 0\ns_cselect_b32 s62, {G*step}, 0\ns_cselect_b32 s61, {G}, s61\ns_add_u32 s{s_off}, s{s_off}, s62")

def emit_loader(A, n, cnt, issue, s_cnt, extra=None, hook=None, post=None, pre=None, mid=None, sched=None, loopend=None, alt=None):
    extra = extra or []
    tot = n + len(extra)
    hook = hook or {}
    def c(i): return 0 if i >= tot else (cnt + (i in hook) if i < n else extra[i-n][0])
    nloop = (n - 3) // NST
    L = A.newlabel("Ll")
    A(f"s_mov_b32 s{s_cnt}, {nloop}")
    if alt: alt(issue, L)
    if pre: pre()
    for i in range(3): issue(i)
    if mid: mid()
    A.label(L)
    for i in range(NST):
        if i >= 2: A.label(L + f"_{i}")
        A(f"s_waitcnt vmcnt({2*cnt})\ns_barrier")
        issue((i+3) % NST)
    if loopend: loopend()
    A(f"s_sub_u32 s{s_cnt}, s{s_cnt}, 1\ns_cmp_lg_u32 s{s_cnt}, 0\ns_cbranch_scc1 {L}")
    def run_sched(sched):
        nbar, after, need, lg = sched
        order = [(k, cnt) for k in range(nloop*NST + 3)]
        for i in range(nloop*NST, nbar):
            name = need.get(i, i)
            pos = max(p for p, (k, _) in enumerate(order) if k == name)
            A(f"s_waitcnt vmcnt({sum(c_ for _, c_ in order[pos+1:])})" + (f" lgkmcnt({lg[i]})" if i in lg else "") + "\ns_barrier")
            if i+3 in hook: hook[i+3](); order.append((i+3, 1))
            if i+3 < n: issue((i+3) % NST); order.append((i+3, cnt))
            for name, c_, emit in after.get(i, []):
                emit(); order.append((name, c_))
    if sched:
        X = A.newlabel("Lz")
        if len(sched) > 1: A(f"{sched[1][0]}\ns_cbranch_scc1 {X}_b")
        run_sched(sched[0])
        if len(sched) > 1:
            A(f"s_branch {X}\n{X}_b:")
            run_sched(sched[1][1])
        A.label(X)
        return
    for i in range(nloop*NST, tot):
        A(f"s_waitcnt vmcnt({c(i+1)+c(i+2) + (post[0] if post and i > n-post[2] else 0)})\ns_barrier")
        if post and i == n-post[2]: post[1]()
        if i+3 in hook: hook[i+3]()
        if i+3 < n: issue((i+3) % NST)
        elif i+3 < tot: extra[i+3-n][1]((i+3) % NST)

def emit_loader_lin(A, n, per, ldsoff, s_lw, srdP, s_off, s_cnt, s_tmp, aux="", G=0, s_rot=59, extra=None, post=None, pre=None, hook=None, sched=None, loopend=None, alt=None):
    rot_init(A, G, s_rot, s_off, 2*per*1024)
    A("v_and_b32 v1, 63, v0\nv_lshlrev_b32 v1, 4, v1")
    A(f"s_mul_i32 s{s_tmp}, s{s_lw}, {per*1024}")
    A(f"v_add_u32 v2, s{s_tmp}, v1")
    for q in range(1, (per+3)//4): A(f"v_add_u32 v{2+q}, {q*4096}, v2")
    def issue(slot):
        for j in range(per):
            if j % 4 == 0:
                A(f"s_add_u32 m0, s{s_tmp}, {slot*STAGE + ldsoff + (j//4)*4096}\ns_nop 0")
            if not dbg("noload"): A(f"buffer_load_dwordx4 v{2+j//4}, {s(srdP,4)}, s{s_off} offen offset:{(j%4)*1024} {aux} lds")
        rot_step(A, G, s_off, 2*per*1024)
    emit_loader(A, n, per, issue, s_cnt, extra, hook=hook, post=post, pre=pre, sched=sched, loopend=loopend, alt=alt)

def emit_loader_W(A, n, mode, s_lw, srdW, s_off, stride, s_cnt, s_tmp, aux="", G=0, s_rot=59, extra=None, hook=None, post=None, every=None, mid=None, sched=None, loopend=None, alt=None):
    rot_init(A, G, s_rot, s_off, 64*stride)
    A("v_and_b32 v1, 63, v0\nv_lshrrev_b32 v10, 4, v1\nv_and_b32 v11, 15, v1")
    A(f"s_lshl_b32 s{s_tmp}, s{s_lw}, 5\nv_add_u32 v12, s{s_tmp}, v10")
    A(f"s_mov_b32 s3, {stride}\nv_mul_lo_u32 v12, v12, s3")
    for par in range(2):
        A(f"v_or_b32 v13, {4*par}, v10\nv_lshlrev_b32 v13, 1, v13\nv_xor_b32 v13, v13, v11")
        A("v_lshl_add_u32 v13, v13, 4, v12")
        for j in range(8):
            key = (j & 1) if mode == "pi" else ((j >> 1) & 1)
            if key == par:
                A(f"v_add_u32 v{2+j}, {4*j*stride - (j%4)*1024}, v13")
    A(f"s_lshl_b32 s{s_tmp}, s{s_lw}, 13")
    def issue(slot, adv=True):
        for j in range(8):
            if j % 4 == 0:
                A(f"s_add_u32 m0, s{s_tmp}, {slot*STAGE + WOFF + (j//4)*4096}\ns_nop 0")
            if not dbg("noload"): A(f"buffer_load_dwordx4 v{2+j}, {s(srdW,4)}, s{s_off} offen offset:{(j%4)*1024} {aux} lds")
        if every: every()
        rot_step(A, G if adv else 'none', s_off, 64*stride)
    emit_loader(A, n, 9 if every else 8, issue, s_cnt, extra, hook, post, mid=mid, sched=sched, loopend=loopend, alt=alt)

def pf_w1(A, srdn, s_col, s_idx, step, count, vl, vt, lim=None, rev=0, lanes=64, base=0):
    for c in range(count):
        if rev: A(f"s_sub_u32 s57, {rev-1}, s{s_idx}\ns_lshl_b32 s57, s57, 6")
        else: A(f"s_mul_i32 s57, s{s_idx}, {lanes}")
        if base: A(f"s_add_u32 s57, s57, {base}")
        A(f"v_add_u32 v{vt}, s57, v{vl}")
        if CFG.koff:
            A(f"s_and_b32 s57, s2, 6\ns_mul_i32 s57, s57, 2560\nv_add_u32 v{vt}, s57, v{vt}\nv_subrev_u32 v{vt+1}, 20480, v{vt}\nv_min_u32 v{vt}, v{vt}, v{vt+1}")
        A(f"v_mul_u32_u24 v{vt+1}, 52429, v{vt}\nv_lshrrev_b32 v{vt+1}, 19, v{vt+1}")
        A(f"v_mul_u32_u24 v{vt+1}, {9216-1280}, v{vt+1}\nv_lshl_add_u32 v{vt}, v{vt}, 7, v{vt+1}")
        if lanes < 64: A(f"s_bfm_b64 exec, {lanes}, 0")
        A(f"buffer_load_dword v{SINK}, v{vt}, {s(srdn,4)}, s{s_col} offen")
        if lanes < 64: A("s_mov_b64 exec, -1")
        A(f"s_add_u32 s{s_idx}, s{s_idx}, {step}")
        if lim is not None: A(f"s_waitcnt vmcnt({lim})")
def pf_code(A, start):
    L = A.newlabel("Lpc")
    A(f"s_getpc_b64 s[60:61]\n{L}:\ns_add_u32 s60, s60, {start}-{L}\ns_addc_u32 s61, s61, 0")
    A(f"v_lshlrev_b32 v90, 7, v0\nv_min_u32 v90, CODE_END-{start}-4, v90\nglobal_load_dword v{SINK}, v90, s[60:61]")
def pf_w1_col(A, s_col):
    A(f"s_and_b32 s{s_col}, s2, 7\ns_mul_i32 s{s_col}, s{s_col}, 18\ns_lshr_b32 s{s_col}, s{s_col}, 2\ns_lshl_b32 s{s_col}, s{s_col}, 8")
def pf_w2(A, s_ptr, s_idx, step, count, lim=None, srdn=52):
    if not count: return
    srd(A, srdn, s_ptr, S*F*2)
    A(f"s_bfe_u32 s57, s2, 0x20001\ns_mul_i32 s57, s57, {1152*4096}\ns_and_b32 s58, s2, 1\ns_lshl_b32 s58, s58, 11\ns_add_u32 s57, s57, s58")
    if CFG.rev2:
        A(f"s_sub_u32 s58, 287, s{s_idx}\ns_bitcmp1_b32 s2, 0\ns_cselect_b32 s58, s58, s{s_idx}\ns_lshl_b32 s58, s58, 14\ns_add_u32 s57, s57, s58")
        A(f"s_mov_b32 s58, {step*16384}\ns_bitcmp1_b32 s2, 0\ns_cselect_b32 s58, {-step*16384}, s58")
    else: A(f"s_lshl_b32 s58, s{s_idx}, 14\ns_add_u32 s57, s57, s58\ns_mov_b32 s58, {step*16384}")
    A("v_bfe_u32 v30, v0, 4, 2\nv_lshlrev_b32 v30, 12, v30\nv_and_b32 v31, 15, v0\nv_lshl_add_u32 v30, v31, 7, v30")
    for c in range(count):
        A(f"buffer_load_dword v{SINK}, v30, {s(srdn,4)}, s57 offen\ns_add_u32 s57, s57, s58")
        if lim is not None: A(f"s_waitcnt vmcnt({lim})")

def pf_w2c3(A, s_ptr, s_idx, step, count, lim=None):
    srd(A, 52, s_ptr, S*F*2)
    A(f"s_bfe_u32 s57, s2, 0x20001\ns_mul_i32 s57, s57, {1152*4096}\ns_and_b32 s58, s2, 1\ns_lshl_b32 s58, s58, 11\ns_add_u32 s57, s57, s58")
    A(f"s_lshl_b32 s58, s{s_idx}, 17\ns_add_u32 s57, s57, s58\ns_add_u32 s57, s57, 384")
    A("v_bfe_u32 v30, v0, 1, 5\nv_lshlrev_b32 v30, 12, v30\nv_and_b32 v31, 1, v0\nv_lshl_add_u32 v30, v31, 10, v30")
    for c in range(count):
        L = A.newlabel("Lc3")
        A(f"s_cmp_ge_u32 s{s_idx}, {36 - c*step}\ns_cbranch_scc1 {L}")
        A(f"buffer_load_dword v{SINK}, v30, s[52:55], s57 offen\ns_add_u32 s57, s57, {step << 17}")
        if lim is not None: A(f"s_waitcnt vmcnt({lim})")
        A.label(L)

SPIN_MAX = 60000
def flag_setup(A):
    srd_off(A, 96, 26, FLAG_OFF, FLAG_SZ)
    A(f"s_load_dword s100, s[96:97], {FE*128}")
def touch_pages(A):
    srd(A, 92, 26, OB_OFF + OB_SZ)
    A(f"v_and_b32 v92, 63, v0\nv_cmp_gt_u32 vcc, {CFG.tl0}, v92\nv_lshlrev_b32 v92, 21, v92\nv_mov_b32 v93, {FLAG_OFF + FE*128}\nv_add_u32 v92, 0x1ff000, v92\nv_cndmask_b32 v92, v93, v92, vcc")
    A(f"s_bfm_b64 exec, {CFG.tl0 + 1}, 0\nbuffer_load_dword v{SINK}, v92, s[92:95], 0 offen sc1\ns_mov_b64 exec, -1")
def tag_make(A):
    A("s_add_u32 s100, s100, 1\ns_mul_i32 s101, s100, 0x9e3779b1\ns_add_u32 s101, s101, 0x7f4a7c15")
def raise_flag(A, s_off, vt):
    A(f"v_mov_b32 v{vt}, s100\nv_mov_b32 v{vt+1}, s101\nv_mov_b32 v{vt+2}, s{s_off}")
    if CFG.wide:
        A(f"v_and_b32 v{vt+2}, 7, v0\nv_lshl_add_u32 v{vt+2}, v{vt+2}, 3, s{s_off}")
    A(f"s_mov_b64 exec, {0xff if CFG.wide else 1}\nbuffer_store_dwordx2 {v(vt,2)}, v{vt+2}, s[96:99], 0 offen sc1\ns_mov_b64 exec, -1")
def clear_flag(A, s_off, vt):
    if not CFG.prew: return
    A(f"v_and_b32 v{vt}, 31, v0\nv_lshl_add_u32 v{vt}, v{vt}, 2, s{s_off}\nv_mov_b32 v{vt+1}, 0\ns_bfm_b64 exec, 32, 0\nbuffer_store_dword v{vt+1}, v{vt}, s[96:99], 0 offen sc1\ns_mov_b64 exec, -1")
def poll(A, vaddr, vtmp, sleep=0):
    L = A.newlabel("Lp"); X = A.newlabel("Lx")
    A(f"s_mov_b32 s63, {SPIN_MAX}")
    A.label(L)
    A(f"buffer_load_dwordx2 {v(vtmp,2)}, v{vaddr}, s[96:99], 0 offen sc1")
    A(f"s_waitcnt vmcnt(0)\nv_cmp_ne_u64 vcc, s[100:101], {v(vtmp,2)}\ns_sub_u32 s63, s63, 1\ns_cbranch_scc1 {X}\ns_nop 2\ns_cbranch_vccz {X}")
    A("s_mov_b64 exec, vcc")
    if sleep: A(f"s_sleep {sleep}")
    A(f"s_branch {L}")
    A.label(X)
    A("s_mov_b64 exec, -1")
def poll2(A, vaddr, vtmp, sleep1, sleep2, skip=None, vfirst=None):
    if sleep1:
        L = A.newlabel("Ls")
        if skip: A(f"{skip}\ns_cbranch_scc1 {L}")
        A("s_mov_b64 exec, 1")
        poll(A, vaddr if vfirst is None else vfirst, vtmp, sleep1)
        A.label(L)
    poll(A, vaddr, vtmp, sleep2)

def wave_id(A, sd):
    A(f"v_lshrrev_b32 v1, 6, v0\ns_nop 1\nv_readfirstlane_b32 s{sd}, v1")

def reduce32(A, regs, tmp):
    pad = "s_nop 1" if len(regs) == 1 else "s_nop 0"
    A("s_nop 1")
    for pat in ["quad_perm:[1,0,3,2]", "quad_perm:[2,3,0,1]", "row_half_mirror", "row_mirror"]:
        for r in regs:
            A(f"v_add_f32_dpp v{r}, v{r}, v{r} {pat} row_mask:0xf bank_mask:0xf")
        A(pad)
    for i, r in enumerate(regs): A(f"v_mov_b32 v{tmp+i}, v{r}")
    A("s_nop 1")
    for i, r in enumerate(regs): A(f"v_permlane16_swap_b32 v{r}, v{tmp+i}")
    A("s_nop 1")
    for i, r in enumerate(regs): A(f"v_add_f32 v{r}, v{r}, v{tmp+i}")

XRS, HRS = 1168, 1216
P0 = 3*STAGE
LDS_BYTES = 163840
K0_HL = P0 + 256
K0_DUMMY = K0_HL + 16*HRS
K0_LDS = 83968
def seam_pre(A):
    tag_make(A)
    A(f"s_lshl_b32 s49, s2, 2\ns_add_u32 s49, s49, s16\ns_add_u32 s49, s49, {F1}\ns_cmp_eq_u32 s16, 4\ns_cselect_b32 s49, s2, s49\ns_lshl_b32 s49, s49, 7")
    A(f"s_cmp_gt_u32 s16, 4\ns_cselect_b32 s49, {OOB}, s49")
    A(f"s_load_dwordx4 s[4:7], s[0:1], {KA_W1}\ns_load_dwordx2 s[50:51], s[0:1], {KA_W2}")
def gen_k0(A):
    kernel_head(A, KNAME)
    stamp(A, 0)
    A("s_cmp_ge_u32 s2, 256\ns_cbranch_scc1 K_end")
    A(f"s_load_dwordx4 s[4:7], s[0:1], {KA_X}\ns_load_dwordx2 s[26:27], s[0:1], {KA_WS}")
    A(f"s_load_dwordx4 s[20:23], s[0:1], {KA_WPHI}\ns_load_dwordx2 s[48:49], s[0:1], {KA_W1}")
    A("s_sub_u32 s44, s2, 112\ns_cmp_ge_u32 s44, 128\ns_cbranch_scc1 K0_pf")
    X, P, Q = 20, 8, 56
    A("v_lshrrev_b32 v2, 5, v0\nv_and_b32 v3, 31, v0")
    A("v_mul_u32_u24 v4, 1152, v2\nv_lshl_add_u32 v4, v3, 4, v4")
    A(f"v_cmp_gt_u32 s[30:31], 24, v3\nv_mov_b32 v5, {OOB}")
    A("s_mul_i32 s3, s44, 18432")
    A("v_cndmask_b32 v4, v5, v4, s[30:31]")
    A("s_waitcnt lgkmcnt(0)")
    srd(A, 8, 4, S*D*2)
    for j in range(3): A(f"buffer_load_dwordx4 {v(P+4*j,4)}, v4, s[8:11], s3 offen offset:{384*j}")
    A("s_branch K0_ln")
    A.label("K0_pf")
    wave_id(A, 16)
    def pf_setup():
        flag_setup(A)
        srd(A, 52, 48, S*F*2)
        pf_w1_col(A, 46)
        A("s_and_b32 s47, s2, 0x78\ns_add_u32 s47, s47, s16\nv_and_b32 v1, 63, v0")
    def pf_round(r):
        if not CFG.pf1: return 0
        pf_w1(A, 52, 46, 47, 128, 1, 1, 88, lanes=CFG.pf1)
        return 1
    A("s_cmp_ge_u32 s2, 108\ns_cbranch_scc1 K0_nofold")
    A("s_mul_i32 s18, s2, 7282\ns_lshr_b32 s18, s18, 16")
    A("s_mul_i32 s19, s18, 9\ns_sub_u32 s17, s2, s19")
    A("s_and_b32 s28, s18, 3\ns_lshr_b32 s29, s18, 2")
    F_W, F_P = P0 + 18432, P0 + 18432 + 18432
    for r in range(3):
        A(f"v_add_u32 v4, {512*r}, v0\nv_mul_u32_u24 v5, 58255, v4\nv_lshrrev_b32 v5, 20, v5")
        A(f"v_mul_u32_u24 v5, {3456-288}, v5\nv_lshl_add_u32 v{12+r}, v4, 4, v5")
    A(f"s_mul_i32 s32, s17, {64*3456}\ns_mul_i32 s33, s29, 1152\ns_add_u32 s32, s32, s33\ns_mul_i32 s33, s28, 288\ns_add_u32 s32, s32, s33")
    A(f"s_mul_i32 s33, s28, 5184\nv_lshlrev_b32 v15, 4, v0\nv_subrev_u32 v15, 2048, v15\ns_lshl_b32 s34, s16, 10\ns_add_u32 m0, s34, {F_W}")
    A("s_waitcnt lgkmcnt(0)")
    if CFG.dfold: A(f"s_sleep {CFG.dfold}")
    srd(A, 8, 6, D*3*D*2)
    A(f"buffer_load_dwordx4 v12, s[8:11], s32 offen lds\ns_add_u32 m0, s34, {F_W + 8192}")
    srd(A, 12, 20, H*DH*DH*2)
    A(f"buffer_load_dwordx4 v13, s[8:11], s32 offen lds\ns_add_u32 m0, s34, {F_W + 16384}\ns_cmp_ge_u32 s16, 2\ns_cbranch_scc1 K0_f1")
    A("buffer_load_dwordx4 v14, s[8:11], s32 offen lds")
    A.label("K0_f1")
    A(f"s_add_u32 m0, s34, {F_P - 2048}\ns_cmp_eq_u32 s29, 2\ns_cselect_b32 s3, 1, 6\ns_sub_u32 s35, s16, 2\ns_cmp_ge_u32 s35, s3\ns_cbranch_scc1 K0_f2")
    A("buffer_load_dwordx4 v15, s[12:15], s33 offen lds")
    A.label("K0_f2")
    pt(A, "fi")
    pf_setup()
    if CFG.pfbar: A("s_barrier")
    if CFG.prew:
        A(f"s_lshl_b32 s3, s2, 2\ns_add_u32 s3, s3, s16\ns_add_u32 s3, s3, {F1}\ns_lshl_b32 s3, s3, 7\ns_cmp_lt_u32 s16, 4\ns_cselect_b32 s3, s3, {OOB}")
        clear_flag(A, 3, 90)
    if CFG.tl0: touch_pages(A)
    npf = (pf_round(0) if CFG.pfpos == 0 else 0) + (1 if CFG.prew else 0) + (1 if CFG.tl0 else 0)
    A("s_lshr_b32 s19, s16, 2\ns_and_b32 s43, s16, 3\ns_lshl_b32 s30, s43, 1\ns_add_u32 s30, s30, s19")
    srd_off(A, 20, 26, WF_OFF, WF_SZ)
    A("v_and_b32 v2, 15, v1\nv_lshrrev_b32 v3, 4, v1")
    A("v_and_b32 v4, 12, v2\nv_add_u32 v4, v4, v2")
    A(f"v_mul_u32_u24 v4, 288, v4\nv_lshl_add_u32 v4, v3, 4, v4\ns_mul_i32 s33, s30, 36\ns_and_b32 s39, s33, 15\ns_sub_u32 s33, s33, s39\ns_add_u32 s33, s33, {F_W}")
    A("v_add_u32 v76, s33, v4\ns_lshr_b32 s39, s39, 1\nv_lshlrev_b32 v11, 3, v3\nv_subrev_u32 v11, s39, v11")
    A("s_mov_b32 s40, 0x00030003\ns_mov_b32 s41, 0x00030003")
    B = 28
    def a_reads():
        pt(A, "f0")
        A(f"s_waitcnt vmcnt({npf})")
        pt(A, "x")
        if CFG.pfpos == 1: pf_round(0)
        A("s_barrier")
        pt(A, "f1")
        for q in range(4):
            A(f"ds_read_b128 {v(12+4*q,4)}, v76 offset:{288*(32*(q>>1) + 4*(q&1))}")
    A("s_cmp_eq_u32 s29, 2\ns_cbranch_scc1 K0_ident")
    A("s_mul_i32 s34, s19, 18\nv_add_u32 v5, s34, v2")
    A(f"s_lshl_b32 s35, s43, 6\ns_add_u32 s35, s35, {P0}")
    for nt in range(2):
        if nt: A("v_add_u32 v5, 16, v5")
        A(f"v_lshrrev_b32 v6, 2, v5\nv_lshlrev_b32 v6, 10, v6\nv_and_b32 v7, 3, v5\nv_lshl_add_u32 v6, v7, 4, v6")
        A(f"v_lshl_add_u32 v6, v3, 8, v6\nv_add_u32 v{52+nt}, s35, v6")
    A("s_lshr_b32 s34, s28, 1\ns_add_u32 s34, s34, 4\ns_and_b32 s35, s28, 1\ns_mul_i32 s35, s35, 9216")
    A("s_cmp_eq_u32 s29, 0\ns_cselect_b32 s34, s34, s28\ns_cselect_b32 s35, s35, 0")
    A(f"s_mov_b32 s42, {f2u(LOG2E)}")
    A(f"v_mul_i32_i24 v5, 36, v11\nv_lshl_add_u32 v5, v2, 1, v5\ns_mul_i32 s33, s30, 648\ns_add_u32 s33, s33, {F_P}\nv_add_u32 v80, s33, v5")
    for q in range(4): A(f"v_add_u32 v5, {2*q}, v11\nv_cmp_gt_u32 {s((36, 44, 58, 60)[q],2)}, 18, v5")
    a_reads()
    for nt in range(2):
        for ii in range(8):
            A(f"ds_read_u16 v{36+8*nt+ii}, v80 offset:{36*ii + 32*nt}")
    A("s_waitcnt lgkmcnt(0)")
    for q in range(8): A(f"v_lshl_or_b32 v{B+q}, v{36+2*q+1}, 16, v{36+2*q}")
    for q in range(8): A(f"v_cndmask_b32 v{B+q}, 0, v{B+q}, {s((36, 44, 58, 60)[q&3],2)}")
    A("s_branch K0_fmm")
    A.label("K0_ident")
    A("v_sub_u32 v5, v2, v11\nv_add_u32 v6, 16, v5")
    A("v_mov_b32 v7, 0x3f80\nv_mov_b32 v8, 0x3f800000")
    for nt in range(2):
        for q in range(4):
            A(f"v_cmp_eq_u32 vcc, {2*q}, v{5+nt}\nv_cmp_eq_u32 s[44:45], {2*q+1}, v{5+nt}\ns_nop 1")
            A(f"v_cndmask_b32 v9, 0, v7, vcc\nv_cndmask_b32 v{B+4*nt+q}, v9, v8, s[44:45]")
    A(f"v_lshlrev_b32 v6, 8, v3\nv_lshl_add_u32 v6, v2, 4, v6\nv_add_u32 v6, {P0}, v6")
    A("s_lshl_b32 s34, s30, 10\nv_add_u32 v52, s34, v6")
    A("s_lshl_b32 s34, s30, 5\ns_add_u32 s34, s34, 8192\nv_add_u32 v53, s34, v6")
    A("s_mov_b32 s34, s28\ns_mov_b32 s35, 9216\ns_mov_b32 s42, 1.0")
    a_reads()
    A("s_waitcnt lgkmcnt(0)")
    A.label("K0_fmm")
    pt(A, "f2")
    A("s_mul_i32 s34, s34, 18\ns_lshl_b32 s33, s17, 1\ns_add_u32 s34, s34, s33\ns_mul_i32 s34, s34, 18432\ns_add_u32 s34, s34, s35")
    DD = 56
    for kbi in range(2):
        for nt in range(2):
            for a in range(2):
                A(f"{MF} {v(DD+16*kbi+8*nt+4*a,4)}, {v(12+8*kbi+4*a,4)}, {v(B+4*nt,4)}, 0")
    seam_pre(A)
    A("s_mov_b32 s43, s42\ns_lshl_b32 s33, s16, 10\nv_lshlrev_b32 v89, 4, v1\ns_and_b32 s3, s16, 1\ns_mul_i32 s35, s3, 9216")
    A(f"s_add_u32 s37, s33, {P0}\nv_add_u32 v90, s37, v89\ns_add_u32 s35, s35, {P0 + 8192}\nv_add_u32 v91, s35, v89")
    A("s_mul_i32 s3, s3, 18432\ns_add_u32 s37, s34, s3\ns_add_u32 s37, s37, 8192\ns_add_u32 s17, s34, s33")
    for kbi in range(2):
        for nt in range(2):
            d0 = DD+16*kbi+8*nt
            for i in range(4): A(f"v_pk_mul_f32 {v(d0+2*i,2)}, {v(d0+2*i,2)}, s[42:43]")
            o = 36 + 8*kbi + 4*nt
            for i in range(4): A(f"v_cvt_pk_bf16_f32 v{o+i}, v{d0+2*i}, v{d0+2*i+1}")
            if nt == 0: A(f"ds_write_b128 v52, {v(o,4)} offset:{9216*kbi}")
    A("s_mov_b64 exec, s[40:41]\nds_write_b128 v53, v[40:43]\nds_write_b128 v53, v[48:51] offset:9216\ns_mov_b64 exec, -1")
    A("s_waitcnt lgkmcnt(0)\ns_barrier\ns_cmp_ge_u32 s16, 4\ns_cbranch_scc1 K0_seam")
    pt(A, "st0")
    for q in range(4): A(f"ds_read_b128 {v(12+4*q,4)}, v90 offset:{9216*(q>>1) + 4096*(q&1)}")
    A("ds_read_b128 v[28:31], v91")
    for q in range(4):
        A(f"s_waitcnt lgkmcnt({4-q})\nbuffer_store_dwordx4 {v(12+4*q,4)}, v89, s[20:23], s17 offen {CFG.auxSt}\ns_add_u32 s17, s17, {4096 if q != 1 else 18432-4096}")
    A("s_branch K0_last")
    A.label("K0_nofold")
    A("s_waitcnt lgkmcnt(0)")
    if CFG.dfold: A(f"s_sleep {CFG.dfold}")
    pf_setup()
    if CFG.pff:
        A(f"s_sub_u32 s3, s2, 240\ns_cmp_ge_u32 s3, 6\ns_cbranch_scc1 K0_nof\ns_lshl_b32 s3, s3, 16\nv_lshl_add_u32 v90, v0, 7, s3\nbuffer_load_dword v{SINK}, v90, s[96:99], 0 offen sc1")
        A.label("K0_nof")
    if CFG.pfc:
        A("s_cmp_lt_u32 s2, 248\ns_cbranch_scc1 K0_noc")
        pf_code(A, "K0_ln")
        A.label("K0_noc")
    A("s_cmp_ge_u32 s2, 240\ns_cbranch_scc1 K1_spare")
    pf_round(0)
    A("s_waitcnt lgkmcnt(0)")
    seam_pre(A)
    A("s_waitcnt lgkmcnt(0)\ns_barrier\ns_branch K0_seam")
    A.label("K0_ln")
    pt(A, "fi")
    flag_setup(A)
    wave_id(A, 16)
    A(f"v_lshlrev_b32 v6, 2, v2\nv_add_u32 v6, {P0}, v6")
    A(f"v_mul_u32_u24 v7, {HRS}, v2\nv_lshl_add_u32 v7, v3, 4, v7\nv_add_u32 v7, {K0_HL}, v7")
    srd_off(A, 12, 26, RS_OFF, RS_SZ)
    srd_off(A, 20, 26, HT_OFF, HT_SZ)
    A(f"s_mov_b32 s33, {f2u(1.0/576)}\ns_mov_b32 s34, {f2u(1e-5)}")
    A("v_and_b32 v1, 63, v0\nv_and_b32 v2, 15, v1\nv_lshrrev_b32 v3, 4, v1")
    A(f"s_lshl_b32 s3, s16, 6\ns_and_b32 s35, s16, 1\ns_lshl_b32 s36, s35, 6\nv_lshlrev_b32 v69, 2, v2\nv_add_u32 v68, {P0}, v69\ns_lshl_b32 s17, s44, 7")
    A("v_bfe_u32 v4, v1, 2, 2\nv_lshrrev_b32 v5, 5, v1\nv_lshl_add_u32 v4, v5, 3, v4")
    A(f"v_mul_u32_u24 v4, {HRS}, v4\nv_and_b32 v3, 1, v3\nv_lshl_add_u32 v4, v3, 5, v4\nv_and_b32 v44, 3, v1\nv_lshl_add_u32 v4, v44, 3, v4\nv_add_u32 v4, {K0_HL}, v4")
    A("v_add_u32 v72, s36, v4\nv_add_u32 v71, s3, v4")
    A("v_lshlrev_b32 v2, 4, v2\nv_lshl_add_u32 v2, v5, 8, v2")
    A(f"s_mov_b32 s38, {589824-9216}\ns_lshl_b32 s3, s16, 1\ns_lshl_b32 s36, s35, 1\ns_add_u32 s36, s36, 32")
    for n in range(3):
        A(f"v_add_u32 v4, s{3 if n < 2 else 36}, v3")
        if n == 1: A("v_add_u32 v4, 16, v4")
        A(f"v_mul_u32_u24 v44, 57, v4\nv_lshrrev_b32 v44, 9, v44\nv_lshl_add_u32 v4, v4, 10, v2\nv_mad_u32_u24 v{73+n}, v44, s38, v4")
    A("s_lshr_b32 s18, s44, 1\ns_mul_i32 s18, s18, 9216\ns_and_b32 s19, s44, 1\ns_lshl_b32 s19, s19, 9\ns_add_u32 s18, s18, s19")
    def xp(i): return v(X+2*i, 2)
    if CFG.prew:
        A(f"s_lshl_b32 s3, s2, 7\ns_cmp_eq_u32 s16, 4\ns_cselect_b32 s3, s3, {OOB}")
        clear_flag(A, 3, 90)
    if CFG.tl0: touch_pages(A)
    pt(A, "f0")
    A(f"s_waitcnt vmcnt({(1 if CFG.prew else 0) + (1 if CFG.tl0 else 0)})")
    pt(A, "x")
    for i in range(12):
        A(f"v_lshlrev_b32 v{X+2*i}, 16, v{P+i}\nv_and_b32 v{X+2*i+1}, 0xffff0000, v{P+i}")
    A(f"v_pk_add_f32 v[44:45], {xp(0)}, {xp(1)}\nv_pk_add_f32 v[46:47], {xp(2)}, {xp(3)}")
    for i in range(4, 12): A(f"v_pk_add_f32 {v(44+2*(i&1),2)}, {v(44+2*(i&1),2)}, {xp(i)}")
    A("v_pk_add_f32 v[44:45], v[44:45], v[46:47]\nv_add_f32 v44, v44, v45")
    reduce32(A, [44], 52)
    A("v_mul_f32 v44, s33, v44")
    for i in range(12): A(f"v_pk_add_f32 {xp(i)}, {xp(i)}, v[44:45] op_sel_hi:[1,0] neg_lo:[0,1] neg_hi:[0,1]")
    A(f"v_pk_mul_f32 v[48:49], {xp(0)}, {xp(0)}\nv_pk_mul_f32 v[50:51], {xp(1)}, {xp(1)}")
    for i in range(2, 12): A(f"v_pk_fma_f32 {v(48+2*(i&1),2)}, {xp(i)}, {xp(i)}, {v(48+2*(i&1),2)}")
    A("v_pk_add_f32 v[48:49], v[48:49], v[50:51]\nv_add_f32 v48, v48, v49")
    A("v_cndmask_b32 v48, 0, v48, s[30:31]")
    reduce32(A, [48], 52)
    A("v_mul_f32 v48, s33, v48\nv_add_f32 v44, s34, v48\nv_rsq_f32 v44, v44\nv_mov_b32 v49, s34")
    A("v_mul_f32 v48, v48, v44\nv_fma_f32 v50, v48, v44, v49\nv_rsq_f32 v48, v50")
    A("s_mov_b64 exec, s[30:31]\nv_mul_f32 v50, v50, v48\nv_mul_f32 v48, v48, v44\nds_write_b32 v6, v50")
    for j in range(3):
        for i in range(4): A(f"v_pk_mul_f32 {v(Q+2*i,2)}, {xp(4*j+i)}, v[48:49] op_sel_hi:[1,0]")
        for i in range(4): A(f"v_cvt_pk_bf16_f32 v{P+4*j+i}, v{Q+2*i}, v{Q+2*i+1}")
        A(f"ds_write_b128 v7, {v(P+4*j,4)} offset:{384*j}")
    A("s_mov_b64 exec, -1\ns_waitcnt lgkmcnt(0)\ns_barrier")
    pt(A, "ln")
    for n in range(2):
        A(f"ds_read_b64_tr_b16 {v(76+4*n,2)}, v71 offset:{512*n}\nds_read_b64_tr_b16 {v(78+4*n,2)}, v71 offset:{512*n + 4*HRS}")
    A(f"ds_read_b64_tr_b16 v[84:85], v72 offset:1024\nds_read_b64_tr_b16 v[86:87], v72 offset:{1024 + 4*HRS}\nds_read_b32 v88, v68")
    A(f"s_cmp_lt_u32 s16, 2\ns_cselect_b32 s3, 0, {OOB}\nv_or_b32 v75, s3, v75")
    for n in range(3):
        A(f"s_waitcnt lgkmcnt({5-2*n})\nbuffer_store_dwordx4 {v(76+4*n,4)}, v{73+n}, s[20:23], s18 offen {CFG.auxSt}")
    A("s_waitcnt lgkmcnt(0)\ns_cmp_lg_u32 s16, 2\ns_cbranch_scc1 K0_nors")
    A(f"s_mov_b64 exec, 0xffff\nbuffer_store_dword v88, v69, s[12:15], s17 offen {CFG.auxSt}\ns_mov_b64 exec, -1")
    A.label("K0_nors")
    pt(A, "st0")
    seam_pre(A)
    A(f"s_cmp_eq_u32 s16, 4\ns_cselect_b32 s49, s49, {OOB}")
    if CFG.hint1:
        A(f"s_cmp_lg_u32 s16, 5\ns_cbranch_scc1 K0_noh\ns_cmp_ge_u32 s44, 8\ns_cbranch_scc1 K0_noh\ns_add_u32 s3, s44, {FH}\ns_lshl_b32 s3, s3, 7")
        raise_flag(A, 3, 4)
        A.label("K0_noh")
    A("s_waitcnt vmcnt(0)\ns_barrier\ns_branch K0_seam")
    A.label("K0_last")
    A("s_waitcnt lgkmcnt(0)\ns_cmp_ge_u32 s16, 2\ns_cbranch_scc1 K0_last2")
    A(f"buffer_store_dwordx4 v[28:31], v89, s[20:23], s37 offen {CFG.auxSt}")
    A.label("K0_last2")
    A("s_waitcnt vmcnt(0)")
    A.label("K0_seam")
    raise_flag(A, 49, 4)
    pt(A, "fl0")
    if CFG.pf1a or CFG.pf1q:
        A(f"s_cmp_lt_u32 s2, {144 if CFG.pf1a else 208}\ns_cbranch_scc1 K0_noa\ns_cmp_ge_u32 s2, 240\ns_cbranch_scc1 K0_noa\ns_cmp_ge_u32 s16, 4\ns_cbranch_scc1 K0_noa")
        A("s_lshr_b32 s47, s2, 3\ns_sub_u32 s47, s47, 18\ns_lshl_b32 s47, s47, 2\ns_add_u32 s47, s47, s16\ns_waitcnt lgkmcnt(0)")
        srd(A, 52, 4, S*F*2)
        pf_w1_col(A, 46)
        pf_w1(A, 52, 46, 47, 48, CFG.pf1a, 1, 88, base=112*CFG.pf1)
        if CFG.pf1q:
            A("s_cmp_lt_u32 s2, 208\ns_cbranch_scc1 K0_noa\ns_sub_u32 s47, s47, 32")
            pf_w1(A, 52, 46, 47, 16, CFG.pf1q, 1, 88, base=112*CFG.pf1)
        if CFG.c3w1:
            A("s_lshr_b32 s3, s46, 8\ns_add_u32 s3, s3, 2\ns_andn2_b32 s3, s3, 3\ns_add_u32 s3, s3, 1\ns_lshl_b32 s3, s3, 8\ns_add_u32 s3, s3, 128")
            A(f"s_lshr_b32 s47, s2, 3\ns_sub_u32 s47, s47, 26\ns_lshl_b32 s47, s47, 2\ns_add_u32 s47, s47, s16\ns_mul_i32 s47, s47, {32*9216}\ns_add_u32 s47, s47, {CFG.c3w1*9216}\ns_add_u32 s47, s47, s3")
            A("s_sub_u32 s3, s3, s46\ns_cmp_lt_u32 s3, 256\ns_cselect_b32 s3, -1, 0\ns_mov_b32 exec_hi, s3")
            A(f"v_and_b32 v88, 31, v1\nv_mul_u32_u24 v88, 9216, v88\nv_lshrrev_b32 v89, 5, v1\nv_lshl_add_u32 v88, v89, 10, v88\nbuffer_load_dword v{SINK}, v88, s[52:55], s47 offen\ns_mov_b64 exec, -1")
        A.label("K0_noa")
    if CFG.tlb:
        A(f"s_cmp_lg_u32 s16, 1\ns_cbranch_scc1 K0_notlb\nv_and_b32 v4, 63, v0\nv_lshlrev_b32 v4, {CFG.tlb}, v4\ns_waitcnt lgkmcnt(0)")
        for ptr, nb in ((4, S*F*2), (50, S*F*2), (26, FLAG_OFF)):
            srd(A, 8, ptr, nb)
            for q in range(-(-nb // (64 << CFG.tlb))):
                A(f"s_mov_b32 s3, {q*(64 << CFG.tlb)}\nbuffer_load_dword v{SINK}, v4, s[8:11], s3 offen sc1")
        A.label("K0_notlb")
def softmax18(A, PR, dst, C):
    vals = [r + i for r in PR for i in range(2)]
    EP, EN, MX, MN = 8, 26, 44, 46
    A(f"v_max3_f32 v{MX}, v{vals[0]}, v{vals[1]}, v{vals[2]}\nv_min3_f32 v{MN}, v{vals[0]}, v{vals[1]}, v{vals[2]}")
    for i in range(3, 17, 2):
        A(f"v_max3_f32 v{MX}, v{MX}, v{vals[i]}, v{vals[i+1]}\nv_min3_f32 v{MN}, v{MN}, v{vals[i]}, v{vals[i+1]}")
    A(f"v_max_f32 v{MX}, v{MX}, v{vals[17]}\nv_min_f32 v{MN}, v{MN}, v{vals[17]}")
    A(f"v_mul_f32 v{MX}, v{MX}, v{C}\nv_mul_f32 v{MN}, v{MN}, v{C}")
    for p in range(9):
        A(f"v_pk_fma_f32 {v(EP+2*p,2)}, {v(PR[p],2)}, {v(C,2)}, {v(MX,2)} op_sel_hi:[1,0,0] neg_lo:[0,0,1] neg_hi:[0,0,1]")
        A(f"v_pk_fma_f32 {v(EN+2*p,2)}, {v(PR[p],2)}, {v(C,2)}, {v(MN,2)} op_sel_hi:[1,0,0] neg_lo:[1,0,0] neg_hi:[1,0,0]")
    for i in range(36): A(f"v_exp_f32 v{EP+i}, v{EP+i}")
    A(f"v_pk_add_f32 {v(MX,2)}, {v(EP,2)}, {v(EP+2,2)}\nv_pk_add_f32 {v(MN,2)}, {v(EN,2)}, {v(EN+2,2)}")
    for p in range(2, 9):
        A(f"v_pk_add_f32 {v(MX,2)}, {v(MX,2)}, {v(EP+2*p,2)}\nv_pk_add_f32 {v(MN,2)}, {v(MN,2)}, {v(EN+2*p,2)}")
    A(f"v_add_f32 v{MX}, v{MX}, v{MX+1}\nv_add_f32 v{MN}, v{MN}, v{MN+1}")
    A(f"v_rcp_f32 v{MX}, v{MX}\nv_rcp_f32 v{MN}, v{MN}\ns_nop 0")
    for p in range(9):
        A(f"v_pk_mul_f32 {v(EP+2*p,2)}, {v(EP+2*p,2)}, {v(MX,2)} op_sel_hi:[1,0]")
        A(f"v_pk_mul_f32 {v(EN+2*p,2)}, {v(EN+2*p,2)}, {v(MN,2)} op_sel_hi:[1,0]")
    for m in range(18): A(f"v_cvt_pk_bf16_f32 v{dst(m)}, v{EP+2*m}, v{EP+2*m+1}")

def pairs(st, j, e):
    return [accr(st, (9*e+p) >> 1, j) + 2*((9*e+p) & 1) for p in range(9)]

PHI_RS = 608
V_LDS = 128*PHI_RS
def gen_k1(A):
    A("s_and_b32 s17, s2, 7\ns_lshr_b32 s18, s2, 3")
    A("s_cmp_ge_u32 s18, 18\ns_cbranch_scc1 K1_notg1")
    A("s_mul_i32 s19, s17, 18\ns_add_u32 s19, s19, s18\ns_and_b32 s22, s19, 3\ns_lshr_b32 s23, s19, 2")
    if CFG.swap13: A("s_or_b32 s19, s23, 1\ns_cmp_eq_u32 s19, 13\ns_cselect_b32 s19, 1, 0\ns_xor_b32 s23, s23, s19")
    if CFG.G1: A(f"s_add_u32 s59, s22, s23\ns_and_b32 s59, s59, {min(CFG.G1, 4) - 1}\ns_mul_i32 s59, s59, {max(CFG.G1//4, 1)}")
    A("s_waitcnt lgkmcnt(0)")
    A("s_cmp_ge_u32 s16, 6\ns_cbranch_scc1 K1_ldW\ns_cmp_ge_u32 s16, 4\ns_cbranch_scc1 K1_ldP")
    if CFG.prio1: A(f"s_setprio {CFG.prio1}")
    srd(A, 32, 6, F*2)
    srd_off(A, 36, 26, U_OFF, U_SZ)
    A("v_bfe_u32 v8, v0, 4, 2\nv_lshlrev_b32 v8, 3, v8")
    A("s_lshl_b32 s3, s23, 8\ns_lshl_b32 s17, s16, 6\ns_add_u32 s3, s3, s17")
    A("buffer_load_dwordx2 v[12:13], v8, s[32:35], s3 offen\nbuffer_load_dwordx2 v[14:15], v8, s[32:35], s3 offen offset:32")
    emit_compute_addr(A, 16, "std")
    A("s_waitcnt vmcnt(0)")
    if CFG.pf1b:
        A(f"s_cmp_ge_u32 s2, 128\ns_cbranch_scc1 K1_nopf\ns_and_b32 s47, s2, 0x78\ns_lshr_b32 s47, s47, 1\ns_add_u32 s47, s47, s16\ns_add_u32 s47, s47, {CFG.pf1}")
        srd(A, 52, 4, S*F*2)
        pf_w1_col(A, 46)
        pf_w1(A, 52, 46, 47, 64, CFG.pf1b, 1, 16)
        A.label("K1_nopf")
    for j in range(2):
        A(f"v_lshlrev_b32 v{V_ACC+j*4}, 16, v{12+2*j}\nv_and_b32 v{V_ACC+j*4+1}, 0xffff0000, v{12+2*j}")
        A(f"v_lshlrev_b32 v{V_ACC+j*4+2}, 16, v{13+2*j}\nv_and_b32 v{V_ACC+j*4+3}, 0xffff0000, v{13+2*j}")
    for i in range(8, 72, 2): A(f"v_pk_mov_b32 {v(V_ACC+i,2)}, {v(V_ACC+i%8,2)}, {v(V_ACC+i%8,2)} op_sel:[0,1]")
    A("s_mul_i32 s17, s22, 144\ns_lshl_b32 s3, s23, 2\ns_add_u32 s17, s17, s3\ns_add_u32 s17, s17, s16")
    A(f"s_add_u32 s49, s17, {FU}\ns_lshl_b32 s49, s49, 7\ns_mul_i32 s17, s17, 9216")
    if CFG.hint2 >= 0:
        A(f"s_mul_i32 s48, s22, 36\ns_add_u32 s48, s48, s23\ns_add_u32 s48, s48, {FG}\ns_lshl_b32 s48, s48, 7\ns_cmp_eq_u32 s16, 0\ns_cselect_b32 s48, s48, {OOB}")
    emit_compute_loop(A, 32, "std", (True, True), 20, first=lambda: (pt(A, "b1"), clear_flag(A, 49, 170)))
    A("s_barrier")
    pt(A, "m1")
    c0 = -2*math.sqrt(2/math.pi)*LOG2E; c1 = c0*0.044715
    A(f"s_mov_b32 s52, {f2u(c1)}\ns_mov_b32 s53, {f2u(c1)}\nv_mov_b32 v8, {f2u(c0)}\nv_mov_b32 v9, {f2u(c0)}")
    if CFG.own:
        A(f"s_lshr_b32 s3, s16, 1\ns_mul_i32 s3, s3, {STAGE - 18432}\ns_mul_i32 s18, s16, 9216\ns_add_u32 s3, s3, s18\nv_add_u32 v10, s3, v{V_PA}")
    else: A("s_nop 2")
    for t in range(9):
        a0 = V_ACC + t*8
        T = 16 + (t % 2) * 12
        for p in range(4): A(f"v_pk_mul_f32 {v(T+2*p,2)}, {v(a0+2*p,2)}, {v(a0+2*p,2)}")
        for p in range(4): A(f"v_pk_fma_f32 {v(T+2*p,2)}, {v(T+2*p,2)}, s[52:53], v[8:9]")
        for p in range(4): A(f"v_pk_mul_f32 {v(T+2*p,2)}, {v(T+2*p,2)}, {v(a0+2*p,2)}")
        for e in range(8): A(f"v_exp_f32 v{T+e}, v{T+e}")
        for p in range(4): A(f"v_pk_add_f32 {v(T+2*p,2)}, {v(T+2*p,2)}, 1.0 op_sel_hi:[1,0]")
        for e in range(8): A(f"v_rcp_f32 v{T+e}, v{T+e}")
        for p in range(4): A(f"v_pk_mul_f32 {v(T+2*p,2)}, {v(T+2*p,2)}, {v(a0+2*p,2)}")
        for p in range(4): A(f"v_cvt_pk_bf16_f32 v{44+4*t+p}, v{T+2*p}, v{T+2*p+1}")
        for tt in ([] if t < CFG.glag else (range(t+1) if t == CFG.glag else [t])):
            if tt and tt % 4 == 0: A("s_add_u32 s17, s17, 4096")
            A(f"buffer_store_dwordx4 {v(44+4*tt,4)}, v{V_PA}, s[36:39], s17 offen offset:{(tt%4)*1024} {CFG.auxSt}")
        if CFG.own: A(f"ds_write_b128 v10, {v(44+4*t,4)} offset:{t*1024}")
        if t == CFG.hint2: raise_flag(A, 48, 40)
    A("s_branch K2_c")
    def g_post():
        A("s_lshr_b32 s49, s2, 3\ns_lshl_b32 s49, s49, 2\ns_add_u32 s49, s49, s16\ns_sub_u32 s49, s49, 4")
        pf_w2(A, 50, 49, 72, CFG.pf2g)
    post = (CFG.pf2g, g_post, CFG.pf2pos) if CFG.pf2g else None
    lend = None
    if CFG.wreg in (1, 2):
        post = (9*CFG.wn, lambda: wot_regs(A, True), CFG.wpos)
        def lend():
            L = A.newlabel("Lv")
            A(f"s_cmp_lg_u32 s20, 3\ns_cbranch_scc1 {L}")
            A("buffer_load_dwordx2 v[38:39], v36, s[96:99], 0 offen sc1")
            if CFG.ownpf:
                A(f"s_cmp_lt_u32 s16, 6\ns_cbranch_scc1 {L}")
                srd(A, 52, 50, S*F*2)
                A("s_lshl_b32 s3, s23, 1\ns_and_b32 s57, s22, 1\ns_add_u32 s3, s3, s57\ns_lshl_b32 s3, s3, 1\ns_add_u32 s3, s3, s17\ns_lshl_b32 s3, s3, 17")
                A("s_and_b32 s57, s2, 1\ns_lshl_b32 s57, s57, 11\ns_add_u32 s3, s3, s57\ns_lshr_b32 s57, s2, 5\ns_lshl_b32 s57, s57, 8\ns_add_u32 s3, s3, s57")
                A(f"v_bfe_u32 v30, v0, 1, 5\nv_lshlrev_b32 v30, 12, v30\nv_and_b32 v31, 1, v0\nv_lshl_add_u32 v30, v31, 7, v30\nbuffer_load_dword v{SINK}, v30, s[52:55], s3 offen")
            A.label(L)
    A.label("K1_ldP")
    if CFG.wreg in (1, 2): wot_flagaddr(A)
    srd_off(A, 8, 26, HT_OFF, HT_SZ)
    A(f"s_sub_u32 s17, s16, 4\ns_mul_i32 s21, s22, {64*9216}")
    def wait_ln():
        A(f"v_and_b32 v8, 62, v0\nv_and_b32 v9, 1, v0\nv_lshl_add_u32 v8, v8, 1, v9\ns_lshl_b32 s3, s17, 1\ns_add_u32 s3, s3, {F0+112}\nv_add_lshl_u32 v8, v8, s3, 7")
        if CFG.dl0: A(f"s_sleep {CFG.dl0}")
        if CFG.dlf: A(f"s_cmp_ge_u32 s2, 112\ns_cbranch_scc1 K1_nodl\ns_sleep {CFG.dlf}\nK1_nodl:")
        if CFG.hint1: A(f"s_and_b32 s3, s2, 7\ns_add_u32 s3, s3, {FH}\ns_lshl_b32 s3, s3, 7\nv_mov_b32 v9, s3")
        poll2(A, 8, 10, CFG.sl0a, CFG.sl0, None, 9 if CFG.hint1 else None)
        pt(A, "go1")
    DBG["k1P"] = True; DBG["koff"] = CFG.koff
    emit_loader_lin(A, 32, 9, POFF, 17, 8, 21, 20, 18, CFG.auxP, CFG.G1, post=post, pre=wait_ln, loopend=lend)
    DBG["k1P"] = False
    A("s_branch K1_ldseam")
    A.label("K1_ldW")
    srd(A, 12, 4, S*F*2)
    A("s_sub_u32 s17, s16, 6\ns_lshl_b32 s21, s23, 8")
    emit_loader_W(A, 32, "std", 17, 12, 21, 9216, 20, 18, CFG.auxW1, CFG.G1, post=post, loopend=lend, mid=(lambda: wot_flagaddr(A)) if CFG.wreg in (1, 2) else None)
    DBG["koff"] = 0
    A.label("K1_ldseam")
    A(f"s_barrier\ns_mov_b32 s49, {OOB}\ns_mov_b32 s24, s23\ns_branch K2_ld")
    A.label("K1_notg1")
    A("s_sub_u32 s18, s18, 18\ns_and_b32 s22, s18, 3\ns_lshr_b32 s19, s17, 1\ns_lshl_b32 s19, s19, 2\ns_add_u32 s22, s22, s19")
    A("s_lshr_b32 s18, s18, 2\ns_and_b32 s17, s17, 1\ns_lshl_b32 s19, s17, 1\ns_add_u32 s23, s19, s18\ns_add_u32 s17, s17, 4")
    A("s_cmp_eq_u32 s18, 2\ns_cselect_b32 s23, s17, s23")
    if CFG.GA: A(f"s_add_u32 s59, s22, s18\ns_and_b32 s59, s59, 3\ns_mul_i32 s59, s59, {CFG.GA}\ns_lshr_b32 s59, s59, 2")
    A("s_waitcnt lgkmcnt(0)")
    A("s_cmp_ge_u32 s16, 6\ns_cbranch_scc1 K1_ldX\ns_cmp_ge_u32 s16, 4\ns_cbranch_scc1 K1_ldF")
    emit_compute_addr(A, 16, "lin")
    for i in range(0, 144, 2): A(f"v_pk_mov_b32 {v(V_ACC+i,2)}, 0, 0")
    srd_off(A, 32, 26, RS_OFF, RS_SZ)
    A("s_lshl_b32 s30, s22, 2\ns_add_u32 s30, s30, s16\ns_lshl_b32 s30, s30, 8\nv_and_b32 v252, 15, v1\nv_lshlrev_b32 v252, 2, v252\nv_and_b32 v253, 48, v1")
    def ld_scale():
        pt(A, "b1")
        for j in range(2):
            A(f"buffer_load_dword v{240+2*j}, v252, s[32:35], s30 offen offset:{128*j} sc1\nbuffer_load_dwordx4 {v(244+4*j,4)}, v253, s[32:35], s30 offen offset:{128*j} sc1")
    A("s_cmp_ge_u32 s23, 4\ns_cbranch_scc1 K1_q")
    HO = V_LDS + 36864
    A(f"s_mul_i32 s3, s16, 9216\ns_add_u32 s3, s3, {HO}\nv_add_u32 v254, s3, v{V_PA}")
    emit_compute_loop(A, 18, "lin", (False, True), 20, first=ld_scale, lastfill=[f"ds_write_b128 v254, {acc(0,t,1)} offset:{t*1024}" for t in range(9)])
    pt(A, "m1")
    A(f"v_subrev_u32 v5, 36864, v254\ns_waitcnt vmcnt(0) lgkmcnt(0)\ns_barrier")
    QB = 48
    for t in range(9):
        o = 84 + 4*(t % 3)
        for j in range(2):
            r = accr(1, t, j)
            A(f"v_pk_mul_f32 {v(r,2)}, {v(r,2)}, {v(244+4*j,2)}\nv_pk_mul_f32 {v(r+2,2)}, {v(r+2,2)}, {v(246+4*j,2)}")
            A(f"v_cvt_pk_bf16_f32 v{o+2*j}, v{r}, v{r+1}\nv_cvt_pk_bf16_f32 v{o+2*j+1}, v{r+2}, v{r+3}")
        A(f"ds_write_b128 v5, {v(o,4)} offset:{t*1024}")
    if CFG.prew:
        A(f"s_cmp_lg_u32 s16, 0\ns_cbranch_scc1 K1_kvsm\ns_lshl_b32 s3, s23, 4\ns_add_u32 s3, s3, s22\ns_add_u32 s3, s3, {FP}\ns_lshl_b32 s3, s3, 7")
        clear_flag(A, 3, 8)
        A(f"s_mul_i32 s3, s23, 12\ns_add_u32 s3, s3, s22\ns_add_u32 s3, s3, {FK}\ns_lshl_b32 s3, s3, 7\ns_cmp_lt_u32 s22, 12\ns_cselect_b32 s3, s3, {OOB}")
        clear_flag(A, 3, 8)
    A.label("K1_kvsm")
    A("s_and_b32 s30, s16, 3\ns_lshr_b32 s31, s16, 2\nv_and_b32 v2, 15, v1\nv_lshrrev_b32 v3, 4, v1")
    A(f"s_lshl_b32 s3, s30, 1\ns_add_u32 s33, s3, s31\ns_lshl_b32 s3, s33, 4\nv_add_u32 v4, s3, v2\nv_mul_u32_u24 v4, {PHI_RS}, v4\nv_mul_u32_u24 v5, 144, v3\nv_add_u32 v4, v4, v5")
    for e in range(2):
        softmax18(A, pairs(0, 0, e), lambda m: QB + 18*e + m, 240)
        for q in (range(4) if e == 0 else range(4, 9)): A(f"ds_write_b128 v4, {v(QB+4*q,4)} offset:{16*q}")
    A(f"v_lshrrev_b32 v6, 2, v1\nv_mul_u32_u24 v6, {PHI_RS}, v6\nv_and_b32 v7, 3, v1\nv_lshl_add_u32 v6, v7, 3, v6")
    A("s_mul_i32 s3, s33, 72\nv_add_u32 v6, s3, v6")
    A("s_lshl_b32 s3, s30, 3\nv_subrev_u32 v7, s3, v6")
    A(f"v_add_u32 v8, {64*PHI_RS}, v6\nv_add_u32 v9, {64*PHI_RS}, v7")
    A(f"s_lshl_b32 s3, s33, 10\ns_add_u32 s3, s3, {V_LDS}\nv_lshlrev_b32 v10, 4, v1\nv_add_u32 v10, s3, v10")
    A(f"v_lshlrev_b32 v11, 8, v3\nv_and_b32 v12, 1, v2\nv_lshl_add_u32 v11, v12, 4, v11")
    A(f"s_lshl_b32 s3, s33, 5\ns_add_u32 s3, s3, {V_LDS + 8192}\nv_add_u32 v11, s3, v11")
    A("s_mov_b32 s40, 0x00030003\ns_mov_b32 s41, 0x00030003\nv_mov_b32 v12, 0x3f803f80")
    srd_off(A, 36, 26, KVP_OFF, KVP_SZ)
    A("s_lshl_b32 s17, s22, 2\ns_add_u32 s17, s17, s23\ns_mul_i32 s17, s17, 24576")
    A("s_lshl_b32 s3, s31, 10\ns_add_u32 s19, s17, s3\ns_add_u32 s29, s19, 22528\ns_add_u32 s19, s19, 16384")
    A("s_lshr_b32 s18, s33, 2\ns_lshl_b32 s18, s18, 11\ns_and_b32 s3, s33, 3\ns_lshl_b32 s3, s3, 8\ns_add_u32 s18, s18, s3\ns_add_u32 s28, s17, s18\ns_add_u32 s28, s28, 18432")
    A("s_lshl_b32 s18, s33, 11\ns_add_u32 s17, s17, s18")
    A("v_lshlrev_b32 v4, 6, v3\nv_lshl_add_u32 v4, v2, 4, v4\nv_lshlrev_b32 v2, 4, v1")
    A("s_lshl_b32 s18, s30, 4\ns_lshl_b64 s[42:43], 0xffff, s18\ns_mov_b32 s44, 0x000f000f\ns_mov_b32 s45, 0x000f000f")
    A("s_waitcnt lgkmcnt(0)\ns_barrier")
    pt(A, "go1")
    DK, FR = 16, 96
    def afr(ks, T): return FR + ks*20 + T*4
    def bfr(ks, mt): return FR + ks*20 + 12 + mt*4
    def dk(T, mt): return DK + (mt*3 + T)*4
    def kreads(ks):
        A(f"ds_read_b128 {v(bfr(ks,1),4)}, v11 offset:{ks*9216}\nds_read_b128 {v(bfr(ks,0),4)}, v10 offset:{ks*9216}")
        for T in range(3):
            a = (7 if T == 2 else 6) + (2 if ks >= 2 else 0)
            off = (ks & 1)*32*PHI_RS + T*32
            A(f"ds_read_b64_tr_b16 {v(afr(ks,T),2)}, v{a} offset:{off}\nds_read_b64_tr_b16 {v(afr(ks,T)+2,2)}, v{a} offset:{off + 16*PHI_RS}")
    kreads(0)
    for ks in range(4):
        if ks < 3: kreads(ks+1)
        A(f"s_waitcnt lgkmcnt({8 if ks < 3 else 0})")
        for i in range(4): A(f"v_cndmask_b32 v{bfr(ks,1)+i}, v12, v{bfr(ks,1)+i}, s[40:41]")
        for mt in range(2):
            for T in range(3):
                A(f"{MF} {v(dk(T,mt),4)}, {v(afr(ks,T),4)}, {v(bfr(ks,mt),4)}, {0 if ks == 0 else v(dk(T,mt),4)}")
    A("s_nop 4")
    for T in range(2): A(f"buffer_store_dwordx4 {v(dk(T,0),4)}, v2, s[36:39], s17 offen offset:{T*1024} sc1")
    A(f"s_mov_b64 exec, s[42:43]\nbuffer_store_dwordx4 {v(dk(2,0),4)}, v2, s[36:39], s19 offen sc1")
    A("s_mov_b64 exec, s[44:45]")
    for T in range(2): A(f"buffer_store_dwordx4 {v(dk(T,1),4)}, v4, s[36:39], s28 offen offset:{T*1024} sc1")
    A(f"s_and_b64 exec, s[42:43], s[44:45]\nbuffer_store_dwordx4 {v(dk(2,1),4)}, v4, s[36:39], s29 offen sc1")
    A("s_mov_b64 exec, -1")
    A(f"s_lshl_b32 s17, s23, 4\ns_add_u32 s17, s17, {FP}\ns_add_u32 s18, s17, s22\ns_lshl_b32 s18, s18, 7\ns_mov_b32 s49, {OOB}")
    srd_off(A, 44, 26, KVF_OFF, KVF_SZ)
    A("s_waitcnt vmcnt(0)\ns_barrier")
    pt(A, "kvp")
    A("s_cmp_ge_u32 s16, 4\ns_cbranch_scc1 K2_ld\ns_cmp_lg_u32 s16, 0\ns_cbranch_scc1 K2_c")
    raise_flag(A, 18, 4)
    A("s_cmp_ge_u32 s22, 12\ns_cbranch_scc1 K2_c")
    A("v_and_b32 v3, 15, v1\nv_add_lshl_u32 v3, v3, s17, 7")
    poll(A, 3, 4, CFG.slk)
    A("s_mul_i32 s18, s23, 12\ns_add_u32 s18, s18, s22")
    A(f"s_add_u32 s49, s18, {FK}\ns_lshl_b32 s49, s49, 7\ns_lshl_b32 s17, s18, 11\ns_lshl_b32 s18, s18, 10")
    A("s_cmp_eq_u32 s22, 11\ns_cselect_b64 exec, 0xffff, -1")
    for tb in range(16):
        A(f"buffer_load_dwordx4 {v(8+8*tb,4)}, v2, s[36:39], s17 offen sc1\nbuffer_load_dwordx4 {v(12+8*tb,4)}, v2, s[36:39], s17 offen offset:1024 sc1")
        A(f"s_add_u32 s17, s17, {48*2048}")
    for tb in range(1, 16):
        A(f"s_waitcnt vmcnt({2*(15-tb)})")
        for p in range(4): A(f"v_pk_add_f32 {v(8+2*p,2)}, {v(8+2*p,2)}, {v(8+8*tb+2*p,2)}")
    for p in range(4): A(f"v_cvt_pk_bf16_f32 v{4+p}, v{8+2*p}, v{9+2*p}")
    A(f"buffer_store_dwordx4 v[4:7], v2, s[44:47], s18 offen {CFG.auxSt}")
    A("s_mov_b64 exec, -1\ns_waitcnt vmcnt(0)")
    raise_flag(A, 49, 8)
    A(f"s_mov_b32 s49, {OOB}\ns_branch K2_c")
    A.label("K1_q")
    emit_compute_loop(A, 18, "lin", (False, False), 20, first=ld_scale)
    A("s_waitcnt vmcnt(0)")
    A("s_barrier")
    pt(A, "m1")
    A("v_and_b32 v6, 15, v1\nv_lshrrev_b32 v7, 4, v1\nv_lshlrev_b32 v3, 11, v7\nv_lshl_add_u32 v3, v6, 4, v3")
    A(f"s_lshr_b32 s3, s16, 1\ns_mul_i32 s3, s3, {STAGE - 18432}\ns_mul_i32 s17, s16, 9216\ns_add_u32 s3, s3, s17")
    A(f"v_add_u32 v3, s3, v3\nv_add_u32 v4, s3, v{V_PA}")
    for st in range(2):
        for j in range(2):
            for e in range(2):
                softmax18(A, pairs(st, j, e), lambda m: (QB + e*16 + 4*((m & 7) >> 1) + (m & 1) + 2*(m >> 3)) if m < 16 else QB + 32 + 2*e + m - 16, 240 + 2*j)
                for gg in range(4): A(f"ds_write_b128 v3, {v(QB+e*16+4*gg,4)} offset:{e*1024 + gg*256}")
            for b in range(8): A(f"ds_read_b128 {acc(st,b,j)}, v4 offset:{b*1024}")
            for i in range(2): A(f"v_pk_mov_b32 {v(accr(st,8,j)+2*i,2)}, {v(QB+32+2*i,2)}, {v(QB+32+2*i,2)} op_sel:[0,1]")
    pt(A, "kvp")
    KVB, KR, TM, MB, CI = 8, 40, 56, 88, 240
    A(f"v_add_u32 v4, {P0}, v{V_PA}\nv_cmp_eq_u32 vcc, 0, v6\nv_cmp_eq_u32 s[40:41], 4, v6\nv_lshlrev_b32 v7, 6, v7\ns_mov_b32 s3, {P0 + 9216}")
    A("v_cndmask_b32 v5, 32, 0, vcc\nv_cndmask_b32 v5, v5, 16, s[40:41]\nv_add3_u32 v5, v5, v7, s3")
    A("s_lshl_b32 s56, s22, 2\ns_add_u32 s56, s56, s16\ns_lshl_b32 s56, s56, 1\ns_add_u32 s56, s56, s23\ns_sub_u32 s56, s56, 4")
    A(f"s_add_u32 s49, s56, {FO}\ns_lshl_b32 s49, s49, 7\ns_mul_i32 s56, s56, 20480\ns_add_u32 s57, s56, 10240")
    k2_enter(A)
    k2_setup(A, False)
    for hp in range(4): A(f"s_mov_b32 s{8+2*hp}, {0xffff << (16*hp) & 0xffffffff}\ns_mov_b32 s{9+2*hp}, {(0xffff << (16*hp)) >> 32}")
    A(f"v_mov_b32 v{MB+2}, 0\nv_mov_b32 v{MB+3}, 0\nv_mov_b32 v{CI}, 0\nv_mov_b32 v{CI+1}, {f2u(1e-6)}\nv_mov_b32 v{CI+2}, 0\nv_mov_b32 v{CI+3}, 0")
    A(f"v_add_u32 v6, 4096, v{V_PA}\nv_add_u32 v7, 8192, v{V_PA}")
    def kvf(g, e, mt): return KVB + 16*(g & 1) + 8*e + 4*mt
    def kv_reads(g):
        st, hp = g >> 2, g & 3
        return [f"ds_read_b128 {v(kvf(g,e,mt),4)}, v{4+mt} offset:{st*12288 + (2*hp+e)*(256 if mt else 1024)}" for e in range(2) for mt in range(2)]
    A("s_waitcnt lgkmcnt(0)\ns_barrier")
    pt(A, "kvf")
    for x in kv_reads(0): A(x)
    for st in range(2):
        for mt in range(2): A(f"ds_read_b128 {v(KR+8*st+4*mt,4)}, v{4+mt} offset:{st*12288 + 8*(256 if mt else 1024)}")
    def o_store(st, u, j):
        b = 2*u + j
        return f"buffer_store_dwordx4 {acc(st,u,j)}, v{(V_PA,6,7)[b//4]}, s[40:43], s{56+st} offen offset:{(b%4)*1024} {CFG.auxSt}"
    def o_valu(k):
        st, hp, j = k >> 3, (k >> 1) & 3, k & 1
        T = TM + 16*j
        L = [f"v_rcp_f32 v{T+8*e+6}, v{T+8*e+5}" for e in range(2)] + ["s_nop 0"]
        for e in range(2):
            L += [f"v_pk_mul_f32 {v(T+8*e+2*q,2)}, {v(T+8*e+2*q,2)}, {v(T+8*e+6,2)} op_sel_hi:[1,0]" for q in range(2)]
            L += [f"v_mul_f32 v{T+8*e+4}, v{T+8*e+4}, v{T+8*e+6}"]
        vals = [T+8*e+i for e in range(2) for i in range(5)]
        for p in range(5):
            pi = 5*hp + p
            L.append(f"v_cvt_pk_bf16_f32 v{accr(st, pi >> 2, j) + (pi & 3)}, v{vals[2*p]}, v{vals[2*p+1]}")
        if CFG.ost == 0: L += [o_store(st, u, j) for u in ([hp] if hp < 3 else [3, 4])]
        return L
    for k in range(16):
        st, hp, j = k >> 3, (k >> 1) & 3, k & 1
        g = k >> 1; T = TM + 16*j
        a = [f"{MF} {v(T+8*e+4*mt,4)}, {v(kvf(g,e,mt),4)}, {acc(st,2*hp+e,j)}, {v(CI,4) if mt else 0}" for e in range(2) for mt in (1, 0)]
        b = [f"{MF} {v(T+8*e+4*mt,4)}, {v(KR+8*st+4*mt,4)}, {v(MB+2*e,4)}, {v(T+8*e+4*mt,4)}" for e in range(2) for mt in (1, 0)]
        mk = [f"v_cndmask_b32 v{MB+(i if i < 2 else i+2)}, 0, v{accr(st,8,j)+i}, {s(8+2*hp,2)}" for i in range(4)]
        va = o_valu(k-1) if k else []
        if j == 0:
            A("s_waitcnt lgkmcnt(0)")
            if g < 7: va = va + kv_reads(g+1)
        A(a[0]); A(mk[0]); A(mk[1]); A(a[1]); A(mk[2]); A(mk[3]); A(a[2]); A(a[3])
        n0 = 0
        for i, m in enumerate([None] + b):
            if m: A(m)
            n = (len(va) - n0 + (4 - i)) // (5 - i)
            for x in va[n0:n0+n]: A(x)
            n0 += n
    A("s_nop 5")
    for x in o_valu(15): A(x)
    pt(A, "go1")
    if CFG.ost == 1:
        for st in range(2):
            for u in range(5):
                for j in range(2): A(o_store(st, u, j))
    A("s_nop 1\ns_branch K2_cq")
    A.label("K1_ldF")
    srd_off(A, 8, 26, WF_OFF, WF_SZ)
    A(f"s_sub_u32 s17, s16, 4\ns_mul_i32 s21, s23, {18*18432}")
    def wait_fold():
        A("s_lshl_b32 s3, s17, 2\ns_add_u32 s3, s3, s23\ns_add_u32 s3, s3, 4\ns_lshl_b32 s19, s23, 1\ns_add_u32 s19, s19, s17\ns_sub_u32 s19, s19, 8")
        A("s_cmp_ge_u32 s23, 4\ns_cselect_b32 s3, s19, s3\ns_mul_i32 s3, s3, 36")
        A(f"s_add_u32 s3, s3, {F1}\nv_and_b32 v8, 63, v0\nv_min_u32 v8, 35, v8\nv_add_lshl_u32 v8, v8, s3, 7")
        if CFG.dlw: A(f"s_sleep {CFG.dlw}")
        poll2(A, 8, 10, CFG.sl0a, CFG.sl0)
        pt(A, "go1")
    emit_loader_lin(A, 18, 9, POFF, 17, 8, 21, 20, 18, CFG.auxP, CFG.GA, pre=wait_fold)
    A("s_branch K1_ldtail")
    A.label("K1_ldX")
    srd_off(A, 8, 26, HT_OFF, HT_SZ)
    A(f"s_sub_u32 s17, s16, 6\ns_mul_i32 s21, s22, {4*9216}\ns_lshl_b32 s18, s17, 10\ns_add_u32 s21, s21, s18\ns_lshl_b32 s18, s17, 12\ns_mov_b32 s19, s17")
    A("v_and_b32 v1, 63, v0\nv_and_b32 v2, 16, v1\nv_lshrrev_b32 v2, 2, v2\nv_xor_b32 v2, v2, v1\nv_lshlrev_b32 v2, 4, v2")
    for w in range(1, 4): A(f"v_add_u32 v{2+w}, {8192*w}, v2")
    def issue_x(slot):
        A(f"s_add_u32 m0, s18, {slot*STAGE + WOFF}\ns_add_u32 s19, s19, 2")
        for w in range(4): A(f"buffer_load_dwordx4 v{2+w}, s[8:11], s21 offen offset:{1024*w} {CFG.auxP} lds")
        A(f"s_cmp_ge_u32 s19, 9\ns_cselect_b32 s3, 9, 0\ns_cselect_b32 s28, {589824-9216}, 0\ns_sub_u32 s19, s19, s3\ns_add_u32 s21, s21, s28\ns_add_u32 s21, s21, 2048")
    def wait_xn():
        A(f"s_lshl_b32 s3, s22, 3\ns_add_u32 s3, s3, {F0+112}\nv_and_b32 v8, 7, v0\nv_add_lshl_u32 v8, v8, s3, 7")
        if CFG.dl0: A(f"s_sleep {CFG.dl0}")
        poll2(A, 8, 10, CFG.sl0a, CFG.sl0)
        pt(A, "go1")
    assert not CFG.GA
    emit_loader(A, 18, 4, issue_x, 20, pre=wait_xn)
    A.label("K1_ldtail")
    A("s_lshr_b32 s17, s2, 3\ns_sub_u32 s17, s17, 18\ns_lshl_b32 s17, s17, 2\ns_add_u32 s17, s17, s16\ns_sub_u32 s17, s17, 4")
    A(f"s_mov_b32 s49, {OOB}\ns_cmp_ge_u32 s23, 4\ns_cbranch_scc1 K1_ldq")
    srd_off(A, 32, 26, RS_OFF, RS_SZ)
    A("s_and_b32 s31, s16, 3\ns_lshl_b32 s30, s22, 2\ns_add_u32 s30, s30, s31\ns_lshl_b32 s30, s30, 8\nv_and_b32 v1, 63, v0\nv_and_b32 v2, 15, v1\nv_lshlrev_b32 v2, 2, v2")
    A("buffer_load_dword v240, v2, s[32:35], s30 offen offset:128 sc1")
    if CFG.pf1kv:
        srd(A, 52, 4, S*F*2)
        pf_w1_col(A, 46)
        A(f"s_add_u32 s47, s17, {320 - 32*CFG.pf1kv}")
        pf_w1(A, 52, 46, 47, 32, CFG.pf1kv, 1, 30)
    if CFG.pf2kv:
        pf_w2(A, 50, 17, 32, CFG.pf2kv)
    A(f"s_mul_i32 s3, s31, 9216\ns_add_u32 s3, s3, {HO}\nv_lshl_add_u32 v2, v1, 4, s3\ns_barrier")
    for t in range(9): A(f"ds_read_b128 {acc(0,t,0)}, v2 offset:{t*1024}")
    A(f"s_waitcnt vmcnt({CFG.pf2kv + CFG.pf1kv}) lgkmcnt(0)\ns_branch K1_kvsm")
    A.label("K1_ldq")
    A("s_barrier")
    if CFG.c3w2 == 1:
        A(f"s_sub_u32 s19, s17, {32 - CFG.c3s}")
        pf_w2c3(A, 50, 19, 16, -(-(36 - CFG.c3s) // 16), lim=0)
    if CFG.pf2q:
        A(f"s_add_u32 s17, s17, {32*CFG.pf2kv - 32}")
        pf_w2(A, 50, 17, 16, CFG.pf2q, lim=None if CFG.qlim < 0 else CFG.qlim)
    A("s_branch K2_ld")
    A.label("K1_spare")
    A(f"s_load_dwordx2 s[50:51], s[0:1], {KA_W2}")
    srd(A, 8, 22, D*D*2)
    A("s_and_b32 s17, s2, 7\ns_lshr_b32 s18, s2, 3\ns_sub_u32 s41, s18, 30\ns_lshl_b32 s41, s41, 3\ns_add_u32 s41, s41, s16")
    A(f"s_add_u32 s43, s41, {32*CFG.pf2kv + 16*CFG.pf2q}")
    A("s_sub_u32 s18, s18, 30\ns_lshl_b32 s17, s17, 1\ns_add_u32 s17, s17, s18\ns_and_b32 s22, s17, 3\ns_lshr_b32 s23, s17, 2")
    A(f"s_mul_i32 s28, s23, {144*1152}\ns_mul_i32 s29, s22, 288\ns_add_u32 s28, s28, s29\ns_lshl_b32 s29, s16, 10")
    for r in range(6):
        if r == 5: A("s_cmp_lg_u32 s16, 0\ns_cbranch_scc1 K1_w5\ns_bfm_b64 exec, 32, 0")
        A(f"v_add_u32 v4, {512*r}, v0\nv_mul_u32_u24 v5, 58255, v4\nv_lshrrev_b32 v5, 20, v5\ns_add_u32 m0, s29, {8192*r}")
        A(f"v_mul_u32_u24 v5, {1152-288}, v5\nv_lshl_add_u32 v4, v4, 4, v5\nbuffer_load_dwordx4 v4, s[8:11], s28 offen lds")
    A("s_mov_b64 exec, -1")
    A.label("K1_w5")
    assert CFG.pf1s > 2
    a0 = (112*CFG.pf1) // 64 + 48*CFG.pf1a + 16*CFG.pf1q
    e0 = 320 - 32*CFG.pf1kv
    b0 = e0 - 16*(CFG.pf1s - CFG.sA)
    assert CFG.sA == 0 or CFG.sA > 2
    A(f"s_add_u32 s42, s41, {a0 + 16*CFG.sA}\ns_add_u32 s41, s41, {a0 if CFG.sA else b0}")
    pf_w1(A, 52, 46, 41, 16, 1, 1, 57)
    ZR = 144*288
    A(f"v_lshlrev_b32 v4, 2, v0\nv_add_u32 v4, {ZR}, v4\nv_mov_b32 v5, 0\nds_write_b32 v4, v5")
    srd_off(A, 12, 26, WOT_OFF, WOT_SZ)
    A("v_and_b32 v1, 63, v0\nv_lshrrev_b32 v3, 4, v1\nv_bfe_u32 v2, v1, 2, 2\ns_lshl_b32 s3, s16, 3\nv_and_b32 v10, 3, v1\nv_lshlrev_b32 v10, 3, v10")
    A(f"v_add_u32 v11, 16, v3\nv_cmp_gt_u32 s[30:31], 2, v3\nv_mov_b32 v12, 144")
    for hf in range(2):
        A(f"v_add3_u32 v4, v2, s3, {4*hf}\nv_mul_u32_u24 v5, 205, v4\nv_lshrrev_b32 v5, 10, v5\nv_mul_u32_u24 v6, 5, v5\nv_sub_u32 v6, v4, v6")
        A("v_cmp_eq_u32 vcc, 4, v6\nv_lshl_add_u32 v6, v3, 2, v6\nv_mul_u32_u24 v5, 18, v5\nv_cndmask_b32 v6, v6, v11, vcc\ns_andn2_b64 vcc, vcc, s[30:31]")
        A(f"v_add_u32 v6, v6, v5\nv_cndmask_b32 v6, v6, v12, vcc\nv_min_u32 v6, 144, v6\nv_mul_u32_u24 v6, 288, v6\nv_add_u32 v{8+hf}, v6, v10")
    A("s_lshl_b32 s28, s22, 2\ns_add_u32 s28, s28, s23\ns_mul_i32 s28, s28, 5\ns_add_u32 s28, s28, s16")
    A(f"s_add_u32 s49, s28, {FW}\ns_lshl_b32 s49, s49, 7\ns_mul_i32 s28, s28, 9216\nv_lshlrev_b32 v2, 4, v1")
    A("s_waitcnt vmcnt(1) lgkmcnt(0)\ns_barrier")
    tag_make(A)
    for rt in range(9):
        A(f"ds_read_b64_tr_b16 {v(16+4*rt,2)}, v8 offset:{rt*32}\nds_read_b64_tr_b16 {v(18+4*rt,2)}, v9 offset:{rt*32}")
    A("s_waitcnt lgkmcnt(0)\ns_barrier")
    A("s_cmp_lt_u32 s16, 5\ns_cbranch_scc1 K1_wot")
    A(f"s_lshl_b32 s49, s2, 7\ns_cmp_eq_u32 s16, 5\ns_cselect_b32 s49, s49, {OOB}\ns_branch K1_wot1")
    A.label("K1_wot")
    for rt in range(9):
        if rt and rt % 4 == 0: A("s_add_u32 s28, s28, 4096")
        A(f"buffer_store_dwordx4 {v(16+rt*4,4)}, v2, s[12:15], s28 offen offset:{(rt%4)*1024} {CFG.auxSt}")
    A.label("K1_wot1")
    pf_w1(A, 52, 46, 41, 16, 1, 1, 57, lim=0)
    raise_flag(A, 49, 4)
    pt(A, "go1")
    assert CFG.c3w2 != 2
    if CFG.pf1s:
        A.label("K1_spf")
        pf_w1(A, 52, 46, 41, 16, 1, 1, 57, lim=CFG.slim)
        if CFG.sA: A(f"s_cmp_eq_u32 s41, s42\ns_cselect_b32 s3, {max(b0 - a0 - 16*CFG.sA, 0)}, 0\ns_add_u32 s41, s41, s3")
        A(f"s_cmp_lt_u32 s41, {e0}\ns_cbranch_scc1 K1_spf")
    if CFG.c3w2 == 2:
        A("s_sub_u32 s19, s18, 30\ns_lshl_b32 s19, s19, 3\ns_add_u32 s19, s19, s16")
        pf_w2c3(A, 50, 19, 16, 3, lim=1)
    pf_w2(A, 50, 43, 16, CFG.pf2s, lim=1)
    pt(A, "m1")
    A(f"s_mov_b32 s49, {OOB}\ns_cmp_lt_u32 s16, 4\ns_cbranch_scc1 K2_c\ns_cmp_lg_u32 s16, 7\ns_cbranch_scc1 K2_ld\ns_cmp_lg_u32 s2, 255\ns_cbranch_scc1 K2_ld")
    for q in range(4):
        A(f"v_add_u32 v8, {F0 + 64*q}, v1\nv_lshlrev_b32 v8, 7, v8")
        poll(A, 8, 10, 8)
    A(f"s_mov_b32 s49, {FE*128}\ns_branch K2_ld")

WR = 40
def wot_flagaddr(A):
    A(f"s_lshr_b32 s56, s2, 3\ns_lshl_b32 s3, s2, 1\ns_add_u32 s56, s56, s3\ns_and_b32 s56, s56, 3\ns_lshl_b32 s56, s56, 2\ns_add_u32 s56, s56, s16\ns_sub_u32 s56, s56, 4\ns_mul_i32 s56, s56, 5")
    A(f"s_add_u32 s3, s56, {FW}\nv_and_b32 v36, 63, v0\nv_lshlrev_b32 v37, 4, v36\nv_min_u32 v36, 4, v36\nv_add_lshl_u32 v36, v36, s3, 7")
def wot_regs(A, sampled):
    L = A.newlabel("Lw")
    if sampled: A(f"v_cmp_ne_u64 vcc, s[100:101], v[38:39]\ns_nop 4\ns_cbranch_vccz {L}")
    poll(A, 36, 38, 2)
    A.label(L)
    srd_off(A, 92, 26, WOT_OFF, WOT_SZ)
    A(f"s_add_u32 s56, s56, {CFG.w0}\ns_mul_i32 s56, s56, 9216")
    for b in range(9*CFG.wn):
        if b and b % 4 == 0: A("s_add_u32 s56, s56, 4096")
        A(f"buffer_load_dwordx4 {v(WR+4*b,4)}, v37, s[92:95], s56 offen offset:{(b%4)*1024} sc1")
def k2_decode(A):
    A("s_and_b32 s17, s2, 7\ns_lshr_b32 s18, s2, 3")
    A("s_lshr_b32 s28, s17, 1\ns_lshl_b32 s22, s17, 1\ns_add_u32 s22, s22, s18\ns_and_b32 s22, s22, 3")
    A("s_and_b32 s17, s17, 1\ns_lshl_b32 s17, s17, 3\ns_lshr_b32 s18, s18, 2\ns_add_u32 s23, s17, s18")
RED_RS = 592
PBS = 1056
O_LDS, O_TOP = 2*STAGE, 159744
W_SLOT = (3, 0, 1, 3, 0)
PB = STAGE
RED = 3*STAGE
PB_OWN = RED + 32*RED_RS
def k2_enter(A):
    A(f"s_load_dwordx4 s[4:7], s[0:1], {KA_W2}\ns_load_dwordx2 s[44:45], s[0:1], {KA_X}\ns_load_dwordx2 s[46:47], s[0:1], {KA_OUT}")
    k2_decode(A)
def k2_setup(A, early):
    srd_off(A, 36, 26, PART_OFF, PART_SZ)
    A("s_lshl_b32 s17, s23, 2\ns_add_u32 s17, s17, s22\ns_lshl_b32 s18, s17, 4")
    A("s_lshl_b32 s30, s16, 2\ns_add_u32 s30, s30, s28\ns_add_u32 s30, s30, s18")
    A(f"s_mul_i32 s32, s30, 9216\ns_add_u32 s30, s30, {FX}\ns_lshl_b32 s30, s30, 7")
    A(f"s_cmp_eq_u32 s16, s28\ns_cselect_b32 s48, {OOB}, 0\ns_cselect_b32 s30, {OOB}, s30")
    A(f"s_add_u32 s34, s32, 4096\ns_add_u32 s35, s32, 8192")
    A("s_waitcnt lgkmcnt(0)")
    k2_final_prep(A, 1)
    if early and (CFG.pf2l or CFG.pf2ls):
        base = 72*CFG.pf2g + 16*CFG.pf2s + 32*CFG.pf2kv + 16*CFG.pf2q
        A(f"s_lshr_b32 s17, s2, 3\ns_lshl_b32 s19, s17, 2\ns_add_u32 s19, s19, s16\ns_cmp_ge_u32 s17, 30\ns_cbranch_scc1 K2_pls\ns_sub_u32 s17, s17, 18\ns_cmp_ge_u32 s17, 8\ns_cbranch_scc1 K2_nopl")
        A(f"s_add_u32 s19, s19, {base - 72}")
        pf_w2(A, 4, 19, 32, CFG.pf2l, srdn=8)
        A("s_branch K2_nopl")
        A.label("K2_pls")
        A(f"s_add_u32 s19, s19, {base + 32*CFG.pf2l - 120}")
        pf_w2(A, 4, 19, 8, CFG.pf2ls, srdn=8, lim=1)
        A.label("K2_nopl")
    clear_flag(A, 30, 8)
    A(f"v_and_b32 v8, 15, v1\nv_lshrrev_b32 v9, 4, v1\nv_mul_u32_u24 v8, {RED_RS}, v8\nv_lshl_add_u32 v8, v9, 4, v8\nv_add_u32 v254, {RED}, v8")
    srd_off(A, 40, 26, OB_OFF, OB_SZ)

def gen_k2(A):
    DBG["on"] = True
    KV, MB, CI, PH, TM, PK, O = 8, 80, 92, 96, 132, 168, 204
    A.label("K2_c")
    pt(A, "e1")
    k2_enter(A)
    def common():
        emit_compute_addr(A, 16, "pi")
        for i in range(0, 72, 2): A(f"v_pk_mov_b32 {v(V_ACC+i,2)}, 0, 0")
    common()
    A("s_waitcnt vmcnt(0) lgkmcnt(0)")
    raise_flag(A, 49, 8)
    A(f"s_mov_b32 s49, {OOB}\ns_barrier")
    pt(A, "fl1")
    k2_setup(A, True)
    if CFG.burn:
        ng, nn = CFG.burn.split(",")
        A(f"s_cmp_lt_u32 s2, 144\ns_cselect_b32 s20, {ng}, {nn}\ns_cmp_eq_u32 s20, 0\ns_cbranch_scc1 K2_c1\nK2_burn:")
        for k in range(18):
            A(f"{MF} {v(168+4*(k%9),4)}, {v(8+4*(k%9),4)}, {v(44+4*(k%7),4)}, {v(168+4*(k%9),4)}")
            if k < 11: A(f"ds_read_b128 {v(8+4*((k*5)%18),4)}, v{V_PB} offset:{STAGE + k*1024}")
        A("s_waitcnt lgkmcnt(0)\ns_sub_u32 s20, s20, 1\ns_cmp_lg_u32 s20, 0\ns_cbranch_scc1 K2_burn")
    A("s_branch K2_c1")
    A.label("K2_cq")
    pt(A, "e1")
    common()
    A.label("K2_c1")
    if CFG.prio: A(f"s_setprio {CFG.prio}")
    A(f"v_or_b32 v0, s48, v{V_PA}")
    def pub(t):
        L = [f"v_cvt_pk_bf16_f32 v{PK+4*t+p}, v{V_ACC+8*t+2*p}, v{V_ACC+8*t+2*p+1}" for p in range(4)]
        L.append(f"buffer_store_dwordx4 {v(PK+4*t,4)}, v0, s[36:39], s{(32, 34, 35)[t//4]} offen offset:{(t%4)*1024} sc1")
        return L
    lastfill = [""]*9
    for t in range(4): lastfill += ["\n".join(pub(t)[:3]), "\n".join(pub(t)[3:])]
    lastfill += ["\n".join(pub(4))]
    def late_flag():
        A(f"s_cmp_eq_u32 s49, {OOB}\ns_cbranch_scc1 K2_nolate\ns_waitcnt vmcnt(0)")
        raise_flag(A, 49, 172)
        A(f"s_mov_b32 s49, {OOB}")
        A.label("K2_nolate")
    emit_compute_loop(A, 18, "pi", (False, False), 20, first=lambda: pt(A, "b2"), lastfill=lastfill, loopend=late_flag, own=CFG.own >= 2)
    pt(A, "m2")
    for t in range(5, 9):
        for x in pub(t): A(x)
    pt(A, "pub")
    FB, WA = 8, 204
    A(f"s_lshl_b32 s3, s16, 10\nv_add_u32 v4, s3, v{V_PA}\nv_add_u32 v5, {3*STAGE}, v4\nv_add_u32 v3, {3*STAGE}, v{V_PA}")
    A(f"s_and_b32 s17, s16, 1\ns_lshl_b32 s3, s17, 10\ns_add_u32 s3, s3, {O_LDS}\nv_add_u32 v6, s3, v{V_PA}\nv_xor_b32 v7, 1024, v6")
    A(f"s_cmp_eq_u32 s17, 0\ns_cselect_b32 s3, {O_LDS + 8192}, 0\ns_cselect_b32 s18, 0, {O_LDS + 8192}")
    A(f"s_cselect_b32 s19, 0, {O_TOP}\ns_cselect_b32 s21, {O_TOP}, 0\ns_add_u32 s3, s3, s19\ns_add_u32 s18, s18, s21")
    A(f"s_cmp_eq_u32 s17, 0\ns_cselect_b32 s19, 9, 1\ns_cselect_b32 s21, 1, 9\ns_lshl_b32 s19, s19, 10\ns_lshl_b32 s21, s21, 10")
    for g in range(4):
        A(f"v_add_u32 v{224+2*g}, s3, v{V_PA}\nv_add_u32 v{225+2*g}, s18, v{V_PA}\ns_add_u32 s3, s3, s19\ns_add_u32 s18, s18, s21")
    def fo(b, g, j): return FB + 80*b + 20*g + 4*j
    def fw(b, g, k): return FB + 80*b + 20*g + 8 + 4*k
    def wreads(u):
        b = u & 1; sl = W_SLOT[u]; R = []
        for g in range(4):
            for j in range(2):
                R.append(f"ds_read_b128 {v(fo(b,g,j),4)}, v{6+j} offset:{g*9216 + u*2048}" if u < 4 else f"ds_read_b128 {v(fo(b,g,j),4)}, v{224+2*g+j}")
            so = (0 if sl == 3 else sl*STAGE) + g*9216
            for k in range(2): R.append(f"ds_read_b128 {v(fw(b,g,k),4)}, v{5 if sl == 3 else (4 if so + 4096*k < 65536 else 232)} offset:{(so + 4096*k) % 65536}")
            R.append(f"ds_read_b128 {v(fw(b,g,2),4)}, v{3 if sl == 3 else (V_PA if so + 8192 < 65536 else 233)} offset:{(so + 8192) % 65536}")
        return R
    A(f"v_add_u32 v232, 65536, v4\nv_add_u32 v233, 65536, v{V_PA}")
    def wmf(u):
        b = u & 1; M = []
        for g in range(4):
            for k, j in ((0, 0), (0, 1), (1, 0), (1, 1), (2, 0)):
                d = v(WA + 4*(2*k + j), 4)
                M.append(f"{MF} {d}, {v(fw(b,g,k),4)}, {v(fo(b,g,j),4)}, {d if u or g else 0}")
        return M
    def flag_x():
        A("s_waitcnt vmcnt(0)")
        raise_flag(A, 30, 236)
        pt(A, "flx")
    if CFG.flagpos == -2: flag_x()
    A("s_barrier")
    pt(A, "t0")
    for r in wreads(0): A(r)
    if CFG.flagpos == -1: flag_x()
    for u in range(4):
        block(A, wmf(u), wreads(u+1), True)
        pt(A, f"u{u}")
        if u == CFG.flagpos: flag_x()
    A(f"s_mul_i32 s3, s17, {16*RED_RS}\nv_add_u32 v6, s3, v254\ns_lshl_b32 s18, s16, 6\nv_add_u32 v4, s18, v6\ns_xor_b32 s17, s17, 1\ns_mul_i32 s3, s17, {16*RED_RS}\ns_add_u32 s3, s3, s18\nv_add_u32 v5, s3, v254")
    A("s_cmp_lg_u32 s16, s28\ns_cbranch_scc1 K2_nown")
    A(f"v_lshrrev_b32 v7, 5, v1\nv_xor_b32 v7, v7, v1\nv_lshlrev_b32 v7, 4, v7\nv_add_u32 v7, {PB_OWN}, v7")
    block(A, wmf(4), [x for t in range(9) for x in (f"ds_write_b128 v7, {v(PK+4*t,4)} offset:{t*PBS}", "")], False)
    A("s_branch K2_nown1")
    A.label("K2_nown")
    block(A, wmf(4), [], False)
    A.label("K2_nown1")
    A("s_nop 3")
    for k in range(2):
        for j in range(2): A(f"ds_write_b128 v{4+j}, {v(WA+4*(2*k+j),4)} offset:{k*256}")
    A(f"ds_write_b128 v6, {v(WA+16,4)} offset:512")
    pt(A, "add")
    A.label("K2_fin")
    def fin_x(n):
        FI = (244, 232)[n]; XB = FI + 4; D0 = 40 + 56*n
        for i in range(4): A(f"v_lshlrev_b32 v{D0+2*i}, 16, v{XB+i}\nv_and_b32 v{D0+1+2*i}, 0xffff0000, v{XB+i}")
        A(f"v_lshlrev_b32 v48, 16, v{FI+3}")
        for p in range(4): A(f"v_pk_add_f32 {v(D0+2*p,2)}, {v(D0+2*p,2)}, v[48:49] op_sel_hi:[1,0]")
    def fin(items):
        def addp(n, r):
            D0 = 40 + 56*n
            for i in range(4): A(f"v_lshlrev_b32 v{8+2*i}, 16, v{r+i}\nv_and_b32 v{9+2*i}, 0xffff0000, v{r+i}")
            for p in range(4): A(f"v_pk_add_f32 {v(D0+2*p,2)}, {v(D0+2*p,2)}, {v(8+2*p,2)}")
        for n in items: fin_x(n)
        A("s_waitcnt lgkmcnt(0)\ns_barrier")
        pt(A, "red")
        for n in items:
            FI = (244, 232)[n]; R = 16 + 12*n
            A(f"ds_read_b128 {v(R,4)}, v{FI+1}\nds_read_b128 {v(R+4,4)}, v{FI+1} offset:16\nds_read_b64 {v(R+8,2)}, v{FI+2}\nds_read_b64 {v(R+10,2)}, v{FI+2} offset:256")
        left = 4*len(items)
        for n in items:
            R = 16 + 12*n; D0 = 40 + 56*n
            A(f"s_waitcnt lgkmcnt({left-2})")
            for p in range(4): A(f"v_pk_add_f32 {v(D0+2*p,2)}, {v(D0+2*p,2)}, {v(R+2*p,2)}")
            left -= 4
            A(f"s_waitcnt lgkmcnt({left})")
            addp(n, R+8)
        A("s_waitcnt vmcnt(0)\ns_barrier")
        pt(A, "rx")
        for n in items:
            for q in range(3):
                A(f"ds_read_b64 {v(60+12*n+4*q,2)}, v{(252, 240)[n]} offset:{q*9*PBS}\nds_read_b64 {v(62+12*n+4*q,2)}, v{(252, 240)[n]} offset:{q*9*PBS + 256}")
        left = 6*len(items)
        for n in items:
            D0 = 40 + 56*n
            for q in range(3):
                left -= 2
                A(f"s_waitcnt lgkmcnt({left})")
                addp(n, 60+12*n+4*q)
            for p in range(4): A(f"v_cvt_pk_bf16_f32 v{52+4*n+p}, v{D0+2*p}, v{D0+1+2*p}")
            A(f"buffer_store_dwordx4 {v(52+4*n,4)}, v{(244, 232)[n]}, s[52:55], s50 offen {CFG.auxOut}")
    A("s_cmp_eq_u32 s16, 7\ns_cbranch_scc1 K2_fin2")
    fin([0])
    A("s_branch K2_done")
    A.label("K2_fin2")
    fin([0, 1])
    A.label("K2_done")
    pt(A, "fin")
    if CFG.probe:
        i, lo, hi = [int(x) for x in CFG.probe.split(",")]
        A(f"s_cmp_lg_u32 s16, 0\ns_cbranch_scc1 Z_end\ns_cmp_lt_u32 s2, {lo}\ns_cbranch_scc1 Z_end\ns_cmp_ge_u32 s2, {hi}\ns_cbranch_scc1 Z_end")
        A(f"Z_loop:\ns_sleep 1\ns_memrealtime s[4:5]\ns_waitcnt lgkmcnt(0)\ns_sub_u32 s7, s4, s{64+2*i}\ns_cmp_lt_u32 s7, 10000\ns_cbranch_scc1 Z_loop\nZ_end:")
    else: stamp_flush(A)
    A("s_endpgm")
    A.label("K2_ld")
    pt(A, "e1")
    k2_enter(A)
    A(f"s_cmp_eq_u32 s49, {OOB}\ns_cbranch_scc1 K2_ld1\ns_waitcnt vmcnt(0)")
    raise_flag(A, 49, 8)
    A.label("K2_ld1")
    if CFG.wreg == 1:
        A("s_cmp_lt_u32 s2, 144\ns_cbranch_scc1 K2_ld2")
        wot_flagaddr(A); wot_regs(A, False)
        A.label("K2_ld2")
    G2 = CFG.G2; altP = altW = None
    if CFG.own:
        G2 = "seq"
        A(f"s_mul_i32 s57, s28, 9\ns_sub_u32 s57, s24, s57\ns_lshl_b32 s57, s57, 1")
        if CFG.rev2: A("s_sub_u32 s58, 16, s57\ns_bitcmp1_b32 s2, 0\ns_cselect_b32 s57, s58, s57")
        A(f"s_cmp_lt_u32 s2, 144\ns_cselect_b32 s57, s57, 64\ns_cselect_b32 s58, {CFG.GO}, {CFG.G2}")
        if CFG.rot8: A("s_lshl_b32 s59, s22, 1\ns_add_u32 s59, s59, s23\ns_and_b32 s59, s59, 7\ns_mul_i32 s59, s59, s58\ns_lshr_b32 s59, s59, 3")
        else: A("s_add_u32 s59, s22, s23\ns_and_b32 s59, s59, 3\ns_mul_i32 s59, s59, s58\ns_lshr_b32 s59, s59, 2")
    elif G2: A(f"s_add_u32 s59, s22, s23\ns_and_b32 s59, s59, 3\ns_mul_i32 s59, s59, {CFG.G2}\ns_lshr_b32 s59, s59, 2")
    A(f"s_sub_u32 s29, s16, 4\ns_mul_i32 s34, s29, 9216")
    A(f"s_lshl_b32 s32, s22, 2\ns_add_u32 s32, s32, s29\ns_mul_i32 s32, s32, 46080\ns_add_u32 s32, s32, {WOT_OFF}")
    A("v_and_b32 v24, 63, v0\nv_lshlrev_b32 v20, 4, v24\nv_add_u32 v21, 4096, v20\nv_add_u32 v22, 8192, v20")
    srd(A, 36, 26, OB_OFF + OB_SZ)
    A("s_waitcnt lgkmcnt(0)")
    k2_final_prep(A, 2)
    A("s_lshl_b32 s30, s23, 2\ns_add_u32 s30, s30, s22\ns_lshl_b32 s30, s30, 2\ns_add_u32 s30, s30, s28\ns_lshl_b32 s30, s30, 2\ns_add_u32 s30, s30, s29")
    A(f"s_add_u32 s3, s30, {FX}\ns_lshl_b32 s3, s3, 7\nv_mov_b32 v32, s3\ns_mul_i32 s30, s30, 9216")
    A(f"s_cmp_gt_u32 s29, s28\ns_cselect_b32 s3, 1, 0\ns_sub_u32 s31, s29, s3\ns_mul_i32 s31, s31, {9*PBS}")
    A(f"s_lshl_b32 s40, s22, 2\ns_add_u32 s40, s40, s29\ns_mul_i32 s40, s40, 5\ns_add_u32 s40, s40, {FW}\nv_add_u32 v28, s40, v24\nv_cmp_gt_u32 vcc, 5, v24")
    A(f"s_lshl_b32 s33, s23, 2\ns_add_u32 s33, s33, s28\ns_lshl_b32 s33, s33, 2\ns_add_u32 s33, s33, s29\ns_lshr_b32 s40, s33, 1\ns_add_u32 s40, s40, {FO}")
    A(f"v_mov_b32 v29, s40\nv_cndmask_b32 v28, v29, v28, vcc\nv_lshlrev_b32 v28, 7, v28\ns_mul_i32 s33, s33, 10240\ns_add_u32 s33, s33, {OB_OFF}")
    def go_barrier(only_q=False):
        L = A.newlabel("Lg")
        A(f"s_sub_u32 s3, s2, 208\ns_cmp_ge_u32 s3, 32\ns_cbranch_scc1 {L}")
        if CFG.wreg >= 2:
            wot_flagaddr(A); wot_regs(A, False)
        A(f"s_and_b32 s3, s2, 1\ns_lshl_b32 s3, s3, 2\ns_add_u32 s3, s3, s29\ns_mul_i32 s3, s3, 6\ns_lshl_b32 s41, s3, 10\ns_add_u32 s41, s41, {KVF_OFF}\ns_add_u32 s3, s3, {FK}")
        A(f"v_min_u32 v14, 5, v24\nv_add_lshl_u32 v14, v14, s3, 7\ns_mul_i32 s43, s29, 6144\ns_add_u32 m0, s43, {P0}")
        poll2(A, 14, 16, CFG.slo, CFG.slo2)
        for b in range(6):
            if b == 4: A(f"s_add_u32 m0, s43, {P0 + 4096}\ns_nop 0")
            if b == 5: A("s_bitcmp1_b32 s29, 0\ns_cselect_b64 exec, 0xffff, -1")
            A(f"buffer_load_dwordx4 v{20+b//4}, s[36:39], s41 offen offset:{(b%4)*1024} sc1 lds")
        A("s_mov_b64 exec, -1\ns_waitcnt vmcnt(0)")
        if only_q: A("s_barrier")
        A.label(L)
        if not only_q: A("s_barrier")
        if CFG.wreg >= 2:
            L = A.newlabel("Lg")
            A(f"s_cmp_lt_u32 s2, 144\ns_cbranch_scc1 {L}\ns_sub_u32 s3, s2, 208\ns_cmp_lt_u32 s3, 32\ns_cbranch_scc1 {L}")
            wot_flagaddr(A); wot_regs(A, False)
            A("s_waitcnt vmcnt(0)")
            A.label(L)
    assert CFG.bgo == 2
    hook = {15: lambda: A("buffer_load_dwordx2 v[30:31], v28, s[96:99], 0 offen sc1")}
    def nine(so, base):
        for j in range(9):
            if j % 4 == 0: A(f"s_add_u32 m0, s34, {base + (j//4)*4096}\ns_nop 0")
            A(f"buffer_load_dwordx4 v{20+j//4}, s[36:39], s{so} offen offset:{(j%4)*1024} sc1 lds")
    def ld_o():
        L = A.newlabel("Lt")
        A(f"v_cmp_ne_u64 vcc, s[100:101], v[30:31]\ns_nop 4\ns_cbranch_vccz {L}")
        poll(A, 28, 30)
        A.label(L)
        nine(33, O_LDS)
        A(f"s_lshl_b32 s3, s29, 10\ns_add_u32 m0, s3, {O_TOP - 1024}\ns_nop 0\nbuffer_load_dwordx4 v22, s[36:39], s33 offen offset:1024 sc1 lds")
    def ld_w(u, regs):
        if regs and CFG.w0 <= u < CFG.w0 + CFG.wn:
            def put():
                A(f"s_add_u32 s3, s34, {W_SLOT[u]*STAGE}\nv_add_u32 v36, s3, v20\ns_add_u32 s32, s32, 9216")
                for b in range(9): A(f"ds_write_b128 v36, {v(WR+36*(u-CFG.w0)+4*b,4)} offset:{b*1024}")
            return (f"w{u}", 0, put)
        def emit():
            nine(32, W_SLOT[u]*STAGE)
            A("s_add_u32 s32, s32, 9216")
        return (f"w{u}", 9, emit)
    sample = ("fx", 1, lambda: A("buffer_load_dwordx2 v[34:35], v32, s[96:99], 0 offen sc1"))
    def mksched(regs):
        after = {15: [("o", 10, ld_o)], 16: [ld_w(0, regs)], 17: [], 18: [ld_w(2, regs)], 19: [ld_w(3, regs)], 20: [ld_w(4, regs)], 21: []}
        after[18 if CFG.hold else 17].insert(0, ld_w(1, regs))
        after[CFG.smp].append(sample)
        inreg = [u for u in range(5) if regs and CFG.w0 <= u < CFG.w0 + CFG.wn]
        lg = {18+u: (9 if u+1 in inreg else 0) for u in inreg}
        return (23, after, {18+u: f"w{u}" for u in range(4)} | {22: "fx"}, lg)
    sched = [mksched(CFG.wreg in (1, 2))]
    if CFG.wreg == 3: sched = [mksched(True), ("s_cmp_lt_u32 s2, 144", mksched(False))]
    A("s_cmp_ge_u32 s16, 6\ns_cbranch_scc1 K2_ldW")
    srd_off(A, 8, 26, U_OFF, U_SZ)
    A(f"s_sub_u32 s17, s16, 4\ns_lshl_b32 s21, s22, 2\ns_add_u32 s21, s21, s28\ns_mul_i32 s40, s21, 36\ns_mul_i32 s21, s21, {36*9216}")
    if 1:
        if CFG.hint2 >= 0:
            A(f"s_lshr_b32 s3, s40, 2\ns_and_b32 s41, s23, 7\ns_add_u32 s3, s3, s41\ns_add_u32 s3, s3, {FG}\ns_lshl_b32 s3, s3, 7\nv_mov_b32 v9, s3")
        A(f"s_add_u32 s40, s40, s17\ns_add_u32 s40, s40, {FU}\nv_min_u32 v8, 17, v24\nv_lshl_add_u32 v8, v8, 1, s40\nv_lshlrev_b32 v8, 7, v8")
    if CFG.own:
        def altP(issue, L):
            A("s_cmp_ge_u32 s2, 144\ns_cbranch_scc1 K2_pn\ns_barrier\ns_mov_b64 exec, 1\nbuffer_load_dwordx2 v[10:11], v8, s[96:99], 0 offen sc1\ns_barrier\ns_barrier")
            A("s_waitcnt vmcnt(0)\nv_cmp_ne_u64 vcc, s[100:101], v[10:11]\ns_nop 4\ns_cbranch_vccz K2_pg")
            poll(A, 8, 10, CFG.sl1)
            A.label("K2_pg")
            A("s_mov_b64 exec, -1")
            poll(A, 8, 10, CFG.sl2)
            pt(A, "go2")
            for sl in (2, 3, 0): issue(sl)
            A(f"s_branch {L}_2")
            A.label("K2_pn")
        def altW(issue, L):
            A(f"s_cmp_ge_u32 s2, 144\ns_cbranch_scc1 K2_wn\ns_mov_b32 s25, s21\ns_mul_i32 s21, s24, {128*4096}\ns_lshl_b32 s3, s23, 8\ns_add_u32 s21, s21, s3")
            issue(0, False)
            A(f"s_add_u32 s21, s21, {64*4096}")
            issue(1, False)
            A("s_mov_b32 s21, s25")
            if CFG.early: A("s_barrier")
            issue(2)
            A(f"s_branch {L}")
            A.label("K2_wn")
    if CFG.own >= 2:
        def altP(issue, L):
            A("s_cmp_ge_u32 s2, 144\ns_cbranch_scc1 K2_pn\ns_barrier")
            if CFG.own == 4:
                A("s_mov_b64 exec, 1")
                poll(A, 8, 10, CFG.sl1g)
                A("s_barrier")
                poll(A, 8, 10, CFG.sl2g)
            else: poll2(A, 8, 10, CFG.sl1g, CFG.sl2g)
            pt(A, "go2")
            if CFG.own == 3: A("s_barrier")
            issue(2); issue(3)
            A("s_waitcnt vmcnt(9)\ns_barrier")
            issue(0); issue(1)
            A(f"s_branch {L}_3")
            A.label("K2_pn")
        def altW(issue, L):
            A(f"s_cmp_ge_u32 s2, 144\ns_cbranch_scc1 K2_wn\ns_mov_b32 s25, s21\ns_mul_i32 s21, s24, {128*4096}\ns_lshl_b32 s3, s23, 8\ns_add_u32 s21, s21, s3")
            issue(0, False)
            A(f"s_add_u32 s21, s21, {64*4096}")
            issue(1, False)
            A("s_mov_b32 s21, s25")
            if CFG.own > 2:
                if CFG.early: A("s_barrier")
                issue(2); issue(3)
                A("s_waitcnt vmcnt(16)\ns_barrier\ns_waitcnt vmcnt(8)\ns_barrier")
                issue(0); issue(1)
                A(f"s_branch {L}_3")
                A.label("K2_wn")
                return
            A("s_waitcnt vmcnt(0)")
            def more():
                base = 16*CFG.pf2s + 32*CFG.pf2kv + 16*CFG.pf2q + 32*CFG.pf2l + 8*CFG.pf2ls
                A(f"s_mov_b64 s[40:41], s[56:57]\ns_mov_b32 s42, s58\ns_lshr_b32 s25, s2, 3\ns_lshl_b32 s25, s25, 1\ns_add_u32 s25, s25, s17\ns_add_u32 s25, s25, {base}")
                pf_w2(A, 4, 25, 36, CFG.pf2G, srdn=12)
                A("s_mov_b64 s[56:57], s[40:41]\ns_mov_b32 s58, s42")
            if CFG.pf2G and CFG.pf2Gp == 1: more()
            A("s_barrier")
            issue(2); issue(3)
            if CFG.pf2G and CFG.pf2Gp == 0: more()
            A(f"s_waitcnt vmcnt({8 + (CFG.pf2G if CFG.pf2Gp == 0 else 0)})\ns_barrier")
            issue(0); issue(1)
            A(f"s_branch {L}_3")
            A.label("K2_wn")
        assert (CFG.early or CFG.own > 2) and not CFG.pft
    def wait_u():
        go_barrier()
        poll2(A, 8, 10, CFG.sl1, CFG.sl2, "s_cmp_lt_u32 s2, 144" if CFG.gdir else None, 9 if CFG.hint2 >= 0 else None)
        if CFG.dstag:
            mode, n = CFG.dstag.split(",")
            if mode == "ramp":
                A(f"s_lshr_b32 s3, s2, 5\nK2_ds:\ns_cmp_eq_u32 s3, 0\ns_cbranch_scc1 K2_ds1\ns_sleep {n}\ns_sub_u32 s3, s3, 1\ns_branch K2_ds\nK2_ds1:")
            else:
                A(f"s_cmp_lt_u32 s2, {mode}\ns_cbranch_scc1 K2_ds1\ns_sleep {n}\nK2_ds1:")
        pt(A, "go2")
    emit_loader_lin(A, 18, 9, POFF, 17, 8, 21, 20, 18, CFG.auxP, G2, pre=wait_u, hook=hook, sched=sched, alt=altP)
    A("s_branch K2_rx")
    A.label("K2_ldW")
    srd(A, 12, 4, S*F*2)
    A(f"s_sub_u32 s17, s16, 6\ns_mul_i32 s21, s28, {1152*4096}\ns_lshl_b32 s18, s23, 8\ns_add_u32 s21, s21, s18")
    every = None
    if CFG.pft:
        nl = -(-90 // CFG.pft)
        A(f"s_and_b32 s41, s23, 7\ns_lshl_b32 s42, s22, 3\ns_add_u32 s41, s41, s42\ns_lshl_b32 s41, s41, 1\ns_add_u32 s41, s41, s17\ns_mul_i32 s41, s41, 11520\ns_add_u32 s41, s41, {WOT_OFF}")
        A(f"v_mul_u32_u24 v26, {128*CFG.pft}, v24\nv_add_u32 v26, s41, v26\ns_bfm_b64 s[48:49], {nl}, 0\ns_mov_b32 s42, {-128*(18 - CFG.pft)}")
        def every():
            A(f"s_max_i32 s3, s42, 0\ns_cmp_lt_i32 s42, 0\ns_cselect_b32 s41, {OOB}, 0\nv_or_b32 v25, s41, v26\ns_mov_b64 exec, s[48:49]")
            A(f"buffer_load_dword v{SINK}, v25, s[36:39], s3 offen sc1\ns_mov_b64 exec, -1\ns_add_u32 s42, s42, 128")
    def mid():
        go_barrier(True)
    if CFG.early: A("s_cmp_lt_u32 s2, 144\ns_cbranch_scc1 K2_nob")
    A("s_sub_u32 s3, s2, 208\ns_cmp_lt_u32 s3, 32\ns_cbranch_scc1 K2_nob\ns_barrier\nK2_nob:")
    emit_loader_W(A, 18, "pi", 17, 12, 21, 4096, 20, 18, CFG.auxW2, G2, every=every, mid=mid, hook=hook, sched=sched, alt=altW)
    A.label("K2_rx")
    A("s_cmp_eq_u32 s29, s28\ns_cbranch_scc1 K2_fin")
    srd_off(A, 8, 26, PART_OFF, PART_SZ)
    A(f"s_add_u32 m0, s31, {PB}\nv_cmp_ne_u64 vcc, s[100:101], v[34:35]\nv_lshrrev_b32 v2, 5, v24\nv_xor_b32 v2, v2, v24\nv_lshlrev_b32 v2, 4, v2\ns_nop 1\ns_cbranch_vccz K2_rx1\ns_mov_b64 exec, 1")
    poll(A, 32, 34, CFG.slx)
    A.label("K2_rx1")
    pt(A, "poll")
    for t in range(9):
        A(f"buffer_load_dwordx4 v2, s[8:11], s30 offen sc1 lds\ns_add_u32 m0, m0, {PBS}\ns_add_u32 s30, s30, 1024")
    A("s_branch K2_fin")
    A.label("K_end")
    A("s_endpgm")
    DBG["on"] = False

def k2_final_prep(A, nitems):
    srd(A, 8, 44, S*D*2)
    srd(A, 12, 6, S*2)
    srd(A, 52, 46, S*D*2)
    A("s_lshl_b32 s50, s23, 2\ns_add_u32 s50, s50, s28\ns_lshl_b32 s51, s50, 6\ns_mul_i32 s50, s50, 36864\ns_mul_i32 s17, s22, 288\ns_add_u32 s50, s50, s17")
    for n in range(nitems):
        FI = (244, 232)[n]; XB = FI + 4
        if n: A(f"v_mov_b32 v{FI}, {OOB}\ns_cmp_lg_u32 s16, 7\ns_cbranch_scc1 K2_fp1")
        A("v_mov_b32 v252, v0" if n == 0 else "v_and_b32 v252, 63, v0\nv_add_u32 v252, 512, v252")
        A("v_mul_u32_u24 v253, 3641, v252\nv_lshrrev_b32 v253, 16, v253\nv_mul_u32_u24 v254, 18, v253\nv_sub_u32 v254, v252, v254")
        A(f"v_mul_u32_u24 v252, 1152, v253\nv_lshl_add_u32 v{FI}, v254, 4, v252")
        A(f"v_mul_u32_u24 v252, {RED_RS}, v253\nv_lshl_add_u32 v{FI+1}, v254, 5, v252\nv_add_u32 v{FI+1}, {RED}, v{FI+1}")
        A(f"v_lshrrev_b32 v252, 1, v254\nv_mul_u32_u24 v252, {PBS}, v252\nv_and_b32 v254, 1, v254\nv_lshl_add_u32 v252, v254, 9, v252\nv_xor_b32 v254, v254, v253\nv_and_b32 v254, 15, v254")
        A(f"v_lshl_add_u32 v252, v254, 4, v252\nv_lshrrev_b32 v254, 4, v253\nv_lshl_add_u32 v252, v254, 3, v252\nv_add_u32 v{(241, 240)[n]}, {PB}, v252\nv_add_u32 v{FI+2}, {PB_OWN}, v252")
        A("v_lshlrev_b32 v253, 1, v253")
        A(f"buffer_load_dwordx4 {v(XB,4)}, v{FI}, s[8:11], s50 offen\nbuffer_load_ushort v{FI+3}, v253, s[12:15], s51 offen")
        if n: A.label("K2_fp1")
    A("v_mov_b32 v252, v241")

HEADER = open("parallel_sum__linear_kernel_hedgehog__mixer_token_mlp__prompt.s.ref").read().split("; Override launch")[0] if __name__ == "__main__" else ""

def gen(**kw):
    global CFG
    for k in dir(Cfg):
        if not k.startswith("_"): setattr(CFG, k, kw.get(k, getattr(Cfg, k)))
    A = Asm()
    if HEADER: A(HEADER.rstrip())
    A(f"; @launch grid=(256,1,1) block=(512,1,1) lds={LDS_BYTES}")
    A('.amdgcn_target "amdgcn-amd-amdhsa--gfx950"\n.text')
    gen_k0(A); gen_k1(A); gen_k2(A)
    A.label("CODE_END")
    A("s_endpgm")
    A('.section .rodata,"a"')
    kernel_desc(A, KNAME, 256)
    return A.text()

if __name__ == "__main__":
    out = sys.argv[1] if len(sys.argv) > 1 else "parallel_sum__linear_kernel_hedgehog__mixer_token_mlp__prompt.s"
    kw = {}
    for a in sys.argv[2:]:
        k, val = a.split("=")
        kw[k] = val if not val.lstrip("-").isdigit() else int(val)
    open(out, "w").write(gen(**kw))
```

```python
import math, struct, sys
from asmlib import *

def f2u(x): return struct.unpack("<I", struct.pack("<f", x))[0]
LOG2E = math.log2(math.e)
OOB = 0x80000000

S, D, F, H, DH = 2048, 576, 4608, 32, 18
KA_X, KA_WQKV, KA_WPHI, KA_WO, KA_BX, KA_W1, KA_B1, KA_W2, KA_B2, KA_OUT, KA_DBG, KA_WS = [8*i for i in range(12)]
RS_OFF, RS_SZ = 0x0, 128*128
HT_OFF, HT_SZ = 0x240000, 2359296
WF_OFF, WF_SZ = 0x480000, 6*18*18*1024
U_OFF, U_SZ = 0x680000, 5308416
PHIQ_OFF, PHIQ_SZ = 0xC00000, 4718592
KVP_OFF, KVP_SZ = 0x1080000, 16*48*2048
KVF_OFF, KVF_SZ = 0x12C0000, 48*1024
WOT_OFF, WOT_SZ = 0x1300000, 16*45*1024
OB_OFF, OB_SZ = 0x2000000, 64*4*10240
PART_OFF, PART_SZ = 0x1400000, 64*16*9216
FLAG_OFF, FLAG_SZ = 0x1F00000, 0x58000
F0, F1, FU, FW, FK, FP, FO, FX, FE = 0, 256, 704, 1280, 1360, 1408, 1472, 1600, 2624
FH, FG = 2632, 2640
KNAME = "parallel_sum__linear_kernel_hedgehog__mixer_token_mlp__prompt_kernel"
SINK = 255
STAMP_OFF, STAMP_SZ = 0x3000000, 0x100000

STAGE, POFF, WOFF, NST = 36864, 0, 18432, 4
STAGE2 = STAGE
V_PA, V_PB, V_W0A, V_W1A, V_W0B, V_W1B = 2, 3, 4, 5, 6, 7
V_PF, V_WF, V_ACC = 8, 80, 96
def pf(b, t): return v(V_PF + b*36 + t*4, 4)
def wf(b, j): return v(V_WF + b*8 + j*4, 4)
def accr(st, t, j): return V_ACC + st*72 + (t*2+j)*4
def acc(st, t, j): return v(accr(st, t, j), 4)
MF = "v_mfma_f32_16x16x32_bf16"

class Cfg:
    stamp = False
    auxW1 = ""; auxW2 = ""; auxP = "sc1"; auxSt = "sc1"
    G1 = 0; G2 = 0; GA = 0
    auxOut = ""; flagpos = 1; pollpos = 1
    pts = ""; pf1b = 0; pf2w = 0; pubpos = 0; lord = 0; lm = 0; wat = 932; pf1kv = 0; dfold = 0; tl0 = 0; rot8 = 0; pf2G = 0; pf2Gp = 0; sl1g = 8; sl2g = 1; sA = 0; wn = 2; w0 = 2; rev2 = 0; early = 0; own = 0; ownpf = 0; GO = 4; burn = ""; w22 = 0; koff = 0; dstag = ""; wreg = 0; wpos = 3; glag = 0; hold = 1; smp = 20; prio = 0; prio1 = 0; pfpos = 0; c3s = 0; hint2 = -1; hint1 = 0; prew = 0; gdir = 0; half = 0; pf2l = 0; pf2ls = 0; ost = 0; slo2 = 1; slx = 0; slo = 4; opos = 0; dl0 = 0; dlf = 0; dlw = 0; pff = 0; wide = 0; wot1 = 0; pf1q = 0; slim = 1; unroll = 0; sl0a = 0; wlate = 0; qlim = -1; pfbar = 0; pf1a = 0; c3w2 = 0; c3w1 = 0; swap13 = 1; tlb = 0; sl1 = 0; sl2 = 0; bgo = 0; sl0 = 0; slk = 0
    dbg_nopub = 0; dbg_hot = 0; dbg = ""
    pfc = 0
    pf1 = 0
    pf1l = 0; pf1rev = 0; pf2g = 0; pf2pos = 3
    pf1pos = 0
    pf1s = 0
    pft = 0
    pf2kv = 0; pf2q = 0; pf2s = 0
    probe = ""
CFG = Cfg()

def stamp(A, i):
    if CFG.stamp: A(f"{'s_memtime' if CFG.stamp == 2 else 's_memrealtime'} s[{64+2*i}:{65+2*i}]")
def pt(A, name):
    L = CFG.pts.split(",")
    if name in L: stamp(A, 1 + L.index(name))
def stamp_flush(A):
    if not CFG.stamp: return
    A("s_waitcnt vmcnt(0)")
    stamp(A, 13)
    A("s_waitcnt lgkmcnt(0)")
    srd_off(A, 92, 26, STAMP_OFF, STAMP_SZ)
    A("s_lshl_b32 s63, s2, 3\ns_add_u32 s63, s63, s16\ns_lshl_b32 s63, s63, 6\ns_mov_b64 exec, 1\nv_mov_b32 v1, 0")
    for i in range(14):
        A(f"v_mov_b32 v2, s{64+2*i}\nbuffer_store_dword v2, v1, s[92:95], s63 offen offset:{4*i}")

def emit_compute_addr(A, s_wave, mode):
    if CFG.w22 and mode != "lin": return addr22(A, s_wave, mode)
    A("v_and_b32 v1, 63, v0")
    A(f"v_lshlrev_b32 v{V_PA}, 4, v1")
    A(f"v_add_u32 v{V_PB}, {2*STAGE}, v{V_PA}")
    if mode == "lin":
        A("v_lshrrev_b32 v8, 5, v1\nv_lshlrev_b32 v8, 12, v8\nv_bfe_u32 v9, v1, 4, 1\nv_lshl_add_u32 v8, v9, 7, v8\nv_bfe_u32 v9, v1, 2, 2\nv_lshl_add_u32 v8, v9, 4, v8")
        A("v_bfe_u32 v9, v1, 1, 1\nv_mul_u32_u24 v9, 320, v9\nv_add_u32 v8, v8, v9\nv_and_b32 v9, 1, v1\nv_lshl_add_u32 v8, v9, 3, v8")
        A(f"s_lshl_b32 s3, s{s_wave}, 10\ns_add_u32 s3, s3, {WOFF}\nv_add_u32 v{V_W0A}, s3, v8")
        A(f"v_xor_b32 v{V_W1A}, 64, v{V_W0A}\nv_add_u32 v{V_W0B}, {2*STAGE}, v{V_W0A}\nv_add_u32 v{V_W1B}, {2*STAGE}, v{V_W1A}")
        return
    A("v_lshrrev_b32 v8, 2, v1")
    A("v_and_b32 v9, 7, v8")
    if mode == "std":
        A("v_and_b32 v10, 12, v8\nv_add_u32 v8, v8, v10")
    A(f"s_lshl_b32 s3, s{s_wave}, 1")
    A("v_xor_b32 v9, s3, v9\nv_lshlrev_b32 v9, 5, v9\nv_lshl_add_u32 v9, v8, 8, v9")
    A("v_and_b32 v8, 3, v1\nv_lshl_add_u32 v9, v8, 3, v9")
    A(f"v_add_u32 v{V_W0A}, {WOFF}, v9")
    A(f"v_xor_b32 v{V_W1A}, 32, v{V_W0A}")
    A(f"v_add_u32 v{V_W0B}, {2*STAGE}, v{V_W0A}")
    A(f"v_add_u32 v{V_W1B}, {2*STAGE}, v{V_W1A}")

X22 = 80
def addr22(A, s_wave, mode):
    A("v_and_b32 v1, 63, v0")
    A(f"v_lshlrev_b32 v{V_PA}, 4, v1\nv_add_u32 v{V_PB}, {2*STAGE}, v{V_PA}")
    A(f"s_and_b32 s3, s{s_wave}, 1\ns_mul_i32 s3, s3, 5120\nv_add_u32 v4, s3, v{V_PA}\nv_add_u32 v5, s3, v{V_PB}")
    A("v_lshrrev_b32 v8, 2, v1\nv_and_b32 v9, 7, v8")
    if mode == "std": A("v_and_b32 v10, 12, v8\nv_add_u32 v8, v8, v10")
    A(f"s_lshl_b32 s3, s{s_wave}, 1")
    A("v_xor_b32 v9, s3, v9\nv_lshlrev_b32 v9, 5, v9\nv_lshl_add_u32 v9, v8, 8, v9")
    A(f"v_and_b32 v8, 3, v1\nv_lshl_add_u32 v9, v8, 3, v9\nv_add_u32 v{X22}, {WOFF}, v9")
    for jj in range(1, 4): A(f"v_xor_b32 v{X22+jj}, {32*jj}, v{X22}")
    for jj in range(4): A(f"v_add_u32 v{X22+4+jj}, {2*STAGE}, v{X22+jj}")
def pf22(b, i): return V_PF + 36*b + 4*i
def wf22(b, jj): return V_PF + 36*b + 20 + 4*jj
def reads22(slot, sub, b, mode):
    hi = slot >= 2; so = (slot & 1) * STAGE
    second = 1024 if mode == "std" else 4096
    W = []
    for jj in range(4):
        a = X22 + jj + (4 if hi else 0)
        W.append([f"ds_read_b64_tr_b16 {v(wf22(b,jj)+2*h,2)}, v{a} offset:{so + sub*8192 + h*second}" for h in range(2)])
    P = [f"ds_read_b128 {v(pf22(b,i),4)}, v{(5 if hi else 4) if i < 4 else (V_PB if hi else V_PA)} offset:{so + (sub*9+i)*1024}" for i in range(5)]
    return W[0] + W[1] + W[2] + W[3] + P
def mfmas22(b, w_is_A):
    M = []
    for blk in range(9):
        i, h = (blk >> 1, blk & 1) if blk < 8 else (4, 0)
        for j in range(2):
            p_, w_ = v(pf22(b,i),4), v(wf22(b,2*h+j),4)
            M.append(f"{MF} {acc(0,blk,j)}, {w_ if w_is_A else p_}, {p_ if w_is_A else w_}, {acc(0,blk,j)}")
    return M

def reads_P(slot, sub, b):
    a = V_PB if slot >= 2 else V_PA
    so = (slot & 1) * STAGE
    return [f"ds_read_b128 {pf(b,t)}, v{a} offset:{so + (sub*9+t)*1024}" for t in range(9)]
def reads_W(slot, sub, b, mode):
    hi = slot >= 2
    so = (slot & 1) * STAGE
    R = []
    if mode == "lin":
        a = (V_W0B, V_W1B) if hi else (V_W0A, V_W1A)
        return [f"ds_read_b64_tr_b16 {v(V_WF + b*8 + j*4 + 2*h, 2)}, v{a[h]} offset:{so + j*512}" for j in range(2) for h in range(2)]
    second = 1024 if mode == "std" else 4096
    for j in range(2):
        a = (V_W0B, V_W1B)[j] if hi else (V_W0A, V_W1A)[j]
        base = V_WF + b*8 + j*4
        R.append(f"ds_read_b64_tr_b16 {v(base,2)}, v{a} offset:{so + sub*8192}")
        R.append(f"ds_read_b64_tr_b16 {v(base+2,2)}, v{a} offset:{so + sub*8192 + second}")
    return R

DBG = {"on": False}
def dbg(x): return DBG["on"] and x in CFG.dbg.split(",")
def block(A, M, R, barrier):
    if dbg("nomfma"): M = ["s_nop 3"]*len(M)
    if dbg("noread"): R = []
    if dbg("noreadP"): R = [r for r in R if "tr_b16" in r]
    if dbg("halfP"): R = [r for i, r in enumerate(R) if "tr_b16" in r or i % 2]
    A("s_waitcnt lgkmcnt(0)")
    if barrier: A("s_barrier")
    ri = 0
    for m in M:
        A(m)
        if ri < len(R):
            if R[ri]: A(R[ri])
            ri += 1
    assert ri == len(R)

def mfmas(st, pb, wb, w_is_A):
    M = []
    for t in range(9):
        for j in range(2):
            a, b = (wf(wb,j), pf(pb,t)) if w_is_A else (pf(pb,t), wf(wb,j))
            M.append(f"{MF} {acc(st,t,j)}, {a}, {b}, {acc(st,t,j)}")
    return M

def emit_compute_loop(A, n, mode, w_is_A, s_cnt, first=None, lastfill=None, hooks=None, loopend=None, more=None, own=False):
    lin = mode == "lin"
    if own:
        rd = lambda sl, sub, b: reads_W(sl, sub, b, mode) + reads_P(sl, sub, b)
        A("s_cmp_ge_u32 s2, 144\ns_cbranch_scc1 K2_cn")
        if CFG.own > 2: A("s_barrier")
        pt(A, "own")
        for r in rd(0, 0, 0): A(r)
        for k in range(4): block(A, mfmas(0, k & 1, k & 1, w_is_A[0]), rd((k+1) >> 1, (k+1) & 1, (k+1) & 1) if k < 3 else [], False)
        A("s_barrier")
        if first: first()
        for r in rd(2, 0, 0): A(r)
        A(f"s_mov_b32 s{s_cnt}, {(n - 1) // NST}\ns_branch K2_c2")
        A.label("K2_cn")
    A("s_barrier")
    if first: first()
    w22 = CFG.w22 and not lin
    for r in (reads22(0, 0, 0, mode) if w22 else reads_W(0, 0, 0, mode) + reads_P(0, 0, 0)): A(r)
    def stage(i, last):
        slot = i % NST; nxt = (i+1) % NST
        if lin:
            wb = i & 1
            block(A, mfmas(0, 0, wb, w_is_A[0]), reads_P(slot, 1, 1), False)
            block(A, mfmas(1, 1, wb, w_is_A[1]), (lastfill or []) if last else reads_W(nxt, 0, wb ^ 1, mode) + reads_P(nxt, 0, 0), not last)
        elif w22:
            block(A, mfmas22(0, w_is_A[0]), reads22(slot, 1, 1, mode), False)
            block(A, mfmas22(1, w_is_A[1]), (lastfill or []) if last else reads22(nxt, 0, 0, mode), not last)
        else:
            x0, x1 = (more or {}).get(i, ([], []))
            block(A, mfmas(0, 0, 0, w_is_A[0]), reads_W(slot, 1, 1, mode) + reads_P(slot, 1, 1) + x0, False)
            block(A, mfmas(0, 1, 1, w_is_A[1]), (lastfill or []) if last else reads_W(nxt, 0, 0, mode) + reads_P(nxt, 0, 0) + x1, not last)
    if CFG.unroll and mode == ("std", "pi")[CFG.unroll-1]:
        for i in range(n):
            stage(i, i == n-1); pt(A, f"s{i}")
            if i == 3 and loopend: loopend()
        return
    nloop = (n - 1) // NST
    L = A.newlabel("Lc")
    A(f"s_mov_b32 s{s_cnt}, {nloop}")
    A.label(L)
    for i in range(NST):
        if own and i == 2: A.label("K2_c2")
        stage(i, False)
    if loopend: loopend()
    A(f"s_sub_u32 s{s_cnt}, s{s_cnt}, 1\ns_cmp_lg_u32 s{s_cnt}, 0\ns_cbranch_scc1 {L}")
    for i in range(nloop*NST, n):
        if hooks and i in hooks: hooks[i]()
        stage(i, i == n-1)

def seq_off(A, s_off, step):
    A(f"s_cmp_ge_u32 s59, s57\ns_cselect_b32 s62, 2, 0\ns_add_u32 s62, s62, s59\ns_mul_i32 s62, s62, s19\ns_add_u32 s{s_off}, s35, s62")
def rot_init(A, G, s_rot, s_off, step):
    if G == "seq":
        A(f"s_mov_b32 s35, s{s_off}\ns_sub_u32 s60, s58, s59\ns_mov_b32 s61, s58\ns_mov_b32 s19, {step}")
        if CFG.rev2: A(f"s_bitcmp1_b32 s2, 0\ns_cselect_b32 s62, {17*step}, 0\ns_cselect_b32 s19, {-step}, s19\ns_add_u32 s35, s35, s62")
        return seq_off(A, s_off, step)
    if DBG.get("koff"):
        A(f"s_and_b32 s58, s2, 6\ns_lshl_b32 s58, s58, 2\ns_mul_i32 s62, s58, {step}\ns_add_u32 s{s_off}, s{s_off}, s62\ns_sub_u32 s58, 32, s58")
    if not G: return
    A(f"s_mul_i32 s62, s{s_rot}, {step}\ns_add_u32 s{s_off}, s{s_off}, s62")
    A(f"s_sub_u32 s60, {G}, s{s_rot}\ns_mov_b32 s61, {G}")
def rot_step(A, G, s_off, step):
    if dbg("noadv"): return
    if dbg("k2W") and step == 64*4096: return
    if dbg("k2P") and step == 18432: return
    if "k1W" in CFG.dbg and step == 64*9216: return
    if "k1P" in CFG.dbg and DBG.get("k1P"): return
    if G == "none": return
    if G == "seq":
        A("s_add_u32 s59, s59, 1\ns_sub_u32 s60, s60, 1\ns_cmp_eq_u32 s60, 0\ns_cselect_b32 s62, s58, 0\ns_cselect_b32 s60, s58, s60\ns_sub_u32 s59, s59, s62")
        A("s_sub_u32 s61, s61, 1\ns_cmp_eq_u32 s61, 0\ns_cselect_b32 s62, s58, 0\ns_cselect_b32 s61, s58, s61\ns_add_u32 s59, s59, s62")
        return seq_off(A, s_off, step)
    A(f"s_add_u32 s{s_off}, s{s_off}, {step}")
    if DBG.get("koff"):
        A(f"s_sub_u32 s58, s58, 1\ns_cmp_eq_u32 s58, 0\ns_cselect_b32 s62, {32*step}, 0\ns_sub_u32 s{s_off}, s{s_off}, s62")
    if not G: return
    A(f"s_sub_u32 s60, s60, 1\ns_cmp_eq_u32 s60, 0\ns_cselect_b32 s62, {G*step}, 0\ns_cselect_b32 s60, {G}, s60\ns_sub_u32 s{s_off}, s{s_off}, s62")
    A(f"s_sub_u32 s61, s61, 1\ns_cmp_eq_u32 s61, 0\ns_cselect_b32 s62, {G*step}, 0\ns_cselect_b32 s61, {G}, s61\ns_add_u32 s{s_off}, s{s_off}, s62")

def emit_loader(A, n, cnt, issue, s_cnt, extra=None, hook=None, post=None, pre=None, mid=None, sched=None, loopend=None, alt=None):
    extra = extra or []
    tot = n + len(extra)
    hook = hook or {}
    def c(i): return 0 if i >= tot else (cnt + (i in hook) if i < n else extra[i-n][0])
    nloop = (n - 3) // NST
    L = A.newlabel("Ll")
    A(f"s_mov_b32 s{s_cnt}, {nloop}")
    if alt: alt(issue, L)
    if pre: pre()
    for i in range(3): issue(i)
    if mid: mid()
    A.label(L)
    for i in range(NST):
        if i >= 2: A.label(L + f"_{i}")
        A(f"s_waitcnt vmcnt({2*cnt})\ns_barrier")
        issue((i+3) % NST)
    if loopend: loopend()
    A(f"s_sub_u32 s{s_cnt}, s{s_cnt}, 1\ns_cmp_lg_u32 s{s_cnt}, 0\ns_cbranch_scc1 {L}")
    def run_sched(sched):
        nbar, after, need, lg = sched
        order = [(k, cnt) for k in range(nloop*NST + 3)]
        for i in range(nloop*NST, nbar):
            name = need.get(i, i)
            pos = max(p for p, (k, _) in enumerate(order) if k == name)
            A(f"s_waitcnt vmcnt({sum(c_ for _, c_ in order[pos+1:])})" + (f" lgkmcnt({lg[i]})" if i in lg else "") + "\ns_barrier")
            if i+3 in hook: hook[i+3](); order.append((i+3, 1))
            if i+3 < n: issue((i+3) % NST); order.append((i+3, cnt))
            for name, c_, emit in after.get(i, []):
                emit(); order.append((name, c_))
    if sched:
        X = A.newlabel("Lz")
        if len(sched) > 1: A(f"{sched[1][0]}\ns_cbranch_scc1 {X}_b")
        run_sched(sched[0])
        if len(sched) > 1:
            A(f"s_branch {X}\n{X}_b:")
            run_sched(sched[1][1])
        A.label(X)
        return
    for i in range(nloop*NST, tot):
        A(f"s_waitcnt vmcnt({c(i+1)+c(i+2) + (post[0] if post and i > n-post[2] else 0)})\ns_barrier")
        if post and i == n-post[2]: post[1]()
        if i+3 in hook: hook[i+3]()
        if i+3 < n: issue((i+3) % NST)
        elif i+3 < tot: extra[i+3-n][1]((i+3) % NST)

def emit_loader_lin(A, n, per, ldsoff, s_lw, srdP, s_off, s_cnt, s_tmp, aux="", G=0, s_rot=59, extra=None, post=None, pre=None, hook=None, sched=None, loopend=None, alt=None):
    rot_init(A, G, s_rot, s_off, 2*per*1024)
    A("v_and_b32 v1, 63, v0\nv_lshlrev_b32 v1, 4, v1")
    A(f"s_mul_i32 s{s_tmp}, s{s_lw}, {per*1024}")
    A(f"v_add_u32 v2, s{s_tmp}, v1")
    for q in range(1, (per+3)//4): A(f"v_add_u32 v{2+q}, {q*4096}, v2")
    def issue(slot):
        for j in range(per):
            if j % 4 == 0:
                A(f"s_add_u32 m0, s{s_tmp}, {slot*STAGE + ldsoff + (j//4)*4096}\ns_nop 0")
            if not dbg("noload"): A(f"buffer_load_dwordx4 v{2+j//4}, {s(srdP,4)}, s{s_off} offen offset:{(j%4)*1024} {aux} lds")
        rot_step(A, G, s_off, 2*per*1024)
    emit_loader(A, n, per, issue, s_cnt, extra, hook=hook, post=post, pre=pre, sched=sched, loopend=loopend, alt=alt)

def emit_loader_W(A, n, mode, s_lw, srdW, s_off, stride, s_cnt, s_tmp, aux="", G=0, s_rot=59, extra=None, hook=None, post=None, every=None, mid=None, sched=None, loopend=None, alt=None):
    rot_init(A, G, s_rot, s_off, 64*stride)
    A("v_and_b32 v1, 63, v0\nv_lshrrev_b32 v10, 4, v1\nv_and_b32 v11, 15, v1")
    A(f"s_lshl_b32 s{s_tmp}, s{s_lw}, 5\nv_add_u32 v12, s{s_tmp}, v10")
    A(f"s_mov_b32 s3, {stride}\nv_mul_lo_u32 v12, v12, s3")
    for par in range(2):
        A(f"v_or_b32 v13, {4*par}, v10\nv_lshlrev_b32 v13, 1, v13\nv_xor_b32 v13, v13, v11")
        A("v_lshl_add_u32 v13, v13, 4, v12")
        for j in range(8):
            key = (j & 1) if mode == "pi" else ((j >> 1) & 1)
            if key == par:
                A(f"v_add_u32 v{2+j}, {4*j*stride - (j%4)*1024}, v13")
    A(f"s_lshl_b32 s{s_tmp}, s{s_lw}, 13")
    def issue(slot, adv=True):
        for j in range(8):
            if j % 4 == 0:
                A(f"s_add_u32 m0, s{s_tmp}, {slot*STAGE + WOFF + (j//4)*4096}\ns_nop 0")
            if not dbg("noload"): A(f"buffer_load_dwordx4 v{2+j}, {s(srdW,4)}, s{s_off} offen offset:{(j%4)*1024} {aux} lds")
        if every: every()
        rot_step(A, G if adv else 'none', s_off, 64*stride)
    emit_loader(A, n, 9 if every else 8, issue, s_cnt, extra, hook, post, mid=mid, sched=sched, loopend=loopend, alt=alt)

def pf_w1(A, srdn, s_col, s_idx, step, count, vl, vt, lim=None, rev=0, lanes=64, base=0):
    for c in range(count):
        if rev: A(f"s_sub_u32 s57, {rev-1}, s{s_idx}\ns_lshl_b32 s57, s57, 6")
        else: A(f"s_mul_i32 s57, s{s_idx}, {lanes}")
        if base: A(f"s_add_u32 s57, s57, {base}")
        A(f"v_add_u32 v{vt}, s57, v{vl}")
        if CFG.koff:
            A(f"s_and_b32 s57, s2, 6\ns_mul_i32 s57, s57, 2560\nv_add_u32 v{vt}, s57, v{vt}\nv_subrev_u32 v{vt+1}, 20480, v{vt}\nv_min_u32 v{vt}, v{vt}, v{vt+1}")
        A(f"v_mul_u32_u24 v{vt+1}, 52429, v{vt}\nv_lshrrev_b32 v{vt+1}, 19, v{vt+1}")
        A(f"v_mul_u32_u24 v{vt+1}, {9216-1280}, v{vt+1}\nv_lshl_add_u32 v{vt}, v{vt}, 7, v{vt+1}")
        if lanes < 64: A(f"s_bfm_b64 exec, {lanes}, 0")
        A(f"buffer_load_dword v{SINK}, v{vt}, {s(srdn,4)}, s{s_col} offen")
        if lanes < 64: A("s_mov_b64 exec, -1")
        A(f"s_add_u32 s{s_idx}, s{s_idx}, {step}")
        if lim is not None: A(f"s_waitcnt vmcnt({lim})")
def pf_code(A, start):
    L = A.newlabel("Lpc")
    A(f"s_getpc_b64 s[60:61]\n{L}:\ns_add_u32 s60, s60, {start}-{L}\ns_addc_u32 s61, s61, 0")
    A(f"v_lshlrev_b32 v90, 7, v0\nv_min_u32 v90, CODE_END-{start}-4, v90\nglobal_load_dword v{SINK}, v90, s[60:61]")
def pf_w1_col(A, s_col):
    A(f"s_and_b32 s{s_col}, s2, 7\ns_mul_i32 s{s_col}, s{s_col}, 18\ns_lshr_b32 s{s_col}, s{s_col}, 2\ns_lshl_b32 s{s_col}, s{s_col}, 8")
def pf_w2(A, s_ptr, s_idx, step, count, lim=None, srdn=52):
    if not count: return
    srd(A, srdn, s_ptr, S*F*2)
    A(f"s_bfe_u32 s57, s2, 0x20001\ns_mul_i32 s57, s57, {1152*4096}\ns_and_b32 s58, s2, 1\ns_lshl_b32 s58, s58, 11\ns_add_u32 s57, s57, s58")
    if CFG.rev2:
        A(f"s_sub_u32 s58, 287, s{s_idx}\ns_bitcmp1_b32 s2, 0\ns_cselect_b32 s58, s58, s{s_idx}\ns_lshl_b32 s58, s58, 14\ns_add_u32 s57, s57, s58")
        A(f"s_mov_b32 s58, {step*16384}\ns_bitcmp1_b32 s2, 0\ns_cselect_b32 s58, {-step*16384}, s58")
    else: A(f"s_lshl_b32 s58, s{s_idx}, 14\ns_add_u32 s57, s57, s58\ns_mov_b32 s58, {step*16384}")
    A("v_bfe_u32 v30, v0, 4, 2\nv_lshlrev_b32 v30, 12, v30\nv_and_b32 v31, 15, v0\nv_lshl_add_u32 v30, v31, 7, v30")
    for c in range(count):
        A(f"buffer_load_dword v{SINK}, v30, {s(srdn,4)}, s57 offen\ns_add_u32 s57, s57, s58")
        if lim is not None: A(f"s_waitcnt vmcnt({lim})")

def pf_w2c3(A, s_ptr, s_idx, step, count, lim=None):
    srd(A, 52, s_ptr, S*F*2)
    A(f"s_bfe_u32 s57, s2, 0x20001\ns_mul_i32 s57, s57, {1152*4096}\ns_and_b32 s58, s2, 1\ns_lshl_b32 s58, s58, 11\ns_add_u32 s57, s57, s58")
    A(f"s_lshl_b32 s58, s{s_idx}, 17\ns_add_u32 s57, s57, s58\ns_add_u32 s57, s57, 384")
    A("v_bfe_u32 v30, v0, 1, 5\nv_lshlrev_b32 v30, 12, v30\nv_and_b32 v31, 1, v0\nv_lshl_add_u32 v30, v31, 10, v30")
    for c in range(count):
        L = A.newlabel("Lc3")
        A(f"s_cmp_ge_u32 s{s_idx}, {36 - c*step}\ns_cbranch_scc1 {L}")
        A(f"buffer_load_dword v{SINK}, v30, s[52:55], s57 offen\ns_add_u32 s57, s57, {step << 17}")
        if lim is not None: A(f"s_waitcnt vmcnt({lim})")
        A.label(L)

SPIN_MAX = 60000
def flag_setup(A):
    srd_off(A, 96, 26, FLAG_OFF, FLAG_SZ)
    A(f"s_load_dword s100, s[96:97], {FE*128}")
def touch_pages(A):
    srd(A, 92, 26, OB_OFF + OB_SZ)
    A(f"v_and_b32 v92, 63, v0\nv_cmp_gt_u32 vcc, {CFG.tl0}, v92\nv_lshlrev_b32 v92, 21, v92\nv_mov_b32 v93, {FLAG_OFF + FE*128}\nv_add_u32 v92, 0x1ff000, v92\nv_cndmask_b32 v92, v93, v92, vcc")
    A(f"s_bfm_b64 exec, {CFG.tl0 + 1}, 0\nbuffer_load_dword v{SINK}, v92, s[92:95], 0 offen sc1\ns_mov_b64 exec, -1")
def tag_make(A):
    A("s_add_u32 s100, s100, 1\ns_mul_i32 s101, s100, 0x9e3779b1\ns_add_u32 s101, s101, 0x7f4a7c15")
def raise_flag(A, s_off, vt):
    A(f"v_mov_b32 v{vt}, s100\nv_mov_b32 v{vt+1}, s101\nv_mov_b32 v{vt+2}, s{s_off}")
    if CFG.wide:
        A(f"v_and_b32 v{vt+2}, 7, v0\nv_lshl_add_u32 v{vt+2}, v{vt+2}, 3, s{s_off}")
    A(f"s_mov_b64 exec, {0xff if CFG.wide else 1}\nbuffer_store_dwordx2 {v(vt,2)}, v{vt+2}, s[96:99], 0 offen sc1\ns_mov_b64 exec, -1")
def clear_flag(A, s_off, vt):
    if not CFG.prew: return
    A(f"v_and_b32 v{vt}, 31, v0\nv_lshl_add_u32 v{vt}, v{vt}, 2, s{s_off}\nv_mov_b32 v{vt+1}, 0\ns_bfm_b64 exec, 32, 0\nbuffer_store_dword v{vt+1}, v{vt}, s[96:99], 0 offen sc1\ns_mov_b64 exec, -1")
def poll(A, vaddr, vtmp, sleep=0):
    L = A.newlabel("Lp"); X = A.newlabel("Lx")
    A(f"s_mov_b32 s63, {SPIN_MAX}")
    A.label(L)
    A(f"buffer_load_dwordx2 {v(vtmp,2)}, v{vaddr}, s[96:99], 0 offen sc1")
    A(f"s_waitcnt vmcnt(0)\nv_cmp_ne_u64 vcc, s[100:101], {v(vtmp,2)}\ns_sub_u32 s63, s63, 1\ns_cbranch_scc1 {X}\ns_nop 2\ns_cbranch_vccz {X}")
    A("s_mov_b64 exec, vcc")
    if sleep: A(f"s_sleep {sleep}")
    A(f"s_branch {L}")
    A.label(X)
    A("s_mov_b64 exec, -1")
def poll2(A, vaddr, vtmp, sleep1, sleep2, skip=None, vfirst=None):
    if sleep1:
        L = A.newlabel("Ls")
        if skip: A(f"{skip}\ns_cbranch_scc1 {L}")
        A("s_mov_b64 exec, 1")
        poll(A, vaddr if vfirst is None else vfirst, vtmp, sleep1)
        A.label(L)
    poll(A, vaddr, vtmp, sleep2)

def wave_id(A, sd):
    A(f"v_lshrrev_b32 v1, 6, v0\ns_nop 1\nv_readfirstlane_b32 s{sd}, v1")

def reduce32(A, regs, tmp):
    pad = "s_nop 1" if len(regs) == 1 else "s_nop 0"
    A("s_nop 1")
    for pat in ["quad_perm:[1,0,3,2]", "quad_perm:[2,3,0,1]", "row_half_mirror", "row_mirror"]:
        for r in regs:
            A(f"v_add_f32_dpp v{r}, v{r}, v{r} {pat} row_mask:0xf bank_mask:0xf")
        A(pad)
    for i, r in enumerate(regs): A(f"v_mov_b32 v{tmp+i}, v{r}")
    A("s_nop 1")
    for i, r in enumerate(regs): A(f"v_permlane16_swap_b32 v{r}, v{tmp+i}")
    A("s_nop 1")
    for i, r in enumerate(regs): A(f"v_add_f32 v{r}, v{r}, v{tmp+i}")

XRS, HRS = 1168, 1216
P0 = 3*STAGE
LDS_BYTES = 163840
K0_HL = P0 + 256
K0_DUMMY = K0_HL + 16*HRS
K0_LDS = 83968
def seam_pre(A):
    tag_make(A)
    A(f"s_lshl_b32 s49, s2, 2\ns_add_u32 s49, s49, s16\ns_add_u32 s49, s49, {F1}\ns_cmp_eq_u32 s16, 4\ns_cselect_b32 s49, s2, s49\ns_lshl_b32 s49, s49, 7")
    A(f"s_cmp_gt_u32 s16, 4\ns_cselect_b32 s49, {OOB}, s49")
    A(f"s_load_dwordx4 s[4:7], s[0:1], {KA_W1}\ns_load_dwordx2 s[50:51], s[0:1], {KA_W2}")
def gen_k0(A):
    kernel_head(A, KNAME)
    stamp(A, 0)
    A("s_cmp_ge_u32 s2, 256\ns_cbranch_scc1 K_end")
    A(f"s_load_dwordx4 s[4:7], s[0:1], {KA_X}\ns_load_dwordx2 s[26:27], s[0:1], {KA_WS}")
    A(f"s_load_dwordx4 s[20:23], s[0:1], {KA_WPHI}\ns_load_dwordx2 s[48:49], s[0:1], {KA_W1}")
    A("s_sub_u32 s44, s2, 112\ns_cmp_ge_u32 s44, 128\ns_cbranch_scc1 K0_pf")
    X, P, Q = 20, 8, 56
    A("v_lshrrev_b32 v2, 5, v0\nv_and_b32 v3, 31, v0")
    A("v_mul_u32_u24 v4, 1152, v2\nv_lshl_add_u32 v4, v3, 4, v4")
    A(f"v_cmp_gt_u32 s[30:31], 24, v3\nv_mov_b32 v5, {OOB}")
    A("s_mul_i32 s3, s44, 18432")
    A("v_cndmask_b32 v4, v5, v4, s[30:31]")
    A("s_waitcnt lgkmcnt(0)")
    srd(A, 8, 4, S*D*2)
    for j in range(3): A(f"buffer_load_dwordx4 {v(P+4*j,4)}, v4, s[8:11], s3 offen offset:{384*j}")
    A("s_branch K0_ln")
    A.label("K0_pf")
    wave_id(A, 16)
    def pf_setup():
        flag_setup(A)
        srd(A, 52, 48, S*F*2)
        pf_w1_col(A, 46)
        A("s_and_b32 s47, s2, 0x78\ns_add_u32 s47, s47, s16\nv_and_b32 v1, 63, v0")
    def pf_round(r):
        if not CFG.pf1: return 0
        pf_w1(A, 52, 46, 47, 128, 1, 1, 88, lanes=CFG.pf1)
        return 1
    A("s_cmp_ge_u32 s2, 108\ns_cbranch_scc1 K0_nofold")
    A("s_mul_i32 s18, s2, 7282\ns_lshr_b32 s18, s18, 16")
    A("s_mul_i32 s19, s18, 9\ns_sub_u32 s17, s2, s19")
    A("s_and_b32 s28, s18, 3\ns_lshr_b32 s29, s18, 2")
    F_W, F_P = P0 + 18432, P0 + 18432 + 18432
    for r in range(3):
        A(f"v_add_u32 v4, {512*r}, v0\nv_mul_u32_u24 v5, 58255, v4\nv_lshrrev_b32 v5, 20, v5")
        A(f"v_mul_u32_u24 v5, {3456-288}, v5\nv_lshl_add_u32 v{12+r}, v4, 4, v5")
    A(f"s_mul_i32 s32, s17, {64*3456}\ns_mul_i32 s33, s29, 1152\ns_add_u32 s32, s32, s33\ns_mul_i32 s33, s28, 288\ns_add_u32 s32, s32, s33")
    A(f"s_mul_i32 s33, s28, 5184\nv_lshlrev_b32 v15, 4, v0\nv_subrev_u32 v15, 2048, v15\ns_lshl_b32 s34, s16, 10\ns_add_u32 m0, s34, {F_W}")
    A("s_waitcnt lgkmcnt(0)")
    if CFG.dfold: A(f"s_sleep {CFG.dfold}")
    srd(A, 8, 6, D*3*D*2)
    A(f"buffer_load_dwordx4 v12, s[8:11], s32 offen lds\ns_add_u32 m0, s34, {F_W + 8192}")
    srd(A, 12, 20, H*DH*DH*2)
    A(f"buffer_load_dwordx4 v13, s[8:11], s32 offen lds\ns_add_u32 m0, s34, {F_W + 16384}\ns_cmp_ge_u32 s16, 2\ns_cbranch_scc1 K0_f1")
    A("buffer_load_dwordx4 v14, s[8:11], s32 offen lds")
    A.label("K0_f1")
    A(f"s_add_u32 m0, s34, {F_P - 2048}\ns_cmp_eq_u32 s29, 2\ns_cselect_b32 s3, 1, 6\ns_sub_u32 s35, s16, 2\ns_cmp_ge_u32 s35, s3\ns_cbranch_scc1 K0_f2")
    A("buffer_load_dwordx4 v15, s[12:15], s33 offen lds")
    A.label("K0_f2")
    pt(A, "fi")
    pf_setup()
    if CFG.pfbar: A("s_barrier")
    if CFG.prew:
        A(f"s_lshl_b32 s3, s2, 2\ns_add_u32 s3, s3, s16\ns_add_u32 s3, s3, {F1}\ns_lshl_b32 s3, s3, 7\ns_cmp_lt_u32 s16, 4\ns_cselect_b32 s3, s3, {OOB}")
        clear_flag(A, 3, 90)
    if CFG.tl0: touch_pages(A)
    npf = (pf_round(0) if CFG.pfpos == 0 else 0) + (1 if CFG.prew else 0) + (1 if CFG.tl0 else 0)
    A("s_lshr_b32 s19, s16, 2\ns_and_b32 s43, s16, 3\ns_lshl_b32 s30, s43, 1\ns_add_u32 s30, s30, s19")
    srd_off(A, 20, 26, WF_OFF, WF_SZ)
    A("v_and_b32 v2, 15, v1\nv_lshrrev_b32 v3, 4, v1")
    A("v_and_b32 v4, 12, v2\nv_add_u32 v4, v4, v2")
    A(f"v_mul_u32_u24 v4, 288, v4\nv_lshl_add_u32 v4, v3, 4, v4\ns_mul_i32 s33, s30, 36\ns_and_b32 s39, s33, 15\ns_sub_u32 s33, s33, s39\ns_add_u32 s33, s33, {F_W}")
    A("v_add_u32 v76, s33, v4\ns_lshr_b32 s39, s39, 1\nv_lshlrev_b32 v11, 3, v3\nv_subrev_u32 v11, s39, v11")
    A("s_mov_b32 s40, 0x00030003\ns_mov_b32 s41, 0x00030003")
    B = 28
    def a_reads():
        pt(A, "f0")
        A(f"s_waitcnt vmcnt({npf})")
        pt(A, "x")
        if CFG.pfpos == 1: pf_round(0)
        A("s_barrier")
        pt(A, "f1")
        for q in range(4):
            A(f"ds_read_b128 {v(12+4*q,4)}, v76 offset:{288*(32*(q>>1) + 4*(q&1))}")
    A("s_cmp_eq_u32 s29, 2\ns_cbranch_scc1 K0_ident")
    A("s_mul_i32 s34, s19, 18\nv_add_u32 v5, s34, v2")
    A(f"s_lshl_b32 s35, s43, 6\ns_add_u32 s35, s35, {P0}")
    for nt in range(2):
        if nt: A("v_add_u32 v5, 16, v5")
        A(f"v_lshrrev_b32 v6, 2, v5\nv_lshlrev_b32 v6, 10, v6\nv_and_b32 v7, 3, v5\nv_lshl_add_u32 v6, v7, 4, v6")
        A(f"v_lshl_add_u32 v6, v3, 8, v6\nv_add_u32 v{52+nt}, s35, v6")
    A("s_lshr_b32 s34, s28, 1\ns_add_u32 s34, s34, 4\ns_and_b32 s35, s28, 1\ns_mul_i32 s35, s35, 9216")
    A("s_cmp_eq_u32 s29, 0\ns_cselect_b32 s34, s34, s28\ns_cselect_b32 s35, s35, 0")
    A(f"s_mov_b32 s42, {f2u(LOG2E)}")
    A(f"v_mul_i32_i24 v5, 36, v11\nv_lshl_add_u32 v5, v2, 1, v5\ns_mul_i32 s33, s30, 648\ns_add_u32 s33, s33, {F_P}\nv_add_u32 v80, s33, v5")
    for q in range(4): A(f"v_add_u32 v5, {2*q}, v11\nv_cmp_gt_u32 {s((36, 44, 58, 60)[q],2)}, 18, v5")
    a_reads()
    for nt in range(2):
        for ii in range(8):
            A(f"ds_read_u16 v{36+8*nt+ii}, v80 offset:{36*ii + 32*nt}")
    A("s_waitcnt lgkmcnt(0)")
    for q in range(8): A(f"v_lshl_or_b32 v{B+q}, v{36+2*q+1}, 16, v{36+2*q}")
    for q in range(8): A(f"v_cndmask_b32 v{B+q}, 0, v{B+q}, {s((36, 44, 58, 60)[q&3],2)}")
    A("s_branch K0_fmm")
    A.label("K0_ident")
    A("v_sub_u32 v5, v2, v11\nv_add_u32 v6, 16, v5")
    A("v_mov_b32 v7, 0x3f80\nv_mov_b32 v8, 0x3f800000")
    for nt in range(2):
        for q in range(4):
            A(f"v_cmp_eq_u32 vcc, {2*q}, v{5+nt}\nv_cmp_eq_u32 s[44:45], {2*q+1}, v{5+nt}\ns_nop 1")
            A(f"v_cndmask_b32 v9, 0, v7, vcc\nv_cndmask_b32 v{B+4*nt+q}, v9, v8, s[44:45]")
    A(f"v_lshlrev_b32 v6, 8, v3\nv_lshl_add_u32 v6, v2, 4, v6\nv_add_u32 v6, {P0}, v6")
    A("s_lshl_b32 s34, s30, 10\nv_add_u32 v52, s34, v6")
    A("s_lshl_b32 s34, s30, 5\ns_add_u32 s34, s34, 8192\nv_add_u32 v53, s34, v6")
    A("s_mov_b32 s34, s28\ns_mov_b32 s35, 9216\ns_mov_b32 s42, 1.0")
    a_reads()
    A("s_waitcnt lgkmcnt(0)")
    A.label("K0_fmm")
    pt(A, "f2")
    A("s_mul_i32 s34, s34, 18\ns_lshl_b32 s33, s17, 1\ns_add_u32 s34, s34, s33\ns_mul_i32 s34, s34, 18432\ns_add_u32 s34, s34, s35")
    DD = 56
    for kbi in range(2):
        for nt in range(2):
            for a in range(2):
                A(f"{MF} {v(DD+16*kbi+8*nt+4*a,4)}, {v(12+8*kbi+4*a,4)}, {v(B+4*nt,4)}, 0")
    seam_pre(A)
    A("s_mov_b32 s43, s42\ns_lshl_b32 s33, s16, 10\nv_lshlrev_b32 v89, 4, v1\ns_and_b32 s3, s16, 1\ns_mul_i32 s35, s3, 9216")
    A(f"s_add_u32 s37, s33, {P0}\nv_add_u32 v90, s37, v89\ns_add_u32 s35, s35, {P0 + 8192}\nv_add_u32 v91, s35, v89")
    A("s_mul_i32 s3, s3, 18432\ns_add_u32 s37, s34, s3\ns_add_u32 s37, s37, 8192\ns_add_u32 s17, s34, s33")
    for kbi in range(2):
        for nt in range(2):
            d0 = DD+16*kbi+8*nt
            for i in range(4): A(f"v_pk_mul_f32 {v(d0+2*i,2)}, {v(d0+2*i,2)}, s[42:43]")
            o = 36 + 8*kbi + 4*nt
            for i in range(4): A(f"v_cvt_pk_bf16_f32 v{o+i}, v{d0+2*i}, v{d0+2*i+1}")
            if nt == 0: A(f"ds_write_b128 v52, {v(o,4)} offset:{9216*kbi}")
    A("s_mov_b64 exec, s[40:41]\nds_write_b128 v53, v[40:43]\nds_write_b128 v53, v[48:51] offset:9216\ns_mov_b64 exec, -1")
    A("s_waitcnt lgkmcnt(0)\ns_barrier\ns_cmp_ge_u32 s16, 4\ns_cbranch_scc1 K0_seam")
    pt(A, "st0")
    for q in range(4): A(f"ds_read_b128 {v(12+4*q,4)}, v90 offset:{9216*(q>>1) + 4096*(q&1)}")
    A("ds_read_b128 v[28:31], v91")
    for q in range(4):
        A(f"s_waitcnt lgkmcnt({4-q})\nbuffer_store_dwordx4 {v(12+4*q,4)}, v89, s[20:23], s17 offen {CFG.auxSt}\ns_add_u32 s17, s17, {4096 if q != 1 else 18432-4096}")
    A("s_branch K0_last")
    A.label("K0_nofold")
    A("s_waitcnt lgkmcnt(0)")
    if CFG.dfold: A(f"s_sleep {CFG.dfold}")
    pf_setup()
    if CFG.pff:
        A(f"s_sub_u32 s3, s2, 240\ns_cmp_ge_u32 s3, 6\ns_cbranch_scc1 K0_nof\ns_lshl_b32 s3, s3, 16\nv_lshl_add_u32 v90, v0, 7, s3\nbuffer_load_dword v{SINK}, v90, s[96:99], 0 offen sc1")
        A.label("K0_nof")
    if CFG.pfc:
        A("s_cmp_lt_u32 s2, 248\ns_cbranch_scc1 K0_noc")
        pf_code(A, "K0_ln")
        A.label("K0_noc")
    A("s_cmp_ge_u32 s2, 240\ns_cbranch_scc1 K1_spare")
    pf_round(0)
    A("s_waitcnt lgkmcnt(0)")
    seam_pre(A)
    A("s_waitcnt lgkmcnt(0)\ns_barrier\ns_branch K0_seam")
    A.label("K0_ln")
    pt(A, "fi")
    flag_setup(A)
    wave_id(A, 16)
    A(f"v_lshlrev_b32 v6, 2, v2\nv_add_u32 v6, {P0}, v6")
    A(f"v_mul_u32_u24 v7, {HRS}, v2\nv_lshl_add_u32 v7, v3, 4, v7\nv_add_u32 v7, {K0_HL}, v7")
    srd_off(A, 12, 26, RS_OFF, RS_SZ)
    srd_off(A, 20, 26, HT_OFF, HT_SZ)
    A(f"s_mov_b32 s33, {f2u(1.0/576)}\ns_mov_b32 s34, {f2u(1e-5)}")
    A("v_and_b32 v1, 63, v0\nv_and_b32 v2, 15, v1\nv_lshrrev_b32 v3, 4, v1")
    A(f"s_lshl_b32 s3, s16, 6\ns_and_b32 s35, s16, 1\ns_lshl_b32 s36, s35, 6\nv_lshlrev_b32 v69, 2, v2\nv_add_u32 v68, {P0}, v69\ns_lshl_b32 s17, s44, 7")
    A("v_bfe_u32 v4, v1, 2, 2\nv_lshrrev_b32 v5, 5, v1\nv_lshl_add_u32 v4, v5, 3, v4")
    A(f"v_mul_u32_u24 v4, {HRS}, v4\nv_and_b32 v3, 1, v3\nv_lshl_add_u32 v4, v3, 5, v4\nv_and_b32 v44, 3, v1\nv_lshl_add_u32 v4, v44, 3, v4\nv_add_u32 v4, {K0_HL}, v4")
    A("v_add_u32 v72, s36, v4\nv_add_u32 v71, s3, v4")
    A("v_lshlrev_b32 v2, 4, v2\nv_lshl_add_u32 v2, v5, 8, v2")
    A(f"s_mov_b32 s38, {589824-9216}\ns_lshl_b32 s3, s16, 1\ns_lshl_b32 s36, s35, 1\ns_add_u32 s36, s36, 32")
    for n in range(3):
        A(f"v_add_u32 v4, s{3 if n < 2 else 36}, v3")
        if n == 1: A("v_add_u32 v4, 16, v4")
        A(f"v_mul_u32_u24 v44, 57, v4\nv_lshrrev_b32 v44, 9, v44\nv_lshl_add_u32 v4, v4, 10, v2\nv_mad_u32_u24 v{73+n}, v44, s38, v4")
    A("s_lshr_b32 s18, s44, 1\ns_mul_i32 s18, s18, 9216\ns_and_b32 s19, s44, 1\ns_lshl_b32 s19, s19, 9\ns_add_u32 s18, s18, s19")
    def xp(i): return v(X+2*i, 2)
    if CFG.prew:
        A(f"s_lshl_b32 s3, s2, 7\ns_cmp_eq_u32 s16, 4\ns_cselect_b32 s3, s3, {OOB}")
        clear_flag(A, 3, 90)
    if CFG.tl0: touch_pages(A)
    pt(A, "f0")
    A(f"s_waitcnt vmcnt({(1 if CFG.prew else 0) + (1 if CFG.tl0 else 0)})")
    pt(A, "x")
    for i in range(12):
        A(f"v_lshlrev_b32 v{X+2*i}, 16, v{P+i}\nv_and_b32 v{X+2*i+1}, 0xffff0000, v{P+i}")
    A(f"v_pk_add_f32 v[44:45], {xp(0)}, {xp(1)}\nv_pk_add_f32 v[46:47], {xp(2)}, {xp(3)}")
    for i in range(4, 12): A(f"v_pk_add_f32 {v(44+2*(i&1),2)}, {v(44+2*(i&1),2)}, {xp(i)}")
    A("v_pk_add_f32 v[44:45], v[44:45], v[46:47]\nv_add_f32 v44, v44, v45")
    reduce32(A, [44], 52)
    A("v_mul_f32 v44, s33, v44")
    for i in range(12): A(f"v_pk_add_f32 {xp(i)}, {xp(i)}, v[44:45] op_sel_hi:[1,0] neg_lo:[0,1] neg_hi:[0,1]")
    A(f"v_pk_mul_f32 v[48:49], {xp(0)}, {xp(0)}\nv_pk_mul_f32 v[50:51], {xp(1)}, {xp(1)}")
    for i in range(2, 12): A(f"v_pk_fma_f32 {v(48+2*(i&1),2)}, {xp(i)}, {xp(i)}, {v(48+2*(i&1),2)}")
    A("v_pk_add_f32 v[48:49], v[48:49], v[50:51]\nv_add_f32 v48, v48, v49")
    A("v_cndmask_b32 v48, 0, v48, s[30:31]")
    reduce32(A, [48], 52)
    A("v_mul_f32 v48, s33, v48\nv_add_f32 v44, s34, v48\nv_rsq_f32 v44, v44\nv_mov_b32 v49, s34")
    A("v_mul_f32 v48, v48, v44\nv_fma_f32 v50, v48, v44, v49\nv_rsq_f32 v48, v50")
    A("s_mov_b64 exec, s[30:31]\nv_mul_f32 v50, v50, v48\nv_mul_f32 v48, v48, v44\nds_write_b32 v6, v50")
    for j in range(3):
        for i in range(4): A(f"v_pk_mul_f32 {v(Q+2*i,2)}, {xp(4*j+i)}, v[48:49] op_sel_hi:[1,0]")
        for i in range(4): A(f"v_cvt_pk_bf16_f32 v{P+4*j+i}, v{Q+2*i}, v{Q+2*i+1}")
        A(f"ds_write_b128 v7, {v(P+4*j,4)} offset:{384*j}")
    A("s_mov_b64 exec, -1\ns_waitcnt lgkmcnt(0)\ns_barrier")
    pt(A, "ln")
    for n in range(2):
        A(f"ds_read_b64_tr_b16 {v(76+4*n,2)}, v71 offset:{512*n}\nds_read_b64_tr_b16 {v(78+4*n,2)}, v71 offset:{512*n + 4*HRS}")
    A(f"ds_read_b64_tr_b16 v[84:85], v72 offset:1024\nds_read_b64_tr_b16 v[86:87], v72 offset:{1024 + 4*HRS}\nds_read_b32 v88, v68")
    A(f"s_cmp_lt_u32 s16, 2\ns_cselect_b32 s3, 0, {OOB}\nv_or_b32 v75, s3, v75")
    for n in range(3):
        A(f"s_waitcnt lgkmcnt({5-2*n})\nbuffer_store_dwordx4 {v(76+4*n,4)}, v{73+n}, s[20:23], s18 offen {CFG.auxSt}")
    A("s_waitcnt lgkmcnt(0)\ns_cmp_lg_u32 s16, 2\ns_cbranch_scc1 K0_nors")
    A(f"s_mov_b64 exec, 0xffff\nbuffer_store_dword v88, v69, s[12:15], s17 offen {CFG.auxSt}\ns_mov_b64 exec, -1")
    A.label("K0_nors")
    pt(A, "st0")
    seam_pre(A)
    A(f"s_cmp_eq_u32 s16, 4\ns_cselect_b32 s49, s49, {OOB}")
    if CFG.hint1:
        A(f"s_cmp_lg_u32 s16, 5\ns_cbranch_scc1 K0_noh\ns_cmp_ge_u32 s44, 8\ns_cbranch_scc1 K0_noh\ns_add_u32 s3, s44, {FH}\ns_lshl_b32 s3, s3, 7")
        raise_flag(A, 3, 4)
        A.label("K0_noh")
    A("s_waitcnt vmcnt(0)\ns_barrier\ns_branch K0_seam")
    A.label("K0_last")
    A("s_waitcnt lgkmcnt(0)\ns_cmp_ge_u32 s16, 2\ns_cbranch_scc1 K0_last2")
    A(f"buffer_store_dwordx4 v[28:31], v89, s[20:23], s37 offen {CFG.auxSt}")
    A.label("K0_last2")
    A("s_waitcnt vmcnt(0)")
    A.label("K0_seam")
    raise_flag(A, 49, 4)
    pt(A, "fl0")
    if CFG.pf1a or CFG.pf1q:
        A(f"s_cmp_lt_u32 s2, {144 if CFG.pf1a else 208}\ns_cbranch_scc1 K0_noa\ns_cmp_ge_u32 s2, 240\ns_cbranch_scc1 K0_noa\ns_cmp_ge_u32 s16, 4\ns_cbranch_scc1 K0_noa")
        A("s_lshr_b32 s47, s2, 3\ns_sub_u32 s47, s47, 18\ns_lshl_b32 s47, s47, 2\ns_add_u32 s47, s47, s16\ns_waitcnt lgkmcnt(0)")
        srd(A, 52, 4, S*F*2)
        pf_w1_col(A, 46)
        pf_w1(A, 52, 46, 47, 48, CFG.pf1a, 1, 88, base=112*CFG.pf1)
        if CFG.pf1q:
            A("s_cmp_lt_u32 s2, 208\ns_cbranch_scc1 K0_noa\ns_sub_u32 s47, s47, 32")
            pf_w1(A, 52, 46, 47, 16, CFG.pf1q, 1, 88, base=112*CFG.pf1)
        if CFG.c3w1:
            A("s_lshr_b32 s3, s46, 8\ns_add_u32 s3, s3, 2\ns_andn2_b32 s3, s3, 3\ns_add_u32 s3, s3, 1\ns_lshl_b32 s3, s3, 8\ns_add_u32 s3, s3, 128")
            A(f"s_lshr_b32 s47, s2, 3\ns_sub_u32 s47, s47, 26\ns_lshl_b32 s47, s47, 2\ns_add_u32 s47, s47, s16\ns_mul_i32 s47, s47, {32*9216}\ns_add_u32 s47, s47, {CFG.c3w1*9216}\ns_add_u32 s47, s47, s3")
            A("s_sub_u32 s3, s3, s46\ns_cmp_lt_u32 s3, 256\ns_cselect_b32 s3, -1, 0\ns_mov_b32 exec_hi, s3")
            A(f"v_and_b32 v88, 31, v1\nv_mul_u32_u24 v88, 9216, v88\nv_lshrrev_b32 v89, 5, v1\nv_lshl_add_u32 v88, v89, 10, v88\nbuffer_load_dword v{SINK}, v88, s[52:55], s47 offen\ns_mov_b64 exec, -1")
        A.label("K0_noa")
    if CFG.tlb:
        A(f"s_cmp_lg_u32 s16, 1\ns_cbranch_scc1 K0_notlb\nv_and_b32 v4, 63, v0\nv_lshlrev_b32 v4, {CFG.tlb}, v4\ns_waitcnt lgkmcnt(0)")
        for ptr, nb in ((4, S*F*2), (50, S*F*2), (26, FLAG_OFF)):
            srd(A, 8, ptr, nb)
            for q in range(-(-nb // (64 << CFG.tlb))):
                A(f"s_mov_b32 s3, {q*(64 << CFG.tlb)}\nbuffer_load_dword v{SINK}, v4, s[8:11], s3 offen sc1")
        A.label("K0_notlb")
def softmax18(A, PR, dst, C):
    vals = [r + i for r in PR for i in range(2)]
    EP, EN, MX, MN = 8, 26, 44, 46
    A(f"v_max3_f32 v{MX}, v{vals[0]}, v{vals[1]}, v{vals[2]}\nv_min3_f32 v{MN}, v{vals[0]}, v{vals[1]}, v{vals[2]}")
    for i in range(3, 17, 2):
        A(f"v_max3_f32 v{MX}, v{MX}, v{vals[i]}, v{vals[i+1]}\nv_min3_f32 v{MN}, v{MN}, v{vals[i]}, v{vals[i+1]}")
    A(f"v_max_f32 v{MX}, v{MX}, v{vals[17]}\nv_min_f32 v{MN}, v{MN}, v{vals[17]}")
    A(f"v_mul_f32 v{MX}, v{MX}, v{C}\nv_mul_f32 v{MN}, v{MN}, v{C}")
    for p in range(9):
        A(f"v_pk_fma_f32 {v(EP+2*p,2)}, {v(PR[p],2)}, {v(C,2)}, {v(MX,2)} op_sel_hi:[1,0,0] neg_lo:[0,0,1] neg_hi:[0,0,1]")
        A(f"v_pk_fma_f32 {v(EN+2*p,2)}, {v(PR[p],2)}, {v(C,2)}, {v(MN,2)} op_sel_hi:[1,0,0] neg_lo:[1,0,0] neg_hi:[1,0,0]")
    for i in range(36): A(f"v_exp_f32 v{EP+i}, v{EP+i}")
    A(f"v_pk_add_f32 {v(MX,2)}, {v(EP,2)}, {v(EP+2,2)}\nv_pk_add_f32 {v(MN,2)}, {v(EN,2)}, {v(EN+2,2)}")
    for p in range(2, 9):
        A(f"v_pk_add_f32 {v(MX,2)}, {v(MX,2)}, {v(EP+2*p,2)}\nv_pk_add_f32 {v(MN,2)}, {v(MN,2)}, {v(EN+2*p,2)}")
    A(f"v_add_f32 v{MX}, v{MX}, v{MX+1}\nv_add_f32 v{MN}, v{MN}, v{MN+1}")
    A(f"v_rcp_f32 v{MX}, v{MX}\nv_rcp_f32 v{MN}, v{MN}\ns_nop 0")
    for p in range(9):
        A(f"v_pk_mul_f32 {v(EP+2*p,2)}, {v(EP+2*p,2)}, {v(MX,2)} op_sel_hi:[1,0]")
        A(f"v_pk_mul_f32 {v(EN+2*p,2)}, {v(EN+2*p,2)}, {v(MN,2)} op_sel_hi:[1,0]")
    for m in range(18): A(f"v_cvt_pk_bf16_f32 v{dst(m)}, v{EP+2*m}, v{EP+2*m+1}")

def pairs(st, j, e):
    return [accr(st, (9*e+p) >> 1, j) + 2*((9*e+p) & 1) for p in range(9)]

PHI_RS = 608
V_LDS = 128*PHI_RS
def gen_k1(A):
    A("s_and_b32 s17, s2, 7\ns_lshr_b32 s18, s2, 3")
    A("s_cmp_ge_u32 s18, 18\ns_cbranch_scc1 K1_notg1")
    A("s_mul_i32 s19, s17, 18\ns_add_u32 s19, s19, s18\ns_and_b32 s22, s19, 3\ns_lshr_b32 s23, s19, 2")
    if CFG.swap13: A("s_or_b32 s19, s23, 1\ns_cmp_eq_u32 s19, 13\ns_cselect_b32 s19, 1, 0\ns_xor_b32 s23, s23, s19")
    if CFG.G1: A(f"s_add_u32 s59, s22, s23\ns_and_b32 s59, s59, {min(CFG.G1, 4) - 1}\ns_mul_i32 s59, s59, {max(CFG.G1//4, 1)}")
    A("s_waitcnt lgkmcnt(0)")
    A("s_cmp_ge_u32 s16, 6\ns_cbranch_scc1 K1_ldW\ns_cmp_ge_u32 s16, 4\ns_cbranch_scc1 K1_ldP")
    if CFG.prio1: A(f"s_setprio {CFG.prio1}")
    srd(A, 32, 6, F*2)
    srd_off(A, 36, 26, U_OFF, U_SZ)
    A("v_bfe_u32 v8, v0, 4, 2\nv_lshlrev_b32 v8, 3, v8")
    A("s_lshl_b32 s3, s23, 8\ns_lshl_b32 s17, s16, 6\ns_add_u32 s3, s3, s17")
    A("buffer_load_dwordx2 v[12:13], v8, s[32:35], s3 offen\nbuffer_load_dwordx2 v[14:15], v8, s[32:35], s3 offen offset:32")
    emit_compute_addr(A, 16, "std")
    A("s_waitcnt vmcnt(0)")
    if CFG.pf1b:
        A(f"s_cmp_ge_u32 s2, 128\ns_cbranch_scc1 K1_nopf\ns_and_b32 s47, s2, 0x78\ns_lshr_b32 s47, s47, 1\ns_add_u32 s47, s47, s16\ns_add_u32 s47, s47, {CFG.pf1}")
        srd(A, 52, 4, S*F*2)
        pf_w1_col(A, 46)
        pf_w1(A, 52, 46, 47, 64, CFG.pf1b, 1, 16)
        A.label("K1_nopf")
    for j in range(2):
        A(f"v_lshlrev_b32 v{V_ACC+j*4}, 16, v{12+2*j}\nv_and_b32 v{V_ACC+j*4+1}, 0xffff0000, v{12+2*j}")
        A(f"v_lshlrev_b32 v{V_ACC+j*4+2}, 16, v{13+2*j}\nv_and_b32 v{V_ACC+j*4+3}, 0xffff0000, v{13+2*j}")
    for i in range(8, 72, 2): A(f"v_pk_mov_b32 {v(V_ACC+i,2)}, {v(V_ACC+i%8,2)}, {v(V_ACC+i%8,2)} op_sel:[0,1]")
    A("s_mul_i32 s17, s22, 144\ns_lshl_b32 s3, s23, 2\ns_add_u32 s17, s17, s3\ns_add_u32 s17, s17, s16")
    A(f"s_add_u32 s49, s17, {FU}\ns_lshl_b32 s49, s49, 7\ns_mul_i32 s17, s17, 9216")
    if CFG.hint2 >= 0:
        A(f"s_mul_i32 s48, s22, 36\ns_add_u32 s48, s48, s23\ns_add_u32 s48, s48, {FG}\ns_lshl_b32 s48, s48, 7\ns_cmp_eq_u32 s16, 0\ns_cselect_b32 s48, s48, {OOB}")
    emit_compute_loop(A, 32, "std", (True, True), 20, first=lambda: (pt(A, "b1"), clear_flag(A, 49, 170)))
    A("s_barrier")
    pt(A, "m1")
    c0 = -2*math.sqrt(2/math.pi)*LOG2E; c1 = c0*0.044715
    A(f"s_mov_b32 s52, {f2u(c1)}\ns_mov_b32 s53, {f2u(c1)}\nv_mov_b32 v8, {f2u(c0)}\nv_mov_b32 v9, {f2u(c0)}")
    if CFG.own:
        A(f"s_lshr_b32 s3, s16, 1\ns_mul_i32 s3, s3, {STAGE - 18432}\ns_mul_i32 s18, s16, 9216\ns_add_u32 s3, s3, s18\nv_add_u32 v10, s3, v{V_PA}")
    else: A("s_nop 2")
    for t in range(9):
        a0 = V_ACC + t*8
        T = 16 + (t % 2) * 12
        for p in range(4): A(f"v_pk_mul_f32 {v(T+2*p,2)}, {v(a0+2*p,2)}, {v(a0+2*p,2)}")
        for p in range(4): A(f"v_pk_fma_f32 {v(T+2*p,2)}, {v(T+2*p,2)}, s[52:53], v[8:9]")
        for p in range(4): A(f"v_pk_mul_f32 {v(T+2*p,2)}, {v(T+2*p,2)}, {v(a0+2*p,2)}")
        for e in range(8): A(f"v_exp_f32 v{T+e}, v{T+e}")
        for p in range(4): A(f"v_pk_add_f32 {v(T+2*p,2)}, {v(T+2*p,2)}, 1.0 op_sel_hi:[1,0]")
        for e in range(8): A(f"v_rcp_f32 v{T+e}, v{T+e}")
        for p in range(4): A(f"v_pk_mul_f32 {v(T+2*p,2)}, {v(T+2*p,2)}, {v(a0+2*p,2)}")
        for p in range(4): A(f"v_cvt_pk_bf16_f32 v{44+4*t+p}, v{T+2*p}, v{T+2*p+1}")
        for tt in ([] if t < CFG.glag else (range(t+1) if t == CFG.glag else [t])):
            if tt and tt % 4 == 0: A("s_add_u32 s17, s17, 4096")
            A(f"buffer_store_dwordx4 {v(44+4*tt,4)}, v{V_PA}, s[36:39], s17 offen offset:{(tt%4)*1024} {CFG.auxSt}")
        if CFG.own: A(f"ds_write_b128 v10, {v(44+4*t,4)} offset:{t*1024}")
        if t == CFG.hint2: raise_flag(A, 48, 40)
    A("s_branch K2_c")
    def g_post():
        A("s_lshr_b32 s49, s2, 3\ns_lshl_b32 s49, s49, 2\ns_add_u32 s49, s49, s16\ns_sub_u32 s49, s49, 4")
        pf_w2(A, 50, 49, 72, CFG.pf2g)
    post = (CFG.pf2g, g_post, CFG.pf2pos) if CFG.pf2g else None
    lend = None
    if CFG.wreg in (1, 2):
        post = (9*CFG.wn, lambda: wot_regs(A, True), CFG.wpos)
        def lend():
            L = A.newlabel("Lv")
            A(f"s_cmp_lg_u32 s20, 3\ns_cbranch_scc1 {L}")
            A("buffer_load_dwordx2 v[38:39], v36, s[96:99], 0 offen sc1")
            if CFG.ownpf:
                A(f"s_cmp_lt_u32 s16, 6\ns_cbranch_scc1 {L}")
                srd(A, 52, 50, S*F*2)
                A("s_lshl_b32 s3, s23, 1\ns_and_b32 s57, s22, 1\ns_add_u32 s3, s3, s57\ns_lshl_b32 s3, s3, 1\ns_add_u32 s3, s3, s17\ns_lshl_b32 s3, s3, 17")
                A("s_and_b32 s57, s2, 1\ns_lshl_b32 s57, s57, 11\ns_add_u32 s3, s3, s57\ns_lshr_b32 s57, s2, 5\ns_lshl_b32 s57, s57, 8\ns_add_u32 s3, s3, s57")
                A(f"v_bfe_u32 v30, v0, 1, 5\nv_lshlrev_b32 v30, 12, v30\nv_and_b32 v31, 1, v0\nv_lshl_add_u32 v30, v31, 7, v30\nbuffer_load_dword v{SINK}, v30, s[52:55], s3 offen")
            A.label(L)
    A.label("K1_ldP")
    if CFG.wreg in (1, 2): wot_flagaddr(A)
    srd_off(A, 8, 26, HT_OFF, HT_SZ)
    A(f"s_sub_u32 s17, s16, 4\ns_mul_i32 s21, s22, {64*9216}")
    def wait_ln():
        A(f"v_and_b32 v8, 62, v0\nv_and_b32 v9, 1, v0\nv_lshl_add_u32 v8, v8, 1, v9\ns_lshl_b32 s3, s17, 1\ns_add_u32 s3, s3, {F0+112}\nv_add_lshl_u32 v8, v8, s3, 7")
        if CFG.dl0: A(f"s_sleep {CFG.dl0}")
        if CFG.dlf: A(f"s_cmp_ge_u32 s2, 112\ns_cbranch_scc1 K1_nodl\ns_sleep {CFG.dlf}\nK1_nodl:")
        if CFG.hint1: A(f"s_and_b32 s3, s2, 7\ns_add_u32 s3, s3, {FH}\ns_lshl_b32 s3, s3, 7\nv_mov_b32 v9, s3")
        poll2(A, 8, 10, CFG.sl0a, CFG.sl0, None, 9 if CFG.hint1 else None)
        pt(A, "go1")
    DBG["k1P"] = True; DBG["koff"] = CFG.koff
    emit_loader_lin(A, 32, 9, POFF, 17, 8, 21, 20, 18, CFG.auxP, CFG.G1, post=post, pre=wait_ln, loopend=lend)
    DBG["k1P"] = False
    A("s_branch K1_ldseam")
    A.label("K1_ldW")
    srd(A, 12, 4, S*F*2)
    A("s_sub_u32 s17, s16, 6\ns_lshl_b32 s21, s23, 8")
    emit_loader_W(A, 32, "std", 17, 12, 21, 9216, 20, 18, CFG.auxW1, CFG.G1, post=post, loopend=lend, mid=(lambda: wot_flagaddr(A)) if CFG.wreg in (1, 2) else None)
    DBG["koff"] = 0
    A.label("K1_ldseam")
    A(f"s_barrier\ns_mov_b32 s49, {OOB}\ns_mov_b32 s24, s23\ns_branch K2_ld")
    A.label("K1_notg1")
    A("s_sub_u32 s18, s18, 18\ns_and_b32 s22, s18, 3\ns_lshr_b32 s19, s17, 1\ns_lshl_b32 s19, s19, 2\ns_add_u32 s22, s22, s19")
    A("s_lshr_b32 s18, s18, 2\ns_and_b32 s17, s17, 1\ns_lshl_b32 s19, s17, 1\ns_add_u32 s23, s19, s18\ns_add_u32 s17, s17, 4")
    A("s_cmp_eq_u32 s18, 2\ns_cselect_b32 s23, s17, s23")
    if CFG.GA: A(f"s_add_u32 s59, s22, s18\ns_and_b32 s59, s59, 3\ns_mul_i32 s59, s59, {CFG.GA}\ns_lshr_b32 s59, s59, 2")
    A("s_waitcnt lgkmcnt(0)")
    A("s_cmp_ge_u32 s16, 6\ns_cbranch_scc1 K1_ldX\ns_cmp_ge_u32 s16, 4\ns_cbranch_scc1 K1_ldF")
    emit_compute_addr(A, 16, "lin")
    for i in range(0, 144, 2): A(f"v_pk_mov_b32 {v(V_ACC+i,2)}, 0, 0")
    srd_off(A, 32, 26, RS_OFF, RS_SZ)
    A("s_lshl_b32 s30, s22, 2\ns_add_u32 s30, s30, s16\ns_lshl_b32 s30, s30, 8\nv_and_b32 v252, 15, v1\nv_lshlrev_b32 v252, 2, v252\nv_and_b32 v253, 48, v1")
    def ld_scale():
        pt(A, "b1")
        for j in range(2):
            A(f"buffer_load_dword v{240+2*j}, v252, s[32:35], s30 offen offset:{128*j} sc1\nbuffer_load_dwordx4 {v(244+4*j,4)}, v253, s[32:35], s30 offen offset:{128*j} sc1")
    A("s_cmp_ge_u32 s23, 4\ns_cbranch_scc1 K1_q")
    HO = V_LDS + 36864
    A(f"s_mul_i32 s3, s16, 9216\ns_add_u32 s3, s3, {HO}\nv_add_u32 v254, s3, v{V_PA}")
    emit_compute_loop(A, 18, "lin", (False, True), 20, first=ld_scale, lastfill=[f"ds_write_b128 v254, {acc(0,t,1)} offset:{t*1024}" for t in range(9)])
    pt(A, "m1")
    A(f"v_subrev_u32 v5, 36864, v254\ns_waitcnt vmcnt(0) lgkmcnt(0)\ns_barrier")
    QB = 48
    for t in range(9):
        o = 84 + 4*(t % 3)
        for j in range(2):
            r = accr(1, t, j)
            A(f"v_pk_mul_f32 {v(r,2)}, {v(r,2)}, {v(244+4*j,2)}\nv_pk_mul_f32 {v(r+2,2)}, {v(r+2,2)}, {v(246+4*j,2)}")
            A(f"v_cvt_pk_bf16_f32 v{o+2*j}, v{r}, v{r+1}\nv_cvt_pk_bf16_f32 v{o+2*j+1}, v{r+2}, v{r+3}")
        A(f"ds_write_b128 v5, {v(o,4)} offset:{t*1024}")
    if CFG.prew:
        A(f"s_cmp_lg_u32 s16, 0\ns_cbranch_scc1 K1_kvsm\ns_lshl_b32 s3, s23, 4\ns_add_u32 s3, s3, s22\ns_add_u32 s3, s3, {FP}\ns_lshl_b32 s3, s3, 7")
        clear_flag(A, 3, 8)
        A(f"s_mul_i32 s3, s23, 12\ns_add_u32 s3, s3, s22\ns_add_u32 s3, s3, {FK}\ns_lshl_b32 s3, s3, 7\ns_cmp_lt_u32 s22, 12\ns_cselect_b32 s3, s3, {OOB}")
        clear_flag(A, 3, 8)
    A.label("K1_kvsm")
    A("s_and_b32 s30, s16, 3\ns_lshr_b32 s31, s16, 2\nv_and_b32 v2, 15, v1\nv_lshrrev_b32 v3, 4, v1")
    A(f"s_lshl_b32 s3, s30, 1\ns_add_u32 s33, s3, s31\ns_lshl_b32 s3, s33, 4\nv_add_u32 v4, s3, v2\nv_mul_u32_u24 v4, {PHI_RS}, v4\nv_mul_u32_u24 v5, 144, v3\nv_add_u32 v4, v4, v5")
    for e in range(2):
        softmax18(A, pairs(0, 0, e), lambda m: QB + 18*e + m, 240)
        for q in (range(4) if e == 0 else range(4, 9)): A(f"ds_write_b128 v4, {v(QB+4*q,4)} offset:{16*q}")
    A(f"v_lshrrev_b32 v6, 2, v1\nv_mul_u32_u24 v6, {PHI_RS}, v6\nv_and_b32 v7, 3, v1\nv_lshl_add_u32 v6, v7, 3, v6")
    A("s_mul_i32 s3, s33, 72\nv_add_u32 v6, s3, v6")
    A("s_lshl_b32 s3, s30, 3\nv_subrev_u32 v7, s3, v6")
    A(f"v_add_u32 v8, {64*PHI_RS}, v6\nv_add_u32 v9, {64*PHI_RS}, v7")
    A(f"s_lshl_b32 s3, s33, 10\ns_add_u32 s3, s3, {V_LDS}\nv_lshlrev_b32 v10, 4, v1\nv_add_u32 v10, s3, v10")
    A(f"v_lshlrev_b32 v11, 8, v3\nv_and_b32 v12, 1, v2\nv_lshl_add_u32 v11, v12, 4, v11")
    A(f"s_lshl_b32 s3, s33, 5\ns_add_u32 s3, s3, {V_LDS + 8192}\nv_add_u32 v11, s3, v11")
    A("s_mov_b32 s40, 0x00030003\ns_mov_b32 s41, 0x00030003\nv_mov_b32 v12, 0x3f803f80")
    srd_off(A, 36, 26, KVP_OFF, KVP_SZ)
    A("s_lshl_b32 s17, s22, 2\ns_add_u32 s17, s17, s23\ns_mul_i32 s17, s17, 24576")
    A("s_lshl_b32 s3, s31, 10\ns_add_u32 s19, s17, s3\ns_add_u32 s29, s19, 22528\ns_add_u32 s19, s19, 16384")
    A("s_lshr_b32 s18, s33, 2\ns_lshl_b32 s18, s18, 11\ns_and_b32 s3, s33, 3\ns_lshl_b32 s3, s3, 8\ns_add_u32 s18, s18, s3\ns_add_u32 s28, s17, s18\ns_add_u32 s28, s28, 18432")
    A("s_lshl_b32 s18, s33, 11\ns_add_u32 s17, s17, s18")
    A("v_lshlrev_b32 v4, 6, v3\nv_lshl_add_u32 v4, v2, 4, v4\nv_lshlrev_b32 v2, 4, v1")
    A("s_lshl_b32 s18, s30, 4\ns_lshl_b64 s[42:43], 0xffff, s18\ns_mov_b32 s44, 0x000f000f\ns_mov_b32 s45, 0x000f000f")
    A("s_waitcnt lgkmcnt(0)\ns_barrier")
    pt(A, "go1")
    DK, FR = 16, 96
    def afr(ks, T): return FR + ks*20 + T*4
    def bfr(ks, mt): return FR + ks*20 + 12 + mt*4
    def dk(T, mt): return DK + (mt*3 + T)*4
    def kreads(ks):
        A(f"ds_read_b128 {v(bfr(ks,1),4)}, v11 offset:{ks*9216}\nds_read_b128 {v(bfr(ks,0),4)}, v10 offset:{ks*9216}")
        for T in range(3):
            a = (7 if T == 2 else 6) + (2 if ks >= 2 else 0)
            off = (ks & 1)*32*PHI_RS + T*32
            A(f"ds_read_b64_tr_b16 {v(afr(ks,T),2)}, v{a} offset:{off}\nds_read_b64_tr_b16 {v(afr(ks,T)+2,2)}, v{a} offset:{off + 16*PHI_RS}")
    kreads(0)
    for ks in range(4):
        if ks < 3: kreads(ks+1)
        A(f"s_waitcnt lgkmcnt({8 if ks < 3 else 0})")
        for i in range(4): A(f"v_cndmask_b32 v{bfr(ks,1)+i}, v12, v{bfr(ks,1)+i}, s[40:41]")
        for mt in range(2):
            for T in range(3):
                A(f"{MF} {v(dk(T,mt),4)}, {v(afr(ks,T),4)}, {v(bfr(ks,mt),4)}, {0 if ks == 0 else v(dk(T,mt),4)}")
    A("s_nop 4")
    for T in range(2): A(f"buffer_store_dwordx4 {v(dk(T,0),4)}, v2, s[36:39], s17 offen offset:{T*1024} sc1")
    A(f"s_mov_b64 exec, s[42:43]\nbuffer_store_dwordx4 {v(dk(2,0),4)}, v2, s[36:39], s19 offen sc1")
    A("s_mov_b64 exec, s[44:45]")
    for T in range(2): A(f"buffer_store_dwordx4 {v(dk(T,1),4)}, v4, s[36:39], s28 offen offset:{T*1024} sc1")
    A(f"s_and_b64 exec, s[42:43], s[44:45]\nbuffer_store_dwordx4 {v(dk(2,1),4)}, v4, s[36:39], s29 offen sc1")
    A("s_mov_b64 exec, -1")
    A(f"s_lshl_b32 s17, s23, 4\ns_add_u32 s17, s17, {FP}\ns_add_u32 s18, s17, s22\ns_lshl_b32 s18, s18, 7\ns_mov_b32 s49, {OOB}")
    srd_off(A, 44, 26, KVF_OFF, KVF_SZ)
    A("s_waitcnt vmcnt(0)\ns_barrier")
    pt(A, "kvp")
    A("s_cmp_ge_u32 s16, 4\ns_cbranch_scc1 K2_ld\ns_cmp_lg_u32 s16, 0\ns_cbranch_scc1 K2_c")
    raise_flag(A, 18, 4)
    A("s_cmp_ge_u32 s22, 12\ns_cbranch_scc1 K2_c")
    A("v_and_b32 v3, 15, v1\nv_add_lshl_u32 v3, v3, s17, 7")
    poll(A, 3, 4, CFG.slk)
    A("s_mul_i32 s18, s23, 12\ns_add_u32 s18, s18, s22")
    A(f"s_add_u32 s49, s18, {FK}\ns_lshl_b32 s49, s49, 7\ns_lshl_b32 s17, s18, 11\ns_lshl_b32 s18, s18, 10")
    A("s_cmp_eq_u32 s22, 11\ns_cselect_b64 exec, 0xffff, -1")
    for tb in range(16):
        A(f"buffer_load_dwordx4 {v(8+8*tb,4)}, v2, s[36:39], s17 offen sc1\nbuffer_load_dwordx4 {v(12+8*tb,4)}, v2, s[36:39], s17 offen offset:1024 sc1")
        A(f"s_add_u32 s17, s17, {48*2048}")
    for tb in range(1, 16):
        A(f"s_waitcnt vmcnt({2*(15-tb)})")
        for p in range(4): A(f"v_pk_add_f32 {v(8+2*p,2)}, {v(8+2*p,2)}, {v(8+8*tb+2*p,2)}")
    for p in range(4): A(f"v_cvt_pk_bf16_f32 v{4+p}, v{8+2*p}, v{9+2*p}")
    A(f"buffer_store_dwordx4 v[4:7], v2, s[44:47], s18 offen {CFG.auxSt}")
    A("s_mov_b64 exec, -1\ns_waitcnt vmcnt(0)")
    raise_flag(A, 49, 8)
    A(f"s_mov_b32 s49, {OOB}\ns_branch K2_c")
    A.label("K1_q")
    emit_compute_loop(A, 18, "lin", (False, False), 20, first=ld_scale)
    A("s_waitcnt vmcnt(0)")
    A("s_barrier")
    pt(A, "m1")
    A("v_and_b32 v6, 15, v1\nv_lshrrev_b32 v7, 4, v1\nv_lshlrev_b32 v3, 11, v7\nv_lshl_add_u32 v3, v6, 4, v3")
    A(f"s_lshr_b32 s3, s16, 1\ns_mul_i32 s3, s3, {STAGE - 18432}\ns_mul_i32 s17, s16, 9216\ns_add_u32 s3, s3, s17")
    A(f"v_add_u32 v3, s3, v3\nv_add_u32 v4, s3, v{V_PA}")
    for st in range(2):
        for j in range(2):
            for e in range(2):
                softmax18(A, pairs(st, j, e), lambda m: (QB + e*16 + 4*((m & 7) >> 1) + (m & 1) + 2*(m >> 3)) if m < 16 else QB + 32 + 2*e + m - 16, 240 + 2*j)
                for gg in range(4): A(f"ds_write_b128 v3, {v(QB+e*16+4*gg,4)} offset:{e*1024 + gg*256}")
            for b in range(8): A(f"ds_read_b128 {acc(st,b,j)}, v4 offset:{b*1024}")
            for i in range(2): A(f"v_pk_mov_b32 {v(accr(st,8,j)+2*i,2)}, {v(QB+32+2*i,2)}, {v(QB+32+2*i,2)} op_sel:[0,1]")
    pt(A, "kvp")
    KVB, KR, TM, MB, CI = 8, 40, 56, 88, 240
    A(f"v_add_u32 v4, {P0}, v{V_PA}\nv_cmp_eq_u32 vcc, 0, v6\nv_cmp_eq_u32 s[40:41], 4, v6\nv_lshlrev_b32 v7, 6, v7\ns_mov_b32 s3, {P0 + 9216}")
    A("v_cndmask_b32 v5, 32, 0, vcc\nv_cndmask_b32 v5, v5, 16, s[40:41]\nv_add3_u32 v5, v5, v7, s3")
    A("s_lshl_b32 s56, s22, 2\ns_add_u32 s56, s56, s16\ns_lshl_b32 s56, s56, 1\ns_add_u32 s56, s56, s23\ns_sub_u32 s56, s56, 4")
    A(f"s_add_u32 s49, s56, {FO}\ns_lshl_b32 s49, s49, 7\ns_mul_i32 s56, s56, 20480\ns_add_u32 s57, s56, 10240")
    k2_enter(A)
    k2_setup(A, False)
    for hp in range(4): A(f"s_mov_b32 s{8+2*hp}, {0xffff << (16*hp) & 0xffffffff}\ns_mov_b32 s{9+2*hp}, {(0xffff << (16*hp)) >> 32}")
    A(f"v_mov_b32 v{MB+2}, 0\nv_mov_b32 v{MB+3}, 0\nv_mov_b32 v{CI}, 0\nv_mov_b32 v{CI+1}, {f2u(1e-6)}\nv_mov_b32 v{CI+2}, 0\nv_mov_b32 v{CI+3}, 0")
    A(f"v_add_u32 v6, 4096, v{V_PA}\nv_add_u32 v7, 8192, v{V_PA}")
    def kvf(g, e, mt): return KVB + 16*(g & 1) + 8*e + 4*mt
    def kv_reads(g):
        st, hp = g >> 2, g & 3
        return [f"ds_read_b128 {v(kvf(g,e,mt),4)}, v{4+mt} offset:{st*12288 + (2*hp+e)*(256 if mt else 1024)}" for e in range(2) for mt in range(2)]
    A("s_waitcnt lgkmcnt(0)\ns_barrier")
    pt(A, "kvf")
    for x in kv_reads(0): A(x)
    for st in range(2):
        for mt in range(2): A(f"ds_read_b128 {v(KR+8*st+4*mt,4)}, v{4+mt} offset:{st*12288 + 8*(256 if mt else 1024)}")
    def o_store(st, u, j):
        b = 2*u + j
        return f"buffer_store_dwordx4 {acc(st,u,j)}, v{(V_PA,6,7)[b//4]}, s[40:43], s{56+st} offen offset:{(b%4)*1024} {CFG.auxSt}"
    def o_valu(k):
        st, hp, j = k >> 3, (k >> 1) & 3, k & 1
        T = TM + 16*j
        L = [f"v_rcp_f32 v{T+8*e+6}, v{T+8*e+5}" for e in range(2)] + ["s_nop 0"]
        for e in range(2):
            L += [f"v_pk_mul_f32 {v(T+8*e+2*q,2)}, {v(T+8*e+2*q,2)}, {v(T+8*e+6,2)} op_sel_hi:[1,0]" for q in range(2)]
            L += [f"v_mul_f32 v{T+8*e+4}, v{T+8*e+4}, v{T+8*e+6}"]
        vals = [T+8*e+i for e in range(2) for i in range(5)]
        for p in range(5):
            pi = 5*hp + p
            L.append(f"v_cvt_pk_bf16_f32 v{accr(st, pi >> 2, j) + (pi & 3)}, v{vals[2*p]}, v{vals[2*p+1]}")
        if CFG.ost == 0: L += [o_store(st, u, j) for u in ([hp] if hp < 3 else [3, 4])]
        return L
    for k in range(16):
        st, hp, j = k >> 3, (k >> 1) & 3, k & 1
        g = k >> 1; T = TM + 16*j
        a = [f"{MF} {v(T+8*e+4*mt,4)}, {v(kvf(g,e,mt),4)}, {acc(st,2*hp+e,j)}, {v(CI,4) if mt else 0}" for e in range(2) for mt in (1, 0)]
        b = [f"{MF} {v(T+8*e+4*mt,4)}, {v(KR+8*st+4*mt,4)}, {v(MB+2*e,4)}, {v(T+8*e+4*mt,4)}" for e in range(2) for mt in (1, 0)]
        mk = [f"v_cndmask_b32 v{MB+(i if i < 2 else i+2)}, 0, v{accr(st,8,j)+i}, {s(8+2*hp,2)}" for i in range(4)]
        va = o_valu(k-1) if k else []
        if j == 0:
            A("s_waitcnt lgkmcnt(0)")
            if g < 7: va = va + kv_reads(g+1)
        A(a[0]); A(mk[0]); A(mk[1]); A(a[1]); A(mk[2]); A(mk[3]); A(a[2]); A(a[3])
        n0 = 0
        for i, m in enumerate([None] + b):
            if m: A(m)
            n = (len(va) - n0 + (4 - i)) // (5 - i)
            for x in va[n0:n0+n]: A(x)
            n0 += n
    A("s_nop 5")
    for x in o_valu(15): A(x)
    pt(A, "go1")
    if CFG.ost == 1:
        for st in range(2):
            for u in range(5):
                for j in range(2): A(o_store(st, u, j))
    A("s_nop 1\ns_branch K2_cq")
    A.label("K1_ldF")
    srd_off(A, 8, 26, WF_OFF, WF_SZ)
    A(f"s_sub_u32 s17, s16, 4\ns_mul_i32 s21, s23, {18*18432}")
    def wait_fold():
        A("s_lshl_b32 s3, s17, 2\ns_add_u32 s3, s3, s23\ns_add_u32 s3, s3, 4\ns_lshl_b32 s19, s23, 1\ns_add_u32 s19, s19, s17\ns_sub_u32 s19, s19, 8")
        A("s_cmp_ge_u32 s23, 4\ns_cselect_b32 s3, s19, s3\ns_mul_i32 s3, s3, 36")
        A(f"s_add_u32 s3, s3, {F1}\nv_and_b32 v8, 63, v0\nv_min_u32 v8, 35, v8\nv_add_lshl_u32 v8, v8, s3, 7")
        if CFG.dlw: A(f"s_sleep {CFG.dlw}")
        poll2(A, 8, 10, CFG.sl0a, CFG.sl0)
        pt(A, "go1")
    emit_loader_lin(A, 18, 9, POFF, 17, 8, 21, 20, 18, CFG.auxP, CFG.GA, pre=wait_fold)
    A("s_branch K1_ldtail")
    A.label("K1_ldX")
    srd_off(A, 8, 26, HT_OFF, HT_SZ)
    A(f"s_sub_u32 s17, s16, 6\ns_mul_i32 s21, s22, {4*9216}\ns_lshl_b32 s18, s17, 10\ns_add_u32 s21, s21, s18\ns_lshl_b32 s18, s17, 12\ns_mov_b32 s19, s17")
    A("v_and_b32 v1, 63, v0\nv_and_b32 v2, 16, v1\nv_lshrrev_b32 v2, 2, v2\nv_xor_b32 v2, v2, v1\nv_lshlrev_b32 v2, 4, v2")
    for w in range(1, 4): A(f"v_add_u32 v{2+w}, {8192*w}, v2")
    def issue_x(slot):
        A(f"s_add_u32 m0, s18, {slot*STAGE + WOFF}\ns_add_u32 s19, s19, 2")
        for w in range(4): A(f"buffer_load_dwordx4 v{2+w}, s[8:11], s21 offen offset:{1024*w} {CFG.auxP} lds")
        A(f"s_cmp_ge_u32 s19, 9\ns_cselect_b32 s3, 9, 0\ns_cselect_b32 s28, {589824-9216}, 0\ns_sub_u32 s19, s19, s3\ns_add_u32 s21, s21, s28\ns_add_u32 s21, s21, 2048")
    def wait_xn():
        A(f"s_lshl_b32 s3, s22, 3\ns_add_u32 s3, s3, {F0+112}\nv_and_b32 v8, 7, v0\nv_add_lshl_u32 v8, v8, s3, 7")
        if CFG.dl0: A(f"s_sleep {CFG.dl0}")
        poll2(A, 8, 10, CFG.sl0a, CFG.sl0)
        pt(A, "go1")
    assert not CFG.GA
    emit_loader(A, 18, 4, issue_x, 20, pre=wait_xn)
    A.label("K1_ldtail")
    A("s_lshr_b32 s17, s2, 3\ns_sub_u32 s17, s17, 18\ns_lshl_b32 s17, s17, 2\ns_add_u32 s17, s17, s16\ns_sub_u32 s17, s17, 4")
    A(f"s_mov_b32 s49, {OOB}\ns_cmp_ge_u32 s23, 4\ns_cbranch_scc1 K1_ldq")
    srd_off(A, 32, 26, RS_OFF, RS_SZ)
    A("s_and_b32 s31, s16, 3\ns_lshl_b32 s30, s22, 2\ns_add_u32 s30, s30, s31\ns_lshl_b32 s30, s30, 8\nv_and_b32 v1, 63, v0\nv_and_b32 v2, 15, v1\nv_lshlrev_b32 v2, 2, v2")
    A("buffer_load_dword v240, v2, s[32:35], s30 offen offset:128 sc1")
    if CFG.pf1kv:
        srd(A, 52, 4, S*F*2)
        pf_w1_col(A, 46)
        A(f"s_add_u32 s47, s17, {320 - 32*CFG.pf1kv}")
        pf_w1(A, 52, 46, 47, 32, CFG.pf1kv, 1, 30)
    if CFG.pf2kv:
        pf_w2(A, 50, 17, 32, CFG.pf2kv)
    A(f"s_mul_i32 s3, s31, 9216\ns_add_u32 s3, s3, {HO}\nv_lshl_add_u32 v2, v1, 4, s3\ns_barrier")
    for t in range(9): A(f"ds_read_b128 {acc(0,t,0)}, v2 offset:{t*1024}")
    A(f"s_waitcnt vmcnt({CFG.pf2kv + CFG.pf1kv}) lgkmcnt(0)\ns_branch K1_kvsm")
    A.label("K1_ldq")
    A("s_barrier")
    if CFG.c3w2 == 1:
        A(f"s_sub_u32 s19, s17, {32 - CFG.c3s}")
        pf_w2c3(A, 50, 19, 16, -(-(36 - CFG.c3s) // 16), lim=0)
    if CFG.pf2q:
        A(f"s_add_u32 s17, s17, {32*CFG.pf2kv - 32}")
        pf_w2(A, 50, 17, 16, CFG.pf2q, lim=None if CFG.qlim < 0 else CFG.qlim)
    A("s_branch K2_ld")
    A.label("K1_spare")
    A(f"s_load_dwordx2 s[50:51], s[0:1], {KA_W2}")
    srd(A, 8, 22, D*D*2)
    A("s_and_b32 s17, s2, 7\ns_lshr_b32 s18, s2, 3\ns_sub_u32 s41, s18, 30\ns_lshl_b32 s41, s41, 3\ns_add_u32 s41, s41, s16")
    A(f"s_add_u32 s43, s41, {32*CFG.pf2kv + 16*CFG.pf2q}")
    A("s_sub_u32 s18, s18, 30\ns_lshl_b32 s17, s17, 1\ns_add_u32 s17, s17, s18\ns_and_b32 s22, s17, 3\ns_lshr_b32 s23, s17, 2")
    A(f"s_mul_i32 s28, s23, {144*1152}\ns_mul_i32 s29, s22, 288\ns_add_u32 s28, s28, s29\ns_lshl_b32 s29, s16, 10")
    for r in range(6):
        if r == 5: A("s_cmp_lg_u32 s16, 0\ns_cbranch_scc1 K1_w5\ns_bfm_b64 exec, 32, 0")
        A(f"v_add_u32 v4, {512*r}, v0\nv_mul_u32_u24 v5, 58255, v4\nv_lshrrev_b32 v5, 20, v5\ns_add_u32 m0, s29, {8192*r}")
        A(f"v_mul_u32_u24 v5, {1152-288}, v5\nv_lshl_add_u32 v4, v4, 4, v5\nbuffer_load_dwordx4 v4, s[8:11], s28 offen lds")
    A("s_mov_b64 exec, -1")
    A.label("K1_w5")
    assert CFG.pf1s > 2
    a0 = (112*CFG.pf1) // 64 + 48*CFG.pf1a + 16*CFG.pf1q
    e0 = 320 - 32*CFG.pf1kv
    b0 = e0 - 16*(CFG.pf1s - CFG.sA)
    assert CFG.sA == 0 or CFG.sA > 2
    A(f"s_add_u32 s42, s41, {a0 + 16*CFG.sA}\ns_add_u32 s41, s41, {a0 if CFG.sA else b0}")
    pf_w1(A, 52, 46, 41, 16, 1, 1, 57)
    ZR = 144*288
    A(f"v_lshlrev_b32 v4, 2, v0\nv_add_u32 v4, {ZR}, v4\nv_mov_b32 v5, 0\nds_write_b32 v4, v5")
    srd_off(A, 12, 26, WOT_OFF, WOT_SZ)
    A("v_and_b32 v1, 63, v0\nv_lshrrev_b32 v3, 4, v1\nv_bfe_u32 v2, v1, 2, 2\ns_lshl_b32 s3, s16, 3\nv_and_b32 v10, 3, v1\nv_lshlrev_b32 v10, 3, v10")
    A(f"v_add_u32 v11, 16, v3\nv_cmp_gt_u32 s[30:31], 2, v3\nv_mov_b32 v12, 144")
    for hf in range(2):
        A(f"v_add3_u32 v4, v2, s3, {4*hf}\nv_mul_u32_u24 v5, 205, v4\nv_lshrrev_b32 v5, 10, v5\nv_mul_u32_u24 v6, 5, v5\nv_sub_u32 v6, v4, v6")
        A("v_cmp_eq_u32 vcc, 4, v6\nv_lshl_add_u32 v6, v3, 2, v6\nv_mul_u32_u24 v5, 18, v5\nv_cndmask_b32 v6, v6, v11, vcc\ns_andn2_b64 vcc, vcc, s[30:31]")
        A(f"v_add_u32 v6, v6, v5\nv_cndmask_b32 v6, v6, v12, vcc\nv_min_u32 v6, 144, v6\nv_mul_u32_u24 v6, 288, v6\nv_add_u32 v{8+hf}, v6, v10")
    A("s_lshl_b32 s28, s22, 2\ns_add_u32 s28, s28, s23\ns_mul_i32 s28, s28, 5\ns_add_u32 s28, s28, s16")
    A(f"s_add_u32 s49, s28, {FW}\ns_lshl_b32 s49, s49, 7\ns_mul_i32 s28, s28, 9216\nv_lshlrev_b32 v2, 4, v1")
    A("s_waitcnt vmcnt(1) lgkmcnt(0)\ns_barrier")
    tag_make(A)
    for rt in range(9):
        A(f"ds_read_b64_tr_b16 {v(16+4*rt,2)}, v8 offset:{rt*32}\nds_read_b64_tr_b16 {v(18+4*rt,2)}, v9 offset:{rt*32}")
    A("s_waitcnt lgkmcnt(0)\ns_barrier")
    A("s_cmp_lt_u32 s16, 5\ns_cbranch_scc1 K1_wot")
    A(f"s_lshl_b32 s49, s2, 7\ns_cmp_eq_u32 s16, 5\ns_cselect_b32 s49, s49, {OOB}\ns_branch K1_wot1")
    A.label("K1_wot")
    for rt in range(9):
        if rt and rt % 4 == 0: A("s_add_u32 s28, s28, 4096")
        A(f"buffer_store_dwordx4 {v(16+rt*4,4)}, v2, s[12:15], s28 offen offset:{(rt%4)*1024} {CFG.auxSt}")
    A.label("K1_wot1")
    pf_w1(A, 52, 46, 41, 16, 1, 1, 57, lim=0)
    raise_flag(A, 49, 4)
    pt(A, "go1")
    assert CFG.c3w2 != 2
    if CFG.pf1s:
        A.label("K1_spf")
        pf_w1(A, 52, 46, 41, 16, 1, 1, 57, lim=CFG.slim)
        if CFG.sA: A(f"s_cmp_eq_u32 s41, s42\ns_cselect_b32 s3, {max(b0 - a0 - 16*CFG.sA, 0)}, 0\ns_add_u32 s41, s41, s3")
        A(f"s_cmp_lt_u32 s41, {e0}\ns_cbranch_scc1 K1_spf")
    if CFG.c3w2 == 2:
        A("s_sub_u32 s19, s18, 30\ns_lshl_b32 s19, s19, 3\ns_add_u32 s19, s19, s16")
        pf_w2c3(A, 50, 19, 16, 3, lim=1)
    pf_w2(A, 50, 43, 16, CFG.pf2s, lim=1)
    pt(A, "m1")
    A(f"s_mov_b32 s49, {OOB}\ns_cmp_lt_u32 s16, 4\ns_cbranch_scc1 K2_c\ns_cmp_lg_u32 s16, 7\ns_cbranch_scc1 K2_ld\ns_cmp_lg_u32 s2, 255\ns_cbranch_scc1 K2_ld")
    for q in range(4):
        A(f"v_add_u32 v8, {F0 + 64*q}, v1\nv_lshlrev_b32 v8, 7, v8")
        poll(A, 8, 10, 8)
    A(f"s_mov_b32 s49, {FE*128}\ns_branch K2_ld")

WR = 40
def wot_flagaddr(A):
    if CFG.lm:
        A(f"s_mul_i32 s56, s22, 20\ns_add_u32 s3, s56, {FW}\nv_and_b32 v36, 63, v0\nv_lshlrev_b32 v37, 4, v36\nv_min_u32 v36, 19, v36\nv_add_lshl_u32 v36, v36, s3, 7")
        A("s_sub_u32 s3, s16, 4\ns_mul_i32 s55, s3, 46080\ns_add_u32 s55, s55, 8192\nv_add_u32 v33, s55, v37\ns_lshl_b32 s3, s3, 10\nv_add_u32 v37, s3, v37\nv_add_u32 v23, 4096, v37")
        return
    A(f"s_lshr_b32 s56, s2, 3\ns_lshl_b32 s3, s2, 1\ns_add_u32 s56, s56, s3\ns_and_b32 s56, s56, 3\ns_lshl_b32 s56, s56, 2\ns_add_u32 s56, s56, s16\ns_sub_u32 s56, s56, 4\ns_mul_i32 s56, s56, 5")
    A(f"s_add_u32 s3, s56, {FW}\nv_and_b32 v36, 63, v0\nv_lshlrev_b32 v37, 4, v36\nv_min_u32 v36, 4, v36\nv_add_lshl_u32 v36, v36, s3, 7")
def wot_chunk(A, k):
    if CFG.lm:
        A(f"s_sub_u32 s3, s16, 4\ns_lshl_b32 s3, s3, 10\ns_add_u32 m0, s3, {T8_LDS + 4096*k}\ns_mov_b32 s3, s56\nbuffer_load_dwordx4 v33, s[92:95], s56 offen sc1 lds")
        for g in range(4):
            A(f"buffer_load_dwordx4 {v(WR+32*k+8*g,4)}, v37, s[92:95], s3 offen sc1\nbuffer_load_dwordx4 {v(WR+32*k+8*g+4,4)}, v23, s[92:95], s3 offen sc1")
            if g < 3: A("s_add_u32 s3, s3, 46080")
        A("s_add_u32 s56, s56, 9216")
        return
    for b in range(9*k, 9*k + 9):
        if b and b % 4 == 0: A("s_add_u32 s56, s56, 4096")
        A(f"buffer_load_dwordx4 {v(WR+4*b,4)}, v37, s[92:95], s56 offen offset:{(b%4)*1024} sc1")
def wot_regs(A, sampled, load=True):
    L = A.newlabel("Lw")
    if sampled: A(f"v_cmp_ne_u64 vcc, s[100:101], v[38:39]\ns_nop 4\ns_cbranch_vccz {L}")
    poll(A, 36, 38, 2)
    A.label(L)
    srd_off(A, 92, 26, WOT_OFF, WOT_SZ)
    A(f"s_add_u32 s56, s56, {CFG.w0}\ns_mul_i32 s56, s56, 9216")
    if load:
        for k in range(CFG.wn): wot_chunk(A, k)
def k2_decode(A):
    A("s_and_b32 s17, s2, 7\ns_lshr_b32 s18, s2, 3")
    A("s_lshr_b32 s28, s17, 1\ns_lshl_b32 s22, s17, 1\ns_add_u32 s22, s22, s18\ns_and_b32 s22, s22, 3")
    A("s_and_b32 s17, s17, 1\ns_lshl_b32 s17, s17, 3\ns_lshr_b32 s18, s18, 2\ns_add_u32 s23, s17, s18")
RED_RS = 592
PBS = 1056
O_LDS, O_TOP = 2*STAGE, 159744
W_SLOT = (3, 0, 1, 3, 0)
PB = STAGE
RED = 3*STAGE
PB_OWN = RED + 32*RED_RS
T8_LDS = 4*STAGE
REDL = 0
def k2_enter(A):
    A(f"s_load_dwordx4 s[4:7], s[0:1], {KA_W2}\ns_load_dwordx2 s[44:45], s[0:1], {KA_X}\ns_load_dwordx2 s[46:47], s[0:1], {KA_OUT}")
    k2_decode(A)
def k2_setup(A, early):
    srd_off(A, 36, 26, PART_OFF, PART_SZ)
    A("s_lshl_b32 s17, s23, 2\ns_add_u32 s17, s17, s22\ns_lshl_b32 s18, s17, 4")
    A("s_lshl_b32 s30, s16, 2\ns_add_u32 s30, s30, s28\ns_add_u32 s30, s30, s18")
    A(f"s_mul_i32 s32, s30, 9216\ns_add_u32 s30, s30, {FX}\ns_lshl_b32 s30, s30, 7")
    A(f"s_cmp_eq_u32 s16, s28\ns_cselect_b32 s48, {OOB}, 0\ns_cselect_b32 s30, {OOB}, s30")
    A(f"s_add_u32 s34, s32, 4096\ns_add_u32 s35, s32, 8192")
    A("s_waitcnt lgkmcnt(0)")
    k2_final_prep(A, 1)
    if early and (CFG.pf2l or CFG.pf2ls):
        base = 72*CFG.pf2g + 16*CFG.pf2s + 32*CFG.pf2kv + 16*CFG.pf2q
        A(f"s_lshr_b32 s17, s2, 3\ns_lshl_b32 s19, s17, 2\ns_add_u32 s19, s19, s16\ns_cmp_ge_u32 s17, 30\ns_cbranch_scc1 K2_pls\ns_sub_u32 s17, s17, 18\ns_cmp_ge_u32 s17, 8\ns_cbranch_scc1 K2_nopl")
        A(f"s_add_u32 s19, s19, {base - 72}")
        pf_w2(A, 4, 19, 32, CFG.pf2l, srdn=8)
        A("s_branch K2_nopl")
        A.label("K2_pls")
        A(f"s_add_u32 s19, s19, {base + 32*CFG.pf2l - 120}")
        pf_w2(A, 4, 19, 8, CFG.pf2ls, srdn=8, lim=1)
        A.label("K2_nopl")
    clear_flag(A, 30, 8)
    A(f"v_and_b32 v8, 15, v1\nv_lshrrev_b32 v9, 4, v1\nv_mul_u32_u24 v8, {RED_RS}, v8\nv_lshl_add_u32 v8, v9, 4, v8\nv_add_u32 v254, {RED}, v8")
    srd_off(A, 40, 26, OB_OFF, OB_SZ)

def gen_k2(A):
    DBG["on"] = True
    KV, MB, CI, PH, TM, PK, O = 8, 80, 92, 96, 132, 168, 204
    A.label("K2_c")
    pt(A, "e1")
    k2_enter(A)
    def common():
        emit_compute_addr(A, 16, "pi")
        for i in range(0, 72, 2): A(f"v_pk_mov_b32 {v(V_ACC+i,2)}, 0, 0")
    common()
    A("s_waitcnt vmcnt(0) lgkmcnt(0)")
    raise_flag(A, 49, 8)
    A(f"s_mov_b32 s49, {OOB}\ns_barrier")
    pt(A, "fl1")
    k2_setup(A, True)
    if CFG.burn:
        ng, nn = CFG.burn.split(",")
        A(f"s_cmp_lt_u32 s2, 144\ns_cselect_b32 s20, {ng}, {nn}\ns_cmp_eq_u32 s20, 0\ns_cbranch_scc1 K2_c1\nK2_burn:")
        for k in range(18):
            A(f"{MF} {v(168+4*(k%9),4)}, {v(8+4*(k%9),4)}, {v(44+4*(k%7),4)}, {v(168+4*(k%9),4)}")
            if k < 11: A(f"ds_read_b128 {v(8+4*((k*5)%18),4)}, v{V_PB} offset:{STAGE + k*1024}")
        A("s_waitcnt lgkmcnt(0)\ns_sub_u32 s20, s20, 1\ns_cmp_lg_u32 s20, 0\ns_cbranch_scc1 K2_burn")
    A("s_branch K2_c1")
    A.label("K2_cq")
    pt(A, "e1")
    common()
    A.label("K2_c1")
    if CFG.prio: A(f"s_setprio {CFG.prio}")
    A(f"v_or_b32 v0, s48, v{V_PA}")
    def pub(t):
        L = [f"v_cvt_pk_bf16_f32 v{PK+4*t+p}, v{V_ACC+8*t+2*p}, v{V_ACC+8*t+2*p+1}" for p in range(4)]
        L.append(f"buffer_store_dwordx4 {v(PK+4*t,4)}, v0, s[36:39], s{(32, 34, 35)[t//4]} offen offset:{(t%4)*1024} sc1")
        return L
    lastfill = [""]*9
    for t in range(4): lastfill += ["\n".join(pub(t)[:3]), "\n".join(pub(t)[3:])]
    lastfill += ["\n".join(pub(4))]
    def late_flag():
        A(f"s_cmp_eq_u32 s49, {OOB}\ns_cbranch_scc1 K2_nolate\ns_waitcnt vmcnt(0)")
        raise_flag(A, 49, 172)
        A(f"s_mov_b32 s49, {OOB}")
        A.label("K2_nolate")
    emit_compute_loop(A, 18, "pi", (False, False), 20, first=lambda: pt(A, "b2"), lastfill=lastfill, loopend=late_flag, own=CFG.own >= 2)
    pt(A, "m2")
    for t in range(5, 9):
        for x in pub(t): A(x)
    pt(A, "pub")
    FB, WA = 8, 204
    A(f"s_lshl_b32 s3, s16, 10\nv_add_u32 v4, s3, v{V_PA}\nv_add_u32 v5, {3*STAGE}, v4\nv_add_u32 v3, {3*STAGE}, v{V_PA}")
    A(f"s_and_b32 s17, s16, 1\ns_lshl_b32 s3, s17, 10\ns_add_u32 s3, s3, {O_LDS}\nv_add_u32 v6, s3, v{V_PA}\nv_xor_b32 v7, 1024, v6")
    A(f"s_cmp_eq_u32 s17, 0\ns_cselect_b32 s3, {O_LDS + 8192}, 0\ns_cselect_b32 s18, 0, {O_LDS + 8192}")
    A(f"s_cselect_b32 s19, 0, {O_TOP}\ns_cselect_b32 s21, {O_TOP}, 0\ns_add_u32 s3, s3, s19\ns_add_u32 s18, s18, s21")
    A(f"s_cmp_eq_u32 s17, 0\ns_cselect_b32 s19, 9, 1\ns_cselect_b32 s21, 1, 9\ns_lshl_b32 s19, s19, 10\ns_lshl_b32 s21, s21, 10")
    for g in range(4):
        A(f"v_add_u32 v{224+2*g}, s3, v{V_PA}\nv_add_u32 v{225+2*g}, s18, v{V_PA}\ns_add_u32 s3, s3, s19\ns_add_u32 s18, s18, s21")
    def fo(b, g, j): return FB + 80*b + 20*g + 4*j
    def fw(b, g, k): return FB + 80*b + 20*g + 8 + 4*k
    def wreads(u):
        b = u & 1; sl = W_SLOT[u]; R = []
        for g in range(4):
            for j in range(2):
                R.append(f"ds_read_b128 {v(fo(b,g,j),4)}, v{6+j} offset:{g*9216 + u*2048}" if u < 4 else f"ds_read_b128 {v(fo(b,g,j),4)}, v{224+2*g+j}")
            so = (0 if sl == 3 else sl*STAGE) + g*9216
            for k in range(2): R.append(f"ds_read_b128 {v(fw(b,g,k),4)}, v{5 if sl == 3 else (4 if so + 4096*k < 65536 else 232)} offset:{(so + 4096*k) % 65536}")
            R.append(f"ds_read_b128 {v(fw(b,g,2),4)}, v{3 if sl == 3 else (V_PA if so + 8192 < 65536 else 233)} offset:{(so + 8192) % 65536}")
        return R
    A(f"v_add_u32 v232, 65536, v4\nv_add_u32 v233, 65536, v{V_PA}")
    def wmf(u):
        b = u & 1; M = []
        for g in range(4):
            for k, j in ((0, 0), (0, 1), (1, 0), (1, 1), (2, 0)):
                d = v(WA + 4*(2*k + j), 4)
                M.append(f"{MF} {d}, {v(fw(b,g,k),4)}, {v(fo(b,g,j),4)}, {d if u or g else 0}")
        return M
    def flag_x():
        A("s_waitcnt vmcnt(0)")
        raise_flag(A, 30, 236)
        pt(A, "flx")
    if CFG.lm:
        assert CFG.wreg == 4 and CFG.w0 == 2 and CFG.wn == 3
        A(f"v_add_u32 v234, {T8_LDS}, v{V_PA}")
        def xreads(b, us):
            R = []
            for n, (u, g) in enumerate((u, g) for u in us for g in range(4)):
                R.append(f"ds_read_b128 {v(FB+80*b+8*n,4)}, v234 offset:{(u-2)*4096 + g*1024}")
                R.append(f"ds_read_b128 {v(FB+80*b+8*n+4,4)}, v6 offset:{g*9216 + u*2048}" if u < 4 else f"ds_read_b128 {v(FB+80*b+8*n+4,4)}, v{224+2*g}")
            return R
        def xmf(b, n): return [f"{MF} {v(WA+16,4)}, {v(FB+80*b+8*i,4)}, {v(FB+80*b+8*i+4,4)}, {v(WA+16,4)}" for i in range(n)]
        A("s_barrier")
        pt(A, "t0")
        for r in wreads(0): A(r)
        if CFG.flagpos == -1: flag_x()
        if CFG.flagpos == -3:
            block(A, wmf(0), [], False)
            flag_x()
            A("s_barrier")
            for r in wreads(1): A(r)
        else: block(A, wmf(0), wreads(1), True)
        pt(A, "u0")
        if CFG.flagpos == 0: flag_x()
        block(A, wmf(1), xreads(0, (2, 3)), True)
        pt(A, "u1")
        if CFG.flagpos == 1: flag_x()
        block(A, xmf(0, 8), xreads(1, (4,)), False)
        last = xmf(1, 4)
    else:
        if CFG.flagpos == -2: flag_x()
        A("s_barrier")
        pt(A, "t0")
        for r in wreads(0): A(r)
        if CFG.flagpos == -1: flag_x()
        for u in range(4):
            block(A, wmf(u), wreads(u+1), True)
            pt(A, f"u{u}")
            if u == CFG.flagpos: flag_x()
        last = wmf(4)
    A(f"s_mul_i32 s3, s17, {16*RED_RS}\nv_add_u32 v6, s3, v254\ns_lshl_b32 s18, s16, 6\nv_add_u32 v4, s18, v6\ns_xor_b32 s17, s17, 1\ns_mul_i32 s3, s17, {16*RED_RS}\ns_add_u32 s3, s3, s18\nv_add_u32 v5, s3, v254")
    A("s_cmp_lg_u32 s16, s28\ns_cbranch_scc1 K2_nown")
    A(f"v_lshrrev_b32 v7, 5, v1\nv_xor_b32 v7, v7, v1\nv_lshlrev_b32 v7, 4, v7\nv_add_u32 v7, {PB_OWN}, v7")
    park = [f"ds_write_b128 v7, {v(PK+4*t,4)} offset:{t*PBS}" for t in range(9)]
    block(A, last, ["", "", "", "\n".join(park)] if CFG.lm else [x for w_ in park for x in (w_, "")], False)
    A("s_branch K2_nown1")
    A.label("K2_nown")
    block(A, last, [], False)
    A.label("K2_nown1")
    A("s_nop 3")
    for k in range(2):
        for j in range(2): A(f"ds_write_b128 v{4+j}, {v(WA+4*(2*k+j),4)} offset:{k*256}")
    A(f"ds_write_b128 v6, {v(WA+16,4)} offset:512")
    pt(A, "add")
    if CFG.lm and CFG.flagpos == 2: flag_x()
    A.label("K2_fin")
    def fin_x(n):
        FI = (244, 232)[n]; XB = FI + 4; D0 = 40 + 56*n
        for i in range(4): A(f"v_lshlrev_b32 v{D0+2*i}, 16, v{XB+i}\nv_and_b32 v{D0+1+2*i}, 0xffff0000, v{XB+i}")
        A(f"v_lshlrev_b32 v48, 16, v{FI+3}")
        for p in range(4): A(f"v_pk_add_f32 {v(D0+2*p,2)}, {v(D0+2*p,2)}, v[48:49] op_sel_hi:[1,0]")
    def fin(items):
        def addp(n, r):
            D0 = 40 + 56*n
            for i in range(4): A(f"v_lshlrev_b32 v{8+2*i}, 16, v{r+i}\nv_and_b32 v{9+2*i}, 0xffff0000, v{r+i}")
            for p in range(4): A(f"v_pk_add_f32 {v(D0+2*p,2)}, {v(D0+2*p,2)}, {v(8+2*p,2)}")
        for n in items: fin_x(n)
        A("s_waitcnt lgkmcnt(0)\ns_barrier")
        pt(A, "red")
        for n in items:
            FI = (244, 232)[n]; R = 16 + 12*n
            A(f"ds_read_b128 {v(R,4)}, v{FI+1}\nds_read_b128 {v(R+4,4)}, v{FI+1} offset:16\nds_read_b64 {v(R+8,2)}, v{FI+2}\nds_read_b64 {v(R+10,2)}, v{FI+2} offset:256")
        if CFG.lm:
            for n in items:
                FI = (244, 232)[n]
                A(f"v_subrev_u32 v50, {RED - REDL}, v{FI+1}\nds_read_b128 {v(60+8*n,4)}, v50\nds_read_b128 {v(64+8*n,4)}, v50 offset:16")
        xl = 2*len(items) if CFG.lm else 0
        left = 4*len(items) + xl
        for n in items:
            R = 16 + 12*n; D0 = 40 + 56*n
            A(f"s_waitcnt lgkmcnt({left-2})")
            for p in range(4): A(f"v_pk_add_f32 {v(D0+2*p,2)}, {v(D0+2*p,2)}, {v(R+2*p,2)}")
            left -= 4
            A(f"s_waitcnt lgkmcnt({left})")
            addp(n, R+8)
        if CFG.lm:
            for n in items:
                left -= 2
                A(f"s_waitcnt lgkmcnt({left})")
                for p in range(4): A(f"v_pk_add_f32 {v(40+56*n+2*p,2)}, {v(40+56*n+2*p,2)}, {v(60+8*n+2*p,2)}")
        A("s_waitcnt vmcnt(0)\ns_barrier")
        pt(A, "rx")
        for n in items:
            for q in range(3):
                A(f"ds_read_b64 {v(60+12*n+4*q,2)}, v{(252, 240)[n]} offset:{q*9*PBS}\nds_read_b64 {v(62+12*n+4*q,2)}, v{(252, 240)[n]} offset:{q*9*PBS + 256}")
        left = 6*len(items)
        for n in items:
            D0 = 40 + 56*n
            for q in range(3):
                left -= 2
                A(f"s_waitcnt lgkmcnt({left})")
                addp(n, 60+12*n+4*q)
            for p in range(4): A(f"v_cvt_pk_bf16_f32 v{52+4*n+p}, v{D0+2*p}, v{D0+1+2*p}")
            A(f"buffer_store_dwordx4 {v(52+4*n,4)}, v{(244, 232)[n]}, s[52:55], s50 offen {CFG.auxOut}")
    A("s_cmp_eq_u32 s16, 7\ns_cbranch_scc1 K2_fin2")
    fin([0])
    A("s_branch K2_done")
    A.label("K2_fin2")
    fin([0, 1])
    A.label("K2_done")
    pt(A, "fin")
    if CFG.probe:
        i, lo, hi = [int(x) for x in CFG.probe.split(",")]
        A(f"s_cmp_lg_u32 s16, 0\ns_cbranch_scc1 Z_end\ns_cmp_lt_u32 s2, {lo}\ns_cbranch_scc1 Z_end\ns_cmp_ge_u32 s2, {hi}\ns_cbranch_scc1 Z_end")
        A(f"Z_loop:\ns_sleep 1\ns_memrealtime s[4:5]\ns_waitcnt lgkmcnt(0)\ns_sub_u32 s7, s4, s{64+2*i}\ns_cmp_lt_u32 s7, 10000\ns_cbranch_scc1 Z_loop\nZ_end:")
    else: stamp_flush(A)
    A("s_endpgm")
    A.label("K2_ld")
    pt(A, "e1")
    k2_enter(A)
    A(f"s_cmp_eq_u32 s49, {OOB}\ns_cbranch_scc1 K2_ld1\ns_waitcnt vmcnt(0)")
    raise_flag(A, 49, 8)
    A.label("K2_ld1")
    if CFG.wreg == 1:
        A("s_cmp_lt_u32 s2, 144\ns_cbranch_scc1 K2_ld2")
        wot_flagaddr(A); wot_regs(A, False)
        A.label("K2_ld2")
    lend2 = None
    if CFG.wreg == 4:
        wot_flagaddr(A); wot_regs(A, False, load=False)
        wat = [int(c) for c in str(CFG.wat)]
        def lend2():
            X = A.newlabel("Lu")
            A(f"s_cmp_ge_u32 s2, 144\ns_cbranch_scc1 {X}")
            for c in (3, 2, 1):
                if c in wat:
                    L = A.newlabel("Lu")
                    A(f"s_cmp_lg_u32 s20, {c}\ns_cbranch_scc1 {L}")
                    for k in range(CFG.wn):
                        if wat[k] == c: wot_chunk(A, k)
                    A.label(L)
            A.label(X)
    def first_chunks():
        if CFG.wreg == 4:
            for k in range(CFG.wn):
                if wat[k] == 9: wot_chunk(A, k)
    G2 = CFG.G2; altP = altW = None
    if CFG.own:
        G2 = "seq"
        A(f"s_mul_i32 s57, s28, 9\ns_sub_u32 s57, s24, s57\ns_lshl_b32 s57, s57, 1")
        if CFG.rev2: A("s_sub_u32 s58, 16, s57\ns_bitcmp1_b32 s2, 0\ns_cselect_b32 s57, s58, s57")
        A(f"s_cmp_lt_u32 s2, 144\ns_cselect_b32 s57, s57, 64\ns_cselect_b32 s58, {CFG.GO}, {CFG.G2}")
        if CFG.rot8: A("s_lshl_b32 s59, s22, 1\ns_add_u32 s59, s59, s23\ns_and_b32 s59, s59, 7\ns_mul_i32 s59, s59, s58\ns_lshr_b32 s59, s59, 3")
        else: A("s_add_u32 s59, s22, s23\ns_and_b32 s59, s59, 3\ns_mul_i32 s59, s59, s58\ns_lshr_b32 s59, s59, 2")
    elif G2: A(f"s_add_u32 s59, s22, s23\ns_and_b32 s59, s59, 3\ns_mul_i32 s59, s59, {CFG.G2}\ns_lshr_b32 s59, s59, 2")
    A(f"s_sub_u32 s29, s16, 4\ns_mul_i32 s34, s29, 9216")
    A(f"s_lshl_b32 s32, s22, 2\ns_add_u32 s32, s32, s29\ns_mul_i32 s32, s32, 46080\ns_add_u32 s32, s32, {WOT_OFF}")
    A("v_and_b32 v24, 63, v0\nv_lshlrev_b32 v20, 4, v24\nv_add_u32 v21, 4096, v20\nv_add_u32 v22, 8192, v20")
    srd(A, 36, 26, OB_OFF + OB_SZ)
    A("s_waitcnt lgkmcnt(0)")
    k2_final_prep(A, 2)
    A("s_lshl_b32 s30, s23, 2\ns_add_u32 s30, s30, s22\ns_lshl_b32 s30, s30, 2\ns_add_u32 s30, s30, s28\ns_lshl_b32 s30, s30, 2\ns_add_u32 s30, s30, s29")
    A(f"s_add_u32 s3, s30, {FX}\ns_lshl_b32 s3, s3, 7\nv_mov_b32 v32, s3\ns_mul_i32 s30, s30, 9216")
    A(f"s_cmp_gt_u32 s29, s28\ns_cselect_b32 s3, 1, 0\ns_sub_u32 s31, s29, s3\ns_mul_i32 s31, s31, {9*PBS}")
    A(f"s_lshl_b32 s40, s22, 2\ns_add_u32 s40, s40, s29\ns_mul_i32 s40, s40, 5\ns_add_u32 s40, s40, {FW}\nv_add_u32 v28, s40, v24\nv_cmp_gt_u32 vcc, 5, v24")
    A(f"s_lshl_b32 s33, s23, 2\ns_add_u32 s33, s33, s28\ns_lshl_b32 s33, s33, 2\ns_add_u32 s33, s33, s29\ns_lshr_b32 s40, s33, 1\ns_add_u32 s40, s40, {FO}")
    A(f"v_mov_b32 v29, s40\nv_cndmask_b32 v28, v29, v28, vcc\nv_lshlrev_b32 v28, 7, v28\ns_mul_i32 s33, s33, 10240\ns_add_u32 s33, s33, {OB_OFF}")
    def go_barrier(only_q=False):
        L = A.newlabel("Lg")
        A(f"s_sub_u32 s3, s2, 208\ns_cmp_ge_u32 s3, 32\ns_cbranch_scc1 {L}")
        if CFG.wreg == 4:
            for k in range(CFG.wn): wot_chunk(A, k)
        elif CFG.wreg >= 2:
            wot_flagaddr(A); wot_regs(A, False)
        A(f"s_and_b32 s3, s2, 1\ns_lshl_b32 s3, s3, 2\ns_add_u32 s3, s3, s29\ns_mul_i32 s3, s3, 6\ns_lshl_b32 s41, s3, 10\ns_add_u32 s41, s41, {KVF_OFF}\ns_add_u32 s3, s3, {FK}")
        A(f"v_min_u32 v14, 5, v24\nv_add_lshl_u32 v14, v14, s3, 7\ns_mul_i32 s43, s29, 6144\ns_add_u32 m0, s43, {P0}")
        poll2(A, 14, 16, CFG.slo, CFG.slo2)
        for b in range(6):
            if b == 4: A(f"s_add_u32 m0, s43, {P0 + 4096}\ns_nop 0")
            if b == 5: A("s_bitcmp1_b32 s29, 0\ns_cselect_b64 exec, 0xffff, -1")
            A(f"buffer_load_dwordx4 v{20+b//4}, s[36:39], s41 offen offset:{(b%4)*1024} sc1 lds")
        A("s_mov_b64 exec, -1\ns_waitcnt vmcnt(0)")
        if only_q: A("s_barrier")
        A.label(L)
        if not only_q: A("s_barrier")
        if CFG.wreg >= 2:
            L = A.newlabel("Lg")
            A(f"s_cmp_lt_u32 s2, 144\ns_cbranch_scc1 {L}\ns_sub_u32 s3, s2, 208\ns_cmp_lt_u32 s3, 32\ns_cbranch_scc1 {L}")
            if CFG.wreg == 4:
                for k in range(CFG.wn): wot_chunk(A, k)
            else: wot_flagaddr(A); wot_regs(A, False)
            A("s_waitcnt vmcnt(0)")
            A.label(L)
    assert CFG.bgo == 2
    hook = {15: lambda: A("buffer_load_dwordx2 v[30:31], v28, s[96:99], 0 offen sc1")}
    def nine(so, base):
        for j in range(9):
            if j % 4 == 0: A(f"s_add_u32 m0, s34, {base + (j//4)*4096}\ns_nop 0")
            A(f"buffer_load_dwordx4 v{20+j//4}, s[36:39], s{so} offen offset:{(j%4)*1024} sc1 lds")
    def ld_o():
        L = A.newlabel("Lt")
        A(f"v_cmp_ne_u64 vcc, s[100:101], v[30:31]\ns_nop 4\ns_cbranch_vccz {L}")
        poll(A, 28, 30)
        A.label(L)
        nine(33, O_LDS)
        A(f"s_lshl_b32 s3, s29, 10\ns_add_u32 m0, s3, {O_TOP - 1024}\ns_nop 0\nbuffer_load_dwordx4 v22, s[36:39], s33 offen offset:1024 sc1 lds")
    def ld_w(u, regs):
        if regs and CFG.w0 <= u < CFG.w0 + CFG.wn:
            def put():
                A(f"s_add_u32 s3, s34, {W_SLOT[u]*STAGE}\nv_add_u32 v36, s3, v20\ns_add_u32 s32, s32, 9216")
                for b in range(9): A(f"ds_write_b128 v36, {v(WR+36*(u-CFG.w0)+4*b,4)} offset:{b*1024}")
            return (f"w{u}", 0, put)
        def emit():
            nine(32, W_SLOT[u]*STAGE)
            A("s_add_u32 s32, s32, 9216")
        return (f"w{u}", 9, emit)
    sample = ("fx", 1, lambda: A("buffer_load_dwordx2 v[34:35], v32, s[96:99], 0 offen sc1"))
    def mksched(regs):
        after = {15: [("o", 10, ld_o)], 16: [ld_w(0, regs)], 17: [], 18: [ld_w(2, regs)], 19: [ld_w(3, regs)], 20: [ld_w(4, regs)], 21: []}
        after[18 if CFG.hold else 17].insert(0, ld_w(1, regs))
        after[CFG.smp or 20].append(sample)
        inreg = [u for u in range(5) if regs and CFG.w0 <= u < CFG.w0 + CFG.wn]
        lg = {18+u: (9 if u+1 in inreg else 0) for u in inreg}
        return (23, after, {18+u: f"w{u}" for u in range(4)} | {22: "fx"}, lg)
    sched = [mksched(CFG.wreg in (1, 2, 4))]
    if CFG.lm: sched = [(18, {15: [("o", 10, ld_o)], 16: [ld_w(0, False)], 17: [] if CFG.hold else [ld_w(1, False)]}, {}, {})]
    if CFG.wreg == 3: sched = [mksched(True), ("s_cmp_lt_u32 s2, 144", mksched(False))]
    A("s_cmp_ge_u32 s16, 6\ns_cbranch_scc1 K2_ldW")
    srd_off(A, 8, 26, U_OFF, U_SZ)
    A(f"s_sub_u32 s17, s16, 4\ns_lshl_b32 s21, s22, 2\ns_add_u32 s21, s21, s28\ns_mul_i32 s40, s21, 36\ns_mul_i32 s21, s21, {36*9216}")
    if 1:
        if CFG.hint2 >= 0:
            A(f"s_lshr_b32 s3, s40, 2\ns_and_b32 s41, s23, 7\ns_add_u32 s3, s3, s41\ns_add_u32 s3, s3, {FG}\ns_lshl_b32 s3, s3, 7\nv_mov_b32 v9, s3")
        A(f"s_add_u32 s40, s40, s17\ns_add_u32 s40, s40, {FU}\nv_min_u32 v8, 17, v24\nv_lshl_add_u32 v8, v8, 1, s40\nv_lshlrev_b32 v8, 7, v8")
    if CFG.own:
        def altP(issue, L):
            A("s_cmp_ge_u32 s2, 144\ns_cbranch_scc1 K2_pn\ns_barrier\ns_mov_b64 exec, 1\nbuffer_load_dwordx2 v[10:11], v8, s[96:99], 0 offen sc1\ns_barrier\ns_barrier")
            A("s_waitcnt vmcnt(0)\nv_cmp_ne_u64 vcc, s[100:101], v[10:11]\ns_nop 4\ns_cbranch_vccz K2_pg")
            poll(A, 8, 10, CFG.sl1)
            A.label("K2_pg")
            A("s_mov_b64 exec, -1")
            poll(A, 8, 10, CFG.sl2)
            pt(A, "go2")
            for sl in (2, 3, 0): issue(sl)
            A(f"s_branch {L}_2")
            A.label("K2_pn")
        def altW(issue, L):
            A(f"s_cmp_ge_u32 s2, 144\ns_cbranch_scc1 K2_wn\ns_mov_b32 s25, s21\ns_mul_i32 s21, s24, {128*4096}\ns_lshl_b32 s3, s23, 8\ns_add_u32 s21, s21, s3")
            issue(0, False)
            A(f"s_add_u32 s21, s21, {64*4096}")
            issue(1, False)
            A("s_mov_b32 s21, s25")
            if CFG.early: A("s_barrier")
            issue(2)
            A(f"s_branch {L}")
            A.label("K2_wn")
    if CFG.own >= 2:
        def altP(issue, L):
            A("s_cmp_ge_u32 s2, 144\ns_cbranch_scc1 K2_pn\ns_barrier")
            if CFG.own == 4:
                A("s_mov_b64 exec, 1")
                poll(A, 8, 10, CFG.sl1g)
                A("s_barrier")
                poll(A, 8, 10, CFG.sl2g)
            else: poll2(A, 8, 10, CFG.sl1g, CFG.sl2g)
            pt(A, "go2")
            if CFG.own == 3: A("s_barrier")
            issue(2); issue(3)
            A("s_waitcnt vmcnt(9)\ns_barrier")
            issue(0); issue(1)
            first_chunks()
            A(f"s_branch {L}_3")
            A.label("K2_pn")
        def altW(issue, L):
            A(f"s_cmp_ge_u32 s2, 144\ns_cbranch_scc1 K2_wn\ns_mov_b32 s25, s21\ns_mul_i32 s21, s24, {128*4096}\ns_lshl_b32 s3, s23, 8\ns_add_u32 s21, s21, s3")
            issue(0, False)
            A(f"s_add_u32 s21, s21, {64*4096}")
            issue(1, False)
            A("s_mov_b32 s21, s25")
            if CFG.own > 2:
                if CFG.early: A("s_barrier")
                issue(2); issue(3)
                A("s_waitcnt vmcnt(16)\ns_barrier\ns_waitcnt vmcnt(8)\ns_barrier")
                issue(0); issue(1)
                first_chunks()
                A(f"s_branch {L}_3")
                A.label("K2_wn")
                return
            A("s_waitcnt vmcnt(0)")
            def more():
                base = 16*CFG.pf2s + 32*CFG.pf2kv + 16*CFG.pf2q + 32*CFG.pf2l + 8*CFG.pf2ls
                A(f"s_mov_b64 s[40:41], s[56:57]\ns_mov_b32 s42, s58\ns_lshr_b32 s25, s2, 3\ns_lshl_b32 s25, s25, 1\ns_add_u32 s25, s25, s17\ns_add_u32 s25, s25, {base}")
                pf_w2(A, 4, 25, 36, CFG.pf2G, srdn=12)
                A("s_mov_b64 s[56:57], s[40:41]\ns_mov_b32 s58, s42")
            if CFG.pf2G and CFG.pf2Gp == 1: more()
            A("s_barrier")
            issue(2); issue(3)
            if CFG.pf2G and CFG.pf2Gp == 0: more()
            A(f"s_waitcnt vmcnt({8 + (CFG.pf2G if CFG.pf2Gp == 0 else 0)})\ns_barrier")
            issue(0); issue(1)
            first_chunks()
            A(f"s_branch {L}_3")
            A.label("K2_wn")
        assert (CFG.early or CFG.own > 2) and not CFG.pft
    def wait_u():
        go_barrier()
        poll2(A, 8, 10, CFG.sl1, CFG.sl2, "s_cmp_lt_u32 s2, 144" if CFG.gdir else None, 9 if CFG.hint2 >= 0 else None)
        if CFG.dstag:
            mode, n = CFG.dstag.split(",")
            if mode == "ramp":
                A(f"s_lshr_b32 s3, s2, 5\nK2_ds:\ns_cmp_eq_u32 s3, 0\ns_cbranch_scc1 K2_ds1\ns_sleep {n}\ns_sub_u32 s3, s3, 1\ns_branch K2_ds\nK2_ds1:")
            else:
                A(f"s_cmp_lt_u32 s2, {mode}\ns_cbranch_scc1 K2_ds1\ns_sleep {n}\nK2_ds1:")
        pt(A, "go2")
    emit_loader_lin(A, 18, 9, POFF, 17, 8, 21, 20, 18, CFG.auxP, G2, pre=wait_u, hook=hook, sched=sched, alt=altP, loopend=lend2)
    A("s_branch K2_rx")
    A.label("K2_ldW")
    srd(A, 12, 4, S*F*2)
    A(f"s_sub_u32 s17, s16, 6\ns_mul_i32 s21, s28, {1152*4096}\ns_lshl_b32 s18, s23, 8\ns_add_u32 s21, s21, s18")
    every = None
    if CFG.pft:
        nl = -(-90 // CFG.pft)
        A(f"s_and_b32 s41, s23, 7\ns_lshl_b32 s42, s22, 3\ns_add_u32 s41, s41, s42\ns_lshl_b32 s41, s41, 1\ns_add_u32 s41, s41, s17\ns_mul_i32 s41, s41, 11520\ns_add_u32 s41, s41, {WOT_OFF}")
        A(f"v_mul_u32_u24 v26, {128*CFG.pft}, v24\nv_add_u32 v26, s41, v26\ns_bfm_b64 s[48:49], {nl}, 0\ns_mov_b32 s42, {-128*(18 - CFG.pft)}")
        def every():
            A(f"s_max_i32 s3, s42, 0\ns_cmp_lt_i32 s42, 0\ns_cselect_b32 s41, {OOB}, 0\nv_or_b32 v25, s41, v26\ns_mov_b64 exec, s[48:49]")
            A(f"buffer_load_dword v{SINK}, v25, s[36:39], s3 offen sc1\ns_mov_b64 exec, -1\ns_add_u32 s42, s42, 128")
    def mid():
        go_barrier(True)
    if CFG.early: A("s_cmp_lt_u32 s2, 144\ns_cbranch_scc1 K2_nob")
    A("s_sub_u32 s3, s2, 208\ns_cmp_lt_u32 s3, 32\ns_cbranch_scc1 K2_nob\ns_barrier\nK2_nob:")
    emit_loader_W(A, 18, "pi", 17, 12, 21, 4096, 20, 18, CFG.auxW2, G2, every=every, mid=mid, hook=hook, sched=sched, alt=altW, loopend=lend2)
    A.label("K2_rx")
    if CFG.lm:
        OF, LA = 136, 200
        A(f"v_add_u32 v2, {O_LDS}, v20\nv_add_u32 v3, {O_TOP}, v20")
        A(f"v_and_b32 v4, 15, v24\nv_mul_u32_u24 v4, {RED_RS}, v4\nv_lshrrev_b32 v5, 4, v24\nv_lshl_add_u32 v4, v5, 4, v4\ns_and_b32 s3, s29, 1\ns_mul_i32 s3, s3, {16*RED_RS}\nv_add_u32 v5, s3, v4")
        A(f"s_lshl_b32 s3, s29, 6\nv_add_u32 v4, s3, v4\nv_pk_mov_b32 v[216:217], 0, 0\nv_pk_mov_b32 v[218:219], 0, 0")
        def oreads(u):
            return [f"ds_read_b128 {v(OF+32*(u&1)+8*g+4*j,4)}, " + (f"v3 offset:{g*1024}" if (u, j) == (4, 1) else f"v2 offset:{g*9216 + (2*u+j)*1024}") for g in range(4) for j in range(2)]
        def lmf(u):
            return [f"{MF} {v(LA+8*k+4*j,4)}, {v(WR+32*(u-2)+8*g+4*k,4)}, {v(OF+32*(u&1)+8*g+4*j,4)}, {v(LA+8*k+4*j,4) if u > 2 or g else 0}" for g in range(4) for k in range(2) for j in range(2)]
        A(f"s_waitcnt vmcnt({0 if CFG.hold else 9})\ns_barrier")
        for r in oreads(2): A(r)
        smp = "buffer_load_dwordx2 v[34:35], v32, s[96:99], 0 offen sc1" if CFG.smp else "v_pk_mov_b32 v[34:35], 0, 0"
        if CFG.lord == 0:
            if CFG.hold: ld_w(1, False)[2]()
            block(A, lmf(2), oreads(3), False)
            A("s_waitcnt vmcnt(0)\ns_barrier")
            block(A, lmf(3), oreads(4), False)
            A("s_barrier\n" + smp)
            block(A, lmf(4), [], False)
        else:
            block(A, lmf(2), oreads(3), False)
            if CFG.hold: ld_w(1, False)[2]()
            block(A, lmf(3), oreads(4), False)
            block(A, lmf(4), [], False)
            A("s_waitcnt vmcnt(0)\ns_barrier\ns_barrier\n" + smp)
        A(f"ds_write_b128 v5, v[216:219] offset:{REDL + 512}\ns_nop 3")
        for k in range(2):
            for j in range(2): A(f"ds_write_b128 v4, {v(LA+8*k+4*j,4)} offset:{REDL + k*256 + j*16*RED_RS}")
        A("s_waitcnt vmcnt(0)")
    A("s_cmp_eq_u32 s29, s28\ns_cbranch_scc1 K2_fin")
    srd_off(A, 8, 26, PART_OFF, PART_SZ)
    A(f"s_add_u32 m0, s31, {PB}\nv_cmp_ne_u64 vcc, s[100:101], v[34:35]\nv_lshrrev_b32 v2, 5, v24\nv_xor_b32 v2, v2, v24\nv_lshlrev_b32 v2, 4, v2\ns_nop 1\ns_cbranch_vccz K2_rx1\ns_mov_b64 exec, 1")
    poll(A, 32, 34, CFG.slx)
    A.label("K2_rx1")
    pt(A, "poll")
    for t in range(9):
        A(f"buffer_load_dwordx4 v2, s[8:11], s30 offen sc1 lds\ns_add_u32 m0, m0, {PBS}\ns_add_u32 s30, s30, 1024")
    A("s_branch K2_fin")
    A.label("K_end")
    A("s_endpgm")
    DBG["on"] = False

def k2_final_prep(A, nitems):
    srd(A, 8, 44, S*D*2)
    srd(A, 12, 6, S*2)
    srd(A, 52, 46, S*D*2)
    A("s_lshl_b32 s50, s23, 2\ns_add_u32 s50, s50, s28\ns_lshl_b32 s51, s50, 6\ns_mul_i32 s50, s50, 36864\ns_mul_i32 s17, s22, 288\ns_add_u32 s50, s50, s17")
    for n in range(nitems):
        FI = (244, 232)[n]; XB = FI + 4
        if n: A(f"v_mov_b32 v{FI}, {OOB}\ns_cmp_lg_u32 s16, 7\ns_cbranch_scc1 K2_fp1")
        A("v_mov_b32 v252, v0" if n == 0 else "v_and_b32 v252, 63, v0\nv_add_u32 v252, 512, v252")
        A("v_mul_u32_u24 v253, 3641, v252\nv_lshrrev_b32 v253, 16, v253\nv_mul_u32_u24 v254, 18, v253\nv_sub_u32 v254, v252, v254")
        A(f"v_mul_u32_u24 v252, 1152, v253\nv_lshl_add_u32 v{FI}, v254, 4, v252")
        A(f"v_mul_u32_u24 v252, {RED_RS}, v253\nv_lshl_add_u32 v{FI+1}, v254, 5, v252\nv_add_u32 v{FI+1}, {RED}, v{FI+1}")
        A(f"v_lshrrev_b32 v252, 1, v254\nv_mul_u32_u24 v252, {PBS}, v252\nv_and_b32 v254, 1, v254\nv_lshl_add_u32 v252, v254, 9, v252\nv_xor_b32 v254, v254, v253\nv_and_b32 v254, 15, v254")
        A(f"v_lshl_add_u32 v252, v254, 4, v252\nv_lshrrev_b32 v254, 4, v253\nv_lshl_add_u32 v252, v254, 3, v252\nv_add_u32 v{(241, 240)[n]}, {PB}, v252\nv_add_u32 v{FI+2}, {PB_OWN}, v252")
        A("v_lshlrev_b32 v253, 1, v253")
        A(f"buffer_load_dwordx4 {v(XB,4)}, v{FI}, s[8:11], s50 offen\nbuffer_load_ushort v{FI+3}, v253, s[12:15], s51 offen")
        if n: A.label("K2_fp1")
    A("v_mov_b32 v252, v241")

HEADER = open("parallel_sum__linear_kernel_hedgehog__mixer_token_mlp__prompt.s.ref").read().split("; Override launch")[0] if __name__ == "__main__" else ""

def gen(**kw):
    global CFG
    for k in dir(Cfg):
        if not k.startswith("_"): setattr(CFG, k, kw.get(k, getattr(Cfg, k)))
    A = Asm()
    if HEADER: A(HEADER.rstrip())
    A(f"; @launch grid=(256,1,1) block=(512,1,1) lds={LDS_BYTES}")
    A('.amdgcn_target "amdgcn-amd-amdhsa--gfx950"\n.text')
    gen_k0(A); gen_k1(A); gen_k2(A)
    A.label("CODE_END")
    A("s_endpgm")
    A('.section .rodata,"a"')
    kernel_desc(A, KNAME, 256)
    return A.text()

if __name__ == "__main__":
    out = sys.argv[1] if len(sys.argv) > 1 else "parallel_sum__linear_kernel_hedgehog__mixer_token_mlp__prompt.s"
    kw = {}
    for a in sys.argv[2:]:
        k, val = a.split("=")
        kw[k] = val if not val.lstrip("-").isdigit() else int(val)
    open(out, "w").write(gen(**kw))
```

```python
import math, struct, sys
from asmlib import *

def f2u(x): return struct.unpack("<I", struct.pack("<f", x))[0]
LOG2E = math.log2(math.e)
OOB = 0x80000000
GC0 = 2*math.sqrt(2/math.pi)*LOG2E
GS = (GC0*0.044715) ** (1/3)

S, D, F, H, DH = 2048, 576, 4608, 32, 18
KA_X, KA_WQKV, KA_WPHI, KA_WO, KA_BX, KA_W1, KA_B1, KA_W2, KA_B2, KA_OUT, KA_DBG, KA_WS = [8*i for i in range(12)]
RS_OFF, RS_SZ = 0x0, 128*128
HT_OFF, HT_SZ = 0x240000, 2359296
WF_OFF, WF_SZ = 0x480000, 6*18*18*1024
U_OFF, U_SZ = 0x680000, 5308416
PHIQ_OFF, PHIQ_SZ = 0xC00000, 4718592
KVP_OFF, KVP_SZ = 0x1080000, 16*48*2048
KVF_OFF, KVF_SZ = 0x12C0000, 48*1024
WOT_OFF, WOT_SZ = 0x1300000, 16*45*1024
OB_OFF, OB_SZ = 0x2000000, 64*4*10240
PART_OFF, PART_SZ = 0x1400000, 64*16*9216
FLAG_OFF, FLAG_SZ = 0x1F00000, 0x58000
F0, F1, FU, FW, FK, FP, FO, FX, FE = 0, 256, 792, 712, 1368, 1416, 1480, 1608, 2632
FH, FG = 704, 2640
KNAME = "parallel_sum__linear_kernel_hedgehog__mixer_token_mlp__prompt_kernel"
SINK = 255
STAMP_OFF, STAMP_SZ = 0x3000000, 0x100000

STAGE, POFF, WOFF, NST = 36864, 0, 18432, 4
STAGE2 = STAGE
V_PA, V_PB, V_W0A, V_W1A, V_W0B, V_W1B = 2, 3, 4, 5, 6, 7
V_PF, V_WF, V_ACC = 8, 80, 96
def pf(b, t): return v(V_PF + b*36 + t*4, 4)
def wf(b, j): return v(V_WF + b*8 + j*4, 4)
def accr(st, t, j): return V_ACC + st*72 + (t*2+j)*4
def acc(st, t, j): return v(accr(st, t, j), 4)
MF = "v_mfma_f32_16x16x32_bf16"

class Cfg:
    stamp = False
    auxW1 = ""; auxW2 = ""; auxP = "sc1"; auxSt = "sc1"
    G1 = 0; G2 = 0; GA = 0
    auxOut = ""; flagpos = 1; pollpos = 1
    pts = ""; pf1b = 0; pf2w = 0; pubpos = 0; lb = 4; ls = 6; w1b = 0; w1i = 3; gsc = 0; ofine = 0; nat = 0; chore = 0; wfirst = 0; w1at = 0; w1n = 1; stsw = 0; lord = 0; lm = 0; wat = 932; pf1kv = 0; dfold = 0; tl0 = 0; rot8 = 0; pf2G = 0; pf2Gp = 0; sl1g = 8; sl2g = 1; sA = 0; wn = 2; w0 = 2; rev2 = 0; early = 0; own = 0; ownpf = 0; GO = 4; burn = ""; w22 = 0; koff = 0; dstag = ""; wreg = 0; wpos = 3; glag = 0; hold = 1; smp = 20; prio = 0; prio1 = 0; pfpos = 0; c3s = 0; hint2 = -1; hint1 = 0; prew = 0; gdir = 0; half = 0; pf2l = 0; pf2ls = 0; ost = 0; slo2 = 1; slx = 0; slo = 4; opos = 0; dl0 = 0; dlf = 0; dlw = 0; pff = 0; wide = 0; wot1 = 0; pf1q = 0; slim = 1; unroll = 0; sl0a = 0; wlate = 0; qlim = -1; pfbar = 0; pf1a = 0; c3w2 = 0; c3w1 = 0; swap13 = 1; tlb = 0; sl1 = 0; sl2 = 0; bgo = 0; sl0 = 0; slk = 0
    dbg_nopub = 0; dbg_hot = 0; dbg = ""
    pfc = 0
    pf1 = 0
    pf1l = 0; pf1rev = 0; pf2g = 0; pf2pos = 3
    pf1pos = 0
    pf1s = 0
    pft = 0
    pf2kv = 0; pf2q = 0; pf2s = 0
    probe = ""
CFG = Cfg()

def stamp(A, i):
    if CFG.stamp: A(f"{'s_memtime' if CFG.stamp == 2 else 's_memrealtime'} s[{64+2*i}:{65+2*i}]")
def pt(A, name):
    L = CFG.pts.split(",")
    if name in L: stamp(A, 1 + L.index(name))
def stamp_flush(A):
    if not CFG.stamp: return
    A("s_waitcnt vmcnt(0)")
    stamp(A, 13)
    A("s_waitcnt lgkmcnt(0)")
    srd_off(A, 92, 26, STAMP_OFF, STAMP_SZ)
    A("s_lshl_b32 s63, s2, 3\ns_add_u32 s63, s63, s16\ns_lshl_b32 s63, s63, 6\ns_mov_b64 exec, 1\nv_mov_b32 v1, 0")
    for i in range(14):
        A(f"v_mov_b32 v2, s{64+2*i}\nbuffer_store_dword v2, v1, s[92:95], s63 offen offset:{4*i}")

def emit_compute_addr(A, s_wave, mode):
    if CFG.w22 and mode != "lin": return addr22(A, s_wave, mode)
    A("v_and_b32 v1, 63, v0")
    A(f"v_lshlrev_b32 v{V_PA}, 4, v1")
    A(f"v_add_u32 v{V_PB}, {2*STAGE}, v{V_PA}")
    if mode == "lin":
        A("v_lshrrev_b32 v8, 5, v1\nv_lshlrev_b32 v8, 12, v8\nv_bfe_u32 v9, v1, 4, 1\nv_lshl_add_u32 v8, v9, 7, v8\nv_bfe_u32 v9, v1, 2, 2\nv_lshl_add_u32 v8, v9, 4, v8")
        A("v_bfe_u32 v9, v1, 1, 1\nv_mul_u32_u24 v9, 320, v9\nv_add_u32 v8, v8, v9\nv_and_b32 v9, 1, v1\nv_lshl_add_u32 v8, v9, 3, v8")
        A(f"s_lshl_b32 s3, s{s_wave}, 10\ns_add_u32 s3, s3, {WOFF}\nv_add_u32 v{V_W0A}, s3, v8")
        A(f"v_xor_b32 v{V_W1A}, 64, v{V_W0A}\nv_add_u32 v{V_W0B}, {2*STAGE}, v{V_W0A}\nv_add_u32 v{V_W1B}, {2*STAGE}, v{V_W1A}")
        return
    A("v_lshrrev_b32 v8, 2, v1")
    A("v_and_b32 v9, 7, v8")
    if mode == "std":
        A("v_and_b32 v10, 12, v8\nv_add_u32 v8, v8, v10")
    A(f"s_lshl_b32 s3, s{s_wave}, 1")
    A("v_xor_b32 v9, s3, v9\nv_lshlrev_b32 v9, 5, v9\nv_lshl_add_u32 v9, v8, 8, v9")
    A("v_and_b32 v8, 3, v1\nv_lshl_add_u32 v9, v8, 3, v9")
    A(f"v_add_u32 v{V_W0A}, {WOFF}, v9")
    A(f"v_xor_b32 v{V_W1A}, 32, v{V_W0A}")
    A(f"v_add_u32 v{V_W0B}, {2*STAGE}, v{V_W0A}")
    A(f"v_add_u32 v{V_W1B}, {2*STAGE}, v{V_W1A}")

X22 = 80
def addr22(A, s_wave, mode):
    A("v_and_b32 v1, 63, v0")
    A(f"v_lshlrev_b32 v{V_PA}, 4, v1\nv_add_u32 v{V_PB}, {2*STAGE}, v{V_PA}")
    A(f"s_and_b32 s3, s{s_wave}, 1\ns_mul_i32 s3, s3, 5120\nv_add_u32 v4, s3, v{V_PA}\nv_add_u32 v5, s3, v{V_PB}")
    A("v_lshrrev_b32 v8, 2, v1\nv_and_b32 v9, 7, v8")
    if mode == "std": A("v_and_b32 v10, 12, v8\nv_add_u32 v8, v8, v10")
    A(f"s_lshl_b32 s3, s{s_wave}, 1")
    A("v_xor_b32 v9, s3, v9\nv_lshlrev_b32 v9, 5, v9\nv_lshl_add_u32 v9, v8, 8, v9")
    A(f"v_and_b32 v8, 3, v1\nv_lshl_add_u32 v9, v8, 3, v9\nv_add_u32 v{X22}, {WOFF}, v9")
    for jj in range(1, 4): A(f"v_xor_b32 v{X22+jj}, {32*jj}, v{X22}")
    for jj in range(4): A(f"v_add_u32 v{X22+4+jj}, {2*STAGE}, v{X22+jj}")
def pf22(b, i): return V_PF + 36*b + 4*i
def wf22(b, jj): return V_PF + 36*b + 20 + 4*jj
def reads22(slot, sub, b, mode):
    hi = slot >= 2; so = (slot & 1) * STAGE
    second = 1024 if mode == "std" else 4096
    W = []
    for jj in range(4):
        a = X22 + jj + (4 if hi else 0)
        W.append([f"ds_read_b64_tr_b16 {v(wf22(b,jj)+2*h,2)}, v{a} offset:{so + sub*8192 + h*second}" for h in range(2)])
    P = [f"ds_read_b128 {v(pf22(b,i),4)}, v{(5 if hi else 4) if i < 4 else (V_PB if hi else V_PA)} offset:{so + (sub*9+i)*1024}" for i in range(5)]
    return W[0] + W[1] + W[2] + W[3] + P
def mfmas22(b, w_is_A):
    M = []
    for blk in range(9):
        i, h = (blk >> 1, blk & 1) if blk < 8 else (4, 0)
        for j in range(2):
            p_, w_ = v(pf22(b,i),4), v(wf22(b,2*h+j),4)
            M.append(f"{MF} {acc(0,blk,j)}, {w_ if w_is_A else p_}, {p_ if w_is_A else w_}, {acc(0,blk,j)}")
    return M

def reads_P(slot, sub, b):
    a = V_PB if slot >= 2 else V_PA
    so = (slot & 1) * STAGE
    return [f"ds_read_b128 {pf(b,t)}, v{a} offset:{so + (sub*9+t)*1024}" for t in range(9)]
def reads_W(slot, sub, b, mode):
    hi = slot >= 2
    so = (slot & 1) * STAGE
    R = []
    if mode == "lin":
        a = (V_W0B, V_W1B) if hi else (V_W0A, V_W1A)
        return [f"ds_read_b64_tr_b16 {v(V_WF + b*8 + j*4 + 2*h, 2)}, v{a[h]} offset:{so + j*512}" for j in range(2) for h in range(2)]
    second = 1024 if mode == "std" else 4096
    for j in range(2):
        a = (V_W0B, V_W1B)[j] if hi else (V_W0A, V_W1A)[j]
        base = V_WF + b*8 + j*4
        R.append(f"ds_read_b64_tr_b16 {v(base,2)}, v{a} offset:{so + sub*8192}")
        R.append(f"ds_read_b64_tr_b16 {v(base+2,2)}, v{a} offset:{so + sub*8192 + second}")
    return R

DBG = {"on": False}
def dbg(x): return DBG["on"] and x in CFG.dbg.split(",")
def block(A, M, R, barrier):
    if dbg("nomfma"): M = ["s_nop 3"]*len(M)
    if dbg("noread"): R = []
    if dbg("noreadP"): R = [r for r in R if "tr_b16" in r]
    if dbg("halfP"): R = [r for i, r in enumerate(R) if "tr_b16" in r or i % 2]
    A("s_waitcnt lgkmcnt(0)")
    if barrier: A("s_barrier")
    ri = 0
    for m in M:
        A(m)
        if ri < len(R):
            if R[ri]: A(R[ri])
            ri += 1
    assert ri == len(R)

def mfmas(st, pb, wb, w_is_A):
    M = []
    for t in range(9):
        for j in range(2):
            a, b = (wf(wb,j), pf(pb,t)) if w_is_A else (pf(pb,t), wf(wb,j))
            M.append(f"{MF} {acc(st,t,j)}, {a}, {b}, {acc(st,t,j)}")
    return M

def emit_compute_loop(A, n, mode, w_is_A, s_cnt, first=None, lastfill=None, hooks=None, loopend=None, more=None, own=False):
    lin = mode == "lin"
    if own:
        rd = lambda sl, sub, b: reads_W(sl, sub, b, mode) + reads_P(sl, sub, b)
        A("s_cmp_ge_u32 s2, 144\ns_cbranch_scc1 K2_cn")
        if CFG.own > 2: A("s_barrier")
        pt(A, "own")
        for r in rd(0, 0, 0): A(r)
        for k in range(4): block(A, mfmas(0, k & 1, k & 1, w_is_A[0]), rd((k+1) >> 1, (k+1) & 1, (k+1) & 1) if k < 3 else [], False)
        A("s_barrier")
        if first: first()
        for r in rd(2, 0, 0): A(r)
        A(f"s_mov_b32 s{s_cnt}, {(n - 1) // NST}\ns_branch K2_c2")
        A.label("K2_cn")
    A("s_barrier")
    if first: first()
    w22 = CFG.w22 and not lin
    for r in (reads22(0, 0, 0, mode) if w22 else reads_W(0, 0, 0, mode) + reads_P(0, 0, 0)): A(r)
    def stage(i, last):
        slot = i % NST; nxt = (i+1) % NST
        if lin:
            wb = i & 1
            block(A, mfmas(0, 0, wb, w_is_A[0]), reads_P(slot, 1, 1), False)
            block(A, mfmas(1, 1, wb, w_is_A[1]), (lastfill or []) if last else reads_W(nxt, 0, wb ^ 1, mode) + reads_P(nxt, 0, 0), not last)
        elif w22:
            block(A, mfmas22(0, w_is_A[0]), reads22(slot, 1, 1, mode), False)
            block(A, mfmas22(1, w_is_A[1]), (lastfill or []) if last else reads22(nxt, 0, 0, mode), not last)
        else:
            x0, x1 = (more or {}).get(i, ([], []))
            block(A, mfmas(0, 0, 0, w_is_A[0]), reads_W(slot, 1, 1, mode) + reads_P(slot, 1, 1) + x0, False)
            block(A, mfmas(0, 1, 1, w_is_A[1]), (lastfill or []) if last else reads_W(nxt, 0, 0, mode) + reads_P(nxt, 0, 0) + x1, not last)
    if CFG.unroll and mode == ("std", "pi")[CFG.unroll-1]:
        for i in range(n):
            stage(i, i == n-1); pt(A, f"s{i}")
            if i == 3 and loopend: loopend()
        return
    nloop = (n - 1) // NST
    L = A.newlabel("Lc")
    A(f"s_mov_b32 s{s_cnt}, {nloop}")
    A.label(L)
    for i in range(NST):
        if own and i == 2: A.label("K2_c2")
        stage(i, False)
    if loopend: loopend()
    A(f"s_sub_u32 s{s_cnt}, s{s_cnt}, 1\ns_cmp_lg_u32 s{s_cnt}, 0\ns_cbranch_scc1 {L}")
    for i in range(nloop*NST, n):
        if hooks and i in hooks: hooks[i]()
        stage(i, i == n-1)

def seq_off(A, s_off, step):
    A(f"s_cmp_ge_u32 s59, s57\ns_cselect_b32 s62, 2, 0\ns_add_u32 s62, s62, s59\ns_mul_i32 s62, s62, s19\ns_add_u32 s{s_off}, s35, s62")
def rot_init(A, G, s_rot, s_off, step):
    if G == "seq":
        A(f"s_mov_b32 s35, s{s_off}\ns_sub_u32 s60, s58, s59\ns_mov_b32 s61, s58\ns_mov_b32 s19, {step}")
        if CFG.rev2: A(f"s_bitcmp1_b32 s2, 0\ns_cselect_b32 s62, {17*step}, 0\ns_cselect_b32 s19, {-step}, s19\ns_add_u32 s35, s35, s62")
        return seq_off(A, s_off, step)
    if DBG.get("koff"):
        A(f"s_and_b32 s58, s2, 6\ns_lshl_b32 s58, s58, 2\ns_mul_i32 s62, s58, {step}\ns_add_u32 s{s_off}, s{s_off}, s62\ns_sub_u32 s58, 32, s58")
    if not G: return
    A(f"s_mul_i32 s62, s{s_rot}, {step}\ns_add_u32 s{s_off}, s{s_off}, s62")
    A(f"s_sub_u32 s60, {G}, s{s_rot}\ns_mov_b32 s61, {G}")
def rot_step(A, G, s_off, step):
    if dbg("noadv"): return
    if dbg("k2W") and step == 64*4096: return
    if dbg("k2P") and step == 18432: return
    if "k1W" in CFG.dbg and step == 64*9216: return
    if "k1P" in CFG.dbg and DBG.get("k1P"): return
    if G == "none": return
    if G == "seq":
        A("s_add_u32 s59, s59, 1\ns_sub_u32 s60, s60, 1\ns_cmp_eq_u32 s60, 0\ns_cselect_b32 s62, s58, 0\ns_cselect_b32 s60, s58, s60\ns_sub_u32 s59, s59, s62")
        A("s_sub_u32 s61, s61, 1\ns_cmp_eq_u32 s61, 0\ns_cselect_b32 s62, s58, 0\ns_cselect_b32 s61, s58, s61\ns_add_u32 s59, s59, s62")
        return seq_off(A, s_off, step)
    A(f"s_add_u32 s{s_off}, s{s_off}, {step}")
    if DBG.get("koff"):
        A(f"s_sub_u32 s58, s58, 1\ns_cmp_eq_u32 s58, 0\ns_cselect_b32 s62, {32*step}, 0\ns_sub_u32 s{s_off}, s{s_off}, s62")
    if not G: return
    A(f"s_sub_u32 s60, s60, 1\ns_cmp_eq_u32 s60, 0\ns_cselect_b32 s62, {G*step}, 0\ns_cselect_b32 s60, {G}, s60\ns_sub_u32 s{s_off}, s{s_off}, s62")
    A(f"s_sub_u32 s61, s61, 1\ns_cmp_eq_u32 s61, 0\ns_cselect_b32 s62, {G*step}, 0\ns_cselect_b32 s61, {G}, s61\ns_add_u32 s{s_off}, s{s_off}, s62")

def emit_loader(A, n, cnt, issue, s_cnt, extra=None, hook=None, post=None, pre=None, mid=None, sched=None, loopend=None, alt=None, inloop=None):
    extra = extra or []
    tot = n + len(extra)
    hook = hook or {}
    def c(i): return 0 if i >= tot else (cnt + (i in hook) if i < n else extra[i-n][0])
    nloop = (n - 3) // NST
    L = A.newlabel("Ll")
    A(f"s_mov_b32 s{s_cnt}, {nloop}")
    if alt: alt(issue, L)
    if pre: pre()
    for i in range(3): issue(i)
    if mid: mid()
    A.label(L)
    for i in range(NST):
        if i >= 2: A.label(L + f"_{i}")
        A(f"s_waitcnt vmcnt({2*cnt})\ns_barrier")
        issue((i+3) % NST)
        if inloop: inloop(i, cnt)
    if loopend: loopend()
    A(f"s_sub_u32 s{s_cnt}, s{s_cnt}, 1\ns_cmp_lg_u32 s{s_cnt}, 0\ns_cbranch_scc1 {L}")
    def run_sched(sched):
        nbar, after, need, lg = sched
        order = [(k, cnt) for k in range(nloop*NST + 3)]
        for i in range(nloop*NST, nbar):
            name = need.get(i, i)
            pos = max(p for p, (k, _) in enumerate(order) if k == name)
            A(f"s_waitcnt vmcnt({sum(c_ for _, c_ in order[pos+1:])})" + (f" lgkmcnt({lg[i]})" if i in lg else "") + "\ns_barrier")
            if i+3 in hook: hook[i+3](); order.append((i+3, 1))
            if i+3 < n: issue((i+3) % NST); order.append((i+3, cnt))
            for name, c_, emit in after.get(i, []):
                emit(); order.append((name, c_))
    if sched:
        X = A.newlabel("Lz")
        if len(sched) > 1: A(f"{sched[1][0]}\ns_cbranch_scc1 {X}_b")
        run_sched(sched[0])
        if len(sched) > 1:
            A(f"s_branch {X}\n{X}_b:")
            run_sched(sched[1][1])
        A.label(X)
        return
    for i in range(nloop*NST, tot):
        A(f"s_waitcnt vmcnt({c(i+1)+c(i+2) + (post[0] if post and i > n-post[2] else 0)})\ns_barrier")
        if post and i == n-post[2]: post[1]()
        if i+3 in hook: hook[i+3]()
        if i+3 < n: issue((i+3) % NST)
        elif i+3 < tot: extra[i+3-n][1]((i+3) % NST)

def emit_loader_lin(A, n, per, ldsoff, s_lw, srdP, s_off, s_cnt, s_tmp, aux="", G=0, s_rot=59, extra=None, post=None, pre=None, hook=None, sched=None, loopend=None, alt=None, inloop=None):
    rot_init(A, G, s_rot, s_off, 2*per*1024)
    A("v_and_b32 v1, 63, v0\nv_lshlrev_b32 v1, 4, v1")
    A(f"s_mul_i32 s{s_tmp}, s{s_lw}, {per*1024}")
    A(f"v_add_u32 v2, s{s_tmp}, v1")
    for q in range(1, (per+3)//4): A(f"v_add_u32 v{2+q}, {q*4096}, v2")
    def issue(slot):
        for j in range(per):
            if j % 4 == 0:
                A(f"s_add_u32 m0, s{s_tmp}, {slot*STAGE + ldsoff + (j//4)*4096}\ns_nop 0")
            if not dbg("noload"): A(f"buffer_load_dwordx4 v{2+j//4}, {s(srdP,4)}, s{s_off} offen offset:{(j%4)*1024} {aux} lds")
        rot_step(A, G, s_off, 2*per*1024)
    emit_loader(A, n, per, issue, s_cnt, extra, hook=hook, post=post, pre=pre, sched=sched, loopend=loopend, alt=alt, inloop=inloop)

def emit_loader_W(A, n, mode, s_lw, srdW, s_off, stride, s_cnt, s_tmp, aux="", G=0, s_rot=59, extra=None, hook=None, post=None, every=None, mid=None, sched=None, loopend=None, alt=None, inloop=None):
    rot_init(A, G, s_rot, s_off, 64*stride)
    A("v_and_b32 v1, 63, v0\nv_lshrrev_b32 v10, 4, v1\nv_and_b32 v11, 15, v1")
    A(f"s_lshl_b32 s{s_tmp}, s{s_lw}, 5\nv_add_u32 v12, s{s_tmp}, v10")
    A(f"s_mov_b32 s3, {stride}\nv_mul_lo_u32 v12, v12, s3")
    for par in range(2):
        A(f"v_or_b32 v13, {4*par}, v10\nv_lshlrev_b32 v13, 1, v13\nv_xor_b32 v13, v13, v11")
        A("v_lshl_add_u32 v13, v13, 4, v12")
        for j in range(8):
            key = (j & 1) if mode == "pi" else ((j >> 1) & 1)
            if key == par:
                A(f"v_add_u32 v{2+j}, {4*j*stride - (j%4)*1024}, v13")
    A(f"s_lshl_b32 s{s_tmp}, s{s_lw}, 13")
    def issue(slot, adv=True):
        for j in range(8):
            if j % 4 == 0:
                A(f"s_add_u32 m0, s{s_tmp}, {slot*STAGE + WOFF + (j//4)*4096}\ns_nop 0")
            if not dbg("noload"): A(f"buffer_load_dwordx4 v{2+j}, {s(srdW,4)}, s{s_off} offen offset:{(j%4)*1024} {aux} lds")
        if every: every()
        rot_step(A, G if adv else 'none', s_off, 64*stride)
    emit_loader(A, n, 9 if every else 8, issue, s_cnt, extra, hook, post, mid=mid, sched=sched, loopend=loopend, alt=alt, inloop=inloop)

def pf_w1(A, srdn, s_col, s_idx, step, count, vl, vt, lim=None, rev=0, lanes=64, base=0):
    for c in range(count):
        if rev: A(f"s_sub_u32 s57, {rev-1}, s{s_idx}\ns_lshl_b32 s57, s57, 6")
        else: A(f"s_mul_i32 s57, s{s_idx}, {lanes}")
        if base: A(f"s_add_u32 s57, s57, {base}")
        A(f"v_add_u32 v{vt}, s57, v{vl}")
        if CFG.koff:
            A(f"s_and_b32 s57, s2, 6\ns_mul_i32 s57, s57, 2560\nv_add_u32 v{vt}, s57, v{vt}\nv_subrev_u32 v{vt+1}, 20480, v{vt}\nv_min_u32 v{vt}, v{vt}, v{vt+1}")
        A(f"v_mul_u32_u24 v{vt+1}, 52429, v{vt}\nv_lshrrev_b32 v{vt+1}, 19, v{vt+1}")
        A(f"v_mul_u32_u24 v{vt+1}, {9216-1280}, v{vt+1}\nv_lshl_add_u32 v{vt}, v{vt}, 7, v{vt+1}")
        if lanes < 64: A(f"s_bfm_b64 exec, {lanes}, 0")
        A(f"buffer_load_dword v{SINK}, v{vt}, {s(srdn,4)}, s{s_col} offen")
        if lanes < 64: A("s_mov_b64 exec, -1")
        A(f"s_add_u32 s{s_idx}, s{s_idx}, {step}")
        if lim is not None: A(f"s_waitcnt vmcnt({lim})")
def pf_code(A, start):
    L = A.newlabel("Lpc")
    A(f"s_getpc_b64 s[60:61]\n{L}:\ns_add_u32 s60, s60, {start}-{L}\ns_addc_u32 s61, s61, 0")
    A(f"v_lshlrev_b32 v90, 7, v0\nv_min_u32 v90, CODE_END-{start}-4, v90\nglobal_load_dword v{SINK}, v90, s[60:61]")
def pf_code5(A, start):
    L = A.newlabel("Lpc")
    A(f"s_getpc_b64 s[60:61]\n{L}:\ns_add_u32 s60, s60, {start}-{L}\ns_addc_u32 s61, s61, 0")
    A(f"s_and_b32 s3, s2, 0x78\ns_add_u32 s3, s3, s16\ns_mul_i32 s3, s3, 6\nv_add_lshl_u32 v90, v1, s3, 7\nv_min_u32 v90, CODE_END-{start}-4, v90")
    A(f"s_mov_b64 exec, 63\nglobal_load_dword v{SINK}, v90, s[60:61]\ns_mov_b64 exec, -1")
def pf_w1_col(A, s_col):
    A(f"s_and_b32 s{s_col}, s2, 7\ns_mul_i32 s{s_col}, s{s_col}, 18\ns_lshr_b32 s{s_col}, s{s_col}, 2\ns_lshl_b32 s{s_col}, s{s_col}, 8")
def pf_w2(A, s_ptr, s_idx, step, count, lim=None, srdn=52):
    if not count: return
    srd(A, srdn, s_ptr, S*F*2)
    A(f"s_bfe_u32 s57, s2, 0x20001\ns_mul_i32 s57, s57, {1152*4096}\ns_and_b32 s58, s2, 1\ns_lshl_b32 s58, s58, 11\ns_add_u32 s57, s57, s58")
    if CFG.rev2:
        A(f"s_sub_u32 s58, 287, s{s_idx}\ns_bitcmp1_b32 s2, 0\ns_cselect_b32 s58, s58, s{s_idx}\ns_lshl_b32 s58, s58, 14\ns_add_u32 s57, s57, s58")
        A(f"s_mov_b32 s58, {step*16384}\ns_bitcmp1_b32 s2, 0\ns_cselect_b32 s58, {-step*16384}, s58")
    else: A(f"s_lshl_b32 s58, s{s_idx}, 14\ns_add_u32 s57, s57, s58\ns_mov_b32 s58, {step*16384}")
    A("v_bfe_u32 v30, v0, 4, 2\nv_lshlrev_b32 v30, 12, v30\nv_and_b32 v31, 15, v0\nv_lshl_add_u32 v30, v31, 7, v30")
    for c in range(count):
        A(f"buffer_load_dword v{SINK}, v30, {s(srdn,4)}, s57 offen\ns_add_u32 s57, s57, s58")
        if lim is not None: A(f"s_waitcnt vmcnt({lim})")

def pf_w2c3(A, s_ptr, s_idx, step, count, lim=None):
    srd(A, 52, s_ptr, S*F*2)
    A(f"s_bfe_u32 s57, s2, 0x20001\ns_mul_i32 s57, s57, {1152*4096}\ns_and_b32 s58, s2, 1\ns_lshl_b32 s58, s58, 11\ns_add_u32 s57, s57, s58")
    A(f"s_lshl_b32 s58, s{s_idx}, 17\ns_add_u32 s57, s57, s58\ns_add_u32 s57, s57, 384")
    A("v_bfe_u32 v30, v0, 1, 5\nv_lshlrev_b32 v30, 12, v30\nv_and_b32 v31, 1, v0\nv_lshl_add_u32 v30, v31, 10, v30")
    for c in range(count):
        L = A.newlabel("Lc3")
        A(f"s_cmp_ge_u32 s{s_idx}, {36 - c*step}\ns_cbranch_scc1 {L}")
        A(f"buffer_load_dword v{SINK}, v30, s[52:55], s57 offen\ns_add_u32 s57, s57, {step << 17}")
        if lim is not None: A(f"s_waitcnt vmcnt({lim})")
        A.label(L)

SPIN_MAX = 60000
def flag_setup(A):
    srd_off(A, 96, 26, FLAG_OFF, FLAG_SZ)
    A(f"s_load_dword s100, s[96:97], {FE*128}")
def touch_pages(A):
    srd(A, 92, 26, OB_OFF + OB_SZ)
    A(f"v_and_b32 v92, 63, v0\nv_cmp_gt_u32 vcc, {CFG.tl0}, v92\nv_lshlrev_b32 v92, 21, v92\nv_mov_b32 v93, {FLAG_OFF + FE*128}\nv_add_u32 v92, 0x1ff000, v92\nv_cndmask_b32 v92, v93, v92, vcc")
    A(f"s_bfm_b64 exec, {CFG.tl0 + 1}, 0\nbuffer_load_dword v{SINK}, v92, s[92:95], 0 offen sc1\ns_mov_b64 exec, -1")
def tag_make(A):
    A("s_add_u32 s100, s100, 1\ns_mul_i32 s101, s100, 0x9e3779b1\ns_add_u32 s101, s101, 0x7f4a7c15")
def raise_flag(A, s_off, vt):
    A(f"v_mov_b32 v{vt}, s100\nv_mov_b32 v{vt+1}, s101\nv_mov_b32 v{vt+2}, s{s_off}")
    if CFG.wide:
        A(f"v_and_b32 v{vt+2}, 7, v0\nv_lshl_add_u32 v{vt+2}, v{vt+2}, 3, s{s_off}")
    A(f"s_mov_b64 exec, {0xff if CFG.wide else 1}\nbuffer_store_dwordx2 {v(vt,2)}, v{vt+2}, s[96:99], 0 offen sc1\ns_mov_b64 exec, -1")
def clear_flag(A, s_off, vt):
    if not CFG.prew: return
    A(f"v_and_b32 v{vt}, 31, v0\nv_lshl_add_u32 v{vt}, v{vt}, 2, s{s_off}\nv_mov_b32 v{vt+1}, 0\ns_bfm_b64 exec, 32, 0\nbuffer_store_dword v{vt+1}, v{vt}, s[96:99], 0 offen sc1\ns_mov_b64 exec, -1")
def poll(A, vaddr, vtmp, sleep=0):
    L = A.newlabel("Lp"); X = A.newlabel("Lx")
    A(f"s_mov_b32 s63, {SPIN_MAX}")
    A.label(L)
    A(f"buffer_load_dwordx2 {v(vtmp,2)}, v{vaddr}, s[96:99], 0 offen sc1")
    A(f"s_waitcnt vmcnt(0)\nv_cmp_ne_u64 vcc, s[100:101], {v(vtmp,2)}\ns_sub_u32 s63, s63, 1\ns_cbranch_scc1 {X}\ns_nop 2\ns_cbranch_vccz {X}")
    A("s_mov_b64 exec, vcc")
    if sleep: A(f"s_sleep {sleep}")
    A(f"s_branch {L}")
    A.label(X)
    A("s_mov_b64 exec, -1")
def poll2(A, vaddr, vtmp, sleep1, sleep2, skip=None, vfirst=None):
    if sleep1:
        L = A.newlabel("Ls")
        if skip: A(f"{skip}\ns_cbranch_scc1 {L}")
        A("s_mov_b64 exec, 1")
        poll(A, vaddr if vfirst is None else vfirst, vtmp, sleep1)
        A.label(L)
    poll(A, vaddr, vtmp, sleep2)

def wave_id(A, sd):
    A(f"v_lshrrev_b32 v1, 6, v0\ns_nop 1\nv_readfirstlane_b32 s{sd}, v1")

def reduce32(A, regs, tmp):
    pad = "s_nop 1" if len(regs) == 1 else "s_nop 0"
    A("s_nop 1")
    for pat in ["quad_perm:[1,0,3,2]", "quad_perm:[2,3,0,1]", "row_half_mirror", "row_mirror"]:
        for r in regs:
            A(f"v_add_f32_dpp v{r}, v{r}, v{r} {pat} row_mask:0xf bank_mask:0xf")
        A(pad)
    for i, r in enumerate(regs): A(f"v_mov_b32 v{tmp+i}, v{r}")
    A("s_nop 1")
    for i, r in enumerate(regs): A(f"v_permlane16_swap_b32 v{r}, v{tmp+i}")
    A("s_nop 1")
    for i, r in enumerate(regs): A(f"v_add_f32 v{r}, v{r}, v{tmp+i}")

XRS, HRS = 1168, 1216
P0 = 3*STAGE
LDS_BYTES = 163840
K0_HL = P0 + 256
K0_DUMMY = K0_HL + 16*HRS
K0_LDS = 83968
def seam_pre(A):
    tag_make(A)
    A(f"s_lshl_b32 s49, s2, 2\ns_add_u32 s49, s49, s16\ns_add_u32 s49, s49, {F1}\ns_cmp_eq_u32 s16, 4\ns_cselect_b32 s49, s2, s49\ns_lshl_b32 s49, s49, 7")
    A(f"s_cmp_gt_u32 s16, 4\ns_cselect_b32 s49, {OOB}, s49")
    A(f"s_load_dwordx4 s[4:7], s[0:1], {KA_W1}\ns_load_dwordx2 s[50:51], s[0:1], {KA_W2}")
def gen_k0(A):
    kernel_head(A, KNAME)
    stamp(A, 0)
    A("s_cmp_ge_u32 s2, 256\ns_cbranch_scc1 K_end")
    A(f"s_load_dwordx4 s[4:7], s[0:1], {KA_X}\ns_load_dwordx2 s[26:27], s[0:1], {KA_WS}")
    A(f"s_load_dwordx4 s[20:23], s[0:1], {KA_WPHI}\ns_load_dwordx2 s[48:49], s[0:1], {KA_W1}")
    A("s_sub_u32 s44, s2, 112\ns_cmp_ge_u32 s44, 128\ns_cbranch_scc1 K0_pf")
    X, P, Q = 20, 8, 56
    A("v_lshrrev_b32 v2, 5, v0\nv_and_b32 v3, 31, v0")
    A("v_mul_u32_u24 v4, 1152, v2\nv_lshl_add_u32 v4, v3, 4, v4")
    A(f"v_cmp_gt_u32 s[30:31], 24, v3\nv_mov_b32 v5, {OOB}")
    A("s_mul_i32 s3, s44, 18432")
    A("v_cndmask_b32 v4, v5, v4, s[30:31]")
    A("s_waitcnt lgkmcnt(0)")
    srd(A, 8, 4, S*D*2)
    for j in range(3): A(f"buffer_load_dwordx4 {v(P+4*j,4)}, v4, s[8:11], s3 offen offset:{384*j}")
    A("s_branch K0_ln")
    A.label("K0_pf")
    wave_id(A, 16)
    def pf_setup():
        flag_setup(A)
        srd(A, 52, 48, S*F*2)
        pf_w1_col(A, 46)
        A("s_and_b32 s47, s2, 0x78\ns_add_u32 s47, s47, s16\nv_and_b32 v1, 63, v0")
    def pf_round(r):
        if not CFG.pf1: return 0
        pf_w1(A, 52, 46, 47, 128, 1, 1, 88, lanes=CFG.pf1)
        return 1
    A("s_cmp_ge_u32 s2, 108\ns_cbranch_scc1 K0_nofold")
    A("s_mul_i32 s18, s2, 7282\ns_lshr_b32 s18, s18, 16")
    A("s_mul_i32 s19, s18, 9\ns_sub_u32 s17, s2, s19")
    A("s_and_b32 s28, s18, 3\ns_lshr_b32 s29, s18, 2")
    F_W, F_P = P0 + 18432, P0 + 18432 + 18432
    for r in range(3):
        A(f"v_add_u32 v4, {512*r}, v0\nv_mul_u32_u24 v5, 58255, v4\nv_lshrrev_b32 v5, 20, v5")
        A(f"v_mul_u32_u24 v5, {3456-288}, v5\nv_lshl_add_u32 v{12+r}, v4, 4, v5")
    A(f"s_mul_i32 s32, s17, {64*3456}\ns_mul_i32 s33, s29, 1152\ns_add_u32 s32, s32, s33\ns_mul_i32 s33, s28, 288\ns_add_u32 s32, s32, s33")
    A(f"s_mul_i32 s33, s28, 5184\nv_lshlrev_b32 v15, 4, v0\nv_subrev_u32 v15, 2048, v15\ns_lshl_b32 s34, s16, 10\ns_add_u32 m0, s34, {F_W}")
    A("s_waitcnt lgkmcnt(0)")
    if CFG.dfold: A(f"s_sleep {CFG.dfold}")
    srd(A, 8, 6, D*3*D*2)
    A(f"buffer_load_dwordx4 v12, s[8:11], s32 offen lds\ns_add_u32 m0, s34, {F_W + 8192}")
    srd(A, 12, 20, H*DH*DH*2)
    A(f"buffer_load_dwordx4 v13, s[8:11], s32 offen lds\ns_add_u32 m0, s34, {F_W + 16384}\ns_cmp_ge_u32 s16, 2\ns_cbranch_scc1 K0_f1")
    A("buffer_load_dwordx4 v14, s[8:11], s32 offen lds")
    A.label("K0_f1")
    A(f"s_add_u32 m0, s34, {F_P - 2048}\ns_cmp_eq_u32 s29, 2\ns_cselect_b32 s3, 1, 6\ns_sub_u32 s35, s16, 2\ns_cmp_ge_u32 s35, s3\ns_cbranch_scc1 K0_f2")
    A("buffer_load_dwordx4 v15, s[12:15], s33 offen lds")
    A.label("K0_f2")
    pt(A, "fi")
    pf_setup()
    if CFG.pfbar: A("s_barrier")
    if CFG.prew:
        A(f"s_lshl_b32 s3, s2, 2\ns_add_u32 s3, s3, s16\ns_add_u32 s3, s3, {F1}\ns_lshl_b32 s3, s3, 7\ns_cmp_lt_u32 s16, 4\ns_cselect_b32 s3, s3, {OOB}")
        clear_flag(A, 3, 90)
    if CFG.tl0: touch_pages(A)
    if CFG.chore: pf_code5(A, "K0_ln")
    npf = (pf_round(0) if CFG.pfpos == 0 else 0) + (1 if CFG.prew else 0) + (1 if CFG.tl0 else 0) + (1 if CFG.chore else 0)
    A("s_lshr_b32 s19, s16, 2\ns_and_b32 s43, s16, 3\ns_lshl_b32 s30, s43, 1\ns_add_u32 s30, s30, s19")
    srd_off(A, 20, 26, WF_OFF, WF_SZ)
    A("v_and_b32 v2, 15, v1\nv_lshrrev_b32 v3, 4, v1")
    A("v_and_b32 v4, 12, v2\nv_add_u32 v4, v4, v2")
    A(f"v_mul_u32_u24 v4, 288, v4\nv_lshl_add_u32 v4, v3, 4, v4\ns_mul_i32 s33, s30, 36\ns_and_b32 s39, s33, 15\ns_sub_u32 s33, s33, s39\ns_add_u32 s33, s33, {F_W}")
    A("v_add_u32 v76, s33, v4\ns_lshr_b32 s39, s39, 1\nv_lshlrev_b32 v11, 3, v3\nv_subrev_u32 v11, s39, v11")
    A("s_mov_b32 s40, 0x00030003\ns_mov_b32 s41, 0x00030003")
    B = 28
    def a_reads():
        pt(A, "f0")
        A(f"s_waitcnt vmcnt({npf})")
        pt(A, "x")
        if CFG.pfpos == 1: pf_round(0)
        A("s_barrier")
        pt(A, "f1")
        for q in range(4):
            A(f"ds_read_b128 {v(12+4*q,4)}, v76 offset:{288*(32*(q>>1) + 4*(q&1))}")
    A("s_cmp_eq_u32 s29, 2\ns_cbranch_scc1 K0_ident")
    A("s_mul_i32 s34, s19, 18\nv_add_u32 v5, s34, v2")
    A(f"s_lshl_b32 s35, s43, 6\ns_add_u32 s35, s35, {P0}")
    for nt in range(2):
        if nt: A("v_add_u32 v5, 16, v5")
        A(f"v_lshrrev_b32 v6, 2, v5\nv_lshlrev_b32 v6, 10, v6\nv_and_b32 v7, 3, v5\nv_lshl_add_u32 v6, v7, 4, v6")
        A(f"v_lshl_add_u32 v6, v3, 8, v6\nv_add_u32 v{52+nt}, s35, v6")
    A("s_lshr_b32 s34, s28, 1\ns_add_u32 s34, s34, 4\ns_and_b32 s35, s28, 1\ns_mul_i32 s35, s35, 9216")
    A("s_cmp_eq_u32 s29, 0\ns_cselect_b32 s34, s34, s28\ns_cselect_b32 s35, s35, 0")
    A(f"s_mov_b32 s42, {f2u(LOG2E)}")
    A(f"v_mul_i32_i24 v5, 36, v11\nv_lshl_add_u32 v5, v2, 1, v5\ns_mul_i32 s33, s30, 648\ns_add_u32 s33, s33, {F_P}\nv_add_u32 v80, s33, v5")
    for q in range(4): A(f"v_add_u32 v5, {2*q}, v11\nv_cmp_gt_u32 {s((36, 44, 58, 60)[q],2)}, 18, v5")
    a_reads()
    for nt in range(2):
        for ii in range(8):
            A(f"ds_read_u16 v{36+8*nt+ii}, v80 offset:{36*ii + 32*nt}")
    A("s_waitcnt lgkmcnt(0)")
    for q in range(8): A(f"v_lshl_or_b32 v{B+q}, v{36+2*q+1}, 16, v{36+2*q}")
    for q in range(8): A(f"v_cndmask_b32 v{B+q}, 0, v{B+q}, {s((36, 44, 58, 60)[q&3],2)}")
    A("s_branch K0_fmm")
    A.label("K0_ident")
    A("v_sub_u32 v5, v2, v11\nv_add_u32 v6, 16, v5")
    A("v_mov_b32 v7, 0x3f80\nv_mov_b32 v8, 0x3f800000")
    for nt in range(2):
        for q in range(4):
            A(f"v_cmp_eq_u32 vcc, {2*q}, v{5+nt}\nv_cmp_eq_u32 s[44:45], {2*q+1}, v{5+nt}\ns_nop 1")
            A(f"v_cndmask_b32 v9, 0, v7, vcc\nv_cndmask_b32 v{B+4*nt+q}, v9, v8, s[44:45]")
    A(f"v_lshlrev_b32 v6, 8, v3\nv_lshl_add_u32 v6, v2, 4, v6\nv_add_u32 v6, {P0}, v6")
    A("s_lshl_b32 s34, s30, 10\nv_add_u32 v52, s34, v6")
    A("s_lshl_b32 s34, s30, 5\ns_add_u32 s34, s34, 8192\nv_add_u32 v53, s34, v6")
    A("s_mov_b32 s34, s28\ns_mov_b32 s35, 9216\ns_mov_b32 s42, 1.0")
    a_reads()
    A("s_waitcnt lgkmcnt(0)")
    A.label("K0_fmm")
    pt(A, "f2")
    A("s_mul_i32 s34, s34, 18\ns_lshl_b32 s33, s17, 1\ns_add_u32 s34, s34, s33\ns_mul_i32 s34, s34, 18432\ns_add_u32 s34, s34, s35")
    DD = 56
    for kbi in range(2):
        for nt in range(2):
            for a in range(2):
                A(f"{MF} {v(DD+16*kbi+8*nt+4*a,4)}, {v(12+8*kbi+4*a,4)}, {v(B+4*nt,4)}, 0")
    seam_pre(A)
    A("s_mov_b32 s43, s42\ns_lshl_b32 s33, s16, 10\nv_lshlrev_b32 v89, 4, v1\ns_and_b32 s3, s16, 1\ns_mul_i32 s35, s3, 9216")
    A(f"s_add_u32 s37, s33, {P0}\nv_add_u32 v90, s37, v89\ns_add_u32 s35, s35, {P0 + 8192}\nv_add_u32 v91, s35, v89")
    A("s_mul_i32 s3, s3, 18432\ns_add_u32 s37, s34, s3\ns_add_u32 s37, s37, 8192\ns_add_u32 s17, s34, s33")
    for kbi in range(2):
        for nt in range(2):
            d0 = DD+16*kbi+8*nt
            for i in range(4): A(f"v_pk_mul_f32 {v(d0+2*i,2)}, {v(d0+2*i,2)}, s[42:43]")
            o = 36 + 8*kbi + 4*nt
            for i in range(4): A(f"v_cvt_pk_bf16_f32 v{o+i}, v{d0+2*i}, v{d0+2*i+1}")
            if nt == 0: A(f"ds_write_b128 v52, {v(o,4)} offset:{9216*kbi}")
    A("s_mov_b64 exec, s[40:41]\nds_write_b128 v53, v[40:43]\nds_write_b128 v53, v[48:51] offset:9216\ns_mov_b64 exec, -1")
    A("s_waitcnt lgkmcnt(0)\ns_barrier\ns_cmp_ge_u32 s16, 4\ns_cbranch_scc1 K0_seam")
    pt(A, "st0")
    for q in range(4): A(f"ds_read_b128 {v(12+4*q,4)}, v90 offset:{9216*(q>>1) + 4096*(q&1)}")
    A("ds_read_b128 v[28:31], v91")
    for q in range(4):
        A(f"s_waitcnt lgkmcnt({4-q})\nbuffer_store_dwordx4 {v(12+4*q,4)}, v89, s[20:23], s17 offen {CFG.auxSt}\ns_add_u32 s17, s17, {4096 if q != 1 else 18432-4096}")
    A("s_branch K0_last")
    A.label("K0_nofold")
    A("s_waitcnt lgkmcnt(0)")
    if CFG.dfold: A(f"s_sleep {CFG.dfold}")
    pf_setup()
    if CFG.chore:
        A("s_cmp_ge_u32 s2, 240\ns_cbranch_scc1 K1_spare\ns_sub_u32 s3, s2, 108\ns_lshl_b32 s3, s3, 3\ns_add_u32 s3, s3, s16\ns_mul_i32 s3, s3, 25\nv_add_lshl_u32 v90, v1, s3, 7")
        A(f"s_bfm_b64 exec, 25, 0\nbuffer_load_dword v{SINK}, v90, s[96:99], 0 offen sc1\ns_mov_b64 exec, -1")
    if CFG.pff and not CFG.chore:
        A(f"s_sub_u32 s3, s2, 240\ns_cmp_ge_u32 s3, 6\ns_cbranch_scc1 K0_nof\ns_lshl_b32 s3, s3, 16\nv_lshl_add_u32 v90, v0, 7, s3\nbuffer_load_dword v{SINK}, v90, s[96:99], 0 offen sc1")
        A.label("K0_nof")
    if CFG.pfc and not CFG.chore:
        A("s_cmp_lt_u32 s2, 248\ns_cbranch_scc1 K0_noc")
        pf_code(A, "K0_ln")
        A.label("K0_noc")
    A("s_cmp_ge_u32 s2, 240\ns_cbranch_scc1 K1_spare")
    pf_round(0)
    A("s_waitcnt lgkmcnt(0)")
    seam_pre(A)
    A("s_waitcnt lgkmcnt(0)\ns_barrier\ns_branch K0_seam")
    A.label("K0_ln")
    pt(A, "fi")
    flag_setup(A)
    wave_id(A, 16)
    A(f"v_lshlrev_b32 v6, 2, v2\nv_add_u32 v6, {P0}, v6")
    A(f"v_mul_u32_u24 v7, {HRS}, v2\nv_lshl_add_u32 v7, v3, 4, v7\nv_add_u32 v7, {K0_HL}, v7")
    srd_off(A, 12, 26, RS_OFF, RS_SZ)
    srd_off(A, 20, 26, HT_OFF, HT_SZ)
    A(f"s_mov_b32 s33, {f2u(1.0/576)}\ns_mov_b32 s34, {f2u(1e-5)}")
    A("v_and_b32 v1, 63, v0\nv_and_b32 v2, 15, v1\nv_lshrrev_b32 v3, 4, v1")
    A(f"s_lshl_b32 s3, s16, 6\ns_and_b32 s35, s16, 1\ns_lshl_b32 s36, s35, 6\nv_lshlrev_b32 v69, 2, v2\nv_add_u32 v68, {P0}, v69\ns_lshl_b32 s17, s44, 7")
    A("v_bfe_u32 v4, v1, 2, 2\nv_lshrrev_b32 v5, 5, v1\nv_lshl_add_u32 v4, v5, 3, v4")
    A(f"v_mul_u32_u24 v4, {HRS}, v4\nv_and_b32 v3, 1, v3\nv_lshl_add_u32 v4, v3, 5, v4\nv_and_b32 v44, 3, v1\nv_lshl_add_u32 v4, v44, 3, v4\nv_add_u32 v4, {K0_HL}, v4")
    A("v_add_u32 v72, s36, v4\nv_add_u32 v71, s3, v4")
    A("v_lshlrev_b32 v2, 4, v2\nv_lshl_add_u32 v2, v5, 8, v2")
    A(f"s_mov_b32 s38, {589824-9216}\ns_lshl_b32 s3, s16, 1\ns_lshl_b32 s36, s35, 1\ns_add_u32 s36, s36, 32")
    for n in range(3):
        A(f"v_add_u32 v4, s{3 if n < 2 else 36}, v3")
        if n == 1: A("v_add_u32 v4, 16, v4")
        A(f"v_mul_u32_u24 v44, 57, v4\nv_lshrrev_b32 v44, 9, v44\nv_lshl_add_u32 v4, v4, 10, v2\nv_mad_u32_u24 v{73+n}, v44, s38, v4")
    A("s_lshr_b32 s18, s44, 1\ns_mul_i32 s18, s18, 9216\ns_and_b32 s19, s44, 1\ns_lshl_b32 s19, s19, 9\ns_add_u32 s18, s18, s19")
    def xp(i): return v(X+2*i, 2)
    if CFG.prew:
        A(f"s_lshl_b32 s3, s2, 7\ns_cmp_eq_u32 s16, 4\ns_cselect_b32 s3, s3, {OOB}")
        clear_flag(A, 3, 90)
    if CFG.tl0: touch_pages(A)
    pt(A, "f0")
    A(f"s_waitcnt vmcnt({(1 if CFG.prew else 0) + (1 if CFG.tl0 else 0)})")
    pt(A, "x")
    for i in range(12):
        A(f"v_lshlrev_b32 v{X+2*i}, 16, v{P+i}\nv_and_b32 v{X+2*i+1}, 0xffff0000, v{P+i}")
    A(f"v_pk_add_f32 v[44:45], {xp(0)}, {xp(1)}\nv_pk_add_f32 v[46:47], {xp(2)}, {xp(3)}")
    for i in range(4, 12): A(f"v_pk_add_f32 {v(44+2*(i&1),2)}, {v(44+2*(i&1),2)}, {xp(i)}")
    A("v_pk_add_f32 v[44:45], v[44:45], v[46:47]\nv_add_f32 v44, v44, v45")
    reduce32(A, [44], 52)
    A("v_mul_f32 v44, s33, v44")
    for i in range(12): A(f"v_pk_add_f32 {xp(i)}, {xp(i)}, v[44:45] op_sel_hi:[1,0] neg_lo:[0,1] neg_hi:[0,1]")
    A(f"v_pk_mul_f32 v[48:49], {xp(0)}, {xp(0)}\nv_pk_mul_f32 v[50:51], {xp(1)}, {xp(1)}")
    for i in range(2, 12): A(f"v_pk_fma_f32 {v(48+2*(i&1),2)}, {xp(i)}, {xp(i)}, {v(48+2*(i&1),2)}")
    A("v_pk_add_f32 v[48:49], v[48:49], v[50:51]\nv_add_f32 v48, v48, v49")
    A("v_cndmask_b32 v48, 0, v48, s[30:31]")
    reduce32(A, [48], 52)
    A("v_mul_f32 v48, s33, v48\nv_add_f32 v44, s34, v48\nv_rsq_f32 v44, v44\nv_mov_b32 v49, s34")
    A("v_mul_f32 v48, v48, v44\nv_fma_f32 v50, v48, v44, v49\nv_rsq_f32 v48, v50")
    A("s_mov_b64 exec, s[30:31]\nv_mul_f32 v50, v50, v48\nv_mul_f32 v48, v48, v44")
    if CFG.gsc: A(f"v_mul_f32 v48, {f2u(GS)}, v48\nv_mul_f32 v50, {f2u(1/GS)}, v50")
    A("ds_write_b32 v6, v50")
    for j in range(3):
        for i in range(4): A(f"v_pk_mul_f32 {v(Q+2*i,2)}, {xp(4*j+i)}, v[48:49] op_sel_hi:[1,0]")
        for i in range(4): A(f"v_cvt_pk_bf16_f32 v{P+4*j+i}, v{Q+2*i}, v{Q+2*i+1}")
        A(f"ds_write_b128 v7, {v(P+4*j,4)} offset:{384*j}")
    A("s_mov_b64 exec, -1\ns_waitcnt lgkmcnt(0)\ns_barrier")
    pt(A, "ln")
    for n in range(2):
        A(f"ds_read_b64_tr_b16 {v(76+4*n,2)}, v71 offset:{512*n}\nds_read_b64_tr_b16 {v(78+4*n,2)}, v71 offset:{512*n + 4*HRS}")
    A(f"ds_read_b64_tr_b16 v[84:85], v72 offset:1024\nds_read_b64_tr_b16 v[86:87], v72 offset:{1024 + 4*HRS}\nds_read_b32 v88, v68")
    A(f"s_cmp_lt_u32 s16, 2\ns_cselect_b32 s3, 0, {OOB}\nv_or_b32 v75, s3, v75")
    for n in range(3):
        A(f"s_waitcnt lgkmcnt({5-2*n})\nbuffer_store_dwordx4 {v(76+4*n,4)}, v{73+n}, s[20:23], s18 offen {CFG.auxSt}")
    A("s_waitcnt lgkmcnt(0)\ns_cmp_lg_u32 s16, 2\ns_cbranch_scc1 K0_nors")
    A(f"s_mov_b64 exec, 0xffff\nbuffer_store_dword v88, v69, s[12:15], s17 offen {CFG.auxSt}\ns_mov_b64 exec, -1")
    A.label("K0_nors")
    pt(A, "st0")
    seam_pre(A)
    A(f"s_cmp_eq_u32 s16, 4\ns_cselect_b32 s49, s49, {OOB}")
    if CFG.hint1:
        A(f"s_cmp_lg_u32 s16, 5\ns_cbranch_scc1 K0_noh\ns_cmp_ge_u32 s44, 8\ns_cbranch_scc1 K0_noh\ns_add_u32 s3, s44, {FH}\ns_lshl_b32 s3, s3, 7")
        raise_flag(A, 3, 4)
        A.label("K0_noh")
    A("s_waitcnt vmcnt(0)\ns_barrier\ns_branch K0_seam")
    A.label("K0_last")
    A("s_waitcnt lgkmcnt(0)\ns_cmp_ge_u32 s16, 2\ns_cbranch_scc1 K0_last2")
    A(f"buffer_store_dwordx4 v[28:31], v89, s[20:23], s37 offen {CFG.auxSt}")
    A.label("K0_last2")
    A("s_waitcnt vmcnt(0)")
    A.label("K0_seam")
    raise_flag(A, 49, 4)
    pt(A, "fl0")
    if CFG.pf1a or CFG.pf1q:
        A(f"s_cmp_lt_u32 s2, {144 if CFG.pf1a else 208}\ns_cbranch_scc1 K0_noa\ns_cmp_ge_u32 s2, 240\ns_cbranch_scc1 K0_noa\ns_cmp_ge_u32 s16, 4\ns_cbranch_scc1 K0_noa")
        A("s_lshr_b32 s47, s2, 3\ns_sub_u32 s47, s47, 18\ns_lshl_b32 s47, s47, 2\ns_add_u32 s47, s47, s16\ns_waitcnt lgkmcnt(0)")
        srd(A, 52, 4, S*F*2)
        pf_w1_col(A, 46)
        pf_w1(A, 52, 46, 47, 48, CFG.pf1a, 1, 88, base=112*CFG.pf1)
        if CFG.pf1q:
            A("s_cmp_lt_u32 s2, 208\ns_cbranch_scc1 K0_noa\ns_sub_u32 s47, s47, 32")
            pf_w1(A, 52, 46, 47, 16, CFG.pf1q, 1, 88, base=112*CFG.pf1)
        if CFG.c3w1:
            A("s_lshr_b32 s3, s46, 8\ns_add_u32 s3, s3, 2\ns_andn2_b32 s3, s3, 3\ns_add_u32 s3, s3, 1\ns_lshl_b32 s3, s3, 8\ns_add_u32 s3, s3, 128")
            A(f"s_lshr_b32 s47, s2, 3\ns_sub_u32 s47, s47, 26\ns_lshl_b32 s47, s47, 2\ns_add_u32 s47, s47, s16\ns_mul_i32 s47, s47, {32*9216}\ns_add_u32 s47, s47, {CFG.c3w1*9216}\ns_add_u32 s47, s47, s3")
            A("s_sub_u32 s3, s3, s46\ns_cmp_lt_u32 s3, 256\ns_cselect_b32 s3, -1, 0\ns_mov_b32 exec_hi, s3")
            A(f"v_and_b32 v88, 31, v1\nv_mul_u32_u24 v88, 9216, v88\nv_lshrrev_b32 v89, 5, v1\nv_lshl_add_u32 v88, v89, 10, v88\nbuffer_load_dword v{SINK}, v88, s[52:55], s47 offen\ns_mov_b64 exec, -1")
        A.label("K0_noa")
    if CFG.tlb:
        A(f"s_cmp_lg_u32 s16, 1\ns_cbranch_scc1 K0_notlb\nv_and_b32 v4, 63, v0\nv_lshlrev_b32 v4, {CFG.tlb}, v4\ns_waitcnt lgkmcnt(0)")
        for ptr, nb in ((4, S*F*2), (50, S*F*2), (26, FLAG_OFF)):
            srd(A, 8, ptr, nb)
            for q in range(-(-nb // (64 << CFG.tlb))):
                A(f"s_mov_b32 s3, {q*(64 << CFG.tlb)}\nbuffer_load_dword v{SINK}, v4, s[8:11], s3 offen sc1")
        A.label("K0_notlb")
def softmax18(A, PR, dst, C):
    vals = [r + i for r in PR for i in range(2)]
    EP, EN, MX, MN = 8, 26, 44, 46
    A(f"v_max3_f32 v{MX}, v{vals[0]}, v{vals[1]}, v{vals[2]}\nv_min3_f32 v{MN}, v{vals[0]}, v{vals[1]}, v{vals[2]}")
    for i in range(3, 17, 2):
        A(f"v_max3_f32 v{MX}, v{MX}, v{vals[i]}, v{vals[i+1]}\nv_min3_f32 v{MN}, v{MN}, v{vals[i]}, v{vals[i+1]}")
    A(f"v_max_f32 v{MX}, v{MX}, v{vals[17]}\nv_min_f32 v{MN}, v{MN}, v{vals[17]}")
    A(f"v_mul_f32 v{MX}, v{MX}, v{C}\nv_mul_f32 v{MN}, v{MN}, v{C}")
    for p in range(9):
        A(f"v_pk_fma_f32 {v(EP+2*p,2)}, {v(PR[p],2)}, {v(C,2)}, {v(MX,2)} op_sel_hi:[1,0,0] neg_lo:[0,0,1] neg_hi:[0,0,1]")
        A(f"v_pk_fma_f32 {v(EN+2*p,2)}, {v(PR[p],2)}, {v(C,2)}, {v(MN,2)} op_sel_hi:[1,0,0] neg_lo:[1,0,0] neg_hi:[1,0,0]")
    for i in range(36): A(f"v_exp_f32 v{EP+i}, v{EP+i}")
    A(f"v_pk_add_f32 {v(MX,2)}, {v(EP,2)}, {v(EP+2,2)}\nv_pk_add_f32 {v(MN,2)}, {v(EN,2)}, {v(EN+2,2)}")
    for p in range(2, 9):
        A(f"v_pk_add_f32 {v(MX,2)}, {v(MX,2)}, {v(EP+2*p,2)}\nv_pk_add_f32 {v(MN,2)}, {v(MN,2)}, {v(EN+2*p,2)}")
    A(f"v_add_f32 v{MX}, v{MX}, v{MX+1}\nv_add_f32 v{MN}, v{MN}, v{MN+1}")
    A(f"v_rcp_f32 v{MX}, v{MX}\nv_rcp_f32 v{MN}, v{MN}\ns_nop 0")
    for p in range(9):
        A(f"v_pk_mul_f32 {v(EP+2*p,2)}, {v(EP+2*p,2)}, {v(MX,2)} op_sel_hi:[1,0]")
        A(f"v_pk_mul_f32 {v(EN+2*p,2)}, {v(EN+2*p,2)}, {v(MN,2)} op_sel_hi:[1,0]")
    for m in range(18): A(f"v_cvt_pk_bf16_f32 v{dst(m)}, v{EP+2*m}, v{EP+2*m+1}")

def pairs(st, j, e):
    return [accr(st, (9*e+p) >> 1, j) + 2*((9*e+p) & 1) for p in range(9)]

PHI_RS = 608
V_LDS = 128*PHI_RS
def gen_k1(A):
    A("s_and_b32 s17, s2, 7\ns_lshr_b32 s18, s2, 3")
    A("s_cmp_ge_u32 s18, 18\ns_cbranch_scc1 K1_notg1")
    A("s_mul_i32 s19, s17, 18\ns_add_u32 s19, s19, s18\ns_and_b32 s22, s19, 3\ns_lshr_b32 s23, s19, 2")
    if CFG.swap13: A("s_or_b32 s19, s23, 1\ns_cmp_eq_u32 s19, 13\ns_cselect_b32 s19, 1, 0\ns_xor_b32 s23, s23, s19")
    if CFG.G1: A(f"s_add_u32 s59, s22, s23\ns_and_b32 s59, s59, {min(CFG.G1, 4) - 1}\ns_mul_i32 s59, s59, {max(CFG.G1//4, 1)}")
    A("s_waitcnt lgkmcnt(0)")
    A("s_cmp_ge_u32 s16, 6\ns_cbranch_scc1 K1_ldW\ns_cmp_ge_u32 s16, 4\ns_cbranch_scc1 K1_ldP")
    if CFG.prio1: A(f"s_setprio {CFG.prio1}")
    srd(A, 32, 6, F*2)
    srd_off(A, 36, 26, U_OFF, U_SZ)
    A("v_bfe_u32 v8, v0, 4, 2\nv_lshlrev_b32 v8, 3, v8")
    A("s_lshl_b32 s3, s23, 8\ns_lshl_b32 s17, s16, 6\ns_add_u32 s3, s3, s17")
    A("buffer_load_dwordx2 v[12:13], v8, s[32:35], s3 offen\nbuffer_load_dwordx2 v[14:15], v8, s[32:35], s3 offen offset:32")
    emit_compute_addr(A, 16, "std")
    A("s_waitcnt vmcnt(0)")
    if CFG.pf1b:
        A(f"s_cmp_ge_u32 s2, 128\ns_cbranch_scc1 K1_nopf\ns_and_b32 s47, s2, 0x78\ns_lshr_b32 s47, s47, 1\ns_add_u32 s47, s47, s16\ns_add_u32 s47, s47, {CFG.pf1}")
        srd(A, 52, 4, S*F*2)
        pf_w1_col(A, 46)
        pf_w1(A, 52, 46, 47, 64, CFG.pf1b, 1, 16)
        A.label("K1_nopf")
    for j in range(2):
        A(f"v_lshlrev_b32 v{V_ACC+j*4}, 16, v{12+2*j}\nv_and_b32 v{V_ACC+j*4+1}, 0xffff0000, v{12+2*j}")
        A(f"v_lshlrev_b32 v{V_ACC+j*4+2}, 16, v{13+2*j}\nv_and_b32 v{V_ACC+j*4+3}, 0xffff0000, v{13+2*j}")
    if CFG.gsc:
        for i in range(8): A(f"v_mul_f32 v{V_ACC+i}, {f2u(GS)}, v{V_ACC+i}")
    for i in range(8, 72, 2): A(f"v_pk_mov_b32 {v(V_ACC+i,2)}, {v(V_ACC+i%8,2)}, {v(V_ACC+i%8,2)} op_sel:[0,1]")
    A("s_mul_i32 s17, s22, 144\ns_lshl_b32 s3, s23, 2\ns_add_u32 s17, s17, s3\ns_add_u32 s17, s17, s16")
    A(f"s_add_u32 s49, s17, {FU}\ns_lshl_b32 s49, s49, 7\ns_mul_i32 s17, s17, 9216")
    if CFG.hint2 >= 0:
        A(f"s_mul_i32 s48, s22, 36\ns_add_u32 s48, s48, s23\ns_add_u32 s48, s48, {FG}\ns_lshl_b32 s48, s48, 7\ns_cmp_eq_u32 s16, 0\ns_cselect_b32 s48, s48, {OOB}")
    emit_compute_loop(A, 32, "std", (True, True), 20, first=lambda: (pt(A, "b1"), clear_flag(A, 49, 170)))
    A("s_barrier")
    pt(A, "m1")
    c0 = -2*math.sqrt(2/math.pi)*LOG2E; c1 = c0*0.044715
    A(f"s_mov_b32 s52, {f2u(c1)}\ns_mov_b32 s53, {f2u(c1)}\nv_mov_b32 v8, {f2u(c0)}\nv_mov_b32 v9, {f2u(c0)}")
    if CFG.own:
        A(f"s_lshr_b32 s3, s16, 1\ns_mul_i32 s3, s3, {STAGE - 18432}\ns_mul_i32 s18, s16, 9216\ns_add_u32 s3, s3, s18\nv_add_u32 v10, s3, v{V_PA}")
    else: A("s_nop 2")
    if CFG.gsc:
        A(f"s_mov_b32 s52, {f2u(GC0/GS)}\ns_mov_b32 s53, {f2u(GC0/GS)}\ns_mov_b32 s54, {f2u(GS)}\ns_mov_b32 s55, {f2u(GS)}")
        def TT(t): return 16 + 8*(t % 3)
        def pre(t):
            a0 = V_ACC + t*8; T = TT(t)
            return [f"v_pk_fma_f32 {v(T+2*p,2)}, {v(a0+2*p,2)}, {v(a0+2*p,2)}, s[52:53]" for p in range(4)] + \
                   [f"v_pk_mul_f32 {v(T+2*p,2)}, {v(T+2*p,2)}, {v(a0+2*p,2)} neg_lo:[1,0] neg_hi:[1,0]" for p in range(4)]
        def post(t):
            a0 = V_ACC + t*8; T = TT(t)
            return [f"v_pk_mul_f32 {v(T+2*p,2)}, {v(T+2*p,2)}, {v(a0+2*p,2)}" for p in range(4)] + \
                   [f"v_cvt_pk_bf16_f32 v{44+4*t+p}, v{T+2*p}, v{T+2*p+1}" for p in range(4)]
        def out(t):
            if t and t % 4 == 0: A("s_add_u32 s17, s17, 4096")
            A(f"buffer_store_dwordx4 {v(44+4*t,4)}, v{V_PA}, s[36:39], s17 offen offset:{(t%4)*1024} {CFG.auxSt}")
            if CFG.own: A(f"ds_write_b128 v10, {v(44+4*t,4)} offset:{t*1024}")
        for x in pre(0): A(x)
        for t in range(9):
            T = TT(t)
            f1 = post(t-1) if t else [None]*8
            for e in range(8):
                A(f"v_exp_f32 v{T+e}, v{T+e}")
                if f1[e]: A(f1[e])
            if t: out(t-1)
            for p in range(4): A(f"v_pk_fma_f32 {v(T+2*p,2)}, {v(T+2*p,2)}, s[54:55], s[54:55]")
            f2 = pre(t+1) if t < 8 else [None]*8
            for e in range(8):
                A(f"v_rcp_f32 v{T+e}, v{T+e}")
                if f2[e]: A(f2[e])
        for x in post(8): A(x)
        out(8)
        assert CFG.hint2 < 0 and not CFG.glag
    else:
        for t in range(9):
            a0 = V_ACC + t*8
            T = 16 + (t % 2) * 12
            for p in range(4): A(f"v_pk_mul_f32 {v(T+2*p,2)}, {v(a0+2*p,2)}, {v(a0+2*p,2)}")
            for p in range(4): A(f"v_pk_fma_f32 {v(T+2*p,2)}, {v(T+2*p,2)}, s[52:53], v[8:9]")
            for p in range(4): A(f"v_pk_mul_f32 {v(T+2*p,2)}, {v(T+2*p,2)}, {v(a0+2*p,2)}")
            for e in range(8): A(f"v_exp_f32 v{T+e}, v{T+e}")
            for p in range(4): A(f"v_pk_add_f32 {v(T+2*p,2)}, {v(T+2*p,2)}, 1.0 op_sel_hi:[1,0]")
            for e in range(8): A(f"v_rcp_f32 v{T+e}, v{T+e}")
            for p in range(4): A(f"v_pk_mul_f32 {v(T+2*p,2)}, {v(T+2*p,2)}, {v(a0+2*p,2)}")
            for p in range(4): A(f"v_cvt_pk_bf16_f32 v{44+4*t+p}, v{T+2*p}, v{T+2*p+1}")
            for tt in ([] if t < CFG.glag else (range(t+1) if t == CFG.glag else [t])):
                if tt and tt % 4 == 0: A("s_add_u32 s17, s17, 4096")
                A(f"buffer_store_dwordx4 {v(44+4*tt,4)}, v{V_PA}, s[36:39], s17 offen offset:{(tt%4)*1024} {CFG.auxSt}")
            if CFG.own: A(f"ds_write_b128 v10, {v(44+4*t,4)} offset:{t*1024}")
            if t == CFG.hint2: raise_flag(A, 48, 40)
    A("s_branch K2_c")
    def g_post():
        A("s_lshr_b32 s49, s2, 3\ns_lshl_b32 s49, s49, 2\ns_add_u32 s49, s49, s16\ns_sub_u32 s49, s49, 4")
        pf_w2(A, 50, 49, 72, CFG.pf2g)
    post = (CFG.pf2g, g_post, CFG.pf2pos) if CFG.pf2g else None
    lend = inl = None
    if CFG.w1at:
        def inl(i, cnt):
            if CFG.w1b and i == CFG.w1b % 10:
                L = A.newlabel("Lv")
                srd_off(A, 92, 26, WOT_OFF, WOT_SZ)
                A(f"s_cmp_lg_u32 s20, {CFG.w1b // 10}\ns_cbranch_scc1 {L}")
                wot_chunk(A, CFG.w1n - 1)
                A.label(L)
            if i not in (CFG.w1i - 2, CFG.w1i): return
            L = A.newlabel("Lv")
            A(f"s_cmp_lg_u32 s20, {CFG.w1at}\ns_cbranch_scc1 {L}")
            if i != CFG.w1i: A("buffer_load_dwordx2 v[38:39], v36, s[96:99], 0 offen sc1")
            else:
                A(f"s_waitcnt vmcnt({2*cnt})")
                wot_regs(A, True, load=False)
                for k in range(CFG.w1n - (1 if CFG.w1b else 0)): wot_chunk(A, k)
            A.label(L)
    if CFG.wreg in (1, 2):
        post = (9*CFG.wn, lambda: wot_regs(A, True), CFG.wpos)
        def lend():
            L = A.newlabel("Lv")
            A(f"s_cmp_lg_u32 s20, 3\ns_cbranch_scc1 {L}")
            A("buffer_load_dwordx2 v[38:39], v36, s[96:99], 0 offen sc1")
            if CFG.ownpf:
                A(f"s_cmp_lt_u32 s16, 6\ns_cbranch_scc1 {L}")
                srd(A, 52, 50, S*F*2)
                A("s_lshl_b32 s3, s23, 1\ns_and_b32 s57, s22, 1\ns_add_u32 s3, s3, s57\ns_lshl_b32 s3, s3, 1\ns_add_u32 s3, s3, s17\ns_lshl_b32 s3, s3, 17")
                A("s_and_b32 s57, s2, 1\ns_lshl_b32 s57, s57, 11\ns_add_u32 s3, s3, s57\ns_lshr_b32 s57, s2, 5\ns_lshl_b32 s57, s57, 8\ns_add_u32 s3, s3, s57")
                A(f"v_bfe_u32 v30, v0, 1, 5\nv_lshlrev_b32 v30, 12, v30\nv_and_b32 v31, 1, v0\nv_lshl_add_u32 v30, v31, 7, v30\nbuffer_load_dword v{SINK}, v30, s[52:55], s3 offen")
            A.label(L)
    A.label("K1_ldP")
    if CFG.wreg in (1, 2) or CFG.w1at: wot_flagaddr(A)
    srd_off(A, 8, 26, HT_OFF, HT_SZ)
    A(f"s_sub_u32 s17, s16, 4\ns_mul_i32 s21, s22, {64*9216}")
    def wait_ln():
        A(f"v_and_b32 v8, 62, v0\nv_and_b32 v9, 1, v0\nv_lshl_add_u32 v8, v8, 1, v9\ns_lshl_b32 s3, s17, 1\ns_add_u32 s3, s3, {F0+112}\nv_add_lshl_u32 v8, v8, s3, 7")
        if CFG.dl0: A(f"s_sleep {CFG.dl0}")
        if CFG.dlf: A(f"s_cmp_ge_u32 s2, 112\ns_cbranch_scc1 K1_nodl\ns_sleep {CFG.dlf}\nK1_nodl:")
        if CFG.hint1: A(f"s_and_b32 s3, s2, 7\ns_add_u32 s3, s3, {FH}\ns_lshl_b32 s3, s3, 7\nv_mov_b32 v9, s3")
        poll2(A, 8, 10, CFG.sl0a, CFG.sl0, None, 9 if CFG.hint1 else None)
        pt(A, "go1")
    DBG["k1P"] = True; DBG["koff"] = CFG.koff
    emit_loader_lin(A, 32, 9, POFF, 17, 8, 21, 20, 18, CFG.auxP, CFG.G1, post=post, pre=wait_ln, loopend=lend, inloop=inl)
    DBG["k1P"] = False
    A("s_branch K1_ldseam")
    A.label("K1_ldW")
    srd(A, 12, 4, S*F*2)
    A("s_sub_u32 s17, s16, 6\ns_lshl_b32 s21, s23, 8")
    emit_loader_W(A, 32, "std", 17, 12, 21, 9216, 20, 18, CFG.auxW1, CFG.G1, post=post, loopend=lend, mid=(lambda: wot_flagaddr(A)) if CFG.wreg in (1, 2) or CFG.w1at else None, inloop=inl)
    DBG["koff"] = 0
    A.label("K1_ldseam")
    A(f"s_barrier\ns_mov_b32 s49, {OOB}\ns_mov_b32 s24, s23\ns_branch K2_ld")
    A.label("K1_notg1")
    A("s_sub_u32 s18, s18, 18\ns_and_b32 s22, s18, 3\ns_lshr_b32 s19, s17, 1\ns_lshl_b32 s19, s19, 2\ns_add_u32 s22, s22, s19")
    A("s_lshr_b32 s18, s18, 2\ns_and_b32 s17, s17, 1\ns_lshl_b32 s19, s17, 1\ns_add_u32 s23, s19, s18\ns_add_u32 s17, s17, 4")
    A("s_cmp_eq_u32 s18, 2\ns_cselect_b32 s23, s17, s23")
    if CFG.GA: A(f"s_add_u32 s59, s22, s18\ns_and_b32 s59, s59, 3\ns_mul_i32 s59, s59, {CFG.GA}\ns_lshr_b32 s59, s59, 2")
    A("s_waitcnt lgkmcnt(0)")
    A("s_cmp_ge_u32 s16, 6\ns_cbranch_scc1 K1_ldX\ns_cmp_ge_u32 s16, 4\ns_cbranch_scc1 K1_ldF")
    emit_compute_addr(A, 16, "lin")
    for i in range(0, 144, 2): A(f"v_pk_mov_b32 {v(V_ACC+i,2)}, 0, 0")
    srd_off(A, 32, 26, RS_OFF, RS_SZ)
    A("s_lshl_b32 s30, s22, 2\ns_add_u32 s30, s30, s16\ns_lshl_b32 s30, s30, 8\nv_and_b32 v252, 15, v1\nv_lshlrev_b32 v252, 2, v252\nv_and_b32 v253, 48, v1")
    def ld_scale():
        pt(A, "b1")
        for j in range(2):
            A(f"buffer_load_dword v{240+2*j}, v252, s[32:35], s30 offen offset:{128*j} sc1\nbuffer_load_dwordx4 {v(244+4*j,4)}, v253, s[32:35], s30 offen offset:{128*j} sc1")
    A("s_cmp_ge_u32 s23, 4\ns_cbranch_scc1 K1_q")
    HO = V_LDS + 36864
    A(f"s_mul_i32 s3, s16, 9216\ns_add_u32 s3, s3, {HO}\nv_add_u32 v254, s3, v{V_PA}")
    emit_compute_loop(A, 18, "lin", (False, True), 20, first=ld_scale, lastfill=[f"ds_write_b128 v254, {acc(0,t,1)} offset:{t*1024}" for t in range(9)])
    pt(A, "m1")
    A(f"v_subrev_u32 v5, 36864, v254\ns_waitcnt vmcnt(0) lgkmcnt(0)\ns_barrier")
    QB = 48
    for t in range(9):
        o = 84 + 4*(t % 3)
        for j in range(2):
            r = accr(1, t, j)
            A(f"v_pk_mul_f32 {v(r,2)}, {v(r,2)}, {v(244+4*j,2)}\nv_pk_mul_f32 {v(r+2,2)}, {v(r+2,2)}, {v(246+4*j,2)}")
            A(f"v_cvt_pk_bf16_f32 v{o+2*j}, v{r}, v{r+1}\nv_cvt_pk_bf16_f32 v{o+2*j+1}, v{r+2}, v{r+3}")
        A(f"ds_write_b128 v5, {v(o,4)} offset:{t*1024}")
    if CFG.prew:
        A(f"s_cmp_lg_u32 s16, 0\ns_cbranch_scc1 K1_kvsm\ns_lshl_b32 s3, s23, 4\ns_add_u32 s3, s3, s22\ns_add_u32 s3, s3, {FP}\ns_lshl_b32 s3, s3, 7")
        clear_flag(A, 3, 8)
        A(f"s_mul_i32 s3, s23, 12\ns_add_u32 s3, s3, s22\ns_add_u32 s3, s3, {FK}\ns_lshl_b32 s3, s3, 7\ns_cmp_lt_u32 s22, 12\ns_cselect_b32 s3, s3, {OOB}")
        clear_flag(A, 3, 8)
    A.label("K1_kvsm")
    A("s_and_b32 s30, s16, 3\ns_lshr_b32 s31, s16, 2\nv_and_b32 v2, 15, v1\nv_lshrrev_b32 v3, 4, v1")
    A(f"s_lshl_b32 s3, s30, 1\ns_add_u32 s33, s3, s31\ns_lshl_b32 s3, s33, 4\nv_add_u32 v4, s3, v2\nv_mul_u32_u24 v4, {PHI_RS}, v4\nv_mul_u32_u24 v5, 144, v3\nv_add_u32 v4, v4, v5")
    for e in range(2):
        softmax18(A, pairs(0, 0, e), lambda m: QB + 18*e + m, 240)
        for q in (range(4) if e == 0 else range(4, 9)): A(f"ds_write_b128 v4, {v(QB+4*q,4)} offset:{16*q}")
    A(f"v_lshrrev_b32 v6, 2, v1\nv_mul_u32_u24 v6, {PHI_RS}, v6\nv_and_b32 v7, 3, v1\nv_lshl_add_u32 v6, v7, 3, v6")
    A("s_mul_i32 s3, s33, 72\nv_add_u32 v6, s3, v6")
    A("s_lshl_b32 s3, s30, 3\nv_subrev_u32 v7, s3, v6")
    A(f"v_add_u32 v8, {64*PHI_RS}, v6\nv_add_u32 v9, {64*PHI_RS}, v7")
    A(f"s_lshl_b32 s3, s33, 10\ns_add_u32 s3, s3, {V_LDS}\nv_lshlrev_b32 v10, 4, v1\nv_add_u32 v10, s3, v10")
    A(f"v_lshlrev_b32 v11, 8, v3\nv_and_b32 v12, 1, v2\nv_lshl_add_u32 v11, v12, 4, v11")
    A(f"s_lshl_b32 s3, s33, 5\ns_add_u32 s3, s3, {V_LDS + 8192}\nv_add_u32 v11, s3, v11")
    A("s_mov_b32 s40, 0x00030003\ns_mov_b32 s41, 0x00030003\nv_mov_b32 v12, 0x3f803f80")
    srd_off(A, 36, 26, KVP_OFF, KVP_SZ)
    A("s_lshl_b32 s17, s22, 2\ns_add_u32 s17, s17, s23\ns_mul_i32 s17, s17, 24576")
    A("s_lshl_b32 s3, s31, 10\ns_add_u32 s19, s17, s3\ns_add_u32 s29, s19, 22528\ns_add_u32 s19, s19, 16384")
    A("s_lshr_b32 s18, s33, 2\ns_lshl_b32 s18, s18, 11\ns_and_b32 s3, s33, 3\ns_lshl_b32 s3, s3, 8\ns_add_u32 s18, s18, s3\ns_add_u32 s28, s17, s18\ns_add_u32 s28, s28, 18432")
    A("s_lshl_b32 s18, s33, 11\ns_add_u32 s17, s17, s18")
    A("v_lshlrev_b32 v4, 6, v3\nv_lshl_add_u32 v4, v2, 4, v4\nv_lshlrev_b32 v2, 4, v1")
    A("s_lshl_b32 s18, s30, 4\ns_lshl_b64 s[42:43], 0xffff, s18\ns_mov_b32 s44, 0x000f000f\ns_mov_b32 s45, 0x000f000f")
    A("s_waitcnt lgkmcnt(0)\ns_barrier")
    pt(A, "go1")
    DK, FR = 16, 96
    def afr(ks, T): return FR + ks*20 + T*4
    def bfr(ks, mt): return FR + ks*20 + 12 + mt*4
    def dk(T, mt): return DK + (mt*3 + T)*4
    def kreads(ks):
        A(f"ds_read_b128 {v(bfr(ks,1),4)}, v11 offset:{ks*9216}\nds_read_b128 {v(bfr(ks,0),4)}, v10 offset:{ks*9216}")
        for T in range(3):
            a = (7 if T == 2 else 6) + (2 if ks >= 2 else 0)
            off = (ks & 1)*32*PHI_RS + T*32
            A(f"ds_read_b64_tr_b16 {v(afr(ks,T),2)}, v{a} offset:{off}\nds_read_b64_tr_b16 {v(afr(ks,T)+2,2)}, v{a} offset:{off + 16*PHI_RS}")
    kreads(0)
    for ks in range(4):
        if ks < 3: kreads(ks+1)
        A(f"s_waitcnt lgkmcnt({8 if ks < 3 else 0})")
        for i in range(4): A(f"v_cndmask_b32 v{bfr(ks,1)+i}, v12, v{bfr(ks,1)+i}, s[40:41]")
        for mt in range(2):
            for T in range(3):
                A(f"{MF} {v(dk(T,mt),4)}, {v(afr(ks,T),4)}, {v(bfr(ks,mt),4)}, {0 if ks == 0 else v(dk(T,mt),4)}")
    A("s_nop 4")
    for T in range(2): A(f"buffer_store_dwordx4 {v(dk(T,0),4)}, v2, s[36:39], s17 offen offset:{T*1024} sc1")
    A(f"s_mov_b64 exec, s[42:43]\nbuffer_store_dwordx4 {v(dk(2,0),4)}, v2, s[36:39], s19 offen sc1")
    A("s_mov_b64 exec, s[44:45]")
    for T in range(2): A(f"buffer_store_dwordx4 {v(dk(T,1),4)}, v4, s[36:39], s28 offen offset:{T*1024} sc1")
    A(f"s_and_b64 exec, s[42:43], s[44:45]\nbuffer_store_dwordx4 {v(dk(2,1),4)}, v4, s[36:39], s29 offen sc1")
    A("s_mov_b64 exec, -1")
    A(f"s_lshl_b32 s17, s23, 4\ns_add_u32 s17, s17, {FP}\ns_add_u32 s18, s17, s22\ns_lshl_b32 s18, s18, 7\ns_mov_b32 s49, {OOB}")
    srd_off(A, 44, 26, KVF_OFF, KVF_SZ)
    A("s_waitcnt vmcnt(0)\ns_barrier")
    pt(A, "kvp")
    A("s_cmp_ge_u32 s16, 4\ns_cbranch_scc1 K2_ld\ns_cmp_lg_u32 s16, 0\ns_cbranch_scc1 K2_c")
    raise_flag(A, 18, 4)
    A("s_cmp_ge_u32 s22, 12\ns_cbranch_scc1 K2_c")
    A("v_and_b32 v3, 15, v1\nv_add_lshl_u32 v3, v3, s17, 7")
    poll(A, 3, 4, CFG.slk)
    A("s_mul_i32 s18, s23, 12\ns_add_u32 s18, s18, s22")
    A(f"s_add_u32 s49, s18, {FK}\ns_lshl_b32 s49, s49, 7\ns_lshl_b32 s17, s18, 11\ns_lshl_b32 s18, s18, 10")
    A("s_cmp_eq_u32 s22, 11\ns_cselect_b64 exec, 0xffff, -1")
    for tb in range(16):
        A(f"buffer_load_dwordx4 {v(8+8*tb,4)}, v2, s[36:39], s17 offen sc1\nbuffer_load_dwordx4 {v(12+8*tb,4)}, v2, s[36:39], s17 offen offset:1024 sc1")
        A(f"s_add_u32 s17, s17, {48*2048}")
    for tb in range(1, 16):
        A(f"s_waitcnt vmcnt({2*(15-tb)})")
        for p in range(4): A(f"v_pk_add_f32 {v(8+2*p,2)}, {v(8+2*p,2)}, {v(8+8*tb+2*p,2)}")
    for p in range(4): A(f"v_cvt_pk_bf16_f32 v{4+p}, v{8+2*p}, v{9+2*p}")
    A(f"buffer_store_dwordx4 v[4:7], v2, s[44:47], s18 offen {CFG.auxSt}")
    A("s_mov_b64 exec, -1\ns_waitcnt vmcnt(0)")
    raise_flag(A, 49, 8)
    A(f"s_mov_b32 s49, {OOB}\ns_branch K2_c")
    A.label("K1_q")
    emit_compute_loop(A, 18, "lin", (False, False), 20, first=ld_scale)
    A("s_waitcnt vmcnt(0)")
    A("s_barrier")
    pt(A, "m1")
    A("v_and_b32 v6, 15, v1\nv_lshrrev_b32 v7, 4, v1\nv_lshlrev_b32 v3, 11, v7\nv_lshl_add_u32 v3, v6, 4, v3")
    A(f"s_lshr_b32 s3, s16, 1\ns_mul_i32 s3, s3, {STAGE - 18432}\ns_mul_i32 s17, s16, 9216\ns_add_u32 s3, s3, s17")
    A(f"v_add_u32 v3, s3, v3\nv_add_u32 v4, s3, v{V_PA}")
    for st in range(2):
        for j in range(2):
            for e in range(2):
                softmax18(A, pairs(st, j, e), lambda m: (QB + e*16 + 4*((m & 7) >> 1) + (m & 1) + 2*(m >> 3)) if m < 16 else QB + 32 + 2*e + m - 16, 240 + 2*j)
                for gg in range(4): A(f"ds_write_b128 v3, {v(QB+e*16+4*gg,4)} offset:{e*1024 + gg*256}")
            for b in range(8): A(f"ds_read_b128 {acc(st,b,j)}, v4 offset:{b*1024}")
            for i in range(2): A(f"v_pk_mov_b32 {v(accr(st,8,j)+2*i,2)}, {v(QB+32+2*i,2)}, {v(QB+32+2*i,2)} op_sel:[0,1]")
    pt(A, "kvp")
    KVB, KR, TM, MB, CI = 8, 40, 56, 88, 240
    A(f"v_add_u32 v4, {P0}, v{V_PA}\nv_cmp_eq_u32 vcc, 0, v6\nv_cmp_eq_u32 s[40:41], 4, v6\nv_lshlrev_b32 v7, 6, v7\ns_mov_b32 s3, {P0 + 9216}")
    A("v_cndmask_b32 v5, 32, 0, vcc\nv_cndmask_b32 v5, v5, 16, s[40:41]\nv_add3_u32 v5, v5, v7, s3")
    A("s_lshl_b32 s56, s22, 2\ns_add_u32 s56, s56, s16\ns_lshl_b32 s56, s56, 1\ns_add_u32 s56, s56, s23\ns_sub_u32 s56, s56, 4")
    A(f"s_add_u32 s49, s56, {FO}\ns_lshl_b32 s49, s49, 7\ns_mul_i32 s56, s56, 20480\ns_add_u32 s57, s56, 10240")
    k2_enter(A)
    k2_setup(A, False)
    for hp in range(4): A(f"s_mov_b32 s{8+2*hp}, {0xffff << (16*hp) & 0xffffffff}\ns_mov_b32 s{9+2*hp}, {(0xffff << (16*hp)) >> 32}")
    A(f"v_mov_b32 v{MB+2}, 0\nv_mov_b32 v{MB+3}, 0\nv_mov_b32 v{CI}, 0\nv_mov_b32 v{CI+1}, {f2u(1e-6)}\nv_mov_b32 v{CI+2}, 0\nv_mov_b32 v{CI+3}, 0")
    A(f"v_add_u32 v6, 4096, v{V_PA}\nv_add_u32 v7, 8192, v{V_PA}")
    def kvf(g, e, mt): return KVB + 16*(g & 1) + 8*e + 4*mt
    def kv_reads(g):
        st, hp = g >> 2, g & 3
        return [f"ds_read_b128 {v(kvf(g,e,mt),4)}, v{4+mt} offset:{st*12288 + (2*hp+e)*(256 if mt else 1024)}" for e in range(2) for mt in range(2)]
    A("s_waitcnt lgkmcnt(0)\ns_barrier")
    pt(A, "kvf")
    for x in kv_reads(0): A(x)
    for st in range(2):
        for mt in range(2): A(f"ds_read_b128 {v(KR+8*st+4*mt,4)}, v{4+mt} offset:{st*12288 + 8*(256 if mt else 1024)}")
    def o_store(st, u, j):
        b = 2*u + j
        return f"buffer_store_dwordx4 {acc(st,u,j)}, v{(V_PA,6,7)[b//4]}, s[40:43], s{56+st} offen offset:{(b%4)*1024} {CFG.auxSt}"
    def o_valu(k):
        st, hp, j = k >> 3, (k >> 1) & 3, k & 1
        T = TM + 16*j
        L = [f"v_rcp_f32 v{T+8*e+6}, v{T+8*e+5}" for e in range(2)] + ["s_nop 0"]
        for e in range(2):
            L += [f"v_pk_mul_f32 {v(T+8*e+2*q,2)}, {v(T+8*e+2*q,2)}, {v(T+8*e+6,2)} op_sel_hi:[1,0]" for q in range(2)]
            L += [f"v_mul_f32 v{T+8*e+4}, v{T+8*e+4}, v{T+8*e+6}"]
        vals = [T+8*e+i for e in range(2) for i in range(5)]
        for p in range(5):
            pi = 5*hp + p
            L.append(f"v_cvt_pk_bf16_f32 v{accr(st, pi >> 2, j) + (pi & 3)}, v{vals[2*p]}, v{vals[2*p+1]}")
        if CFG.ost == 0: L += [o_store(st, u, j) for u in ([hp] if hp < 3 else [3, 4])]
        return L
    if CFG.ofine:
        def dec(n): return n >> 4, (n >> 2) & 3, (n >> 1) & 1, n & 1
        def mask(n):
            st, hp, j, e = dec(n)
            return [f"v_cndmask_b32 v{MB+4*e+i}, 0, v{accr(st,8,j)+2*e+i}, {s(8+2*hp,2)}" for i in range(2)]
        def scale(n):
            st, hp, j, e = dec(n)
            T = TM + 16*j; U = T + 8*e
            L = [f"v_rcp_f32 v{U+6}, v{U+5}", None]
            L += [f"v_pk_mul_f32 {v(U+2*q,2)}, {v(U+2*q,2)}, {v(U+6,2)} op_sel_hi:[1,0]" for q in range(2)] + [f"v_mul_f32 v{U+4}, v{U+4}, v{U+6}"]
            vals = [T+8*x+i for x in range(2) for i in range(5)]
            for p in ((0, 1) if e == 0 else (2, 3, 4)):
                pi = 5*hp + p
                L.append(f"v_cvt_pk_bf16_f32 v{accr(st, pi >> 2, j) + (pi & 3)}, v{vals[2*p]}, v{vals[2*p+1]}")
            if e: L += [o_store(st, u, j) for u in ([hp] if hp < 3 else [3, 4])]
            return L
        for x in mask(0): A(x)
        for n in range(32):
            st, hp, j, e = dec(n)
            g = n >> 2; U = TM + 16*j + 8*e
            M = [f"{MF} {v(U+4*mt,4)}, {v(kvf(g,e,mt),4)}, {acc(st,2*hp+e,j)}, {v(CI,4) if mt else 0}" for mt in (1, 0)]
            M += [f"{MF} {v(U+4*mt,4)}, {v(KR+8*st+4*mt,4)}, {v(MB+2*e,4)}, {v(U+4*mt,4)}" for mt in (1, 0)]
            mk = mask(n+1) if n < 31 else ["s_nop 0", "s_nop 0"]
            sc = scale(n-2) if n >= 2 else ["s_nop 0", None, "s_nop 1"]
            fill = [sc[0], mk[0]] + sc[2:] + [mk[1]]
            if n & 3 == 0: A("s_waitcnt lgkmcnt(0)")
            if g < 7 and n & 3 < 2: fill += kv_reads(g+1)[2*(n & 1):2*(n & 1)+2]
            n0 = 0
            for i, m in enumerate(M):
                A(m)
                c = (len(fill) - n0 + (3 - i)) // (4 - i)
                for x in fill[n0:n0+c]: A(x)
                n0 += c
        for n in (30, 31):
            for x in scale(n): A(x or "s_nop 0")
    else:
        for k in range(16):
            st, hp, j = k >> 3, (k >> 1) & 3, k & 1
            g = k >> 1; T = TM + 16*j
            a = [f"{MF} {v(T+8*e+4*mt,4)}, {v(kvf(g,e,mt),4)}, {acc(st,2*hp+e,j)}, {v(CI,4) if mt else 0}" for e in range(2) for mt in (1, 0)]
            b = [f"{MF} {v(T+8*e+4*mt,4)}, {v(KR+8*st+4*mt,4)}, {v(MB+2*e,4)}, {v(T+8*e+4*mt,4)}" for e in range(2) for mt in (1, 0)]
            mk = [f"v_cndmask_b32 v{MB+(i if i < 2 else i+2)}, 0, v{accr(st,8,j)+i}, {s(8+2*hp,2)}" for i in range(4)]
            va = o_valu(k-1) if k else []
            if j == 0:
                A("s_waitcnt lgkmcnt(0)")
                if g < 7: va = va + kv_reads(g+1)
            A(a[0]); A(mk[0]); A(mk[1]); A(a[1]); A(mk[2]); A(mk[3]); A(a[2]); A(a[3])
            n0 = 0
            for i, m in enumerate([None] + b):
                if m: A(m)
                n = (len(va) - n0 + (4 - i)) // (5 - i)
                for x in va[n0:n0+n]: A(x)
                n0 += n
        A("s_nop 5")
        for x in o_valu(15): A(x)
    pt(A, "go1")
    if CFG.ost == 1:
        for st in range(2):
            for u in range(5):
                for j in range(2): A(o_store(st, u, j))
    A("s_nop 1\ns_branch K2_cq")
    A.label("K1_ldF")
    srd_off(A, 8, 26, WF_OFF, WF_SZ)
    A(f"s_sub_u32 s17, s16, 4\ns_mul_i32 s21, s23, {18*18432}")
    def wait_fold():
        A("s_lshl_b32 s3, s17, 2\ns_add_u32 s3, s3, s23\ns_add_u32 s3, s3, 4\ns_lshl_b32 s19, s23, 1\ns_add_u32 s19, s19, s17\ns_sub_u32 s19, s19, 8")
        A("s_cmp_ge_u32 s23, 4\ns_cselect_b32 s3, s19, s3\ns_mul_i32 s3, s3, 36")
        A(f"s_add_u32 s3, s3, {F1}\nv_and_b32 v8, 63, v0\nv_min_u32 v8, 35, v8\nv_add_lshl_u32 v8, v8, s3, 7")
        if CFG.dlw: A(f"s_sleep {CFG.dlw}")
        poll2(A, 8, 10, CFG.sl0a, CFG.sl0)
        pt(A, "go1")
    emit_loader_lin(A, 18, 9, POFF, 17, 8, 21, 20, 18, CFG.auxP, CFG.GA, pre=wait_fold)
    A("s_branch K1_ldtail")
    A.label("K1_ldX")
    srd_off(A, 8, 26, HT_OFF, HT_SZ)
    A(f"s_sub_u32 s17, s16, 6\ns_mul_i32 s21, s22, {4*9216}\ns_lshl_b32 s18, s17, 10\ns_add_u32 s21, s21, s18\ns_lshl_b32 s18, s17, 12\ns_mov_b32 s19, s17")
    A("v_and_b32 v1, 63, v0\nv_and_b32 v2, 16, v1\nv_lshrrev_b32 v2, 2, v2\nv_xor_b32 v2, v2, v1\nv_lshlrev_b32 v2, 4, v2")
    for w in range(1, 4): A(f"v_add_u32 v{2+w}, {8192*w}, v2")
    def issue_x(slot):
        A(f"s_add_u32 m0, s18, {slot*STAGE + WOFF}\ns_add_u32 s19, s19, 2")
        for w in range(4): A(f"buffer_load_dwordx4 v{2+w}, s[8:11], s21 offen offset:{1024*w} {CFG.auxP} lds")
        A(f"s_cmp_ge_u32 s19, 9\ns_cselect_b32 s3, 9, 0\ns_cselect_b32 s28, {589824-9216}, 0\ns_sub_u32 s19, s19, s3\ns_add_u32 s21, s21, s28\ns_add_u32 s21, s21, 2048")
    def wait_xn():
        A(f"s_lshl_b32 s3, s22, 3\ns_add_u32 s3, s3, {F0+112}\nv_and_b32 v8, 7, v0\nv_add_lshl_u32 v8, v8, s3, 7")
        if CFG.dl0: A(f"s_sleep {CFG.dl0}")
        poll2(A, 8, 10, CFG.sl0a, CFG.sl0)
        pt(A, "go1")
    assert not CFG.GA
    emit_loader(A, 18, 4, issue_x, 20, pre=wait_xn)
    A.label("K1_ldtail")
    A("s_lshr_b32 s17, s2, 3\ns_sub_u32 s17, s17, 18\ns_lshl_b32 s17, s17, 2\ns_add_u32 s17, s17, s16\ns_sub_u32 s17, s17, 4")
    A(f"s_mov_b32 s49, {OOB}\ns_cmp_ge_u32 s23, 4\ns_cbranch_scc1 K1_ldq")
    srd_off(A, 32, 26, RS_OFF, RS_SZ)
    A("s_and_b32 s31, s16, 3\ns_lshl_b32 s30, s22, 2\ns_add_u32 s30, s30, s31\ns_lshl_b32 s30, s30, 8\nv_and_b32 v1, 63, v0\nv_and_b32 v2, 15, v1\nv_lshlrev_b32 v2, 2, v2")
    A("buffer_load_dword v240, v2, s[32:35], s30 offen offset:128 sc1")
    if CFG.pf1kv:
        srd(A, 52, 4, S*F*2)
        pf_w1_col(A, 46)
        A(f"s_add_u32 s47, s17, {320 - 32*CFG.pf1kv}")
        pf_w1(A, 52, 46, 47, 32, CFG.pf1kv, 1, 30)
    if CFG.pf2kv:
        pf_w2(A, 50, 17, 32, CFG.pf2kv)
    A(f"s_mul_i32 s3, s31, 9216\ns_add_u32 s3, s3, {HO}\nv_lshl_add_u32 v2, v1, 4, s3\ns_barrier")
    for t in range(9): A(f"ds_read_b128 {acc(0,t,0)}, v2 offset:{t*1024}")
    A(f"s_waitcnt vmcnt({CFG.pf2kv + CFG.pf1kv}) lgkmcnt(0)\ns_branch K1_kvsm")
    A.label("K1_ldq")
    A("s_barrier")
    if CFG.c3w2 == 1:
        A(f"s_sub_u32 s19, s17, {32 - CFG.c3s}")
        pf_w2c3(A, 50, 19, 16, -(-(36 - CFG.c3s) // 16), lim=0)
    if CFG.pf2q:
        A(f"s_add_u32 s17, s17, {32*CFG.pf2kv - 32}")
        pf_w2(A, 50, 17, 16, CFG.pf2q, lim=None if CFG.qlim < 0 else CFG.qlim)
    A("s_branch K2_ld")
    A.label("K1_spare")
    A(f"s_load_dwordx2 s[50:51], s[0:1], {KA_W2}")
    srd(A, 8, 22, D*D*2)
    A("s_and_b32 s17, s2, 7\ns_lshr_b32 s18, s2, 3\ns_sub_u32 s41, s18, 30\ns_lshl_b32 s41, s41, 3\ns_add_u32 s41, s41, s16")
    A(f"s_add_u32 s43, s41, {32*CFG.pf2kv + 16*CFG.pf2q}")
    A("s_sub_u32 s18, s18, 30\ns_lshl_b32 s17, s17, 1\ns_add_u32 s17, s17, s18\ns_and_b32 s22, s17, 3\ns_lshr_b32 s23, s17, 2")
    A(f"s_mul_i32 s28, s23, {144*1152}\ns_mul_i32 s29, s22, 288\ns_add_u32 s28, s28, s29\ns_lshl_b32 s29, s16, 10")
    for r in range(6):
        if r == 5: A("s_cmp_lg_u32 s16, 0\ns_cbranch_scc1 K1_w5\ns_bfm_b64 exec, 32, 0")
        A(f"v_add_u32 v4, {512*r}, v0\nv_mul_u32_u24 v5, 58255, v4\nv_lshrrev_b32 v5, 20, v5\ns_add_u32 m0, s29, {8192*r}")
        A(f"v_mul_u32_u24 v5, {1152-288}, v5\nv_lshl_add_u32 v4, v4, 4, v5\nbuffer_load_dwordx4 v4, s[8:11], s28 offen lds")
    A("s_mov_b64 exec, -1")
    A.label("K1_w5")
    assert CFG.pf1s > 2
    a0 = (112*CFG.pf1) // 64 + 48*CFG.pf1a + 16*CFG.pf1q
    e0 = 320 - 32*CFG.pf1kv
    b0 = e0 - 16*(CFG.pf1s - CFG.sA)
    assert CFG.sA == 0 or CFG.sA > 2
    A(f"s_add_u32 s42, s41, {a0 + 16*CFG.sA}\ns_add_u32 s41, s41, {a0 if CFG.sA else b0}")
    if not CFG.wfirst: pf_w1(A, 52, 46, 41, 16, 1, 1, 57)
    ZR = 144*288
    A(f"v_lshlrev_b32 v4, 2, v0\nv_add_u32 v4, {ZR}, v4\nv_mov_b32 v5, 0\nds_write_b32 v4, v5")
    srd_off(A, 12, 26, WOT_OFF, WOT_SZ)
    A("v_and_b32 v1, 63, v0\nv_lshrrev_b32 v3, 4, v1\nv_bfe_u32 v2, v1, 2, 2\ns_lshl_b32 s3, s16, 3\nv_and_b32 v10, 3, v1\nv_lshlrev_b32 v10, 3, v10")
    A(f"v_add_u32 v11, 16, v3\nv_cmp_gt_u32 s[30:31], 2, v3\nv_mov_b32 v12, 144")
    for hf in range(2):
        A(f"v_add3_u32 v4, v2, s3, {4*hf}\nv_mul_u32_u24 v5, 205, v4\nv_lshrrev_b32 v5, 10, v5\nv_mul_u32_u24 v6, 5, v5\nv_sub_u32 v6, v4, v6")
        A("v_cmp_eq_u32 vcc, 4, v6\nv_lshl_add_u32 v6, v3, 2, v6\nv_mul_u32_u24 v5, 18, v5\nv_cndmask_b32 v6, v6, v11, vcc\ns_andn2_b64 vcc, vcc, s[30:31]")
        A(f"v_add_u32 v6, v6, v5\nv_cndmask_b32 v6, v6, v12, vcc\nv_min_u32 v6, 144, v6\nv_mul_u32_u24 v6, 288, v6\nv_add_u32 v{8+hf}, v6, v10")
    A("s_lshl_b32 s28, s22, 2\ns_add_u32 s28, s28, s23\ns_mul_i32 s28, s28, 5\ns_add_u32 s28, s28, s16")
    A(f"s_add_u32 s49, s28, {FW}\ns_lshl_b32 s49, s49, 7\ns_mul_i32 s28, s28, 9216\nv_lshlrev_b32 v2, 4, v1")
    A(f"s_waitcnt vmcnt({0 if CFG.wfirst else 1}) lgkmcnt(0)\ns_barrier")
    tag_make(A)
    for rt in range(9):
        A(f"ds_read_b64_tr_b16 {v(16+4*rt,2)}, v8 offset:{rt*32}\nds_read_b64_tr_b16 {v(18+4*rt,2)}, v9 offset:{rt*32}")
    A("s_waitcnt lgkmcnt(0)\ns_barrier")
    A("s_cmp_lt_u32 s16, 5\ns_cbranch_scc1 K1_wot")
    A(f"s_lshl_b32 s49, s2, 7\ns_cmp_eq_u32 s16, 5\ns_cselect_b32 s49, s49, {OOB}\ns_branch K1_wot1")
    A.label("K1_wot")
    for rt in range(9):
        if rt and rt % 4 == 0: A("s_add_u32 s28, s28, 4096")
        A(f"buffer_store_dwordx4 {v(16+rt*4,4)}, v2, s[12:15], s28 offen offset:{(rt%4)*1024} {CFG.auxSt}")
    A.label("K1_wot1")
    if CFG.wfirst: A("s_waitcnt vmcnt(0)\ns_barrier")
    else: pf_w1(A, 52, 46, 41, 16, 1, 1, 57, lim=0)
    raise_flag(A, 49, 4)
    if CFG.chore:
        A(f"s_sub_u32 s3, s2, 240\ns_lshl_b32 s3, s3, 3\ns_add_u32 s3, s3, s16\ns_mul_i32 s3, s3, 15\ns_add_u32 s3, s3, {FU}\nv_add_lshl_u32 v8, v1, s3, 7")
        A(f"s_bfm_b64 exec, 15, 0\nbuffer_load_dword v{SINK}, v8, s[96:99], 0 offen sc1\ns_mov_b64 exec, -1")
    pt(A, "go1")
    if CFG.pf1s:
        A.label("K1_spf")
        pf_w1(A, 52, 46, 41, 16, 1, 1, 57, lim=CFG.slim)
        if CFG.sA: A(f"s_cmp_eq_u32 s41, s42\ns_cselect_b32 s3, {max(b0 - a0 - 16*CFG.sA, 0)}, 0\ns_add_u32 s41, s41, s3")
        A(f"s_cmp_lt_u32 s41, {e0}\ns_cbranch_scc1 K1_spf")
    if CFG.c3w2 == 2:
        A(f"s_lshl_b32 s19, s18, 3\ns_add_u32 s19, s19, s16\ns_bitcmp1_b32 s2, 0\ns_cselect_b32 s3, {0 if CFG.rev2 else 20}, 20\ns_add_u32 s19, s19, s3")
        pf_w2c3(A, 50, 19, 16, 1, lim=1)
    pf_w2(A, 50, 43, 16, CFG.pf2s, lim=1)
    pt(A, "m1")
    A(f"s_mov_b32 s49, {OOB}\ns_cmp_lt_u32 s16, 4\ns_cbranch_scc1 K2_c\ns_cmp_lg_u32 s16, 7\ns_cbranch_scc1 K2_ld\ns_cmp_lg_u32 s2, 255\ns_cbranch_scc1 K2_ld")
    for q in range(4):
        A(f"v_add_u32 v8, {F0 + 64*q}, v1\nv_lshlrev_b32 v8, 7, v8")
        poll(A, 8, 10, 8)
    A(f"s_mov_b32 s49, {FE*128}\ns_branch K2_ld")

WR = 40
PAD = 34816
def wot_flagaddr(A):
    if CFG.lm:
        A(f"s_mul_i32 s56, s22, 20\ns_add_u32 s3, s56, {FW}\nv_and_b32 v36, 63, v0\nv_lshlrev_b32 v37, 4, v36\nv_min_u32 v36, 19, v36\nv_add_lshl_u32 v36, v36, s3, 7")
        A("s_sub_u32 s3, s16, 4\ns_mul_i32 s55, s3, 46080\ns_add_u32 s55, s55, 8192\nv_add_u32 v33, s55, v37\ns_lshl_b32 s3, s3, 10\nv_add_u32 v37, s3, v37\nv_add_u32 v23, 4096, v37")
        return
    A(f"s_lshr_b32 s56, s2, 3\ns_lshl_b32 s3, s2, 1\ns_add_u32 s56, s56, s3\ns_and_b32 s56, s56, 3\ns_lshl_b32 s56, s56, 2\ns_add_u32 s56, s56, s16\ns_sub_u32 s56, s56, 4\ns_mul_i32 s56, s56, 5")
    A(f"s_add_u32 s3, s56, {FW}\nv_and_b32 v36, 63, v0\nv_lshlrev_b32 v37, 4, v36\nv_min_u32 v36, 4, v36\nv_add_lshl_u32 v36, v36, s3, 7")
def wot_chunk(A, k):
    if CFG.lm:
        u = CFG.w0 + k
        if u >= 2: A(f"s_sub_u32 s3, s16, 4\ns_lshl_b32 s3, s3, 10\ns_add_u32 m0, s3, {T8_LDS + 4096*(u-2)}")
        else: A(f"s_bfe_u32 s3, s16, 0x10001\ns_mul_i32 s3, s3, {STAGE}\ns_add_u32 m0, s3, {PAD}\ns_and_b32 s3, s16, 1\ns_lshl_b32 s3, s3, 10\ns_add_u32 m0, m0, s3")
        A("s_mov_b32 s3, s56\nbuffer_load_dwordx4 v33, s[92:95], s56 offen sc1 lds")
        for g in range(4):
            A(f"buffer_load_dwordx4 {v(WR+32*k+8*g,4)}, v37, s[92:95], s3 offen sc1\nbuffer_load_dwordx4 {v(WR+32*k+8*g+4,4)}, v23, s[92:95], s3 offen sc1")
            if g < 3: A("s_add_u32 s3, s3, 46080")
        A("s_add_u32 s56, s56, 9216")
        return
    for b in range(9*k, 9*k + 9):
        if b and b % 4 == 0: A("s_add_u32 s56, s56, 4096")
        A(f"buffer_load_dwordx4 {v(WR+4*b,4)}, v37, s[92:95], s56 offen offset:{(b%4)*1024} sc1")
def wot_regs(A, sampled, load=True, skip=None):
    L = A.newlabel("Lw")
    if skip: A(f"{skip}\ns_cbranch_scc1 {L}")
    if sampled: A(f"v_cmp_ne_u64 vcc, s[100:101], v[38:39]\ns_nop 4\ns_cbranch_vccz {L}")
    poll(A, 36, 38, 2)
    A.label(L)
    srd_off(A, 92, 26, WOT_OFF, WOT_SZ)
    A(f"s_add_u32 s56, s56, {CFG.w0}\ns_mul_i32 s56, s56, 9216")
    if load:
        for k in range(CFG.wn): wot_chunk(A, k)
def k2_decode(A):
    A("s_and_b32 s17, s2, 7\ns_lshr_b32 s18, s2, 3")
    A("s_lshr_b32 s28, s17, 1\ns_lshl_b32 s22, s17, 1\ns_add_u32 s22, s22, s18\ns_and_b32 s22, s22, 3")
    A("s_and_b32 s17, s17, 1\ns_lshl_b32 s17, s17, 3\ns_lshr_b32 s18, s18, 2")
    if CFG.stsw:
        A(f"s_cmp_eq_u32 s18, 1\ns_cselect_b32 s23, {CFG.stsw}, s18\ns_cmp_eq_u32 s18, {CFG.stsw}\ns_cselect_b32 s18, 1, s23")
    A("s_add_u32 s23, s17, s18")
RED_RS = 592
PBS = 1056
O_LDS, O_TOP = 2*STAGE, 159744
W_SLOT = (3, 0, 1, 3, 0)
PB = STAGE
RED = 3*STAGE
PB_OWN = RED + 32*RED_RS
T8_LDS = 4*STAGE
REDL = 0
def k2_enter(A):
    A(f"s_load_dwordx4 s[4:7], s[0:1], {KA_W2}\ns_load_dwordx2 s[44:45], s[0:1], {KA_X}\ns_load_dwordx2 s[46:47], s[0:1], {KA_OUT}")
    k2_decode(A)
def k2_setup(A, early):
    srd_off(A, 36, 26, PART_OFF, PART_SZ)
    A("s_lshl_b32 s17, s23, 2\ns_add_u32 s17, s17, s22\ns_lshl_b32 s18, s17, 4")
    A("s_lshl_b32 s30, s16, 2\ns_add_u32 s30, s30, s28\ns_add_u32 s30, s30, s18")
    A(f"s_mul_i32 s32, s30, 9216\ns_add_u32 s30, s30, {FX}\ns_lshl_b32 s30, s30, 7")
    A(f"s_cmp_eq_u32 s16, s28\ns_cselect_b32 s48, {OOB}, 0\ns_cselect_b32 s30, {OOB}, s30")
    A(f"s_add_u32 s34, s32, 4096\ns_add_u32 s35, s32, 8192")
    A("s_waitcnt lgkmcnt(0)")
    k2_final_prep(A, 1)
    if early and (CFG.pf2l or CFG.pf2ls):
        base = 72*CFG.pf2g + 16*CFG.pf2s + 32*CFG.pf2kv + 16*CFG.pf2q
        A(f"s_lshr_b32 s17, s2, 3\ns_lshl_b32 s19, s17, 2\ns_add_u32 s19, s19, s16\ns_cmp_ge_u32 s17, 30\ns_cbranch_scc1 K2_pls\ns_sub_u32 s17, s17, 18\ns_cmp_ge_u32 s17, 8\ns_cbranch_scc1 K2_nopl")
        A(f"s_add_u32 s19, s19, {base - 72}")
        pf_w2(A, 4, 19, 32, CFG.pf2l, srdn=8)
        A("s_branch K2_nopl")
        A.label("K2_pls")
        A(f"s_add_u32 s19, s19, {base + 32*CFG.pf2l - 120}")
        pf_w2(A, 4, 19, 8, CFG.pf2ls, srdn=8, lim=1)
        A.label("K2_nopl")
    clear_flag(A, 30, 8)
    A(f"v_and_b32 v8, 15, v1\nv_lshrrev_b32 v9, 4, v1\nv_mul_u32_u24 v8, {RED_RS}, v8\nv_lshl_add_u32 v8, v9, 4, v8\nv_add_u32 v254, {RED}, v8")
    srd_off(A, 40, 26, OB_OFF, OB_SZ)

def gen_k2(A):
    DBG["on"] = True
    KV, MB, CI, PH, TM, PK, O = 8, 80, 92, 96, 132, 168, 204
    A.label("K2_c")
    pt(A, "e1")
    k2_enter(A)
    def common():
        emit_compute_addr(A, 16, "pi")
        for i in range(0, 72, 2): A(f"v_pk_mov_b32 {v(V_ACC+i,2)}, 0, 0")
    common()
    A("s_waitcnt vmcnt(0) lgkmcnt(0)")
    raise_flag(A, 49, 8)
    A(f"s_mov_b32 s49, {OOB}\ns_barrier")
    pt(A, "fl1")
    k2_setup(A, True)
    if CFG.burn:
        ng, nn = CFG.burn.split(",")
        A(f"s_cmp_lt_u32 s2, 144\ns_cselect_b32 s20, {ng}, {nn}\ns_cmp_eq_u32 s20, 0\ns_cbranch_scc1 K2_c1\nK2_burn:")
        for k in range(18):
            A(f"{MF} {v(168+4*(k%9),4)}, {v(8+4*(k%9),4)}, {v(44+4*(k%7),4)}, {v(168+4*(k%9),4)}")
            if k < 11: A(f"ds_read_b128 {v(8+4*((k*5)%18),4)}, v{V_PB} offset:{STAGE + k*1024}")
        A("s_waitcnt lgkmcnt(0)\ns_sub_u32 s20, s20, 1\ns_cmp_lg_u32 s20, 0\ns_cbranch_scc1 K2_burn")
    A("s_branch K2_c1")
    A.label("K2_cq")
    pt(A, "e1")
    common()
    A.label("K2_c1")
    if CFG.prio: A(f"s_setprio {CFG.prio}")
    A(f"v_or_b32 v0, s48, v{V_PA}")
    def pub(t):
        L = [f"v_cvt_pk_bf16_f32 v{PK+4*t+p}, v{V_ACC+8*t+2*p}, v{V_ACC+8*t+2*p+1}" for p in range(4)]
        L.append(f"buffer_store_dwordx4 {v(PK+4*t,4)}, v0, s[36:39], s{(32, 34, 35)[t//4]} offen offset:{(t%4)*1024} sc1")
        return L
    lastfill = [""]*9
    for t in range(4): lastfill += ["\n".join(pub(t)[:3]), "\n".join(pub(t)[3:])]
    lastfill += ["\n".join(pub(4))]
    def late_flag():
        A(f"s_cmp_eq_u32 s49, {OOB}\ns_cbranch_scc1 K2_nolate\ns_waitcnt vmcnt(0)")
        raise_flag(A, 49, 172)
        A(f"s_mov_b32 s49, {OOB}")
        A.label("K2_nolate")
    emit_compute_loop(A, 18, "pi", (False, False), 20, first=lambda: pt(A, "b2"), lastfill=lastfill, loopend=late_flag, own=CFG.own >= 2)
    pt(A, "m2")
    for t in range(5, 9):
        for x in pub(t): A(x)
    pt(A, "pub")
    FB, WA = 8, 204
    A(f"s_lshl_b32 s3, s16, 10\nv_add_u32 v4, s3, v{V_PA}\nv_add_u32 v5, {3*STAGE}, v4\nv_add_u32 v3, {3*STAGE}, v{V_PA}")
    A(f"s_and_b32 s17, s16, 1\ns_lshl_b32 s3, s17, 10\ns_add_u32 s3, s3, {O_LDS}\nv_add_u32 v6, s3, v{V_PA}\nv_xor_b32 v7, 1024, v6")
    A(f"s_cmp_eq_u32 s17, 0\ns_cselect_b32 s3, {O_LDS + 8192}, 0\ns_cselect_b32 s18, 0, {O_LDS + 8192}")
    A(f"s_cselect_b32 s19, 0, {O_TOP}\ns_cselect_b32 s21, {O_TOP}, 0\ns_add_u32 s3, s3, s19\ns_add_u32 s18, s18, s21")
    A(f"s_cmp_eq_u32 s17, 0\ns_cselect_b32 s19, 9, 1\ns_cselect_b32 s21, 1, 9\ns_lshl_b32 s19, s19, 10\ns_lshl_b32 s21, s21, 10")
    for g in range(4):
        A(f"v_add_u32 v{224+2*g}, s3, v{V_PA}\nv_add_u32 v{225+2*g}, s18, v{V_PA}\ns_add_u32 s3, s3, s19\ns_add_u32 s18, s18, s21")
    def fo(b, g, j): return FB + 80*b + 20*g + 4*j
    def fw(b, g, k): return FB + 80*b + 20*g + 8 + 4*k
    def wreads(u):
        b = u & 1; sl = W_SLOT[u]; R = []
        for g in range(4):
            for j in range(2):
                R.append(f"ds_read_b128 {v(fo(b,g,j),4)}, v{6+j} offset:{g*9216 + u*2048}" if u < 4 else f"ds_read_b128 {v(fo(b,g,j),4)}, v{224+2*g+j}")
            so = (0 if sl == 3 else sl*STAGE) + g*9216
            for k in range(2): R.append(f"ds_read_b128 {v(fw(b,g,k),4)}, v{5 if sl == 3 else (4 if so + 4096*k < 65536 else 232)} offset:{(so + 4096*k) % 65536}")
            R.append(f"ds_read_b128 {v(fw(b,g,2),4)}, v{3 if sl == 3 else (V_PA if so + 8192 < 65536 else 233)} offset:{(so + 8192) % 65536}")
        return R
    A(f"v_add_u32 v232, 65536, v4\nv_add_u32 v233, 65536, v{V_PA}")
    def wmf(u):
        b = u & 1; M = []
        for g in range(4):
            for k, j in ((0, 0), (0, 1), (1, 0), (1, 1), (2, 0)):
                d = v(WA + 4*(2*k + j), 4)
                M.append(f"{MF} {d}, {v(fw(b,g,k),4)}, {v(fo(b,g,j),4)}, {d if u or g else 0}")
        return M
    def flag_x():
        A("s_waitcnt vmcnt(0)")
        raise_flag(A, 30, 236)
        pt(A, "flx")
    if CFG.lm:
        assert CFG.wreg == 4 and (CFG.w0, CFG.wn) == ((2, 3), (1, 4))[CFG.lm - 1]
        A(f"v_add_u32 v234, {T8_LDS}, v{V_PA}")
        def xreads(b, us):
            R = []
            for n, (u, g) in enumerate((u, g) for u in us for g in range(4)):
                if u >= 2: R.append(f"ds_read_b128 {v(FB+80*b+8*n,4)}, v234 offset:{(u-2)*4096 + g*1024}")
                else:
                    o = (g >> 1)*STAGE + PAD + (g & 1)*1024
                    R.append(f"ds_read_b128 {v(FB+80*b+8*n,4)}, v{V_PA if o < 65536 else 233} offset:{o % 65536}")
                R.append(f"ds_read_b128 {v(FB+80*b+8*n+4,4)}, v6 offset:{g*9216 + u*2048}" if u < 4 else f"ds_read_b128 {v(FB+80*b+8*n+4,4)}, v{224+2*g}")
            return R
        def xmf(b, n): return [f"{MF} {v(WA+16,4)}, {v(FB+80*b+8*i,4)}, {v(FB+80*b+8*i+4,4)}, {v(WA+16,4)}" for i in range(n)]
        A("s_barrier")
        pt(A, "t0")
        for r in wreads(0): A(r)
        if CFG.flagpos == -1: flag_x()
        if CFG.lm == 2:
            block(A, wmf(0), xreads(1, (1, 2)), True)
            pt(A, "u0")
            if CFG.flagpos == 0: flag_x()
            xr = xreads(0, (3, 4))
            block(A, xmf(1, 8), [xr[2*i] + "\n" + xr[2*i+1] for i in range(8)], False)
            pt(A, "u1")
            last = xmf(0, 8)
        else:
            if CFG.flagpos == -3:
                block(A, wmf(0), [], False)
                flag_x()
                A("s_barrier")
                for r in wreads(1): A(r)
            else: block(A, wmf(0), wreads(1), True)
            pt(A, "u0")
            if CFG.flagpos == 0: flag_x()
            block(A, wmf(1), xreads(0, (2, 3)), True)
            pt(A, "u1")
            if CFG.flagpos == 1: flag_x()
            block(A, xmf(0, 8), xreads(1, (4,)), False)
            last = xmf(1, 4)
    else:
        if CFG.flagpos == -2: flag_x()
        A("s_barrier")
        pt(A, "t0")
        for r in wreads(0): A(r)
        if CFG.flagpos == -1: flag_x()
        for u in range(4):
            block(A, wmf(u), wreads(u+1), True)
            pt(A, f"u{u}")
            if u == CFG.flagpos: flag_x()
        last = wmf(4)
    A(f"s_mul_i32 s3, s17, {16*RED_RS}\nv_add_u32 v6, s3, v254\ns_lshl_b32 s18, s16, 6\nv_add_u32 v4, s18, v6\ns_xor_b32 s17, s17, 1\ns_mul_i32 s3, s17, {16*RED_RS}\ns_add_u32 s3, s3, s18\nv_add_u32 v5, s3, v254")
    A("s_cmp_lg_u32 s16, s28\ns_cbranch_scc1 K2_nown")
    A(f"v_lshrrev_b32 v7, 5, v1\nv_xor_b32 v7, v7, v1\nv_lshlrev_b32 v7, 4, v7\nv_add_u32 v7, {PB_OWN}, v7")
    park = [f"ds_write_b128 v7, {v(PK+4*t,4)} offset:{t*PBS}" for t in range(9)]
    block(A, last, ["", "", "", "\n".join(park)] if CFG.lm else [x for w_ in park for x in (w_, "")], False)
    A("s_branch K2_nown1")
    A.label("K2_nown")
    block(A, last, [], False)
    A.label("K2_nown1")
    A("s_nop 3")
    for k in range(2):
        for j in range(2): A(f"ds_write_b128 v{4+j}, {v(WA+4*(2*k+j),4)} offset:{k*256}")
    A(f"ds_write_b128 v6, {v(WA+16,4)} offset:512")
    pt(A, "add")
    if CFG.lm and CFG.flagpos == 2: flag_x()
    A.label("K2_fin")
    def fin_x(n):
        FI = (244, 232)[n]; XB = FI + 4; D0 = 40 + 56*n
        for i in range(4): A(f"v_lshlrev_b32 v{D0+2*i}, 16, v{XB+i}\nv_and_b32 v{D0+1+2*i}, 0xffff0000, v{XB+i}")
        A(f"v_lshlrev_b32 v48, 16, v{FI+3}")
        for p in range(4): A(f"v_pk_add_f32 {v(D0+2*p,2)}, {v(D0+2*p,2)}, v[48:49] op_sel_hi:[1,0]")
    def fin(items):
        def addp(n, r):
            D0 = 40 + 56*n
            for i in range(4): A(f"v_lshlrev_b32 v{8+2*i}, 16, v{r+i}\nv_and_b32 v{9+2*i}, 0xffff0000, v{r+i}")
            for p in range(4): A(f"v_pk_add_f32 {v(D0+2*p,2)}, {v(D0+2*p,2)}, {v(8+2*p,2)}")
        for n in items: fin_x(n)
        A("s_waitcnt lgkmcnt(0)\ns_barrier")
        pt(A, "red")
        for n in items:
            FI = (244, 232)[n]; R = 16 + 12*n
            A(f"ds_read_b128 {v(R,4)}, v{FI+1}\nds_read_b128 {v(R+4,4)}, v{FI+1} offset:16\nds_read_b64 {v(R+8,2)}, v{FI+2}\nds_read_b64 {v(R+10,2)}, v{FI+2} offset:256")
        if CFG.lm:
            for n in items:
                FI = (244, 232)[n]
                A(f"v_subrev_u32 v50, {RED - REDL}, v{FI+1}\nds_read_b128 {v(60+8*n,4)}, v50\nds_read_b128 {v(64+8*n,4)}, v50 offset:16")
        xl = 2*len(items) if CFG.lm else 0
        left = 4*len(items) + xl
        for n in items:
            R = 16 + 12*n; D0 = 40 + 56*n
            A(f"s_waitcnt lgkmcnt({left-2})")
            for p in range(4): A(f"v_pk_add_f32 {v(D0+2*p,2)}, {v(D0+2*p,2)}, {v(R+2*p,2)}")
            left -= 4
            A(f"s_waitcnt lgkmcnt({left})")
            addp(n, R+8)
        if CFG.lm:
            for n in items:
                left -= 2
                A(f"s_waitcnt lgkmcnt({left})")
                for p in range(4): A(f"v_pk_add_f32 {v(40+56*n+2*p,2)}, {v(40+56*n+2*p,2)}, {v(60+8*n+2*p,2)}")
        A("s_waitcnt vmcnt(0)\ns_barrier")
        pt(A, "rx")
        for n in items:
            for q in range(3):
                A(f"ds_read_b64 {v(60+12*n+4*q,2)}, v{(252, 240)[n]} offset:{q*9*PBS}\nds_read_b64 {v(62+12*n+4*q,2)}, v{(252, 240)[n]} offset:{q*9*PBS + 256}")
        left = 6*len(items)
        for n in items:
            D0 = 40 + 56*n
            for q in range(3):
                left -= 2
                A(f"s_waitcnt lgkmcnt({left})")
                addp(n, 60+12*n+4*q)
            for p in range(4): A(f"v_cvt_pk_bf16_f32 v{52+4*n+p}, v{D0+2*p}, v{D0+1+2*p}")
            A(f"buffer_store_dwordx4 {v(52+4*n,4)}, v{(244, 232)[n]}, s[52:55], s50 offen {CFG.auxOut}")
    A("s_cmp_eq_u32 s16, 7\ns_cbranch_scc1 K2_fin2")
    fin([0])
    A("s_branch K2_done")
    A.label("K2_fin2")
    fin([0, 1])
    A.label("K2_done")
    pt(A, "fin")
    if CFG.probe:
        i, lo, hi = [int(x) for x in CFG.probe.split(",")]
        A(f"s_cmp_lg_u32 s16, 0\ns_cbranch_scc1 Z_end\ns_cmp_lt_u32 s2, {lo}\ns_cbranch_scc1 Z_end\ns_cmp_ge_u32 s2, {hi}\ns_cbranch_scc1 Z_end")
        A(f"Z_loop:\ns_sleep 1\ns_memrealtime s[4:5]\ns_waitcnt lgkmcnt(0)\ns_sub_u32 s7, s4, s{64+2*i}\ns_cmp_lt_u32 s7, 10000\ns_cbranch_scc1 Z_loop\nZ_end:")
    else: stamp_flush(A)
    A("s_endpgm")
    A.label("K2_ld")
    pt(A, "e1")
    k2_enter(A)
    A(f"s_cmp_eq_u32 s49, {OOB}\ns_cbranch_scc1 K2_ld1\ns_waitcnt vmcnt(0)")
    raise_flag(A, 49, 8)
    A.label("K2_ld1")
    if CFG.wreg == 1:
        A("s_cmp_lt_u32 s2, 144\ns_cbranch_scc1 K2_ld2")
        wot_flagaddr(A); wot_regs(A, False)
        A.label("K2_ld2")
    lend2 = None
    if CFG.wreg == 4:
        wot_flagaddr(A); wot_regs(A, False, load=False, skip="s_cmp_lt_u32 s2, 144" if CFG.w1at else None)
        if CFG.w1at: A(f"s_cmp_lt_u32 s2, 144\ns_cselect_b32 s3, {9216*CFG.w1n}, 0\ns_add_u32 s56, s56, s3")
        wat = [0]*(CFG.w1n if CFG.w1at else 0) + [int(c) for c in str(CFG.wat)]
        def lend2():
            X = A.newlabel("Lu")
            if CFG.nat:
                Y = A.newlabel("Lu")
                A(f"s_cmp_lt_u32 s2, 144\ns_cbranch_scc1 {Y}\ns_sub_u32 s3, s2, 208\ns_cmp_lt_u32 s3, 32\ns_cbranch_scc1 {X}")
                for n_, c in enumerate(str(CFG.nat)):
                    L = A.newlabel("Lu")
                    A(f"s_cmp_lg_u32 s20, {c}\ns_cbranch_scc1 {L}")
                    wot_chunk(A, CFG.wn - len(str(CFG.nat)) + n_)
                    A.label(L)
                A(f"s_branch {X}\n{Y}:")
            else: A(f"s_cmp_ge_u32 s2, 144\ns_cbranch_scc1 {X}")
            for c in (3, 2, 1):
                if c in wat:
                    L = A.newlabel("Lu")
                    A(f"s_cmp_lg_u32 s20, {c}\ns_cbranch_scc1 {L}")
                    for k in range(CFG.wn):
                        if wat[k] == c: wot_chunk(A, k)
                    A.label(L)
            A.label(X)
    def first_chunks():
        if CFG.wreg == 4:
            for k in range(CFG.wn):
                if wat[k] == 9: wot_chunk(A, k)
    G2 = CFG.G2; altP = altW = None
    if CFG.own:
        G2 = "seq"
        A(f"s_mul_i32 s57, s28, 9\ns_sub_u32 s57, s24, s57\ns_lshl_b32 s57, s57, 1")
        if CFG.rev2: A("s_sub_u32 s58, 16, s57\ns_bitcmp1_b32 s2, 0\ns_cselect_b32 s57, s58, s57")
        A(f"s_cmp_lt_u32 s2, 144\ns_cselect_b32 s57, s57, 64\ns_cselect_b32 s58, {CFG.GO}, {CFG.G2}")
        if CFG.rot8: A("s_lshl_b32 s59, s22, 1\ns_add_u32 s59, s59, s23\ns_and_b32 s59, s59, 7\ns_mul_i32 s59, s59, s58\ns_lshr_b32 s59, s59, 3")
        else: A("s_add_u32 s59, s22, s23\ns_and_b32 s59, s59, 3\ns_mul_i32 s59, s59, s58\ns_lshr_b32 s59, s59, 2")
    elif G2: A(f"s_add_u32 s59, s22, s23\ns_and_b32 s59, s59, 3\ns_mul_i32 s59, s59, {CFG.G2}\ns_lshr_b32 s59, s59, 2")
    A(f"s_sub_u32 s29, s16, 4\ns_mul_i32 s34, s29, 9216")
    A(f"s_lshl_b32 s32, s22, 2\ns_add_u32 s32, s32, s29\ns_mul_i32 s32, s32, 46080\ns_add_u32 s32, s32, {WOT_OFF}")
    A("v_and_b32 v24, 63, v0\nv_lshlrev_b32 v20, 4, v24\nv_add_u32 v21, 4096, v20\nv_add_u32 v22, 8192, v20")
    srd(A, 36, 26, OB_OFF + OB_SZ)
    A("s_waitcnt lgkmcnt(0)")
    k2_final_prep(A, 2)
    A("s_lshl_b32 s30, s23, 2\ns_add_u32 s30, s30, s22\ns_lshl_b32 s30, s30, 2\ns_add_u32 s30, s30, s28\ns_lshl_b32 s30, s30, 2\ns_add_u32 s30, s30, s29")
    A(f"s_add_u32 s3, s30, {FX}\ns_lshl_b32 s3, s3, 7\nv_mov_b32 v32, s3\ns_mul_i32 s30, s30, 9216")
    A(f"s_cmp_gt_u32 s29, s28\ns_cselect_b32 s3, 1, 0\ns_sub_u32 s31, s29, s3\ns_mul_i32 s31, s31, {9*PBS}")
    A(f"s_lshl_b32 s40, s22, 2\ns_add_u32 s40, s40, s29\ns_mul_i32 s40, s40, 5\ns_add_u32 s40, s40, {FW}\nv_add_u32 v28, s40, v24\nv_cmp_gt_u32 vcc, 5, v24")
    A(f"s_lshl_b32 s33, s23, 2\ns_add_u32 s33, s33, s28\ns_lshl_b32 s33, s33, 2\ns_add_u32 s33, s33, s29\ns_lshr_b32 s40, s33, 1\ns_add_u32 s40, s40, {FO}")
    A(f"v_mov_b32 v29, s40\nv_cndmask_b32 v28, v29, v28, vcc\nv_lshlrev_b32 v28, 7, v28\ns_mul_i32 s33, s33, 10240\ns_add_u32 s33, s33, {OB_OFF}")
    def go_barrier(only_q=False):
        L = A.newlabel("Lg")
        A(f"s_sub_u32 s3, s2, 208\ns_cmp_ge_u32 s3, 32\ns_cbranch_scc1 {L}")
        if CFG.wreg == 4:
            for k in range(CFG.wn): wot_chunk(A, k)
        elif CFG.wreg >= 2:
            wot_flagaddr(A); wot_regs(A, False)
        A(f"s_and_b32 s3, s2, 1\ns_lshl_b32 s3, s3, 2\ns_add_u32 s3, s3, s29\ns_mul_i32 s3, s3, 6\ns_lshl_b32 s41, s3, 10\ns_add_u32 s41, s41, {KVF_OFF}\ns_add_u32 s3, s3, {FK}")
        A(f"v_min_u32 v14, 5, v24\nv_add_lshl_u32 v14, v14, s3, 7\ns_mul_i32 s43, s29, 6144\ns_add_u32 m0, s43, {P0}")
        poll2(A, 14, 16, CFG.slo, CFG.slo2)
        for b in range(6):
            if b == 4: A(f"s_add_u32 m0, s43, {P0 + 4096}\ns_nop 0")
            if b == 5: A("s_bitcmp1_b32 s29, 0\ns_cselect_b64 exec, 0xffff, -1")
            A(f"buffer_load_dwordx4 v{20+b//4}, s[36:39], s41 offen offset:{(b%4)*1024} sc1 lds")
        A("s_mov_b64 exec, -1\ns_waitcnt vmcnt(0)")
        if only_q: A("s_barrier")
        A.label(L)
        if not only_q: A("s_barrier")
        if CFG.wreg >= 2:
            L = A.newlabel("Lg")
            A(f"s_cmp_lt_u32 s2, 144\ns_cbranch_scc1 {L}\ns_sub_u32 s3, s2, 208\ns_cmp_lt_u32 s3, 32\ns_cbranch_scc1 {L}")
            if CFG.wreg == 4:
                for k in range(CFG.wn - (len(str(CFG.nat)) if CFG.nat else 0)): wot_chunk(A, k)
            else: wot_flagaddr(A); wot_regs(A, False)
            A("s_waitcnt vmcnt(0)")
            A.label(L)
    assert CFG.bgo == 2
    hook = {15: lambda: A("buffer_load_dwordx2 v[30:31], v28, s[96:99], 0 offen sc1")}
    def nine(so, base):
        for j in range(9):
            if j % 4 == 0: A(f"s_add_u32 m0, s34, {base + (j//4)*4096}\ns_nop 0")
            A(f"buffer_load_dwordx4 v{20+j//4}, s[36:39], s{so} offen offset:{(j%4)*1024} sc1 lds")
    def ld_o():
        L = A.newlabel("Lt")
        A(f"v_cmp_ne_u64 vcc, s[100:101], v[30:31]\ns_nop 4\ns_cbranch_vccz {L}")
        poll(A, 28, 30)
        A.label(L)
        nine(33, O_LDS)
        A(f"s_lshl_b32 s3, s29, 10\ns_add_u32 m0, s3, {O_TOP - 1024}\ns_nop 0\nbuffer_load_dwordx4 v22, s[36:39], s33 offen offset:1024 sc1 lds")
    def ld_w(u, regs):
        if regs and CFG.w0 <= u < CFG.w0 + CFG.wn:
            def put():
                A(f"s_add_u32 s3, s34, {W_SLOT[u]*STAGE}\nv_add_u32 v36, s3, v20\ns_add_u32 s32, s32, 9216")
                for b in range(9): A(f"ds_write_b128 v36, {v(WR+36*(u-CFG.w0)+4*b,4)} offset:{b*1024}")
            return (f"w{u}", 0, put)
        def emit():
            nine(32, W_SLOT[u]*STAGE)
            A("s_add_u32 s32, s32, 9216")
        return (f"w{u}", 9, emit)
    sample = ("fx", 1, lambda: A("buffer_load_dwordx2 v[34:35], v32, s[96:99], 0 offen sc1"))
    def mksched(regs):
        after = {15: [("o", 10, ld_o)], 16: [ld_w(0, regs)], 17: [], 18: [ld_w(2, regs)], 19: [ld_w(3, regs)], 20: [ld_w(4, regs)], 21: []}
        after[18 if CFG.hold else 17].insert(0, ld_w(1, regs))
        after[CFG.smp or 20].append(sample)
        inreg = [u for u in range(5) if regs and CFG.w0 <= u < CFG.w0 + CFG.wn]
        lg = {18+u: (9 if u+1 in inreg else 0) for u in inreg}
        return (23, after, {18+u: f"w{u}" for u in range(4)} | {22: "fx"}, lg)
    sched = [mksched(CFG.wreg in (1, 2, 4))]
    if CFG.lm: sched = [(18, {15: [("o", 10, ld_o)], 16: [ld_w(0, False)], 17: [] if CFG.hold or CFG.lm == 2 else [ld_w(1, False)]}, {}, {})]
    if CFG.wreg == 3: sched = [mksched(True), ("s_cmp_lt_u32 s2, 144", mksched(False))]
    A("s_cmp_ge_u32 s16, 6\ns_cbranch_scc1 K2_ldW")
    srd_off(A, 8, 26, U_OFF, U_SZ)
    A(f"s_sub_u32 s17, s16, 4\ns_lshl_b32 s21, s22, 2\ns_add_u32 s21, s21, s28\ns_mul_i32 s40, s21, 36\ns_mul_i32 s21, s21, {36*9216}")
    if 1:
        if CFG.hint2 >= 0:
            A(f"s_lshr_b32 s3, s40, 2\ns_and_b32 s41, s23, 7\ns_add_u32 s3, s3, s41\ns_add_u32 s3, s3, {FG}\ns_lshl_b32 s3, s3, 7\nv_mov_b32 v9, s3")
        A(f"s_add_u32 s40, s40, s17\ns_add_u32 s40, s40, {FU}\nv_min_u32 v8, 17, v24\nv_lshl_add_u32 v8, v8, 1, s40\nv_lshlrev_b32 v8, 7, v8")
    if CFG.own:
        def altP(issue, L):
            A("s_cmp_ge_u32 s2, 144\ns_cbranch_scc1 K2_pn\ns_barrier\ns_mov_b64 exec, 1\nbuffer_load_dwordx2 v[10:11], v8, s[96:99], 0 offen sc1\ns_barrier\ns_barrier")
            A("s_waitcnt vmcnt(0)\nv_cmp_ne_u64 vcc, s[100:101], v[10:11]\ns_nop 4\ns_cbranch_vccz K2_pg")
            poll(A, 8, 10, CFG.sl1)
            A.label("K2_pg")
            A("s_mov_b64 exec, -1")
            poll(A, 8, 10, CFG.sl2)
            pt(A, "go2")
            for sl in (2, 3, 0): issue(sl)
            A(f"s_branch {L}_2")
            A.label("K2_pn")
        def altW(issue, L):
            A(f"s_cmp_ge_u32 s2, 144\ns_cbranch_scc1 K2_wn\ns_mov_b32 s25, s21\ns_mul_i32 s21, s24, {128*4096}\ns_lshl_b32 s3, s23, 8\ns_add_u32 s21, s21, s3")
            issue(0, False)
            A(f"s_add_u32 s21, s21, {64*4096}")
            issue(1, False)
            A("s_mov_b32 s21, s25")
            if CFG.early: A("s_barrier")
            issue(2)
            A(f"s_branch {L}")
            A.label("K2_wn")
    if CFG.own >= 2:
        def altP(issue, L):
            A("s_cmp_ge_u32 s2, 144\ns_cbranch_scc1 K2_pn\ns_barrier")
            if CFG.own == 4:
                A("s_mov_b64 exec, 1")
                poll(A, 8, 10, CFG.sl1g)
                A("s_barrier")
                poll(A, 8, 10, CFG.sl2g)
            else: poll2(A, 8, 10, CFG.sl1g, CFG.sl2g)
            pt(A, "go2")
            if CFG.own == 3: A("s_barrier")
            issue(2); issue(3)
            A("s_waitcnt vmcnt(9)\ns_barrier")
            issue(0); issue(1)
            first_chunks()
            A(f"s_branch {L}_3")
            A.label("K2_pn")
        def altW(issue, L):
            A(f"s_cmp_ge_u32 s2, 144\ns_cbranch_scc1 K2_wn\ns_mov_b32 s25, s21\ns_mul_i32 s21, s24, {128*4096}\ns_lshl_b32 s3, s23, 8\ns_add_u32 s21, s21, s3")
            issue(0, False)
            A(f"s_add_u32 s21, s21, {64*4096}")
            issue(1, False)
            A("s_mov_b32 s21, s25")
            if CFG.own > 2:
                if CFG.early: A("s_barrier")
                issue(2); issue(3)
                A("s_waitcnt vmcnt(16)\ns_barrier\ns_waitcnt vmcnt(8)\ns_barrier")
                issue(0); issue(1)
                first_chunks()
                A(f"s_branch {L}_3")
                A.label("K2_wn")
                return
            A("s_waitcnt vmcnt(0)")
            def more():
                base = 16*CFG.pf2s + 32*CFG.pf2kv + 16*CFG.pf2q + 32*CFG.pf2l + 8*CFG.pf2ls
                A(f"s_mov_b64 s[40:41], s[56:57]\ns_mov_b32 s42, s58\ns_lshr_b32 s25, s2, 3\ns_lshl_b32 s25, s25, 1\ns_add_u32 s25, s25, s17\ns_add_u32 s25, s25, {base}")
                pf_w2(A, 4, 25, 36, CFG.pf2G, srdn=12)
                A("s_mov_b64 s[56:57], s[40:41]\ns_mov_b32 s58, s42")
            if CFG.pf2G and CFG.pf2Gp == 1: more()
            A("s_barrier")
            issue(2); issue(3)
            if CFG.pf2G and CFG.pf2Gp == 0: more()
            A(f"s_waitcnt vmcnt({8 + (CFG.pf2G if CFG.pf2Gp == 0 else 0)})\ns_barrier")
            issue(0); issue(1)
            first_chunks()
            A(f"s_branch {L}_3")
            A.label("K2_wn")
        assert (CFG.early or CFG.own > 2) and not CFG.pft
    def wait_u():
        go_barrier()
        poll2(A, 8, 10, CFG.sl1, CFG.sl2, "s_cmp_lt_u32 s2, 144" if CFG.gdir else None, 9 if CFG.hint2 >= 0 else None)
        if CFG.dstag:
            mode, n = CFG.dstag.split(",")
            if mode == "ramp":
                A(f"s_lshr_b32 s3, s2, 5\nK2_ds:\ns_cmp_eq_u32 s3, 0\ns_cbranch_scc1 K2_ds1\ns_sleep {n}\ns_sub_u32 s3, s3, 1\ns_branch K2_ds\nK2_ds1:")
            else:
                A(f"s_cmp_lt_u32 s2, {mode}\ns_cbranch_scc1 K2_ds1\ns_sleep {n}\nK2_ds1:")
        pt(A, "go2")
    emit_loader_lin(A, 18, 9, POFF, 17, 8, 21, 20, 18, CFG.auxP, G2, pre=wait_u, hook=hook, sched=sched, alt=altP, loopend=lend2)
    A("s_branch K2_rx")
    A.label("K2_ldW")
    srd(A, 12, 4, S*F*2)
    A(f"s_sub_u32 s17, s16, 6\ns_mul_i32 s21, s28, {1152*4096}\ns_lshl_b32 s18, s23, 8\ns_add_u32 s21, s21, s18")
    every = None
    if CFG.pft:
        nl = -(-90 // CFG.pft)
        A(f"s_and_b32 s41, s23, 7\ns_lshl_b32 s42, s22, 3\ns_add_u32 s41, s41, s42\ns_lshl_b32 s41, s41, 1\ns_add_u32 s41, s41, s17\ns_mul_i32 s41, s41, 11520\ns_add_u32 s41, s41, {WOT_OFF}")
        A(f"v_mul_u32_u24 v26, {128*CFG.pft}, v24\nv_add_u32 v26, s41, v26\ns_bfm_b64 s[48:49], {nl}, 0\ns_mov_b32 s42, {-128*(18 - CFG.pft)}")
        def every():
            A(f"s_max_i32 s3, s42, 0\ns_cmp_lt_i32 s42, 0\ns_cselect_b32 s41, {OOB}, 0\nv_or_b32 v25, s41, v26\ns_mov_b64 exec, s[48:49]")
            A(f"buffer_load_dword v{SINK}, v25, s[36:39], s3 offen sc1\ns_mov_b64 exec, -1\ns_add_u32 s42, s42, 128")
    def mid():
        go_barrier(True)
    if CFG.early: A("s_cmp_lt_u32 s2, 144\ns_cbranch_scc1 K2_nob")
    A("s_sub_u32 s3, s2, 208\ns_cmp_lt_u32 s3, 32\ns_cbranch_scc1 K2_nob\ns_barrier\nK2_nob:")
    emit_loader_W(A, 18, "pi", 17, 12, 21, 4096, 20, 18, CFG.auxW2, G2, every=every, mid=mid, hook=hook, sched=sched, alt=altW, loopend=lend2)
    A.label("K2_rx")
    if CFG.lm:
        OF, LA = 136, 200
        A(f"v_add_u32 v2, {O_LDS}, v20\nv_add_u32 v3, {O_TOP}, v20")
        A(f"v_and_b32 v4, 15, v24\nv_mul_u32_u24 v4, {RED_RS}, v4\nv_lshrrev_b32 v5, 4, v24\nv_lshl_add_u32 v4, v5, 4, v4\ns_and_b32 s3, s29, 1\ns_mul_i32 s3, s3, {16*RED_RS}\nv_add_u32 v5, s3, v4")
        A(f"s_lshl_b32 s3, s29, 6\nv_add_u32 v4, s3, v4\nv_pk_mov_b32 v[216:217], 0, 0\nv_pk_mov_b32 v[218:219], 0, 0")
        def oreads(u):
            return [f"ds_read_b128 {v(OF+32*(u&1)+8*g+4*j,4)}, " + (f"v3 offset:{g*1024}" if (u, j) == (4, 1) else f"v2 offset:{g*9216 + (2*u+j)*1024}") for g in range(4) for j in range(2)]
        def lmf(u):
            return [f"{MF} {v(LA+8*k+4*j,4)}, {v(WR+32*(u-2)+8*g+4*k,4)}, {v(OF+32*(u&1)+8*g+4*j,4)}, {v(LA+8*k+4*j,4) if u > 2 or g else 0}" for g in range(4) for k in range(2) for j in range(2)]
        if CFG.lm == 2:
            def hreads(h):
                u = 1 + (h >> 1)
                return [f"ds_read_b128 {v(168+16*(h&1)+8*(g&1)+4*j,4)}, " + (f"v3 offset:{g*1024}" if (u, j) == (4, 1) else f"v2 offset:{g*9216 + (2*u+j)*1024}") for g in (2*(h&1), 2*(h&1)+1) for j in range(2)]
            def hmf(h):
                return [f"{MF} {v(LA+8*k+4*j,4)}, {v(WR+32*(h>>1)+8*g+4*k,4)}, {v(168+16*(h&1)+8*(g&1)+4*j,4)}, {v(LA+8*k+4*j,4) if h or g else 0}" for g in (2*(h&1), 2*(h&1)+1) for k in range(2) for j in range(2)]
            A("s_waitcnt vmcnt(0)\ns_barrier")
            for r in hreads(0): A(r)
            for h in range(8):
                if h == CFG.lb: A("s_barrier")
                if h == CFG.ls: A("buffer_load_dwordx2 v[34:35], v32, s[96:99], 0 offen sc1")
                block(A, hmf(h), hreads(h+1) if h < 7 else [], False)
        else:
            A(f"s_waitcnt vmcnt({0 if CFG.hold else 9})\ns_barrier")
            for r in oreads(2): A(r)
            smp = "buffer_load_dwordx2 v[34:35], v32, s[96:99], 0 offen sc1" if CFG.smp else "v_pk_mov_b32 v[34:35], 0, 0"
            if CFG.lord == 0:
                if CFG.hold: ld_w(1, False)[2]()
                block(A, lmf(2), oreads(3), False)
                A("s_waitcnt vmcnt(0)\ns_barrier")
                block(A, lmf(3), oreads(4), False)
                A("s_barrier\n" + smp)
                block(A, lmf(4), [], False)
            else:
                block(A, lmf(2), oreads(3), False)
                if CFG.hold: ld_w(1, False)[2]()
                block(A, lmf(3), oreads(4), False)
                block(A, lmf(4), [], False)
                A("s_waitcnt vmcnt(0)\ns_barrier\ns_barrier\n" + smp)
        A(f"ds_write_b128 v5, v[216:219] offset:{REDL + 512}\ns_nop 3")
        for k in range(2):
            for j in range(2): A(f"ds_write_b128 v4, {v(LA+8*k+4*j,4)} offset:{REDL + k*256 + j*16*RED_RS}")
        A("s_waitcnt vmcnt(0)")
    A("s_cmp_eq_u32 s29, s28\ns_cbranch_scc1 K2_fin")
    srd_off(A, 8, 26, PART_OFF, PART_SZ)
    A(f"s_add_u32 m0, s31, {PB}\nv_cmp_ne_u64 vcc, s[100:101], v[34:35]\nv_lshrrev_b32 v2, 5, v24\nv_xor_b32 v2, v2, v24\nv_lshlrev_b32 v2, 4, v2\ns_nop 1\ns_cbranch_vccz K2_rx1\ns_mov_b64 exec, 1")
    poll(A, 32, 34, CFG.slx)
    A.label("K2_rx1")
    pt(A, "poll")
    for t in range(9):
        A(f"buffer_load_dwordx4 v2, s[8:11], s30 offen sc1 lds\ns_add_u32 m0, m0, {PBS}\ns_add_u32 s30, s30, 1024")
    A("s_branch K2_fin")
    A.label("K_end")
    A("s_endpgm")
    DBG["on"] = False

def k2_final_prep(A, nitems):
    srd(A, 8, 44, S*D*2)
    srd(A, 12, 6, S*2)
    srd(A, 52, 46, S*D*2)
    A("s_lshl_b32 s50, s23, 2\ns_add_u32 s50, s50, s28\ns_lshl_b32 s51, s50, 6\ns_mul_i32 s50, s50, 36864\ns_mul_i32 s17, s22, 288\ns_add_u32 s50, s50, s17")
    for n in range(nitems):
        FI = (244, 232)[n]; XB = FI + 4
        if n: A(f"v_mov_b32 v{FI}, {OOB}\ns_cmp_lg_u32 s16, 7\ns_cbranch_scc1 K2_fp1")
        A("v_mov_b32 v252, v0" if n == 0 else "v_and_b32 v252, 63, v0\nv_add_u32 v252, 512, v252")
        A("v_mul_u32_u24 v253, 3641, v252\nv_lshrrev_b32 v253, 16, v253\nv_mul_u32_u24 v254, 18, v253\nv_sub_u32 v254, v252, v254")
        A(f"v_mul_u32_u24 v252, 1152, v253\nv_lshl_add_u32 v{FI}, v254, 4, v252")
        A(f"v_mul_u32_u24 v252, {RED_RS}, v253\nv_lshl_add_u32 v{FI+1}, v254, 5, v252\nv_add_u32 v{FI+1}, {RED}, v{FI+1}")
        A(f"v_lshrrev_b32 v252, 1, v254\nv_mul_u32_u24 v252, {PBS}, v252\nv_and_b32 v254, 1, v254\nv_lshl_add_u32 v252, v254, 9, v252\nv_xor_b32 v254, v254, v253\nv_and_b32 v254, 15, v254")
        A(f"v_lshl_add_u32 v252, v254, 4, v252\nv_lshrrev_b32 v254, 4, v253\nv_lshl_add_u32 v252, v254, 3, v252\nv_add_u32 v{(241, 240)[n]}, {PB}, v252\nv_add_u32 v{FI+2}, {PB_OWN}, v252")
        A("v_lshlrev_b32 v253, 1, v253")
        A(f"buffer_load_dwordx4 {v(XB,4)}, v{FI}, s[8:11], s50 offen\nbuffer_load_ushort v{FI+3}, v253, s[12:15], s51 offen")
        if n: A.label("K2_fp1")
    A("v_mov_b32 v252, v241")

HEADER = open("parallel_sum__linear_kernel_hedgehog__mixer_token_mlp__prompt.s.ref").read().split("; Override launch")[0] if __name__ == "__main__" else ""

DOC = """;
; Hand-offs: write-through stores, vmcnt(0), then a flag line in d_ws that holds this launch's tag; readers use sc1 loads.
;"""

def gen(**kw):
    global CFG
    for k in dir(Cfg):
        if not k.startswith("_"): setattr(CFG, k, kw.get(k, getattr(Cfg, k)))
    A = Asm()
    if HEADER: A(HEADER.rstrip())
    A(DOC)
    A(f"; @launch grid=(256,1,1) block=(512,1,1) lds={LDS_BYTES}")
    A('.amdgcn_target "amdgcn-amd-amdhsa--gfx950"\n.text')
    gen_k0(A); gen_k1(A); gen_k2(A)
    A.label("CODE_END")
    A("s_endpgm")
    A('.section .rodata,"a"')
    kernel_desc(A, KNAME, 256)
    return A.text()

if __name__ == "__main__":
    out = sys.argv[1] if len(sys.argv) > 1 else "parallel_sum__linear_kernel_hedgehog__mixer_token_mlp__prompt.s"
    kw = {}
    for a in sys.argv[2:]:
        k, val = a.split("=")
        kw[k] = val if not val.lstrip("-").isdigit() else int(val)
    open(out, "w").write(gen(**kw))
```

```python
import math, struct, sys
from asmlib import *

def f2u(x): return struct.unpack("<I", struct.pack("<f", x))[0]
LOG2E = math.log2(math.e)
OOB = 0x80000000
GC0 = 2*math.sqrt(2/math.pi)*LOG2E
GS = (GC0*0.044715) ** (1/3)

S, D, F, H, DH = 2048, 576, 4608, 32, 18
KA_X, KA_WQKV, KA_WPHI, KA_WO, KA_BX, KA_W1, KA_B1, KA_W2, KA_B2, KA_OUT, KA_DBG, KA_WS = [8*i for i in range(12)]
RS_OFF, RS_SZ = 0x0, 128*128
HT_OFF, HT_SZ = 0x240000, 2359296
WF_OFF, WF_SZ = 0x480000, 6*18*18*1024
U_OFF, U_SZ = 0x680000, 5308416
PHIQ_OFF, PHIQ_SZ = 0xC00000, 4718592
KVP_OFF, KVP_SZ = 0x1080000, 16*48*2048
KVF_OFF, KVF_SZ = 0x12C0000, 48*1024
WOT_OFF, WOT_SZ = 0x1300000, 16*45*1024
OB_OFF, OB_SZ = 0x2000000, 64*4*10240
PART_OFF, PART_SZ = 0x1400000, 64*16*9216
FLAG_OFF, FLAG_SZ = 0x1F00000, 0x58000
F0, F1, FU, FW, FK, FP, FO, FX, FE = 0, 256, 792, 712, 1368, 1416, 1480, 1608, 2632
FH, FG = 704, 2640
KNAME = "parallel_sum__linear_kernel_hedgehog__mixer_token_mlp__prompt_kernel"
SINK = 255
STAMP_OFF, STAMP_SZ = 0x3000000, 0x100000

STAGE, POFF, WOFF, NST = 36864, 0, 18432, 4
STAGE2 = STAGE
V_PA, V_PB, V_W0A, V_W1A, V_W0B, V_W1B = 2, 3, 4, 5, 6, 7
V_PF, V_WF, V_ACC = 8, 80, 96
def pf(b, t): return v(V_PF + b*36 + t*4, 4)
def wf(b, j): return v(V_WF + b*8 + j*4, 4)
def accr(st, t, j): return V_ACC + st*72 + (t*2+j)*4
def acc(st, t, j): return v(accr(st, t, j), 4)
MF = "v_mfma_f32_16x16x32_bf16"

class Cfg:
    stamp = False
    auxW1 = ""; auxW2 = ""; auxP = "sc1"; auxSt = "sc1"
    G1 = 0; G2 = 0; GA = 0
    auxOut = ""; flagpos = 1; pollpos = 1
    pts = ""; pf1b = 0; pf2w = 0; pubpos = 0; amp = ""; lb = 4; ls = 6; w1b = 0; w1i = 3; gsc = 0; ofine = 0; nat = 0; chore = 0; wfirst = 0; w1at = 0; w1n = 1; stsw = 0; lord = 0; lm = 0; wat = 932; pf1kv = 0; dfold = 0; tl0 = 0; rot8 = 0; pf2G = 0; pf2Gp = 0; sl1g = 8; sl2g = 1; sA = 0; wn = 2; w0 = 2; rev2 = 0; early = 0; own = 0; ownpf = 0; GO = 4; burn = ""; w22 = 0; koff = 0; dstag = ""; wreg = 0; wpos = 3; glag = 0; hold = 1; smp = 20; prio = 0; prio1 = 0; pfpos = 0; c3s = 0; hint2 = -1; hint1 = 0; prew = 0; gdir = 0; half = 0; pf2l = 0; pf2ls = 0; ost = 0; slo2 = 1; slx = 0; slo = 4; opos = 0; dl0 = 0; dlf = 0; dlw = 0; pff = 0; wide = 0; wot1 = 0; pf1q = 0; slim = 1; unroll = 0; sl0a = 0; wlate = 0; qlim = -1; pfbar = 0; pf1a = 0; c3w2 = 0; c3w1 = 0; swap13 = 1; tlb = 0; sl1 = 0; sl2 = 0; bgo = 0; sl0 = 0; slk = 0
    dbg_nopub = 0; dbg_hot = 0; dbg = ""
    pfc = 0
    pf1 = 0
    pf1l = 0; pf1rev = 0; pf2g = 0; pf2pos = 3
    pf1pos = 0
    pf1s = 0
    pft = 0
    pf2kv = 0; pf2q = 0; pf2s = 0
    probe = ""
CFG = Cfg()

def stamp(A, i):
    if CFG.stamp: A(f"{'s_memtime' if CFG.stamp == 2 else 's_memrealtime'} s[{64+2*i}:{65+2*i}]")
def pt(A, name):
    L = CFG.pts.split(",")
    if name in L: stamp(A, 1 + L.index(name))
def stamp_flush(A):
    if not CFG.stamp: return
    A("s_waitcnt vmcnt(0)")
    stamp(A, 13)
    A("s_waitcnt lgkmcnt(0)")
    srd_off(A, 92, 26, STAMP_OFF, STAMP_SZ)
    A("s_lshl_b32 s63, s2, 3\ns_add_u32 s63, s63, s16\ns_lshl_b32 s63, s63, 6\ns_mov_b64 exec, 1\nv_mov_b32 v1, 0")
    for i in range(14):
        A(f"v_mov_b32 v2, s{64+2*i}\nbuffer_store_dword v2, v1, s[92:95], s63 offen offset:{4*i}")

def emit_compute_addr(A, s_wave, mode):
    if CFG.w22 and mode != "lin": return addr22(A, s_wave, mode)
    A("v_and_b32 v1, 63, v0")
    A(f"v_lshlrev_b32 v{V_PA}, 4, v1")
    A(f"v_add_u32 v{V_PB}, {2*STAGE}, v{V_PA}")
    if mode == "lin":
        A("v_lshrrev_b32 v8, 5, v1\nv_lshlrev_b32 v8, 12, v8\nv_bfe_u32 v9, v1, 4, 1\nv_lshl_add_u32 v8, v9, 7, v8\nv_bfe_u32 v9, v1, 2, 2\nv_lshl_add_u32 v8, v9, 4, v8")
        A("v_bfe_u32 v9, v1, 1, 1\nv_mul_u32_u24 v9, 320, v9\nv_add_u32 v8, v8, v9\nv_and_b32 v9, 1, v1\nv_lshl_add_u32 v8, v9, 3, v8")
        A(f"s_lshl_b32 s3, s{s_wave}, 10\ns_add_u32 s3, s3, {WOFF}\nv_add_u32 v{V_W0A}, s3, v8")
        A(f"v_xor_b32 v{V_W1A}, 64, v{V_W0A}\nv_add_u32 v{V_W0B}, {2*STAGE}, v{V_W0A}\nv_add_u32 v{V_W1B}, {2*STAGE}, v{V_W1A}")
        return
    A("v_lshrrev_b32 v8, 2, v1")
    A("v_and_b32 v9, 7, v8")
    if mode == "std":
        A("v_and_b32 v10, 12, v8\nv_add_u32 v8, v8, v10")
    A(f"s_lshl_b32 s3, s{s_wave}, 1")
    A("v_xor_b32 v9, s3, v9\nv_lshlrev_b32 v9, 5, v9\nv_lshl_add_u32 v9, v8, 8, v9")
    A("v_and_b32 v8, 3, v1\nv_lshl_add_u32 v9, v8, 3, v9")
    A(f"v_add_u32 v{V_W0A}, {WOFF}, v9")
    A(f"v_xor_b32 v{V_W1A}, 32, v{V_W0A}")
    A(f"v_add_u32 v{V_W0B}, {2*STAGE}, v{V_W0A}")
    A(f"v_add_u32 v{V_W1B}, {2*STAGE}, v{V_W1A}")

X22 = 80
def addr22(A, s_wave, mode):
    A("v_and_b32 v1, 63, v0")
    A(f"v_lshlrev_b32 v{V_PA}, 4, v1\nv_add_u32 v{V_PB}, {2*STAGE}, v{V_PA}")
    A(f"s_and_b32 s3, s{s_wave}, 1\ns_mul_i32 s3, s3, 5120\nv_add_u32 v4, s3, v{V_PA}\nv_add_u32 v5, s3, v{V_PB}")
    A("v_lshrrev_b32 v8, 2, v1\nv_and_b32 v9, 7, v8")
    if mode == "std": A("v_and_b32 v10, 12, v8\nv_add_u32 v8, v8, v10")
    A(f"s_lshl_b32 s3, s{s_wave}, 1")
    A("v_xor_b32 v9, s3, v9\nv_lshlrev_b32 v9, 5, v9\nv_lshl_add_u32 v9, v8, 8, v9")
    A(f"v_and_b32 v8, 3, v1\nv_lshl_add_u32 v9, v8, 3, v9\nv_add_u32 v{X22}, {WOFF}, v9")
    for jj in range(1, 4): A(f"v_xor_b32 v{X22+jj}, {32*jj}, v{X22}")
    for jj in range(4): A(f"v_add_u32 v{X22+4+jj}, {2*STAGE}, v{X22+jj}")
def pf22(b, i): return V_PF + 36*b + 4*i
def wf22(b, jj): return V_PF + 36*b + 20 + 4*jj
def reads22(slot, sub, b, mode):
    hi = slot >= 2; so = (slot & 1) * STAGE
    second = 1024 if mode == "std" else 4096
    W = []
    for jj in range(4):
        a = X22 + jj + (4 if hi else 0)
        W.append([f"ds_read_b64_tr_b16 {v(wf22(b,jj)+2*h,2)}, v{a} offset:{so + sub*8192 + h*second}" for h in range(2)])
    P = [f"ds_read_b128 {v(pf22(b,i),4)}, v{(5 if hi else 4) if i < 4 else (V_PB if hi else V_PA)} offset:{so + (sub*9+i)*1024}" for i in range(5)]
    return W[0] + W[1] + W[2] + W[3] + P
def mfmas22(b, w_is_A):
    M = []
    for blk in range(9):
        i, h = (blk >> 1, blk & 1) if blk < 8 else (4, 0)
        for j in range(2):
            p_, w_ = v(pf22(b,i),4), v(wf22(b,2*h+j),4)
            M.append(f"{MF} {acc(0,blk,j)}, {w_ if w_is_A else p_}, {p_ if w_is_A else w_}, {acc(0,blk,j)}")
    return M

def reads_P(slot, sub, b):
    a = V_PB if slot >= 2 else V_PA
    so = (slot & 1) * STAGE
    return [f"ds_read_b128 {pf(b,t)}, v{a} offset:{so + (sub*9+t)*1024}" for t in range(9)]
def reads_W(slot, sub, b, mode):
    hi = slot >= 2
    so = (slot & 1) * STAGE
    R = []
    if mode == "lin":
        a = (V_W0B, V_W1B) if hi else (V_W0A, V_W1A)
        return [f"ds_read_b64_tr_b16 {v(V_WF + b*8 + j*4 + 2*h, 2)}, v{a[h]} offset:{so + j*512}" for j in range(2) for h in range(2)]
    second = 1024 if mode == "std" else 4096
    for j in range(2):
        a = (V_W0B, V_W1B)[j] if hi else (V_W0A, V_W1A)[j]
        base = V_WF + b*8 + j*4
        R.append(f"ds_read_b64_tr_b16 {v(base,2)}, v{a} offset:{so + sub*8192}")
        R.append(f"ds_read_b64_tr_b16 {v(base+2,2)}, v{a} offset:{so + sub*8192 + second}")
    return R

DBG = {"on": False}
def dbg(x): return DBG["on"] and x in CFG.dbg.split(",")
def block(A, M, R, barrier):
    if dbg("nomfma"): M = ["s_nop 3"]*len(M)
    if dbg("noread"): R = []
    if dbg("noreadP"): R = [r for r in R if "tr_b16" in r]
    if dbg("halfP"): R = [r for i, r in enumerate(R) if "tr_b16" in r or i % 2]
    A("s_waitcnt lgkmcnt(0)")
    if barrier: A("s_barrier")
    ri = 0
    for m in M:
        A(m)
        if ri < len(R):
            if R[ri]: A(R[ri])
            ri += 1
    assert ri == len(R)

def mfmas(st, pb, wb, w_is_A):
    M = []
    for t in range(9):
        for j in range(2):
            a, b = (wf(wb,j), pf(pb,t)) if w_is_A else (pf(pb,t), wf(wb,j))
            M.append(f"{MF} {acc(st,t,j)}, {a}, {b}, {acc(st,t,j)}")
    return M

def emit_compute_loop(A, n, mode, w_is_A, s_cnt, first=None, lastfill=None, hooks=None, loopend=None, more=None, own=False):
    lin = mode == "lin"
    if own:
        rd = lambda sl, sub, b: reads_W(sl, sub, b, mode) + reads_P(sl, sub, b)
        A("s_cmp_ge_u32 s2, 144\ns_cbranch_scc1 K2_cn")
        if CFG.own > 2: A("s_barrier")
        pt(A, "own")
        for r in rd(0, 0, 0): A(r)
        for k in range(4): block(A, mfmas(0, k & 1, k & 1, w_is_A[0]), rd((k+1) >> 1, (k+1) & 1, (k+1) & 1) if k < 3 else [], False)
        A("s_barrier")
        if first: first()
        for r in rd(2, 0, 0): A(r)
        A(f"s_mov_b32 s{s_cnt}, {(n - 1) // NST}\ns_branch K2_c2")
        A.label("K2_cn")
    A("s_barrier")
    if first: first()
    w22 = CFG.w22 and not lin
    for r in (reads22(0, 0, 0, mode) if w22 else reads_W(0, 0, 0, mode) + reads_P(0, 0, 0)): A(r)
    def stage(i, last):
        slot = i % NST; nxt = (i+1) % NST
        if lin:
            wb = i & 1
            block(A, mfmas(0, 0, wb, w_is_A[0]), reads_P(slot, 1, 1), False)
            block(A, mfmas(1, 1, wb, w_is_A[1]), (lastfill or []) if last else reads_W(nxt, 0, wb ^ 1, mode) + reads_P(nxt, 0, 0), not last)
        elif w22:
            block(A, mfmas22(0, w_is_A[0]), reads22(slot, 1, 1, mode), False)
            block(A, mfmas22(1, w_is_A[1]), (lastfill or []) if last else reads22(nxt, 0, 0, mode), not last)
        else:
            x0, x1 = (more or {}).get(i, ([], []))
            block(A, mfmas(0, 0, 0, w_is_A[0]), reads_W(slot, 1, 1, mode) + reads_P(slot, 1, 1) + x0, False)
            block(A, mfmas(0, 1, 1, w_is_A[1]), (lastfill or []) if last else reads_W(nxt, 0, 0, mode) + reads_P(nxt, 0, 0) + x1, not last)
    if CFG.unroll and mode == ("std", "pi")[CFG.unroll-1]:
        for i in range(n):
            stage(i, i == n-1); pt(A, f"s{i}")
            if i == 3 and loopend: loopend()
        return
    nloop = (n - 1) // NST
    L = A.newlabel("Lc")
    A(f"s_mov_b32 s{s_cnt}, {nloop}")
    A.label(L)
    for i in range(NST):
        if own and i == 2: A.label("K2_c2")
        stage(i, False)
    if loopend: loopend()
    A(f"s_sub_u32 s{s_cnt}, s{s_cnt}, 1\ns_cmp_lg_u32 s{s_cnt}, 0\ns_cbranch_scc1 {L}")
    for i in range(nloop*NST, n):
        if hooks and i in hooks: hooks[i]()
        stage(i, i == n-1)

def seq_off(A, s_off, step):
    A(f"s_cmp_ge_u32 s59, s57\ns_cselect_b32 s62, 2, 0\ns_add_u32 s62, s62, s59\ns_mul_i32 s62, s62, s19\ns_add_u32 s{s_off}, s35, s62")
def rot_init(A, G, s_rot, s_off, step):
    if G == "seq":
        A(f"s_mov_b32 s35, s{s_off}\ns_sub_u32 s60, s58, s59\ns_mov_b32 s61, s58\ns_mov_b32 s19, {step}")
        if CFG.rev2: A(f"s_bitcmp1_b32 s2, 0\ns_cselect_b32 s62, {17*step}, 0\ns_cselect_b32 s19, {-step}, s19\ns_add_u32 s35, s35, s62")
        return seq_off(A, s_off, step)
    if DBG.get("koff"):
        A(f"s_and_b32 s58, s2, 6\ns_lshl_b32 s58, s58, 2\ns_mul_i32 s62, s58, {step}\ns_add_u32 s{s_off}, s{s_off}, s62\ns_sub_u32 s58, 32, s58")
    if not G: return
    A(f"s_mul_i32 s62, s{s_rot}, {step}\ns_add_u32 s{s_off}, s{s_off}, s62")
    A(f"s_sub_u32 s60, {G}, s{s_rot}\ns_mov_b32 s61, {G}")
def rot_step(A, G, s_off, step):
    if dbg("noadv"): return
    if dbg("k2W") and step == 64*4096: return
    if dbg("k2P") and step == 18432: return
    if "k1W" in CFG.dbg and step == 64*9216: return
    if "k1P" in CFG.dbg and DBG.get("k1P"): return
    if G == "none": return
    if G == "seq":
        A("s_add_u32 s59, s59, 1\ns_sub_u32 s60, s60, 1\ns_cmp_eq_u32 s60, 0\ns_cselect_b32 s62, s58, 0\ns_cselect_b32 s60, s58, s60\ns_sub_u32 s59, s59, s62")
        A("s_sub_u32 s61, s61, 1\ns_cmp_eq_u32 s61, 0\ns_cselect_b32 s62, s58, 0\ns_cselect_b32 s61, s58, s61\ns_add_u32 s59, s59, s62")
        return seq_off(A, s_off, step)
    A(f"s_add_u32 s{s_off}, s{s_off}, {step}")
    if DBG.get("koff"):
        A(f"s_sub_u32 s58, s58, 1\ns_cmp_eq_u32 s58, 0\ns_cselect_b32 s62, {32*step}, 0\ns_sub_u32 s{s_off}, s{s_off}, s62")
    if not G: return
    A(f"s_sub_u32 s60, s60, 1\ns_cmp_eq_u32 s60, 0\ns_cselect_b32 s62, {G*step}, 0\ns_cselect_b32 s60, {G}, s60\ns_sub_u32 s{s_off}, s{s_off}, s62")
    A(f"s_sub_u32 s61, s61, 1\ns_cmp_eq_u32 s61, 0\ns_cselect_b32 s62, {G*step}, 0\ns_cselect_b32 s61, {G}, s61\ns_add_u32 s{s_off}, s{s_off}, s62")

def emit_loader(A, n, cnt, issue, s_cnt, extra=None, hook=None, post=None, pre=None, mid=None, sched=None, loopend=None, alt=None, inloop=None):
    extra = extra or []
    tot = n + len(extra)
    hook = hook or {}
    def c(i): return 0 if i >= tot else (cnt + (i in hook) if i < n else extra[i-n][0])
    nloop = (n - 3) // NST
    L = A.newlabel("Ll")
    A(f"s_mov_b32 s{s_cnt}, {nloop}")
    if alt: alt(issue, L)
    if pre: pre()
    for i in range(3): issue(i)
    if mid: mid()
    A.label(L)
    for i in range(NST):
        if i >= 2: A.label(L + f"_{i}")
        A(f"s_waitcnt vmcnt({2*cnt})\ns_barrier")
        issue((i+3) % NST)
        if inloop: inloop(i, cnt)
    if loopend: loopend()
    A(f"s_sub_u32 s{s_cnt}, s{s_cnt}, 1\ns_cmp_lg_u32 s{s_cnt}, 0\ns_cbranch_scc1 {L}")
    def run_sched(sched):
        nbar, after, need, lg = sched
        order = [(k, cnt) for k in range(nloop*NST + 3)]
        for i in range(nloop*NST, nbar):
            name = need.get(i, i)
            pos = max(p for p, (k, _) in enumerate(order) if k == name)
            A(f"s_waitcnt vmcnt({sum(c_ for _, c_ in order[pos+1:])})" + (f" lgkmcnt({lg[i]})" if i in lg else "") + "\ns_barrier")
            if i+3 in hook: hook[i+3](); order.append((i+3, 1))
            if i+3 < n: issue((i+3) % NST); order.append((i+3, cnt))
            for name, c_, emit in after.get(i, []):
                emit(); order.append((name, c_))
    if sched:
        X = A.newlabel("Lz")
        if len(sched) > 1: A(f"{sched[1][0]}\ns_cbranch_scc1 {X}_b")
        run_sched(sched[0])
        if len(sched) > 1:
            A(f"s_branch {X}\n{X}_b:")
            run_sched(sched[1][1])
        A.label(X)
        return
    for i in range(nloop*NST, tot):
        A(f"s_waitcnt vmcnt({c(i+1)+c(i+2) + (post[0] if post and i > n-post[2] else 0)})\ns_barrier")
        if post and i == n-post[2]: post[1]()
        if i+3 in hook: hook[i+3]()
        if i+3 < n: issue((i+3) % NST)
        elif i+3 < tot: extra[i+3-n][1]((i+3) % NST)

def emit_loader_lin(A, n, per, ldsoff, s_lw, srdP, s_off, s_cnt, s_tmp, aux="", G=0, s_rot=59, extra=None, post=None, pre=None, hook=None, sched=None, loopend=None, alt=None, inloop=None):
    rot_init(A, G, s_rot, s_off, 2*per*1024)
    A("v_and_b32 v1, 63, v0\nv_lshlrev_b32 v1, 4, v1")
    A(f"s_mul_i32 s{s_tmp}, s{s_lw}, {per*1024}")
    A(f"v_add_u32 v2, s{s_tmp}, v1")
    for q in range(1, (per+3)//4): A(f"v_add_u32 v{2+q}, {q*4096}, v2")
    def issue(slot):
        for j in range(per):
            if j % 4 == 0:
                A(f"s_add_u32 m0, s{s_tmp}, {slot*STAGE + ldsoff + (j//4)*4096}\ns_nop 0")
            if not dbg("noload"): A(f"buffer_load_dwordx4 v{2+j//4}, {s(srdP,4)}, s{s_off} offen offset:{(j%4)*1024} {aux} lds")
        rot_step(A, G, s_off, 2*per*1024)
    emit_loader(A, n, per, issue, s_cnt, extra, hook=hook, post=post, pre=pre, sched=sched, loopend=loopend, alt=alt, inloop=inloop)

def emit_loader_W(A, n, mode, s_lw, srdW, s_off, stride, s_cnt, s_tmp, aux="", G=0, s_rot=59, extra=None, hook=None, post=None, every=None, mid=None, sched=None, loopend=None, alt=None, inloop=None):
    rot_init(A, G, s_rot, s_off, 64*stride)
    A("v_and_b32 v1, 63, v0\nv_lshrrev_b32 v10, 4, v1\nv_and_b32 v11, 15, v1")
    A(f"s_lshl_b32 s{s_tmp}, s{s_lw}, 5\nv_add_u32 v12, s{s_tmp}, v10")
    A(f"s_mov_b32 s3, {stride}\nv_mul_lo_u32 v12, v12, s3")
    for par in range(2):
        A(f"v_or_b32 v13, {4*par}, v10\nv_lshlrev_b32 v13, 1, v13\nv_xor_b32 v13, v13, v11")
        A("v_lshl_add_u32 v13, v13, 4, v12")
        for j in range(8):
            key = (j & 1) if mode == "pi" else ((j >> 1) & 1)
            if key == par:
                A(f"v_add_u32 v{2+j}, {4*j*stride - (j%4)*1024}, v13")
    A(f"s_lshl_b32 s{s_tmp}, s{s_lw}, 13")
    def issue(slot, adv=True):
        for j in range(8):
            if j % 4 == 0:
                A(f"s_add_u32 m0, s{s_tmp}, {slot*STAGE + WOFF + (j//4)*4096}\ns_nop 0")
            if not dbg("noload"): A(f"buffer_load_dwordx4 v{2+j}, {s(srdW,4)}, s{s_off} offen offset:{(j%4)*1024} {aux} lds")
        if every: every()
        rot_step(A, G if adv else 'none', s_off, 64*stride)
    emit_loader(A, n, 9 if every else 8, issue, s_cnt, extra, hook, post, mid=mid, sched=sched, loopend=loopend, alt=alt, inloop=inloop)

def pf_w1(A, srdn, s_col, s_idx, step, count, vl, vt, lim=None, rev=0, lanes=64, base=0):
    for c in range(count):
        if rev: A(f"s_sub_u32 s57, {rev-1}, s{s_idx}\ns_lshl_b32 s57, s57, 6")
        else: A(f"s_mul_i32 s57, s{s_idx}, {lanes}")
        if base: A(f"s_add_u32 s57, s57, {base}")
        A(f"v_add_u32 v{vt}, s57, v{vl}")
        if CFG.koff:
            A(f"s_and_b32 s57, s2, 6\ns_mul_i32 s57, s57, 2560\nv_add_u32 v{vt}, s57, v{vt}\nv_subrev_u32 v{vt+1}, 20480, v{vt}\nv_min_u32 v{vt}, v{vt}, v{vt+1}")
        A(f"v_mul_u32_u24 v{vt+1}, 52429, v{vt}\nv_lshrrev_b32 v{vt+1}, 19, v{vt+1}")
        A(f"v_mul_u32_u24 v{vt+1}, {9216-1280}, v{vt+1}\nv_lshl_add_u32 v{vt}, v{vt}, 7, v{vt+1}")
        if lanes < 64: A(f"s_bfm_b64 exec, {lanes}, 0")
        A(f"buffer_load_dword v{SINK}, v{vt}, {s(srdn,4)}, s{s_col} offen")
        if lanes < 64: A("s_mov_b64 exec, -1")
        A(f"s_add_u32 s{s_idx}, s{s_idx}, {step}")
        if lim is not None: A(f"s_waitcnt vmcnt({lim})")
def pf_code(A, start):
    L = A.newlabel("Lpc")
    A(f"s_getpc_b64 s[60:61]\n{L}:\ns_add_u32 s60, s60, {start}-{L}\ns_addc_u32 s61, s61, 0")
    A(f"v_lshlrev_b32 v90, 7, v0\nv_min_u32 v90, CODE_END-{start}-4, v90\nglobal_load_dword v{SINK}, v90, s[60:61]")
def pf_code5(A, start):
    L = A.newlabel("Lpc")
    A(f"s_getpc_b64 s[60:61]\n{L}:\ns_add_u32 s60, s60, {start}-{L}\ns_addc_u32 s61, s61, 0")
    A(f"s_and_b32 s3, s2, 0x78\ns_add_u32 s3, s3, s16\ns_mul_i32 s3, s3, 6\nv_add_lshl_u32 v90, v1, s3, 7\nv_min_u32 v90, CODE_END-{start}-4, v90")
    A(f"s_mov_b64 exec, 63\nglobal_load_dword v{SINK}, v90, s[60:61]\ns_mov_b64 exec, -1")
def pf_w1_col(A, s_col):
    A(f"s_and_b32 s{s_col}, s2, 7\ns_mul_i32 s{s_col}, s{s_col}, 18\ns_lshr_b32 s{s_col}, s{s_col}, 2\ns_lshl_b32 s{s_col}, s{s_col}, 8")
def pf_w2(A, s_ptr, s_idx, step, count, lim=None, srdn=52):
    if not count: return
    srd(A, srdn, s_ptr, S*F*2)
    A(f"s_bfe_u32 s57, s2, 0x20001\ns_mul_i32 s57, s57, {1152*4096}\ns_and_b32 s58, s2, 1\ns_lshl_b32 s58, s58, 11\ns_add_u32 s57, s57, s58")
    if CFG.rev2:
        A(f"s_sub_u32 s58, 287, s{s_idx}\ns_bitcmp1_b32 s2, 0\ns_cselect_b32 s58, s58, s{s_idx}\ns_lshl_b32 s58, s58, 14\ns_add_u32 s57, s57, s58")
        A(f"s_mov_b32 s58, {step*16384}\ns_bitcmp1_b32 s2, 0\ns_cselect_b32 s58, {-step*16384}, s58")
    else: A(f"s_lshl_b32 s58, s{s_idx}, 14\ns_add_u32 s57, s57, s58\ns_mov_b32 s58, {step*16384}")
    A("v_bfe_u32 v30, v0, 4, 2\nv_lshlrev_b32 v30, 12, v30\nv_and_b32 v31, 15, v0\nv_lshl_add_u32 v30, v31, 7, v30")
    for c in range(count):
        A(f"buffer_load_dword v{SINK}, v30, {s(srdn,4)}, s57 offen\ns_add_u32 s57, s57, s58")
        if lim is not None: A(f"s_waitcnt vmcnt({lim})")

def pf_w2c3(A, s_ptr, s_idx, step, count, lim=None):
    srd(A, 52, s_ptr, S*F*2)
    A(f"s_bfe_u32 s57, s2, 0x20001\ns_mul_i32 s57, s57, {1152*4096}\ns_and_b32 s58, s2, 1\ns_lshl_b32 s58, s58, 11\ns_add_u32 s57, s57, s58")
    A(f"s_lshl_b32 s58, s{s_idx}, 17\ns_add_u32 s57, s57, s58\ns_add_u32 s57, s57, 384")
    A("v_bfe_u32 v30, v0, 1, 5\nv_lshlrev_b32 v30, 12, v30\nv_and_b32 v31, 1, v0\nv_lshl_add_u32 v30, v31, 10, v30")
    for c in range(count):
        L = A.newlabel("Lc3")
        A(f"s_cmp_ge_u32 s{s_idx}, {36 - c*step}\ns_cbranch_scc1 {L}")
        A(f"buffer_load_dword v{SINK}, v30, s[52:55], s57 offen\ns_add_u32 s57, s57, {step << 17}")
        if lim is not None: A(f"s_waitcnt vmcnt({lim})")
        A.label(L)

SPIN_MAX = 60000
def flag_setup(A):
    srd_off(A, 96, 26, FLAG_OFF, FLAG_SZ)
    A(f"s_load_dword s100, s[96:97], {FE*128}")
def touch_pages(A):
    srd(A, 92, 26, OB_OFF + OB_SZ)
    A(f"v_and_b32 v92, 63, v0\nv_cmp_gt_u32 vcc, {CFG.tl0}, v92\nv_lshlrev_b32 v92, 21, v92\nv_mov_b32 v93, {FLAG_OFF + FE*128}\nv_add_u32 v92, 0x1ff000, v92\nv_cndmask_b32 v92, v93, v92, vcc")
    A(f"s_bfm_b64 exec, {CFG.tl0 + 1}, 0\nbuffer_load_dword v{SINK}, v92, s[92:95], 0 offen sc1\ns_mov_b64 exec, -1")
def tag_make(A):
    A("s_add_u32 s100, s100, 1\ns_mul_i32 s101, s100, 0x9e3779b1\ns_add_u32 s101, s101, 0x7f4a7c15")
def raise_flag(A, s_off, vt):
    A(f"v_mov_b32 v{vt}, s100\nv_mov_b32 v{vt+1}, s101\nv_mov_b32 v{vt+2}, s{s_off}")
    if CFG.wide:
        A(f"v_and_b32 v{vt+2}, 7, v0\nv_lshl_add_u32 v{vt+2}, v{vt+2}, 3, s{s_off}")
    A(f"s_mov_b64 exec, {0xff if CFG.wide else 1}\nbuffer_store_dwordx2 {v(vt,2)}, v{vt+2}, s[96:99], 0 offen sc1\ns_mov_b64 exec, -1")
def clear_flag(A, s_off, vt):
    if not CFG.prew: return
    A(f"v_and_b32 v{vt}, 31, v0\nv_lshl_add_u32 v{vt}, v{vt}, 2, s{s_off}\nv_mov_b32 v{vt+1}, 0\ns_bfm_b64 exec, 32, 0\nbuffer_store_dword v{vt+1}, v{vt}, s[96:99], 0 offen sc1\ns_mov_b64 exec, -1")
def poll(A, vaddr, vtmp, sleep=0):
    L = A.newlabel("Lp"); X = A.newlabel("Lx")
    A(f"s_mov_b32 s63, {SPIN_MAX}")
    A.label(L)
    A(f"buffer_load_dwordx2 {v(vtmp,2)}, v{vaddr}, s[96:99], 0 offen sc1")
    A(f"s_waitcnt vmcnt(0)\nv_cmp_ne_u64 vcc, s[100:101], {v(vtmp,2)}\ns_sub_u32 s63, s63, 1\ns_cbranch_scc1 {X}\ns_nop 2\ns_cbranch_vccz {X}")
    A("s_mov_b64 exec, vcc")
    if sleep: A(f"s_sleep {sleep}")
    A(f"s_branch {L}")
    A.label(X)
    A("s_mov_b64 exec, -1")
def poll2(A, vaddr, vtmp, sleep1, sleep2, skip=None, vfirst=None):
    if sleep1:
        L = A.newlabel("Ls")
        if skip: A(f"{skip}\ns_cbranch_scc1 {L}")
        A("s_mov_b64 exec, 1")
        poll(A, vaddr if vfirst is None else vfirst, vtmp, sleep1)
        A.label(L)
    poll(A, vaddr, vtmp, sleep2)

def wave_id(A, sd):
    A(f"v_lshrrev_b32 v1, 6, v0\ns_nop 1\nv_readfirstlane_b32 s{sd}, v1")

def reduce32(A, regs, tmp):
    pad = "s_nop 1" if len(regs) == 1 else "s_nop 0"
    A("s_nop 1")
    for pat in ["quad_perm:[1,0,3,2]", "quad_perm:[2,3,0,1]", "row_half_mirror", "row_mirror"]:
        for r in regs:
            A(f"v_add_f32_dpp v{r}, v{r}, v{r} {pat} row_mask:0xf bank_mask:0xf")
        A(pad)
    for i, r in enumerate(regs): A(f"v_mov_b32 v{tmp+i}, v{r}")
    A("s_nop 1")
    for i, r in enumerate(regs): A(f"v_permlane16_swap_b32 v{r}, v{tmp+i}")
    A("s_nop 1")
    for i, r in enumerate(regs): A(f"v_add_f32 v{r}, v{r}, v{tmp+i}")

XRS, HRS = 1168, 1216
P0 = 3*STAGE
LDS_BYTES = 163840
K0_HL = P0 + 256
K0_DUMMY = K0_HL + 16*HRS
K0_LDS = 83968
def seam_pre(A):
    tag_make(A)
    A(f"s_lshl_b32 s49, s2, 2\ns_add_u32 s49, s49, s16\ns_add_u32 s49, s49, {F1}\ns_cmp_eq_u32 s16, 4\ns_cselect_b32 s49, s2, s49\ns_lshl_b32 s49, s49, 7")
    A(f"s_cmp_gt_u32 s16, 4\ns_cselect_b32 s49, {OOB}, s49")
    A(f"s_load_dwordx4 s[4:7], s[0:1], {KA_W1}\ns_load_dwordx2 s[50:51], s[0:1], {KA_W2}")
def gen_k0(A):
    kernel_head(A, KNAME)
    stamp(A, 0)
    A("s_cmp_ge_u32 s2, 256\ns_cbranch_scc1 K_end")
    A(f"s_load_dwordx4 s[4:7], s[0:1], {KA_X}\ns_load_dwordx2 s[26:27], s[0:1], {KA_WS}")
    A(f"s_load_dwordx4 s[20:23], s[0:1], {KA_WPHI}\ns_load_dwordx2 s[48:49], s[0:1], {KA_W1}")
    A("s_sub_u32 s44, s2, 112\ns_cmp_ge_u32 s44, 128\ns_cbranch_scc1 K0_pf")
    X, P, Q = 20, 8, 56
    A("v_lshrrev_b32 v2, 5, v0\nv_and_b32 v3, 31, v0")
    A("v_mul_u32_u24 v4, 1152, v2\nv_lshl_add_u32 v4, v3, 4, v4")
    A(f"v_cmp_gt_u32 s[30:31], 24, v3\nv_mov_b32 v5, {OOB}")
    A("s_mul_i32 s3, s44, 18432")
    A("v_cndmask_b32 v4, v5, v4, s[30:31]")
    A("s_waitcnt lgkmcnt(0)")
    srd(A, 8, 4, S*D*2)
    for j in range(3): A(f"buffer_load_dwordx4 {v(P+4*j,4)}, v4, s[8:11], s3 offen offset:{384*j}")
    A("s_branch K0_ln")
    A.label("K0_pf")
    wave_id(A, 16)
    def pf_setup():
        flag_setup(A)
        srd(A, 52, 48, S*F*2)
        pf_w1_col(A, 46)
        A("s_and_b32 s47, s2, 0x78\ns_add_u32 s47, s47, s16\nv_and_b32 v1, 63, v0")
    def pf_round(r):
        if not CFG.pf1: return 0
        pf_w1(A, 52, 46, 47, 128, 1, 1, 88, lanes=CFG.pf1)
        return 1
    A("s_cmp_ge_u32 s2, 108\ns_cbranch_scc1 K0_nofold")
    A("s_mul_i32 s18, s2, 7282\ns_lshr_b32 s18, s18, 16")
    A("s_mul_i32 s19, s18, 9\ns_sub_u32 s17, s2, s19")
    A("s_and_b32 s28, s18, 3\ns_lshr_b32 s29, s18, 2")
    F_W, F_P = P0 + 18432, P0 + 18432 + 18432
    for r in range(3):
        A(f"v_add_u32 v4, {512*r}, v0\nv_mul_u32_u24 v5, 58255, v4\nv_lshrrev_b32 v5, 20, v5")
        A(f"v_mul_u32_u24 v5, {3456-288}, v5\nv_lshl_add_u32 v{12+r}, v4, 4, v5")
    A(f"s_mul_i32 s32, s17, {64*3456}\ns_mul_i32 s33, s29, 1152\ns_add_u32 s32, s32, s33\ns_mul_i32 s33, s28, 288\ns_add_u32 s32, s32, s33")
    A(f"s_mul_i32 s33, s28, 5184\nv_lshlrev_b32 v15, 4, v0\nv_subrev_u32 v15, 2048, v15\ns_lshl_b32 s34, s16, 10\ns_add_u32 m0, s34, {F_W}")
    A("s_waitcnt lgkmcnt(0)")
    if CFG.dfold: A(f"s_sleep {CFG.dfold}")
    srd(A, 8, 6, D*3*D*2)
    A(f"buffer_load_dwordx4 v12, s[8:11], s32 offen lds\ns_add_u32 m0, s34, {F_W + 8192}")
    srd(A, 12, 20, H*DH*DH*2)
    A(f"buffer_load_dwordx4 v13, s[8:11], s32 offen lds\ns_add_u32 m0, s34, {F_W + 16384}\ns_cmp_ge_u32 s16, 2\ns_cbranch_scc1 K0_f1")
    A("buffer_load_dwordx4 v14, s[8:11], s32 offen lds")
    A.label("K0_f1")
    A(f"s_add_u32 m0, s34, {F_P - 2048}\ns_cmp_eq_u32 s29, 2\ns_cselect_b32 s3, 1, 6\ns_sub_u32 s35, s16, 2\ns_cmp_ge_u32 s35, s3\ns_cbranch_scc1 K0_f2")
    A("buffer_load_dwordx4 v15, s[12:15], s33 offen lds")
    A.label("K0_f2")
    pt(A, "fi")
    pf_setup()
    if CFG.pfbar: A("s_barrier")
    if CFG.prew:
        A(f"s_lshl_b32 s3, s2, 2\ns_add_u32 s3, s3, s16\ns_add_u32 s3, s3, {F1}\ns_lshl_b32 s3, s3, 7\ns_cmp_lt_u32 s16, 4\ns_cselect_b32 s3, s3, {OOB}")
        clear_flag(A, 3, 90)
    if CFG.tl0: touch_pages(A)
    if CFG.chore: pf_code5(A, "K0_ln")
    npf = (pf_round(0) if CFG.pfpos == 0 else 0) + (1 if CFG.prew else 0) + (1 if CFG.tl0 else 0) + (1 if CFG.chore else 0)
    A("s_lshr_b32 s19, s16, 2\ns_and_b32 s43, s16, 3\ns_lshl_b32 s30, s43, 1\ns_add_u32 s30, s30, s19")
    srd_off(A, 20, 26, WF_OFF, WF_SZ)
    A("v_and_b32 v2, 15, v1\nv_lshrrev_b32 v3, 4, v1")
    A("v_and_b32 v4, 12, v2\nv_add_u32 v4, v4, v2")
    A(f"v_mul_u32_u24 v4, 288, v4\nv_lshl_add_u32 v4, v3, 4, v4\ns_mul_i32 s33, s30, 36\ns_and_b32 s39, s33, 15\ns_sub_u32 s33, s33, s39\ns_add_u32 s33, s33, {F_W}")
    A("v_add_u32 v76, s33, v4\ns_lshr_b32 s39, s39, 1\nv_lshlrev_b32 v11, 3, v3\nv_subrev_u32 v11, s39, v11")
    A("s_mov_b32 s40, 0x00030003\ns_mov_b32 s41, 0x00030003")
    B = 28
    def a_reads():
        pt(A, "f0")
        A(f"s_waitcnt vmcnt({npf})")
        pt(A, "x")
        if CFG.pfpos == 1: pf_round(0)
        A("s_barrier")
        pt(A, "f1")
        for q in range(4):
            A(f"ds_read_b128 {v(12+4*q,4)}, v76 offset:{288*(32*(q>>1) + 4*(q&1))}")
    A("s_cmp_eq_u32 s29, 2\ns_cbranch_scc1 K0_ident")
    A("s_mul_i32 s34, s19, 18\nv_add_u32 v5, s34, v2")
    A(f"s_lshl_b32 s35, s43, 6\ns_add_u32 s35, s35, {P0}")
    for nt in range(2):
        if nt: A("v_add_u32 v5, 16, v5")
        A(f"v_lshrrev_b32 v6, 2, v5\nv_lshlrev_b32 v6, 10, v6\nv_and_b32 v7, 3, v5\nv_lshl_add_u32 v6, v7, 4, v6")
        A(f"v_lshl_add_u32 v6, v3, 8, v6\nv_add_u32 v{52+nt}, s35, v6")
    A("s_lshr_b32 s34, s28, 1\ns_add_u32 s34, s34, 4\ns_and_b32 s35, s28, 1\ns_mul_i32 s35, s35, 9216")
    A("s_cmp_eq_u32 s29, 0\ns_cselect_b32 s34, s34, s28\ns_cselect_b32 s35, s35, 0")
    A(f"s_mov_b32 s42, {f2u(LOG2E)}")
    A(f"v_mul_i32_i24 v5, 36, v11\nv_lshl_add_u32 v5, v2, 1, v5\ns_mul_i32 s33, s30, 648\ns_add_u32 s33, s33, {F_P}\nv_add_u32 v80, s33, v5")
    for q in range(4): A(f"v_add_u32 v5, {2*q}, v11\nv_cmp_gt_u32 {s((36, 44, 58, 60)[q],2)}, 18, v5")
    a_reads()
    for nt in range(2):
        for ii in range(8):
            A(f"ds_read_u16 v{36+8*nt+ii}, v80 offset:{36*ii + 32*nt}")
    A("s_waitcnt lgkmcnt(0)")
    for q in range(8): A(f"v_lshl_or_b32 v{B+q}, v{36+2*q+1}, 16, v{36+2*q}")
    for q in range(8): A(f"v_cndmask_b32 v{B+q}, 0, v{B+q}, {s((36, 44, 58, 60)[q&3],2)}")
    A("s_branch K0_fmm")
    A.label("K0_ident")
    A("v_sub_u32 v5, v2, v11\nv_add_u32 v6, 16, v5")
    A("v_mov_b32 v7, 0x3f80\nv_mov_b32 v8, 0x3f800000")
    for nt in range(2):
        for q in range(4):
            A(f"v_cmp_eq_u32 vcc, {2*q}, v{5+nt}\nv_cmp_eq_u32 s[44:45], {2*q+1}, v{5+nt}\ns_nop 1")
            A(f"v_cndmask_b32 v9, 0, v7, vcc\nv_cndmask_b32 v{B+4*nt+q}, v9, v8, s[44:45]")
    A(f"v_lshlrev_b32 v6, 8, v3\nv_lshl_add_u32 v6, v2, 4, v6\nv_add_u32 v6, {P0}, v6")
    A("s_lshl_b32 s34, s30, 10\nv_add_u32 v52, s34, v6")
    A("s_lshl_b32 s34, s30, 5\ns_add_u32 s34, s34, 8192\nv_add_u32 v53, s34, v6")
    A("s_mov_b32 s34, s28\ns_mov_b32 s35, 9216\ns_mov_b32 s42, 1.0")
    a_reads()
    A("s_waitcnt lgkmcnt(0)")
    A.label("K0_fmm")
    pt(A, "f2")
    A("s_mul_i32 s34, s34, 18\ns_lshl_b32 s33, s17, 1\ns_add_u32 s34, s34, s33\ns_mul_i32 s34, s34, 18432\ns_add_u32 s34, s34, s35")
    DD = 56
    for kbi in range(2):
        for nt in range(2):
            for a in range(2):
                A(f"{MF} {v(DD+16*kbi+8*nt+4*a,4)}, {v(12+8*kbi+4*a,4)}, {v(B+4*nt,4)}, 0")
    seam_pre(A)
    A("s_mov_b32 s43, s42\ns_lshl_b32 s33, s16, 10\nv_lshlrev_b32 v89, 4, v1\ns_and_b32 s3, s16, 1\ns_mul_i32 s35, s3, 9216")
    A(f"s_add_u32 s37, s33, {P0}\nv_add_u32 v90, s37, v89\ns_add_u32 s35, s35, {P0 + 8192}\nv_add_u32 v91, s35, v89")
    A("s_mul_i32 s3, s3, 18432\ns_add_u32 s37, s34, s3\ns_add_u32 s37, s37, 8192\ns_add_u32 s17, s34, s33")
    for kbi in range(2):
        for nt in range(2):
            d0 = DD+16*kbi+8*nt
            for i in range(4): A(f"v_pk_mul_f32 {v(d0+2*i,2)}, {v(d0+2*i,2)}, s[42:43]")
            o = 36 + 8*kbi + 4*nt
            for i in range(4): A(f"v_cvt_pk_bf16_f32 v{o+i}, v{d0+2*i}, v{d0+2*i+1}")
            if nt == 0: A(f"ds_write_b128 v52, {v(o,4)} offset:{9216*kbi}")
    A("s_mov_b64 exec, s[40:41]\nds_write_b128 v53, v[40:43]\nds_write_b128 v53, v[48:51] offset:9216\ns_mov_b64 exec, -1")
    A("s_waitcnt lgkmcnt(0)\ns_barrier\ns_cmp_ge_u32 s16, 4\ns_cbranch_scc1 K0_seam")
    pt(A, "st0")
    for q in range(4): A(f"ds_read_b128 {v(12+4*q,4)}, v90 offset:{9216*(q>>1) + 4096*(q&1)}")
    A("ds_read_b128 v[28:31], v91")
    for q in range(4):
        A(f"s_waitcnt lgkmcnt({4-q})\nbuffer_store_dwordx4 {v(12+4*q,4)}, v89, s[20:23], s17 offen {CFG.auxSt}\ns_add_u32 s17, s17, {4096 if q != 1 else 18432-4096}")
    A("s_branch K0_last")
    A.label("K0_nofold")
    A("s_waitcnt lgkmcnt(0)")
    if CFG.dfold: A(f"s_sleep {CFG.dfold}")
    pf_setup()
    if CFG.chore:
        A("s_cmp_ge_u32 s2, 240\ns_cbranch_scc1 K1_spare\ns_sub_u32 s3, s2, 108\ns_lshl_b32 s3, s3, 3\ns_add_u32 s3, s3, s16\ns_mul_i32 s3, s3, 25\nv_add_lshl_u32 v90, v1, s3, 7")
        A(f"s_bfm_b64 exec, 25, 0\nbuffer_load_dword v{SINK}, v90, s[96:99], 0 offen sc1\ns_mov_b64 exec, -1")
    if CFG.pff and not CFG.chore:
        A(f"s_sub_u32 s3, s2, 240\ns_cmp_ge_u32 s3, 6\ns_cbranch_scc1 K0_nof\ns_lshl_b32 s3, s3, 16\nv_lshl_add_u32 v90, v0, 7, s3\nbuffer_load_dword v{SINK}, v90, s[96:99], 0 offen sc1")
        A.label("K0_nof")
    if CFG.pfc and not CFG.chore:
        A("s_cmp_lt_u32 s2, 248\ns_cbranch_scc1 K0_noc")
        pf_code(A, "K0_ln")
        A.label("K0_noc")
    A("s_cmp_ge_u32 s2, 240\ns_cbranch_scc1 K1_spare")
    pf_round(0)
    A("s_waitcnt lgkmcnt(0)")
    seam_pre(A)
    A("s_waitcnt lgkmcnt(0)\ns_barrier\ns_branch K0_seam")
    A.label("K0_ln")
    pt(A, "fi")
    flag_setup(A)
    wave_id(A, 16)
    A(f"v_lshlrev_b32 v6, 2, v2\nv_add_u32 v6, {P0}, v6")
    A(f"v_mul_u32_u24 v7, {HRS}, v2\nv_lshl_add_u32 v7, v3, 4, v7\nv_add_u32 v7, {K0_HL}, v7")
    srd_off(A, 12, 26, RS_OFF, RS_SZ)
    srd_off(A, 20, 26, HT_OFF, HT_SZ)
    A(f"s_mov_b32 s33, {f2u(1.0/576)}\ns_mov_b32 s34, {f2u(1e-5)}")
    A("v_and_b32 v1, 63, v0\nv_and_b32 v2, 15, v1\nv_lshrrev_b32 v3, 4, v1")
    A(f"s_lshl_b32 s3, s16, 6\ns_and_b32 s35, s16, 1\ns_lshl_b32 s36, s35, 6\nv_lshlrev_b32 v69, 2, v2\nv_add_u32 v68, {P0}, v69\ns_lshl_b32 s17, s44, 7")
    A("v_bfe_u32 v4, v1, 2, 2\nv_lshrrev_b32 v5, 5, v1\nv_lshl_add_u32 v4, v5, 3, v4")
    A(f"v_mul_u32_u24 v4, {HRS}, v4\nv_and_b32 v3, 1, v3\nv_lshl_add_u32 v4, v3, 5, v4\nv_and_b32 v44, 3, v1\nv_lshl_add_u32 v4, v44, 3, v4\nv_add_u32 v4, {K0_HL}, v4")
    A("v_add_u32 v72, s36, v4\nv_add_u32 v71, s3, v4")
    A("v_lshlrev_b32 v2, 4, v2\nv_lshl_add_u32 v2, v5, 8, v2")
    A(f"s_mov_b32 s38, {589824-9216}\ns_lshl_b32 s3, s16, 1\ns_lshl_b32 s36, s35, 1\ns_add_u32 s36, s36, 32")
    for n in range(3):
        A(f"v_add_u32 v4, s{3 if n < 2 else 36}, v3")
        if n == 1: A("v_add_u32 v4, 16, v4")
        A(f"v_mul_u32_u24 v44, 57, v4\nv_lshrrev_b32 v44, 9, v44\nv_lshl_add_u32 v4, v4, 10, v2\nv_mad_u32_u24 v{73+n}, v44, s38, v4")
    A("s_lshr_b32 s18, s44, 1\ns_mul_i32 s18, s18, 9216\ns_and_b32 s19, s44, 1\ns_lshl_b32 s19, s19, 9\ns_add_u32 s18, s18, s19")
    def xp(i): return v(X+2*i, 2)
    if CFG.prew:
        A(f"s_lshl_b32 s3, s2, 7\ns_cmp_eq_u32 s16, 4\ns_cselect_b32 s3, s3, {OOB}")
        clear_flag(A, 3, 90)
    if CFG.tl0: touch_pages(A)
    pt(A, "f0")
    A(f"s_waitcnt vmcnt({(1 if CFG.prew else 0) + (1 if CFG.tl0 else 0)})")
    pt(A, "x")
    for i in range(12):
        A(f"v_lshlrev_b32 v{X+2*i}, 16, v{P+i}\nv_and_b32 v{X+2*i+1}, 0xffff0000, v{P+i}")
    A(f"v_pk_add_f32 v[44:45], {xp(0)}, {xp(1)}\nv_pk_add_f32 v[46:47], {xp(2)}, {xp(3)}")
    for i in range(4, 12): A(f"v_pk_add_f32 {v(44+2*(i&1),2)}, {v(44+2*(i&1),2)}, {xp(i)}")
    A("v_pk_add_f32 v[44:45], v[44:45], v[46:47]\nv_add_f32 v44, v44, v45")
    reduce32(A, [44], 52)
    A("v_mul_f32 v44, s33, v44")
    for i in range(12): A(f"v_pk_add_f32 {xp(i)}, {xp(i)}, v[44:45] op_sel_hi:[1,0] neg_lo:[0,1] neg_hi:[0,1]")
    A(f"v_pk_mul_f32 v[48:49], {xp(0)}, {xp(0)}\nv_pk_mul_f32 v[50:51], {xp(1)}, {xp(1)}")
    for i in range(2, 12): A(f"v_pk_fma_f32 {v(48+2*(i&1),2)}, {xp(i)}, {xp(i)}, {v(48+2*(i&1),2)}")
    A("v_pk_add_f32 v[48:49], v[48:49], v[50:51]\nv_add_f32 v48, v48, v49")
    A("v_cndmask_b32 v48, 0, v48, s[30:31]")
    reduce32(A, [48], 52)
    A("v_mul_f32 v48, s33, v48\nv_add_f32 v44, s34, v48\nv_rsq_f32 v44, v44\nv_mov_b32 v49, s34")
    A("v_mul_f32 v48, v48, v44\nv_fma_f32 v50, v48, v44, v49\nv_rsq_f32 v48, v50")
    A("s_mov_b64 exec, s[30:31]\nv_mul_f32 v50, v50, v48\nv_mul_f32 v48, v48, v44")
    if CFG.gsc: A(f"v_mul_f32 v48, {f2u(GS)}, v48\nv_mul_f32 v50, {f2u(1/GS)}, v50")
    A("ds_write_b32 v6, v50")
    for j in range(3):
        for i in range(4): A(f"v_pk_mul_f32 {v(Q+2*i,2)}, {xp(4*j+i)}, v[48:49] op_sel_hi:[1,0]")
        for i in range(4): A(f"v_cvt_pk_bf16_f32 v{P+4*j+i}, v{Q+2*i}, v{Q+2*i+1}")
        A(f"ds_write_b128 v7, {v(P+4*j,4)} offset:{384*j}")
    A("s_mov_b64 exec, -1\ns_waitcnt lgkmcnt(0)\ns_barrier")
    pt(A, "ln")
    for n in range(2):
        A(f"ds_read_b64_tr_b16 {v(76+4*n,2)}, v71 offset:{512*n}\nds_read_b64_tr_b16 {v(78+4*n,2)}, v71 offset:{512*n + 4*HRS}")
    A(f"ds_read_b64_tr_b16 v[84:85], v72 offset:1024\nds_read_b64_tr_b16 v[86:87], v72 offset:{1024 + 4*HRS}\nds_read_b32 v88, v68")
    A(f"s_cmp_lt_u32 s16, 2\ns_cselect_b32 s3, 0, {OOB}\nv_or_b32 v75, s3, v75")
    for n in range(3):
        A(f"s_waitcnt lgkmcnt({5-2*n})\nbuffer_store_dwordx4 {v(76+4*n,4)}, v{73+n}, s[20:23], s18 offen {CFG.auxSt}")
    A("s_waitcnt lgkmcnt(0)\ns_cmp_lg_u32 s16, 2\ns_cbranch_scc1 K0_nors")
    A(f"s_mov_b64 exec, 0xffff\nbuffer_store_dword v88, v69, s[12:15], s17 offen {CFG.auxSt}\ns_mov_b64 exec, -1")
    A.label("K0_nors")
    pt(A, "st0")
    seam_pre(A)
    A(f"s_cmp_eq_u32 s16, 4\ns_cselect_b32 s49, s49, {OOB}")
    if CFG.hint1:
        A(f"s_cmp_lg_u32 s16, 5\ns_cbranch_scc1 K0_noh\ns_cmp_ge_u32 s44, 8\ns_cbranch_scc1 K0_noh\ns_add_u32 s3, s44, {FH}\ns_lshl_b32 s3, s3, 7")
        raise_flag(A, 3, 4)
        A.label("K0_noh")
    A("s_waitcnt vmcnt(0)\ns_barrier\ns_branch K0_seam")
    A.label("K0_last")
    A("s_waitcnt lgkmcnt(0)\ns_cmp_ge_u32 s16, 2\ns_cbranch_scc1 K0_last2")
    A(f"buffer_store_dwordx4 v[28:31], v89, s[20:23], s37 offen {CFG.auxSt}")
    A.label("K0_last2")
    A("s_waitcnt vmcnt(0)")
    A.label("K0_seam")
    raise_flag(A, 49, 4)
    pt(A, "fl0")
    if CFG.pf1a or CFG.pf1q:
        A(f"s_cmp_lt_u32 s2, {144 if CFG.pf1a else 208}\ns_cbranch_scc1 K0_noa\ns_cmp_ge_u32 s2, 240\ns_cbranch_scc1 K0_noa\ns_cmp_ge_u32 s16, 4\ns_cbranch_scc1 K0_noa")
        A("s_lshr_b32 s47, s2, 3\ns_sub_u32 s47, s47, 18\ns_lshl_b32 s47, s47, 2\ns_add_u32 s47, s47, s16\ns_waitcnt lgkmcnt(0)")
        srd(A, 52, 4, S*F*2)
        pf_w1_col(A, 46)
        pf_w1(A, 52, 46, 47, 48, CFG.pf1a, 1, 88, base=112*CFG.pf1)
        if CFG.pf1q:
            A("s_cmp_lt_u32 s2, 208\ns_cbranch_scc1 K0_noa\ns_sub_u32 s47, s47, 32")
            pf_w1(A, 52, 46, 47, 16, CFG.pf1q, 1, 88, base=112*CFG.pf1)
        if CFG.c3w1:
            A("s_lshr_b32 s3, s46, 8\ns_add_u32 s3, s3, 2\ns_andn2_b32 s3, s3, 3\ns_add_u32 s3, s3, 1\ns_lshl_b32 s3, s3, 8\ns_add_u32 s3, s3, 128")
            A(f"s_lshr_b32 s47, s2, 3\ns_sub_u32 s47, s47, 26\ns_lshl_b32 s47, s47, 2\ns_add_u32 s47, s47, s16\ns_mul_i32 s47, s47, {32*9216}\ns_add_u32 s47, s47, {CFG.c3w1*9216}\ns_add_u32 s47, s47, s3")
            A("s_sub_u32 s3, s3, s46\ns_cmp_lt_u32 s3, 256\ns_cselect_b32 s3, -1, 0\ns_mov_b32 exec_hi, s3")
            A(f"v_and_b32 v88, 31, v1\nv_mul_u32_u24 v88, 9216, v88\nv_lshrrev_b32 v89, 5, v1\nv_lshl_add_u32 v88, v89, 10, v88\nbuffer_load_dword v{SINK}, v88, s[52:55], s47 offen\ns_mov_b64 exec, -1")
        A.label("K0_noa")
    if CFG.tlb:
        A(f"s_cmp_lg_u32 s16, 1\ns_cbranch_scc1 K0_notlb\nv_and_b32 v4, 63, v0\nv_lshlrev_b32 v4, {CFG.tlb}, v4\ns_waitcnt lgkmcnt(0)")
        for ptr, nb in ((4, S*F*2), (50, S*F*2), (26, FLAG_OFF)):
            srd(A, 8, ptr, nb)
            for q in range(-(-nb // (64 << CFG.tlb))):
                A(f"s_mov_b32 s3, {q*(64 << CFG.tlb)}\nbuffer_load_dword v{SINK}, v4, s[8:11], s3 offen sc1")
        A.label("K0_notlb")
def softmax18(A, PR, dst, C):
    vals = [r + i for r in PR for i in range(2)]
    EP, EN, MX, MN = 8, 26, 44, 46
    A(f"v_max3_f32 v{MX}, v{vals[0]}, v{vals[1]}, v{vals[2]}\nv_min3_f32 v{MN}, v{vals[0]}, v{vals[1]}, v{vals[2]}")
    for i in range(3, 17, 2):
        A(f"v_max3_f32 v{MX}, v{MX}, v{vals[i]}, v{vals[i+1]}\nv_min3_f32 v{MN}, v{MN}, v{vals[i]}, v{vals[i+1]}")
    A(f"v_max_f32 v{MX}, v{MX}, v{vals[17]}\nv_min_f32 v{MN}, v{MN}, v{vals[17]}")
    A(f"v_mul_f32 v{MX}, v{MX}, v{C}\nv_mul_f32 v{MN}, v{MN}, v{C}")
    for p in range(9):
        A(f"v_pk_fma_f32 {v(EP+2*p,2)}, {v(PR[p],2)}, {v(C,2)}, {v(MX,2)} op_sel_hi:[1,0,0] neg_lo:[0,0,1] neg_hi:[0,0,1]")
        A(f"v_pk_fma_f32 {v(EN+2*p,2)}, {v(PR[p],2)}, {v(C,2)}, {v(MN,2)} op_sel_hi:[1,0,0] neg_lo:[1,0,0] neg_hi:[1,0,0]")
    for i in range(36): A(f"v_exp_f32 v{EP+i}, v{EP+i}")
    A(f"v_pk_add_f32 {v(MX,2)}, {v(EP,2)}, {v(EP+2,2)}\nv_pk_add_f32 {v(MN,2)}, {v(EN,2)}, {v(EN+2,2)}")
    for p in range(2, 9):
        A(f"v_pk_add_f32 {v(MX,2)}, {v(MX,2)}, {v(EP+2*p,2)}\nv_pk_add_f32 {v(MN,2)}, {v(MN,2)}, {v(EN+2*p,2)}")
    A(f"v_add_f32 v{MX}, v{MX}, v{MX+1}\nv_add_f32 v{MN}, v{MN}, v{MN+1}")
    A(f"v_rcp_f32 v{MX}, v{MX}\nv_rcp_f32 v{MN}, v{MN}\ns_nop 0")
    for p in range(9):
        A(f"v_pk_mul_f32 {v(EP+2*p,2)}, {v(EP+2*p,2)}, {v(MX,2)} op_sel_hi:[1,0]")
        A(f"v_pk_mul_f32 {v(EN+2*p,2)}, {v(EN+2*p,2)}, {v(MN,2)} op_sel_hi:[1,0]")
    for m in range(18): A(f"v_cvt_pk_bf16_f32 v{dst(m)}, v{EP+2*m}, v{EP+2*m+1}")

def pairs(st, j, e):
    return [accr(st, (9*e+p) >> 1, j) + 2*((9*e+p) & 1) for p in range(9)]

PHI_RS = 608
V_LDS = 128*PHI_RS
def gen_k1(A):
    A("s_and_b32 s17, s2, 7\ns_lshr_b32 s18, s2, 3")
    A("s_cmp_ge_u32 s18, 18\ns_cbranch_scc1 K1_notg1")
    A("s_mul_i32 s19, s17, 18\ns_add_u32 s19, s19, s18\ns_and_b32 s22, s19, 3\ns_lshr_b32 s23, s19, 2")
    if CFG.swap13: A("s_or_b32 s19, s23, 1\ns_cmp_eq_u32 s19, 13\ns_cselect_b32 s19, 1, 0\ns_xor_b32 s23, s23, s19")
    if CFG.G1: A(f"s_add_u32 s59, s22, s23\ns_and_b32 s59, s59, {min(CFG.G1, 4) - 1}\ns_mul_i32 s59, s59, {max(CFG.G1//4, 1)}")
    A("s_waitcnt lgkmcnt(0)")
    A("s_cmp_ge_u32 s16, 6\ns_cbranch_scc1 K1_ldW\ns_cmp_ge_u32 s16, 4\ns_cbranch_scc1 K1_ldP")
    if CFG.prio1: A(f"s_setprio {CFG.prio1}")
    srd(A, 32, 6, F*2)
    srd_off(A, 36, 26, U_OFF, U_SZ)
    A("v_bfe_u32 v8, v0, 4, 2\nv_lshlrev_b32 v8, 3, v8")
    A("s_lshl_b32 s3, s23, 8\ns_lshl_b32 s17, s16, 6\ns_add_u32 s3, s3, s17")
    A("buffer_load_dwordx2 v[12:13], v8, s[32:35], s3 offen\nbuffer_load_dwordx2 v[14:15], v8, s[32:35], s3 offen offset:32")
    emit_compute_addr(A, 16, "std")
    A("s_waitcnt vmcnt(0)")
    if CFG.pf1b:
        A(f"s_cmp_ge_u32 s2, 128\ns_cbranch_scc1 K1_nopf\ns_and_b32 s47, s2, 0x78\ns_lshr_b32 s47, s47, 1\ns_add_u32 s47, s47, s16\ns_add_u32 s47, s47, {CFG.pf1}")
        srd(A, 52, 4, S*F*2)
        pf_w1_col(A, 46)
        pf_w1(A, 52, 46, 47, 64, CFG.pf1b, 1, 16)
        A.label("K1_nopf")
    for j in range(2):
        A(f"v_lshlrev_b32 v{V_ACC+j*4}, 16, v{12+2*j}\nv_and_b32 v{V_ACC+j*4+1}, 0xffff0000, v{12+2*j}")
        A(f"v_lshlrev_b32 v{V_ACC+j*4+2}, 16, v{13+2*j}\nv_and_b32 v{V_ACC+j*4+3}, 0xffff0000, v{13+2*j}")
    if CFG.gsc:
        for i in range(8): A(f"v_mul_f32 v{V_ACC+i}, {f2u(GS)}, v{V_ACC+i}")
    for i in range(8, 72, 2): A(f"v_pk_mov_b32 {v(V_ACC+i,2)}, {v(V_ACC+i%8,2)}, {v(V_ACC+i%8,2)} op_sel:[0,1]")
    A("s_mul_i32 s17, s22, 144\ns_lshl_b32 s3, s23, 2\ns_add_u32 s17, s17, s3\ns_add_u32 s17, s17, s16")
    A(f"s_add_u32 s49, s17, {FU}\ns_lshl_b32 s49, s49, 7\ns_mul_i32 s17, s17, 9216")
    if CFG.hint2 >= 0:
        A(f"s_mul_i32 s48, s22, 36\ns_add_u32 s48, s48, s23\ns_add_u32 s48, s48, {FG}\ns_lshl_b32 s48, s48, 7\ns_cmp_eq_u32 s16, 0\ns_cselect_b32 s48, s48, {OOB}")
    emit_compute_loop(A, 32, "std", (True, True), 20, first=lambda: (pt(A, "b1"), clear_flag(A, 49, 170)))
    A("s_barrier")
    pt(A, "m1")
    c0 = -2*math.sqrt(2/math.pi)*LOG2E; c1 = c0*0.044715
    A(f"s_mov_b32 s52, {f2u(c1)}\ns_mov_b32 s53, {f2u(c1)}\nv_mov_b32 v8, {f2u(c0)}\nv_mov_b32 v9, {f2u(c0)}")
    if CFG.own:
        A(f"s_lshr_b32 s3, s16, 1\ns_mul_i32 s3, s3, {STAGE - 18432}\ns_mul_i32 s18, s16, 9216\ns_add_u32 s3, s3, s18\nv_add_u32 v10, s3, v{V_PA}")
    else: A("s_nop 2")
    if CFG.gsc:
        A(f"s_mov_b32 s52, {f2u(GC0/GS)}\ns_mov_b32 s53, {f2u(GC0/GS)}\ns_mov_b32 s54, {f2u(GS)}\ns_mov_b32 s55, {f2u(GS)}")
        def TT(t): return 16 + 8*(t % 3)
        def pre(t):
            a0 = V_ACC + t*8; T = TT(t)
            return [f"v_pk_fma_f32 {v(T+2*p,2)}, {v(a0+2*p,2)}, {v(a0+2*p,2)}, s[52:53]" for p in range(4)] + \
                   [f"v_pk_mul_f32 {v(T+2*p,2)}, {v(T+2*p,2)}, {v(a0+2*p,2)} neg_lo:[1,0] neg_hi:[1,0]" for p in range(4)]
        def post(t):
            a0 = V_ACC + t*8; T = TT(t)
            return [f"v_pk_mul_f32 {v(T+2*p,2)}, {v(T+2*p,2)}, {v(a0+2*p,2)}" for p in range(4)] + \
                   [f"v_cvt_pk_bf16_f32 v{44+4*t+p}, v{T+2*p}, v{T+2*p+1}" for p in range(4)]
        def out(t):
            if t and t % 4 == 0: A("s_add_u32 s17, s17, 4096")
            A(f"buffer_store_dwordx4 {v(44+4*t,4)}, v{V_PA}, s[36:39], s17 offen offset:{(t%4)*1024} {CFG.auxSt}")
            if CFG.own: A(f"ds_write_b128 v10, {v(44+4*t,4)} offset:{t*1024}")
        for x in pre(0): A(x)
        for t in range(9):
            T = TT(t)
            f1 = post(t-1) if t else [None]*8
            for e in range(8):
                A(f"v_exp_f32 v{T+e}, v{T+e}")
                if f1[e]: A(f1[e])
            if t: out(t-1)
            for p in range(4): A(f"v_pk_fma_f32 {v(T+2*p,2)}, {v(T+2*p,2)}, s[54:55], s[54:55]")
            f2 = pre(t+1) if t < 8 else [None]*8
            for e in range(8):
                A(f"v_rcp_f32 v{T+e}, v{T+e}")
                if f2[e]: A(f2[e])
        for x in post(8): A(x)
        out(8)
        assert CFG.hint2 < 0 and not CFG.glag
    else:
        for t in range(9):
            a0 = V_ACC + t*8
            T = 16 + (t % 2) * 12
            for p in range(4): A(f"v_pk_mul_f32 {v(T+2*p,2)}, {v(a0+2*p,2)}, {v(a0+2*p,2)}")
            for p in range(4): A(f"v_pk_fma_f32 {v(T+2*p,2)}, {v(T+2*p,2)}, s[52:53], v[8:9]")
            for p in range(4): A(f"v_pk_mul_f32 {v(T+2*p,2)}, {v(T+2*p,2)}, {v(a0+2*p,2)}")
            for e in range(8): A(f"v_exp_f32 v{T+e}, v{T+e}")
            for p in range(4): A(f"v_pk_add_f32 {v(T+2*p,2)}, {v(T+2*p,2)}, 1.0 op_sel_hi:[1,0]")
            for e in range(8): A(f"v_rcp_f32 v{T+e}, v{T+e}")
            for p in range(4): A(f"v_pk_mul_f32 {v(T+2*p,2)}, {v(T+2*p,2)}, {v(a0+2*p,2)}")
            for p in range(4): A(f"v_cvt_pk_bf16_f32 v{44+4*t+p}, v{T+2*p}, v{T+2*p+1}")
            for tt in ([] if t < CFG.glag else (range(t+1) if t == CFG.glag else [t])):
                if tt and tt % 4 == 0: A("s_add_u32 s17, s17, 4096")
                A(f"buffer_store_dwordx4 {v(44+4*tt,4)}, v{V_PA}, s[36:39], s17 offen offset:{(tt%4)*1024} {CFG.auxSt}")
            if CFG.own: A(f"ds_write_b128 v10, {v(44+4*t,4)} offset:{t*1024}")
            if t == CFG.hint2: raise_flag(A, 48, 40)
    A("s_branch K2_c")
    def g_post():
        A("s_lshr_b32 s49, s2, 3\ns_lshl_b32 s49, s49, 2\ns_add_u32 s49, s49, s16\ns_sub_u32 s49, s49, 4")
        pf_w2(A, 50, 49, 72, CFG.pf2g)
    post = (CFG.pf2g, g_post, CFG.pf2pos) if CFG.pf2g else None
    lend = inl = None
    if CFG.w1at:
        def inl(i, cnt):
            if CFG.w1b and i == CFG.w1b % 10:
                L = A.newlabel("Lv")
                srd_off(A, 92, 26, WOT_OFF, WOT_SZ)
                A(f"s_cmp_lg_u32 s20, {CFG.w1b // 10}\ns_cbranch_scc1 {L}")
                wot_chunk(A, CFG.w1n - 1)
                A.label(L)
            if i not in (CFG.w1i - 2, CFG.w1i): return
            L = A.newlabel("Lv")
            A(f"s_cmp_lg_u32 s20, {CFG.w1at}\ns_cbranch_scc1 {L}")
            if i != CFG.w1i: A("buffer_load_dwordx2 v[38:39], v36, s[96:99], 0 offen sc1")
            else:
                A(f"s_waitcnt vmcnt({2*cnt})")
                wot_regs(A, True, load=False)
                for k in range(CFG.w1n - (1 if CFG.w1b else 0)): wot_chunk(A, k)
            A.label(L)
    if CFG.wreg in (1, 2):
        post = (9*CFG.wn, lambda: wot_regs(A, True), CFG.wpos)
        def lend():
            L = A.newlabel("Lv")
            A(f"s_cmp_lg_u32 s20, 3\ns_cbranch_scc1 {L}")
            A("buffer_load_dwordx2 v[38:39], v36, s[96:99], 0 offen sc1")
            if CFG.ownpf:
                A(f"s_cmp_lt_u32 s16, 6\ns_cbranch_scc1 {L}")
                srd(A, 52, 50, S*F*2)
                A("s_lshl_b32 s3, s23, 1\ns_and_b32 s57, s22, 1\ns_add_u32 s3, s3, s57\ns_lshl_b32 s3, s3, 1\ns_add_u32 s3, s3, s17\ns_lshl_b32 s3, s3, 17")
                A("s_and_b32 s57, s2, 1\ns_lshl_b32 s57, s57, 11\ns_add_u32 s3, s3, s57\ns_lshr_b32 s57, s2, 5\ns_lshl_b32 s57, s57, 8\ns_add_u32 s3, s3, s57")
                A(f"v_bfe_u32 v30, v0, 1, 5\nv_lshlrev_b32 v30, 12, v30\nv_and_b32 v31, 1, v0\nv_lshl_add_u32 v30, v31, 7, v30\nbuffer_load_dword v{SINK}, v30, s[52:55], s3 offen")
            A.label(L)
    A.label("K1_ldP")
    if CFG.wreg in (1, 2) or CFG.w1at: wot_flagaddr(A)
    srd_off(A, 8, 26, HT_OFF, HT_SZ)
    A(f"s_sub_u32 s17, s16, 4\ns_mul_i32 s21, s22, {64*9216}")
    def wait_ln():
        A(f"v_and_b32 v8, 62, v0\nv_and_b32 v9, 1, v0\nv_lshl_add_u32 v8, v8, 1, v9\ns_lshl_b32 s3, s17, 1\ns_add_u32 s3, s3, {F0+112}\nv_add_lshl_u32 v8, v8, s3, 7")
        if CFG.dl0: A(f"s_sleep {CFG.dl0}")
        if CFG.dlf: A(f"s_cmp_ge_u32 s2, 112\ns_cbranch_scc1 K1_nodl\ns_sleep {CFG.dlf}\nK1_nodl:")
        if CFG.hint1: A(f"s_and_b32 s3, s2, 7\ns_add_u32 s3, s3, {FH}\ns_lshl_b32 s3, s3, 7\nv_mov_b32 v9, s3")
        poll2(A, 8, 10, CFG.sl0a, CFG.sl0, None, 9 if CFG.hint1 else None)
        pt(A, "go1")
    DBG["k1P"] = True; DBG["koff"] = CFG.koff
    emit_loader_lin(A, 32, 9, POFF, 17, 8, 21, 20, 18, CFG.auxP, CFG.G1, post=post, pre=wait_ln, loopend=lend, inloop=inl)
    DBG["k1P"] = False
    A("s_branch K1_ldseam")
    A.label("K1_ldW")
    srd(A, 12, 4, S*F*2)
    A("s_sub_u32 s17, s16, 6\ns_lshl_b32 s21, s23, 8")
    emit_loader_W(A, 32, "std", 17, 12, 21, 9216, 20, 18, CFG.auxW1, CFG.G1, post=post, loopend=lend, mid=(lambda: wot_flagaddr(A)) if CFG.wreg in (1, 2) or CFG.w1at else None, inloop=inl)
    DBG["koff"] = 0
    A.label("K1_ldseam")
    A(f"s_barrier\ns_mov_b32 s49, {OOB}\ns_mov_b32 s24, s23\ns_branch K2_ld")
    A.label("K1_notg1")
    A("s_sub_u32 s18, s18, 18\ns_and_b32 s22, s18, 3\ns_lshr_b32 s19, s17, 1\ns_lshl_b32 s19, s19, 2\ns_add_u32 s22, s22, s19")
    A("s_lshr_b32 s18, s18, 2\ns_and_b32 s17, s17, 1\ns_lshl_b32 s19, s17, 1\ns_add_u32 s23, s19, s18\ns_add_u32 s17, s17, 4")
    A("s_cmp_eq_u32 s18, 2\ns_cselect_b32 s23, s17, s23")
    if CFG.GA: A(f"s_add_u32 s59, s22, s18\ns_and_b32 s59, s59, 3\ns_mul_i32 s59, s59, {CFG.GA}\ns_lshr_b32 s59, s59, 2")
    A("s_waitcnt lgkmcnt(0)")
    A("s_cmp_ge_u32 s16, 6\ns_cbranch_scc1 K1_ldX\ns_cmp_ge_u32 s16, 4\ns_cbranch_scc1 K1_ldF")
    emit_compute_addr(A, 16, "lin")
    for i in range(0, 144, 2): A(f"v_pk_mov_b32 {v(V_ACC+i,2)}, 0, 0")
    srd_off(A, 32, 26, RS_OFF, RS_SZ)
    A("s_lshl_b32 s30, s22, 2\ns_add_u32 s30, s30, s16\ns_lshl_b32 s30, s30, 8\nv_and_b32 v252, 15, v1\nv_lshlrev_b32 v252, 2, v252\nv_and_b32 v253, 48, v1")
    def ld_scale():
        pt(A, "b1")
        for j in range(2):
            A(f"buffer_load_dword v{240+2*j}, v252, s[32:35], s30 offen offset:{128*j} sc1\nbuffer_load_dwordx4 {v(244+4*j,4)}, v253, s[32:35], s30 offen offset:{128*j} sc1")
    A("s_cmp_ge_u32 s23, 4\ns_cbranch_scc1 K1_q")
    HO = V_LDS + 36864
    A(f"s_mul_i32 s3, s16, 9216\ns_add_u32 s3, s3, {HO}\nv_add_u32 v254, s3, v{V_PA}")
    emit_compute_loop(A, 18, "lin", (False, True), 20, first=ld_scale, lastfill=[f"ds_write_b128 v254, {acc(0,t,1)} offset:{t*1024}" for t in range(9)])
    pt(A, "m1")
    A(f"v_subrev_u32 v5, 36864, v254\ns_waitcnt vmcnt(0) lgkmcnt(0)\ns_barrier")
    QB = 48
    for t in range(9):
        o = 84 + 4*(t % 3)
        for j in range(2):
            r = accr(1, t, j)
            A(f"v_pk_mul_f32 {v(r,2)}, {v(r,2)}, {v(244+4*j,2)}\nv_pk_mul_f32 {v(r+2,2)}, {v(r+2,2)}, {v(246+4*j,2)}")
            A(f"v_cvt_pk_bf16_f32 v{o+2*j}, v{r}, v{r+1}\nv_cvt_pk_bf16_f32 v{o+2*j+1}, v{r+2}, v{r+3}")
        A(f"ds_write_b128 v5, {v(o,4)} offset:{t*1024}")
    if CFG.prew:
        A(f"s_cmp_lg_u32 s16, 0\ns_cbranch_scc1 K1_kvsm\ns_lshl_b32 s3, s23, 4\ns_add_u32 s3, s3, s22\ns_add_u32 s3, s3, {FP}\ns_lshl_b32 s3, s3, 7")
        clear_flag(A, 3, 8)
        A(f"s_mul_i32 s3, s23, 12\ns_add_u32 s3, s3, s22\ns_add_u32 s3, s3, {FK}\ns_lshl_b32 s3, s3, 7\ns_cmp_lt_u32 s22, 12\ns_cselect_b32 s3, s3, {OOB}")
        clear_flag(A, 3, 8)
    A.label("K1_kvsm")
    A("s_and_b32 s30, s16, 3\ns_lshr_b32 s31, s16, 2\nv_and_b32 v2, 15, v1\nv_lshrrev_b32 v3, 4, v1")
    A(f"s_lshl_b32 s3, s30, 1\ns_add_u32 s33, s3, s31\ns_lshl_b32 s3, s33, 4\nv_add_u32 v4, s3, v2\nv_mul_u32_u24 v4, {PHI_RS}, v4\nv_mul_u32_u24 v5, 144, v3\nv_add_u32 v4, v4, v5")
    for e in range(2):
        softmax18(A, pairs(0, 0, e), lambda m: QB + 18*e + m, 240)
        for q in (range(4) if e == 0 else range(4, 9)): A(f"ds_write_b128 v4, {v(QB+4*q,4)} offset:{16*q}")
    A(f"v_lshrrev_b32 v6, 2, v1\nv_mul_u32_u24 v6, {PHI_RS}, v6\nv_and_b32 v7, 3, v1\nv_lshl_add_u32 v6, v7, 3, v6")
    A("s_mul_i32 s3, s33, 72\nv_add_u32 v6, s3, v6")
    A("s_lshl_b32 s3, s30, 3\nv_subrev_u32 v7, s3, v6")
    A(f"v_add_u32 v8, {64*PHI_RS}, v6\nv_add_u32 v9, {64*PHI_RS}, v7")
    A(f"s_lshl_b32 s3, s33, 10\ns_add_u32 s3, s3, {V_LDS}\nv_lshlrev_b32 v10, 4, v1\nv_add_u32 v10, s3, v10")
    A(f"v_lshlrev_b32 v11, 8, v3\nv_and_b32 v12, 1, v2\nv_lshl_add_u32 v11, v12, 4, v11")
    A(f"s_lshl_b32 s3, s33, 5\ns_add_u32 s3, s3, {V_LDS + 8192}\nv_add_u32 v11, s3, v11")
    A("s_mov_b32 s40, 0x00030003\ns_mov_b32 s41, 0x00030003\nv_mov_b32 v12, 0x3f803f80")
    srd_off(A, 36, 26, KVP_OFF, KVP_SZ)
    A("s_lshl_b32 s17, s22, 2\ns_add_u32 s17, s17, s23\ns_mul_i32 s17, s17, 24576")
    A("s_lshl_b32 s3, s31, 10\ns_add_u32 s19, s17, s3\ns_add_u32 s29, s19, 22528\ns_add_u32 s19, s19, 16384")
    A("s_lshr_b32 s18, s33, 2\ns_lshl_b32 s18, s18, 11\ns_and_b32 s3, s33, 3\ns_lshl_b32 s3, s3, 8\ns_add_u32 s18, s18, s3\ns_add_u32 s28, s17, s18\ns_add_u32 s28, s28, 18432")
    A("s_lshl_b32 s18, s33, 11\ns_add_u32 s17, s17, s18")
    A("v_lshlrev_b32 v4, 6, v3\nv_lshl_add_u32 v4, v2, 4, v4\nv_lshlrev_b32 v2, 4, v1")
    A("s_lshl_b32 s18, s30, 4\ns_lshl_b64 s[42:43], 0xffff, s18\ns_mov_b32 s44, 0x000f000f\ns_mov_b32 s45, 0x000f000f")
    A("s_waitcnt lgkmcnt(0)\ns_barrier")
    pt(A, "go1")
    DK, FR = 16, 96
    def afr(ks, T): return FR + ks*20 + T*4
    def bfr(ks, mt): return FR + ks*20 + 12 + mt*4
    def dk(T, mt): return DK + (mt*3 + T)*4
    def kreads(ks):
        A(f"ds_read_b128 {v(bfr(ks,1),4)}, v11 offset:{ks*9216}\nds_read_b128 {v(bfr(ks,0),4)}, v10 offset:{ks*9216}")
        for T in range(3):
            a = (7 if T == 2 else 6) + (2 if ks >= 2 else 0)
            off = (ks & 1)*32*PHI_RS + T*32
            A(f"ds_read_b64_tr_b16 {v(afr(ks,T),2)}, v{a} offset:{off}\nds_read_b64_tr_b16 {v(afr(ks,T)+2,2)}, v{a} offset:{off + 16*PHI_RS}")
    kreads(0)
    for ks in range(4):
        if ks < 3: kreads(ks+1)
        A(f"s_waitcnt lgkmcnt({8 if ks < 3 else 0})")
        for i in range(4): A(f"v_cndmask_b32 v{bfr(ks,1)+i}, v12, v{bfr(ks,1)+i}, s[40:41]")
        for mt in range(2):
            for T in range(3):
                A(f"{MF} {v(dk(T,mt),4)}, {v(afr(ks,T),4)}, {v(bfr(ks,mt),4)}, {0 if ks == 0 else v(dk(T,mt),4)}")
    A("s_nop 4")
    for T in range(2): A(f"buffer_store_dwordx4 {v(dk(T,0),4)}, v2, s[36:39], s17 offen offset:{T*1024} sc1")
    A(f"s_mov_b64 exec, s[42:43]\nbuffer_store_dwordx4 {v(dk(2,0),4)}, v2, s[36:39], s19 offen sc1")
    A("s_mov_b64 exec, s[44:45]")
    for T in range(2): A(f"buffer_store_dwordx4 {v(dk(T,1),4)}, v4, s[36:39], s28 offen offset:{T*1024} sc1")
    A(f"s_and_b64 exec, s[42:43], s[44:45]\nbuffer_store_dwordx4 {v(dk(2,1),4)}, v4, s[36:39], s29 offen sc1")
    A("s_mov_b64 exec, -1")
    A(f"s_lshl_b32 s17, s23, 4\ns_add_u32 s17, s17, {FP}\ns_add_u32 s18, s17, s22\ns_lshl_b32 s18, s18, 7\ns_mov_b32 s49, {OOB}")
    srd_off(A, 44, 26, KVF_OFF, KVF_SZ)
    A("s_waitcnt vmcnt(0)\ns_barrier")
    pt(A, "kvp")
    A("s_cmp_ge_u32 s16, 4\ns_cbranch_scc1 K2_ld\ns_cmp_lg_u32 s16, 0\ns_cbranch_scc1 K2_c")
    raise_flag(A, 18, 4)
    A("s_cmp_ge_u32 s22, 12\ns_cbranch_scc1 K2_c")
    A("v_and_b32 v3, 15, v1\nv_add_lshl_u32 v3, v3, s17, 7")
    poll(A, 3, 4, CFG.slk)
    A("s_mul_i32 s18, s23, 12\ns_add_u32 s18, s18, s22")
    A(f"s_add_u32 s49, s18, {FK}\ns_lshl_b32 s49, s49, 7\ns_lshl_b32 s17, s18, 11\ns_lshl_b32 s18, s18, 10")
    A("s_cmp_eq_u32 s22, 11\ns_cselect_b64 exec, 0xffff, -1")
    for tb in range(16):
        A(f"buffer_load_dwordx4 {v(8+8*tb,4)}, v2, s[36:39], s17 offen sc1\nbuffer_load_dwordx4 {v(12+8*tb,4)}, v2, s[36:39], s17 offen offset:1024 sc1")
        A(f"s_add_u32 s17, s17, {48*2048}")
    for tb in range(1, 16):
        A(f"s_waitcnt vmcnt({2*(15-tb)})")
        for p in range(4): A(f"v_pk_add_f32 {v(8+2*p,2)}, {v(8+2*p,2)}, {v(8+8*tb+2*p,2)}")
    for p in range(4): A(f"v_cvt_pk_bf16_f32 v{4+p}, v{8+2*p}, v{9+2*p}")
    A(f"buffer_store_dwordx4 v[4:7], v2, s[44:47], s18 offen {CFG.auxSt}")
    A("s_mov_b64 exec, -1\ns_waitcnt vmcnt(0)")
    raise_flag(A, 49, 8)
    A(f"s_mov_b32 s49, {OOB}\ns_branch K2_c")
    A.label("K1_q")
    emit_compute_loop(A, 18, "lin", (False, False), 20, first=ld_scale)
    A("s_waitcnt vmcnt(0)")
    A("s_barrier")
    pt(A, "m1")
    A("v_and_b32 v6, 15, v1\nv_lshrrev_b32 v7, 4, v1\nv_lshlrev_b32 v3, 11, v7\nv_lshl_add_u32 v3, v6, 4, v3")
    A(f"s_lshr_b32 s3, s16, 1\ns_mul_i32 s3, s3, {STAGE - 18432}\ns_mul_i32 s17, s16, 9216\ns_add_u32 s3, s3, s17")
    A(f"v_add_u32 v3, s3, v3\nv_add_u32 v4, s3, v{V_PA}")
    for st in range(2):
        for j in range(2):
            for e in range(2):
                softmax18(A, pairs(st, j, e), lambda m: (QB + e*16 + 4*((m & 7) >> 1) + (m & 1) + 2*(m >> 3)) if m < 16 else QB + 32 + 2*e + m - 16, 240 + 2*j)
                for gg in range(4): A(f"ds_write_b128 v3, {v(QB+e*16+4*gg,4)} offset:{e*1024 + gg*256}")
            for b in range(8): A(f"ds_read_b128 {acc(st,b,j)}, v4 offset:{b*1024}")
            for i in range(2): A(f"v_pk_mov_b32 {v(accr(st,8,j)+2*i,2)}, {v(QB+32+2*i,2)}, {v(QB+32+2*i,2)} op_sel:[0,1]")
    pt(A, "kvp")
    KVB, KR, TM, MB, CI = 8, 40, 56, 88, 240
    A(f"v_add_u32 v4, {P0}, v{V_PA}\nv_cmp_eq_u32 vcc, 0, v6\nv_cmp_eq_u32 s[40:41], 4, v6\nv_lshlrev_b32 v7, 6, v7\ns_mov_b32 s3, {P0 + 9216}")
    A("v_cndmask_b32 v5, 32, 0, vcc\nv_cndmask_b32 v5, v5, 16, s[40:41]\nv_add3_u32 v5, v5, v7, s3")
    A("s_lshl_b32 s56, s22, 2\ns_add_u32 s56, s56, s16\ns_lshl_b32 s56, s56, 1\ns_add_u32 s56, s56, s23\ns_sub_u32 s56, s56, 4")
    A(f"s_add_u32 s49, s56, {FO}\ns_lshl_b32 s49, s49, 7\ns_mul_i32 s56, s56, 20480\ns_add_u32 s57, s56, 10240")
    k2_enter(A)
    k2_setup(A, False)
    for hp in range(4): A(f"s_mov_b32 s{8+2*hp}, {0xffff << (16*hp) & 0xffffffff}\ns_mov_b32 s{9+2*hp}, {(0xffff << (16*hp)) >> 32}")
    A(f"v_mov_b32 v{MB+2}, 0\nv_mov_b32 v{MB+3}, 0\nv_mov_b32 v{CI}, 0\nv_mov_b32 v{CI+1}, {f2u(1e-6)}\nv_mov_b32 v{CI+2}, 0\nv_mov_b32 v{CI+3}, 0")
    A(f"v_add_u32 v6, 4096, v{V_PA}\nv_add_u32 v7, 8192, v{V_PA}")
    def kvf(g, e, mt): return KVB + 16*(g & 1) + 8*e + 4*mt
    def kv_reads(g):
        st, hp = g >> 2, g & 3
        return [f"ds_read_b128 {v(kvf(g,e,mt),4)}, v{4+mt} offset:{st*12288 + (2*hp+e)*(256 if mt else 1024)}" for e in range(2) for mt in range(2)]
    A("s_waitcnt lgkmcnt(0)\ns_barrier")
    pt(A, "kvf")
    for x in kv_reads(0): A(x)
    for st in range(2):
        for mt in range(2): A(f"ds_read_b128 {v(KR+8*st+4*mt,4)}, v{4+mt} offset:{st*12288 + 8*(256 if mt else 1024)}")
    def o_store(st, u, j):
        b = 2*u + j
        return f"buffer_store_dwordx4 {acc(st,u,j)}, v{(V_PA,6,7)[b//4]}, s[40:43], s{56+st} offen offset:{(b%4)*1024} {CFG.auxSt}"
    def o_valu(k):
        st, hp, j = k >> 3, (k >> 1) & 3, k & 1
        T = TM + 16*j
        L = [f"v_rcp_f32 v{T+8*e+6}, v{T+8*e+5}" for e in range(2)] + ["s_nop 0"]
        for e in range(2):
            L += [f"v_pk_mul_f32 {v(T+8*e+2*q,2)}, {v(T+8*e+2*q,2)}, {v(T+8*e+6,2)} op_sel_hi:[1,0]" for q in range(2)]
            L += [f"v_mul_f32 v{T+8*e+4}, v{T+8*e+4}, v{T+8*e+6}"]
        vals = [T+8*e+i for e in range(2) for i in range(5)]
        for p in range(5):
            pi = 5*hp + p
            L.append(f"v_cvt_pk_bf16_f32 v{accr(st, pi >> 2, j) + (pi & 3)}, v{vals[2*p]}, v{vals[2*p+1]}")
        if CFG.ost == 0: L += [o_store(st, u, j) for u in ([hp] if hp < 3 else [3, 4])]
        return L
    if CFG.ofine:
        def dec(n): return n >> 4, (n >> 2) & 3, (n >> 1) & 1, n & 1
        def mask(n):
            st, hp, j, e = dec(n)
            return [f"v_cndmask_b32 v{MB+4*e+i}, 0, v{accr(st,8,j)+2*e+i}, {s(8+2*hp,2)}" for i in range(2)]
        def scale(n):
            st, hp, j, e = dec(n)
            T = TM + 16*j; U = T + 8*e
            L = [f"v_rcp_f32 v{U+6}, v{U+5}", None]
            L += [f"v_pk_mul_f32 {v(U+2*q,2)}, {v(U+2*q,2)}, {v(U+6,2)} op_sel_hi:[1,0]" for q in range(2)] + [f"v_mul_f32 v{U+4}, v{U+4}, v{U+6}"]
            vals = [T+8*x+i for x in range(2) for i in range(5)]
            for p in ((0, 1) if e == 0 else (2, 3, 4)):
                pi = 5*hp + p
                L.append(f"v_cvt_pk_bf16_f32 v{accr(st, pi >> 2, j) + (pi & 3)}, v{vals[2*p]}, v{vals[2*p+1]}")
            if e: L += [o_store(st, u, j) for u in ([hp] if hp < 3 else [3, 4])]
            return L
        for x in mask(0): A(x)
        for n in range(32):
            st, hp, j, e = dec(n)
            g = n >> 2; U = TM + 16*j + 8*e
            M = [f"{MF} {v(U+4*mt,4)}, {v(kvf(g,e,mt),4)}, {acc(st,2*hp+e,j)}, {v(CI,4) if mt else 0}" for mt in (1, 0)]
            M += [f"{MF} {v(U+4*mt,4)}, {v(KR+8*st+4*mt,4)}, {v(MB+2*e,4)}, {v(U+4*mt,4)}" for mt in (1, 0)]
            mk = mask(n+1) if n < 31 else ["s_nop 0", "s_nop 0"]
            sc = scale(n-2) if n >= 2 else ["s_nop 0", None, "s_nop 1"]
            fill = [sc[0], mk[0]] + sc[2:] + [mk[1]]
            if n & 3 == 0: A("s_waitcnt lgkmcnt(0)")
            if g < 7 and n & 3 < 2: fill += kv_reads(g+1)[2*(n & 1):2*(n & 1)+2]
            n0 = 0
            for i, m in enumerate(M):
                A(m)
                c = (len(fill) - n0 + (3 - i)) // (4 - i)
                for x in fill[n0:n0+c]: A(x)
                n0 += c
        for n in (30, 31):
            for x in scale(n): A(x or "s_nop 0")
    else:
        for k in range(16):
            st, hp, j = k >> 3, (k >> 1) & 3, k & 1
            g = k >> 1; T = TM + 16*j
            a = [f"{MF} {v(T+8*e+4*mt,4)}, {v(kvf(g,e,mt),4)}, {acc(st,2*hp+e,j)}, {v(CI,4) if mt else 0}" for e in range(2) for mt in (1, 0)]
            b = [f"{MF} {v(T+8*e+4*mt,4)}, {v(KR+8*st+4*mt,4)}, {v(MB+2*e,4)}, {v(T+8*e+4*mt,4)}" for e in range(2) for mt in (1, 0)]
            mk = [f"v_cndmask_b32 v{MB+(i if i < 2 else i+2)}, 0, v{accr(st,8,j)+i}, {s(8+2*hp,2)}" for i in range(4)]
            va = o_valu(k-1) if k else []
            if j == 0:
                A("s_waitcnt lgkmcnt(0)")
                if g < 7: va = va + kv_reads(g+1)
            A(a[0]); A(mk[0]); A(mk[1]); A(a[1]); A(mk[2]); A(mk[3]); A(a[2]); A(a[3])
            n0 = 0
            for i, m in enumerate([None] + b):
                if m: A(m)
                n = (len(va) - n0 + (4 - i)) // (5 - i)
                for x in va[n0:n0+n]: A(x)
                n0 += n
        A("s_nop 5")
        for x in o_valu(15): A(x)
    pt(A, "go1")
    if CFG.ost == 1:
        for st in range(2):
            for u in range(5):
                for j in range(2): A(o_store(st, u, j))
    A("s_nop 1\ns_branch K2_cq")
    A.label("K1_ldF")
    srd_off(A, 8, 26, WF_OFF, WF_SZ)
    A(f"s_sub_u32 s17, s16, 4\ns_mul_i32 s21, s23, {18*18432}")
    def wait_fold():
        A("s_lshl_b32 s3, s17, 2\ns_add_u32 s3, s3, s23\ns_add_u32 s3, s3, 4\ns_lshl_b32 s19, s23, 1\ns_add_u32 s19, s19, s17\ns_sub_u32 s19, s19, 8")
        A("s_cmp_ge_u32 s23, 4\ns_cselect_b32 s3, s19, s3\ns_mul_i32 s3, s3, 36")
        A(f"s_add_u32 s3, s3, {F1}\nv_and_b32 v8, 63, v0\nv_min_u32 v8, 35, v8\nv_add_lshl_u32 v8, v8, s3, 7")
        if CFG.dlw: A(f"s_sleep {CFG.dlw}")
        poll2(A, 8, 10, CFG.sl0a, CFG.sl0)
        pt(A, "go1")
    emit_loader_lin(A, 18, 9, POFF, 17, 8, 21, 20, 18, CFG.auxP, CFG.GA, pre=wait_fold)
    A("s_branch K1_ldtail")
    A.label("K1_ldX")
    srd_off(A, 8, 26, HT_OFF, HT_SZ)
    A(f"s_sub_u32 s17, s16, 6\ns_mul_i32 s21, s22, {4*9216}\ns_lshl_b32 s18, s17, 10\ns_add_u32 s21, s21, s18\ns_lshl_b32 s18, s17, 12\ns_mov_b32 s19, s17")
    A("v_and_b32 v1, 63, v0\nv_and_b32 v2, 16, v1\nv_lshrrev_b32 v2, 2, v2\nv_xor_b32 v2, v2, v1\nv_lshlrev_b32 v2, 4, v2")
    for w in range(1, 4): A(f"v_add_u32 v{2+w}, {8192*w}, v2")
    def issue_x(slot):
        A(f"s_add_u32 m0, s18, {slot*STAGE + WOFF}\ns_add_u32 s19, s19, 2")
        for w in range(4): A(f"buffer_load_dwordx4 v{2+w}, s[8:11], s21 offen offset:{1024*w} {CFG.auxP} lds")
        A(f"s_cmp_ge_u32 s19, 9\ns_cselect_b32 s3, 9, 0\ns_cselect_b32 s28, {589824-9216}, 0\ns_sub_u32 s19, s19, s3\ns_add_u32 s21, s21, s28\ns_add_u32 s21, s21, 2048")
    def wait_xn():
        A(f"s_lshl_b32 s3, s22, 3\ns_add_u32 s3, s3, {F0+112}\nv_and_b32 v8, 7, v0\nv_add_lshl_u32 v8, v8, s3, 7")
        if CFG.dl0: A(f"s_sleep {CFG.dl0}")
        poll2(A, 8, 10, CFG.sl0a, CFG.sl0)
        pt(A, "go1")
    assert not CFG.GA
    emit_loader(A, 18, 4, issue_x, 20, pre=wait_xn)
    A.label("K1_ldtail")
    A("s_lshr_b32 s17, s2, 3\ns_sub_u32 s17, s17, 18\ns_lshl_b32 s17, s17, 2\ns_add_u32 s17, s17, s16\ns_sub_u32 s17, s17, 4")
    A(f"s_mov_b32 s49, {OOB}\ns_cmp_ge_u32 s23, 4\ns_cbranch_scc1 K1_ldq")
    srd_off(A, 32, 26, RS_OFF, RS_SZ)
    A("s_and_b32 s31, s16, 3\ns_lshl_b32 s30, s22, 2\ns_add_u32 s30, s30, s31\ns_lshl_b32 s30, s30, 8\nv_and_b32 v1, 63, v0\nv_and_b32 v2, 15, v1\nv_lshlrev_b32 v2, 2, v2")
    A("buffer_load_dword v240, v2, s[32:35], s30 offen offset:128 sc1")
    if CFG.pf1kv:
        srd(A, 52, 4, S*F*2)
        pf_w1_col(A, 46)
        A(f"s_add_u32 s47, s17, {320 - 32*CFG.pf1kv}")
        pf_w1(A, 52, 46, 47, 32, CFG.pf1kv, 1, 30)
    if CFG.pf2kv:
        pf_w2(A, 50, 17, 32, CFG.pf2kv)
    A(f"s_mul_i32 s3, s31, 9216\ns_add_u32 s3, s3, {HO}\nv_lshl_add_u32 v2, v1, 4, s3\ns_barrier")
    for t in range(9): A(f"ds_read_b128 {acc(0,t,0)}, v2 offset:{t*1024}")
    A(f"s_waitcnt vmcnt({CFG.pf2kv + CFG.pf1kv}) lgkmcnt(0)\ns_branch K1_kvsm")
    A.label("K1_ldq")
    A("s_barrier")
    if CFG.c3w2 == 1:
        A(f"s_sub_u32 s19, s17, {32 - CFG.c3s}")
        pf_w2c3(A, 50, 19, 16, -(-(36 - CFG.c3s) // 16), lim=0)
    if CFG.pf2q:
        A(f"s_add_u32 s17, s17, {32*CFG.pf2kv - 32}")
        pf_w2(A, 50, 17, 16, CFG.pf2q, lim=None if CFG.qlim < 0 else CFG.qlim)
    A("s_branch K2_ld")
    A.label("K1_spare")
    A(f"s_load_dwordx2 s[50:51], s[0:1], {KA_W2}")
    srd(A, 8, 22, D*D*2)
    A("s_and_b32 s17, s2, 7\ns_lshr_b32 s18, s2, 3\ns_sub_u32 s41, s18, 30\ns_lshl_b32 s41, s41, 3\ns_add_u32 s41, s41, s16")
    A(f"s_add_u32 s43, s41, {32*CFG.pf2kv + 16*CFG.pf2q}")
    A("s_sub_u32 s18, s18, 30\ns_lshl_b32 s17, s17, 1\ns_add_u32 s17, s17, s18\ns_and_b32 s22, s17, 3\ns_lshr_b32 s23, s17, 2")
    A(f"s_mul_i32 s28, s23, {144*1152}\ns_mul_i32 s29, s22, 288\ns_add_u32 s28, s28, s29\ns_lshl_b32 s29, s16, 10")
    for r in range(6):
        if r == 5: A("s_cmp_lg_u32 s16, 0\ns_cbranch_scc1 K1_w5\ns_bfm_b64 exec, 32, 0")
        A(f"v_add_u32 v4, {512*r}, v0\nv_mul_u32_u24 v5, 58255, v4\nv_lshrrev_b32 v5, 20, v5\ns_add_u32 m0, s29, {8192*r}")
        A(f"v_mul_u32_u24 v5, {1152-288}, v5\nv_lshl_add_u32 v4, v4, 4, v5\nbuffer_load_dwordx4 v4, s[8:11], s28 offen lds")
    A("s_mov_b64 exec, -1")
    A.label("K1_w5")
    assert CFG.pf1s > 2
    a0 = (112*CFG.pf1) // 64 + 48*CFG.pf1a + 16*CFG.pf1q
    e0 = 320 - 32*CFG.pf1kv
    b0 = e0 - 16*(CFG.pf1s - CFG.sA)
    assert CFG.sA == 0 or CFG.sA > 2
    A(f"s_add_u32 s42, s41, {a0 + 16*CFG.sA}\ns_add_u32 s41, s41, {a0 if CFG.sA else b0}")
    if not CFG.wfirst: pf_w1(A, 52, 46, 41, 16, 1, 1, 57)
    ZR = 144*288
    A(f"v_lshlrev_b32 v4, 2, v0\nv_add_u32 v4, {ZR}, v4\nv_mov_b32 v5, 0\nds_write_b32 v4, v5")
    srd_off(A, 12, 26, WOT_OFF, WOT_SZ)
    A("v_and_b32 v1, 63, v0\nv_lshrrev_b32 v3, 4, v1\nv_bfe_u32 v2, v1, 2, 2\ns_lshl_b32 s3, s16, 3\nv_and_b32 v10, 3, v1\nv_lshlrev_b32 v10, 3, v10")
    A(f"v_add_u32 v11, 16, v3\nv_cmp_gt_u32 s[30:31], 2, v3\nv_mov_b32 v12, 144")
    for hf in range(2):
        A(f"v_add3_u32 v4, v2, s3, {4*hf}\nv_mul_u32_u24 v5, 205, v4\nv_lshrrev_b32 v5, 10, v5\nv_mul_u32_u24 v6, 5, v5\nv_sub_u32 v6, v4, v6")
        A("v_cmp_eq_u32 vcc, 4, v6\nv_lshl_add_u32 v6, v3, 2, v6\nv_mul_u32_u24 v5, 18, v5\nv_cndmask_b32 v6, v6, v11, vcc\ns_andn2_b64 vcc, vcc, s[30:31]")
        A(f"v_add_u32 v6, v6, v5\nv_cndmask_b32 v6, v6, v12, vcc\nv_min_u32 v6, 144, v6\nv_mul_u32_u24 v6, 288, v6\nv_add_u32 v{8+hf}, v6, v10")
    A("s_lshl_b32 s28, s22, 2\ns_add_u32 s28, s28, s23\ns_mul_i32 s28, s28, 5\ns_add_u32 s28, s28, s16")
    A(f"s_add_u32 s49, s28, {FW}\ns_lshl_b32 s49, s49, 7\ns_mul_i32 s28, s28, 9216\nv_lshlrev_b32 v2, 4, v1")
    A(f"s_waitcnt vmcnt({0 if CFG.wfirst else 1}) lgkmcnt(0)\ns_barrier")
    tag_make(A)
    for rt in range(9):
        A(f"ds_read_b64_tr_b16 {v(16+4*rt,2)}, v8 offset:{rt*32}\nds_read_b64_tr_b16 {v(18+4*rt,2)}, v9 offset:{rt*32}")
    A("s_waitcnt lgkmcnt(0)\ns_barrier")
    A("s_cmp_lt_u32 s16, 5\ns_cbranch_scc1 K1_wot")
    A(f"s_lshl_b32 s49, s2, 7\ns_cmp_eq_u32 s16, 5\ns_cselect_b32 s49, s49, {OOB}\ns_branch K1_wot1")
    A.label("K1_wot")
    for rt in range(9):
        if rt and rt % 4 == 0: A("s_add_u32 s28, s28, 4096")
        A(f"buffer_store_dwordx4 {v(16+rt*4,4)}, v2, s[12:15], s28 offen offset:{(rt%4)*1024} {CFG.auxSt}")
    A.label("K1_wot1")
    if CFG.wfirst: A("s_waitcnt vmcnt(0)\ns_barrier")
    else: pf_w1(A, 52, 46, 41, 16, 1, 1, 57, lim=0)
    raise_flag(A, 49, 4)
    if CFG.chore:
        A(f"s_sub_u32 s3, s2, 240\ns_lshl_b32 s3, s3, 3\ns_add_u32 s3, s3, s16\ns_mul_i32 s3, s3, 15\ns_add_u32 s3, s3, {FU}\nv_add_lshl_u32 v8, v1, s3, 7")
        A(f"s_bfm_b64 exec, 15, 0\nbuffer_load_dword v{SINK}, v8, s[96:99], 0 offen sc1\ns_mov_b64 exec, -1")
    pt(A, "go1")
    if CFG.pf1s:
        A.label("K1_spf")
        pf_w1(A, 52, 46, 41, 16, 1, 1, 57, lim=CFG.slim)
        if CFG.sA: A(f"s_cmp_eq_u32 s41, s42\ns_cselect_b32 s3, {max(b0 - a0 - 16*CFG.sA, 0)}, 0\ns_add_u32 s41, s41, s3")
        A(f"s_cmp_lt_u32 s41, {e0}\ns_cbranch_scc1 K1_spf")
    if CFG.c3w2 == 2:
        A(f"s_lshl_b32 s19, s18, 3\ns_add_u32 s19, s19, s16\ns_bitcmp1_b32 s2, 0\ns_cselect_b32 s3, {0 if CFG.rev2 else 20}, 20\ns_add_u32 s19, s19, s3")
        pf_w2c3(A, 50, 19, 16, 1, lim=1)
    pf_w2(A, 50, 43, 16, CFG.pf2s, lim=1)
    pt(A, "m1")
    A(f"s_mov_b32 s49, {OOB}\ns_cmp_lt_u32 s16, 4\ns_cbranch_scc1 K2_c\ns_cmp_lg_u32 s16, 7\ns_cbranch_scc1 K2_ld\ns_cmp_lg_u32 s2, 255\ns_cbranch_scc1 K2_ld")
    for q in range(4):
        A(f"v_add_u32 v8, {F0 + 64*q}, v1\nv_lshlrev_b32 v8, 7, v8")
        poll(A, 8, 10, 8)
    A(f"s_mov_b32 s49, {FE*128}\ns_branch K2_ld")

WR = 40
PAD = 34816
def wot_flagaddr(A):
    if CFG.lm:
        A(f"s_mul_i32 s56, s22, 20\ns_add_u32 s3, s56, {FW}\nv_and_b32 v36, 63, v0\nv_lshlrev_b32 v37, 4, v36\nv_min_u32 v36, 19, v36\nv_add_lshl_u32 v36, v36, s3, 7")
        A("s_sub_u32 s3, s16, 4\ns_mul_i32 s55, s3, 46080\ns_add_u32 s55, s55, 8192\nv_add_u32 v33, s55, v37\ns_lshl_b32 s3, s3, 10\nv_add_u32 v37, s3, v37\nv_add_u32 v23, 4096, v37")
        return
    A(f"s_lshr_b32 s56, s2, 3\ns_lshl_b32 s3, s2, 1\ns_add_u32 s56, s56, s3\ns_and_b32 s56, s56, 3\ns_lshl_b32 s56, s56, 2\ns_add_u32 s56, s56, s16\ns_sub_u32 s56, s56, 4\ns_mul_i32 s56, s56, 5")
    A(f"s_add_u32 s3, s56, {FW}\nv_and_b32 v36, 63, v0\nv_lshlrev_b32 v37, 4, v36\nv_min_u32 v36, 4, v36\nv_add_lshl_u32 v36, v36, s3, 7")
def wot_chunk(A, k):
    if CFG.lm:
        u = CFG.w0 + k
        if u >= 2: A(f"s_sub_u32 s3, s16, 4\ns_lshl_b32 s3, s3, 10\ns_add_u32 m0, s3, {T8_LDS + 4096*(u-2)}")
        else: A(f"s_bfe_u32 s3, s16, 0x10001\ns_mul_i32 s3, s3, {STAGE}\ns_add_u32 m0, s3, {PAD}\ns_and_b32 s3, s16, 1\ns_lshl_b32 s3, s3, 10\ns_add_u32 m0, m0, s3")
        A("s_mov_b32 s3, s56\nbuffer_load_dwordx4 v33, s[92:95], s56 offen sc1 lds")
        for g in range(4):
            A(f"buffer_load_dwordx4 {v(WR+32*k+8*g,4)}, v37, s[92:95], s3 offen sc1\nbuffer_load_dwordx4 {v(WR+32*k+8*g+4,4)}, v23, s[92:95], s3 offen sc1")
            if g < 3: A("s_add_u32 s3, s3, 46080")
        A("s_add_u32 s56, s56, 9216")
        return
    for b in range(9*k, 9*k + 9):
        if b and b % 4 == 0: A("s_add_u32 s56, s56, 4096")
        A(f"buffer_load_dwordx4 {v(WR+4*b,4)}, v37, s[92:95], s56 offen offset:{(b%4)*1024} sc1")
def wot_regs(A, sampled, load=True, skip=None):
    L = A.newlabel("Lw")
    if skip: A(f"{skip}\ns_cbranch_scc1 {L}")
    if sampled: A(f"v_cmp_ne_u64 vcc, s[100:101], v[38:39]\ns_nop 4\ns_cbranch_vccz {L}")
    poll(A, 36, 38, 2)
    A.label(L)
    srd_off(A, 92, 26, WOT_OFF, WOT_SZ)
    A(f"s_add_u32 s56, s56, {CFG.w0}\ns_mul_i32 s56, s56, 9216")
    if load:
        for k in range(CFG.wn): wot_chunk(A, k)
def k2_decode(A):
    A("s_and_b32 s17, s2, 7\ns_lshr_b32 s18, s2, 3")
    A("s_lshr_b32 s28, s17, 1\ns_lshl_b32 s22, s17, 1\ns_add_u32 s22, s22, s18\ns_and_b32 s22, s22, 3")
    A("s_and_b32 s17, s17, 1\ns_lshl_b32 s17, s17, 3\ns_lshr_b32 s18, s18, 2")
    if CFG.stsw:
        A(f"s_cmp_eq_u32 s18, 1\ns_cselect_b32 s23, {CFG.stsw}, s18\ns_cmp_eq_u32 s18, {CFG.stsw}\ns_cselect_b32 s18, 1, s23")
    A("s_add_u32 s23, s17, s18")
RED_RS = 592
PBS = 1056
O_LDS, O_TOP = 2*STAGE, 159744
W_SLOT = (3, 0, 1, 3, 0)
PB = STAGE
RED = 3*STAGE
PB_OWN = RED + 32*RED_RS
T8_LDS = 4*STAGE
REDL = 0
def k2_enter(A):
    A(f"s_load_dwordx4 s[4:7], s[0:1], {KA_W2}\ns_load_dwordx2 s[44:45], s[0:1], {KA_X}\ns_load_dwordx2 s[46:47], s[0:1], {KA_OUT}")
    k2_decode(A)
def k2_setup(A, early):
    srd_off(A, 36, 26, PART_OFF, PART_SZ)
    A("s_lshl_b32 s17, s23, 2\ns_add_u32 s17, s17, s22\ns_lshl_b32 s18, s17, 4")
    A("s_lshl_b32 s30, s16, 2\ns_add_u32 s30, s30, s28\ns_add_u32 s30, s30, s18")
    A(f"s_mul_i32 s32, s30, 9216\ns_add_u32 s30, s30, {FX}\ns_lshl_b32 s30, s30, 7")
    A(f"s_cmp_eq_u32 s16, s28\ns_cselect_b32 s48, {OOB}, 0\ns_cselect_b32 s30, {OOB}, s30")
    A(f"s_add_u32 s34, s32, 4096\ns_add_u32 s35, s32, 8192")
    A("s_waitcnt lgkmcnt(0)")
    k2_final_prep(A, 1)
    if early and (CFG.pf2l or CFG.pf2ls):
        base = 72*CFG.pf2g + 16*CFG.pf2s + 32*CFG.pf2kv + 16*CFG.pf2q
        A(f"s_lshr_b32 s17, s2, 3\ns_lshl_b32 s19, s17, 2\ns_add_u32 s19, s19, s16\ns_cmp_ge_u32 s17, 30\ns_cbranch_scc1 K2_pls\ns_sub_u32 s17, s17, 18\ns_cmp_ge_u32 s17, 8\ns_cbranch_scc1 K2_nopl")
        A(f"s_add_u32 s19, s19, {base - 72}")
        pf_w2(A, 4, 19, 32, CFG.pf2l, srdn=8)
        A("s_branch K2_nopl")
        A.label("K2_pls")
        A(f"s_add_u32 s19, s19, {base + 32*CFG.pf2l - 120}")
        pf_w2(A, 4, 19, 8, CFG.pf2ls, srdn=8, lim=1)
        A.label("K2_nopl")
    clear_flag(A, 30, 8)
    A(f"v_and_b32 v8, 15, v1\nv_lshrrev_b32 v9, 4, v1\nv_mul_u32_u24 v8, {RED_RS}, v8\nv_lshl_add_u32 v8, v9, 4, v8\nv_add_u32 v254, {RED}, v8")
    srd_off(A, 40, 26, OB_OFF, OB_SZ)

def gen_k2(A):
    DBG["on"] = True
    KV, MB, CI, PH, TM, PK, O = 8, 80, 92, 96, 132, 168, 204
    A.label("K2_c")
    pt(A, "e1")
    k2_enter(A)
    def common():
        emit_compute_addr(A, 16, "pi")
        for i in range(0, 72, 2): A(f"v_pk_mov_b32 {v(V_ACC+i,2)}, 0, 0")
    common()
    A("s_waitcnt vmcnt(0) lgkmcnt(0)")
    raise_flag(A, 49, 8)
    A(f"s_mov_b32 s49, {OOB}\ns_barrier")
    pt(A, "fl1")
    k2_setup(A, True)
    if CFG.burn:
        ng, nn = CFG.burn.split(",")
        A(f"s_cmp_lt_u32 s2, 144\ns_cselect_b32 s20, {ng}, {nn}\ns_cmp_eq_u32 s20, 0\ns_cbranch_scc1 K2_c1\nK2_burn:")
        for k in range(18):
            A(f"{MF} {v(168+4*(k%9),4)}, {v(8+4*(k%9),4)}, {v(44+4*(k%7),4)}, {v(168+4*(k%9),4)}")
            if k < 11: A(f"ds_read_b128 {v(8+4*((k*5)%18),4)}, v{V_PB} offset:{STAGE + k*1024}")
        A("s_waitcnt lgkmcnt(0)\ns_sub_u32 s20, s20, 1\ns_cmp_lg_u32 s20, 0\ns_cbranch_scc1 K2_burn")
    A("s_branch K2_c1")
    A.label("K2_cq")
    pt(A, "e1")
    common()
    A.label("K2_c1")
    if CFG.prio: A(f"s_setprio {CFG.prio}")
    A(f"v_or_b32 v0, s48, v{V_PA}")
    def pub(t):
        L = [f"v_cvt_pk_bf16_f32 v{PK+4*t+p}, v{V_ACC+8*t+2*p}, v{V_ACC+8*t+2*p+1}" for p in range(4)]
        L.append(f"buffer_store_dwordx4 {v(PK+4*t,4)}, v0, s[36:39], s{(32, 34, 35)[t//4]} offen offset:{(t%4)*1024} sc1")
        return L
    lastfill = [""]*9
    for t in range(4): lastfill += ["\n".join(pub(t)[:3]), "\n".join(pub(t)[3:])]
    lastfill += ["\n".join(pub(4))]
    def late_flag():
        A(f"s_cmp_eq_u32 s49, {OOB}\ns_cbranch_scc1 K2_nolate\ns_waitcnt vmcnt(0)")
        raise_flag(A, 49, 172)
        A(f"s_mov_b32 s49, {OOB}")
        A.label("K2_nolate")
    emit_compute_loop(A, 18, "pi", (False, False), 20, first=lambda: pt(A, "b2"), lastfill=lastfill, loopend=late_flag, own=CFG.own >= 2)
    pt(A, "m2")
    for t in range(5, 9):
        for x in pub(t): A(x)
    pt(A, "pub")
    FB, WA = 8, 204
    A(f"s_lshl_b32 s3, s16, 10\nv_add_u32 v4, s3, v{V_PA}\nv_add_u32 v5, {3*STAGE}, v4\nv_add_u32 v3, {3*STAGE}, v{V_PA}")
    A(f"s_and_b32 s17, s16, 1\ns_lshl_b32 s3, s17, 10\ns_add_u32 s3, s3, {O_LDS}\nv_add_u32 v6, s3, v{V_PA}\nv_xor_b32 v7, 1024, v6")
    A(f"s_cmp_eq_u32 s17, 0\ns_cselect_b32 s3, {O_LDS + 8192}, 0\ns_cselect_b32 s18, 0, {O_LDS + 8192}")
    A(f"s_cselect_b32 s19, 0, {O_TOP}\ns_cselect_b32 s21, {O_TOP}, 0\ns_add_u32 s3, s3, s19\ns_add_u32 s18, s18, s21")
    A(f"s_cmp_eq_u32 s17, 0\ns_cselect_b32 s19, 9, 1\ns_cselect_b32 s21, 1, 9\ns_lshl_b32 s19, s19, 10\ns_lshl_b32 s21, s21, 10")
    for g in range(4):
        A(f"v_add_u32 v{224+2*g}, s3, v{V_PA}\nv_add_u32 v{225+2*g}, s18, v{V_PA}\ns_add_u32 s3, s3, s19\ns_add_u32 s18, s18, s21")
    def fo(b, g, j): return FB + 80*b + 20*g + 4*j
    def fw(b, g, k): return FB + 80*b + 20*g + 8 + 4*k
    def wreads(u):
        b = u & 1; sl = W_SLOT[u]; R = []
        for g in range(4):
            for j in range(2):
                R.append(f"ds_read_b128 {v(fo(b,g,j),4)}, v{6+j} offset:{g*9216 + u*2048}" if u < 4 else f"ds_read_b128 {v(fo(b,g,j),4)}, v{224+2*g+j}")
            so = (0 if sl == 3 else sl*STAGE) + g*9216
            for k in range(2): R.append(f"ds_read_b128 {v(fw(b,g,k),4)}, v{5 if sl == 3 else (4 if so + 4096*k < 65536 else 232)} offset:{(so + 4096*k) % 65536}")
            R.append(f"ds_read_b128 {v(fw(b,g,2),4)}, v{3 if sl == 3 else (V_PA if so + 8192 < 65536 else 233)} offset:{(so + 8192) % 65536}")
        return R
    A(f"v_add_u32 v232, 65536, v4\nv_add_u32 v233, 65536, v{V_PA}")
    def wmf(u):
        b = u & 1; M = []
        for g in range(4):
            for k, j in ((0, 0), (0, 1), (1, 0), (1, 1), (2, 0)):
                d = v(WA + 4*(2*k + j), 4)
                M.append(f"{MF} {d}, {v(fw(b,g,k),4)}, {v(fo(b,g,j),4)}, {d if u or g else 0}")
        return M
    def flag_x():
        A("s_waitcnt vmcnt(0)")
        raise_flag(A, 30, 236)
        pt(A, "flx")
    if CFG.lm:
        assert CFG.wreg == 4 and (CFG.w0, CFG.wn) == ((2, 3), (1, 4))[CFG.lm - 1]
        A(f"v_add_u32 v234, {T8_LDS}, v{V_PA}")
        def xreads(b, us):
            R = []
            for n, (u, g) in enumerate((u, g) for u in us for g in range(4)):
                if u >= 2: R.append(f"ds_read_b128 {v(FB+80*b+8*n,4)}, v234 offset:{(u-2)*4096 + g*1024}")
                else:
                    o = (g >> 1)*STAGE + PAD + (g & 1)*1024
                    R.append(f"ds_read_b128 {v(FB+80*b+8*n,4)}, v{V_PA if o < 65536 else 233} offset:{o % 65536}")
                R.append(f"ds_read_b128 {v(FB+80*b+8*n+4,4)}, v6 offset:{g*9216 + u*2048}" if u < 4 else f"ds_read_b128 {v(FB+80*b+8*n+4,4)}, v{224+2*g}")
            return R
        def xmf(b, n): return [f"{MF} {v(WA+16,4)}, {v(FB+80*b+8*i,4)}, {v(FB+80*b+8*i+4,4)}, {v(WA+16,4)}" for i in range(n)]
        A("s_barrier")
        pt(A, "t0")
        for r in wreads(0): A(r)
        if CFG.flagpos == -1: flag_x()
        if CFG.lm == 2:
            block(A, wmf(0), xreads(1, (1, 2)), True)
            pt(A, "u0")
            if CFG.flagpos == 0: flag_x()
            xr = xreads(0, (3, 4))
            block(A, xmf(1, 8), [xr[2*i] + "\n" + xr[2*i+1] for i in range(8)], False)
            pt(A, "u1")
            last = xmf(0, 8)
        else:
            if CFG.flagpos == -3:
                block(A, wmf(0), [], False)
                flag_x()
                A("s_barrier")
                for r in wreads(1): A(r)
            else: block(A, wmf(0), wreads(1), True)
            pt(A, "u0")
            if CFG.flagpos == 0: flag_x()
            block(A, wmf(1), xreads(0, (2, 3)), True)
            pt(A, "u1")
            if CFG.flagpos == 1: flag_x()
            block(A, xmf(0, 8), xreads(1, (4,)), False)
            last = xmf(1, 4)
    else:
        if CFG.flagpos == -2: flag_x()
        A("s_barrier")
        pt(A, "t0")
        for r in wreads(0): A(r)
        if CFG.flagpos == -1: flag_x()
        for u in range(4):
            block(A, wmf(u), wreads(u+1), True)
            pt(A, f"u{u}")
            if u == CFG.flagpos: flag_x()
        last = wmf(4)
    A(f"s_mul_i32 s3, s17, {16*RED_RS}\nv_add_u32 v6, s3, v254\ns_lshl_b32 s18, s16, 6\nv_add_u32 v4, s18, v6\ns_xor_b32 s17, s17, 1\ns_mul_i32 s3, s17, {16*RED_RS}\ns_add_u32 s3, s3, s18\nv_add_u32 v5, s3, v254")
    A("s_cmp_lg_u32 s16, s28\ns_cbranch_scc1 K2_nown")
    A(f"v_lshrrev_b32 v7, 5, v1\nv_xor_b32 v7, v7, v1\nv_lshlrev_b32 v7, 4, v7\nv_add_u32 v7, {PB_OWN}, v7")
    park = [f"ds_write_b128 v7, {v(PK+4*t,4)} offset:{t*PBS}" for t in range(9)]
    block(A, last, ["", "", "", "\n".join(park)] if CFG.lm else [x for w_ in park for x in (w_, "")], False)
    A("s_branch K2_nown1")
    A.label("K2_nown")
    block(A, last, [], False)
    A.label("K2_nown1")
    A("s_nop 3")
    for k in range(2):
        for j in range(2): A(f"ds_write_b128 v{4+j}, {v(WA+4*(2*k+j),4)} offset:{k*256}")
    A(f"ds_write_b128 v6, {v(WA+16,4)} offset:512")
    pt(A, "add")
    if CFG.lm and CFG.flagpos == 2: flag_x()
    A.label("K2_fin")
    def fin_x(n):
        FI = (244, 232)[n]; XB = FI + 4; D0 = 40 + 56*n
        for i in range(4): A(f"v_lshlrev_b32 v{D0+2*i}, 16, v{XB+i}\nv_and_b32 v{D0+1+2*i}, 0xffff0000, v{XB+i}")
        A(f"v_lshlrev_b32 v48, 16, v{FI+3}")
        for p in range(4): A(f"v_pk_add_f32 {v(D0+2*p,2)}, {v(D0+2*p,2)}, v[48:49] op_sel_hi:[1,0]")
    def fin(items):
        def addp(n, r):
            D0 = 40 + 56*n
            for i in range(4): A(f"v_lshlrev_b32 v{8+2*i}, 16, v{r+i}\nv_and_b32 v{9+2*i}, 0xffff0000, v{r+i}")
            for p in range(4): A(f"v_pk_add_f32 {v(D0+2*p,2)}, {v(D0+2*p,2)}, {v(8+2*p,2)}")
        for n in items: fin_x(n)
        A("s_waitcnt lgkmcnt(0)\ns_barrier")
        pt(A, "red")
        for n in items:
            FI = (244, 232)[n]; R = 16 + 12*n
            A(f"ds_read_b128 {v(R,4)}, v{FI+1}\nds_read_b128 {v(R+4,4)}, v{FI+1} offset:16\nds_read_b64 {v(R+8,2)}, v{FI+2}\nds_read_b64 {v(R+10,2)}, v{FI+2} offset:256")
        if CFG.lm:
            for n in items:
                FI = (244, 232)[n]
                A(f"v_subrev_u32 v50, {RED - REDL}, v{FI+1}\nds_read_b128 {v(60+8*n,4)}, v50\nds_read_b128 {v(64+8*n,4)}, v50 offset:16")
        xl = 2*len(items) if CFG.lm else 0
        left = 4*len(items) + xl
        for n in items:
            R = 16 + 12*n; D0 = 40 + 56*n
            A(f"s_waitcnt lgkmcnt({left-2})")
            for p in range(4): A(f"v_pk_add_f32 {v(D0+2*p,2)}, {v(D0+2*p,2)}, {v(R+2*p,2)}")
            left -= 4
            A(f"s_waitcnt lgkmcnt({left})")
            addp(n, R+8)
        if CFG.lm:
            for n in items:
                left -= 2
                A(f"s_waitcnt lgkmcnt({left})")
                for p in range(4): A(f"v_pk_add_f32 {v(40+56*n+2*p,2)}, {v(40+56*n+2*p,2)}, {v(60+8*n+2*p,2)}")
        A("s_waitcnt vmcnt(0)\ns_barrier")
        pt(A, "rx")
        for n in items:
            for q in range(3):
                A(f"ds_read_b64 {v(60+12*n+4*q,2)}, v{(252, 240)[n]} offset:{q*9*PBS}\nds_read_b64 {v(62+12*n+4*q,2)}, v{(252, 240)[n]} offset:{q*9*PBS + 256}")
        left = 6*len(items)
        for n in items:
            D0 = 40 + 56*n
            for q in range(3):
                left -= 2
                A(f"s_waitcnt lgkmcnt({left})")
                addp(n, 60+12*n+4*q)
            for p in range(4): A(f"v_cvt_pk_bf16_f32 v{52+4*n+p}, v{D0+2*p}, v{D0+1+2*p}")
            A(f"buffer_store_dwordx4 {v(52+4*n,4)}, v{(244, 232)[n]}, s[52:55], s50 offen {CFG.auxOut}")
    A("s_cmp_eq_u32 s16, 7\ns_cbranch_scc1 K2_fin2")
    fin([0])
    A("s_branch K2_done")
    A.label("K2_fin2")
    fin([0, 1])
    A.label("K2_done")
    pt(A, "fin")
    if CFG.amp:
        i0, i1, lo, hi = [int(x) for x in CFG.amp.split(",")]
        w = 7 if i1 == 13 and i0 == 0 else 0
        A("s_waitcnt vmcnt(0)")
        stamp(A, 13)
        A(f"s_cmp_lg_u32 s16, {w}\ns_cbranch_scc1 Z_end\ns_cmp_lt_u32 s2, {lo}\ns_cbranch_scc1 Z_end\ns_cmp_ge_u32 s2, {hi}\ns_cbranch_scc1 Z_end")
        A(f"s_waitcnt lgkmcnt(0)\ns_sub_u32 s6, s{64+2*i1}, s{64+2*i0}\ns_min_u32 s6, s6, 8000\ns_mul_i32 s6, s6, 10\ns_add_u32 s6, s6, 5000")
        A("Z_loop:\ns_sleep 1\ns_memrealtime s[4:5]\ns_waitcnt lgkmcnt(0)\ns_sub_u32 s7, s4, s64\ns_cmp_lt_u32 s7, s6\ns_cbranch_scc1 Z_loop\nZ_end:")
    elif CFG.probe:
        i, lo, hi = [int(x) for x in CFG.probe.split(",")]
        A(f"s_cmp_lg_u32 s16, 0\ns_cbranch_scc1 Z_end\ns_cmp_lt_u32 s2, {lo}\ns_cbranch_scc1 Z_end\ns_cmp_ge_u32 s2, {hi}\ns_cbranch_scc1 Z_end")
        A(f"Z_loop:\ns_sleep 1\ns_memrealtime s[4:5]\ns_waitcnt lgkmcnt(0)\ns_sub_u32 s7, s4, s{64+2*i}\ns_cmp_lt_u32 s7, 10000\ns_cbranch_scc1 Z_loop\nZ_end:")
    else: stamp_flush(A)
    A("s_endpgm")
    A.label("K2_ld")
    pt(A, "e1")
    k2_enter(A)
    A(f"s_cmp_eq_u32 s49, {OOB}\ns_cbranch_scc1 K2_ld1\ns_waitcnt vmcnt(0)")
    raise_flag(A, 49, 8)
    A.label("K2_ld1")
    if CFG.wreg == 1:
        A("s_cmp_lt_u32 s2, 144\ns_cbranch_scc1 K2_ld2")
        wot_flagaddr(A); wot_regs(A, False)
        A.label("K2_ld2")
    lend2 = None
    if CFG.wreg == 4:
        wot_flagaddr(A); wot_regs(A, False, load=False, skip="s_cmp_lt_u32 s2, 144" if CFG.w1at else None)
        if CFG.w1at: A(f"s_cmp_lt_u32 s2, 144\ns_cselect_b32 s3, {9216*CFG.w1n}, 0\ns_add_u32 s56, s56, s3")
        wat = [0]*(CFG.w1n if CFG.w1at else 0) + [int(c) for c in str(CFG.wat)]
        def lend2():
            X = A.newlabel("Lu")
            if CFG.nat:
                Y = A.newlabel("Lu")
                A(f"s_cmp_lt_u32 s2, 144\ns_cbranch_scc1 {Y}\ns_sub_u32 s3, s2, 208\ns_cmp_lt_u32 s3, 32\ns_cbranch_scc1 {X}")
                for n_, c in enumerate(str(CFG.nat)):
                    L = A.newlabel("Lu")
                    A(f"s_cmp_lg_u32 s20, {c}\ns_cbranch_scc1 {L}")
                    wot_chunk(A, CFG.wn - len(str(CFG.nat)) + n_)
                    A.label(L)
                A(f"s_branch {X}\n{Y}:")
            else: A(f"s_cmp_ge_u32 s2, 144\ns_cbranch_scc1 {X}")
            for c in (3, 2, 1):
                if c in wat:
                    L = A.newlabel("Lu")
                    A(f"s_cmp_lg_u32 s20, {c}\ns_cbranch_scc1 {L}")
                    for k in range(CFG.wn):
                        if wat[k] == c: wot_chunk(A, k)
                    A.label(L)
            A.label(X)
    def first_chunks():
        if CFG.wreg == 4:
            for k in range(CFG.wn):
                if wat[k] == 9: wot_chunk(A, k)
    G2 = CFG.G2; altP = altW = None
    if CFG.own:
        G2 = "seq"
        A(f"s_mul_i32 s57, s28, 9\ns_sub_u32 s57, s24, s57\ns_lshl_b32 s57, s57, 1")
        if CFG.rev2: A("s_sub_u32 s58, 16, s57\ns_bitcmp1_b32 s2, 0\ns_cselect_b32 s57, s58, s57")
        A(f"s_cmp_lt_u32 s2, 144\ns_cselect_b32 s57, s57, 64\ns_cselect_b32 s58, {CFG.GO}, {CFG.G2}")
        if CFG.rot8: A("s_lshl_b32 s59, s22, 1\ns_add_u32 s59, s59, s23\ns_and_b32 s59, s59, 7\ns_mul_i32 s59, s59, s58\ns_lshr_b32 s59, s59, 3")
        else: A("s_add_u32 s59, s22, s23\ns_and_b32 s59, s59, 3\ns_mul_i32 s59, s59, s58\ns_lshr_b32 s59, s59, 2")
    elif G2: A(f"s_add_u32 s59, s22, s23\ns_and_b32 s59, s59, 3\ns_mul_i32 s59, s59, {CFG.G2}\ns_lshr_b32 s59, s59, 2")
    A(f"s_sub_u32 s29, s16, 4\ns_mul_i32 s34, s29, 9216")
    A(f"s_lshl_b32 s32, s22, 2\ns_add_u32 s32, s32, s29\ns_mul_i32 s32, s32, 46080\ns_add_u32 s32, s32, {WOT_OFF}")
    A("v_and_b32 v24, 63, v0\nv_lshlrev_b32 v20, 4, v24\nv_add_u32 v21, 4096, v20\nv_add_u32 v22, 8192, v20")
    srd(A, 36, 26, OB_OFF + OB_SZ)
    A("s_waitcnt lgkmcnt(0)")
    k2_final_prep(A, 2)
    A("s_lshl_b32 s30, s23, 2\ns_add_u32 s30, s30, s22\ns_lshl_b32 s30, s30, 2\ns_add_u32 s30, s30, s28\ns_lshl_b32 s30, s30, 2\ns_add_u32 s30, s30, s29")
    A(f"s_add_u32 s3, s30, {FX}\ns_lshl_b32 s3, s3, 7\nv_mov_b32 v32, s3\ns_mul_i32 s30, s30, 9216")
    A(f"s_cmp_gt_u32 s29, s28\ns_cselect_b32 s3, 1, 0\ns_sub_u32 s31, s29, s3\ns_mul_i32 s31, s31, {9*PBS}")
    A(f"s_lshl_b32 s40, s22, 2\ns_add_u32 s40, s40, s29\ns_mul_i32 s40, s40, 5\ns_add_u32 s40, s40, {FW}\nv_add_u32 v28, s40, v24\nv_cmp_gt_u32 vcc, 5, v24")
    A(f"s_lshl_b32 s33, s23, 2\ns_add_u32 s33, s33, s28\ns_lshl_b32 s33, s33, 2\ns_add_u32 s33, s33, s29\ns_lshr_b32 s40, s33, 1\ns_add_u32 s40, s40, {FO}")
    A(f"v_mov_b32 v29, s40\nv_cndmask_b32 v28, v29, v28, vcc\nv_lshlrev_b32 v28, 7, v28\ns_mul_i32 s33, s33, 10240\ns_add_u32 s33, s33, {OB_OFF}")
    def go_barrier(only_q=False):
        L = A.newlabel("Lg")
        A(f"s_sub_u32 s3, s2, 208\ns_cmp_ge_u32 s3, 32\ns_cbranch_scc1 {L}")
        if CFG.wreg == 4:
            for k in range(CFG.wn): wot_chunk(A, k)
        elif CFG.wreg >= 2:
            wot_flagaddr(A); wot_regs(A, False)
        A(f"s_and_b32 s3, s2, 1\ns_lshl_b32 s3, s3, 2\ns_add_u32 s3, s3, s29\ns_mul_i32 s3, s3, 6\ns_lshl_b32 s41, s3, 10\ns_add_u32 s41, s41, {KVF_OFF}\ns_add_u32 s3, s3, {FK}")
        A(f"v_min_u32 v14, 5, v24\nv_add_lshl_u32 v14, v14, s3, 7\ns_mul_i32 s43, s29, 6144\ns_add_u32 m0, s43, {P0}")
        poll2(A, 14, 16, CFG.slo, CFG.slo2)
        for b in range(6):
            if b == 4: A(f"s_add_u32 m0, s43, {P0 + 4096}\ns_nop 0")
            if b == 5: A("s_bitcmp1_b32 s29, 0\ns_cselect_b64 exec, 0xffff, -1")
            A(f"buffer_load_dwordx4 v{20+b//4}, s[36:39], s41 offen offset:{(b%4)*1024} sc1 lds")
        A("s_mov_b64 exec, -1\ns_waitcnt vmcnt(0)")
        if only_q: A("s_barrier")
        A.label(L)
        if not only_q: A("s_barrier")
        if CFG.wreg >= 2:
            L = A.newlabel("Lg")
            A(f"s_cmp_lt_u32 s2, 144\ns_cbranch_scc1 {L}\ns_sub_u32 s3, s2, 208\ns_cmp_lt_u32 s3, 32\ns_cbranch_scc1 {L}")
            if CFG.wreg == 4:
                for k in range(CFG.wn - (len(str(CFG.nat)) if CFG.nat else 0)): wot_chunk(A, k)
            else: wot_flagaddr(A); wot_regs(A, False)
            A("s_waitcnt vmcnt(0)")
            A.label(L)
    assert CFG.bgo == 2
    hook = {15: lambda: A("buffer_load_dwordx2 v[30:31], v28, s[96:99], 0 offen sc1")}
    def nine(so, base):
        for j in range(9):
            if j % 4 == 0: A(f"s_add_u32 m0, s34, {base + (j//4)*4096}\ns_nop 0")
            A(f"buffer_load_dwordx4 v{20+j//4}, s[36:39], s{so} offen offset:{(j%4)*1024} sc1 lds")
    def ld_o():
        L = A.newlabel("Lt")
        A(f"v_cmp_ne_u64 vcc, s[100:101], v[30:31]\ns_nop 4\ns_cbranch_vccz {L}")
        poll(A, 28, 30)
        A.label(L)
        nine(33, O_LDS)
        A(f"s_lshl_b32 s3, s29, 10\ns_add_u32 m0, s3, {O_TOP - 1024}\ns_nop 0\nbuffer_load_dwordx4 v22, s[36:39], s33 offen offset:1024 sc1 lds")
    def ld_w(u, regs):
        if regs and CFG.w0 <= u < CFG.w0 + CFG.wn:
            def put():
                A(f"s_add_u32 s3, s34, {W_SLOT[u]*STAGE}\nv_add_u32 v36, s3, v20\ns_add_u32 s32, s32, 9216")
                for b in range(9): A(f"ds_write_b128 v36, {v(WR+36*(u-CFG.w0)+4*b,4)} offset:{b*1024}")
            return (f"w{u}", 0, put)
        def emit():
            nine(32, W_SLOT[u]*STAGE)
            A("s_add_u32 s32, s32, 9216")
        return (f"w{u}", 9, emit)
    sample = ("fx", 1, lambda: A("buffer_load_dwordx2 v[34:35], v32, s[96:99], 0 offen sc1"))
    def mksched(regs):
        after = {15: [("o", 10, ld_o)], 16: [ld_w(0, regs)], 17: [], 18: [ld_w(2, regs)], 19: [ld_w(3, regs)], 20: [ld_w(4, regs)], 21: []}
        after[18 if CFG.hold else 17].insert(0, ld_w(1, regs))
        after[CFG.smp or 20].append(sample)
        inreg = [u for u in range(5) if regs and CFG.w0 <= u < CFG.w0 + CFG.wn]
        lg = {18+u: (9 if u+1 in inreg else 0) for u in inreg}
        return (23, after, {18+u: f"w{u}" for u in range(4)} | {22: "fx"}, lg)
    sched = [mksched(CFG.wreg in (1, 2, 4))]
    if CFG.lm: sched = [(18, {15: [("o", 10, ld_o)], 16: [ld_w(0, False)], 17: [] if CFG.hold or CFG.lm == 2 else [ld_w(1, False)]}, {}, {})]
    if CFG.wreg == 3: sched = [mksched(True), ("s_cmp_lt_u32 s2, 144", mksched(False))]
    A("s_cmp_ge_u32 s16, 6\ns_cbranch_scc1 K2_ldW")
    srd_off(A, 8, 26, U_OFF, U_SZ)
    A(f"s_sub_u32 s17, s16, 4\ns_lshl_b32 s21, s22, 2\ns_add_u32 s21, s21, s28\ns_mul_i32 s40, s21, 36\ns_mul_i32 s21, s21, {36*9216}")
    if 1:
        if CFG.hint2 >= 0:
            A(f"s_lshr_b32 s3, s40, 2\ns_and_b32 s41, s23, 7\ns_add_u32 s3, s3, s41\ns_add_u32 s3, s3, {FG}\ns_lshl_b32 s3, s3, 7\nv_mov_b32 v9, s3")
        A(f"s_add_u32 s40, s40, s17\ns_add_u32 s40, s40, {FU}\nv_min_u32 v8, 17, v24\nv_lshl_add_u32 v8, v8, 1, s40\nv_lshlrev_b32 v8, 7, v8")
    if CFG.own:
        def altP(issue, L):
            A("s_cmp_ge_u32 s2, 144\ns_cbranch_scc1 K2_pn\ns_barrier\ns_mov_b64 exec, 1\nbuffer_load_dwordx2 v[10:11], v8, s[96:99], 0 offen sc1\ns_barrier\ns_barrier")
            A("s_waitcnt vmcnt(0)\nv_cmp_ne_u64 vcc, s[100:101], v[10:11]\ns_nop 4\ns_cbranch_vccz K2_pg")
            poll(A, 8, 10, CFG.sl1)
            A.label("K2_pg")
            A("s_mov_b64 exec, -1")
            poll(A, 8, 10, CFG.sl2)
            pt(A, "go2")
            for sl in (2, 3, 0): issue(sl)
            A(f"s_branch {L}_2")
            A.label("K2_pn")
        def altW(issue, L):
            A(f"s_cmp_ge_u32 s2, 144\ns_cbranch_scc1 K2_wn\ns_mov_b32 s25, s21\ns_mul_i32 s21, s24, {128*4096}\ns_lshl_b32 s3, s23, 8\ns_add_u32 s21, s21, s3")
            issue(0, False)
            A(f"s_add_u32 s21, s21, {64*4096}")
            issue(1, False)
            A("s_mov_b32 s21, s25")
            if CFG.early: A("s_barrier")
            issue(2)
            A(f"s_branch {L}")
            A.label("K2_wn")
    if CFG.own >= 2:
        def altP(issue, L):
            A("s_cmp_ge_u32 s2, 144\ns_cbranch_scc1 K2_pn\ns_barrier")
            if CFG.own == 4:
                A("s_mov_b64 exec, 1")
                poll(A, 8, 10, CFG.sl1g)
                A("s_barrier")
                poll(A, 8, 10, CFG.sl2g)
            else: poll2(A, 8, 10, CFG.sl1g, CFG.sl2g)
            pt(A, "go2")
            if CFG.own == 3: A("s_barrier")
            issue(2); issue(3)
            A("s_waitcnt vmcnt(9)\ns_barrier")
            issue(0); issue(1)
            first_chunks()
            A(f"s_branch {L}_3")
            A.label("K2_pn")
        def altW(issue, L):
            A(f"s_cmp_ge_u32 s2, 144\ns_cbranch_scc1 K2_wn\ns_mov_b32 s25, s21\ns_mul_i32 s21, s24, {128*4096}\ns_lshl_b32 s3, s23, 8\ns_add_u32 s21, s21, s3")
            issue(0, False)
            A(f"s_add_u32 s21, s21, {64*4096}")
            issue(1, False)
            A("s_mov_b32 s21, s25")
            if CFG.own > 2:
                if CFG.early: A("s_barrier")
                issue(2); issue(3)
                A("s_waitcnt vmcnt(16)\ns_barrier\ns_waitcnt vmcnt(8)\ns_barrier")
                issue(0); issue(1)
                first_chunks()
                A(f"s_branch {L}_3")
                A.label("K2_wn")
                return
            A("s_waitcnt vmcnt(0)")
            def more():
                base = 16*CFG.pf2s + 32*CFG.pf2kv + 16*CFG.pf2q + 32*CFG.pf2l + 8*CFG.pf2ls
                A(f"s_mov_b64 s[40:41], s[56:57]\ns_mov_b32 s42, s58\ns_lshr_b32 s25, s2, 3\ns_lshl_b32 s25, s25, 1\ns_add_u32 s25, s25, s17\ns_add_u32 s25, s25, {base}")
                pf_w2(A, 4, 25, 36, CFG.pf2G, srdn=12)
                A("s_mov_b64 s[56:57], s[40:41]\ns_mov_b32 s58, s42")
            if CFG.pf2G and CFG.pf2Gp == 1: more()
            A("s_barrier")
            issue(2); issue(3)
            if CFG.pf2G and CFG.pf2Gp == 0: more()
            A(f"s_waitcnt vmcnt({8 + (CFG.pf2G if CFG.pf2Gp == 0 else 0)})\ns_barrier")
            issue(0); issue(1)
            first_chunks()
            A(f"s_branch {L}_3")
            A.label("K2_wn")
        assert (CFG.early or CFG.own > 2) and not CFG.pft
    def wait_u():
        go_barrier()
        poll2(A, 8, 10, CFG.sl1, CFG.sl2, "s_cmp_lt_u32 s2, 144" if CFG.gdir else None, 9 if CFG.hint2 >= 0 else None)
        if CFG.dstag:
            mode, n = CFG.dstag.split(",")
            if mode == "ramp":
                A(f"s_lshr_b32 s3, s2, 5\nK2_ds:\ns_cmp_eq_u32 s3, 0\ns_cbranch_scc1 K2_ds1\ns_sleep {n}\ns_sub_u32 s3, s3, 1\ns_branch K2_ds\nK2_ds1:")
            else:
                A(f"s_cmp_lt_u32 s2, {mode}\ns_cbranch_scc1 K2_ds1\ns_sleep {n}\nK2_ds1:")
        pt(A, "go2")
    emit_loader_lin(A, 18, 9, POFF, 17, 8, 21, 20, 18, CFG.auxP, G2, pre=wait_u, hook=hook, sched=sched, alt=altP, loopend=lend2)
    A("s_branch K2_rx")
    A.label("K2_ldW")
    srd(A, 12, 4, S*F*2)
    A(f"s_sub_u32 s17, s16, 6\ns_mul_i32 s21, s28, {1152*4096}\ns_lshl_b32 s18, s23, 8\ns_add_u32 s21, s21, s18")
    every = None
    if CFG.pft:
        nl = -(-90 // CFG.pft)
        A(f"s_and_b32 s41, s23, 7\ns_lshl_b32 s42, s22, 3\ns_add_u32 s41, s41, s42\ns_lshl_b32 s41, s41, 1\ns_add_u32 s41, s41, s17\ns_mul_i32 s41, s41, 11520\ns_add_u32 s41, s41, {WOT_OFF}")
        A(f"v_mul_u32_u24 v26, {128*CFG.pft}, v24\nv_add_u32 v26, s41, v26\ns_bfm_b64 s[48:49], {nl}, 0\ns_mov_b32 s42, {-128*(18 - CFG.pft)}")
        def every():
            A(f"s_max_i32 s3, s42, 0\ns_cmp_lt_i32 s42, 0\ns_cselect_b32 s41, {OOB}, 0\nv_or_b32 v25, s41, v26\ns_mov_b64 exec, s[48:49]")
            A(f"buffer_load_dword v{SINK}, v25, s[36:39], s3 offen sc1\ns_mov_b64 exec, -1\ns_add_u32 s42, s42, 128")
    def mid():
        go_barrier(True)
    if CFG.early: A("s_cmp_lt_u32 s2, 144\ns_cbranch_scc1 K2_nob")
    A("s_sub_u32 s3, s2, 208\ns_cmp_lt_u32 s3, 32\ns_cbranch_scc1 K2_nob\ns_barrier\nK2_nob:")
    emit_loader_W(A, 18, "pi", 17, 12, 21, 4096, 20, 18, CFG.auxW2, G2, every=every, mid=mid, hook=hook, sched=sched, alt=altW, loopend=lend2)
    A.label("K2_rx")
    if CFG.lm:
        OF, LA = 136, 200
        A(f"v_add_u32 v2, {O_LDS}, v20\nv_add_u32 v3, {O_TOP}, v20")
        A(f"v_and_b32 v4, 15, v24\nv_mul_u32_u24 v4, {RED_RS}, v4\nv_lshrrev_b32 v5, 4, v24\nv_lshl_add_u32 v4, v5, 4, v4\ns_and_b32 s3, s29, 1\ns_mul_i32 s3, s3, {16*RED_RS}\nv_add_u32 v5, s3, v4")
        A(f"s_lshl_b32 s3, s29, 6\nv_add_u32 v4, s3, v4\nv_pk_mov_b32 v[216:217], 0, 0\nv_pk_mov_b32 v[218:219], 0, 0")
        def oreads(u):
            return [f"ds_read_b128 {v(OF+32*(u&1)+8*g+4*j,4)}, " + (f"v3 offset:{g*1024}" if (u, j) == (4, 1) else f"v2 offset:{g*9216 + (2*u+j)*1024}") for g in range(4) for j in range(2)]
        def lmf(u):
            return [f"{MF} {v(LA+8*k+4*j,4)}, {v(WR+32*(u-2)+8*g+4*k,4)}, {v(OF+32*(u&1)+8*g+4*j,4)}, {v(LA+8*k+4*j,4) if u > 2 or g else 0}" for g in range(4) for k in range(2) for j in range(2)]
        if CFG.lm == 2:
            def hreads(h):
                u = 1 + (h >> 1)
                return [f"ds_read_b128 {v(168+16*(h&1)+8*(g&1)+4*j,4)}, " + (f"v3 offset:{g*1024}" if (u, j) == (4, 1) else f"v2 offset:{g*9216 + (2*u+j)*1024}") for g in (2*(h&1), 2*(h&1)+1) for j in range(2)]
            def hmf(h):
                return [f"{MF} {v(LA+8*k+4*j,4)}, {v(WR+32*(h>>1)+8*g+4*k,4)}, {v(168+16*(h&1)+8*(g&1)+4*j,4)}, {v(LA+8*k+4*j,4) if h or g else 0}" for g in (2*(h&1), 2*(h&1)+1) for k in range(2) for j in range(2)]
            A("s_waitcnt vmcnt(0)\ns_barrier")
            for r in hreads(0): A(r)
            for h in range(8):
                if h == CFG.lb: A("s_barrier")
                if h == CFG.ls: A("buffer_load_dwordx2 v[34:35], v32, s[96:99], 0 offen sc1")
                block(A, hmf(h), hreads(h+1) if h < 7 else [], False)
        else:
            A(f"s_waitcnt vmcnt({0 if CFG.hold else 9})\ns_barrier")
            for r in oreads(2): A(r)
            smp = "buffer_load_dwordx2 v[34:35], v32, s[96:99], 0 offen sc1" if CFG.smp else "v_pk_mov_b32 v[34:35], 0, 0"
            if CFG.lord == 0:
                if CFG.hold: ld_w(1, False)[2]()
                block(A, lmf(2), oreads(3), False)
                A("s_waitcnt vmcnt(0)\ns_barrier")
                block(A, lmf(3), oreads(4), False)
                A("s_barrier\n" + smp)
                block(A, lmf(4), [], False)
            else:
                block(A, lmf(2), oreads(3), False)
                if CFG.hold: ld_w(1, False)[2]()
                block(A, lmf(3), oreads(4), False)
                block(A, lmf(4), [], False)
                A("s_waitcnt vmcnt(0)\ns_barrier\ns_barrier\n" + smp)
        A(f"ds_write_b128 v5, v[216:219] offset:{REDL + 512}\ns_nop 3")
        for k in range(2):
            for j in range(2): A(f"ds_write_b128 v4, {v(LA+8*k+4*j,4)} offset:{REDL + k*256 + j*16*RED_RS}")
        A("s_waitcnt vmcnt(0)")
    A("s_cmp_eq_u32 s29, s28\ns_cbranch_scc1 K2_fin")
    srd_off(A, 8, 26, PART_OFF, PART_SZ)
    A(f"s_add_u32 m0, s31, {PB}\nv_cmp_ne_u64 vcc, s[100:101], v[34:35]\nv_lshrrev_b32 v2, 5, v24\nv_xor_b32 v2, v2, v24\nv_lshlrev_b32 v2, 4, v2\ns_nop 1\ns_cbranch_vccz K2_rx1\ns_mov_b64 exec, 1")
    poll(A, 32, 34, CFG.slx)
    A.label("K2_rx1")
    pt(A, "poll")
    for t in range(9):
        A(f"buffer_load_dwordx4 v2, s[8:11], s30 offen sc1 lds\ns_add_u32 m0, m0, {PBS}\ns_add_u32 s30, s30, 1024")
    A("s_branch K2_fin")
    A.label("K_end")
    A("s_endpgm")
    DBG["on"] = False

def k2_final_prep(A, nitems):
    srd(A, 8, 44, S*D*2)
    srd(A, 12, 6, S*2)
    srd(A, 52, 46, S*D*2)
    A("s_lshl_b32 s50, s23, 2\ns_add_u32 s50, s50, s28\ns_lshl_b32 s51, s50, 6\ns_mul_i32 s50, s50, 36864\ns_mul_i32 s17, s22, 288\ns_add_u32 s50, s50, s17")
    for n in range(nitems):
        FI = (244, 232)[n]; XB = FI + 4
        if n: A(f"v_mov_b32 v{FI}, {OOB}\ns_cmp_lg_u32 s16, 7\ns_cbranch_scc1 K2_fp1")
        A("v_mov_b32 v252, v0" if n == 0 else "v_and_b32 v252, 63, v0\nv_add_u32 v252, 512, v252")
        A("v_mul_u32_u24 v253, 3641, v252\nv_lshrrev_b32 v253, 16, v253\nv_mul_u32_u24 v254, 18, v253\nv_sub_u32 v254, v252, v254")
        A(f"v_mul_u32_u24 v252, 1152, v253\nv_lshl_add_u32 v{FI}, v254, 4, v252")
        A(f"v_mul_u32_u24 v252, {RED_RS}, v253\nv_lshl_add_u32 v{FI+1}, v254, 5, v252\nv_add_u32 v{FI+1}, {RED}, v{FI+1}")
        A(f"v_lshrrev_b32 v252, 1, v254\nv_mul_u32_u24 v252, {PBS}, v252\nv_and_b32 v254, 1, v254\nv_lshl_add_u32 v252, v254, 9, v252\nv_xor_b32 v254, v254, v253\nv_and_b32 v254, 15, v254")
        A(f"v_lshl_add_u32 v252, v254, 4, v252\nv_lshrrev_b32 v254, 4, v253\nv_lshl_add_u32 v252, v254, 3, v252\nv_add_u32 v{(241, 240)[n]}, {PB}, v252\nv_add_u32 v{FI+2}, {PB_OWN}, v252")
        A("v_lshlrev_b32 v253, 1, v253")
        A(f"buffer_load_dwordx4 {v(XB,4)}, v{FI}, s[8:11], s50 offen\nbuffer_load_ushort v{FI+3}, v253, s[12:15], s51 offen")
        if n: A.label("K2_fp1")
    A("v_mov_b32 v252, v241")

HEADER = open("parallel_sum__linear_kernel_hedgehog__mixer_token_mlp__prompt.s.ref").read().split("; Override launch")[0] if __name__ == "__main__" else ""

DOC = """;
; Hand-offs: write-through stores, vmcnt(0), then a flag line in d_ws that holds this launch's tag; readers use sc1 loads.
;"""

def gen(**kw):
    global CFG
    for k in dir(Cfg):
        if not k.startswith("_"): setattr(CFG, k, kw.get(k, getattr(Cfg, k)))
    A = Asm()
    if HEADER: A(HEADER.rstrip())
    A(DOC)
    A(f"; @launch grid=(256,1,1) block=(512,1,1) lds={LDS_BYTES}")
    A('.amdgcn_target "amdgcn-amd-amdhsa--gfx950"\n.text')
    gen_k0(A); gen_k1(A); gen_k2(A)
    A.label("CODE_END")
    A("s_endpgm")
    A('.section .rodata,"a"')
    kernel_desc(A, KNAME, 256)
    return A.text()

if __name__ == "__main__":
    out = sys.argv[1] if len(sys.argv) > 1 else "parallel_sum__linear_kernel_hedgehog__mixer_token_mlp__prompt.s"
    kw = {}
    for a in sys.argv[2:]:
        k, val = a.split("=")
        kw[k] = val if not val.lstrip("-").isdigit() else int(val)
    open(out, "w").write(gen(**kw))
```

```python
import math, struct, sys
from asmlib import *

def f2u(x): return struct.unpack("<I", struct.pack("<f", x))[0]
LOG2E = math.log2(math.e)
OOB = 0x80000000
GC0 = 2*math.sqrt(2/math.pi)*LOG2E
GS = (GC0*0.044715) ** (1/3)

S, D, F, H, DH = 2048, 576, 4608, 32, 18
KA_X, KA_WQKV, KA_WPHI, KA_WO, KA_BX, KA_W1, KA_B1, KA_W2, KA_B2, KA_OUT, KA_DBG, KA_WS = [8*i for i in range(12)]
RS_OFF, RS_SZ = 0x0, 128*128
HT_OFF, HT_SZ = 0x240000, 2359296
WF_OFF, WF_SZ = 0x480000, 6*18*18*1024
U_OFF, U_SZ = 0x680000, 5308416
PHIQ_OFF, PHIQ_SZ = 0xC00000, 4718592
KVP_OFF, KVP_SZ = 0x1080000, 16*48*2048
KVF_OFF, KVF_SZ = 0x12C0000, 48*1024
WOT_OFF, WOT_SZ = 0x1300000, 16*45*1024
OB_OFF, OB_SZ = 0x2000000, 64*4*10240
PART_OFF, PART_SZ = 0x1400000, 64*16*9216
FLAG_OFF, FLAG_SZ = 0x1F00000, 0x58000
F0, F1, FU, FW, FK, FP, FO, FX, FE = 0, 256, 792, 712, 1368, 1416, 1480, 1608, 2632
FH, FG = 704, 2640
KNAME = "parallel_sum__linear_kernel_hedgehog__mixer_token_mlp__prompt_kernel"
SINK = 255
STAMP_OFF, STAMP_SZ = 0x3000000, 0x100000

STAGE, POFF, WOFF, NST = 36864, 0, 18432, 4
STAGE2 = STAGE
V_PA, V_PB, V_W0A, V_W1A, V_W0B, V_W1B = 2, 3, 4, 5, 6, 7
V_PF, V_WF, V_ACC = 8, 80, 96
def pf(b, t): return v(V_PF + b*36 + t*4, 4)
def wf(b, j): return v(V_WF + b*8 + j*4, 4)
def accr(st, t, j): return V_ACC + st*72 + (t*2+j)*4
def acc(st, t, j): return v(accr(st, t, j), 4)
MF = "v_mfma_f32_16x16x32_bf16"

class Cfg:
    stamp = False
    auxW1 = ""; auxW2 = ""; auxP = "sc1"; auxSt = "sc1"
    G1 = 0; G2 = 0; GA = 0
    auxOut = ""; flagpos = 1; pollpos = 1
    pts = ""; pf1b = 0; pf2w = 0; pubpos = 0; nox = 0; slf = 0; hintf = 0; xl = 0; qw = 0; gsp = 0; sfo = 0; amp = ""; lb = 4; ls = 6; w1b = 0; w1i = 3; gsc = 0; ofine = 0; nat = 0; chore = 0; wfirst = 0; w1at = 0; w1n = 1; stsw = 0; lord = 0; lm = 0; wat = 932; pf1kv = 0; dfold = 0; tl0 = 0; rot8 = 0; pf2G = 0; pf2Gp = 0; sl1g = 8; sl2g = 1; sA = 0; wn = 2; w0 = 2; rev2 = 0; early = 0; own = 0; ownpf = 0; GO = 4; burn = ""; w22 = 0; koff = 0; dstag = ""; wreg = 0; wpos = 3; glag = 0; hold = 1; smp = 20; prio = 0; prio1 = 0; pfpos = 0; c3s = 0; hint2 = -1; hint1 = 0; prew = 0; gdir = 0; half = 0; pf2l = 0; pf2ls = 0; ost = 0; slo2 = 1; slx = 0; slo = 4; opos = 0; dl0 = 0; dlf = 0; dlw = 0; pff = 0; wide = 0; wot1 = 0; pf1q = 0; slim = 1; unroll = 0; sl0a = 0; wlate = 0; qlim = -1; pfbar = 0; pf1a = 0; c3w2 = 0; c3w1 = 0; swap13 = 1; tlb = 0; sl1 = 0; sl2 = 0; bgo = 0; sl0 = 0; slk = 0
    dbg_nopub = 0; dbg_hot = 0; dbg = ""
    pfc = 0
    pf1 = 0
    pf1l = 0; pf1rev = 0; pf2g = 0; pf2pos = 3
    pf1pos = 0
    pf1s = 0
    pft = 0
    pf2kv = 0; pf2q = 0; pf2s = 0
    probe = ""
CFG = Cfg()

def stamp(A, i):
    if CFG.stamp: A(f"{'s_memtime' if CFG.stamp == 2 else 's_memrealtime'} s[{64+2*i}:{65+2*i}]")
def pt(A, name):
    L = CFG.pts.split(",")
    if name in L: stamp(A, 1 + L.index(name))
def stamp_flush(A):
    if not CFG.stamp: return
    A("s_waitcnt vmcnt(0)")
    stamp(A, 13)
    A("s_waitcnt lgkmcnt(0)")
    srd_off(A, 92, 26, STAMP_OFF, STAMP_SZ)
    A("s_lshl_b32 s63, s2, 3\ns_add_u32 s63, s63, s16\ns_lshl_b32 s63, s63, 6\ns_mov_b64 exec, 1\nv_mov_b32 v1, 0")
    for i in range(14):
        A(f"v_mov_b32 v2, s{64+2*i}\nbuffer_store_dword v2, v1, s[92:95], s63 offen offset:{4*i}")

def emit_compute_addr(A, s_wave, mode):
    if CFG.w22 and mode != "lin": return addr22(A, s_wave, mode)
    A("v_and_b32 v1, 63, v0")
    A(f"v_lshlrev_b32 v{V_PA}, 4, v1")
    A(f"v_add_u32 v{V_PB}, {2*STAGE}, v{V_PA}")
    if mode == "lin":
        A("v_lshrrev_b32 v8, 5, v1\nv_lshlrev_b32 v8, 12, v8\nv_bfe_u32 v9, v1, 4, 1\nv_lshl_add_u32 v8, v9, 7, v8\nv_bfe_u32 v9, v1, 2, 2\nv_lshl_add_u32 v8, v9, 4, v8")
        A("v_bfe_u32 v9, v1, 1, 1\nv_mul_u32_u24 v9, 320, v9\nv_add_u32 v8, v8, v9\nv_and_b32 v9, 1, v1\nv_lshl_add_u32 v8, v9, 3, v8")
        A(f"s_lshl_b32 s3, s{s_wave}, 10\ns_add_u32 s3, s3, {WOFF}\nv_add_u32 v{V_W0A}, s3, v8")
        A(f"v_xor_b32 v{V_W1A}, 64, v{V_W0A}\nv_add_u32 v{V_W0B}, {2*STAGE}, v{V_W0A}\nv_add_u32 v{V_W1B}, {2*STAGE}, v{V_W1A}")
        return
    A("v_lshrrev_b32 v8, 2, v1")
    A("v_and_b32 v9, 7, v8")
    if mode == "std":
        A("v_and_b32 v10, 12, v8\nv_add_u32 v8, v8, v10")
    A(f"s_lshl_b32 s3, s{s_wave}, 1")
    A("v_xor_b32 v9, s3, v9\nv_lshlrev_b32 v9, 5, v9\nv_lshl_add_u32 v9, v8, 8, v9")
    A("v_and_b32 v8, 3, v1\nv_lshl_add_u32 v9, v8, 3, v9")
    A(f"v_add_u32 v{V_W0A}, {WOFF}, v9")
    A(f"v_xor_b32 v{V_W1A}, 32, v{V_W0A}")
    A(f"v_add_u32 v{V_W0B}, {2*STAGE}, v{V_W0A}")
    A(f"v_add_u32 v{V_W1B}, {2*STAGE}, v{V_W1A}")

X22 = 80
def addr22(A, s_wave, mode):
    A("v_and_b32 v1, 63, v0")
    A(f"v_lshlrev_b32 v{V_PA}, 4, v1\nv_add_u32 v{V_PB}, {2*STAGE}, v{V_PA}")
    A(f"s_and_b32 s3, s{s_wave}, 1\ns_mul_i32 s3, s3, 5120\nv_add_u32 v4, s3, v{V_PA}\nv_add_u32 v5, s3, v{V_PB}")
    A("v_lshrrev_b32 v8, 2, v1\nv_and_b32 v9, 7, v8")
    if mode == "std": A("v_and_b32 v10, 12, v8\nv_add_u32 v8, v8, v10")
    A(f"s_lshl_b32 s3, s{s_wave}, 1")
    A("v_xor_b32 v9, s3, v9\nv_lshlrev_b32 v9, 5, v9\nv_lshl_add_u32 v9, v8, 8, v9")
    A(f"v_and_b32 v8, 3, v1\nv_lshl_add_u32 v9, v8, 3, v9\nv_add_u32 v{X22}, {WOFF}, v9")
    for jj in range(1, 4): A(f"v_xor_b32 v{X22+jj}, {32*jj}, v{X22}")
    for jj in range(4): A(f"v_add_u32 v{X22+4+jj}, {2*STAGE}, v{X22+jj}")
def pf22(b, i): return V_PF + 36*b + 4*i
def wf22(b, jj): return V_PF + 36*b + 20 + 4*jj
def reads22(slot, sub, b, mode):
    hi = slot >= 2; so = (slot & 1) * STAGE
    second = 1024 if mode == "std" else 4096
    W = []
    for jj in range(4):
        a = X22 + jj + (4 if hi else 0)
        W.append([f"ds_read_b64_tr_b16 {v(wf22(b,jj)+2*h,2)}, v{a} offset:{so + sub*8192 + h*second}" for h in range(2)])
    P = [f"ds_read_b128 {v(pf22(b,i),4)}, v{(5 if hi else 4) if i < 4 else (V_PB if hi else V_PA)} offset:{so + (sub*9+i)*1024}" for i in range(5)]
    return W[0] + W[1] + W[2] + W[3] + P
def mfmas22(b, w_is_A):
    M = []
    for blk in range(9):
        i, h = (blk >> 1, blk & 1) if blk < 8 else (4, 0)
        for j in range(2):
            p_, w_ = v(pf22(b,i),4), v(wf22(b,2*h+j),4)
            M.append(f"{MF} {acc(0,blk,j)}, {w_ if w_is_A else p_}, {p_ if w_is_A else w_}, {acc(0,blk,j)}")
    return M

def reads_P(slot, sub, b):
    a = V_PB if slot >= 2 else V_PA
    so = (slot & 1) * STAGE
    return [f"ds_read_b128 {pf(b,t)}, v{a} offset:{so + (sub*9+t)*1024}" for t in range(9)]
def reads_W(slot, sub, b, mode):
    hi = slot >= 2
    so = (slot & 1) * STAGE
    R = []
    if mode == "lin":
        a = (V_W0B, V_W1B) if hi else (V_W0A, V_W1A)
        return [f"ds_read_b64_tr_b16 {v(V_WF + b*8 + j*4 + 2*h, 2)}, v{a[h]} offset:{so + j*512}" for j in range(2) for h in range(2)]
    second = 1024 if mode == "std" else 4096
    for j in range(2):
        a = (V_W0B, V_W1B)[j] if hi else (V_W0A, V_W1A)[j]
        base = V_WF + b*8 + j*4
        R.append(f"ds_read_b64_tr_b16 {v(base,2)}, v{a} offset:{so + sub*8192}")
        R.append(f"ds_read_b64_tr_b16 {v(base+2,2)}, v{a} offset:{so + sub*8192 + second}")
    return R

DBG = {"on": False}
def dbg(x): return DBG["on"] and x in CFG.dbg.split(",")
def block(A, M, R, barrier):
    if dbg("nomfma"): M = ["s_nop 3"]*len(M)
    if dbg("noread"): R = []
    if dbg("noreadP"): R = [r for r in R if "tr_b16" in r]
    if dbg("halfP"): R = [r for i, r in enumerate(R) if "tr_b16" in r or i % 2]
    A("s_waitcnt lgkmcnt(0)")
    if barrier: A("s_barrier")
    ri = 0
    for m in M:
        A(m)
        if ri < len(R):
            if R[ri]: A(R[ri])
            ri += 1
    assert ri == len(R)

def mfmas(st, pb, wb, w_is_A):
    M = []
    for t in range(9):
        for j in range(2):
            a, b = (wf(wb,j), pf(pb,t)) if w_is_A else (pf(pb,t), wf(wb,j))
            M.append(f"{MF} {acc(st,t,j)}, {a}, {b}, {acc(st,t,j)}")
    return M

def emit_compute_loop(A, n, mode, w_is_A, s_cnt, first=None, lastfill=None, hooks=None, loopend=None, more=None, own=False):
    lin = mode == "lin"
    if own:
        rd = lambda sl, sub, b: reads_W(sl, sub, b, mode) + reads_P(sl, sub, b)
        A("s_cmp_ge_u32 s2, 144\ns_cbranch_scc1 K2_cn")
        if CFG.own > 2: A("s_barrier")
        pt(A, "own")
        for r in rd(0, 0, 0): A(r)
        for k in range(4): block(A, mfmas(0, k & 1, k & 1, w_is_A[0]), rd((k+1) >> 1, (k+1) & 1, (k+1) & 1) if k < 3 else [], False)
        A("s_barrier")
        if first: first()
        for r in rd(2, 0, 0): A(r)
        A(f"s_mov_b32 s{s_cnt}, {(n - 1) // NST}\ns_branch K2_c2")
        A.label("K2_cn")
    A("s_barrier")
    if first: first()
    w22 = CFG.w22 and not lin
    for r in (reads22(0, 0, 0, mode) if w22 else reads_W(0, 0, 0, mode) + reads_P(0, 0, 0)): A(r)
    def stage(i, last):
        slot = i % NST; nxt = (i+1) % NST
        if lin:
            wb = i & 1
            block(A, mfmas(0, 0, wb, w_is_A[0]), reads_P(slot, 1, 1), False)
            block(A, mfmas(1, 1, wb, w_is_A[1]), (lastfill or []) if last else reads_W(nxt, 0, wb ^ 1, mode) + reads_P(nxt, 0, 0), not last)
        elif w22:
            block(A, mfmas22(0, w_is_A[0]), reads22(slot, 1, 1, mode), False)
            block(A, mfmas22(1, w_is_A[1]), (lastfill or []) if last else reads22(nxt, 0, 0, mode), not last)
        else:
            x0, x1 = (more or {}).get(i, ([], []))
            block(A, mfmas(0, 0, 0, w_is_A[0]), reads_W(slot, 1, 1, mode) + reads_P(slot, 1, 1) + x0, False)
            block(A, mfmas(0, 1, 1, w_is_A[1]), (lastfill or []) if last else reads_W(nxt, 0, 0, mode) + reads_P(nxt, 0, 0) + x1, not last)
    if CFG.unroll and mode == ("std", "pi")[CFG.unroll-1]:
        for i in range(n):
            if own and i == 2: A.label("K2_c2")
            stage(i, i == n-1); pt(A, f"s{i}")
            if i == 3 and loopend: loopend()
        return
    nloop = (n - 1) // NST
    L = A.newlabel("Lc")
    A(f"s_mov_b32 s{s_cnt}, {nloop}")
    A.label(L)
    for i in range(NST):
        if own and i == 2: A.label("K2_c2")
        stage(i, False)
    if loopend: loopend()
    A(f"s_sub_u32 s{s_cnt}, s{s_cnt}, 1\ns_cmp_lg_u32 s{s_cnt}, 0\ns_cbranch_scc1 {L}")
    for i in range(nloop*NST, n):
        if hooks and i in hooks: hooks[i]()
        stage(i, i == n-1)

def seq_off(A, s_off, step):
    A(f"s_cmp_ge_u32 s59, s57\ns_cselect_b32 s62, 2, 0\ns_add_u32 s62, s62, s59\ns_mul_i32 s62, s62, s19\ns_add_u32 s{s_off}, s35, s62")
def rot_init(A, G, s_rot, s_off, step):
    if G == "seq":
        A(f"s_mov_b32 s35, s{s_off}\ns_sub_u32 s60, s58, s59\ns_mov_b32 s61, s58\ns_mov_b32 s19, {step}")
        if CFG.rev2: A(f"s_bitcmp1_b32 s2, 0\ns_cselect_b32 s62, {17*step}, 0\ns_cselect_b32 s19, {-step}, s19\ns_add_u32 s35, s35, s62")
        return seq_off(A, s_off, step)
    if DBG.get("koff"):
        A(f"s_and_b32 s58, s2, 6\ns_lshl_b32 s58, s58, 2\ns_mul_i32 s62, s58, {step}\ns_add_u32 s{s_off}, s{s_off}, s62\ns_sub_u32 s58, 32, s58")
    if not G: return
    A(f"s_mul_i32 s62, s{s_rot}, {step}\ns_add_u32 s{s_off}, s{s_off}, s62")
    A(f"s_sub_u32 s60, {G}, s{s_rot}\ns_mov_b32 s61, {G}")
def rot_step(A, G, s_off, step):
    if dbg("noadv"): return
    if dbg("k2W") and step == 64*4096: return
    if dbg("k2P") and step == 18432: return
    if "k1W" in CFG.dbg and step == 64*9216: return
    if "k1P" in CFG.dbg and DBG.get("k1P"): return
    if G == "none": return
    if G == "seq":
        A("s_add_u32 s59, s59, 1\ns_sub_u32 s60, s60, 1\ns_cmp_eq_u32 s60, 0\ns_cselect_b32 s62, s58, 0\ns_cselect_b32 s60, s58, s60\ns_sub_u32 s59, s59, s62")
        A("s_sub_u32 s61, s61, 1\ns_cmp_eq_u32 s61, 0\ns_cselect_b32 s62, s58, 0\ns_cselect_b32 s61, s58, s61\ns_add_u32 s59, s59, s62")
        return seq_off(A, s_off, step)
    A(f"s_add_u32 s{s_off}, s{s_off}, {step}")
    if DBG.get("koff"):
        A(f"s_sub_u32 s58, s58, 1\ns_cmp_eq_u32 s58, 0\ns_cselect_b32 s62, {32*step}, 0\ns_sub_u32 s{s_off}, s{s_off}, s62")
    if not G: return
    A(f"s_sub_u32 s60, s60, 1\ns_cmp_eq_u32 s60, 0\ns_cselect_b32 s62, {G*step}, 0\ns_cselect_b32 s60, {G}, s60\ns_sub_u32 s{s_off}, s{s_off}, s62")
    A(f"s_sub_u32 s61, s61, 1\ns_cmp_eq_u32 s61, 0\ns_cselect_b32 s62, {G*step}, 0\ns_cselect_b32 s61, {G}, s61\ns_add_u32 s{s_off}, s{s_off}, s62")

def emit_loader(A, n, cnt, issue, s_cnt, extra=None, hook=None, post=None, pre=None, mid=None, sched=None, loopend=None, alt=None, inloop=None):
    extra = extra or []
    tot = n + len(extra)
    hook = hook or {}
    def c(i): return 0 if i >= tot else (cnt + (i in hook) if i < n else extra[i-n][0])
    nloop = (n - 3) // NST
    L = A.newlabel("Ll")
    A(f"s_mov_b32 s{s_cnt}, {nloop}")
    if alt: alt(issue, L)
    if pre: pre()
    for i in range(3): issue(i)
    if mid: mid()
    A.label(L)
    for i in range(NST):
        if i >= 2: A.label(L + f"_{i}")
        A(f"s_waitcnt vmcnt({2*cnt})\ns_barrier")
        issue((i+3) % NST)
        if inloop: inloop(i, cnt)
    if loopend: loopend()
    A(f"s_sub_u32 s{s_cnt}, s{s_cnt}, 1\ns_cmp_lg_u32 s{s_cnt}, 0\ns_cbranch_scc1 {L}")
    A.label(L + "_e")
    def run_sched(sched):
        nbar, after, need, lg = sched
        order = [(k, cnt) for k in range(nloop*NST + 3)]
        for i in range(nloop*NST, nbar):
            name = need.get(i, i)
            pos = max(p for p, (k, _) in enumerate(order) if k == name)
            A(f"s_waitcnt vmcnt({sum(c_ for _, c_ in order[pos+1:])})" + (f" lgkmcnt({lg[i]})" if i in lg else "") + "\ns_barrier")
            if i+3 in hook: hook[i+3](); order.append((i+3, 1))
            if i+3 < n: issue((i+3) % NST); order.append((i+3, cnt))
            for name, c_, emit in after.get(i, []):
                emit(); order.append((name, c_))
    if sched:
        X = A.newlabel("Lz")
        if len(sched) > 1: A(f"{sched[1][0]}\ns_cbranch_scc1 {X}_b")
        run_sched(sched[0])
        if len(sched) > 1:
            A(f"s_branch {X}\n{X}_b:")
            run_sched(sched[1][1])
        A.label(X)
        return
    for i in range(nloop*NST, tot):
        A(f"s_waitcnt vmcnt({c(i+1)+c(i+2) + (post[0] if post and i > n-post[2] else 0)})\ns_barrier")
        if post and i == n-post[2]: post[1]()
        if i+3 in hook: hook[i+3]()
        if i+3 < n: issue((i+3) % NST)
        elif i+3 < tot: extra[i+3-n][1]((i+3) % NST)

def emit_loader_lin(A, n, per, ldsoff, s_lw, srdP, s_off, s_cnt, s_tmp, aux="", G=0, s_rot=59, extra=None, post=None, pre=None, hook=None, sched=None, loopend=None, alt=None, inloop=None):
    rot_init(A, G, s_rot, s_off, 2*per*1024)
    A("v_and_b32 v1, 63, v0\nv_lshlrev_b32 v1, 4, v1")
    A(f"s_mul_i32 s{s_tmp}, s{s_lw}, {per*1024}")
    A(f"v_add_u32 v2, s{s_tmp}, v1")
    for q in range(1, (per+3)//4): A(f"v_add_u32 v{2+q}, {q*4096}, v2")
    def issue(slot):
        for j in range(per):
            if j % 4 == 0:
                A(f"s_add_u32 m0, s{s_tmp}, {slot*STAGE + ldsoff + (j//4)*4096}\ns_nop 0")
            if not dbg("noload"): A(f"buffer_load_dwordx4 v{2+j//4}, {s(srdP,4)}, s{s_off} offen offset:{(j%4)*1024} {aux} lds")
        rot_step(A, G, s_off, 2*per*1024)
    emit_loader(A, n, per, issue, s_cnt, extra, hook=hook, post=post, pre=pre, sched=sched, loopend=loopend, alt=alt, inloop=inloop)

def w_addr(A, mode, s_lw, stride, s_tmp):
    A("v_and_b32 v1, 63, v0\nv_lshrrev_b32 v10, 4, v1\nv_and_b32 v11, 15, v1")
    A(f"s_lshl_b32 s{s_tmp}, s{s_lw}, 5\nv_add_u32 v12, s{s_tmp}, v10")
    A(f"s_mov_b32 s3, {stride}\nv_mul_lo_u32 v12, v12, s3")
    for par in range(2):
        A(f"v_or_b32 v13, {4*par}, v10\nv_lshlrev_b32 v13, 1, v13\nv_xor_b32 v13, v13, v11")
        A("v_lshl_add_u32 v13, v13, 4, v12")
        for j in range(8):
            key = (j & 1) if mode == "pi" else ((j >> 1) & 1)
            if key == par:
                A(f"v_add_u32 v{2+j}, {4*j*stride - (j%4)*1024}, v13")
    A(f"s_lshl_b32 s{s_tmp}, s{s_lw}, 13")
def w_issue(A, slot, srdW, s_off, s_tmp, aux):
    for j in range(8):
        if j % 4 == 0:
            A(f"s_add_u32 m0, s{s_tmp}, {slot*STAGE + WOFF + (j//4)*4096}\ns_nop 0")
        if not dbg("noload"): A(f"buffer_load_dwordx4 v{2+j}, {s(srdW,4)}, s{s_off} offen offset:{(j%4)*1024} {aux} lds")
def emit_loader_W(A, n, mode, s_lw, srdW, s_off, stride, s_cnt, s_tmp, aux="", G=0, s_rot=59, extra=None, hook=None, post=None, every=None, mid=None, sched=None, loopend=None, alt=None, inloop=None):
    rot_init(A, G, s_rot, s_off, 64*stride)
    w_addr(A, mode, s_lw, stride, s_tmp)
    def issue(slot, adv=True):
        w_issue(A, slot, srdW, s_off, s_tmp, aux)
        if every: every()
        rot_step(A, G if adv else 'none', s_off, 64*stride)
    emit_loader(A, n, 9 if every else 8, issue, s_cnt, extra, hook, post, mid=mid, sched=sched, loopend=loopend, alt=alt, inloop=inloop)

def pf_w1(A, srdn, s_col, s_idx, step, count, vl, vt, lim=None, rev=0, lanes=64, base=0):
    for c in range(count):
        if rev: A(f"s_sub_u32 s57, {rev-1}, s{s_idx}\ns_lshl_b32 s57, s57, 6")
        else: A(f"s_mul_i32 s57, s{s_idx}, {lanes}")
        if base: A(f"s_add_u32 s57, s57, {base}")
        A(f"v_add_u32 v{vt}, s57, v{vl}")
        if CFG.koff:
            A(f"s_and_b32 s57, s2, 6\ns_mul_i32 s57, s57, 2560\nv_add_u32 v{vt}, s57, v{vt}\nv_subrev_u32 v{vt+1}, 20480, v{vt}\nv_min_u32 v{vt}, v{vt}, v{vt+1}")
        A(f"v_mul_u32_u24 v{vt+1}, 52429, v{vt}\nv_lshrrev_b32 v{vt+1}, 19, v{vt+1}")
        A(f"v_mul_u32_u24 v{vt+1}, {9216-1280}, v{vt+1}\nv_lshl_add_u32 v{vt}, v{vt}, 7, v{vt+1}")
        if lanes < 64: A(f"s_bfm_b64 exec, {lanes}, 0")
        A(f"buffer_load_dword v{SINK}, v{vt}, {s(srdn,4)}, s{s_col} offen")
        if lanes < 64: A("s_mov_b64 exec, -1")
        A(f"s_add_u32 s{s_idx}, s{s_idx}, {step}")
        if lim is not None: A(f"s_waitcnt vmcnt({lim})")
def pf_code(A, start):
    L = A.newlabel("Lpc")
    A(f"s_getpc_b64 s[60:61]\n{L}:\ns_add_u32 s60, s60, {start}-{L}\ns_addc_u32 s61, s61, 0")
    A(f"v_lshlrev_b32 v90, 7, v0\nv_min_u32 v90, CODE_END-{start}-4, v90\nglobal_load_dword v{SINK}, v90, s[60:61]")
def pf_code5(A, start):
    L = A.newlabel("Lpc")
    A(f"s_getpc_b64 s[60:61]\n{L}:\ns_add_u32 s60, s60, {start}-{L}\ns_addc_u32 s61, s61, 0")
    A(f"s_and_b32 s3, s2, 0x78\ns_add_u32 s3, s3, s16\ns_mul_i32 s3, s3, 6\nv_add_lshl_u32 v90, v1, s3, 7\nv_min_u32 v90, CODE_END-{start}-4, v90")
    A(f"s_mov_b64 exec, 63\nglobal_load_dword v{SINK}, v90, s[60:61]\ns_mov_b64 exec, -1")
def pf_w1_col(A, s_col):
    A(f"s_and_b32 s{s_col}, s2, 7\ns_mul_i32 s{s_col}, s{s_col}, 18\ns_lshr_b32 s{s_col}, s{s_col}, 2\ns_lshl_b32 s{s_col}, s{s_col}, 8")
def pf_w2(A, s_ptr, s_idx, step, count, lim=None, srdn=52):
    if not count: return
    srd(A, srdn, s_ptr, S*F*2)
    A(f"s_bfe_u32 s57, s2, 0x20001\ns_mul_i32 s57, s57, {1152*4096}\ns_and_b32 s58, s2, 1\ns_lshl_b32 s58, s58, 11\ns_add_u32 s57, s57, s58")
    if CFG.rev2:
        A(f"s_sub_u32 s58, 287, s{s_idx}\ns_bitcmp1_b32 s2, 0\ns_cselect_b32 s58, s58, s{s_idx}\ns_lshl_b32 s58, s58, 14\ns_add_u32 s57, s57, s58")
        A(f"s_mov_b32 s58, {step*16384}\ns_bitcmp1_b32 s2, 0\ns_cselect_b32 s58, {-step*16384}, s58")
    else: A(f"s_lshl_b32 s58, s{s_idx}, 14\ns_add_u32 s57, s57, s58\ns_mov_b32 s58, {step*16384}")
    A("v_bfe_u32 v30, v0, 4, 2\nv_lshlrev_b32 v30, 12, v30\nv_and_b32 v31, 15, v0\nv_lshl_add_u32 v30, v31, 7, v30")
    for c in range(count):
        A(f"buffer_load_dword v{SINK}, v30, {s(srdn,4)}, s57 offen\ns_add_u32 s57, s57, s58")
        if lim is not None: A(f"s_waitcnt vmcnt({lim})")

def pf_w2c3(A, s_ptr, s_idx, step, count, lim=None):
    srd(A, 52, s_ptr, S*F*2)
    A(f"s_bfe_u32 s57, s2, 0x20001\ns_mul_i32 s57, s57, {1152*4096}\ns_and_b32 s58, s2, 1\ns_lshl_b32 s58, s58, 11\ns_add_u32 s57, s57, s58")
    A(f"s_lshl_b32 s58, s{s_idx}, 17\ns_add_u32 s57, s57, s58\ns_add_u32 s57, s57, 384")
    A("v_bfe_u32 v30, v0, 1, 5\nv_lshlrev_b32 v30, 12, v30\nv_and_b32 v31, 1, v0\nv_lshl_add_u32 v30, v31, 10, v30")
    for c in range(count):
        L = A.newlabel("Lc3")
        A(f"s_cmp_ge_u32 s{s_idx}, {36 - c*step}\ns_cbranch_scc1 {L}")
        A(f"buffer_load_dword v{SINK}, v30, s[52:55], s57 offen\ns_add_u32 s57, s57, {step << 17}")
        if lim is not None: A(f"s_waitcnt vmcnt({lim})")
        A.label(L)

SPIN_MAX = 60000
def flag_setup(A):
    srd_off(A, 96, 26, FLAG_OFF, FLAG_SZ)
    A(f"s_load_dword s100, s[96:97], {FE*128}")
def touch_pages(A):
    srd(A, 92, 26, OB_OFF + OB_SZ)
    A(f"v_and_b32 v92, 63, v0\nv_cmp_gt_u32 vcc, {CFG.tl0}, v92\nv_lshlrev_b32 v92, 21, v92\nv_mov_b32 v93, {FLAG_OFF + FE*128}\nv_add_u32 v92, 0x1ff000, v92\nv_cndmask_b32 v92, v93, v92, vcc")
    A(f"s_bfm_b64 exec, {CFG.tl0 + 1}, 0\nbuffer_load_dword v{SINK}, v92, s[92:95], 0 offen sc1\ns_mov_b64 exec, -1")
def tag_make(A):
    A("s_add_u32 s100, s100, 1\ns_mul_i32 s101, s100, 0x9e3779b1\ns_add_u32 s101, s101, 0x7f4a7c15")
def raise_flag(A, s_off, vt):
    A(f"v_mov_b32 v{vt}, s100\nv_mov_b32 v{vt+1}, s101\nv_mov_b32 v{vt+2}, s{s_off}")
    if CFG.wide:
        A(f"v_and_b32 v{vt+2}, 7, v0\nv_lshl_add_u32 v{vt+2}, v{vt+2}, 3, s{s_off}")
    A(f"s_mov_b64 exec, {0xff if CFG.wide else 1}\nbuffer_store_dwordx2 {v(vt,2)}, v{vt+2}, s[96:99], 0 offen sc1\ns_mov_b64 exec, -1")
def clear_flag(A, s_off, vt):
    if not CFG.prew: return
    A(f"v_and_b32 v{vt}, 31, v0\nv_lshl_add_u32 v{vt}, v{vt}, 2, s{s_off}\nv_mov_b32 v{vt+1}, 0\ns_bfm_b64 exec, 32, 0\nbuffer_store_dword v{vt+1}, v{vt}, s[96:99], 0 offen sc1\ns_mov_b64 exec, -1")
def poll(A, vaddr, vtmp, sleep=0):
    L = A.newlabel("Lp"); X = A.newlabel("Lx")
    A(f"s_mov_b32 s63, {SPIN_MAX}")
    A.label(L)
    A(f"buffer_load_dwordx2 {v(vtmp,2)}, v{vaddr}, s[96:99], 0 offen sc1")
    A(f"s_waitcnt vmcnt(0)\nv_cmp_ne_u64 vcc, s[100:101], {v(vtmp,2)}\ns_sub_u32 s63, s63, 1\ns_cbranch_scc1 {X}\ns_nop 2\ns_cbranch_vccz {X}")
    A("s_mov_b64 exec, vcc")
    if sleep: A(f"s_sleep {sleep}")
    A(f"s_branch {L}")
    A.label(X)
    A("s_mov_b64 exec, -1")
def poll2(A, vaddr, vtmp, sleep1, sleep2, skip=None, vfirst=None):
    if sleep1:
        L = A.newlabel("Ls")
        if skip: A(f"{skip}\ns_cbranch_scc1 {L}")
        A("s_mov_b64 exec, 1")
        poll(A, vaddr if vfirst is None else vfirst, vtmp, sleep1)
        A.label(L)
    poll(A, vaddr, vtmp, sleep2)

def wave_id(A, sd):
    A(f"v_lshrrev_b32 v1, 6, v0\ns_nop 1\nv_readfirstlane_b32 s{sd}, v1")

def reduce32(A, regs, tmp):
    pad = "s_nop 1" if len(regs) == 1 else "s_nop 0"
    A("s_nop 1")
    for pat in ["quad_perm:[1,0,3,2]", "quad_perm:[2,3,0,1]", "row_half_mirror", "row_mirror"]:
        for r in regs:
            A(f"v_add_f32_dpp v{r}, v{r}, v{r} {pat} row_mask:0xf bank_mask:0xf")
        A(pad)
    for i, r in enumerate(regs): A(f"v_mov_b32 v{tmp+i}, v{r}")
    A("s_nop 1")
    for i, r in enumerate(regs): A(f"v_permlane16_swap_b32 v{r}, v{tmp+i}")
    A("s_nop 1")
    for i, r in enumerate(regs): A(f"v_add_f32 v{r}, v{r}, v{tmp+i}")

XRS, HRS = 1168, 1216
P0 = 3*STAGE
LDS_BYTES = 163840
K0_HL = P0 + 256
K0_DUMMY = K0_HL + 16*HRS
K0_LDS = 83968
def seam_pre(A):
    tag_make(A)
    A(f"s_lshl_b32 s49, s2, 2\ns_add_u32 s49, s49, s16\ns_add_u32 s49, s49, {F1}\ns_cmp_eq_u32 s16, 4\ns_cselect_b32 s49, s2, s49\ns_lshl_b32 s49, s49, 7")
    A(f"s_cmp_gt_u32 s16, 4\ns_cselect_b32 s49, {OOB}, s49")
    A(f"s_load_dwordx4 s[4:7], s[0:1], {KA_W1}\ns_load_dwordx2 s[50:51], s[0:1], {KA_W2}")
def gen_k0(A):
    kernel_head(A, KNAME)
    stamp(A, 0)
    A("s_cmp_ge_u32 s2, 256\ns_cbranch_scc1 K_end")
    A(f"s_load_dwordx4 s[4:7], s[0:1], {KA_X}\ns_load_dwordx2 s[26:27], s[0:1], {KA_WS}")
    A(f"s_load_dwordx4 s[20:23], s[0:1], {KA_WPHI}\ns_load_dwordx2 s[48:49], s[0:1], {KA_W1}")
    A("s_sub_u32 s44, s2, 112\ns_cmp_ge_u32 s44, 128\ns_cbranch_scc1 K0_pf")
    X, P, Q = 20, 8, 56
    A("v_lshrrev_b32 v2, 5, v0\nv_and_b32 v3, 31, v0")
    A("v_mul_u32_u24 v4, 1152, v2\nv_lshl_add_u32 v4, v3, 4, v4")
    A(f"v_cmp_gt_u32 s[30:31], 24, v3\nv_mov_b32 v5, {OOB}")
    A("s_mul_i32 s3, s44, 18432")
    A("v_cndmask_b32 v4, v5, v4, s[30:31]")
    A("s_waitcnt lgkmcnt(0)")
    srd(A, 8, 4, S*D*2)
    for j in range(3): A(f"buffer_load_dwordx4 {v(P+4*j,4)}, v4, s[8:11], s3 offen offset:{384*j}")
    A("s_branch K0_ln")
    A.label("K0_pf")
    wave_id(A, 16)
    def pf_setup():
        flag_setup(A)
        srd(A, 52, 48, S*F*2)
        pf_w1_col(A, 46)
        A("s_and_b32 s47, s2, 0x78\ns_add_u32 s47, s47, s16\nv_and_b32 v1, 63, v0")
    def pf_round(r):
        if not CFG.pf1: return 0
        pf_w1(A, 52, 46, 47, 128, 1, 1, 88, lanes=CFG.pf1)
        return 1
    A("s_cmp_ge_u32 s2, 108\ns_cbranch_scc1 K0_nofold")
    A("s_mul_i32 s18, s2, 7282\ns_lshr_b32 s18, s18, 16")
    A("s_mul_i32 s19, s18, 9\ns_sub_u32 s17, s2, s19")
    A("s_and_b32 s28, s18, 3\ns_lshr_b32 s29, s18, 2")
    F_W, F_P = P0 + 18432, P0 + 18432 + 18432
    for r in range(3):
        A(f"v_add_u32 v4, {512*r}, v0\nv_mul_u32_u24 v5, 58255, v4\nv_lshrrev_b32 v5, 20, v5")
        A(f"v_mul_u32_u24 v5, {3456-288}, v5\nv_lshl_add_u32 v{12+r}, v4, 4, v5")
    A(f"s_mul_i32 s32, s17, {64*3456}\ns_mul_i32 s33, s29, 1152\ns_add_u32 s32, s32, s33\ns_mul_i32 s33, s28, 288\ns_add_u32 s32, s32, s33")
    A(f"s_mul_i32 s33, s28, 5184\nv_lshlrev_b32 v15, 4, v0\nv_subrev_u32 v15, 2048, v15\ns_lshl_b32 s34, s16, 10\ns_add_u32 m0, s34, {F_W}")
    A("s_waitcnt lgkmcnt(0)")
    if CFG.dfold: A(f"s_sleep {CFG.dfold}")
    srd(A, 8, 6, D*3*D*2)
    A(f"buffer_load_dwordx4 v12, s[8:11], s32 offen lds\ns_add_u32 m0, s34, {F_W + 8192}")
    srd(A, 12, 20, H*DH*DH*2)
    A(f"buffer_load_dwordx4 v13, s[8:11], s32 offen lds\ns_add_u32 m0, s34, {F_W + 16384}\ns_cmp_ge_u32 s16, 2\ns_cbranch_scc1 K0_f1")
    A("buffer_load_dwordx4 v14, s[8:11], s32 offen lds")
    A.label("K0_f1")
    A(f"s_add_u32 m0, s34, {F_P - 2048}\ns_cmp_eq_u32 s29, 2\ns_cselect_b32 s3, 1, 6\ns_sub_u32 s35, s16, 2\ns_cmp_ge_u32 s35, s3\ns_cbranch_scc1 K0_f2")
    A("buffer_load_dwordx4 v15, s[12:15], s33 offen lds")
    A.label("K0_f2")
    pt(A, "fi")
    pf_setup()
    if CFG.pfbar: A("s_barrier")
    if CFG.prew:
        A(f"s_lshl_b32 s3, s2, 2\ns_add_u32 s3, s3, s16\ns_add_u32 s3, s3, {F1}\ns_lshl_b32 s3, s3, 7\ns_cmp_lt_u32 s16, 4\ns_cselect_b32 s3, s3, {OOB}")
        clear_flag(A, 3, 90)
    if CFG.tl0: touch_pages(A)
    if CFG.chore: pf_code5(A, "K0_ln")
    npf = (pf_round(0) if CFG.pfpos == 0 else 0) + (1 if CFG.prew else 0) + (1 if CFG.tl0 else 0) + (1 if CFG.chore else 0)
    A("s_lshr_b32 s19, s16, 2\ns_and_b32 s43, s16, 3\ns_lshl_b32 s30, s43, 1\ns_add_u32 s30, s30, s19")
    srd_off(A, 20, 26, WF_OFF, WF_SZ)
    A("v_and_b32 v2, 15, v1\nv_lshrrev_b32 v3, 4, v1")
    A("v_and_b32 v4, 12, v2\nv_add_u32 v4, v4, v2")
    A(f"v_mul_u32_u24 v4, 288, v4\nv_lshl_add_u32 v4, v3, 4, v4\ns_mul_i32 s33, s30, 36\ns_and_b32 s39, s33, 15\ns_sub_u32 s33, s33, s39\ns_add_u32 s33, s33, {F_W}")
    A("v_add_u32 v76, s33, v4\ns_lshr_b32 s39, s39, 1\nv_lshlrev_b32 v11, 3, v3\nv_subrev_u32 v11, s39, v11")
    A("s_mov_b32 s40, 0x00030003\ns_mov_b32 s41, 0x00030003")
    B = 28
    def a_reads():
        pt(A, "f0")
        A(f"s_waitcnt vmcnt({npf})")
        pt(A, "x")
        if CFG.pfpos == 1: pf_round(0)
        A("s_barrier")
        pt(A, "f1")
        for q in range(4):
            A(f"ds_read_b128 {v(12+4*q,4)}, v76 offset:{288*(32*(q>>1) + 4*(q&1))}")
    A("s_cmp_eq_u32 s29, 2\ns_cbranch_scc1 K0_ident")
    A("s_mul_i32 s34, s19, 18\nv_add_u32 v5, s34, v2")
    A(f"s_lshl_b32 s35, s43, 6\ns_add_u32 s35, s35, {P0}")
    for nt in range(2):
        if nt: A("v_add_u32 v5, 16, v5")
        A(f"v_lshrrev_b32 v6, 2, v5\nv_lshlrev_b32 v6, 10, v6\nv_and_b32 v7, 3, v5\nv_lshl_add_u32 v6, v7, 4, v6")
        A(f"v_lshl_add_u32 v6, v3, 8, v6\nv_add_u32 v{52+nt}, s35, v6")
    A("s_lshr_b32 s34, s28, 1\ns_add_u32 s34, s34, 4\ns_and_b32 s35, s28, 1\ns_mul_i32 s35, s35, 9216")
    A("s_cmp_eq_u32 s29, 0\ns_cselect_b32 s34, s34, s28\ns_cselect_b32 s35, s35, 0")
    A(f"s_mov_b32 s42, {f2u(LOG2E)}")
    A(f"v_mul_i32_i24 v5, 36, v11\nv_lshl_add_u32 v5, v2, 1, v5\ns_mul_i32 s33, s30, 648\ns_add_u32 s33, s33, {F_P}\nv_add_u32 v80, s33, v5")
    for q in range(4): A(f"v_add_u32 v5, {2*q}, v11\nv_cmp_gt_u32 {s((36, 44, 58, 60)[q],2)}, 18, v5")
    a_reads()
    for nt in range(2):
        for ii in range(8):
            A(f"ds_read_u16 v{36+8*nt+ii}, v80 offset:{36*ii + 32*nt}")
    A("s_waitcnt lgkmcnt(0)")
    for q in range(8): A(f"v_lshl_or_b32 v{B+q}, v{36+2*q+1}, 16, v{36+2*q}")
    for q in range(8): A(f"v_cndmask_b32 v{B+q}, 0, v{B+q}, {s((36, 44, 58, 60)[q&3],2)}")
    A("s_branch K0_fmm")
    A.label("K0_ident")
    A("v_sub_u32 v5, v2, v11\nv_add_u32 v6, 16, v5")
    A("v_mov_b32 v7, 0x3f80\nv_mov_b32 v8, 0x3f800000")
    for nt in range(2):
        for q in range(4):
            A(f"v_cmp_eq_u32 vcc, {2*q}, v{5+nt}\nv_cmp_eq_u32 s[44:45], {2*q+1}, v{5+nt}\ns_nop 1")
            A(f"v_cndmask_b32 v9, 0, v7, vcc\nv_cndmask_b32 v{B+4*nt+q}, v9, v8, s[44:45]")
    A(f"v_lshlrev_b32 v6, 8, v3\nv_lshl_add_u32 v6, v2, 4, v6\nv_add_u32 v6, {P0}, v6")
    A("s_lshl_b32 s34, s30, 10\nv_add_u32 v52, s34, v6")
    A("s_lshl_b32 s34, s30, 5\ns_add_u32 s34, s34, 8192\nv_add_u32 v53, s34, v6")
    A("s_mov_b32 s34, s28\ns_mov_b32 s35, 9216\ns_mov_b32 s42, 1.0")
    a_reads()
    A("s_waitcnt lgkmcnt(0)")
    A.label("K0_fmm")
    pt(A, "f2")
    A("s_mul_i32 s34, s34, 18\ns_lshl_b32 s33, s17, 1\ns_add_u32 s34, s34, s33\ns_mul_i32 s34, s34, 18432\ns_add_u32 s34, s34, s35")
    DD = 56
    for kbi in range(2):
        for nt in range(2):
            for a in range(2):
                A(f"{MF} {v(DD+16*kbi+8*nt+4*a,4)}, {v(12+8*kbi+4*a,4)}, {v(B+4*nt,4)}, 0")
    seam_pre(A)
    A("s_mov_b32 s43, s42\ns_lshl_b32 s33, s16, 10\nv_lshlrev_b32 v89, 4, v1\ns_and_b32 s3, s16, 1\ns_mul_i32 s35, s3, 9216")
    A(f"s_add_u32 s37, s33, {P0}\nv_add_u32 v90, s37, v89\ns_add_u32 s35, s35, {P0 + 8192}\nv_add_u32 v91, s35, v89")
    A("s_mul_i32 s3, s3, 18432\ns_add_u32 s37, s34, s3\ns_add_u32 s37, s37, 8192\ns_add_u32 s17, s34, s33")
    for kbi in range(2):
        for nt in range(2):
            d0 = DD+16*kbi+8*nt
            for i in range(4): A(f"v_pk_mul_f32 {v(d0+2*i,2)}, {v(d0+2*i,2)}, s[42:43]")
            o = 36 + 8*kbi + 4*nt
            for i in range(4): A(f"v_cvt_pk_bf16_f32 v{o+i}, v{d0+2*i}, v{d0+2*i+1}")
            if nt == 0: A(f"ds_write_b128 v52, {v(o,4)} offset:{9216*kbi}")
    A("s_mov_b64 exec, s[40:41]\nds_write_b128 v53, v[40:43]\nds_write_b128 v53, v[48:51] offset:9216\ns_mov_b64 exec, -1")
    A("s_waitcnt lgkmcnt(0)\ns_barrier\ns_cmp_ge_u32 s16, 4\ns_cbranch_scc1 K0_seam")
    pt(A, "st0")
    for q in range(4): A(f"ds_read_b128 {v(12+4*q,4)}, v90 offset:{9216*(q>>1) + 4096*(q&1)}")
    A("ds_read_b128 v[28:31], v91")
    for q in range(4):
        A(f"s_waitcnt lgkmcnt({4-q})\nbuffer_store_dwordx4 {v(12+4*q,4)}, v89, s[20:23], s17 offen {CFG.auxSt}\ns_add_u32 s17, s17, {4096 if q != 1 else 18432-4096}")
    A("s_branch K0_last")
    A.label("K0_nofold")
    A("s_waitcnt lgkmcnt(0)")
    if CFG.dfold: A(f"s_sleep {CFG.dfold}")
    pf_setup()
    if CFG.chore:
        A("s_cmp_ge_u32 s2, 240\ns_cbranch_scc1 K1_spare\ns_sub_u32 s3, s2, 108\ns_lshl_b32 s3, s3, 3\ns_add_u32 s3, s3, s16\ns_mul_i32 s3, s3, 25\nv_add_lshl_u32 v90, v1, s3, 7")
        A(f"s_bfm_b64 exec, 25, 0\nbuffer_load_dword v{SINK}, v90, s[96:99], 0 offen sc1\ns_mov_b64 exec, -1")
    if CFG.pff and not CFG.chore:
        A(f"s_sub_u32 s3, s2, 240\ns_cmp_ge_u32 s3, 6\ns_cbranch_scc1 K0_nof\ns_lshl_b32 s3, s3, 16\nv_lshl_add_u32 v90, v0, 7, s3\nbuffer_load_dword v{SINK}, v90, s[96:99], 0 offen sc1")
        A.label("K0_nof")
    if CFG.pfc and not CFG.chore:
        A("s_cmp_lt_u32 s2, 248\ns_cbranch_scc1 K0_noc")
        pf_code(A, "K0_ln")
        A.label("K0_noc")
    A("s_cmp_ge_u32 s2, 240\ns_cbranch_scc1 K1_spare")
    pf_round(0)
    A("s_waitcnt lgkmcnt(0)")
    seam_pre(A)
    A("s_waitcnt lgkmcnt(0)\ns_barrier\ns_branch K0_seam")
    A.label("K0_ln")
    pt(A, "fi")
    flag_setup(A)
    wave_id(A, 16)
    A(f"v_lshlrev_b32 v6, 2, v2\nv_add_u32 v6, {P0}, v6")
    A(f"v_mul_u32_u24 v7, {HRS}, v2\nv_lshl_add_u32 v7, v3, 4, v7\nv_add_u32 v7, {K0_HL}, v7")
    srd_off(A, 12, 26, RS_OFF, RS_SZ)
    srd_off(A, 20, 26, HT_OFF, HT_SZ)
    A(f"s_mov_b32 s33, {f2u(1.0/576)}\ns_mov_b32 s34, {f2u(1e-5)}")
    A("v_and_b32 v1, 63, v0\nv_and_b32 v2, 15, v1\nv_lshrrev_b32 v3, 4, v1")
    A(f"s_lshl_b32 s3, s16, 6\ns_and_b32 s35, s16, 1\ns_lshl_b32 s36, s35, 6\nv_lshlrev_b32 v69, 2, v2\nv_add_u32 v68, {P0}, v69\ns_lshl_b32 s17, s44, 7")
    A("v_bfe_u32 v4, v1, 2, 2\nv_lshrrev_b32 v5, 5, v1\nv_lshl_add_u32 v4, v5, 3, v4")
    A(f"v_mul_u32_u24 v4, {HRS}, v4\nv_and_b32 v3, 1, v3\nv_lshl_add_u32 v4, v3, 5, v4\nv_and_b32 v44, 3, v1\nv_lshl_add_u32 v4, v44, 3, v4\nv_add_u32 v4, {K0_HL}, v4")
    A("v_add_u32 v72, s36, v4\nv_add_u32 v71, s3, v4")
    A("v_lshlrev_b32 v2, 4, v2\nv_lshl_add_u32 v2, v5, 8, v2")
    A(f"s_mov_b32 s38, {589824-9216}\ns_lshl_b32 s3, s16, 1\ns_lshl_b32 s36, s35, 1\ns_add_u32 s36, s36, 32")
    for n in range(3):
        A(f"v_add_u32 v4, s{3 if n < 2 else 36}, v3")
        if n == 1: A("v_add_u32 v4, 16, v4")
        A(f"v_mul_u32_u24 v44, 57, v4\nv_lshrrev_b32 v44, 9, v44\nv_lshl_add_u32 v4, v4, 10, v2\nv_mad_u32_u24 v{73+n}, v44, s38, v4")
    A("s_lshr_b32 s18, s44, 1\ns_mul_i32 s18, s18, 9216\ns_and_b32 s19, s44, 1\ns_lshl_b32 s19, s19, 9\ns_add_u32 s18, s18, s19")
    def xp(i): return v(X+2*i, 2)
    if CFG.prew:
        A(f"s_lshl_b32 s3, s2, 7\ns_cmp_eq_u32 s16, 4\ns_cselect_b32 s3, s3, {OOB}")
        clear_flag(A, 3, 90)
    if CFG.tl0: touch_pages(A)
    pt(A, "f0")
    A(f"s_waitcnt vmcnt({(1 if CFG.prew else 0) + (1 if CFG.tl0 else 0)})")
    pt(A, "x")
    for i in range(12):
        A(f"v_lshlrev_b32 v{X+2*i}, 16, v{P+i}\nv_and_b32 v{X+2*i+1}, 0xffff0000, v{P+i}")
    A(f"v_pk_add_f32 v[44:45], {xp(0)}, {xp(1)}\nv_pk_add_f32 v[46:47], {xp(2)}, {xp(3)}")
    for i in range(4, 12): A(f"v_pk_add_f32 {v(44+2*(i&1),2)}, {v(44+2*(i&1),2)}, {xp(i)}")
    A("v_pk_add_f32 v[44:45], v[44:45], v[46:47]\nv_add_f32 v44, v44, v45")
    reduce32(A, [44], 52)
    A("v_mul_f32 v44, s33, v44")
    for i in range(12): A(f"v_pk_add_f32 {xp(i)}, {xp(i)}, v[44:45] op_sel_hi:[1,0] neg_lo:[0,1] neg_hi:[0,1]")
    A(f"v_pk_mul_f32 v[48:49], {xp(0)}, {xp(0)}\nv_pk_mul_f32 v[50:51], {xp(1)}, {xp(1)}")
    for i in range(2, 12): A(f"v_pk_fma_f32 {v(48+2*(i&1),2)}, {xp(i)}, {xp(i)}, {v(48+2*(i&1),2)}")
    A("v_pk_add_f32 v[48:49], v[48:49], v[50:51]\nv_add_f32 v48, v48, v49")
    A("v_cndmask_b32 v48, 0, v48, s[30:31]")
    reduce32(A, [48], 52)
    A("v_mul_f32 v48, s33, v48\nv_add_f32 v44, s34, v48\nv_rsq_f32 v44, v44\nv_mov_b32 v49, s34")
    A("v_mul_f32 v48, v48, v44\nv_fma_f32 v50, v48, v44, v49\nv_rsq_f32 v48, v50")
    A("s_mov_b64 exec, s[30:31]\nv_mul_f32 v50, v50, v48\nv_mul_f32 v48, v48, v44")
    if CFG.gsc: A(f"v_mul_f32 v48, {f2u(GS)}, v48\nv_mul_f32 v50, {f2u(1/GS)}, v50")
    A("ds_write_b32 v6, v50")
    for j in range(3):
        for i in range(4): A(f"v_pk_mul_f32 {v(Q+2*i,2)}, {xp(4*j+i)}, v[48:49] op_sel_hi:[1,0]")
        for i in range(4): A(f"v_cvt_pk_bf16_f32 v{P+4*j+i}, v{Q+2*i}, v{Q+2*i+1}")
        A(f"ds_write_b128 v7, {v(P+4*j,4)} offset:{384*j}")
    A("s_mov_b64 exec, -1\ns_waitcnt lgkmcnt(0)\ns_barrier")
    pt(A, "ln")
    for n in range(2):
        A(f"ds_read_b64_tr_b16 {v(76+4*n,2)}, v71 offset:{512*n}\nds_read_b64_tr_b16 {v(78+4*n,2)}, v71 offset:{512*n + 4*HRS}")
    A(f"ds_read_b64_tr_b16 v[84:85], v72 offset:1024\nds_read_b64_tr_b16 v[86:87], v72 offset:{1024 + 4*HRS}\nds_read_b32 v88, v68")
    A(f"s_cmp_lt_u32 s16, 2\ns_cselect_b32 s3, 0, {OOB}\nv_or_b32 v75, s3, v75")
    for n in range(3):
        A(f"s_waitcnt lgkmcnt({5-2*n})\nbuffer_store_dwordx4 {v(76+4*n,4)}, v{73+n}, s[20:23], s18 offen {CFG.auxSt}")
    A("s_waitcnt lgkmcnt(0)\ns_cmp_lg_u32 s16, 2\ns_cbranch_scc1 K0_nors")
    A(f"s_mov_b64 exec, 0xffff\nbuffer_store_dword v88, v69, s[12:15], s17 offen {CFG.auxSt}\ns_mov_b64 exec, -1")
    A.label("K0_nors")
    pt(A, "st0")
    seam_pre(A)
    A(f"s_cmp_eq_u32 s16, 4\ns_cselect_b32 s49, s49, {OOB}")
    if CFG.hint1:
        A(f"s_cmp_lg_u32 s16, 5\ns_cbranch_scc1 K0_noh\ns_cmp_ge_u32 s44, 8\ns_cbranch_scc1 K0_noh\ns_add_u32 s3, s44, {FH}\ns_lshl_b32 s3, s3, 7")
        raise_flag(A, 3, 4)
        A.label("K0_noh")
    A("s_waitcnt vmcnt(0)\ns_barrier\ns_branch K0_seam")
    A.label("K0_last")
    A("s_waitcnt lgkmcnt(0)\ns_cmp_ge_u32 s16, 2\ns_cbranch_scc1 K0_last2")
    A(f"buffer_store_dwordx4 v[28:31], v89, s[20:23], s37 offen {CFG.auxSt}")
    A.label("K0_last2")
    A("s_waitcnt vmcnt(0)")
    A.label("K0_seam")
    raise_flag(A, 49, 4)
    pt(A, "fl0")
    if CFG.pf1a or CFG.pf1q:
        A(f"s_cmp_lt_u32 s2, {144 if CFG.pf1a else 208}\ns_cbranch_scc1 K0_noa\ns_cmp_ge_u32 s2, 240\ns_cbranch_scc1 K0_noa\ns_cmp_ge_u32 s16, 4\ns_cbranch_scc1 K0_noa")
        A("s_lshr_b32 s47, s2, 3\ns_sub_u32 s47, s47, 18\ns_lshl_b32 s47, s47, 2\ns_add_u32 s47, s47, s16\ns_waitcnt lgkmcnt(0)")
        srd(A, 52, 4, S*F*2)
        pf_w1_col(A, 46)
        pf_w1(A, 52, 46, 47, 48, CFG.pf1a, 1, 88, base=112*CFG.pf1)
        if CFG.pf1q:
            A("s_cmp_lt_u32 s2, 208\ns_cbranch_scc1 K0_noa\ns_sub_u32 s47, s47, 32")
            pf_w1(A, 52, 46, 47, 16, CFG.pf1q, 1, 88, base=112*CFG.pf1)
        if CFG.c3w1:
            A("s_lshr_b32 s3, s46, 8\ns_add_u32 s3, s3, 2\ns_andn2_b32 s3, s3, 3\ns_add_u32 s3, s3, 1\ns_lshl_b32 s3, s3, 8\ns_add_u32 s3, s3, 128")
            A(f"s_lshr_b32 s47, s2, 3\ns_sub_u32 s47, s47, 26\ns_lshl_b32 s47, s47, 2\ns_add_u32 s47, s47, s16\ns_mul_i32 s47, s47, {32*9216}\ns_add_u32 s47, s47, {CFG.c3w1*9216}\ns_add_u32 s47, s47, s3")
            A("s_sub_u32 s3, s3, s46\ns_cmp_lt_u32 s3, 256\ns_cselect_b32 s3, -1, 0\ns_mov_b32 exec_hi, s3")
            A(f"v_and_b32 v88, 31, v1\nv_mul_u32_u24 v88, 9216, v88\nv_lshrrev_b32 v89, 5, v1\nv_lshl_add_u32 v88, v89, 10, v88\nbuffer_load_dword v{SINK}, v88, s[52:55], s47 offen\ns_mov_b64 exec, -1")
        A.label("K0_noa")
    if CFG.tlb:
        A(f"s_cmp_lg_u32 s16, 1\ns_cbranch_scc1 K0_notlb\nv_and_b32 v4, 63, v0\nv_lshlrev_b32 v4, {CFG.tlb}, v4\ns_waitcnt lgkmcnt(0)")
        for ptr, nb in ((4, S*F*2), (50, S*F*2), (26, FLAG_OFF)):
            srd(A, 8, ptr, nb)
            for q in range(-(-nb // (64 << CFG.tlb))):
                A(f"s_mov_b32 s3, {q*(64 << CFG.tlb)}\nbuffer_load_dword v{SINK}, v4, s[8:11], s3 offen sc1")
        A.label("K0_notlb")
def softmax18(A, PR, dst, C):
    vals = [r + i for r in PR for i in range(2)]
    EP, EN, MX, MN = 8, 26, 44, 46
    A(f"v_max3_f32 v{MX}, v{vals[0]}, v{vals[1]}, v{vals[2]}\nv_min3_f32 v{MN}, v{vals[0]}, v{vals[1]}, v{vals[2]}")
    for i in range(3, 17, 2):
        A(f"v_max3_f32 v{MX}, v{MX}, v{vals[i]}, v{vals[i+1]}\nv_min3_f32 v{MN}, v{MN}, v{vals[i]}, v{vals[i+1]}")
    A(f"v_max_f32 v{MX}, v{MX}, v{vals[17]}\nv_min_f32 v{MN}, v{MN}, v{vals[17]}")
    A(f"v_mul_f32 v{MX}, v{MX}, v{C}\nv_mul_f32 v{MN}, v{MN}, v{C}")
    for p in range(9):
        A(f"v_pk_fma_f32 {v(EP+2*p,2)}, {v(PR[p],2)}, {v(C,2)}, {v(MX,2)} op_sel_hi:[1,0,0] neg_lo:[0,0,1] neg_hi:[0,0,1]")
        A(f"v_pk_fma_f32 {v(EN+2*p,2)}, {v(PR[p],2)}, {v(C,2)}, {v(MN,2)} op_sel_hi:[1,0,0] neg_lo:[1,0,0] neg_hi:[1,0,0]")
    for i in range(36): A(f"v_exp_f32 v{EP+i}, v{EP+i}")
    A(f"v_pk_add_f32 {v(MX,2)}, {v(EP,2)}, {v(EP+2,2)}\nv_pk_add_f32 {v(MN,2)}, {v(EN,2)}, {v(EN+2,2)}")
    for p in range(2, 9):
        A(f"v_pk_add_f32 {v(MX,2)}, {v(MX,2)}, {v(EP+2*p,2)}\nv_pk_add_f32 {v(MN,2)}, {v(MN,2)}, {v(EN+2*p,2)}")
    A(f"v_add_f32 v{MX}, v{MX}, v{MX+1}\nv_add_f32 v{MN}, v{MN}, v{MN+1}")
    A(f"v_rcp_f32 v{MX}, v{MX}\nv_rcp_f32 v{MN}, v{MN}\ns_nop 0")
    for p in range(9):
        A(f"v_pk_mul_f32 {v(EP+2*p,2)}, {v(EP+2*p,2)}, {v(MX,2)} op_sel_hi:[1,0]")
        A(f"v_pk_mul_f32 {v(EN+2*p,2)}, {v(EN+2*p,2)}, {v(MN,2)} op_sel_hi:[1,0]")
    for m in range(18): A(f"v_cvt_pk_bf16_f32 v{dst(m)}, v{EP+2*m}, v{EP+2*m+1}")

def pairs(st, j, e):
    return [accr(st, (9*e+p) >> 1, j) + 2*((9*e+p) & 1) for p in range(9)]

PHI_RS = 608
V_LDS = 128*PHI_RS
def gen_k1(A):
    A("s_and_b32 s17, s2, 7\ns_lshr_b32 s18, s2, 3")
    A("s_cmp_ge_u32 s18, 18\ns_cbranch_scc1 K1_notg1")
    A("s_mul_i32 s19, s17, 18\ns_add_u32 s19, s19, s18\ns_and_b32 s22, s19, 3\ns_lshr_b32 s23, s19, 2")
    if CFG.swap13: A("s_or_b32 s19, s23, 1\ns_cmp_eq_u32 s19, 13\ns_cselect_b32 s19, 1, 0\ns_xor_b32 s23, s23, s19")
    if CFG.G1: A(f"s_add_u32 s59, s22, s23\ns_and_b32 s59, s59, {min(CFG.G1, 4) - 1}\ns_mul_i32 s59, s59, {max(CFG.G1//4, 1)}")
    A("s_waitcnt lgkmcnt(0)")
    A("s_cmp_ge_u32 s16, 6\ns_cbranch_scc1 K1_ldW\ns_cmp_ge_u32 s16, 4\ns_cbranch_scc1 K1_ldP")
    if CFG.prio1: A(f"s_setprio {CFG.prio1}")
    srd(A, 32, 6, F*2)
    srd_off(A, 36, 26, U_OFF, U_SZ)
    A("v_bfe_u32 v8, v0, 4, 2\nv_lshlrev_b32 v8, 3, v8")
    A("s_lshl_b32 s3, s23, 8\ns_lshl_b32 s17, s16, 6\ns_add_u32 s3, s3, s17")
    A("buffer_load_dwordx2 v[12:13], v8, s[32:35], s3 offen\nbuffer_load_dwordx2 v[14:15], v8, s[32:35], s3 offen offset:32")
    emit_compute_addr(A, 16, "std")
    A("s_waitcnt vmcnt(0)")
    if CFG.pf1b:
        A(f"s_cmp_ge_u32 s2, 128\ns_cbranch_scc1 K1_nopf\ns_and_b32 s47, s2, 0x78\ns_lshr_b32 s47, s47, 1\ns_add_u32 s47, s47, s16\ns_add_u32 s47, s47, {CFG.pf1}")
        srd(A, 52, 4, S*F*2)
        pf_w1_col(A, 46)
        pf_w1(A, 52, 46, 47, 64, CFG.pf1b, 1, 16)
        A.label("K1_nopf")
    for j in range(2):
        A(f"v_lshlrev_b32 v{V_ACC+j*4}, 16, v{12+2*j}\nv_and_b32 v{V_ACC+j*4+1}, 0xffff0000, v{12+2*j}")
        A(f"v_lshlrev_b32 v{V_ACC+j*4+2}, 16, v{13+2*j}\nv_and_b32 v{V_ACC+j*4+3}, 0xffff0000, v{13+2*j}")
    if CFG.gsc:
        for i in range(8): A(f"v_mul_f32 v{V_ACC+i}, {f2u(GS)}, v{V_ACC+i}")
    for i in range(8, 72, 2): A(f"v_pk_mov_b32 {v(V_ACC+i,2)}, {v(V_ACC+i%8,2)}, {v(V_ACC+i%8,2)} op_sel:[0,1]")
    A("s_mul_i32 s17, s22, 144\ns_lshl_b32 s3, s23, 2\ns_add_u32 s17, s17, s3\ns_add_u32 s17, s17, s16")
    A(f"s_add_u32 s49, s17, {FU}\ns_lshl_b32 s49, s49, 7\ns_mul_i32 s17, s17, 9216")
    if CFG.hint2 >= 0:
        A(f"s_mul_i32 s48, s22, 36\ns_add_u32 s48, s48, s23\ns_add_u32 s48, s48, {FG}\ns_lshl_b32 s48, s48, 7\ns_cmp_eq_u32 s16, 0\ns_cselect_b32 s48, s48, {OOB}")
    emit_compute_loop(A, 32, "std", (True, True), 20, first=lambda: (pt(A, "b1"), clear_flag(A, 49, 170)))
    A("s_barrier")
    pt(A, "m1")
    c0 = -2*math.sqrt(2/math.pi)*LOG2E; c1 = c0*0.044715
    A(f"s_mov_b32 s52, {f2u(c1)}\ns_mov_b32 s53, {f2u(c1)}\nv_mov_b32 v8, {f2u(c0)}\nv_mov_b32 v9, {f2u(c0)}")
    if CFG.own:
        A(f"s_lshr_b32 s3, s16, 1\ns_mul_i32 s3, s3, {STAGE - 18432}\ns_mul_i32 s18, s16, 9216\ns_add_u32 s3, s3, s18\nv_add_u32 v10, s3, v{V_PA}")
    else: A("s_nop 2")
    if CFG.gsc:
        A(f"s_mov_b32 s52, {f2u(GC0/GS)}\ns_mov_b32 s53, {f2u(GC0/GS)}\ns_mov_b32 s54, {f2u(GS)}\ns_mov_b32 s55, {f2u(GS)}")
        def TT(t): return 16 + 8*(t % 3)
        def pre(t):
            a0 = V_ACC + t*8; T = TT(t)
            return [f"v_pk_fma_f32 {v(T+2*p,2)}, {v(a0+2*p,2)}, {v(a0+2*p,2)}, s[52:53]" for p in range(4)] + \
                   [f"v_pk_mul_f32 {v(T+2*p,2)}, {v(T+2*p,2)}, {v(a0+2*p,2)} neg_lo:[1,0] neg_hi:[1,0]" for p in range(4)]
        def post(t):
            a0 = V_ACC + t*8; T = TT(t)
            return [f"v_pk_mul_f32 {v(T+2*p,2)}, {v(T+2*p,2)}, {v(a0+2*p,2)}" for p in range(4)] + \
                   [f"v_cvt_pk_bf16_f32 v{44+4*t+p}, v{T+2*p}, v{T+2*p+1}" for p in range(4)]
        def out(t):
            if t and t % 4 == 0: A("s_add_u32 s17, s17, 4096")
            A(f"buffer_store_dwordx4 {v(44+4*t,4)}, v{V_PA}, s[36:39], s17 offen offset:{(t%4)*1024} {CFG.auxSt}")
            if CFG.own: A(f"ds_write_b128 v10, {v(44+4*t,4)} offset:{t*1024}")
        for x in pre(0): A(x)
        for t in range(9):
            T = TT(t)
            f1 = post(t-1) if t else [None]*8
            for e in range(8):
                A(f"v_exp_f32 v{T+e}, v{T+e}")
                if f1[e]: A(f1[e])
            if t: out(t-1)
            for p in range(4): A(f"v_pk_fma_f32 {v(T+2*p,2)}, {v(T+2*p,2)}, s[54:55], s[54:55]")
            f2 = pre(t+1) if t < 8 else [None]*8
            for e in range(8):
                A(f"v_rcp_f32 v{T+e}, v{T+e}")
                if f2[e]: A(f2[e])
        for x in post(8): A(x)
        out(8)
        assert CFG.hint2 < 0 and not CFG.glag
    else:
        for t in range(9):
            a0 = V_ACC + t*8
            T = 16 + (t % 2) * 12
            for p in range(4): A(f"v_pk_mul_f32 {v(T+2*p,2)}, {v(a0+2*p,2)}, {v(a0+2*p,2)}")
            for p in range(4): A(f"v_pk_fma_f32 {v(T+2*p,2)}, {v(T+2*p,2)}, s[52:53], v[8:9]")
            for p in range(4): A(f"v_pk_mul_f32 {v(T+2*p,2)}, {v(T+2*p,2)}, {v(a0+2*p,2)}")
            for e in range(8): A(f"v_exp_f32 v{T+e}, v{T+e}")
            for p in range(4): A(f"v_pk_add_f32 {v(T+2*p,2)}, {v(T+2*p,2)}, 1.0 op_sel_hi:[1,0]")
            for e in range(8): A(f"v_rcp_f32 v{T+e}, v{T+e}")
            for p in range(4): A(f"v_pk_mul_f32 {v(T+2*p,2)}, {v(T+2*p,2)}, {v(a0+2*p,2)}")
            for p in range(4): A(f"v_cvt_pk_bf16_f32 v{44+4*t+p}, v{T+2*p}, v{T+2*p+1}")
            for tt in ([] if t < CFG.glag else (range(t+1) if t == CFG.glag else [t])):
                if tt and tt % 4 == 0: A("s_add_u32 s17, s17, 4096")
                A(f"buffer_store_dwordx4 {v(44+4*tt,4)}, v{V_PA}, s[36:39], s17 offen offset:{(tt%4)*1024} {CFG.auxSt}")
            if CFG.own: A(f"ds_write_b128 v10, {v(44+4*t,4)} offset:{t*1024}")
            if t == CFG.hint2: raise_flag(A, 48, 40)
    A("s_branch K2_c")
    def g_post():
        A("s_lshr_b32 s49, s2, 3\ns_lshl_b32 s49, s49, 2\ns_add_u32 s49, s49, s16\ns_sub_u32 s49, s49, 4")
        pf_w2(A, 50, 49, 72, CFG.pf2g)
    post = (CFG.pf2g, g_post, CFG.pf2pos) if CFG.pf2g else None
    lend = inl = None
    if CFG.w1at:
        def inl(i, cnt):
            if CFG.w1b and i == CFG.w1b % 10:
                L = A.newlabel("Lv")
                srd_off(A, 92, 26, WOT_OFF, WOT_SZ)
                A(f"s_cmp_lg_u32 s20, {CFG.w1b // 10}\ns_cbranch_scc1 {L}")
                wot_chunk(A, CFG.w1n - 1)
                A.label(L)
            if i not in (CFG.w1i - 2, CFG.w1i): return
            L = A.newlabel("Lv")
            A(f"s_cmp_lg_u32 s20, {CFG.w1at}\ns_cbranch_scc1 {L}")
            if i != CFG.w1i: A("buffer_load_dwordx2 v[38:39], v36, s[96:99], 0 offen sc1")
            else:
                A(f"s_waitcnt vmcnt({2*cnt})")
                wot_regs(A, True, load=False)
                for k in range(CFG.w1n - (1 if CFG.w1b else 0)): wot_chunk(A, k)
            A.label(L)
    if CFG.wreg in (1, 2):
        post = (9*CFG.wn, lambda: wot_regs(A, True), CFG.wpos)
        def lend():
            L = A.newlabel("Lv")
            A(f"s_cmp_lg_u32 s20, 3\ns_cbranch_scc1 {L}")
            A("buffer_load_dwordx2 v[38:39], v36, s[96:99], 0 offen sc1")
            if CFG.ownpf:
                A(f"s_cmp_lt_u32 s16, 6\ns_cbranch_scc1 {L}")
                srd(A, 52, 50, S*F*2)
                A("s_lshl_b32 s3, s23, 1\ns_and_b32 s57, s22, 1\ns_add_u32 s3, s3, s57\ns_lshl_b32 s3, s3, 1\ns_add_u32 s3, s3, s17\ns_lshl_b32 s3, s3, 17")
                A("s_and_b32 s57, s2, 1\ns_lshl_b32 s57, s57, 11\ns_add_u32 s3, s3, s57\ns_lshr_b32 s57, s2, 5\ns_lshl_b32 s57, s57, 8\ns_add_u32 s3, s3, s57")
                A(f"v_bfe_u32 v30, v0, 1, 5\nv_lshlrev_b32 v30, 12, v30\nv_and_b32 v31, 1, v0\nv_lshl_add_u32 v30, v31, 7, v30\nbuffer_load_dword v{SINK}, v30, s[52:55], s3 offen")
            A.label(L)
    A.label("K1_ldP")
    if CFG.wreg in (1, 2) or CFG.w1at: wot_flagaddr(A)
    srd_off(A, 8, 26, HT_OFF, HT_SZ)
    A(f"s_sub_u32 s17, s16, 4\ns_mul_i32 s21, s22, {64*9216}")
    def wait_ln():
        A(f"v_and_b32 v8, 62, v0\nv_and_b32 v9, 1, v0\nv_lshl_add_u32 v8, v8, 1, v9\ns_lshl_b32 s3, s17, 1\ns_add_u32 s3, s3, {F0+112}\nv_add_lshl_u32 v8, v8, s3, 7")
        if CFG.dl0: A(f"s_sleep {CFG.dl0}")
        if CFG.dlf: A(f"s_cmp_ge_u32 s2, 112\ns_cbranch_scc1 K1_nodl\ns_sleep {CFG.dlf}\nK1_nodl:")
        if CFG.hint1: A(f"s_and_b32 s3, s2, 7\ns_add_u32 s3, s3, {FH}\ns_lshl_b32 s3, s3, 7\nv_mov_b32 v9, s3")
        poll2(A, 8, 10, CFG.sl0a, CFG.sl0, None, 9 if CFG.hint1 else None)
        pt(A, "go1")
    DBG["k1P"] = True; DBG["koff"] = CFG.koff
    emit_loader_lin(A, 32, 9, POFF, 17, 8, 21, 20, 18, CFG.auxP, CFG.G1, post=post, pre=wait_ln, loopend=lend, inloop=inl)
    DBG["k1P"] = False
    A("s_branch K1_ldseam")
    A.label("K1_ldW")
    srd(A, 12, 4, S*F*2)
    A("s_sub_u32 s17, s16, 6\ns_lshl_b32 s21, s23, 8")
    sch1 = None
    if CFG.early == 2:
        def own_w(k):
            def f():
                if k == 0:
                    w_addr(A, "pi", 17, 4096, 18)
                    srd(A, 12, 50, S*F*2)
                    assert not CFG.stsw
                    A(f"s_mul_i32 s21, s23, {128*4096}\ns_and_b32 s3, s2, 1\ns_lshl_b32 s3, s3, 11\ns_add_u32 s21, s21, s3\ns_lshr_b32 s3, s2, 5\ns_lshl_b32 s3, s3, 8\ns_add_u32 s21, s21, s3")
                w_issue(A, k, 12, 21, 18, CFG.auxW2)
                A(f"s_add_u32 s21, s21, {64*4096}")
            return (f"o{k}", 8, f)
        sch1 = [(32, {29: [own_w(0)], 30: [own_w(1)]}, {}, {})]
    emit_loader_W(A, 32, "std", 17, 12, 21, 9216, 20, 18, CFG.auxW1, CFG.G1, post=post, sched=sch1, loopend=lend, mid=(lambda: wot_flagaddr(A)) if CFG.wreg in (1, 2) or CFG.w1at else None, inloop=inl)
    DBG["koff"] = 0
    A.label("K1_ldseam")
    A(f"s_barrier\ns_mov_b32 s49, {OOB}\ns_mov_b32 s24, s23\ns_branch K2_ld")
    A.label("K1_notg1")
    A("s_sub_u32 s18, s18, 18\ns_and_b32 s22, s18, 3\ns_lshr_b32 s19, s17, 1\ns_lshl_b32 s19, s19, 2\ns_add_u32 s22, s22, s19")
    A("s_lshr_b32 s18, s18, 2\ns_and_b32 s17, s17, 1\ns_lshl_b32 s19, s17, 1\ns_add_u32 s23, s19, s18\ns_add_u32 s17, s17, 4")
    A("s_cmp_eq_u32 s18, 2\ns_cselect_b32 s23, s17, s23")
    if CFG.GA: A(f"s_add_u32 s59, s22, s18\ns_and_b32 s59, s59, 3\ns_mul_i32 s59, s59, {CFG.GA}\ns_lshr_b32 s59, s59, 2")
    A("s_waitcnt lgkmcnt(0)")
    A("s_cmp_ge_u32 s16, 6\ns_cbranch_scc1 K1_ldX\ns_cmp_ge_u32 s16, 4\ns_cbranch_scc1 K1_ldF")
    emit_compute_addr(A, 16, "lin")
    for i in range(0, 144, 2): A(f"v_pk_mov_b32 {v(V_ACC+i,2)}, 0, 0")
    srd_off(A, 32, 26, RS_OFF, RS_SZ)
    A("s_lshl_b32 s30, s22, 2\ns_add_u32 s30, s30, s16\ns_lshl_b32 s30, s30, 8\nv_and_b32 v252, 15, v1\nv_lshlrev_b32 v252, 2, v252\nv_and_b32 v253, 48, v1")
    def ld_scale():
        pt(A, "b1")
        for j in range(2):
            A(f"buffer_load_dword v{240+2*j}, v252, s[32:35], s30 offen offset:{128*j} sc1\nbuffer_load_dwordx4 {v(244+4*j,4)}, v253, s[32:35], s30 offen offset:{128*j} sc1")
    if CFG.nox: A("s_barrier")
    A("s_cmp_ge_u32 s23, 4\ns_cbranch_scc1 K1_q")
    HO = V_LDS + 36864
    A(f"s_mul_i32 s3, s16, 9216\ns_add_u32 s3, s3, {HO}\nv_add_u32 v254, s3, v{V_PA}")
    emit_compute_loop(A, 18, "lin", (False, True), 20, first=ld_scale, lastfill=[f"ds_write_b128 v254, {acc(0,t,1)} offset:{t*1024}" for t in range(9)])
    pt(A, "m1")
    A(f"v_subrev_u32 v5, 36864, v254\ns_waitcnt vmcnt(0) lgkmcnt(0)\ns_barrier")
    QB = 48
    for t in range(9):
        o = 84 + 4*(t % 3)
        for j in range(2):
            r = accr(1, t, j)
            A(f"v_pk_mul_f32 {v(r,2)}, {v(r,2)}, {v(244+4*j,2)}\nv_pk_mul_f32 {v(r+2,2)}, {v(r+2,2)}, {v(246+4*j,2)}")
            A(f"v_cvt_pk_bf16_f32 v{o+2*j}, v{r}, v{r+1}\nv_cvt_pk_bf16_f32 v{o+2*j+1}, v{r+2}, v{r+3}")
        A(f"ds_write_b128 v5, {v(o,4)} offset:{t*1024}")
    if CFG.prew:
        A(f"s_cmp_lg_u32 s16, 0\ns_cbranch_scc1 K1_kvsm\ns_lshl_b32 s3, s23, 4\ns_add_u32 s3, s3, s22\ns_add_u32 s3, s3, {FP}\ns_lshl_b32 s3, s3, 7")
        clear_flag(A, 3, 8)
        A(f"s_mul_i32 s3, s23, 12\ns_add_u32 s3, s3, s22\ns_add_u32 s3, s3, {FK}\ns_lshl_b32 s3, s3, 7\ns_cmp_lt_u32 s22, 12\ns_cselect_b32 s3, s3, {OOB}")
        clear_flag(A, 3, 8)
    A.label("K1_kvsm")
    A("s_and_b32 s30, s16, 3\ns_lshr_b32 s31, s16, 2\nv_and_b32 v2, 15, v1\nv_lshrrev_b32 v3, 4, v1")
    A(f"s_lshl_b32 s3, s30, 1\ns_add_u32 s33, s3, s31\ns_lshl_b32 s3, s33, 4\nv_add_u32 v4, s3, v2\nv_mul_u32_u24 v4, {PHI_RS}, v4\nv_mul_u32_u24 v5, 144, v3\nv_add_u32 v4, v4, v5")
    for e in range(2):
        softmax18(A, pairs(0, 0, e), lambda m: QB + 18*e + m, 240)
        for q in (range(4) if e == 0 else range(4, 9)): A(f"ds_write_b128 v4, {v(QB+4*q,4)} offset:{16*q}")
    A(f"v_lshrrev_b32 v6, 2, v1\nv_mul_u32_u24 v6, {PHI_RS}, v6\nv_and_b32 v7, 3, v1\nv_lshl_add_u32 v6, v7, 3, v6")
    A("s_mul_i32 s3, s33, 72\nv_add_u32 v6, s3, v6")
    A("s_lshl_b32 s3, s30, 3\nv_subrev_u32 v7, s3, v6")
    A(f"v_add_u32 v8, {64*PHI_RS}, v6\nv_add_u32 v9, {64*PHI_RS}, v7")
    A(f"s_lshl_b32 s3, s33, 10\ns_add_u32 s3, s3, {V_LDS}\nv_lshlrev_b32 v10, 4, v1\nv_add_u32 v10, s3, v10")
    A(f"v_lshlrev_b32 v11, 8, v3\nv_and_b32 v12, 1, v2\nv_lshl_add_u32 v11, v12, 4, v11")
    A(f"s_lshl_b32 s3, s33, 5\ns_add_u32 s3, s3, {V_LDS + 8192}\nv_add_u32 v11, s3, v11")
    A("s_mov_b32 s40, 0x00030003\ns_mov_b32 s41, 0x00030003\nv_mov_b32 v12, 0x3f803f80")
    srd_off(A, 36, 26, KVP_OFF, KVP_SZ)
    A("s_lshl_b32 s17, s22, 2\ns_add_u32 s17, s17, s23\ns_mul_i32 s17, s17, 24576")
    A("s_lshl_b32 s3, s31, 10\ns_add_u32 s19, s17, s3\ns_add_u32 s29, s19, 22528\ns_add_u32 s19, s19, 16384")
    A("s_lshr_b32 s18, s33, 2\ns_lshl_b32 s18, s18, 11\ns_and_b32 s3, s33, 3\ns_lshl_b32 s3, s3, 8\ns_add_u32 s18, s18, s3\ns_add_u32 s28, s17, s18\ns_add_u32 s28, s28, 18432")
    A("s_lshl_b32 s18, s33, 11\ns_add_u32 s17, s17, s18")
    A("v_lshlrev_b32 v4, 6, v3\nv_lshl_add_u32 v4, v2, 4, v4\nv_lshlrev_b32 v2, 4, v1")
    A("s_lshl_b32 s18, s30, 4\ns_lshl_b64 s[42:43], 0xffff, s18\ns_mov_b32 s44, 0x000f000f\ns_mov_b32 s45, 0x000f000f")
    A("s_waitcnt lgkmcnt(0)\ns_barrier")
    pt(A, "go1")
    DK, FR = 16, 96
    def afr(ks, T): return FR + ks*20 + T*4
    def bfr(ks, mt): return FR + ks*20 + 12 + mt*4
    def dk(T, mt): return DK + (mt*3 + T)*4
    def kreads(ks):
        A(f"ds_read_b128 {v(bfr(ks,1),4)}, v11 offset:{ks*9216}\nds_read_b128 {v(bfr(ks,0),4)}, v10 offset:{ks*9216}")
        for T in range(3):
            a = (7 if T == 2 else 6) + (2 if ks >= 2 else 0)
            off = (ks & 1)*32*PHI_RS + T*32
            A(f"ds_read_b64_tr_b16 {v(afr(ks,T),2)}, v{a} offset:{off}\nds_read_b64_tr_b16 {v(afr(ks,T)+2,2)}, v{a} offset:{off + 16*PHI_RS}")
    kreads(0)
    for ks in range(4):
        if ks < 3: kreads(ks+1)
        A(f"s_waitcnt lgkmcnt({8 if ks < 3 else 0})")
        for i in range(4): A(f"v_cndmask_b32 v{bfr(ks,1)+i}, v12, v{bfr(ks,1)+i}, s[40:41]")
        for mt in range(2):
            for T in range(3):
                A(f"{MF} {v(dk(T,mt),4)}, {v(afr(ks,T),4)}, {v(bfr(ks,mt),4)}, {0 if ks == 0 else v(dk(T,mt),4)}")
    A("s_nop 4")
    for T in range(2): A(f"buffer_store_dwordx4 {v(dk(T,0),4)}, v2, s[36:39], s17 offen offset:{T*1024} sc1")
    A(f"s_mov_b64 exec, s[42:43]\nbuffer_store_dwordx4 {v(dk(2,0),4)}, v2, s[36:39], s19 offen sc1")
    A("s_mov_b64 exec, s[44:45]")
    for T in range(2): A(f"buffer_store_dwordx4 {v(dk(T,1),4)}, v4, s[36:39], s28 offen offset:{T*1024} sc1")
    A(f"s_and_b64 exec, s[42:43], s[44:45]\nbuffer_store_dwordx4 {v(dk(2,1),4)}, v4, s[36:39], s29 offen sc1")
    A("s_mov_b64 exec, -1")
    A(f"s_lshl_b32 s17, s23, 4\ns_add_u32 s17, s17, {FP}\ns_add_u32 s18, s17, s22\ns_lshl_b32 s18, s18, 7\ns_mov_b32 s49, {OOB}")
    srd_off(A, 44, 26, KVF_OFF, KVF_SZ)
    A("s_waitcnt vmcnt(0)\ns_barrier")
    pt(A, "kvp")
    A("s_cmp_ge_u32 s16, 4\ns_cbranch_scc1 K2_ld\ns_cmp_lg_u32 s16, 0\ns_cbranch_scc1 K2_c")
    raise_flag(A, 18, 4)
    A("s_cmp_ge_u32 s22, 12\ns_cbranch_scc1 K2_c")
    A("v_and_b32 v3, 15, v1\nv_add_lshl_u32 v3, v3, s17, 7")
    poll(A, 3, 4, CFG.slk)
    A("s_mul_i32 s18, s23, 12\ns_add_u32 s18, s18, s22")
    A(f"s_add_u32 s49, s18, {FK}\ns_lshl_b32 s49, s49, 7\ns_lshl_b32 s17, s18, 11\ns_lshl_b32 s18, s18, 10")
    A("s_cmp_eq_u32 s22, 11\ns_cselect_b64 exec, 0xffff, -1")
    for tb in range(16):
        A(f"buffer_load_dwordx4 {v(8+8*tb,4)}, v2, s[36:39], s17 offen sc1\nbuffer_load_dwordx4 {v(12+8*tb,4)}, v2, s[36:39], s17 offen offset:1024 sc1")
        A(f"s_add_u32 s17, s17, {48*2048}")
    for tb in range(1, 16):
        A(f"s_waitcnt vmcnt({2*(15-tb)})")
        for p in range(4): A(f"v_pk_add_f32 {v(8+2*p,2)}, {v(8+2*p,2)}, {v(8+8*tb+2*p,2)}")
    for p in range(4): A(f"v_cvt_pk_bf16_f32 v{4+p}, v{8+2*p}, v{9+2*p}")
    A(f"buffer_store_dwordx4 v[4:7], v2, s[44:47], s18 offen {CFG.auxSt}")
    A("s_mov_b64 exec, -1\ns_waitcnt vmcnt(0)")
    raise_flag(A, 49, 8)
    A(f"s_mov_b32 s49, {OOB}\ns_branch K2_c")
    A.label("K1_q")
    emit_compute_loop(A, 18, "lin", (False, False), 20, first=ld_scale)
    A("s_waitcnt vmcnt(0)")
    A("s_barrier")
    pt(A, "m1")
    A("v_and_b32 v6, 15, v1\nv_lshrrev_b32 v7, 4, v1\nv_lshlrev_b32 v3, 11, v7\nv_lshl_add_u32 v3, v6, 4, v3")
    A(f"s_lshr_b32 s3, s16, 1\ns_mul_i32 s3, s3, {STAGE - 18432}\ns_mul_i32 s17, s16, 9216\ns_add_u32 s3, s3, s17")
    A(f"v_add_u32 v3, s3, v3\nv_add_u32 v4, s3, v{V_PA}")
    for st in range(2):
        for j in range(2):
            for e in range(2):
                softmax18(A, pairs(st, j, e), lambda m: (QB + e*16 + 4*((m & 7) >> 1) + (m & 1) + 2*(m >> 3)) if m < 16 else QB + 32 + 2*e + m - 16, 240 + 2*j)
                for gg in range(4): A(f"ds_write_b128 v3, {v(QB+e*16+4*gg,4)} offset:{e*1024 + gg*256}")
            for b in range(8): A(f"ds_read_b128 {acc(st,b,j)}, v4 offset:{b*1024}")
            for i in range(2): A(f"v_pk_mov_b32 {v(accr(st,8,j)+2*i,2)}, {v(QB+32+2*i,2)}, {v(QB+32+2*i,2)} op_sel:[0,1]")
    pt(A, "kvp")
    KVB, KR, TM, MB, CI = 8, 40, 56, 88, 240
    A(f"v_add_u32 v4, {P0}, v{V_PA}\nv_cmp_eq_u32 vcc, 0, v6\nv_cmp_eq_u32 s[40:41], 4, v6\nv_lshlrev_b32 v7, 6, v7\ns_mov_b32 s3, {P0 + 9216}")
    A("v_cndmask_b32 v5, 32, 0, vcc\nv_cndmask_b32 v5, v5, 16, s[40:41]\nv_add3_u32 v5, v5, v7, s3")
    A("s_lshl_b32 s56, s22, 2\ns_add_u32 s56, s56, s16\ns_lshl_b32 s56, s56, 1\ns_add_u32 s56, s56, s23\ns_sub_u32 s56, s56, 4")
    A(f"s_add_u32 s49, s56, {FO}\ns_lshl_b32 s49, s49, 7\ns_mul_i32 s56, s56, 20480\ns_add_u32 s57, s56, 10240")
    k2_enter(A)
    k2_setup(A, False)
    for hp in range(4): A(f"s_mov_b32 s{8+2*hp}, {0xffff << (16*hp) & 0xffffffff}\ns_mov_b32 s{9+2*hp}, {(0xffff << (16*hp)) >> 32}")
    A(f"v_mov_b32 v{MB+2}, 0\nv_mov_b32 v{MB+3}, 0\nv_mov_b32 v{CI}, 0\nv_mov_b32 v{CI+1}, {f2u(1e-6)}\nv_mov_b32 v{CI+2}, 0\nv_mov_b32 v{CI+3}, 0")
    A(f"v_add_u32 v6, 4096, v{V_PA}\nv_add_u32 v7, 8192, v{V_PA}")
    def kvf(g, e, mt): return KVB + 16*(g & 1) + 8*e + 4*mt
    def kv_reads(g):
        st, hp = g >> 2, g & 3
        return [f"ds_read_b128 {v(kvf(g,e,mt),4)}, v{4+mt} offset:{st*12288 + (2*hp+e)*(256 if mt else 1024)}" for e in range(2) for mt in range(2)]
    A("s_waitcnt lgkmcnt(0)\ns_barrier")
    pt(A, "kvf")
    for x in kv_reads(0): A(x)
    for st in range(2):
        for mt in range(2): A(f"ds_read_b128 {v(KR+8*st+4*mt,4)}, v{4+mt} offset:{st*12288 + 8*(256 if mt else 1024)}")
    def o_store(st, u, j):
        b = 2*u + j
        return f"buffer_store_dwordx4 {acc(st,u,j)}, v{(V_PA,6,7)[b//4]}, s[40:43], s{56+st} offen offset:{(b%4)*1024} {CFG.auxSt}"
    def o_valu(k):
        st, hp, j = k >> 3, (k >> 1) & 3, k & 1
        T = TM + 16*j
        L = [f"v_rcp_f32 v{T+8*e+6}, v{T+8*e+5}" for e in range(2)] + ["s_nop 0"]
        for e in range(2):
            L += [f"v_pk_mul_f32 {v(T+8*e+2*q,2)}, {v(T+8*e+2*q,2)}, {v(T+8*e+6,2)} op_sel_hi:[1,0]" for q in range(2)]
            L += [f"v_mul_f32 v{T+8*e+4}, v{T+8*e+4}, v{T+8*e+6}"]
        vals = [T+8*e+i for e in range(2) for i in range(5)]
        for p in range(5):
            pi = 5*hp + p
            L.append(f"v_cvt_pk_bf16_f32 v{accr(st, pi >> 2, j) + (pi & 3)}, v{vals[2*p]}, v{vals[2*p+1]}")
        if CFG.ost == 0: L += [o_store(st, u, j) for u in ([hp] if hp < 3 else [3, 4])]
        return L
    if CFG.ofine:
        def dec(n): return n >> 4, (n >> 2) & 3, (n >> 1) & 1, n & 1
        def mask(n):
            st, hp, j, e = dec(n)
            return [f"v_cndmask_b32 v{MB+4*e+i}, 0, v{accr(st,8,j)+2*e+i}, {s(8+2*hp,2)}" for i in range(2)]
        def scale(n):
            st, hp, j, e = dec(n)
            T = TM + 16*j; U = T + 8*e
            L = [f"v_rcp_f32 v{U+6}, v{U+5}", None]
            L += [f"v_pk_mul_f32 {v(U+2*q,2)}, {v(U+2*q,2)}, {v(U+6,2)} op_sel_hi:[1,0]" for q in range(2)] + [f"v_mul_f32 v{U+4}, v{U+4}, v{U+6}"]
            vals = [T+8*x+i for x in range(2) for i in range(5)]
            for p in ((0, 1) if e == 0 else (2, 3, 4)):
                pi = 5*hp + p
                L.append(f"v_cvt_pk_bf16_f32 v{accr(st, pi >> 2, j) + (pi & 3)}, v{vals[2*p]}, v{vals[2*p+1]}")
            if e: L += [o_store(st, u, j) for u in ([hp] if hp < 3 else [3, 4])]
            return L
        for x in mask(0): A(x)
        for n in range(32):
            st, hp, j, e = dec(n)
            g = n >> 2; U = TM + 16*j + 8*e
            M = [f"{MF} {v(U+4*mt,4)}, {v(kvf(g,e,mt),4)}, {acc(st,2*hp+e,j)}, {v(CI,4) if mt else 0}" for mt in (1, 0)]
            M += [f"{MF} {v(U+4*mt,4)}, {v(KR+8*st+4*mt,4)}, {v(MB+2*e,4)}, {v(U+4*mt,4)}" for mt in (1, 0)]
            mk = mask(n+1) if n < 31 else ["s_nop 0", "s_nop 0"]
            sc = scale(n-2) if n >= 2 else ["s_nop 0", None, "s_nop 1"]
            fill = [sc[0], mk[0]] + sc[2:] + [mk[1]]
            if n & 3 == 0: A("s_waitcnt lgkmcnt(0)")
            if g < 7 and n & 3 < 2: fill += kv_reads(g+1)[2*(n & 1):2*(n & 1)+2]
            n0 = 0
            for i, m in enumerate(M):
                A(m)
                c = (len(fill) - n0 + (3 - i)) // (4 - i)
                for x in fill[n0:n0+c]: A(x)
                n0 += c
        for n in (30, 31):
            for x in scale(n): A(x or "s_nop 0")
    else:
        for k in range(16):
            st, hp, j = k >> 3, (k >> 1) & 3, k & 1
            g = k >> 1; T = TM + 16*j
            a = [f"{MF} {v(T+8*e+4*mt,4)}, {v(kvf(g,e,mt),4)}, {acc(st,2*hp+e,j)}, {v(CI,4) if mt else 0}" for e in range(2) for mt in (1, 0)]
            b = [f"{MF} {v(T+8*e+4*mt,4)}, {v(KR+8*st+4*mt,4)}, {v(MB+2*e,4)}, {v(T+8*e+4*mt,4)}" for e in range(2) for mt in (1, 0)]
            mk = [f"v_cndmask_b32 v{MB+(i if i < 2 else i+2)}, 0, v{accr(st,8,j)+i}, {s(8+2*hp,2)}" for i in range(4)]
            va = o_valu(k-1) if k else []
            if j == 0:
                A("s_waitcnt lgkmcnt(0)")
                if g < 7: va = va + kv_reads(g+1)
            A(a[0]); A(mk[0]); A(mk[1]); A(a[1]); A(mk[2]); A(mk[3]); A(a[2]); A(a[3])
            n0 = 0
            for i, m in enumerate([None] + b):
                if m: A(m)
                n = (len(va) - n0 + (4 - i)) // (5 - i)
                for x in va[n0:n0+n]: A(x)
                n0 += n
        A("s_nop 5")
        for x in o_valu(15): A(x)
    pt(A, "go1")
    if CFG.ost == 1:
        for st in range(2):
            for u in range(5):
                for j in range(2): A(o_store(st, u, j))
    A("s_nop 1\ns_branch K2_cq")
    A.label("K1_ldF")
    srd_off(A, 8, 26, WF_OFF, WF_SZ)
    A(f"s_sub_u32 s17, s16, 4\ns_mul_i32 s21, s23, {18*18432}")
    def q_wot():
        if not CFG.qw: return
        L = A.newlabel("Lq")
        A(f"s_cmp_lt_u32 s23, 4\ns_cbranch_scc1 {L}")
        wot_flagaddr(A); wot_regs(A, False)
        A.label(L)
    def wait_fold():
        A("s_lshl_b32 s3, s17, 2\ns_add_u32 s3, s3, s23\ns_add_u32 s3, s3, 4\ns_lshl_b32 s19, s23, 1\ns_add_u32 s19, s19, s17\ns_sub_u32 s19, s19, 8")
        A("s_cmp_ge_u32 s23, 4\ns_cselect_b32 s3, s19, s3\ns_mul_i32 s3, s3, 36")
        if CFG.hintf: A("s_lshl_b32 s19, s3, 5\nv_mov_b32 v9, s19")
        A(f"s_add_u32 s3, s3, {F1}\nv_and_b32 v8, 63, v0\nv_min_u32 v8, 35, v8\nv_add_lshl_u32 v8, v8, s3, 7")
        if CFG.nox:
            A(f"s_lshl_b32 s3, s22, 3\ns_add_u32 s3, s3, {F0+112}\nv_and_b32 v10, 7, v0\nv_and_b32 v11, 63, v0\nv_cmp_gt_u32 vcc, 40, v11\nv_add_lshl_u32 v10, v10, s3, 7\ns_nop 0\nv_cndmask_b32 v8, v10, v8, vcc")
        if CFG.dlw: A(f"s_sleep {CFG.dlw}")
        poll2(A, 8, 10, CFG.slf or CFG.sl0a, CFG.hintf - 1 if CFG.hintf else CFG.sl0, None, 9 if CFG.hintf else None)
        if CFG.nox: A("s_barrier")
        q_wot()
        pt(A, "go1")
    emit_loader_lin(A, 18, 9, POFF, 17, 8, 21, 20, 18, CFG.auxP, CFG.GA, pre=wait_fold)
    A("s_branch K1_ldtail")
    A.label("K1_ldX")
    srd_off(A, 8, 26, HT_OFF, HT_SZ)
    A(f"s_sub_u32 s17, s16, 6\ns_mul_i32 s21, s22, {4*9216}\ns_lshl_b32 s18, s17, 10\ns_add_u32 s21, s21, s18\ns_lshl_b32 s18, s17, 12\ns_mov_b32 s19, s17")
    A("v_and_b32 v1, 63, v0\nv_and_b32 v2, 16, v1\nv_lshrrev_b32 v2, 2, v2\nv_xor_b32 v2, v2, v1\nv_lshlrev_b32 v2, 4, v2")
    for w in range(1, 4): A(f"v_add_u32 v{2+w}, {8192*w}, v2")
    def issue_x(slot):
        A(f"s_add_u32 m0, s18, {slot*STAGE + WOFF}\ns_add_u32 s19, s19, 2")
        for w in range(4): A(f"buffer_load_dwordx4 v{2+w}, s[8:11], s21 offen offset:{1024*w} {CFG.auxP} lds")
        A(f"s_cmp_ge_u32 s19, 9\ns_cselect_b32 s3, 9, 0\ns_cselect_b32 s28, {589824-9216}, 0\ns_sub_u32 s19, s19, s3\ns_add_u32 s21, s21, s28\ns_add_u32 s21, s21, 2048")
    def wait_xn():
        if CFG.nox: return A("s_barrier")
        A(f"s_lshl_b32 s3, s22, 3\ns_add_u32 s3, s3, {F0+112}\nv_and_b32 v8, 7, v0\nv_add_lshl_u32 v8, v8, s3, 7")
        if CFG.dl0: A(f"s_sleep {CFG.dl0}")
        poll2(A, 8, 10, CFG.sl0a, CFG.sl0)
        q_wot()
        pt(A, "go1")
    assert not CFG.GA
    emit_loader(A, 18, 4, issue_x, 20, pre=wait_xn)
    A.label("K1_ldtail")
    A("s_lshr_b32 s17, s2, 3\ns_sub_u32 s17, s17, 18\ns_lshl_b32 s17, s17, 2\ns_add_u32 s17, s17, s16\ns_sub_u32 s17, s17, 4")
    A(f"s_mov_b32 s49, {OOB}\ns_cmp_ge_u32 s23, 4\ns_cbranch_scc1 K1_ldq")
    srd_off(A, 32, 26, RS_OFF, RS_SZ)
    A("s_and_b32 s31, s16, 3\ns_lshl_b32 s30, s22, 2\ns_add_u32 s30, s30, s31\ns_lshl_b32 s30, s30, 8\nv_and_b32 v1, 63, v0\nv_and_b32 v2, 15, v1\nv_lshlrev_b32 v2, 2, v2")
    A("buffer_load_dword v240, v2, s[32:35], s30 offen offset:128 sc1")
    if CFG.pf1kv:
        srd(A, 52, 4, S*F*2)
        pf_w1_col(A, 46)
        A(f"s_add_u32 s47, s17, {320 - 32*CFG.pf1kv}")
        pf_w1(A, 52, 46, 47, 32, CFG.pf1kv, 1, 30)
    if CFG.pf2kv:
        pf_w2(A, 50, 17, 32, CFG.pf2kv)
    A(f"s_mul_i32 s3, s31, 9216\ns_add_u32 s3, s3, {HO}\nv_lshl_add_u32 v2, v1, 4, s3\ns_barrier")
    for t in range(9): A(f"ds_read_b128 {acc(0,t,0)}, v2 offset:{t*1024}")
    A(f"s_waitcnt vmcnt({CFG.pf2kv + CFG.pf1kv}) lgkmcnt(0)\ns_branch K1_kvsm")
    A.label("K1_ldq")
    A("s_barrier")
    if CFG.c3w2 == 1:
        A(f"s_sub_u32 s19, s17, {32 - CFG.c3s}")
        pf_w2c3(A, 50, 19, 16, -(-(36 - CFG.c3s) // 16), lim=0)
    if CFG.pf2q:
        A(f"s_add_u32 s17, s17, {32*CFG.pf2kv - 32}")
        pf_w2(A, 50, 17, 16, CFG.pf2q, lim=None if CFG.qlim < 0 else CFG.qlim)
    A("s_branch K2_ld")
    A.label("K1_spare")
    A(f"s_load_dwordx2 s[50:51], s[0:1], {KA_W2}")
    srd(A, 8, 22, D*D*2)
    A("s_and_b32 s17, s2, 7\ns_lshr_b32 s18, s2, 3\ns_sub_u32 s41, s18, 30\ns_lshl_b32 s41, s41, 3\ns_add_u32 s41, s41, s16")
    A(f"s_add_u32 s43, s41, {32*CFG.pf2kv + 16*CFG.pf2q}")
    A("s_sub_u32 s18, s18, 30\ns_lshl_b32 s17, s17, 1\ns_add_u32 s17, s17, s18\ns_and_b32 s22, s17, 3\ns_lshr_b32 s23, s17, 2")
    A(f"s_mul_i32 s28, s23, {144*1152}\ns_mul_i32 s29, s22, 288\ns_add_u32 s28, s28, s29\ns_lshl_b32 s29, s16, 10")
    for r in range(6):
        if r == 5: A("s_cmp_lg_u32 s16, 0\ns_cbranch_scc1 K1_w5\ns_bfm_b64 exec, 32, 0")
        A(f"v_add_u32 v4, {512*r}, v0\nv_mul_u32_u24 v5, 58255, v4\nv_lshrrev_b32 v5, 20, v5\ns_add_u32 m0, s29, {8192*r}")
        A(f"v_mul_u32_u24 v5, {1152-288}, v5\nv_lshl_add_u32 v4, v4, 4, v5\nbuffer_load_dwordx4 v4, s[8:11], s28 offen lds")
    A("s_mov_b64 exec, -1")
    A.label("K1_w5")
    assert CFG.pf1s > 2
    a0 = (112*CFG.pf1) // 64 + 48*CFG.pf1a + 16*CFG.pf1q
    e0 = 320 - 32*CFG.pf1kv
    b0 = e0 - 16*(CFG.pf1s - CFG.sA)
    assert CFG.sA == 0 or CFG.sA > 2
    A(f"s_add_u32 s42, s41, {a0 + 16*CFG.sA}\ns_add_u32 s41, s41, {a0 if CFG.sA else b0}")
    if not CFG.wfirst: pf_w1(A, 52, 46, 41, 16, 1, 1, 57)
    ZR = 144*288
    A(f"v_lshlrev_b32 v4, 2, v0\nv_add_u32 v4, {ZR}, v4\nv_mov_b32 v5, 0\nds_write_b32 v4, v5")
    srd_off(A, 12, 26, WOT_OFF, WOT_SZ)
    A("v_and_b32 v1, 63, v0\nv_lshrrev_b32 v3, 4, v1\nv_bfe_u32 v2, v1, 2, 2\ns_lshl_b32 s3, s16, 3\nv_and_b32 v10, 3, v1\nv_lshlrev_b32 v10, 3, v10")
    A(f"v_add_u32 v11, 16, v3\nv_cmp_gt_u32 s[30:31], 2, v3\nv_mov_b32 v12, 144")
    for hf in range(2):
        A(f"v_add3_u32 v4, v2, s3, {4*hf}\nv_mul_u32_u24 v5, 205, v4\nv_lshrrev_b32 v5, 10, v5\nv_mul_u32_u24 v6, 5, v5\nv_sub_u32 v6, v4, v6")
        A("v_cmp_eq_u32 vcc, 4, v6\nv_lshl_add_u32 v6, v3, 2, v6\nv_mul_u32_u24 v5, 18, v5\nv_cndmask_b32 v6, v6, v11, vcc\ns_andn2_b64 vcc, vcc, s[30:31]")
        A(f"v_add_u32 v6, v6, v5\nv_cndmask_b32 v6, v6, v12, vcc\nv_min_u32 v6, 144, v6\nv_mul_u32_u24 v6, 288, v6\nv_add_u32 v{8+hf}, v6, v10")
    A("s_lshl_b32 s28, s22, 2\ns_add_u32 s28, s28, s23\ns_mul_i32 s28, s28, 5\ns_add_u32 s28, s28, s16")
    A(f"s_add_u32 s49, s28, {FW}\ns_lshl_b32 s49, s49, 7\ns_mul_i32 s28, s28, 9216\nv_lshlrev_b32 v2, 4, v1")
    A(f"s_waitcnt vmcnt({0 if CFG.wfirst else 1}) lgkmcnt(0)\ns_barrier")
    tag_make(A)
    for rt in range(9):
        A(f"ds_read_b64_tr_b16 {v(16+4*rt,2)}, v8 offset:{rt*32}\nds_read_b64_tr_b16 {v(18+4*rt,2)}, v9 offset:{rt*32}")
    A("s_waitcnt lgkmcnt(0)\ns_barrier")
    A("s_cmp_lt_u32 s16, 5\ns_cbranch_scc1 K1_wot")
    A(f"s_lshl_b32 s49, s2, 7\ns_cmp_eq_u32 s16, 5\ns_cselect_b32 s49, s49, {OOB}\ns_branch K1_wot1")
    A.label("K1_wot")
    for rt in range(9):
        if rt and rt % 4 == 0: A("s_add_u32 s28, s28, 4096")
        A(f"buffer_store_dwordx4 {v(16+rt*4,4)}, v2, s[12:15], s28 offen offset:{(rt%4)*1024} {CFG.auxSt}")
    A.label("K1_wot1")
    if CFG.wfirst: A("s_waitcnt vmcnt(0)\ns_barrier")
    else: pf_w1(A, 52, 46, 41, 16, 1, 1, 57, lim=0)
    raise_flag(A, 49, 4)
    if CFG.chore:
        A(f"s_sub_u32 s3, s2, 240\ns_lshl_b32 s3, s3, 3\ns_add_u32 s3, s3, s16\ns_mul_i32 s3, s3, 15\ns_add_u32 s3, s3, {FU}\nv_add_lshl_u32 v8, v1, s3, 7")
        A(f"s_bfm_b64 exec, 15, 0\nbuffer_load_dword v{SINK}, v8, s[96:99], 0 offen sc1\ns_mov_b64 exec, -1")
    pt(A, "go1")
    if CFG.pf1s:
        A.label("K1_spf")
        pf_w1(A, 52, 46, 41, 16, 1, 1, 57, lim=CFG.slim)
        if CFG.sA: A(f"s_cmp_eq_u32 s41, s42\ns_cselect_b32 s3, {max(b0 - a0 - 16*CFG.sA, 0)}, 0\ns_add_u32 s41, s41, s3")
        A(f"s_cmp_lt_u32 s41, {e0}\ns_cbranch_scc1 K1_spf")
    if CFG.c3w2 == 2:
        A(f"s_lshl_b32 s19, s18, 3\ns_add_u32 s19, s19, s16\ns_bitcmp1_b32 s2, 0\ns_cselect_b32 s3, {0 if CFG.rev2 else 20}, 20\ns_add_u32 s19, s19, s3")
        pf_w2c3(A, 50, 19, 16, 1, lim=1)
    pf_w2(A, 50, 43, 16, CFG.pf2s, lim=1)
    pt(A, "m1")
    A(f"s_mov_b32 s49, {OOB}\ns_cmp_lt_u32 s16, 4\ns_cbranch_scc1 K2_c\ns_cmp_lg_u32 s16, 7\ns_cbranch_scc1 K2_ld\ns_cmp_lg_u32 s2, 255\ns_cbranch_scc1 K2_ld")
    for q in range(4):
        A(f"v_add_u32 v8, {F0 + 64*q}, v1\nv_lshlrev_b32 v8, 7, v8")
        poll(A, 8, 10, 8)
    A(f"s_mov_b32 s49, {FE*128}\ns_branch K2_ld")

WR = 40
PAD = 34816
def wot_flagaddr(A):
    if CFG.lm:
        A("s_lshr_b32 s56, s2, 3\ns_lshl_b32 s3, s2, 1\ns_add_u32 s56, s56, s3\ns_and_b32 s56, s56, 3")
        A(f"s_mul_i32 s56, s56, 20\ns_add_u32 s3, s56, {FW}\nv_and_b32 v36, 63, v0\nv_lshlrev_b32 v37, 4, v36\nv_min_u32 v36, 19, v36\nv_add_lshl_u32 v36, v36, s3, 7")
        A("s_sub_u32 s3, s16, 4\ns_mul_i32 s55, s3, 46080\ns_add_u32 s55, s55, 8192\nv_add_u32 v33, s55, v37\ns_lshl_b32 s3, s3, 10\nv_add_u32 v37, s3, v37\nv_add_u32 v23, 4096, v37")
        return
    A(f"s_lshr_b32 s56, s2, 3\ns_lshl_b32 s3, s2, 1\ns_add_u32 s56, s56, s3\ns_and_b32 s56, s56, 3\ns_lshl_b32 s56, s56, 2\ns_add_u32 s56, s56, s16\ns_sub_u32 s56, s56, 4\ns_mul_i32 s56, s56, 5")
    A(f"s_add_u32 s3, s56, {FW}\nv_and_b32 v36, 63, v0\nv_lshlrev_b32 v37, 4, v36\nv_min_u32 v36, 4, v36\nv_add_lshl_u32 v36, v36, s3, 7")
def wot_items():
    L = []
    for k in range(CFG.wn):
        u = CFG.w0 + k
        assert u >= 2
        L.append(f"s_sub_u32 s3, s16, 4\ns_lshl_b32 s3, s3, 10\ns_add_u32 m0, s3, {T8_LDS + 4096*(u-2)}\ns_mov_b32 s25, s56\nbuffer_load_dwordx4 v33, s[92:95], s56 offen sc1 lds\ns_add_u32 s56, s56, 9216")
        for g in range(4):
            L.append(f"buffer_load_dwordx4 {v(WR+32*k+8*g,4)}, v37, s[92:95], s25 offen sc1")
            L.append(f"buffer_load_dwordx4 {v(WR+32*k+8*g+4,4)}, v23, s[92:95], s25 offen sc1\ns_add_u32 s25, s25, 46080")
    return L
def wot_chunk(A, k):
    if CFG.lm:
        u = CFG.w0 + k
        if u >= 2: A(f"s_sub_u32 s3, s16, 4\ns_lshl_b32 s3, s3, 10\ns_add_u32 m0, s3, {T8_LDS + 4096*(u-2)}")
        else: A(f"s_bfe_u32 s3, s16, 0x10001\ns_mul_i32 s3, s3, {STAGE}\ns_add_u32 m0, s3, {PAD}\ns_and_b32 s3, s16, 1\ns_lshl_b32 s3, s3, 10\ns_add_u32 m0, m0, s3")
        A("s_mov_b32 s3, s56\nbuffer_load_dwordx4 v33, s[92:95], s56 offen sc1 lds")
        for g in range(4):
            A(f"buffer_load_dwordx4 {v(WR+32*k+8*g,4)}, v37, s[92:95], s3 offen sc1\nbuffer_load_dwordx4 {v(WR+32*k+8*g+4,4)}, v23, s[92:95], s3 offen sc1")
            if g < 3: A("s_add_u32 s3, s3, 46080")
        A("s_add_u32 s56, s56, 9216")
        return
    for b in range(9*k, 9*k + 9):
        if b and b % 4 == 0: A("s_add_u32 s56, s56, 4096")
        A(f"buffer_load_dwordx4 {v(WR+4*b,4)}, v37, s[92:95], s56 offen offset:{(b%4)*1024} sc1")
def wot_regs(A, sampled, load=True, skip=None):
    L = A.newlabel("Lw")
    if skip: A(f"{skip}\ns_cbranch_scc1 {L}")
    if sampled: A(f"v_cmp_ne_u64 vcc, s[100:101], v[38:39]\ns_nop 4\ns_cbranch_vccz {L}")
    poll(A, 36, 38, 2)
    A.label(L)
    srd_off(A, 92, 26, WOT_OFF, WOT_SZ)
    A(f"s_add_u32 s56, s56, {CFG.w0}\ns_mul_i32 s56, s56, 9216")
    if load:
        for k in range(CFG.wn): wot_chunk(A, k)
def k2_decode(A):
    A("s_and_b32 s17, s2, 7\ns_lshr_b32 s18, s2, 3")
    A("s_lshr_b32 s28, s17, 1\ns_lshl_b32 s22, s17, 1\ns_add_u32 s22, s22, s18\ns_and_b32 s22, s22, 3")
    A("s_and_b32 s17, s17, 1\ns_lshl_b32 s17, s17, 3\ns_lshr_b32 s18, s18, 2")
    if CFG.stsw:
        A(f"s_cmp_eq_u32 s18, 1\ns_cselect_b32 s23, {CFG.stsw}, s18\ns_cmp_eq_u32 s18, {CFG.stsw}\ns_cselect_b32 s18, 1, s23")
    A("s_add_u32 s23, s17, s18")
RED_RS = 592
PBS = 1056
O_LDS, O_TOP = 2*STAGE, 159744
W_SLOT = (3, 0, 1, 3, 0)
PB = STAGE
RED = 3*STAGE
PB_OWN = RED + 32*RED_RS
T8_LDS = 4*STAGE
REDL = 0
def k2_enter(A):
    A(f"s_load_dwordx4 s[4:7], s[0:1], {KA_W2}\ns_load_dwordx2 s[44:45], s[0:1], {KA_X}\ns_load_dwordx2 s[46:47], s[0:1], {KA_OUT}")
    k2_decode(A)
def k2_setup(A, early):
    srd_off(A, 36, 26, PART_OFF, PART_SZ)
    A("s_lshl_b32 s17, s23, 2\ns_add_u32 s17, s17, s22\ns_lshl_b32 s18, s17, 4")
    A("s_lshl_b32 s30, s16, 2\ns_add_u32 s30, s30, s28\ns_add_u32 s30, s30, s18")
    A(f"s_mul_i32 s32, s30, 9216\ns_add_u32 s30, s30, {FX}\ns_lshl_b32 s30, s30, 7")
    A(f"s_cmp_eq_u32 s16, s28\ns_cselect_b32 s48, {OOB}, 0\ns_cselect_b32 s30, {OOB}, s30")
    A(f"s_add_u32 s34, s32, 4096\ns_add_u32 s35, s32, 8192")
    A("s_waitcnt lgkmcnt(0)")
    k2_final_prep(A, 1)
    if early and (CFG.pf2l or CFG.pf2ls):
        base = 72*CFG.pf2g + 16*CFG.pf2s + 32*CFG.pf2kv + 16*CFG.pf2q
        A(f"s_lshr_b32 s17, s2, 3\ns_lshl_b32 s19, s17, 2\ns_add_u32 s19, s19, s16\ns_cmp_ge_u32 s17, 30\ns_cbranch_scc1 K2_pls\ns_sub_u32 s17, s17, 18\ns_cmp_ge_u32 s17, 8\ns_cbranch_scc1 K2_nopl")
        A(f"s_add_u32 s19, s19, {base - 72}")
        pf_w2(A, 4, 19, 32, CFG.pf2l, srdn=8)
        A("s_branch K2_nopl")
        A.label("K2_pls")
        A(f"s_add_u32 s19, s19, {base + 32*CFG.pf2l - 120}")
        pf_w2(A, 4, 19, 8, CFG.pf2ls, srdn=8, lim=1)
        A.label("K2_nopl")
    clear_flag(A, 30, 8)
    A(f"v_and_b32 v8, 15, v1\nv_lshrrev_b32 v9, 4, v1\nv_mul_u32_u24 v8, {RED_RS}, v8\nv_lshl_add_u32 v8, v9, 4, v8\nv_add_u32 v254, {RED}, v8")
    srd_off(A, 40, 26, OB_OFF, OB_SZ)

def gen_k2(A):
    DBG["on"] = True
    KV, MB, CI, PH, TM, PK, O = 8, 80, 92, 96, 132, 168, 204
    A.label("K2_c")
    pt(A, "e1")
    k2_enter(A)
    def common():
        emit_compute_addr(A, 16, "pi")
        for i in range(0, 72, 2): A(f"v_pk_mov_b32 {v(V_ACC+i,2)}, 0, 0")
    common()
    A("s_waitcnt vmcnt(0) lgkmcnt(0)")
    raise_flag(A, 49, 8)
    A(f"s_mov_b32 s49, {OOB}\ns_barrier")
    pt(A, "fl1")
    k2_setup(A, True)
    if CFG.burn:
        ng, nn = CFG.burn.split(",")
        A(f"s_cmp_lt_u32 s2, 144\ns_cselect_b32 s20, {ng}, {nn}\ns_cmp_eq_u32 s20, 0\ns_cbranch_scc1 K2_c1\nK2_burn:")
        for k in range(18):
            A(f"{MF} {v(168+4*(k%9),4)}, {v(8+4*(k%9),4)}, {v(44+4*(k%7),4)}, {v(168+4*(k%9),4)}")
            if k < 11: A(f"ds_read_b128 {v(8+4*((k*5)%18),4)}, v{V_PB} offset:{STAGE + k*1024}")
        A("s_waitcnt lgkmcnt(0)\ns_sub_u32 s20, s20, 1\ns_cmp_lg_u32 s20, 0\ns_cbranch_scc1 K2_burn")
    A("s_branch K2_c1")
    A.label("K2_cq")
    pt(A, "e1")
    common()
    A.label("K2_c1")
    if CFG.prio: A(f"s_setprio {CFG.prio}")
    A(f"v_or_b32 v0, s48, v{V_PA}")
    def pub(t):
        L = [f"v_cvt_pk_bf16_f32 v{PK+4*t+p}, v{V_ACC+8*t+2*p}, v{V_ACC+8*t+2*p+1}" for p in range(4)]
        L.append(f"buffer_store_dwordx4 {v(PK+4*t,4)}, v0, s[36:39], s{(32, 34, 35)[t//4]} offen offset:{(t%4)*1024} sc1")
        return L
    lastfill = [""]*9
    for t in range(4): lastfill += ["\n".join(pub(t)[:3]), "\n".join(pub(t)[3:])]
    lastfill += ["\n".join(pub(4))]
    def late_flag():
        A(f"s_cmp_eq_u32 s49, {OOB}\ns_cbranch_scc1 K2_nolate\ns_waitcnt vmcnt(0)")
        raise_flag(A, 49, 172)
        A(f"s_mov_b32 s49, {OOB}")
        A.label("K2_nolate")
    emit_compute_loop(A, 18, "pi", (False, False), 20, first=lambda: pt(A, "b2"), lastfill=lastfill, loopend=late_flag, own=CFG.own >= 2)
    pt(A, "m2")
    for t in range(5, 9):
        for x in pub(t): A(x)
    pt(A, "pub")
    FB, WA = 8, 204
    A(f"s_lshl_b32 s3, s16, 10\nv_add_u32 v4, s3, v{V_PA}\nv_add_u32 v5, {3*STAGE}, v4\nv_add_u32 v3, {3*STAGE}, v{V_PA}")
    A(f"s_and_b32 s17, s16, 1\ns_lshl_b32 s3, s17, 10\ns_add_u32 s3, s3, {O_LDS}\nv_add_u32 v6, s3, v{V_PA}\nv_xor_b32 v7, 1024, v6")
    A(f"s_cmp_eq_u32 s17, 0\ns_cselect_b32 s3, {O_LDS + 8192}, 0\ns_cselect_b32 s18, 0, {O_LDS + 8192}")
    A(f"s_cselect_b32 s19, 0, {O_TOP}\ns_cselect_b32 s21, {O_TOP}, 0\ns_add_u32 s3, s3, s19\ns_add_u32 s18, s18, s21")
    A(f"s_cmp_eq_u32 s17, 0\ns_cselect_b32 s19, 9, 1\ns_cselect_b32 s21, 1, 9\ns_lshl_b32 s19, s19, 10\ns_lshl_b32 s21, s21, 10")
    for g in range(4):
        A(f"v_add_u32 v{224+2*g}, s3, v{V_PA}\nv_add_u32 v{225+2*g}, s18, v{V_PA}\ns_add_u32 s3, s3, s19\ns_add_u32 s18, s18, s21")
    def fo(b, g, j): return FB + 80*b + 20*g + 4*j
    def fw(b, g, k): return FB + 80*b + 20*g + 8 + 4*k
    def wreads(u):
        b = u & 1; sl = W_SLOT[u]; R = []
        for g in range(4):
            for j in range(2):
                R.append(f"ds_read_b128 {v(fo(b,g,j),4)}, v{6+j} offset:{g*9216 + u*2048}" if u < 4 else f"ds_read_b128 {v(fo(b,g,j),4)}, v{224+2*g+j}")
            so = (0 if sl == 3 else sl*STAGE) + g*9216
            for k in range(2): R.append(f"ds_read_b128 {v(fw(b,g,k),4)}, v{5 if sl == 3 else (4 if so + 4096*k < 65536 else 232)} offset:{(so + 4096*k) % 65536}")
            R.append(f"ds_read_b128 {v(fw(b,g,2),4)}, v{3 if sl == 3 else (V_PA if so + 8192 < 65536 else 233)} offset:{(so + 8192) % 65536}")
        return R
    A(f"v_add_u32 v232, 65536, v4\nv_add_u32 v233, 65536, v{V_PA}")
    def wmf(u):
        b = u & 1; M = []
        for g in range(4):
            for k, j in ((0, 0), (0, 1), (1, 0), (1, 1), (2, 0)):
                d = v(WA + 4*(2*k + j), 4)
                M.append(f"{MF} {d}, {v(fw(b,g,k),4)}, {v(fo(b,g,j),4)}, {d if u or g else 0}")
        return M
    def flag_x():
        A("s_waitcnt vmcnt(0)")
        raise_flag(A, 30, 236)
        pt(A, "flx")
    if CFG.lm:
        assert CFG.wreg == 4 and (CFG.w0, CFG.wn) == ((2, 3), (1, 4))[CFG.lm - 1]
        A(f"v_add_u32 v234, {T8_LDS}, v{V_PA}")
        def xreads(b, us):
            R = []
            for n, (u, g) in enumerate((u, g) for u in us for g in range(4)):
                if u >= 2: R.append(f"ds_read_b128 {v(FB+80*b+8*n,4)}, v234 offset:{(u-2)*4096 + g*1024}")
                else:
                    o = (g >> 1)*STAGE + PAD + (g & 1)*1024
                    R.append(f"ds_read_b128 {v(FB+80*b+8*n,4)}, v{V_PA if o < 65536 else 233} offset:{o % 65536}")
                R.append(f"ds_read_b128 {v(FB+80*b+8*n+4,4)}, v6 offset:{g*9216 + u*2048}" if u < 4 else f"ds_read_b128 {v(FB+80*b+8*n+4,4)}, v{224+2*g}")
            return R
        def xmf(b, n): return [f"{MF} {v(WA+16,4)}, {v(FB+80*b+8*i,4)}, {v(FB+80*b+8*i+4,4)}, {v(WA+16,4)}" for i in range(n)]
        A("s_barrier")
        pt(A, "t0")
        for r in wreads(0): A(r)
        if CFG.flagpos == -1: flag_x()
        if CFG.lm == 2:
            block(A, wmf(0), xreads(1, (1, 2)), True)
            pt(A, "u0")
            if CFG.flagpos == 0: flag_x()
            xr = xreads(0, (3, 4))
            block(A, xmf(1, 8), [xr[2*i] + "\n" + xr[2*i+1] for i in range(8)], False)
            pt(A, "u1")
            last = xmf(0, 8)
        else:
            if CFG.flagpos == -3:
                block(A, wmf(0), [], False)
                flag_x()
                A("s_barrier")
                for r in wreads(1): A(r)
            else: block(A, wmf(0), wreads(1), True)
            pt(A, "u0")
            if CFG.flagpos == 0: flag_x()
            block(A, wmf(1), xreads(0, (2, 3)), True)
            pt(A, "u1")
            if CFG.flagpos == 1: flag_x()
            block(A, xmf(0, 8), xreads(1, (4,)), False)
            last = xmf(1, 4)
    else:
        if CFG.flagpos == -2: flag_x()
        A("s_barrier")
        pt(A, "t0")
        for r in wreads(0): A(r)
        if CFG.flagpos == -1: flag_x()
        for u in range(4):
            block(A, wmf(u), wreads(u+1), True)
            pt(A, f"u{u}")
            if u == CFG.flagpos: flag_x()
        last = wmf(4)
    A(f"s_mul_i32 s3, s17, {16*RED_RS}\nv_add_u32 v6, s3, v254\ns_lshl_b32 s18, s16, 6\nv_add_u32 v4, s18, v6\ns_xor_b32 s17, s17, 1\ns_mul_i32 s3, s17, {16*RED_RS}\ns_add_u32 s3, s3, s18\nv_add_u32 v5, s3, v254")
    A("s_cmp_lg_u32 s16, s28\ns_cbranch_scc1 K2_nown")
    A(f"v_lshrrev_b32 v7, 5, v1\nv_xor_b32 v7, v7, v1\nv_lshlrev_b32 v7, 4, v7\nv_add_u32 v7, {PB_OWN}, v7")
    park = [f"ds_write_b128 v7, {v(PK+4*t,4)} offset:{t*PBS}" for t in range(9)]
    block(A, last, ["", "", "", "\n".join(park)] if CFG.lm else [x for w_ in park for x in (w_, "")], False)
    A("s_branch K2_nown1")
    A.label("K2_nown")
    block(A, last, [], False)
    A.label("K2_nown1")
    A("s_nop 3")
    for k in range(2):
        for j in range(2): A(f"ds_write_b128 v{4+j}, {v(WA+4*(2*k+j),4)} offset:{k*256}")
    A(f"ds_write_b128 v6, {v(WA+16,4)} offset:512")
    pt(A, "add")
    if CFG.lm and CFG.flagpos == 2: flag_x()
    A.label("K2_fin")
    def fin_x(n):
        FI = (244, 232)[n]; XB = FI + 4; D0 = 40 + 56*n
        for i in range(4): A(f"v_lshlrev_b32 v{D0+2*i}, 16, v{XB+i}\nv_and_b32 v{D0+1+2*i}, 0xffff0000, v{XB+i}")
        A(f"v_lshlrev_b32 v48, 16, v{FI+3}")
        for p in range(4): A(f"v_pk_add_f32 {v(D0+2*p,2)}, {v(D0+2*p,2)}, v[48:49] op_sel_hi:[1,0]")
    def fin(items):
        def addp(n, r):
            D0 = 40 + 56*n
            for i in range(4): A(f"v_lshlrev_b32 v{8+2*i}, 16, v{r+i}\nv_and_b32 v{9+2*i}, 0xffff0000, v{r+i}")
            for p in range(4): A(f"v_pk_add_f32 {v(D0+2*p,2)}, {v(D0+2*p,2)}, {v(8+2*p,2)}")
        for n in items: fin_x(n)
        A("s_waitcnt lgkmcnt(0)\ns_barrier")
        pt(A, "red")
        for n in items:
            FI = (244, 232)[n]; R = 16 + 12*n
            A(f"ds_read_b128 {v(R,4)}, v{FI+1}\nds_read_b128 {v(R+4,4)}, v{FI+1} offset:16\nds_read_b64 {v(R+8,2)}, v{FI+2}\nds_read_b64 {v(R+10,2)}, v{FI+2} offset:256")
        if CFG.lm:
            for n in items:
                FI = (244, 232)[n]
                A(f"v_subrev_u32 v50, {RED - REDL}, v{FI+1}\nds_read_b128 {v(60+8*n,4)}, v50\nds_read_b128 {v(64+8*n,4)}, v50 offset:16")
        xl = 2*len(items) if CFG.lm else 0
        left = 4*len(items) + xl
        for n in items:
            R = 16 + 12*n; D0 = 40 + 56*n
            A(f"s_waitcnt lgkmcnt({left-2})")
            for p in range(4): A(f"v_pk_add_f32 {v(D0+2*p,2)}, {v(D0+2*p,2)}, {v(R+2*p,2)}")
            left -= 4
            A(f"s_waitcnt lgkmcnt({left})")
            addp(n, R+8)
        if CFG.lm:
            for n in items:
                left -= 2
                A(f"s_waitcnt lgkmcnt({left})")
                for p in range(4): A(f"v_pk_add_f32 {v(40+56*n+2*p,2)}, {v(40+56*n+2*p,2)}, {v(60+8*n+2*p,2)}")
        A("s_waitcnt vmcnt(0)\ns_barrier")
        pt(A, "rx")
        for n in items:
            for q in range(3):
                A(f"ds_read_b64 {v(60+12*n+4*q,2)}, v{(252, 240)[n]} offset:{q*9*PBS}\nds_read_b64 {v(62+12*n+4*q,2)}, v{(252, 240)[n]} offset:{q*9*PBS + 256}")
        left = 6*len(items)
        for n in items:
            D0 = 40 + 56*n
            for q in range(3):
                left -= 2
                A(f"s_waitcnt lgkmcnt({left})")
                addp(n, 60+12*n+4*q)
            for p in range(4): A(f"v_cvt_pk_bf16_f32 v{52+4*n+p}, v{D0+2*p}, v{D0+1+2*p}")
            A(f"buffer_store_dwordx4 {v(52+4*n,4)}, v{(244, 232)[n]}, s[52:55], s50 offen {CFG.auxOut}")
    A("s_cmp_eq_u32 s16, 7\ns_cbranch_scc1 K2_fin2")
    fin([0])
    A("s_branch K2_done")
    A.label("K2_fin2")
    fin([0, 1])
    A.label("K2_done")
    pt(A, "fin")
    if CFG.amp:
        i0, i1, lo, hi = [int(x) for x in CFG.amp.split(",")]
        w = 7 if i1 == 13 and i0 == 0 else 0
        A("s_waitcnt vmcnt(0)")
        stamp(A, 13)
        A(f"s_cmp_lg_u32 s16, {w}\ns_cbranch_scc1 Z_end\ns_cmp_lt_u32 s2, {lo}\ns_cbranch_scc1 Z_end\ns_cmp_ge_u32 s2, {hi}\ns_cbranch_scc1 Z_end")
        A(f"s_waitcnt lgkmcnt(0)\ns_sub_u32 s6, s{64+2*i1}, s{64+2*i0}\ns_min_u32 s6, s6, 8000\ns_mul_i32 s6, s6, 10\ns_add_u32 s6, s6, 5000")
        A("Z_loop:\ns_sleep 1\ns_memrealtime s[4:5]\ns_waitcnt lgkmcnt(0)\ns_sub_u32 s7, s4, s64\ns_cmp_lt_u32 s7, s6\ns_cbranch_scc1 Z_loop\nZ_end:")
    elif CFG.probe:
        i, lo, hi = [int(x) for x in CFG.probe.split(",")]
        A(f"s_cmp_lg_u32 s16, 0\ns_cbranch_scc1 Z_end\ns_cmp_lt_u32 s2, {lo}\ns_cbranch_scc1 Z_end\ns_cmp_ge_u32 s2, {hi}\ns_cbranch_scc1 Z_end")
        A(f"Z_loop:\ns_sleep 1\ns_memrealtime s[4:5]\ns_waitcnt lgkmcnt(0)\ns_sub_u32 s7, s4, s{64+2*i}\ns_cmp_lt_u32 s7, 10000\ns_cbranch_scc1 Z_loop\nZ_end:")
    else: stamp_flush(A)
    A("s_endpgm")
    A.label("K2_ld")
    pt(A, "e1")
    k2_enter(A)
    A(f"s_cmp_eq_u32 s49, {OOB}\ns_cbranch_scc1 K2_ld1\ns_waitcnt vmcnt(0)")
    raise_flag(A, 49, 8)
    A.label("K2_ld1")
    if CFG.wreg == 1:
        A("s_cmp_lt_u32 s2, 144\ns_cbranch_scc1 K2_ld2")
        wot_flagaddr(A); wot_regs(A, False)
        A.label("K2_ld2")
    lend2 = None
    if CFG.wreg == 4:
        wot_flagaddr(A); wot_regs(A, False, load=False, skip="s_cmp_lt_u32 s2, 144" if CFG.w1at else None)
        if CFG.w1at: A(f"s_cmp_lt_u32 s2, 144\ns_cselect_b32 s3, {9216*CFG.w1n}, 0\ns_add_u32 s56, s56, s3")
        wat = [0]*(CFG.w1n if CFG.w1at else 0) + [int(c) for c in str(CFG.wat)]
        def lend2():
            X = A.newlabel("Lu")
            if CFG.nat:
                Y = A.newlabel("Lu")
                A(f"s_cmp_lt_u32 s2, 144\ns_cbranch_scc1 {Y}\ns_sub_u32 s3, s2, 208\ns_cmp_lt_u32 s3, 32\ns_cbranch_scc1 {X}")
                for n_, c in enumerate(str(CFG.nat)):
                    L = A.newlabel("Lu")
                    A(f"s_cmp_lg_u32 s20, {c}\ns_cbranch_scc1 {L}")
                    wot_chunk(A, CFG.wn - len(str(CFG.nat)) + n_)
                    A.label(L)
                A(f"s_branch {X}\n{Y}:")
            else: A(f"s_cmp_ge_u32 s2, 144\ns_cbranch_scc1 {X}")
            for c in (3, 2, 1):
                if c in wat:
                    L = A.newlabel("Lu")
                    A(f"s_cmp_lg_u32 s20, {c}\ns_cbranch_scc1 {L}")
                    for k in range(CFG.wn):
                        if wat[k] == c: wot_chunk(A, k)
                    A.label(L)
            A.label(X)
    def g_ring(issue, L, cnt):
        items = wot_items(); order = [(3, cnt), (4, cnt), (5, cnt)]
        for i in range(3, 12):
            pos = max(p for p, (k, _) in enumerate(order) if k == i)
            A(f"s_waitcnt vmcnt({sum(c for _, c in order[pos+1:])})\ns_barrier")
            take = items[:CFG.gsp]; del items[:CFG.gsp]
            for x in take: A(x)
            issue((i+3) % NST)
            order.append((i+3, cnt + len(take)))
        assert not items
        A(f"s_branch {L}_e")
    def first_chunks(at=9):
        n = 0
        if CFG.wreg == 4:
            for k in range(CFG.wn):
                if wat[k] == at: wot_chunk(A, k); n += 9
        return n
    if CFG.gsp:
        assert not CFG.nat and not CFG.w1at
        lend2 = None
    G2 = CFG.G2; altP = altW = None
    if CFG.own:
        G2 = "seq"
        A(f"s_mul_i32 s57, s28, 9\ns_sub_u32 s57, s24, s57\ns_lshl_b32 s57, s57, 1")
        if CFG.rev2: A("s_sub_u32 s58, 16, s57\ns_bitcmp1_b32 s2, 0\ns_cselect_b32 s57, s58, s57")
        A(f"s_cmp_lt_u32 s2, 144\ns_cselect_b32 s57, s57, 64\ns_cselect_b32 s58, {CFG.GO}, {CFG.G2}")
        if CFG.rot8: A("s_lshl_b32 s59, s22, 1\ns_add_u32 s59, s59, s23\ns_and_b32 s59, s59, 7\ns_mul_i32 s59, s59, s58\ns_lshr_b32 s59, s59, 3")
        else: A("s_add_u32 s59, s22, s23\ns_and_b32 s59, s59, 3\ns_mul_i32 s59, s59, s58\ns_lshr_b32 s59, s59, 2")
    elif G2: A(f"s_add_u32 s59, s22, s23\ns_and_b32 s59, s59, 3\ns_mul_i32 s59, s59, {CFG.G2}\ns_lshr_b32 s59, s59, 2")
    A(f"s_sub_u32 s29, s16, 4\ns_mul_i32 s34, s29, 9216")
    A(f"s_lshl_b32 s32, s22, 2\ns_add_u32 s32, s32, s29\ns_mul_i32 s32, s32, 46080\ns_add_u32 s32, s32, {WOT_OFF}")
    A("v_and_b32 v24, 63, v0\nv_lshlrev_b32 v20, 4, v24\nv_add_u32 v21, 4096, v20\nv_add_u32 v22, 8192, v20")
    srd(A, 36, 26, OB_OFF + OB_SZ)
    A("s_waitcnt lgkmcnt(0)")
    k2_final_prep(A, 2)
    A("s_lshl_b32 s30, s23, 2\ns_add_u32 s30, s30, s22\ns_lshl_b32 s30, s30, 2\ns_add_u32 s30, s30, s28\ns_lshl_b32 s30, s30, 2\ns_add_u32 s30, s30, s29")
    A(f"s_add_u32 s3, s30, {FX}\ns_lshl_b32 s3, s3, 7\nv_mov_b32 v32, s3\ns_mul_i32 s30, s30, 9216")
    A(f"s_cmp_gt_u32 s29, s28\ns_cselect_b32 s3, 1, 0\ns_sub_u32 s31, s29, s3\ns_mul_i32 s31, s31, {9*PBS}")
    A(f"s_lshl_b32 s40, s22, 2\ns_add_u32 s40, s40, s29\ns_mul_i32 s40, s40, 5\ns_add_u32 s40, s40, {FW}\nv_add_u32 v28, s40, v24\nv_cmp_gt_u32 vcc, 5, v24")
    A(f"s_lshl_b32 s33, s23, 2\ns_add_u32 s33, s33, s28\ns_lshl_b32 s33, s33, 2\ns_add_u32 s33, s33, s29\ns_lshr_b32 s40, s33, 1\ns_add_u32 s40, s40, {FO}")
    A(f"v_mov_b32 v29, s40\nv_cndmask_b32 v28, v29, v28, vcc\nv_lshlrev_b32 v28, 7, v28\ns_mul_i32 s33, s33, 10240\ns_add_u32 s33, s33, {OB_OFF}")
    def go_barrier(only_q=False):
        L = A.newlabel("Lg")
        A(f"s_sub_u32 s3, s2, 208\ns_cmp_ge_u32 s3, 32\ns_cbranch_scc1 {L}")
        if CFG.wreg == 4:
            for k in range(0 if CFG.qw else CFG.wn): wot_chunk(A, k)
        elif CFG.wreg >= 2:
            wot_flagaddr(A); wot_regs(A, False)
        A(f"s_and_b32 s3, s2, 1\ns_lshl_b32 s3, s3, 2\ns_add_u32 s3, s3, s29\ns_mul_i32 s3, s3, 6\ns_lshl_b32 s41, s3, 10\ns_add_u32 s41, s41, {KVF_OFF}\ns_add_u32 s3, s3, {FK}")
        A(f"v_min_u32 v14, 5, v24\nv_add_lshl_u32 v14, v14, s3, 7\ns_mul_i32 s43, s29, 6144\ns_add_u32 m0, s43, {P0}")
        poll2(A, 14, 16, CFG.slo, CFG.slo2)
        for b in range(6):
            if b == 4: A(f"s_add_u32 m0, s43, {P0 + 4096}\ns_nop 0")
            if b == 5: A("s_bitcmp1_b32 s29, 0\ns_cselect_b64 exec, 0xffff, -1")
            A(f"buffer_load_dwordx4 v{20+b//4}, s[36:39], s41 offen offset:{(b%4)*1024} sc1 lds")
        A("s_mov_b64 exec, -1\ns_waitcnt vmcnt(0)")
        if only_q: A("s_barrier")
        A.label(L)
        if not only_q: A("s_barrier")
        if CFG.wreg >= 2:
            L = A.newlabel("Lg")
            A(f"s_cmp_lt_u32 s2, 144\ns_cbranch_scc1 {L}\ns_sub_u32 s3, s2, 208\ns_cmp_lt_u32 s3, 32\ns_cbranch_scc1 {L}")
            if CFG.wreg == 4:
                for k in range(CFG.wn - (len(str(CFG.nat)) if CFG.nat else 0)): wot_chunk(A, k)
            else: wot_flagaddr(A); wot_regs(A, False)
            A("s_waitcnt vmcnt(0)")
            A.label(L)
    assert CFG.bgo == 2
    hook = {15: lambda: A("buffer_load_dwordx2 v[30:31], v28, s[96:99], 0 offen sc1")}
    if CFG.sfo:
        assert CFG.lm
        hook = {}
        A("s_lshl_b32 s48, s40, 7")
    def nine(so, base):
        for j in range(9):
            if j % 4 == 0: A(f"s_add_u32 m0, s34, {base + (j//4)*4096}\ns_nop 0")
            A(f"buffer_load_dwordx4 v{20+j//4}, s[36:39], s{so} offen offset:{(j%4)*1024} sc1 lds")
    def ld_o():
        L = A.newlabel("Lt")
        if CFG.sfo: A(f"s_waitcnt lgkmcnt(0)\ns_cmp_eq_u64 s[42:43], s[100:101]\ns_cbranch_scc1 {L}")
        else: A(f"v_cmp_ne_u64 vcc, s[100:101], v[30:31]\ns_nop 4\ns_cbranch_vccz {L}")
        poll(A, 28, 30)
        A.label(L)
        nine(33, O_LDS)
        A(f"s_lshl_b32 s3, s29, 10\ns_add_u32 m0, s3, {O_TOP - 1024}\ns_nop 0\nbuffer_load_dwordx4 v22, s[36:39], s33 offen offset:1024 sc1 lds")
    def ld_w(u, regs):
        if regs and CFG.w0 <= u < CFG.w0 + CFG.wn:
            def put():
                A(f"s_add_u32 s3, s34, {W_SLOT[u]*STAGE}\nv_add_u32 v36, s3, v20\ns_add_u32 s32, s32, 9216")
                for b in range(9): A(f"ds_write_b128 v36, {v(WR+36*(u-CFG.w0)+4*b,4)} offset:{b*1024}")
            return (f"w{u}", 0, put)
        def emit():
            nine(32, W_SLOT[u]*STAGE)
            A("s_add_u32 s32, s32, 9216")
        return (f"w{u}", 9, emit)
    sample = ("fx", 1, lambda: A("buffer_load_dwordx2 v[34:35], v32, s[96:99], 0 offen sc1"))
    def mksched(regs):
        after = {15: [("o", 10, ld_o)], 16: [ld_w(0, regs)], 17: [], 18: [ld_w(2, regs)], 19: [ld_w(3, regs)], 20: [ld_w(4, regs)], 21: []}
        after[18 if CFG.hold else 17].insert(0, ld_w(1, regs))
        after[CFG.smp or 20].append(sample)
        inreg = [u for u in range(5) if regs and CFG.w0 <= u < CFG.w0 + CFG.wn]
        lg = {18+u: (9 if u+1 in inreg else 0) for u in inreg}
        return (23, after, {18+u: f"w{u}" for u in range(4)} | {22: "fx"}, lg)
    sched = [mksched(CFG.wreg in (1, 2, 4))]
    if CFG.lm: sched = [(18, {13: [("sf", 0, lambda: A("s_load_dwordx2 s[42:43], s[96:97], s48"))] if CFG.sfo else [], 15: [("o", 10, ld_o)], 16: [ld_w(0, False)], 17: [] if CFG.hold or CFG.lm == 2 else [ld_w(1, False)]}, {}, {})]
    if CFG.wreg == 3: sched = [mksched(True), ("s_cmp_lt_u32 s2, 144", mksched(False))]
    A("s_cmp_ge_u32 s16, 6\ns_cbranch_scc1 K2_ldW")
    srd_off(A, 8, 26, U_OFF, U_SZ)
    A(f"s_sub_u32 s17, s16, 4\ns_lshl_b32 s21, s22, 2\ns_add_u32 s21, s21, s28\ns_mul_i32 s40, s21, 36\ns_mul_i32 s21, s21, {36*9216}")
    if 1:
        if CFG.hint2 >= 0:
            A(f"s_lshr_b32 s3, s40, 2\ns_and_b32 s41, s23, 7\ns_add_u32 s3, s3, s41\ns_add_u32 s3, s3, {FG}\ns_lshl_b32 s3, s3, 7\nv_mov_b32 v9, s3")
        A(f"s_add_u32 s40, s40, s17\ns_add_u32 s40, s40, {FU}\nv_min_u32 v8, 17, v24\nv_lshl_add_u32 v8, v8, 1, s40\nv_lshlrev_b32 v8, 7, v8")
    if CFG.own:
        def altP(issue, L):
            A("s_cmp_ge_u32 s2, 144\ns_cbranch_scc1 K2_pn\ns_barrier\ns_mov_b64 exec, 1\nbuffer_load_dwordx2 v[10:11], v8, s[96:99], 0 offen sc1\ns_barrier\ns_barrier")
            A("s_waitcnt vmcnt(0)\nv_cmp_ne_u64 vcc, s[100:101], v[10:11]\ns_nop 4\ns_cbranch_vccz K2_pg")
            poll(A, 8, 10, CFG.sl1)
            A.label("K2_pg")
            A("s_mov_b64 exec, -1")
            poll(A, 8, 10, CFG.sl2)
            pt(A, "go2")
            for sl in (2, 3, 0): issue(sl)
            A(f"s_branch {L}_2")
            A.label("K2_pn")
        def altW(issue, L):
            A(f"s_cmp_ge_u32 s2, 144\ns_cbranch_scc1 K2_wn\ns_mov_b32 s25, s21\ns_mul_i32 s21, s24, {128*4096}\ns_lshl_b32 s3, s23, 8\ns_add_u32 s21, s21, s3")
            issue(0, False)
            A(f"s_add_u32 s21, s21, {64*4096}")
            issue(1, False)
            A("s_mov_b32 s21, s25")
            if CFG.early: A("s_barrier")
            issue(2)
            A(f"s_branch {L}")
            A.label("K2_wn")
    if CFG.own >= 2:
        def altP(issue, L):
            A("s_cmp_ge_u32 s2, 144\ns_cbranch_scc1 K2_pn")
            first_chunks(7)
            A("s_barrier")
            k2_xloads(A)
            first_chunks(8)
            if CFG.own == 4:
                A("s_mov_b64 exec, 1")
                poll(A, 8, 10, CFG.sl1g)
                A("s_barrier")
                poll(A, 8, 10, CFG.sl2g)
            else: poll2(A, 8, 10, CFG.sl1g, CFG.sl2g)
            pt(A, "go2")
            if CFG.own == 3: A("s_barrier")
            issue(2); issue(3)
            A("s_waitcnt vmcnt(9)\ns_barrier")
            issue(0); issue(1)
            if CFG.gsp: g_ring(issue, L, 9)
            else:
                first_chunks()
                A(f"s_branch {L}_3")
            A.label("K2_pn")
            k2_xloads(A)
        def altW(issue, L):
            A(f"s_cmp_ge_u32 s2, 144\ns_cbranch_scc1 K2_wn\ns_mov_b32 s25, s21\ns_mul_i32 s21, s24, {128*4096}\ns_lshl_b32 s3, s23, 8\ns_add_u32 s21, s21, s3")
            if CFG.early != 2:
                issue(0, False)
                A(f"s_add_u32 s21, s21, {64*4096}")
                issue(1, False)
            A("s_mov_b32 s21, s25")
            if CFG.own > 2:
                if CFG.early: A("s_barrier")
                issue(2); issue(3)
                A("s_waitcnt vmcnt(16)\ns_barrier\ns_waitcnt vmcnt(8)\ns_barrier")
                issue(0); issue(1)
                if CFG.gsp: g_ring(issue, L, 8)
                else:
                    first_chunks()
                    A(f"s_branch {L}_3")
                A.label("K2_wn")
                return
            A(f"s_waitcnt vmcnt({first_chunks(7)})")
            def more():
                base = 16*CFG.pf2s + 32*CFG.pf2kv + 16*CFG.pf2q + 32*CFG.pf2l + 8*CFG.pf2ls
                A(f"s_mov_b64 s[40:41], s[56:57]\ns_mov_b32 s42, s58\ns_lshr_b32 s25, s2, 3\ns_lshl_b32 s25, s25, 1\ns_add_u32 s25, s25, s17\ns_add_u32 s25, s25, {base}")
                pf_w2(A, 4, 25, 36, CFG.pf2G, srdn=12)
                A("s_mov_b64 s[56:57], s[40:41]\ns_mov_b32 s58, s42")
            if CFG.pf2G and CFG.pf2Gp == 1: more()
            A("s_barrier")
            k2_xloads(A)
            issue(2); issue(3)
            if CFG.pf2G and CFG.pf2Gp == 0: more()
            A(f"s_waitcnt vmcnt({8 + (CFG.pf2G if CFG.pf2Gp == 0 else 0) + first_chunks(8)})\ns_barrier")
            issue(0); issue(1)
            if CFG.gsp: g_ring(issue, L, 8)
            else:
                first_chunks()
                A(f"s_branch {L}_3")
            A.label("K2_wn")
            k2_xloads(A)
        assert not CFG.xl or CFG.own == 2
        assert (CFG.early or CFG.own > 2) and not CFG.pft
    def wait_u():
        go_barrier()
        poll2(A, 8, 10, CFG.sl1, CFG.sl2, "s_cmp_lt_u32 s2, 144" if CFG.gdir else None, 9 if CFG.hint2 >= 0 else None)
        if CFG.dstag:
            mode, n = CFG.dstag.split(",")
            if mode == "ramp":
                A(f"s_lshr_b32 s3, s2, 5\nK2_ds:\ns_cmp_eq_u32 s3, 0\ns_cbranch_scc1 K2_ds1\ns_sleep {n}\ns_sub_u32 s3, s3, 1\ns_branch K2_ds\nK2_ds1:")
            else:
                A(f"s_cmp_lt_u32 s2, {mode}\ns_cbranch_scc1 K2_ds1\ns_sleep {n}\nK2_ds1:")
        pt(A, "go2")
    emit_loader_lin(A, 18, 9, POFF, 17, 8, 21, 20, 18, CFG.auxP, G2, pre=wait_u, hook=hook, sched=sched, alt=altP, loopend=lend2)
    A("s_branch K2_rx")
    A.label("K2_ldW")
    srd(A, 12, 4, S*F*2)
    A(f"s_sub_u32 s17, s16, 6\ns_mul_i32 s21, s28, {1152*4096}\ns_lshl_b32 s18, s23, 8\ns_add_u32 s21, s21, s18")
    every = None
    if CFG.pft:
        nl = -(-90 // CFG.pft)
        A(f"s_and_b32 s41, s23, 7\ns_lshl_b32 s42, s22, 3\ns_add_u32 s41, s41, s42\ns_lshl_b32 s41, s41, 1\ns_add_u32 s41, s41, s17\ns_mul_i32 s41, s41, 11520\ns_add_u32 s41, s41, {WOT_OFF}")
        A(f"v_mul_u32_u24 v26, {128*CFG.pft}, v24\nv_add_u32 v26, s41, v26\ns_bfm_b64 s[48:49], {nl}, 0\ns_mov_b32 s42, {-128*(18 - CFG.pft)}")
        def every():
            A(f"s_max_i32 s3, s42, 0\ns_cmp_lt_i32 s42, 0\ns_cselect_b32 s41, {OOB}, 0\nv_or_b32 v25, s41, v26\ns_mov_b64 exec, s[48:49]")
            A(f"buffer_load_dword v{SINK}, v25, s[36:39], s3 offen sc1\ns_mov_b64 exec, -1\ns_add_u32 s42, s42, 128")
    def mid():
        go_barrier(True)
    if CFG.early: A("s_cmp_lt_u32 s2, 144\ns_cbranch_scc1 K2_nob")
    A("s_sub_u32 s3, s2, 208\ns_cmp_lt_u32 s3, 32\ns_cbranch_scc1 K2_nob\ns_barrier\nK2_nob:")
    emit_loader_W(A, 18, "pi", 17, 12, 21, 4096, 20, 18, CFG.auxW2, G2, every=every, mid=mid, hook=hook, sched=sched, alt=altW, loopend=lend2)
    A.label("K2_rx")
    if CFG.lm:
        OF, LA = 136, 200
        A(f"v_add_u32 v2, {O_LDS}, v20\nv_add_u32 v3, {O_TOP}, v20")
        A(f"v_and_b32 v4, 15, v24\nv_mul_u32_u24 v4, {RED_RS}, v4\nv_lshrrev_b32 v5, 4, v24\nv_lshl_add_u32 v4, v5, 4, v4\ns_and_b32 s3, s29, 1\ns_mul_i32 s3, s3, {16*RED_RS}\nv_add_u32 v5, s3, v4")
        A(f"s_lshl_b32 s3, s29, 6\nv_add_u32 v4, s3, v4\nv_pk_mov_b32 v[216:217], 0, 0\nv_pk_mov_b32 v[218:219], 0, 0")
        def oreads(u):
            return [f"ds_read_b128 {v(OF+32*(u&1)+8*g+4*j,4)}, " + (f"v3 offset:{g*1024}" if (u, j) == (4, 1) else f"v2 offset:{g*9216 + (2*u+j)*1024}") for g in range(4) for j in range(2)]
        def lmf(u):
            return [f"{MF} {v(LA+8*k+4*j,4)}, {v(WR+32*(u-2)+8*g+4*k,4)}, {v(OF+32*(u&1)+8*g+4*j,4)}, {v(LA+8*k+4*j,4) if u > 2 or g else 0}" for g in range(4) for k in range(2) for j in range(2)]
        if CFG.lm == 2:
            def hreads(h):
                u = 1 + (h >> 1)
                return [f"ds_read_b128 {v(168+16*(h&1)+8*(g&1)+4*j,4)}, " + (f"v3 offset:{g*1024}" if (u, j) == (4, 1) else f"v2 offset:{g*9216 + (2*u+j)*1024}") for g in (2*(h&1), 2*(h&1)+1) for j in range(2)]
            def hmf(h):
                return [f"{MF} {v(LA+8*k+4*j,4)}, {v(WR+32*(h>>1)+8*g+4*k,4)}, {v(168+16*(h&1)+8*(g&1)+4*j,4)}, {v(LA+8*k+4*j,4) if h or g else 0}" for g in (2*(h&1), 2*(h&1)+1) for k in range(2) for j in range(2)]
            A("s_waitcnt vmcnt(0)\ns_barrier")
            for r in hreads(0): A(r)
            for h in range(8):
                if h == CFG.lb: A("s_barrier")
                if h == CFG.ls: A("buffer_load_dwordx2 v[34:35], v32, s[96:99], 0 offen sc1")
                block(A, hmf(h), hreads(h+1) if h < 7 else [], False)
        else:
            A(f"s_waitcnt vmcnt({0 if CFG.hold else 9})\ns_barrier")
            for r in oreads(2): A(r)
            smp = "buffer_load_dwordx2 v[34:35], v32, s[96:99], 0 offen sc1" if CFG.smp else "v_pk_mov_b32 v[34:35], 0, 0"
            if CFG.lord == 0:
                if CFG.hold: ld_w(1, False)[2]()
                block(A, lmf(2), oreads(3), False)
                A("s_waitcnt vmcnt(0)\ns_barrier")
                block(A, lmf(3), oreads(4), False)
                A("s_barrier\n" + smp)
                block(A, lmf(4), [], False)
            else:
                block(A, lmf(2), oreads(3), False)
                if CFG.hold: ld_w(1, False)[2]()
                block(A, lmf(3), oreads(4), False)
                block(A, lmf(4), [], False)
                A("s_waitcnt vmcnt(0)\ns_barrier\ns_barrier\n" + smp)
        A(f"ds_write_b128 v5, v[216:219] offset:{REDL + 512}\ns_nop 3")
        for k in range(2):
            for j in range(2): A(f"ds_write_b128 v4, {v(LA+8*k+4*j,4)} offset:{REDL + k*256 + j*16*RED_RS}")
        A("s_waitcnt vmcnt(0)")
    A("s_cmp_eq_u32 s29, s28\ns_cbranch_scc1 K2_fin")
    srd_off(A, 8, 26, PART_OFF, PART_SZ)
    A(f"s_add_u32 m0, s31, {PB}\nv_cmp_ne_u64 vcc, s[100:101], v[34:35]\nv_lshrrev_b32 v2, 5, v24\nv_xor_b32 v2, v2, v24\nv_lshlrev_b32 v2, 4, v2\ns_nop 1\ns_cbranch_vccz K2_rx1\ns_mov_b64 exec, 1")
    poll(A, 32, 34, CFG.slx)
    A.label("K2_rx1")
    pt(A, "poll")
    for t in range(9):
        A(f"buffer_load_dwordx4 v2, s[8:11], s30 offen sc1 lds\ns_add_u32 m0, m0, {PBS}\ns_add_u32 s30, s30, 1024")
    A("s_branch K2_fin")
    A.label("K_end")
    A("s_endpgm")
    DBG["on"] = False

def k2_xloads(A):
    if not CFG.xl: return 0
    L = A.newlabel("Lxl")
    srd(A, 40, 6, S*2)
    A("buffer_load_dwordx4 v[248:251], v244, s[44:47], s50 offen\nbuffer_load_ushort v247, v242, s[40:43], s51 offen")
    A(f"s_cmp_lg_u32 s16, 7\ns_cbranch_scc1 {L}\nbuffer_load_dwordx4 v[236:239], v232, s[44:47], s50 offen\nbuffer_load_ushort v235, v243, s[40:43], s51 offen\n{L}:")
    return 2
def k2_final_prep(A, nitems):
    srd(A, 8, 44, S*D*2)
    srd(A, 12, 6, S*2)
    srd(A, 52, 46, S*D*2)
    A("s_lshl_b32 s50, s23, 2\ns_add_u32 s50, s50, s28\ns_lshl_b32 s51, s50, 6\ns_mul_i32 s50, s50, 36864\ns_mul_i32 s17, s22, 288\ns_add_u32 s50, s50, s17")
    for n in range(nitems):
        FI = (244, 232)[n]; XB = FI + 4
        if n: A(f"v_mov_b32 v{FI}, {OOB}\ns_cmp_lg_u32 s16, 7\ns_cbranch_scc1 K2_fp1")
        A("v_mov_b32 v252, v0" if n == 0 else "v_and_b32 v252, 63, v0\nv_add_u32 v252, 512, v252")
        A("v_mul_u32_u24 v253, 3641, v252\nv_lshrrev_b32 v253, 16, v253\nv_mul_u32_u24 v254, 18, v253\nv_sub_u32 v254, v252, v254")
        A(f"v_mul_u32_u24 v252, 1152, v253\nv_lshl_add_u32 v{FI}, v254, 4, v252")
        A(f"v_mul_u32_u24 v252, {RED_RS}, v253\nv_lshl_add_u32 v{FI+1}, v254, 5, v252\nv_add_u32 v{FI+1}, {RED}, v{FI+1}")
        A(f"v_lshrrev_b32 v252, 1, v254\nv_mul_u32_u24 v252, {PBS}, v252\nv_and_b32 v254, 1, v254\nv_lshl_add_u32 v252, v254, 9, v252\nv_xor_b32 v254, v254, v253\nv_and_b32 v254, 15, v254")
        A(f"v_lshl_add_u32 v252, v254, 4, v252\nv_lshrrev_b32 v254, 4, v253\nv_lshl_add_u32 v252, v254, 3, v252\nv_add_u32 v{(241, 240)[n]}, {PB}, v252\nv_add_u32 v{FI+2}, {PB_OWN}, v252")
        if CFG.xl and nitems == 2:
            A(f"v_lshlrev_b32 v{242+n}, 1, v253")
            if n == 0: A(f"v_mov_b32 v243, {OOB}\ns_mov_b32 s46, {S*D*2}\ns_mov_b32 s47, 0x20000")
            if n: A.label("K2_fp1")
            continue
        A("v_lshlrev_b32 v253, 1, v253")
        A(f"buffer_load_dwordx4 {v(XB,4)}, v{FI}, s[8:11], s50 offen\nbuffer_load_ushort v{FI+3}, v253, s[12:15], s51 offen")
        if n: A.label("K2_fp1")
    A("v_mov_b32 v252, v241")

HEADER = open("parallel_sum__linear_kernel_hedgehog__mixer_token_mlp__prompt.s.ref").read().split("; Override launch")[0] if __name__ == "__main__" else ""

DOC = """;
; Hand-offs: write-through stores, vmcnt(0), then a flag line in d_ws that holds this launch's tag; readers use sc1 loads.
;"""

def gen(**kw):
    global CFG
    for k in dir(Cfg):
        if not k.startswith("_"): setattr(CFG, k, kw.get(k, getattr(Cfg, k)))
    A = Asm()
    if HEADER: A(HEADER.rstrip())
    A(DOC)
    A(f"; @launch grid=(256,1,1) block=(512,1,1) lds={LDS_BYTES}")
    A('.amdgcn_target "amdgcn-amd-amdhsa--gfx950"\n.text')
    gen_k0(A); gen_k1(A); gen_k2(A)
    A.label("CODE_END")
    A("s_endpgm")
    A('.section .rodata,"a"')
    kernel_desc(A, KNAME, 256)
    return A.text()

if __name__ == "__main__":
    out = sys.argv[1] if len(sys.argv) > 1 else "parallel_sum__linear_kernel_hedgehog__mixer_token_mlp__prompt.s"
    kw = {}
    for a in sys.argv[2:]:
        k, val = a.split("=")
        kw[k] = val if not val.lstrip("-").isdigit() else int(val)
    open(out, "w").write(gen(**kw))
```
